```python
import torch

def _softmax(x, axis=-1):
    return torch.softmax(x, dim=axis)
def _gelu(x):
    return torch.nn.functional.gelu(x, approximate="tanh")
def _silu(x):
    return torch.nn.functional.silu(x)
def _sigmoid(x):
    return torch.sigmoid(x)
def _layernorm(x, axis=-1, eps=1e-5):
    m = x.mean(dim=axis, keepdim=True)
    v = x.var(dim=axis, keepdim=True, unbiased=False)
    return (x - m) / torch.sqrt(v + eps)
def _scatter_add(tgt, idx, src, axis=0):
    return tgt.clone().index_add_(axis, idx, src)
def _segment_sum(src, seg, n):
    out = torch.zeros((n,) + src.shape[1:], dtype=src.dtype)
    return out.index_add_(0, seg, src)
def _pad(x, pw):
    flat = tuple(v for pair in reversed(pw) for v in pair)
    return torch.nn.functional.pad(x, flat)

kernel_name = 'gated_mix__ssm_conv_h3__compressed_kv_cla__prompt'

def setup_inputs():

    _w = (lambda a: (lambda t: t.to(torch.bfloat16) if t.is_floating_point() else t)(torch.as_tensor(a)))
    def _A_setup():
        B, S, D = 1, 2048, 640
        ks = 4
        return {
            "q": _w((lambda *s: torch.randn(*s, dtype=torch.bfloat16) * 0.05)(B, S, D)),
            "k": _w((lambda *s: torch.randn(*s, dtype=torch.bfloat16) * 0.4)(B, S, D)),
            "v": _w((lambda *s: torch.randn(*s, dtype=torch.bfloat16) * 0.4)(B, S, D)),
            "shift_k": _w((lambda *s: torch.randn(*s, dtype=torch.bfloat16) * 0.4)(D, ks) * 0.5),
            "ssm_k": _w((lambda *s: torch.randn(*s, dtype=torch.bfloat16) * 0.8)(D, S) * (1.0 / S ** 0.5)),
            "ssm_D": _w((lambda *s: torch.randn(*s, dtype=torch.bfloat16) * 0.4)(D)),
        }
    _A_in = _A_setup()

    def _B_setup():
        B, H, Sq, Sk, D, M = 1, 32, 2048, 2048, 128, 640
        Dc = 4 * D
        return {
            "x": _w((lambda *s: torch.randn(*s, dtype=torch.bfloat16) * 0.05)(B, Sq, M)),
            "c_kv": _w((lambda *s: torch.randn(*s, dtype=torch.bfloat16) * 0.4)(B, Sk, Dc)),
            "w_q": _w((lambda *s: torch.randn(*s, dtype=torch.bfloat16) * 6.4)(M, H, D) * (M ** -0.5)),
            "w_uk": _w((lambda *s: torch.randn(*s, dtype=torch.bfloat16) * 6.4)(Dc, H, D) * (Dc ** -0.5)),
            "w_uv": _w((lambda *s: torch.randn(*s, dtype=torch.bfloat16) * 0.4)(Dc, H, D) * (Dc ** -0.5)),
            "w_o": _w((lambda *s: torch.randn(*s, dtype=torch.bfloat16) * 0.4)(H, D, M) * ((H * D) ** -0.5)),
        }
    _B_in = _B_setup()

    return {
        "A_q": _A_in["q"],
        "A_k": _A_in["k"],
        "A_v": _A_in["v"],
        "A_shift_k": _A_in["shift_k"],
        "A_ssm_k": _A_in["ssm_k"],
        "A_ssm_D": _A_in["ssm_D"],
        "B_x": _B_in["x"],
        "B_c_kv": _B_in["c_kv"],
        "B_w_q": _B_in["w_q"],
        "B_w_uk": _B_in["w_uk"],
        "B_w_uv": _B_in["w_uv"],
        "B_w_o": _B_in["w_o"],
        "gate_w": _w((lambda *s: torch.randn(*s, dtype=torch.bfloat16) * 0.05)(640) * 16.0),
    }

def reference(A_q, A_k, A_v, A_shift_k, A_ssm_k, A_ssm_D, B_x, B_c_kv, B_w_q, B_w_uk, B_w_uv, B_w_o, gate_w):
    def _A_ref(q, k, v, shift_k, ssm_k, ssm_D):
        B, S, D = q.shape
        ks = shift_k.shape[-1]
        k_pad = _pad(k, ((0, 0), (ks - 1, 0), (0, 0)))
        k_shift = torch.zeros_like(k)
        for t in range(ks):
            k_shift = k_shift + k_pad[:, t:t + S, :] * shift_k[:, ks - 1 - t][None, None, :]
        kv = k_shift * v
        L = 2 * S
        kv_pad = _pad(kv, ((0, 0), (0, S), (0, 0)))
        kf_pad = _pad(ssm_k, ((0, 0), (0, S)))
        kv_f = (lambda x, axes=(-2,-1): torch.fft.rfft2(x.float(), dim=axes))(kv_pad[:, None, :, :], axes=(1, 2))
        kf_f = (lambda x, axes=(-2,-1): torch.fft.rfft2(x.float(), dim=axes))(kf_pad[:, None, :], axes=(1, 2))
        kf_f = (lambda x, *d: x.permute(*d))(kf_f, 1, 2, 0)
        y_f = kv_f * kf_f[None, :, :, :]
        y = (lambda x, s, axes=(-2,-1): torch.fft.irfft2(x, s=s, dim=axes).to(torch.bfloat16))(y_f, (1, L), axes=(1, 2))[:, 0, :S, :]
        y = y + kv * ssm_D[None, None, :]
        return q * y

    def _B_ref(x, c_kv, w_q, w_uk, w_uv, w_o):
        B, Sq, M = x.shape[0], x.shape[1], x.shape[2]
        Sk = c_kv.shape[1]
        H, D = w_q.shape[1], w_q.shape[2]
        q = torch.einsum("bqm,mhd->bhqd", x, w_q)
        k = torch.einsum("bkc,chd->bhkd", c_kv, w_uk)
        v = torch.einsum("bkc,chd->bhkd", c_kv, w_uv)
        scores = torch.einsum("bhqd,bhkd->bhqk", q, k) * (D ** -0.5)
        off = Sk - Sq
        qi = torch.arange(Sq)[:, None]
        kj = torch.arange(Sk)[None, :]
        cmask = kj <= (qi + off)
        scores = torch.where(cmask[None, None], scores, -1e9)
        p = _softmax(scores, axis=-1)
        ctx = torch.einsum("bhqk,bhkd->bhqd", p, v)
        return torch.einsum("bhqd,hdm->bqm", ctx, w_o)

    x = A_q
    g = _sigmoid((x * gate_w).sum(-1, keepdims=True))
    a = _A_ref(x, A_k, A_v, A_shift_k, A_ssm_k, A_ssm_D)
    b = _B_ref(x, B_c_kv, B_w_q, B_w_uk, B_w_uv, B_w_o)
    return g * a + (1 - g) * b
```

```python
import re

class Asm:
    GUID = 0
    def __init__(self):
        self.lines = []
        self._uid = 0
    def __call__(self, s):
        for ln in s.split("\n"):
            ln = ln.strip()
            if ln:
                self.lines.append(ln)
    def label(self, name):
        self.lines.append(name + ":")
    def uid(self, p="L"):
        Asm.GUID += 1
        return f"{p}_{Asm.GUID}"
    def comment(self, s):
        self.lines.append("; " + s)

def vr(b, n=1):
    return f"v{b}" if n == 1 else f"v[{b}:{b+n-1}]"
def sr(b, n=1):
    return f"s{b}" if n == 1 else f"s[{b}:{b+n-1}]"

_REG = re.compile(r"^(-|\|)?(abs\()?([vsa])(?:(\d+)|\[(\d+):(\d+)\])\)?\|?$")
def regs_of(tok):
    tok = tok.strip()
    if tok in ("vcc",): return [("s", 106), ("s", 107)]
    if tok == "vcc_lo": return [("s", 106)]
    if tok == "vcc_hi": return [("s", 107)]
    if tok == "exec": return [("s", 126), ("s", 127)]
    if tok == "exec_lo": return [("s", 126)]
    if tok == "exec_hi": return [("s", 127)]
    if tok == "m0": return [("s", 124)]
    m = _REG.match(tok)
    if not m: return []
    f = m.group(3)
    if m.group(4) is not None:
        return [(f, int(m.group(4)))]
    return [(f, i) for i in range(int(m.group(5)), int(m.group(6)) + 1)]

TRANS = ("v_exp_f32", "v_log_f32", "v_rcp_f32", "v_rsq_f32", "v_sqrt_f32", "v_sin_f32", "v_cos_f32", "v_rcp_iflag_f32")
VCC = [("s", 106), ("s", 107)]
M0 = ("s", 124)

class Ins:
    __slots__ = ("text", "mn", "ops", "mods", "cls", "wr", "rd", "srcc", "srcab", "passes", "target", "ws", "wide_store", "lds_dma", "sel_read", "cmask")
    def __init__(self, text):
        self.text = text
        t = text.split(";")[0].strip()
        parts = t.split(None, 1)
        mn = parts[0]
        for suf in ("_e32", "_e64", "_dpp", "_sdwa"):
            if mn.endswith(suf): mn = mn[: -len(suf)]
        self.mn = mn
        rest = parts[1] if len(parts) > 1 else ""
        toks = [x.strip() for x in rest.split(",")] if rest else []
        mods = []
        if toks:
            last = toks[-1].split()
            if len(last) > 1:
                toks[-1] = last[0]
                mods = last[1:]
        self.ops = toks
        self.mods = mods
        self.wr, self.rd = set(), set()
        self.srcc, self.srcab = set(), set()
        self.cmask = set()
        self.passes = 0
        self.target = None
        self.ws = 1
        self.wide_store = False
        self.lds_dma = False
        R = lambda i: regs_of(toks[i]) if i < len(toks) else []
        allr = lambda a: [r for i in range(a, len(toks)) for r in R(i)]
        if mn.startswith("v_mfma"):
            self.cls = "mfma"
            self.wr |= set(R(0)); self.srcab = set(R(1)) | set(R(2)); self.srcc = set(R(3))
            self.rd |= self.srcab | self.srcc
            self.passes = 8 if "32x32" in mn else 4
        elif mn.startswith("v_cmp"):
            self.cls = "valu"
            self.wr |= set(R(0)); self.rd |= set(allr(1))
            if mn.startswith("v_cmpx"): self.wr |= {("s", 126), ("s", 127)}
        elif mn.startswith("v_permlane") :
            self.cls = "valu"
            self.wr |= set(R(0)) | set(R(1)); self.rd |= set(R(0)) | set(R(1))
        elif mn.startswith("v_"):
            self.cls = "trans" if mn in TRANS else "valu"
            if mn == "v_nop":
                pass
            elif mn in ("v_add_co_u32", "v_sub_co_u32", "v_subrev_co_u32"):
                self.wr |= set(R(0)) | set(R(1)); self.rd |= set(allr(2))
            elif mn in ("v_addc_co_u32", "v_subb_co_u32"):
                self.wr |= set(R(0)) | set(R(1)); self.rd |= set(allr(2))
            elif mn == "v_cndmask_b32":
                self.wr |= set(R(0)); self.rd |= set(allr(1))
                if len(toks) < 4: self.rd |= set(VCC)
            else:
                self.wr |= set(R(0)); self.rd |= set(allr(1))
                if mn.startswith(("v_fmac", "v_mac", "v_dot2c", "v_pk_fmac", "v_writelane")): self.rd |= set(R(0))
        elif mn.startswith("ds_"):
            self.cls = "ds"
            if mn.startswith(("ds_read", "ds_bpermute", "ds_permute", "ds_swizzle")) or "_rtn" in mn:
                self.wr |= set(R(0)); self.rd |= set(allr(1))
            else:
                self.rd |= set(allr(0))
        elif mn.startswith("buffer_"):
            self.cls = "vmem"
            if "lds" in mods:
                self.lds_dma = True
                self.rd |= set(allr(0)) | {M0}
            elif mn.startswith("buffer_load"):
                self.wr |= set(R(0)); self.rd |= set(allr(1))
            else:
                self.rd |= set(allr(0))
                if mn.endswith("x4") or mn.endswith("x3"):
                    self.wide_store = True; self.srcab = set(R(0))
                if "atomic" in mn and "sc0" in mods: self.wr |= set(R(0))
        elif mn.startswith("global_"):
            self.cls = "vmem"
            if mn.startswith("global_load_lds"):
                self.lds_dma = True
                self.rd |= set(allr(0)) | {M0}
            elif mn.startswith("global_load"):
                self.wr |= set(R(0)); self.rd |= set(allr(1))
            else:
                self.rd |= set(allr(0))
                if mn.endswith("x4") or mn.endswith("x3"):
                    self.wide_store = True; self.srcab = set(R(1))
        elif mn.startswith("s_"):
            self.cls = "salu"
            if mn == "s_nop":
                self.ws = int(toks[0], 0) + 1
            elif mn in ("s_branch",) or mn.startswith("s_cbranch"):
                self.cls = "branch"; self.target = toks[0]
            elif mn == "s_endpgm":
                self.cls = "end"
            elif mn.startswith(("s_cmp", "s_bitcmp")):
                self.rd |= set(allr(0))
            elif mn in ("s_waitcnt", "s_barrier", "s_setprio", "s_sleep"):
                pass
            elif mn.startswith(("s_load", "s_buffer_load", "s_memtime", "s_memrealtime")):
                self.cls = "smem"
                self.wr |= set(R(0)); self.rd |= set(allr(1))
            else:
                self.wr |= set(R(0)); self.rd |= set(allr(1))
                if "saveexec" in mn: self.wr |= {("s", 126), ("s", 127)}
                if mn in ("s_addk_i32", "s_mulk_i32"): self.rd |= set(R(0))
        else:
            raise ValueError("unknown instruction: " + text)

def isvalu(i): return i.cls in ("valu", "trans")
def vset(s): return {r for r in s if r[0] in "va"}
def sset(s): return {r for r in s if r[0] == "s"}

def need(p, c):
    n = 0
    if isvalu(p):
        pw_v, pw_s = vset(p.wr), sset(p.wr)
        if c.cls == "mfma" and pw_v & c.rd: n = max(n, 2)
        if c.cls == "mfma" and ("s", 126) in pw_s: n = max(n, 4)
        if p.cls == "trans" and c.cls == "valu" and pw_v & (c.rd | c.wr): n = max(n, 1)
        if isvalu(c) and pw_s & sset(c.rd):
            n = max(n, 4 if c.mn in ("v_readlane_b32", "v_writelane_b32") else 2)
        if c.cls == "vmem" and pw_s & sset(c.rd): n = max(n, 5)
        if c.mn in ("v_readfirstlane_b32", "v_readlane_b32") and pw_v & c.rd: n = max(n, 1)
        if c.mn.startswith("v_permlane") and pw_v & c.rd: n = max(n, 2)
        if isvalu(c) and any(m.startswith(("row_", "quad_perm", "wave_")) for m in c.mods) and pw_v & c.rd: n = max(n, 2)
        if any(m.startswith(("op_sel", "dst_sel")) for m in p.mods) and isvalu(c) and pw_v & (c.rd | c.wr): n = max(n, 1)
        if c.cls in ("salu", "branch") and pw_s & sset(c.rd): n = max(n, 1)
        if c.mn == "v_div_fmas_f32" and pw_s & set(VCC): n = max(n, 4)
    if p.cls == "mfma":
        big = p.passes == 8
        if c.cls == "mfma":
            if p.wr & c.srcc and not (p.wr == c.srcc and p.passes == c.passes): n = max(n, 10 if big else 6)
            if p.wr & c.srcab: n = max(n, 12 if big else 8)
            if p.wr & c.wr and not (p.wr & c.srcc): n = max(n, 10 if big else 6)
        elif isvalu(c) or c.cls in ("ds", "vmem"):
            if p.wr & (c.rd | c.wr): n = max(n, 12 if big else 8)
        if isvalu(c) and p.srcc & c.wr: n = max(n, 7 if big else 3)
        if c.cls in ("ds", "vmem") and p.srcc & c.wr: n = max(n, 7 if big else 3)
    if p.cls == "salu" and M0 in p.wr and c.lds_dma: n = max(n, 1)
    if p.wide_store and p.srcab & c.wr: n = max(n, 2 if isvalu(c) or c.cls == "mfma" else 1)
    return n

MAXD = 12
def fix_hazards(lines, verbose=False):
    total = 0
    while True:
        ins, idx, labels = [], [], {}
        for li, ln in enumerate(lines):
            s = ln.split(";")[0].strip()
            if not s or s.startswith("."): continue
            if s.endswith(":"):
                labels[s[:-1]] = len(ins); continue
            ins.append(Ins(s)); idx.append(li)
        n = len(ins)
        def succ(i):
            I = ins[i]
            if I.cls == "end": return []
            if I.cls == "branch":
                t = labels[I.target]
                return [t] if I.mn == "s_branch" else [t, i + 1]
            return [i + 1] if i + 1 < n else []
        fixes = {}
        for i, p in enumerate(ins):
            if not (isvalu(p) or p.cls == "mfma" or p.wide_store or (p.cls == "salu" and M0 in p.wr)): continue
            stack = [(j, 0) for j in succ(i)]
            seen = {}
            while stack:
                j, d = stack.pop()
                if j >= n or d >= MAXD: continue
                if seen.get(j, 99) <= d: continue
                seen[j] = d
                k = need(p, ins[j])
                if k > d:
                    fixes[j] = max(fixes.get(j, 0), k - d)
                for t in succ(j):
                    stack.append((t, d + ins[j].ws))
        if not fixes: break
        done = []
        for j in sorted(fixes):
            if done and j - done[-1] < MAXD: continue
            done.append(j)
        for j in reversed(done):
            k = fixes[j]
            if verbose: print("hazard: +%d before %s" % (k, ins[j].text))
            lines.insert(idx[j], f"s_nop {k-1}")
            total += 1
    return total

def kernel_text(name, lines, vgpr, sgpr=102, extra=""):
    body = "\n".join(("    " + l if not l.endswith(":") else l) for l in lines)
    acc = (vgpr + 3) // 4 * 4
    acc = min(acc, 256)
    code = f""".globl {name}
.p2align 8
.type {name},@function
{name}:
{body}
"""
    desc = f""".p2align 6
.amdhsa_kernel {name}
  .amdhsa_next_free_vgpr {vgpr}
  .amdhsa_next_free_sgpr {sgpr}
  .amdhsa_accum_offset {acc}
  .amdhsa_group_segment_fixed_size 0
  .amdhsa_kernarg_size 128
  .amdhsa_user_sgpr_count 2
  .amdhsa_user_sgpr_kernarg_segment_ptr 1
  .amdhsa_system_sgpr_workgroup_id_x 1
{extra}.end_amdhsa_kernel
"""
    return code, desc
```

```python
import sys
from asmlib import *

MB = 1 << 20
WS_KF, WS_VF, WS_CTX, WS_WOT, WS_KVT, WS_Y2T, WS_G = 0, 16 * MB, 32 * MB, 48 * MB, 56 * MB, 60 * MB, 63 * MB
SZ_KF = 16 * MB
KA = dict(A_q=0, A_k=8, A_v=16, shift=24, ssm_k=32, ssm_D=40, B_x=48, c_kv=56, w_q=64, w_uk=72, w_uv=80, w_o=88,
          gate=96, out=104, dbg=112, ws=120)
MFMA32 = "v_mfma_f32_32x32x16_bf16"
MFMA16 = "v_mfma_f32_16x16x32_bf16"

def srd(a, d, lo, hi, size, add=0):
    if add:
        a(f"s_add_u32 s{d}, s{lo}, {add}")
        a(f"s_addc_u32 s{d+1}, s{hi}, 0")
    else:
        a(f"s_mov_b32 s{d}, s{lo}")
        a(f"s_mov_b32 s{d+1}, s{hi}")
    a(f"s_mov_b32 s{d+2}, {size}")
    a(f"s_mov_b32 s{d+3}, 0x00020000")

STAMP = "-stamp" in sys.argv
class Stamps:
    def __init__(self, a, base=64):
        self.a, self.base, self.n = a, base, 0
    def mark(self):
        if not STAMP: return
        self.a(f"s_memtime s[{self.base+2*self.n}:{self.base+2*self.n+1}]")
        self.n += 1
    def real(self):
        if not STAMP: return
        self.a(f"s_memrealtime s[{self.base+2*self.n}:{self.base+2*self.n+1}]")
        self.n += 1
    def flush(self, wg, sW, wave, n=None, slot=0):
        if not STAMP: return
        a = self.a
        lab = a.uid("STK")
        a(f"s_cmp_lg_u32 s2, {wg}")
        a(f"s_cbranch_scc1 {lab}")
        a(f"s_cmp_lg_u32 s{sW}, {wave}")
        a(f"s_cbranch_scc1 {lab}")
        a(f"s_load_dwordx2 s[60:61], s[0:1], {KA['dbg']}")
        a("s_waitcnt lgkmcnt(0)")
        a("s_mov_b32 s62, 256")
        a("s_mov_b32 s63, 0x00020000")
        a("v_mov_b32 v1, 0")
        for i in range(n or self.n):
            a(f"v_mov_b32 v2, s{self.base+2*i}")
            a(f"buffer_store_dword v2, v1, s[60:63], 0 offen offset:{slot*128+4*i}")
        a("s_waitcnt vmcnt(0)")
        a.label(lab)

def gen_kvproj(a):
    S_C, S_W, S_O = 4, 8, 12
    sH, sKVB, sW, sPART, sKVH, sDH, sCO, sWO, sM0C, sM0W, sT, sOB = 16, 17, 18, 19, 28, 29, 30, 31, 32, 33, 34, 35
    vCD, vWD, vAC, vAW, vL16 = 4, 8, 12, 16, 18
    CF = [32, 56]; WF = [48, 72]
    ACC = 128
    a("s_cmp_ge_u32 s2, 256")
    a("s_cbranch_scc1 KV_END")
    sp = Stamps(a); sp.real(); sp.mark()
    a(f"s_load_dwordx2 s[20:21], s[0:1], {KA['c_kv']}")
    a(f"s_load_dwordx4 s[24:27], s[0:1], {KA['w_uk']}")
    a(f"s_load_dwordx2 s[22:23], s[0:1], {KA['ws']}")
    a("v_lshrrev_b32 v1, 6, v0")
    a("v_and_b32 v0, 63, v0")
    a(f"v_readfirstlane_b32 s{sW}, v1")
    a(f"s_and_b32 s{sH}, s2, 31")
    a(f"s_lshr_b32 s{sKVB}, s2, 5")
    a(f"s_lshr_b32 s{sPART}, s{sW}, 2")
    a(f"s_and_b32 s{sKVH}, s{sW}, 1")
    a(f"s_bfe_u32 s{sDH}, s{sW}, 0x10001")
    a("v_lshrrev_b32 v1, 3, v0")
    a("v_and_b32 v2, 7, v0")
    a("v_lshrrev_b32 v3, 4, v0")
    a("v_xor_b32 v2, v2, v3")
    a("v_lshlrev_b32 v2, 4, v2")
    a(f"v_lshl_add_u32 v{vCD}, v1, 10, v2")
    a(f"v_xor_b32 v{vCD+1}, 64, v{vCD}")
    a(f"v_add_u32 v{vCD+1}, {8192-1024}, v{vCD+1}")
    a(f"v_add_u32 v{vCD+2}, {2*(8192-1024)}, v{vCD}")
    a(f"v_add_u32 v{vCD+3}, {2*(8192-1024)}, v{vCD+1}")
    a("v_and_b32 v1, 15, v0")
    a("v_lshlrev_b32 v2, 2, v3")
    a("v_xor_b32 v1, v1, v2")
    a("v_lshlrev_b32 v1, 4, v1")
    a(f"v_lshl_add_u32 v{vWD}, v3, 13, v1")
    for i in range(1, 4):
        a(f"v_add_u32 v{vWD+i}, {i*(4*8192-1024)}, v{vWD}")
    a(f"s_lshl_b32 s{sCO}, s{sKVB}, 18")
    a(f"s_lshl_b32 s{sT}, s{sW}, 15")
    a(f"s_add_u32 s{sCO}, s{sCO}, s{sT}")
    a(f"s_and_b32 s{sT}, s{sW}, 3")
    a(f"s_lshl_b32 s{sWO}, s{sT}, 17")
    a(f"s_lshl_b32 s{sM0W}, s{sT}, 12")
    a(f"s_lshl_b32 s{sT}, s{sH}, 8")
    a(f"s_add_u32 s{sWO}, s{sWO}, s{sT}")
    a(f"s_lshl_b32 s{sM0C}, s{sW}, 12")
    a(f"s_lshl_b32 s{sT}, s{sPART}, 14")
    a(f"s_add_u32 s{sM0W}, s{sM0W}, s{sT}")
    a(f"s_add_u32 s{sM0W}, s{sM0W}, 65536")
    a("s_waitcnt lgkmcnt(0)")
    srd(a, S_C, 20, 21, 2 * MB)
    a(f"s_cmp_eq_u32 s{sPART}, 0")
    a(f"s_cselect_b32 s{S_W}, s24, s26")
    a(f"s_cselect_b32 s{S_W+1}, s25, s27")
    a(f"s_mov_b32 s{S_W+2}, {4*MB}")
    a(f"s_mov_b32 s{S_W+3}, 0x00020000")
    srd(a, S_O, 22, 23, 32 * MB)

    def dma(st):
        out = []
        buf = (st & 1) * 32768
        out.append([f"s_add_u32 m0, s{sM0C}, {buf}" if buf else f"s_mov_b32 m0, s{sM0C}",
                    f"s_add_u32 s{sT}, s{sCO}, {st*128}",
                    f"buffer_load_dwordx4 v{vCD}, s[{S_C}:{S_C+3}], s{sT} offen lds"])
        for i in range(1, 4):
            out.append([f"buffer_load_dwordx4 v{vCD+i}, s[{S_C}:{S_C+3}], s{sT} offen offset:{i*1024} lds"])
        out.append([f"s_add_u32 m0, s{sM0W}, {buf}" if buf else f"s_mov_b32 m0, s{sM0W}",
                    f"s_add_u32 s{sT}, s{sWO}, {st*64*8192}",
                    f"buffer_load_dwordx4 v{vWD}, s[{S_W}:{S_W+3}], s{sT} offen lds"])
        for i in range(1, 4):
            out.append([f"buffer_load_dwordx4 v{vWD+i}, s[{S_W}:{S_W+3}], s{sT} offen offset:{i*1024} lds"])
        return out
    for st in range(2):
        for g in dma(st):
            for x in g: a(x)
    a("v_and_b32 v1, 31, v0")
    a("v_lshrrev_b32 v2, 5, v0")
    a("v_bfe_u32 v3, v0, 1, 3")
    a("v_xor_b32 v3, v3, v2")
    a("v_lshlrev_b32 v3, 4, v3")
    a("v_lshl_add_u32 v3, v1, 7, v3")
    a(f"s_lshl_b32 s{sT}, s{sKVH}, 14")
    a(f"v_add_u32 v{vAC}, s{sT}, v3")
    for t in range(1, 4):
        a(f"v_xor_b32 v{vAC+t}, {t*32}, v{vAC}")
    a("v_bfe_u32 v1, v0, 2, 2")
    a("v_lshl_add_u32 v3, v2, 3, v1")
    a("v_lshlrev_b32 v3, 8, v3")
    a("v_bfe_u32 v20, v0, 4, 1")
    a("v_lshl_add_u32 v3, v20, 5, v3")
    a("v_bfe_u32 v20, v0, 1, 1")
    a("v_lshl_add_u32 v3, v20, 4, v3")
    a("v_and_b32 v20, 1, v0")
    a("v_lshl_add_u32 v3, v20, 3, v3")
    a(f"s_lshl_b32 s{sT}, s{sPART}, 14")
    a(f"s_add_u32 s{sT}, s{sT}, 65536")
    a(f"v_add_u32 v3, s{sT}, v3")
    a(f"s_lshl_b32 s{sT}, s{sDH}, 1")
    a(f"v_xor_b32 v20, s{sT}, v1")
    a(f"v_lshl_add_u32 v{vAW}, v20, 6, v3")
    a("v_xor_b32 v20, 1, v20")
    a(f"v_lshl_add_u32 v{vAW+1}, v20, 6, v3")
    a(f"v_lshlrev_b32 v{vL16}, 4, v0")
    a(f"s_lshl_b32 s{sOB}, s{sH}, 6")
    a(f"s_lshl_b32 s{sT}, s{sKVB}, 3")
    a(f"s_add_u32 s{sOB}, s{sOB}, s{sT}")
    a(f"s_lshl_b32 s{sT}, s{sKVH}, 2")
    a(f"s_add_u32 s{sOB}, s{sOB}, s{sT}")
    a(f"s_lshl_b32 s{sOB}, s{sOB}, 13")

    def reads(st, t):
        s = (st * 4 + t) & 1
        buf = (st & 1) * 32768
        r = []
        for dtl in range(2):
            for hf in range(2):
                r.append(f"ds_read_b64_tr_b16 {vr(WF[s]+dtl*4+hf*2,2)}, v{vAW+dtl} offset:{buf+t*4096+hf*1024}")
        for kt in range(4):
            r.append(f"ds_read_b128 {vr(CF[s]+kt*4,4)}, v{vAC+t} offset:{buf+kt*4096}")
        return [r[0], r[1], r[4], r[5], r[6], r[7], r[2], r[3]]

    a("s_waitcnt vmcnt(8)")
    a("s_barrier")
    sp.mark(); n0 = sp.n
    for x in reads(0, 0): a(x)
    a(f"s_cmp_lg_u32 s{sPART}, 0")
    a("s_cbranch_scc1 KV_V")
    for part in range(2):
        if part == 1: a.label("KV_V")
        sp.n = n0
        for st in range(8):
            for t in range(4):
                s = (st * 4 + t) & 1
                nxt, dm = [], []
                a("s_waitcnt lgkmcnt(0)")
                if t < 3:
                    nxt = reads(st, t + 1)
                elif st < 7:
                    a("s_waitcnt vmcnt(0)")
                    a("s_barrier")
                    sp.mark()
                    nxt = reads(st + 1, 0)
                    if st < 6: dm = dma(st + 2)
                j = 0
                for dtl in range(2):
                    for kt in range(4):
                        acc = vr(ACC + (dtl * 4 + kt) * 16, 16)
                        w, c = vr(WF[s] + dtl * 4, 4), vr(CF[s] + kt * 4, 4)
                        cin = "0" if (st == 0 and t == 0) else acc
                        if part == 0: a(f"{MFMA32} {acc}, {w}, {c}, {cin}")
                        else: a(f"{MFMA32} {acc}, {c}, {w}, {cin}")
                        for x in nxt[2 * j: 2 * j + 2]: a(x)
                        if j >= 4:
                            for g in dm[2 * (j - 4): 2 * (j - 4) + 2]:
                                for x in g: a(x)
                        j += 1
        sp.mark()
        if part == 0:
            a(f"s_lshl_b32 s{sT}, s{sDH}, 12")
            a(f"s_add_u32 s{sOB}, s{sOB}, s{sT}")
        else:
            a(f"s_lshl_b32 s{sT}, s{sDH}, 11")
            a(f"s_add_u32 s{sOB}, s{sOB}, s{sT}")
            a(f"s_add_u32 s{sOB}, s{sOB}, {WS_VF}")
        n = 0
        for dtl in range(2):
            for kt in range(4):
                for R in range(2):
                    src = ACC + (dtl * 4 + kt) * 16 + R * 8
                    d = 32 + (n % 8) * 4
                    n += 1
                    for e in range(4):
                        a(f"v_cvt_pk_bf16_f32 v{d+e}, v{src+2*e}, v{src+2*e+1}")
                    if part == 0:
                        a(f"s_add_u32 s{sT}, s{sOB}, {kt*8192}")
                        a(f"buffer_store_dwordx4 {vr(d,4)}, v{vL16}, s[{S_O}:{S_O+3}], s{sT} offen offset:{(2*dtl+R)*1024}")
                    else:
                        a(f"s_add_u32 s{sT}, s{sOB}, {kt*8192+R*4096}")
                        a(f"buffer_store_dwordx4 {vr(d,4)}, v{vL16}, s[{S_O}:{S_O+3}], s{sT} offen offset:{dtl*1024}")
        if STAMP:
            sp.mark(); a("s_waitcnt vmcnt(0)"); sp.mark(); sp.real(); a("s_waitcnt lgkmcnt(0)")
            sp.flush(100, sW, part * 4, slot=part)
        a("s_endpgm")
    a.label("KV_END")
    a("s_endpgm")
    return dict(name="kvproj_kernel", grid=256, block=512, lds=131072, vgpr=256)


def rnd_pair(a, d, lo, hi, olo, ohi):
    a(f"v_cvt_pk_bf16_f32 v{d}, v{lo}, v{hi}")
    a(f"v_lshlrev_b32 v{olo}, 16, v{d}")
    a(f"v_and_b32 v{ohi}, 0xffff0000, v{d}")

def gen_prep(a):
    S_K, S_V, S_SH, S_WS, S_X, S_GW, S_WO = 4, 8, 12, 16, 20, 24, 28
    sW, sT, sT2 = 32, 33, 34
    a("s_cmp_ge_u32 s2, 256")
    a("s_cbranch_scc1 PR_END")
    a(f"s_load_dwordx4 s[36:39], s[0:1], {KA['A_q']}")
    a(f"s_load_dwordx4 s[40:43], s[0:1], {KA['A_v']}")
    a(f"s_load_dwordx4 s[44:47], s[0:1], {KA['w_o']}")
    a(f"s_load_dwordx2 s[48:49], s[0:1], {KA['ws']}")
    a("v_lshrrev_b32 v1, 6, v0")
    a("v_and_b32 v2, 63, v0")
    a(f"v_readfirstlane_b32 s{sW}, v1")
    a("s_waitcnt lgkmcnt(0)")
    srd(a, S_X, 36, 37, 2621440)
    srd(a, S_K, 38, 39, 2621440)
    srd(a, S_V, 40, 41, 2621440)
    srd(a, S_SH, 42, 43, 5120)
    srd(a, S_WO, 44, 45, 5242880)
    srd(a, S_GW, 46, 47, 1280)
    srd(a, S_WS, 48, 49, 64 * MB)
    a(f"v_lshlrev_b32 v3, 4, v2")
    a(f"s_lshr_b32 s{sT}, s2, 1")
    a(f"s_lshl_b32 s{sT}, s{sT}, 5")
    a(f"s_lshl_b32 s{sT2}, s{sW}, 2")
    a(f"s_add_u32 s{sT}, s{sT}, s{sT2}")
    a(f"s_mul_i32 s{sT}, s{sT}, 1280")
    a(f"s_and_b32 s35, s2, 1")
    a(f"s_mul_i32 s35, s35, 640")
    a(f"s_add_u32 s{sT}, s{sT}, s35")
    a(f"s_mul_i32 s{sT2}, s{sT2}, 672")
    a("s_mov_b32 exec_lo, -1")
    a("s_mov_b32 exec_hi, 0xff")
    for i in range(4):
        a(f"s_add_u32 m0, s{sT2}, {672*i}")
        a(f"s_add_u32 s35, s{sT}, {1280*i}")
        a(f"buffer_load_dwordx4 v3, s[{S_WO}:{S_WO+3}], s35 offen lds")
    a("s_mov_b64 exec, -1")
    a("v_mul_u32_u24 v4, 20, v2")
    a(f"s_lshl_b32 s{sT}, s2, 3")
    a(f"s_add_u32 s{sT}, s{sT}, s{sW}")
    a(f"s_mul_i32 s35, s{sT}, 1280")
    a(f"buffer_load_dwordx4 v[8:11], v4, s[{S_X}:{S_X+3}], s35 offen")
    a(f"buffer_load_dword v12, v4, s[{S_X}:{S_X+3}], s35 offen offset:16")
    a(f"buffer_load_dwordx4 v[16:19], v4, s[{S_GW}:{S_GW+3}], 0 offen")
    a(f"buffer_load_dword v20, v4, s[{S_GW}:{S_GW+3}], 0 offen offset:16")
    a("v_mul_u32_u24 v5, 1639, v0")
    a("v_lshrrev_b32 v5, 16, v5")
    a("v_mul_u32_u24 v6, 40, v5")
    a("v_sub_u32 v6, v0, v6")
    a(f"s_lshr_b32 s{sT}, s2, 3")
    a(f"s_lshl_b32 s{sT}, s{sT}, 6")
    a(f"v_lshl_add_u32 v5, v5, 3, s{sT}")
    a(f"s_and_b32 s{sT2}, s2, 7")
    a(f"s_mul_i32 s{sT2}, s{sT2}, 40")
    a(f"v_add_u32 v6, s{sT2}, v6")
    a("v_mul_u32_u24 v7, 1280, v5")
    a("v_lshl_add_u32 v7, v6, 2, v7")
    a("v_add_u32 v13, 5120, v7")
    a("v_subrev_u32 v14, 3840, v7")
    a("v_mov_b32 v15, 0x80000000")
    a("v_cmp_eq_u32 vcc, 0, v5")
    a("v_cndmask_b32 v14, v14, v15, vcc")
    a("v_cmp_gt_u32 vcc, 320, v0")
    a("v_cndmask_b32 v7, v15, v7, vcc")
    a("v_cndmask_b32 v13, v15, v13, vcc")
    a("v_cndmask_b32 v14, v15, v14, vcc")
    a("v_lshlrev_b32 v21, 4, v6")
    KR, VR, SH = 32, 44, 52
    for j in range(3):
        a(f"buffer_load_dword v{KR+j}, v14, s[{S_K}:{S_K+3}], 0 offen offset:{1280*j}")
    for j in range(8):
        a(f"buffer_load_dword v{KR+3+j}, v{7 if j < 4 else 13}, s[{S_K}:{S_K+3}], 0 offen offset:{1280*(j%4)}")
    for j in range(8):
        a(f"buffer_load_dword v{VR+j}, v{7 if j < 4 else 13}, s[{S_V}:{S_V+3}], 0 offen offset:{1280*(j%4)}")
    a(f"buffer_load_dwordx4 v[{SH}:{SH+3}], v21, s[{S_SH}:{S_SH+3}], 0 offen")
    a("s_waitcnt vmcnt(20)")
    a("v_mov_b32 v22, 0")
    for i in range(5):
        x, w = 8 + i, 16 + i
        a(f"v_lshlrev_b32 v23, 16, v{x}")
        a(f"v_and_b32 v24, 0xffff0000, v{x}")
        a(f"v_lshlrev_b32 v25, 16, v{w}")
        a(f"v_and_b32 v26, 0xffff0000, v{w}")
        a("v_mul_f32 v23, v23, v25")
        a("v_mul_f32 v24, v24, v26")
        rnd_pair(a, 25, 23, 24, 23, 24)
        a("v_add_f32 v22, v22, v23")
        a("v_add_f32 v22, v22, v24")
    for m in ("row_shr:1", "row_shr:2", "row_shr:4", "row_shr:8"):
        a(f"v_add_f32_dpp v22, v22, v22 {m} row_mask:0xf bank_mask:0xf bound_ctrl:0")
    a("v_add_f32_dpp v22, v22, v22 row_bcast:15 row_mask:0xa bank_mask:0xf")
    a("v_add_f32_dpp v22, v22, v22 row_bcast:31 row_mask:0xc bank_mask:0xf")
    rnd_pair(a, 23, 22, 22, 22, 24)
    a("v_mul_f32 v22, 0xbfb8aa3b, v22")
    a("v_exp_f32 v22, v22")
    a("v_add_f32 v22, 1.0, v22")
    a("v_rcp_f32 v22, v22")
    rnd_pair(a, 23, 22, 22, 22, 24)
    a(f"s_lshl_b32 s{sT}, s2, 3")
    a(f"s_add_u32 s{sT}, s{sT}, s{sW}")
    a(f"s_lshl_b32 s{sT}, s{sT}, 2")
    a(f"s_add_u32 s{sT}, s{sT}, {WS_G}")
    a("v_cmp_eq_u32 vcc, 63, v2")
    a("v_cndmask_b32 v23, v15, 0, vcc")
    a(f"buffer_store_dword v22, v23, s[{S_WS}:{S_WS+3}], s{sT} offen")
    a("s_barrier")
    a("v_lshrrev_b32 v23, 4, v2")
    a("v_bfe_u32 v24, v2, 2, 2")
    a("v_lshrrev_b32 v25, 1, v23")
    a("v_lshl_add_u32 v24, v25, 4, v24")
    a("v_and_b32 v25, 1, v23")
    a("v_lshl_add_u32 v24, v25, 2, v24")
    a("v_mul_u32_u24 v24, 672, v24")
    a("v_and_b32 v25, 3, v2")
    a("v_lshl_add_u32 v24, v25, 3, v24")
    a(f"s_lshl_b32 s{sT}, s{sW}, 5")
    a(f"v_add_u32 v24, s{sT}, v24")
    for i in range(3):
        a(f"ds_read_b64_tr_b16 v[{64+4*i}:{65+4*i}], v24 offset:{256*i}")
        a(f"ds_read_b64_tr_b16 v[{66+4*i}:{67+4*i}], v24 offset:{256*i+8*672}")
    a(f"s_and_b32 s{sT}, s2, 1")
    a(f"s_mul_i32 s{sT}, s{sT}, 20")
    a(f"s_add_u32 s{sT}, s{sT}, s{sW}")
    a(f"s_lshl_b32 s{sT}, s{sT}, 17")
    a(f"s_lshr_b32 s{sT2}, s2, 1")
    a(f"s_lshl_b32 s{sT2}, s{sT2}, 10")
    a(f"s_add_u32 s{sT}, s{sT}, s{sT2}")
    a(f"s_add_u32 s{sT}, s{sT}, {WS_WOT}")
    a("s_waitcnt lgkmcnt(0)")
    a(f"buffer_store_dwordx4 v[64:67], v3, s[{S_WS}:{S_WS+3}], s{sT} offen")
    a(f"s_add_u32 s{sT}, s{sT}, {8<<17}")
    a(f"buffer_store_dwordx4 v[68:71], v3, s[{S_WS}:{S_WS+3}], s{sT} offen")
    a(f"s_add_u32 s{sT}, s{sT}, {8<<17}")
    a(f"s_cmp_ge_u32 s{sW}, 4")
    a("s_cbranch_scc1 PR_SKIP3")
    a(f"buffer_store_dwordx4 v[72:75], v3, s[{S_WS}:{S_WS+3}], s{sT} offen")
    a.label("PR_SKIP3")
    a(f"s_cmp_ge_u32 s{sW}, 5")
    a("s_cbranch_scc1 PR_END")
    a("s_waitcnt vmcnt(0)")
    W = 80
    for c in range(2):
        for q in range(2):
            a(f"v_lshlrev_b32 v{W+4*c+2*q}, 16, v{SH+2*c+q}")
            a(f"v_and_b32 v{W+4*c+2*q+1}, 0xffff0000, v{SH+2*c+q}")
    KL, KH = 88, 100
    for j in range(11):
        a(f"v_lshlrev_b32 v{KL+j}, 16, v{KR+j}")
        a(f"v_and_b32 v{KH+j}, 0xffff0000, v{KR+j}")
    OL, OH = 112, 120
    for s in range(8):
        a(f"v_mul_f32 v22, v{KL+s}, v{W+3}")
        a(f"v_mul_f32 v23, v{KH+s}, v{W+7}")
        rnd_pair(a, 24, 22, 23, 22, 23)
        for j in (2, 1, 0):
            a(f"v_mul_f32 v25, v{KL+s+3-j}, v{W+j}")
            a(f"v_mul_f32 v26, v{KH+s+3-j}, v{W+4+j}")
            rnd_pair(a, 24, 25, 26, 25, 26)
            a("v_add_f32 v22, v22, v25")
            a("v_add_f32 v23, v23, v26")
            rnd_pair(a, 24, 22, 23, 22, 23)
        a(f"v_lshlrev_b32 v25, 16, v{VR+s}")
        a(f"v_and_b32 v26, 0xffff0000, v{VR+s}")
        a(f"v_mul_f32 v{OL+s}, v22, v25")
        a(f"v_mul_f32 v{OH+s}, v23, v26")
    for q in range(4):
        a(f"v_cvt_pk_bf16_f32 v{64+q}, v{OL+2*q}, v{OL+2*q+1}")
        a(f"v_cvt_pk_bf16_f32 v{68+q}, v{OH+2*q}, v{OH+2*q+1}")
    a("v_mul_u32_u24 v22, 10240, v6")
    a("v_lshrrev_b32 v23, 5, v5")
    a("v_mul_u32_u24 v23, 80, v23")
    a("v_add_u32 v22, v22, v23")
    a("v_and_b32 v23, 31, v5")
    a("v_lshl_add_u32 v22, v23, 1, v22")
    a("v_add_u32 v23, 5120, v22")
    a(f"s_mov_b32 s{sT}, {WS_KVT}")
    a(f"buffer_store_dwordx4 v[64:67], v22, s[{S_WS}:{S_WS+3}], s{sT} offen")
    a(f"buffer_store_dwordx4 v[68:71], v23, s[{S_WS}:{S_WS+3}], s{sT} offen")
    a.label("PR_END")
    a("s_endpgm")
    return dict(name="prep_kernel", grid=256, block=512, lds=32768, vgpr=128)

def gen_conv(a):
    S_H, S_WS, S_D = 4, 8, 12
    sW, sT, sT2, sCH, sKH, sLB, sCL = 16, 17, 18, 19, 20, 21, 22
    CHB = 4 * 4160 + 7680
    RED = 4 * CHB
    a("s_cmp_ge_u32 s2, 160")
    a("s_cbranch_scc1 CV_END")
    a(f"s_load_dwordx4 s[24:27], s[0:1], {KA['ssm_k']}")
    a(f"s_load_dwordx2 s[28:29], s[0:1], {KA['ws']}")
    a("v_lshrrev_b32 v1, 6, v0")
    a("v_and_b32 v0, 63, v0")
    a(f"v_readfirstlane_b32 s{sW}, v1")
    a(f"s_lshr_b32 s{sCL}, s{sW}, 1")
    a(f"s_and_b32 s{sKH}, s{sW}, 1")
    a(f"s_lshl_b32 s{sCH}, s2, 2")
    a(f"s_add_u32 s{sCH}, s{sCH}, s{sCL}")
    a(f"s_mul_i32 s{sLB}, s{sCL}, {CHB}")
    a("v_lshlrev_b32 v2, 4, v0")
    a("s_waitcnt lgkmcnt(0)")
    srd(a, S_H, 24, 25, 2621440)
    srd(a, S_D, 26, 27, 1280)
    srd(a, S_WS, 28, 29, 64 * MB)
    a(f"s_lshl_b32 s{sT}, s{sCH}, 12")
    a(f"s_lshl_b32 s{sT2}, s{sKH}, 2")
    a(f"s_sub_u32 s{sT}, s{sT}, s{sT2}")
    a(f"v_add_u32 v3, s{sT}, v2")
    a(f"s_mul_i32 s{sT2}, s{sKH}, {2*4160}")
    a(f"s_add_u32 s{sT2}, s{sT2}, s{sLB}")
    for rr in range(2):
        if rr: a("v_subrev_u32 v3, 2, v3")
        a("v_add_u32 v4, 1024, v3")
        a(f"s_add_u32 m0, s{sT2}, {rr*4160+64}")
        a(f"buffer_load_dwordx4 v3, s[{S_H}:{S_H+3}], 0 offen lds")
        a(f"s_add_u32 m0, s{sT2}, {rr*4160+64+1024}")
        for i in range(3):
            a(f"buffer_load_dwordx4 v4, s[{S_H}:{S_H+3}], 0 offen offset:{1024*i} lds")
    a(f"s_mul_i32 s{sT}, s{sCH}, 5120")
    a(f"s_add_u32 s{sT}, s{sT}, {WS_KVT}")
    a(f"s_add_u32 s{sT2}, s{sLB}, {4*4160}")
    a("v_mov_b32 v8, 0")
    a("v_mov_b32 v9, 0")
    a("v_mov_b32 v10, 0")
    a("v_mov_b32 v11, 0")
    a(f"v_add_u32 v5, s{sT2}, v2")
    a(f"s_cmp_eq_u32 s{sKH}, 0")
    a("s_cbranch_scc1 CV_Z")
    a(f"s_add_u32 m0, s{sT2}, 2560")
    for i in range(4):
        a(f"buffer_load_dwordx4 v2, s[{S_WS}:{S_WS+3}], s{sT} offen offset:{1024*i} lds")
    a("s_branch CV_Z2")
    a.label("CV_Z")
    a(f"s_add_u32 m0, s{sT2}, {2560+4096}")
    a(f"s_add_u32 s{sT}, s{sT}, 4096")
    a(f"buffer_load_dwordx4 v2, s[{S_WS}:{S_WS+3}], s{sT} offen lds")
    a("ds_write_b128 v5, v[8:11]")
    a("ds_write_b128 v5, v[8:11] offset:1024")
    a("v_lshlrev_b32 v6, 3, v0")
    a(f"v_add_u32 v6, s{sT2}, v6")
    a("ds_write_b64 v6, v[8:9] offset:2048")
    a.label("CV_Z2")
    a("v_and_b32 v6, 7, v0")
    a("v_bfe_u32 v7, v0, 3, 1")
    a(f"s_lshl_b32 s{sT}, s{sKH}, 1")
    a(f"v_add_u32 v7, s{sT}, v7")
    a("v_lshlrev_b32 v12, 1, v6")
    a(f"s_lshl_b32 s{sT}, s{sCH}, 12")
    a(f"buffer_load_ushort v13, v12, s[{S_H}:{S_H+3}], s{sT} offen")
    a(f"s_lshl_b32 s{sT}, s{sCH}, 1")
    a(f"buffer_load_ushort v14, v8, s[{S_D}:{S_D+3}], s{sT} offen")
    a("v_add_u32 v6, v6, v7")
    a("v_mul_u32_u24 v12, 4160, v7")
    a("v_lshl_add_u32 v12, v6, 1, v12")
    a(f"v_add_u32 v12, s{sLB}, v12")
    vA, vB = 16, 17
    a("v_bfe_u32 v18, v0, 2, 2")
    a("v_mul_u32_u24 v18, 4160, v18")
    a("v_bfe_u32 v19, v0, 4, 1")
    a("v_lshl_add_u32 v18, v19, 5, v18")
    a("v_and_b32 v19, 3, v0")
    a("v_lshl_add_u32 v18, v19, 3, v18")
    a("v_lshrrev_b32 v19, 5, v0")
    a("v_lshlrev_b32 v20, 4, v19")
    a("v_sub_u32 v18, v18, v20")
    a(f"s_lshl_b32 s{sT}, s{sKH}, 5")
    a(f"s_sub_u32 s{sT}, s{sLB}, s{sT}")
    a(f"s_add_u32 s{sT}, s{sT}, {64-8}")
    a(f"v_add_u32 v{vA}, s{sT}, v18")
    a("v_and_b32 v21, 31, v0")
    a("v_mul_u32_u24 v18, 80, v21")
    a("v_add_u32 v18, v18, v20")
    a(f"s_lshl_b32 s{sT}, s{sKH}, 5")
    a(f"s_add_u32 s{sT}, s{sT}, s{sLB}")
    a(f"s_add_u32 s{sT}, s{sT}, {4*4160+2560-31*80}")
    a(f"v_add_u32 v{vB}, s{sT}, v18")
    a("v_lshlrev_b32 v20, 3, v19")
    a("v_sub_u32 v20, v21, v20")
    a(f"s_lshl_b32 s{sT}, s{sKH}, 4")
    a(f"v_subrev_u32 v20, s{sT}, v20")
    a("v_mov_b32 v22, 0xffff")
    MK = 24
    for q in range(4):
        a(f"v_cmp_le_i32 vcc, {2*q}, v20")
        a(f"v_cndmask_b32 v{MK+q}, 0, v22, vcc")
        a(f"v_cmp_le_i32 vcc, {2*q+1}, v20")
        a(f"v_cndmask_b32 v{MK+q}, v{MK+q}, -1, vcc")
    a("s_waitcnt vmcnt(0)")
    a("v_cmp_gt_u32 vcc, 8, v6")
    a("v_cmp_gt_u32 s[30:31], 16, v0")
    a("s_and_b64 exec, vcc, s[30:31]")
    a("ds_write_b16 v12, v13 offset:64")
    a("s_mov_b64 exec, -1")
    a("s_waitcnt lgkmcnt(0)")
    a("s_barrier")
    F = [32, 48, 64]
    Y0, Y1, Y2 = 96, 112, 128
    def reads(d):
        f = F[d % 3]
        return [f"ds_read_b64_tr_b16 {vr(f,2)}, v{vA} offset:{64*d+8}",
                f"ds_read_b64_tr_b16 {vr(f+2,2)}, v{vA} offset:{64*d}",
                f"ds_read_b128 {vr(f+8,4)}, v{vB} offset:{80*(31-d)}",
                f"ds_read_b128 {vr(f+12,4)}, v{vB} offset:{80*(31-d)+2560}",
                f"ds_read_b64_tr_b16 {vr(f+4,2)}, v{vA} offset:{64*d+8+2048}",
                f"ds_read_b64_tr_b16 {vr(f+6,2)}, v{vA} offset:{64*d+2048}"]
    for x in reads(0) + reads(1): a(x)
    for d in range(32):
        f = F[d % 3]
        nx = reads(d + 2) if d + 2 < 32 else []
        a(f"s_waitcnt lgkmcnt({6 if d + 1 < 32 else 0})")
        if d == 0:
            for q in range(4): a(f"v_and_b32 v{f+q}, v{f+q}, v{MK+q}")
        c = lambda y: "0" if d == 0 else vr(y, 16)
        a(f"{MFMA32} {vr(Y0,16)}, {vr(f,4)}, {vr(f+8,4)}, {c(Y0)}")
        for x in nx[0:2]: a(x)
        a(f"{MFMA32} {vr(Y1,16)}, {vr(f,4)}, {vr(f+12,4)}, {c(Y1)}")
        for x in nx[2:4]: a(x)
        a(f"{MFMA32} {vr(Y2,16)}, {vr(f+4,4)}, {vr(f+8,4)}, {c(Y2)}")
        for x in nx[4:6]: a(x)
    for r in range(16): a(f"v_add_f32 v{Y1+r}, v{Y1+r}, v{Y2+r}")
    a(f"s_lshl_b32 s{sT}, s{sW}, 12")
    a(f"s_add_u32 s{sT}, s{sT}, {RED}")
    a(f"v_add_u32 v3, s{sT}, v2")
    a(f"s_xor_b32 s{sT2}, s{sW}, 1")
    a(f"s_lshl_b32 s{sT2}, s{sT2}, 12")
    a(f"s_add_u32 s{sT2}, s{sT2}, {RED}")
    a(f"v_add_u32 v4, s{sT2}, v2")
    a(f"s_cmp_eq_u32 s{sKH}, 0")
    a("s_cbranch_scc1 CV_K0")
    for q in range(4): a(f"ds_write_b128 v3, {vr(Y0+4*q,4)} offset:{1024*q}")
    for r in range(16): a(f"v_mov_b32 v{Y0+r}, v{Y1+r}")
    a("s_branch CV_K1")
    a.label("CV_K0")
    for q in range(4): a(f"ds_write_b128 v3, {vr(Y1+4*q,4)} offset:{1024*q}")
    a.label("CV_K1")
    a("s_waitcnt lgkmcnt(0)")
    a("s_barrier")
    for q in range(4): a(f"ds_read_b128 {vr(Y2+4*q,4)}, v4 offset:{1024*q}")
    a("v_mul_u32_u24 v5, 80, v21")
    a("v_lshl_add_u32 v5, v19, 3, v5")
    a(f"s_mul_i32 s{sT}, s{sKH}, 2560")
    a(f"s_add_u32 s{sT}, s{sT}, s{sLB}")
    a(f"s_add_u32 s{sT}, s{sT}, {4*4160+2560}")
    a(f"v_add_u32 v5, s{sT}, v5")
    for q in range(4): a(f"ds_read_b64 {vr(32+2*q,2)}, v5 offset:{16*q}")
    a("v_lshlrev_b32 v14, 16, v14")
    a("v_lshlrev_b32 v6, 6, v21")
    a("v_lshl_add_u32 v6, v19, 3, v6")
    a(f"s_lshl_b32 s{sT}, s{sCH}, 12")
    a(f"s_lshl_b32 s{sT2}, s{sKH}, 11")
    a(f"s_add_u32 s{sT}, s{sT}, s{sT2}")
    a(f"s_add_u32 s{sT}, s{sT}, {WS_Y2T}")
    a("s_waitcnt lgkmcnt(0)")
    for q in range(4):
        for hf in range(2):
            r = 4 * q + 2 * hf
            a(f"v_add_f32 v40, v{Y0+r}, v{Y2+r}")
            a(f"v_add_f32 v41, v{Y0+r+1}, v{Y2+r+1}")
            rnd_pair(a, 42, 40, 41, 40, 41)
            a(f"v_lshlrev_b32 v43, 16, v{32+2*q+hf}")
            a(f"v_and_b32 v44, 0xffff0000, v{32+2*q+hf}")
            a("v_mul_f32 v43, v43, v14")
            a("v_mul_f32 v44, v44, v14")
            rnd_pair(a, 42, 43, 44, 43, 44)
            a("v_add_f32 v40, v40, v43")
            a("v_add_f32 v41, v41, v44")
            a(f"v_cvt_pk_bf16_f32 v{48+2*q+hf}, v40, v41")
        a(f"buffer_store_dwordx2 {vr(48+2*q,2)}, v6, s[{S_WS}:{S_WS+3}], s{sT} offen offset:{16*q}")
    a.label("CV_END")
    a("s_endpgm")
    return dict(name="conv_kernel", grid=160, block=512, lds=RED + 32768, vgpr=144)


import struct
def f32hex(x): return "0x%08x" % struct.unpack("<I", struct.pack("<f", x))[0]

class VM:
    def __init__(self): self.tags = []
    def add(self, tag): self.tags.append(tag)
    def wait(self, *tags):
        last = max(i for i, t in enumerate(self.tags) if t in tags)
        return len(self.tags) - 1 - last

def interleave(a, mfmas, fillers, ngaps):
    tot = sum(c for c, _ in fillers)
    fi, acc = 0, 0.0
    for g, (pre, m, post) in enumerate(mfmas):
        for x in pre: a(x)
        a(m)
        for x in post: a(x)
        lim = tot * min(1.0, (g + 1) / ngaps) if ngaps else tot
        while fi < len(fillers) and acc + fillers[fi][0] * 0.5 <= lim:
            acc += fillers[fi][0]
            for x in fillers[fi][1]: a(x)
            fi += 1
    while fi < len(fillers):
        for x in fillers[fi][1]: a(x)
        fi += 1

def gen_attn(a):
    S_WQ, S_X, S_K, S_V, S_CTX = 4, 8, 12, 16, 20
    sW, sG, sRB, sH, sP, sN1, sS, sT, sT2, sMST, sTHR, sM0K, sM0V, sBASE, sROW, sWQO, sM0Q, sCT1, sCT2, sWRAP = range(24, 44)
    sHIST = [44, 45]
    sEV = 46
    sMK = 48
    vL16, vKA, vVA, vD0, vCTX, vWD, vXA = 1, 2, 3, 4, 5, 6, 8
    vAW = 10
    FR, T, P, S, O, Q, NEGM = 32, 64, [80, 88], [96, 112], 128, 192, 224
    vL, vL1, vTA, vTB, vX0, vX1, vX2, vX3, vNINF = range(240, 249)
    D = 5
    R0, R1, R2 = 0, 65536, 131072
    sp = Stamps(a)
    a("s_cmp_ge_u32 s2, 256")
    a("s_cbranch_scc1 AT_END")
    sp.real(); sp.mark()
    a(f"s_load_dwordx2 s[56:57], s[0:1], {KA['A_q']}")
    a(f"s_load_dwordx2 s[58:59], s[0:1], {KA['w_q']}")
    a(f"s_load_dwordx2 s[60:61], s[0:1], {KA['ws']}")
    a("v_lshrrev_b32 v1, 6, v0")
    a("v_and_b32 v0, 63, v0")
    a(f"v_readfirstlane_b32 s{sW}, v1")
    a(f"s_and_b32 s{sH}, s2, 31")
    a(f"s_lshr_b32 s{sP}, s2, 5")
    a(f"s_lshr_b32 s{sG}, s{sW}, 2")
    a(f"s_and_b32 s{sRB}, s{sW}, 3")
    a(f"v_lshlrev_b32 v{vL16}, 4, v0")
    a("v_lshrrev_b32 v14, 4, v0")
    a("v_and_b32 v15, 15, v0")
    a("v_lshlrev_b32 v16, 2, v14")
    a("v_xor_b32 v15, v15, v16")
    a("v_lshlrev_b32 v15, 4, v15")
    a(f"v_lshl_add_u32 v{vWD}, v14, 13, v15")
    a(f"v_add_u32 v{vWD+1}, {4*8192-1024}, v{vWD}")
    a(f"s_lshl_b32 s{sWQO}, s{sW}, 16")
    a(f"s_lshl_b32 s{sT}, s{sH}, 8")
    a(f"s_add_u32 s{sWQO}, s{sWQO}, s{sT}")
    a(f"s_lshl_b32 s{sM0Q}, s{sW}, 11")
    a(f"s_sub_u32 s{sT}, 15, s{sP}")
    a(f"s_lshl_b32 s{sT2}, s{sRB}, 5")
    a(f"s_lshl_b32 s{sCT2}, s{sT}, 7")
    a(f"s_add_u32 s{sCT2}, s{sCT2}, s{sT2}")
    a(f"s_lshl_b32 s{sCT1}, s{sP}, 7")
    a(f"s_add_u32 s{sCT1}, s{sCT1}, s{sT2}")
    a(f"s_cmp_eq_u32 s{sG}, 0")
    a(f"s_cselect_b32 s{sROW}, s{sCT1}, s{sCT2}")
    a("v_and_b32 v14, 31, v0")
    a("v_lshrrev_b32 v15, 5, v0")
    a(f"v_add_u32 v16, s{sROW}, v14")
    a("v_mul_u32_u24 v16, 1280, v16")
    a(f"v_lshl_add_u32 v{vXA}, v15, 4, v16")
    a("s_waitcnt lgkmcnt(0)")
    srd(a, S_X, 56, 57, 2621440)
    srd(a, S_WQ, 58, 59, 5242880)
    srd(a, S_K, 60, 61, SZ_KF, WS_KF)
    srd(a, S_V, 60, 61, SZ_KF, WS_VF)
    srd(a, S_CTX, 60, 61, 16 * MB, WS_CTX)
    vm = VM()
    XR = lambda c: 32 + (c % 6) * 16
    def wq_dma(c):
        a(f"s_add_u32 m0, s{sM0Q}, {R1 + (c % 6) * 16384}")
        a(f"s_add_u32 s{sT}, s{sWQO}, {c*64*8192}")
        a(f"buffer_load_dwordx4 v{vWD}, s[{S_WQ}:{S_WQ+3}], s{sT} offen lds")
        a(f"buffer_load_dwordx4 v{vWD+1}, s[{S_WQ}:{S_WQ+3}], s{sT} offen offset:1024 lds")
        vm.add(("w", c)); vm.add(("w", c))
    def x_load(c):
        for t in range(4):
            a(f"buffer_load_dwordx4 {vr(XR(c)+4*t,4)}, v{vXA}, s[{S_X}:{S_X+3}], 0 offen offset:{c*128+t*32}")
            vm.add(("x", c))
    for c in range(6):
        wq_dma(c); x_load(c)
    a(f"s_lshl_b32 s{sN1}, s{sP}, 2")
    a(f"s_add_u32 s{sN1}, s{sN1}, 4")
    a(f"s_lshl_b32 s{sBASE}, s{sH}, 19")
    a(f"s_lshl_b32 s{sT}, s{sRB}, 11")
    a(f"s_add_u32 s{sBASE}, s{sBASE}, s{sT}")
    a(f"s_lshl_b32 s{sM0K}, s{sG}, 15")
    a(f"s_add_u32 s{sM0K}, s{sM0K}, s{sT}")
    a(f"s_add_u32 s{sM0V}, s{sM0K}, {R1}")
    a(f"s_sub_u32 s{sT}, 34, s{sN1}")
    a(f"s_lshl_b32 s{sT}, s{sT}, 13")
    a(f"s_add_u32 s{sT}, s{sT}, s{sBASE}")
    a(f"s_sub_u32 s{sT2}, s{sN1}, 4")
    a(f"s_sub_u32 s{sWRAP}, s{sN1}, 3")
    a(f"s_cmp_eq_u32 s{sG}, 0")
    a(f"s_cselect_b32 s{sHIST[0]}, s{sBASE}, s{sT}")
    a(f"s_cselect_b32 s{sMST}, s{sT2}, 30")
    a(f"s_cselect_b32 s{sN1}, s{sN1}, 100")
    a(f"s_cselect_b32 s{sWRAP}, s{sWRAP}, 100")
    a(f"s_mov_b64 s[{sEV}:{sEV+1}], 15")
    a(f"s_add_u32 s{sT}, s{sMST}, 1")
    a(f"s_lshl_b64 s[{sEV}:{sEV+1}], s[{sEV}:{sEV+1}], s{sT}")
    a(f"s_mov_b64 s[56:57], 7")
    a(f"s_lshl_b64 s[56:57], s[56:57], s{sN1}")
    a(f"s_or_b64 s[{sEV}:{sEV+1}], s[{sEV}:{sEV+1}], s[56:57]")
    a(f"s_or_b32 s{sEV}, s{sEV}, 2")
    a(f"s_mov_b32 s{sTHR}, {f32hex(4096.0)}")
    def kdma(e, soff):
        a(f"s_add_u32 m0, s{sM0K}, {(e & 3) * 8192}")
        a("s_nop 0")
        a(f"buffer_load_dwordx4 v{vL16}, s[{S_K}:{S_K+3}], s{soff} offen lds")
        a(f"buffer_load_dwordx4 v{vL16}, s[{S_K}:{S_K+3}], s{soff} offen offset:1024 lds")
    a(f"s_mov_b32 s{sT2}, s{sHIST[0]}")
    kdma(0, sT2); vm.add("k0"); vm.add("k0")
    a(f"s_add_u32 s{sHIST[1]}, s{sT2}, 8192")
    kdma(1, sHIST[1]); vm.add("k1"); vm.add("k1")
    a(f"s_add_u32 s{sHIST[0]}, s{sT2}, 16384")
    kdma(2, sHIST[0]); vm.add("k2"); vm.add("k2")
    a(f"s_mov_b32 s62, s{sT2}")
    a(f"s_lshl_b32 s{sT}, s{sG}, 15")
    a(f"v_add_u32 v{vKA}, s{sT}, v{vL16}")
    a(f"v_add_u32 v{vVA}, {R1}, v{vKA}")
    a("v_bfe_u32 v16, v0, 2, 2")
    a("v_lshl_add_u32 v17, v15, 3, v16")
    a("v_lshlrev_b32 v17, 8, v17")
    a("v_bfe_u32 v18, v0, 4, 1")
    a("v_lshl_add_u32 v17, v18, 5, v17")
    a("v_bfe_u32 v19, v0, 1, 1")
    a("v_lshl_add_u32 v17, v19, 4, v17")
    a("v_and_b32 v19, 1, v0")
    a("v_lshl_add_u32 v17, v19, 3, v17")
    a(f"v_add_u32 v17, {R1}, v17")
    for dt in range(4):
        a(f"v_xor_b32 v19, {dt}, v16")
        a(f"v_lshl_add_u32 v{vAW+dt}, v19, 6, v17")
        a(f"v_add_u32 v{vAW+10+dt}, {3*16384}, v{vAW+dt}")
    a(f"s_lshl_b32 s{sT}, s{sRB}, 5")
    a(f"v_add_u32 v{vD0}, s{sT}, v14")
    a("v_lshlrev_b32 v19, 2, v15")
    a(f"v_sub_u32 v{vD0}, v{vD0}, v19")
    a("v_and_b32 v19, 15, v0")
    a("v_lshlrev_b32 v19, 4, v19")
    a("v_lshl_add_u32 v19, v15, 8, v19")
    a(f"v_lshl_add_u32 v{vCTX}, v18, 17, v19")
    a(f"s_lshl_b32 s{sT}, s{sH}, 12")
    for c in (sCT1, sCT2):
        a(f"s_lshl_b32 s{c}, s{c}, 13")
        a(f"s_add_u32 s{c}, s{c}, s{sT}")
    a(f"v_mov_b32 v{vNINF}, 0xff800000")
    WF = [Q, Q + 16]
    def wreads(c, t):
        s = t & 1
        sl = c % 6
        base = vAW if sl < 3 else vAW + 10
        return [f"ds_read_b64_tr_b16 {vr(WF[s]+dt*4+hf*2,2)}, v{base+dt} offset:{(sl%3)*16384+t*4096+hf*1024}"
                for dt in range(4) for hf in range(2)]
    def kread(e, t): return f"ds_read_b128 {vr(FR+4*t,4)}, v{vKA} offset:{(e&3)*8192+t*1024}"
    def vread(e, i): return f"ds_read_b128 {vr(FR+4*i,4)}, v{vVA} offset:{(e&3)*8192+i*1024}"
    a(f"s_waitcnt vmcnt({vm.wait(('w', 0))})")
    a("s_barrier")
    sp.mark()
    for x in wreads(0, 0): a(x)
    for c in range(10):
        for t in range(4):
            nxt = []
            a("s_waitcnt lgkmcnt(0)")
            if t == 0: a(f"s_waitcnt vmcnt({vm.wait(('x', c))})")
            if t < 3:
                nxt = wreads(c, t + 1)
            elif c < 9:
                a(f"s_waitcnt vmcnt({vm.wait(('w', c + 1))})")
                a("s_barrier")
                nxt = wreads(c + 1, 0)
            else:
                a(f"s_waitcnt vmcnt({vm.wait('k0', 'k1')})")
                a("s_barrier")
                nxt = [kread(0, i) for i in range(D)]
            for dt in range(4):
                acc = vr(O + 16 * dt, 16)
                cin = "0" if (c == 0 and t == 0) else acc
                a(f"{MFMA32} {acc}, {vr(WF[t&1]+4*dt,4)}, {vr(XR(c)+4*t,4)}, {cin}")
                for x in nxt[3 * dt: 3 * dt + 3]: a(x)
            if t == 3 and c + 6 < 10:
                wq_dma(c + 6); x_load(c + 6)
    a(f"s_mov_b32 m0, s{sM0V}")
    a("s_nop 0")
    a(f"buffer_load_dwordx4 v{vL16}, s[{S_V}:{S_V+3}], s62 offen lds")
    a(f"buffer_load_dwordx4 v{vL16}, s[{S_V}:{S_V+3}], s62 offen offset:1024 lds")
    sp.mark()
    a(f"s_mov_b32 s{sT}, {f32hex(1.4426950408889634 * 128 ** -0.5)}")
    for r in range(16): a(f"v_mov_b32 v{NEGM+r}, 0")
    a(f"v_mov_b32 v{vL}, 0")
    for i in range(32):
        a(f"v_mul_f32 v{O+2*i}, s{sT}, v{O+2*i}")
        a(f"v_mul_f32 v{O+2*i+1}, s{sT}, v{O+2*i+1}")
        a(f"v_cvt_pk_bf16_f32 v{Q+i}, v{O+2*i}, v{O+2*i+1}")
    for r in range(64): a(f"v_mov_b32 v{O+r}, 0")
    a(f"s_lshl_b32 s{sT}, s{sRB}, 13")
    a(f"s_add_u32 s{sT}, s{sT}, {R2}")
    a(f"v_add_u32 v9, s{sT}, v{vL16}")
    a(f"s_cmp_eq_u32 s{sG}, 0")
    a("s_cbranch_scc1 AT_NOSTASH")
    for t in range(8): a(f"ds_write_b128 v9, {vr(Q+4*t,4)} offset:{1024*t}")
    a("s_waitcnt lgkmcnt(0)")
    a.label("AT_NOSTASH")
    a(f"s_mov_b32 s{sS}, 0")

    handlers = []
    def rowmax(dst, tmp, src):
        a(f"v_max3_f32 v{dst}, v{src}, v{src+1}, v{src+2}")
        for r in range(3, 15, 2): a(f"v_max3_f32 v{dst}, v{dst}, v{src+r}, v{src+r+1}")
        a(f"v_max_f32 v{dst}, v{dst}, v{src+15}")
        a(f"v_mov_b32 v{tmp}, v{dst}")
        a(f"v_permlane32_swap_b32 v{dst}, v{tmp}")
        a(f"v_max_f32 v{dst}, v{dst}, v{tmp}")
    def sm_ops(Sc, Pw):
        f = []
        for r in range(16):
            f.append((2, [f"v_exp_f32 v{T+r%8}, v{Sc+r}"]))
            if r % 2 == 1 and r >= 3:
                q = r - 3
                f.append((1, [f"v_add_f32 v{vTA}, v{T+q%8}, v{T+(q+1)%8}" if q == 0 else f"v_add_f32 v{vTA}, v{vTA}, v{T+q%8}"]))
                if q > 0: f.append((1, [f"v_add_f32 v{vTB}, v{vTB}, v{T+(q+1)%8}" if q > 2 else f"v_mov_b32 v{vTB}, v{T+(q+1)%8}"]))
                f.append((1, [f"v_cvt_pk_bf16_f32 v{Pw+q//2}, v{T+q%8}, v{T+(q+1)%8}"]))
        f.append((1, [f"v_add_f32 v{vTA}, v{vTA}, v{T+6}"]))
        f.append((1, [f"v_add_f32 v{vTB}, v{vTB}, v{T+7}"]))
        f.append((1, [f"v_cvt_pk_bf16_f32 v{Pw+7}, v{T+6}, v{T+7}"]))
        f.append((1, [f"v_add_f32 v{vTA}, v{vTA}, v{vTB}"]))
        return f
    def store_ctx(dts, sct, src):
        n = 0
        for dt in dts:
            for R in range(2):
                d = T + (n % 4) * 4
                n += 1
                for e in range(4):
                    a(f"v_cvt_pk_bf16_f32 v{d+e}, v{src(dt)+8*R+2*e}, v{src(dt)+8*R+2*e+1}")
                a(f"buffer_store_dwordx4 {vr(d,4)}, v{vCTX}, s[{S_CTX}:{S_CTX+3}], s{sct} offen offset:{dt*1024+R*512}")

    def slot(j, name, qk=True, sm=True, pv=True, nxt="k", dma=True, last=False):
        par = j & 1
        Sc, Sn, Pw, Pr = S[1 - par], S[par], P[1 - par], P[par]
        a.label(name)
        if sm or pv:
            a(f"s_bitcmp1_b64 s[{sEV}:{sEV+1}], s{sS}")
            a(f"s_cbranch_scc1 {name}_EV")
            a.label(name + "_GO")
            handlers.append(("ev", name, Sc))
        ms = []
        if qk:
            for t in range(8):
                ms.append((f"{MFMA32} {vr(Sn,16)}, {vr(FR+4*t,4)}, {vr(Q+4*t,4)}, {vr(NEGM if t == 0 else Sn,16)}", kread(j, t)))
        if pv:
            for i in range(8):
                o = vr(O + 16 * (i & 3), 16)
                ms.append((f"{MFMA32} {o}, {vr(FR+4*i,4)}, {vr(Pr+4*(i>>2),4)}, {o}", vread(j - 2, i)))
        rd = [m[1] for m in ms]
        if nxt == "k": rd += [kread(j + 1, i) for i in range(D)]
        elif nxt == "v": rd += [vread(j - 1, i) for i in range(D)]
        dm = []
        if dma:
            h0, h1 = sHIST[1 - par], sHIST[par]
            dm.append([f"s_add_u32 m0, s{sM0V}, {((j + 1) & 3) * 8192}", f"s_add_u32 s{sT}, s{h1}, 8192",
                       f"buffer_load_dwordx4 v{vL16}, s[{S_V}:{S_V+3}], s{h0} offen lds"])
            dm.append([f"buffer_load_dwordx4 v{vL16}, s[{S_V}:{S_V+3}], s{h0} offen offset:1024 lds",
                       f"s_cmp_eq_u32 s{sS}, s{sWRAP}", f"s_cselect_b32 s{sT}, s{sBASE}, s{sT}",
                       f"s_cmp_ge_u32 s{sS}, 31", f"s_cselect_b32 s{h0}, 0x80000000, s{sT}"])
            dm.append([f"s_add_u32 m0, s{sM0K}, {((j + 3) & 3) * 8192}", "s_nop 0",
                       f"buffer_load_dwordx4 v{vL16}, s[{S_K}:{S_K+3}], s{h0} offen lds"])
            dm.append([f"buffer_load_dwordx4 v{vL16}, s[{S_K}:{S_K+3}], s{h0} offen offset:1024 lds"])
        groups = []
        n = len(ms)
        for m in range(n):
            pre = []
            if m % 2 == 0:
                out = min(len(rd), m + D) - (m + 2)
                pre.append(f"s_waitcnt lgkmcnt({max(out, 0)})")
            post = [rd[m + D]] if m + D < len(rd) else []
            if m % 2 == 1 and m // 2 < len(dm): post += dm[m // 2]
            groups.append((pre, ms[m][0], post))
        interleave(a, groups, sm_ops(Sc, Pw) if sm else [], max(n - 1, 1))
        if sm:
            a(f"v_cmp_lt_f32 vcc, s{sTHR}, v{vTA}")
            a(f"s_cbranch_vccnz {name}_SLOW")
            a.label(name + "_RET")
            a(f"v_add_f32 v{vL}, v{vL}, v{vTA}")
            handlers.append(("slow", name, Sc, Sn, Pw))
        if not last:
            a(f"s_add_u32 s{sS}, s{sS}, 1")
            a(f"s_waitcnt vmcnt({4 if dma else 0})")
            a("s_barrier")

    slot(0, "AT_S0", sm=False, pv=False)
    slot(1, "AT_S1", pv=False)
    sp.mark()
    slot(2, "AT_L2"); slot(3, "AT_L3"); slot(0, "AT_L0")
    a(f"s_cmp_eq_u32 s{sS}, 33")
    a("s_cbranch_scc1 AT_S33")
    slot(1, "AT_L1")
    a("s_branch AT_L2")
    slot(1, "AT_S33", nxt="v")
    slot(2, "AT_S34", qk=False, nxt="v", dma=False)
    slot(3, "AT_S35", qk=False, sm=False, nxt=None, dma=False, last=True)
    sp.mark()
    a("s_barrier")
    a(f"v_mov_b32 v{vX0}, v{vL}")
    a(f"v_permlane32_swap_b32 v{vL}, v{vX0}")
    a(f"v_add_f32 v{vL}, v{vL}, v{vX0}")
    a(f"s_mul_i32 s{sT}, s{sW}, {8192+512}")
    a(f"s_xor_b32 s{sT2}, s{sW}, 4")
    a(f"s_mul_i32 s{sT2}, s{sT2}, {8192+512}")
    a(f"v_add_u32 v14, s{sT}, v{vL16}")
    a(f"v_add_u32 v15, s{sT2}, v{vL16}")
    a("v_lshlrev_b32 v16, 3, v0")
    a(f"v_add_u32 v17, s{sT2}, v16")
    a(f"v_add_u32 v16, s{sT}, v16")
    a(f"v_mov_b32 v{vX0}, v{NEGM}")
    a(f"v_mov_b32 v{vX1}, v{vL}")
    a(f"ds_write_b64 v16, v[{vX0}:{vX1}] offset:8192")
    a(f"s_cmp_eq_u32 s{sG}, 0")
    a("s_cbranch_scc1 AT_MA")
    for q in range(8): a(f"ds_write_b128 v14, {vr(O+4*q,4)} offset:{1024*q}")
    for r in range(32): a(f"v_mov_b32 v{O+r}, v{O+32+r}")
    a(f"s_add_u32 s{sCT2}, s{sCT2}, 2048")
    a("s_branch AT_MB")
    a.label("AT_MA")
    for q in range(8): a(f"ds_write_b128 v14, {vr(O+32+4*q,4)} offset:{1024*q}")
    a.label("AT_MB")
    a("s_waitcnt lgkmcnt(0)")
    a("s_barrier")
    a(f"ds_read_b64 v[{vX2}:{vX3}], v17 offset:8192")
    for q in range(8): a(f"ds_read_b128 {vr(O+32+4*q,4)}, v15 offset:{1024*q}")
    a("s_waitcnt lgkmcnt(8)")
    a(f"v_min_f32 v{vTA}, v{vX0}, v{vX2}")
    a(f"v_sub_f32 v{vX0}, v{vTA}, v{vX0}")
    a(f"v_sub_f32 v{vX2}, v{vTA}, v{vX2}")
    a(f"v_exp_f32 v{vX0}, v{vX0}")
    a(f"v_exp_f32 v{vX2}, v{vX2}")
    a(f"v_mul_f32 v{vTA}, v{vX1}, v{vX0}")
    a(f"v_fmac_f32 v{vTA}, v{vX3}, v{vX2}")
    a(f"v_rcp_f32 v{vTA}, v{vTA}")
    a(f"v_mul_f32 v{vX0}, v{vX0}, v{vTA}")
    a(f"v_mul_f32 v{vX2}, v{vX2}, v{vTA}")
    for r in range(32): a(f"v_mul_f32 v{O+r}, v{O+r}, v{vX0}")
    a("s_waitcnt lgkmcnt(0)")
    for r in range(32): a(f"v_fmac_f32 v{O+r}, v{O+32+r}, v{vX2}")
    store_ctx((0, 1), sCT2, lambda dt: O + 16 * dt)
    if STAMP:
        sp.mark(); a("s_waitcnt vmcnt(0)"); sp.mark(); sp.real(); a("s_waitcnt lgkmcnt(0)")
        sp.flush(100, sW, 0, slot=0); sp.flush(100, sW, 4, slot=1)
    a.label("AT_END")
    a("s_endpgm")
    for hd in handlers:
        if hd[0] == "ev":
            _, name, Sc = hd
            a.label(name + "_EV")
            a(f"s_sub_u32 s{sT}, s{sS}, s{sN1}")
            a(f"s_cmp_lg_u32 s{sT}, 2")
            a(f"s_cbranch_scc1 {name}_E1")
            a(f"v_mov_b32 v{vX0}, v{vL1}")
            a(f"v_permlane32_swap_b32 v{vL1}, v{vX0}")
            a(f"v_add_f32 v{vL1}, v{vL1}, v{vX0}")
            a(f"v_rcp_f32 v{vL1}, v{vL1}")
            for r in range(64): a(f"v_mul_f32 v{O+r}, v{O+r}, v{vL1}")
            store_ctx(range(4), sCT1, lambda dt: O + 16 * dt)
            for r in range(64): a(f"v_mov_b32 v{O+r}, 0")
            a.label(name + "_E1")
            a(f"s_cmp_lg_u32 s{sT}, 0")
            a(f"s_cbranch_scc1 {name}_E2")
            for t in range(8): a(f"ds_read_b128 {vr(Q+4*t,4)}, v9 offset:{1024*t}")
            for r in range(16): a(f"v_mov_b32 v{NEGM+r}, 0")
            a("s_waitcnt lgkmcnt(0)")
            a.label(name + "_E2")
            a(f"s_sub_u32 s{sT2}, s{sS}, s{sMST}")
            a(f"s_sub_u32 s{sT2}, s{sT2}, 1")
            a(f"s_cmp_ge_u32 s{sT2}, 4")
            a(f"s_cbranch_scc1 {name}_E3")
            a(f"s_lshl_b32 s{sT2}, s{sT2}, 5")
            a(f"v_subrev_u32 v{vX0}, s{sT2}, v{vD0}")
            for q in range(4):
                for e in range(4):
                    a(f"v_cmp_le_i32 s[{sMK+2*e}:{sMK+2*e+1}], {8*q+e}, v{vX0}")
                for e in range(4):
                    r = 4 * q + e
                    a(f"v_cndmask_b32 v{Sc+r}, v{vNINF}, v{Sc+r}, s[{sMK+2*e}:{sMK+2*e+1}]")
            a.label(name + "_E3")
            a(f"s_cmp_eq_u32 s{sT}, 1")
            a(f"s_cbranch_scc1 {name}_E4")
            a(f"s_cmp_lg_u32 s{sS}, 1")
            a(f"s_cbranch_scc1 {name}_GO")
            a.label(name + "_E4")
            a(f"v_mov_b32 v{vL1}, v{vL}")
            a(f"v_mov_b32 v{vL}, 0")
            rowmax(vX0, vX1, Sc)
            for r in range(16): a(f"v_sub_f32 v{NEGM+r}, v{NEGM+r}, v{vX0}")
            for r in range(16): a(f"v_sub_f32 v{Sc+r}, v{Sc+r}, v{vX0}")
            a(f"s_branch {name}_GO")
        else:
            _, name, Sc, Sn, Pw = hd
            a.label(name + "_SLOW")
            rowmax(vX0, vX1, Sc)
            a(f"v_max_f32 v{vX0}, 0, v{vX0}")
            a(f"v_exp_f32 v{vX1}, -v{vX0}")
            for r in range(16): a(f"v_sub_f32 v{NEGM+r}, v{NEGM+r}, v{vX0}")
            for r in range(16): a(f"v_sub_f32 v{Sn+r}, v{Sn+r}, v{vX0}")
            for r in range(16): a(f"v_sub_f32 v{Sc+r}, v{Sc+r}, v{vX0}")
            for r in range(64): a(f"v_mul_f32 v{O+r}, v{O+r}, v{vX1}")
            a(f"v_mul_f32 v{vL}, v{vL}, v{vX1}")
            for c, ops in sm_ops(Sc, Pw):
                for x in ops: a(x)
            a(f"s_branch {name}_RET")
    return dict(name="attn_kernel", grid=256, block=512, lds=163840, vgpr=256)


def gen_oproj(a):
    S_WS, S_X, S_OUT = 4, 8, 12
    sW, sT, sT2, sMT, sNT, sKO = 16, 17, 18, 19, 20, 21
    NS = 6
    vB = 4
    ST = 32
    YB = 81920
    sp = Stamps(a)
    a("s_cmp_ge_u32 s2, 256")
    a("s_cbranch_scc1 OP_END")
    sp.real(); sp.mark()
    a(f"s_load_dwordx2 s[24:25], s[0:1], {KA['ws']}")
    a(f"s_load_dwordx2 s[26:27], s[0:1], {KA['A_q']}")
    a(f"s_load_dwordx2 s[28:29], s[0:1], {KA['out']}")
    a("v_lshrrev_b32 v1, 6, v0")
    a("v_and_b32 v0, 63, v0")
    a(f"v_readfirstlane_b32 s{sW}, v1")
    a(f"s_and_b32 s{sMT}, s2, 7")
    a(f"s_lshl_b32 s{sMT}, s{sMT}, 2")
    a(f"s_bfe_u32 s{sT}, s2, 0x20003")
    a(f"s_add_u32 s{sMT}, s{sMT}, s{sT}")
    a(f"s_lshr_b32 s{sNT}, s2, 5")
    a("v_lshlrev_b32 v1, 4, v0")
    a(f"s_lshl_b32 s{sT}, s{sMT}, 19")
    a(f"s_add_u32 s{sT}, s{sT}, {WS_CTX}")
    a(f"v_add_u32 v{vB}, s{sT}, v1")
    for i in range(1, 4): a(f"v_add_u32 v{vB+i}, {i*131072}, v{vB}")
    a(f"s_mul_i32 s{sT}, s{sNT}, {5*131072}")
    a(f"s_add_u32 s{sT}, s{sT}, {WS_WOT}")
    a(f"v_add_u32 v{vB+4}, s{sT}, v1")
    for j in range(1, 5): a(f"v_add_u32 v{vB+4+j}, {j*131072}, v{vB+4}")
    a(f"s_lshl_b32 s{sKO}, s{sW}, 15")
    a("s_waitcnt lgkmcnt(0)")
    srd(a, S_WS, 24, 25, 64 * MB)
    srd(a, S_X, 26, 27, 2621440)
    srd(a, S_OUT, 28, 29, 2621440)
    vm = VM()
    def loads(ks):
        out = []
        base = ST + (ks % NS) * 36
        for n in (4, 0, 5, 1, 6, 2, 7, 3, 8):
            pre = []
            if n == 4 and ks % 4 == 0 and ks: pre.append(f"s_add_u32 s{sKO}, s{sKO}, 4096")
            out.append(pre + [f"buffer_load_dwordx4 {vr(base+4*n,4)}, v{vB+n}, s[{S_WS}:{S_WS+3}], s{sKO} offen offset:{(ks%4)*1024}"])
        return out
    def emit(g, tag):
        for x in g: a(x)
        vm.add(tag)
    for ks in range(NS - 1):
        for g in loads(ks): emit(g, ks)
    a("v_lshrrev_b32 v2, 3, v0")
    a("v_and_b32 v3, 7, v0")
    a("v_lshlrev_b32 v3, 4, v3")
    a("v_lshl_add_u32 v2, v2, 12, v3")
    a(f"s_mul_i32 s{sT}, s{sNT}, {80*4096}")
    a(f"s_lshl_b32 s{sT2}, s{sMT}, 7")
    a(f"s_add_u32 s{sT}, s{sT}, s{sT2}")
    a(f"s_lshl_b32 s{sT2}, s{sW}, 15")
    a(f"s_add_u32 s{sT}, s{sT}, s{sT2}")
    a(f"s_add_u32 s{sT}, s{sT}, {WS_Y2T}")
    a(f"s_lshl_b32 s{sT2}, s{sW}, 10")
    for i in range(3):
        if i == 2:
            a(f"s_cmp_ge_u32 s{sW}, 2")
            a(f"s_cselect_b32 s{sT}, 0x80000000, s{sT}")
        a(f"s_add_u32 m0, s{sT2}, {YB + 4096*i}")
        a("s_nop 0")
        emit([f"buffer_load_dwordx4 v2, s[{S_WS}:{S_WS+3}], s{sT} offen lds"], "y")
        if i < 2: a(f"s_add_u32 s{sT}, s{sT}, {32*4096}")
    a("v_and_b32 v2, 15, v0")
    a("v_lshrrev_b32 v3, 4, v0")
    a(f"s_lshl_b32 s{sT}, s{sMT}, 6")
    a(f"s_lshl_b32 s{sT2}, s{sW}, 4")
    a(f"s_add_u32 s{sT}, s{sT}, s{sT2}")
    a(f"v_add_u32 v2, s{sT}, v2")
    a("v_mul_u32_u24 v13, 1280, v2")
    a("v_lshl_add_u32 v13, v3, 3, v13")
    a(f"s_mul_i32 s{sT}, s{sNT}, 160")
    a(f"v_add_u32 v13, s{sT}, v13")
    a("v_lshlrev_b32 v2, 2, v2")
    a(f"s_mov_b32 s{sT}, {WS_G}")
    emit([f"buffer_load_dword v14, v2, s[{S_WS}:{S_WS+3}], s{sT} offen"], "y")
    for j in range(5):
        emit([f"buffer_load_dwordx2 {vr(16+2*j,2)}, v13, s[{S_X}:{S_X+3}], 0 offen offset:{32*j}"], "y")
    for ks in range(32):
        base = ST + (ks % NS) * 36
        nx = loads(ks + NS - 1) if ks + NS - 1 < 32 else []
        a(f"s_waitcnt vmcnt({vm.wait(ks)})")
        if ks == 0: sp.mark()
        n = 0
        for j in range(5):
            for i in range(4):
                acc = f"a[{(i*5+j)*4}:{(i*5+j)*4+3}]"
                a(f"{MFMA16} {acc}, {vr(base+16+4*j,4)}, {vr(base+4*i,4)}, {'0' if ks == 0 else acc}")
                if n % 2 == 0 and n // 2 < len(nx): emit(nx[n // 2], ks + NS - 1)
                n += 1
    sp.mark()
    a(f"s_mul_i32 s{sT}, s{sW}, 20480")
    a(f"v_add_u32 v4, s{sT}, v1")
    for i in range(4):
        for j in range(5):
            a(f"ds_write_b128 v4, a[{(i*5+j)*4}:{(i*5+j)*4+3}] offset:{(i*5+j)*1024}")
    a(f"s_mul_i32 s{sT}, s{sW}, 5120")
    a(f"v_add_u32 v5, s{sT}, v1")
    a("v_add_u32 v6, 40960, v5")
    a("v_lshrrev_b32 v7, 2, v0")
    a("v_lshlrev_b32 v7, 7, v7")
    a("v_and_b32 v8, 3, v0")
    a("v_lshl_add_u32 v7, v8, 3, v7")
    a(f"s_lshl_b32 s{sT}, s{sW}, 5")
    a(f"s_add_u32 s{sT}, s{sT}, {YB}")
    a(f"v_add_u32 v7, s{sT}, v7")
    a("s_waitcnt vmcnt(0) lgkmcnt(0)")
    a("s_barrier")
    for j in range(5):
        for src in range(4):
            a(f"ds_read_b128 {vr(32+(j*4+src)*4,4)}, v{5 if src < 2 else 6} offset:{(src%2)*20480+j*1024}")
        a(f"ds_read_b64_tr_b16 {vr(112+2*j,2)}, v7 offset:{j*2048}")
    a("v_sub_f32 v15, 1.0, v14")
    rnd_pair(a, 26, 15, 15, 15, 27)
    for j in range(5):
        a(f"s_waitcnt lgkmcnt({min(15, 5*(4-j))})")
        b = 32 + j * 16
        for r in range(4):
            a(f"v_add_f32 v{b+r}, v{b+r}, v{b+4+r}")
            a(f"v_add_f32 v{b+8+r}, v{b+8+r}, v{b+12+r}")
        for r in range(4):
            a(f"v_add_f32 v{b+r}, v{b+r}, v{b+8+r}")
        for hf in range(2):
            rnd_pair(a, 26, b + 2 * hf, b + 2 * hf + 1, b + 4, b + 5)
            a(f"v_mul_f32 v{b+4}, v15, v{b+4}")
            a(f"v_mul_f32 v{b+5}, v15, v{b+5}")
            rnd_pair(a, 26, b + 4, b + 5, b + 4, b + 5)
            a(f"v_lshlrev_b32 v{b+6}, 16, v{16+2*j+hf}")
            a(f"v_and_b32 v{b+7}, 0xffff0000, v{16+2*j+hf}")
            a(f"v_lshlrev_b32 v{b+8}, 16, v{112+2*j+hf}")
            a(f"v_and_b32 v{b+9}, 0xffff0000, v{112+2*j+hf}")
            a(f"v_mul_f32 v{b+6}, v{b+6}, v{b+8}")
            a(f"v_mul_f32 v{b+7}, v{b+7}, v{b+9}")
            rnd_pair(a, 26, b + 6, b + 7, b + 6, b + 7)
            a(f"v_mul_f32 v{b+6}, v14, v{b+6}")
            a(f"v_mul_f32 v{b+7}, v14, v{b+7}")
            rnd_pair(a, 26, b + 6, b + 7, b + 6, b + 7)
            a(f"v_add_f32 v{b+6}, v{b+6}, v{b+4}")
            a(f"v_add_f32 v{b+7}, v{b+7}, v{b+5}")
            a(f"v_cvt_pk_bf16_f32 v{b+12+hf}, v{b+6}, v{b+7}")
        a(f"buffer_store_dwordx2 {vr(b+12,2)}, v13, s[{S_OUT}:{S_OUT+3}], 0 offen offset:{32*j}")
    if STAMP:
        sp.mark(); a("s_waitcnt vmcnt(0)"); sp.mark(); sp.real(); a("s_waitcnt lgkmcnt(0)")
        sp.flush(100, sW, 0, slot=0); sp.flush(100, sW, 3, slot=1)
    a.label("OP_END")
    a("s_endpgm")
    return dict(name="oproj_kernel", grid=256, block=256, lds=YB + 12288, vgpr=336)

KERNELS = {"prep": gen_prep, "conv": gen_conv, "kvproj": gen_kvproj, "attn": gen_attn, "oproj": gen_oproj}

def build(names, path, verbose=False):
    hdr = open("gated_mix__ssm_conv_h3__compressed_kv_cla__prompt.s.ref").read().split("\n")
    hdr = [l for l in hdr if l.startswith(";") and "@launch" not in l and "Override" not in l and "grid=ceil" not in l]
    codes, descs, launches = [], [], []
    for n in names:
        a = Asm()
        info = KERNELS[n](a)
        k = fix_hazards(a.lines, verbose)
        print(f"{n}: {len(a.lines)} lines, {k} nops inserted")
        c, d = kernel_text(info["name"], a.lines, info["vgpr"], extra="  .amdhsa_float_denorm_mode_32 3\n")
        codes.append(c); descs.append(d)
        launches.append(f"; @launch kernel={info['name']} grid=({info['grid']},1,1) block=({info['block']},1,1) lds={info['lds']}")
    txt = "\n".join(hdr + launches) + '\n.amdgcn_target "amdgcn-amd-amdhsa--gfx950"\n.text\n' + "\n".join(codes) + \
          '\n.section .rodata,"a"\n' + "\n".join(descs)
    open(path, "w").write(txt)

if __name__ == "__main__":
    names = sys.argv[2].split(",") if len(sys.argv) > 2 else list(KERNELS)
    build(names, sys.argv[1] if len(sys.argv) > 1 else "k.s", verbose="-v" in sys.argv)
```

```python
import sys
from asmlib import *

MB = 1 << 20
WS_KF, WS_VF, WS_CTX, WS_WOT, WS_KVT, WS_Y2T, WS_G = 0, 16 * MB, 32 * MB, 48 * MB, 56 * MB, 60 * MB, 63 * MB
SZ_KF = 16 * MB
KA = dict(A_q=0, A_k=8, A_v=16, shift=24, ssm_k=32, ssm_D=40, B_x=48, c_kv=56, w_q=64, w_uk=72, w_uv=80, w_o=88,
          gate=96, out=104, dbg=112, ws=120)
MFMA32 = "v_mfma_f32_32x32x16_bf16"
MFMA16 = "v_mfma_f32_16x16x32_bf16"

def srd(a, d, lo, hi, size, add=0):
    if add:
        a(f"s_add_u32 s{d}, s{lo}, {add}")
        a(f"s_addc_u32 s{d+1}, s{hi}, 0")
    else:
        a(f"s_mov_b32 s{d}, s{lo}")
        a(f"s_mov_b32 s{d+1}, s{hi}")
    a(f"s_mov_b32 s{d+2}, {size}")
    a(f"s_mov_b32 s{d+3}, 0x00020000")

STAMP = "-stamp" in sys.argv
OPT = {x[2:].split("=")[0]: (x.split("=")[1] if "=" in x else "1") for x in sys.argv if x.startswith("--")}
class Stamps:
    def __init__(self, a, base=64):
        self.a, self.base, self.n = a, base, 0
    def mark(self):
        if not STAMP: return
        assert self.base + 2 * self.n + 3 <= 101
        self.a(f"s_memtime s[{self.base+2*self.n}:{self.base+2*self.n+1}]")
        self.a(f"s_memrealtime s[{self.base+2*self.n+2}:{self.base+2*self.n+3}]")
        self.n += 2
    def real(self):
        pass
    def flush(self, wg, sW, wave, n=None, slot=0):
        if not STAMP: return
        a = self.a
        lab = a.uid("STK")
        a(f"s_cmp_lg_u32 s2, {wg}")
        a(f"s_cbranch_scc1 {lab}")
        a(f"s_cmp_lg_u32 s{sW}, {wave}")
        a(f"s_cbranch_scc1 {lab}")
        a(f"s_load_dwordx2 s[60:61], s[0:1], {KA['dbg']}")
        a("s_waitcnt lgkmcnt(0)")
        a("s_mov_b32 s62, 256")
        a("s_mov_b32 s63, 0x00020000")
        a("v_mov_b32 v1, 0")
        for i in range(n or self.n):
            a(f"v_mov_b32 v2, s{self.base+2*i}")
            a(f"buffer_store_dword v2, v1, s[60:63], 0 offen offset:{slot*128+4*i}")
        a("s_waitcnt vmcnt(0)")
        a.label(lab)

def gen_kvproj(a):
    S_C, S_W, S_O = 4, 8, 12
    sH, sKVB, sW, sPART, sKVH, sDH, sCO, sWO, sM0C, sM0W, sT, sOB = 16, 17, 18, 19, 28, 29, 30, 31, 32, 33, 34, 35
    vCD, vWD, vAC, vAW, vL16 = 4, 8, 12, 16, 18
    CF = [32, 56]; WF = [48, 72]
    ACC = 128
    a("s_cmp_ge_u32 s2, 256")
    a("s_cbranch_scc1 KV_END")
    sp = Stamps(a); sp.real(); sp.mark()
    a(f"s_load_dwordx2 s[20:21], s[0:1], {KA['c_kv']}")
    a(f"s_load_dwordx4 s[24:27], s[0:1], {KA['w_uk']}")
    a(f"s_load_dwordx2 s[22:23], s[0:1], {KA['ws']}")
    a("v_lshrrev_b32 v1, 6, v0")
    a("v_and_b32 v0, 63, v0")
    a(f"v_readfirstlane_b32 s{sW}, v1")
    a(f"s_and_b32 s{sH}, s2, 31")
    a(f"s_lshr_b32 s{sKVB}, s2, 5")
    a(f"s_lshr_b32 s{sPART}, s{sW}, 2")
    a(f"s_and_b32 s{sKVH}, s{sW}, 1")
    a(f"s_bfe_u32 s{sDH}, s{sW}, 0x10001")
    a("v_lshrrev_b32 v1, 3, v0")
    a("v_and_b32 v2, 7, v0")
    a("v_lshrrev_b32 v3, 4, v0")
    a("v_xor_b32 v2, v2, v3")
    a("v_lshlrev_b32 v2, 4, v2")
    a(f"v_lshl_add_u32 v{vCD}, v1, 10, v2")
    a(f"v_xor_b32 v{vCD+1}, 64, v{vCD}")
    a(f"v_add_u32 v{vCD+1}, {8192-1024}, v{vCD+1}")
    a(f"v_add_u32 v{vCD+2}, {2*(8192-1024)}, v{vCD}")
    a(f"v_add_u32 v{vCD+3}, {2*(8192-1024)}, v{vCD+1}")
    a("v_and_b32 v1, 15, v0")
    a("v_lshlrev_b32 v2, 2, v3")
    a("v_xor_b32 v1, v1, v2")
    a("v_lshlrev_b32 v1, 4, v1")
    a(f"v_lshl_add_u32 v{vWD}, v3, 13, v1")
    for i in range(1, 4):
        a(f"v_add_u32 v{vWD+i}, {i*(4*8192-1024)}, v{vWD}")
    a(f"s_lshl_b32 s{sCO}, s{sKVB}, 18")
    a(f"s_lshl_b32 s{sT}, s{sW}, 15")
    a(f"s_add_u32 s{sCO}, s{sCO}, s{sT}")
    a(f"s_and_b32 s{sT}, s{sW}, 3")
    a(f"s_lshl_b32 s{sWO}, s{sT}, 17")
    a(f"s_lshl_b32 s{sM0W}, s{sT}, 12")
    a(f"s_lshl_b32 s{sT}, s{sH}, 8")
    a(f"s_add_u32 s{sWO}, s{sWO}, s{sT}")
    a(f"s_lshl_b32 s{sM0C}, s{sW}, 12")
    a(f"s_lshl_b32 s{sT}, s{sPART}, 14")
    a(f"s_add_u32 s{sM0W}, s{sM0W}, s{sT}")
    a(f"s_add_u32 s{sM0W}, s{sM0W}, 65536")
    a("s_waitcnt lgkmcnt(0)")
    srd(a, S_C, 20, 21, 2 * MB)
    a(f"s_cmp_eq_u32 s{sPART}, 0")
    a(f"s_cselect_b32 s{S_W}, s24, s26")
    a(f"s_cselect_b32 s{S_W+1}, s25, s27")
    a(f"s_mov_b32 s{S_W+2}, {4*MB}")
    a(f"s_mov_b32 s{S_W+3}, 0x00020000")
    srd(a, S_O, 22, 23, 32 * MB)

    def dma(st):
        out = []
        buf = (st & 1) * 32768
        out.append([f"s_add_u32 m0, s{sM0C}, {buf}" if buf else f"s_mov_b32 m0, s{sM0C}",
                    f"s_add_u32 s{sT}, s{sCO}, {st*128}",
                    f"buffer_load_dwordx4 v{vCD}, s[{S_C}:{S_C+3}], s{sT} offen lds"])
        for i in range(1, 4):
            out.append([f"buffer_load_dwordx4 v{vCD+i}, s[{S_C}:{S_C+3}], s{sT} offen offset:{i*1024} lds"])
        out.append([f"s_add_u32 m0, s{sM0W}, {buf}" if buf else f"s_mov_b32 m0, s{sM0W}",
                    f"s_add_u32 s{sT}, s{sWO}, {st*64*8192}",
                    f"buffer_load_dwordx4 v{vWD}, s[{S_W}:{S_W+3}], s{sT} offen lds"])
        for i in range(1, 4):
            out.append([f"buffer_load_dwordx4 v{vWD+i}, s[{S_W}:{S_W+3}], s{sT} offen offset:{i*1024} lds"])
        return out
    for st in range(2):
        for g in dma(st):
            for x in g: a(x)
    a("v_and_b32 v1, 31, v0")
    a("v_lshrrev_b32 v2, 5, v0")
    a("v_bfe_u32 v3, v0, 1, 3")
    a("v_xor_b32 v3, v3, v2")
    a("v_lshlrev_b32 v3, 4, v3")
    a("v_lshl_add_u32 v3, v1, 7, v3")
    a(f"s_lshl_b32 s{sT}, s{sKVH}, 14")
    a(f"v_add_u32 v{vAC}, s{sT}, v3")
    for t in range(1, 4):
        a(f"v_xor_b32 v{vAC+t}, {t*32}, v{vAC}")
    a("v_bfe_u32 v1, v0, 2, 2")
    a("v_lshl_add_u32 v3, v2, 3, v1")
    a("v_lshlrev_b32 v3, 8, v3")
    a("v_bfe_u32 v20, v0, 4, 1")
    a("v_lshl_add_u32 v3, v20, 5, v3")
    a("v_bfe_u32 v20, v0, 1, 1")
    a("v_lshl_add_u32 v3, v20, 4, v3")
    a("v_and_b32 v20, 1, v0")
    a("v_lshl_add_u32 v3, v20, 3, v3")
    a(f"s_lshl_b32 s{sT}, s{sPART}, 14")
    a(f"s_add_u32 s{sT}, s{sT}, 65536")
    a(f"v_add_u32 v3, s{sT}, v3")
    a(f"s_lshl_b32 s{sT}, s{sDH}, 1")
    a(f"v_xor_b32 v20, s{sT}, v1")
    a(f"v_lshl_add_u32 v{vAW}, v20, 6, v3")
    a("v_xor_b32 v20, 1, v20")
    a(f"v_lshl_add_u32 v{vAW+1}, v20, 6, v3")
    a(f"v_lshlrev_b32 v{vL16}, 4, v0")
    a(f"s_lshl_b32 s{sOB}, s{sH}, 6")
    a(f"s_lshl_b32 s{sT}, s{sKVB}, 3")
    a(f"s_add_u32 s{sOB}, s{sOB}, s{sT}")
    a(f"s_lshl_b32 s{sT}, s{sKVH}, 2")
    a(f"s_add_u32 s{sOB}, s{sOB}, s{sT}")
    a(f"s_lshl_b32 s{sOB}, s{sOB}, 13")

    def reads(st, t):
        s = (st * 4 + t) & 1
        buf = (st & 1) * 32768
        r = []
        for dtl in range(2):
            for hf in range(2):
                r.append(f"ds_read_b64_tr_b16 {vr(WF[s]+dtl*4+hf*2,2)}, v{vAW+dtl} offset:{buf+t*4096+hf*1024}")
        for kt in range(4):
            r.append(f"ds_read_b128 {vr(CF[s]+kt*4,4)}, v{vAC+t} offset:{buf+kt*4096}")
        return [r[0], r[1], r[4], r[5], r[6], r[7], r[2], r[3]]

    a("s_waitcnt vmcnt(8)")
    a("s_barrier")
    sp.mark(); n0 = sp.n
    for x in reads(0, 0): a(x)
    a(f"s_cmp_lg_u32 s{sPART}, 0")
    a("s_cbranch_scc1 KV_V")
    for part in range(2):
        if part == 1: a.label("KV_V")
        sp.n = n0
        for st in range(8):
            for t in range(4):
                s = (st * 4 + t) & 1
                nxt, dm = [], []
                a("s_waitcnt lgkmcnt(0)")
                if t < 3:
                    nxt = reads(st, t + 1)
                elif st < 7:
                    a("s_waitcnt vmcnt(0)")
                    a("s_barrier")
                    if st in (2, 6): sp.mark()
                    nxt = reads(st + 1, 0)
                    if st < 6: dm = dma(st + 2)
                j = 0
                for dtl in range(2):
                    for kt in range(4):
                        acc = vr(ACC + (dtl * 4 + kt) * 16, 16)
                        w, c = vr(WF[s] + dtl * 4, 4), vr(CF[s] + kt * 4, 4)
                        cin = "0" if (st == 0 and t == 0) else acc
                        if 'kv16' in OPT:
                            for hh in range(2):
                                ac = vr(ACC + (dtl * 4 + kt) * 16 + 8 * (t & 1) + 4 * hh, 4)
                                c2 = vr(CF[s] + (kt ^ hh) * 4, 4)
                                a(f"{MFMA16} {ac}, {w}, {c2}, {'0' if (st == 0 and t < 2) else ac}")
                        elif part == 0: a(f"{MFMA32} {acc}, {w}, {c}, {cin}")
                        else: a(f"{MFMA32} {acc}, {c}, {w}, {cin}")
                        for x in nxt[2 * j: 2 * j + 2]: a(x)
                        if j >= 4:
                            for g in dm[2 * (j - 4): 2 * (j - 4) + 2]:
                                for x in g: a(x)
                        j += 1
        sp.mark()
        if part == 0:
            a(f"s_lshl_b32 s{sT}, s{sDH}, 12")
            a(f"s_add_u32 s{sOB}, s{sOB}, s{sT}")
        else:
            a(f"s_lshl_b32 s{sT}, s{sDH}, 11")
            a(f"s_add_u32 s{sOB}, s{sOB}, s{sT}")
            a(f"s_add_u32 s{sOB}, s{sOB}, {WS_VF}")
        n = 0
        for dtl in range(2):
            for kt in range(4):
                for R in range(2):
                    src = ACC + (dtl * 4 + kt) * 16 + R * 8
                    d = 32 + (n % 8) * 4
                    n += 1
                    for e in range(4):
                        a(f"v_cvt_pk_bf16_f32 v{d+e}, v{src+2*e}, v{src+2*e+1}")
                    if part == 0:
                        a(f"s_add_u32 s{sT}, s{sOB}, {kt*8192}")
                        a(f"buffer_store_dwordx4 {vr(d,4)}, v{vL16}, s[{S_O}:{S_O+3}], s{sT} offen offset:{(2*dtl+R)*1024}")
                    else:
                        a(f"s_add_u32 s{sT}, s{sOB}, {kt*8192+R*4096}")
                        a(f"buffer_store_dwordx4 {vr(d,4)}, v{vL16}, s[{S_O}:{S_O+3}], s{sT} offen offset:{dtl*1024}")
        if STAMP:
            sp.mark(); a("s_waitcnt vmcnt(0)"); sp.mark(); sp.real(); a("s_waitcnt lgkmcnt(0)")
            sp.flush(100, sW, part * 4, slot=part)
        a("s_endpgm")
    a.label("KV_END")
    a("s_endpgm")
    return dict(name="kvproj_kernel", grid=256, block=512, lds=131072, vgpr=256)


def rnd_pair(a, d, lo, hi, olo, ohi):
    a(f"v_cvt_pk_bf16_f32 v{d}, v{lo}, v{hi}")
    a(f"v_lshlrev_b32 v{olo}, 16, v{d}")
    a(f"v_and_b32 v{ohi}, 0xffff0000, v{d}")

def gen_prep(a):
    S_K, S_V, S_SH, S_WS, S_X, S_GW, S_WO = 4, 8, 12, 16, 20, 24, 28
    sW, sT, sT2 = 32, 33, 34
    a("s_cmp_ge_u32 s2, 256")
    a("s_cbranch_scc1 PR_END")
    a(f"s_load_dwordx4 s[36:39], s[0:1], {KA['A_q']}")
    a(f"s_load_dwordx4 s[40:43], s[0:1], {KA['A_v']}")
    a(f"s_load_dwordx4 s[44:47], s[0:1], {KA['w_o']}")
    a(f"s_load_dwordx2 s[48:49], s[0:1], {KA['ws']}")
    a("v_lshrrev_b32 v1, 6, v0")
    a("v_and_b32 v2, 63, v0")
    a(f"v_readfirstlane_b32 s{sW}, v1")
    a("s_waitcnt lgkmcnt(0)")
    srd(a, S_X, 36, 37, 2621440)
    srd(a, S_K, 38, 39, 2621440)
    srd(a, S_V, 40, 41, 2621440)
    srd(a, S_SH, 42, 43, 5120)
    srd(a, S_WO, 44, 45, 5242880)
    srd(a, S_GW, 46, 47, 1280)
    srd(a, S_WS, 48, 49, 64 * MB)
    a(f"v_lshlrev_b32 v3, 4, v2")
    a(f"s_lshr_b32 s{sT}, s2, 1")
    a(f"s_lshl_b32 s{sT}, s{sT}, 5")
    a(f"s_lshl_b32 s{sT2}, s{sW}, 2")
    a(f"s_add_u32 s{sT}, s{sT}, s{sT2}")
    a(f"s_mul_i32 s{sT}, s{sT}, 1280")
    a(f"s_and_b32 s35, s2, 1")
    a(f"s_mul_i32 s35, s35, 640")
    a(f"s_add_u32 s{sT}, s{sT}, s35")
    a(f"s_mul_i32 s{sT2}, s{sT2}, 672")
    a("s_mov_b32 exec_lo, -1")
    a("s_mov_b32 exec_hi, 0xff")
    for i in range(4):
        a(f"s_add_u32 m0, s{sT2}, {672*i}")
        a(f"s_add_u32 s35, s{sT}, {1280*i}")
        a(f"buffer_load_dwordx4 v3, s[{S_WO}:{S_WO+3}], s35 offen lds")
    a("s_mov_b64 exec, -1")
    a("v_mul_u32_u24 v4, 20, v2")
    a(f"s_lshl_b32 s{sT}, s2, 3")
    a(f"s_add_u32 s{sT}, s{sT}, s{sW}")
    a(f"s_mul_i32 s35, s{sT}, 1280")
    a(f"buffer_load_dwordx4 v[8:11], v4, s[{S_X}:{S_X+3}], s35 offen")
    a(f"buffer_load_dword v12, v4, s[{S_X}:{S_X+3}], s35 offen offset:16")
    a(f"buffer_load_dwordx4 v[16:19], v4, s[{S_GW}:{S_GW+3}], 0 offen")
    a(f"buffer_load_dword v20, v4, s[{S_GW}:{S_GW+3}], 0 offen offset:16")
    a("v_mul_u32_u24 v5, 1639, v0")
    a("v_lshrrev_b32 v5, 16, v5")
    a("v_mul_u32_u24 v6, 40, v5")
    a("v_sub_u32 v6, v0, v6")
    a(f"s_lshr_b32 s{sT}, s2, 3")
    a(f"s_lshl_b32 s{sT}, s{sT}, 6")
    a(f"v_lshl_add_u32 v5, v5, 3, s{sT}")
    a(f"s_and_b32 s{sT2}, s2, 7")
    a(f"s_mul_i32 s{sT2}, s{sT2}, 40")
    a(f"v_add_u32 v6, s{sT2}, v6")
    a("v_mul_u32_u24 v7, 1280, v5")
    a("v_lshl_add_u32 v7, v6, 2, v7")
    a("v_add_u32 v13, 5120, v7")
    a("v_subrev_u32 v14, 3840, v7")
    a("v_mov_b32 v15, 0x80000000")
    a("v_cmp_eq_u32 vcc, 0, v5")
    a("v_cndmask_b32 v14, v14, v15, vcc")
    a("v_cmp_gt_u32 vcc, 320, v0")
    a("v_cndmask_b32 v7, v15, v7, vcc")
    a("v_cndmask_b32 v13, v15, v13, vcc")
    a("v_cndmask_b32 v14, v15, v14, vcc")
    a("v_lshlrev_b32 v21, 4, v6")
    KR, VR, SH = 32, 44, 52
    for j in range(3):
        a(f"buffer_load_dword v{KR+j}, v14, s[{S_K}:{S_K+3}], 0 offen offset:{1280*j}")
    for j in range(8):
        a(f"buffer_load_dword v{KR+3+j}, v{7 if j < 4 else 13}, s[{S_K}:{S_K+3}], 0 offen offset:{1280*(j%4)}")
    for j in range(8):
        a(f"buffer_load_dword v{VR+j}, v{7 if j < 4 else 13}, s[{S_V}:{S_V+3}], 0 offen offset:{1280*(j%4)}")
    a(f"buffer_load_dwordx4 v[{SH}:{SH+3}], v21, s[{S_SH}:{S_SH+3}], 0 offen")
    a("s_waitcnt vmcnt(20)")
    a("v_mov_b32 v22, 0")
    for i in range(5):
        x, w = 8 + i, 16 + i
        a(f"v_lshlrev_b32 v23, 16, v{x}")
        a(f"v_and_b32 v24, 0xffff0000, v{x}")
        a(f"v_lshlrev_b32 v25, 16, v{w}")
        a(f"v_and_b32 v26, 0xffff0000, v{w}")
        a("v_mul_f32 v23, v23, v25")
        a("v_mul_f32 v24, v24, v26")
        rnd_pair(a, 25, 23, 24, 23, 24)
        a("v_add_f32 v22, v22, v23")
        a("v_add_f32 v22, v22, v24")
    for m in ("row_shr:1", "row_shr:2", "row_shr:4", "row_shr:8"):
        a(f"v_add_f32_dpp v22, v22, v22 {m} row_mask:0xf bank_mask:0xf bound_ctrl:0")
    a("v_add_f32_dpp v22, v22, v22 row_bcast:15 row_mask:0xa bank_mask:0xf")
    a("v_add_f32_dpp v22, v22, v22 row_bcast:31 row_mask:0xc bank_mask:0xf")
    rnd_pair(a, 23, 22, 22, 22, 24)
    a("v_mul_f32 v22, 0xbfb8aa3b, v22")
    a("v_exp_f32 v22, v22")
    a("v_add_f32 v22, 1.0, v22")
    a("v_rcp_f32 v22, v22")
    rnd_pair(a, 23, 22, 22, 22, 24)
    a(f"s_lshl_b32 s{sT}, s2, 3")
    a(f"s_add_u32 s{sT}, s{sT}, s{sW}")
    a(f"s_lshl_b32 s{sT}, s{sT}, 2")
    a(f"s_add_u32 s{sT}, s{sT}, {WS_G}")
    a("v_cmp_eq_u32 vcc, 63, v2")
    a("v_cndmask_b32 v23, v15, 0, vcc")
    a(f"buffer_store_dword v22, v23, s[{S_WS}:{S_WS+3}], s{sT} offen")
    a("s_barrier")
    a("v_lshrrev_b32 v23, 4, v2")
    a("v_bfe_u32 v24, v2, 2, 2")
    a("v_lshrrev_b32 v25, 1, v23")
    a("v_lshl_add_u32 v24, v25, 4, v24")
    a("v_and_b32 v25, 1, v23")
    a("v_lshl_add_u32 v24, v25, 2, v24")
    a("v_mul_u32_u24 v24, 672, v24")
    a("v_and_b32 v25, 3, v2")
    a("v_lshl_add_u32 v24, v25, 3, v24")
    a(f"s_lshl_b32 s{sT}, s{sW}, 5")
    a(f"v_add_u32 v24, s{sT}, v24")
    for i in range(3):
        a(f"ds_read_b64_tr_b16 v[{64+4*i}:{65+4*i}], v24 offset:{256*i}")
        a(f"ds_read_b64_tr_b16 v[{66+4*i}:{67+4*i}], v24 offset:{256*i+8*672}")
    a(f"s_and_b32 s{sT}, s2, 1")
    a(f"s_mul_i32 s{sT}, s{sT}, 20")
    a(f"s_add_u32 s{sT}, s{sT}, s{sW}")
    a(f"s_lshl_b32 s{sT}, s{sT}, 17")
    a(f"s_lshr_b32 s{sT2}, s2, 1")
    a(f"s_lshl_b32 s{sT2}, s{sT2}, 10")
    a(f"s_add_u32 s{sT}, s{sT}, s{sT2}")
    a(f"s_add_u32 s{sT}, s{sT}, {WS_WOT}")
    a("s_waitcnt lgkmcnt(0)")
    a(f"buffer_store_dwordx4 v[64:67], v3, s[{S_WS}:{S_WS+3}], s{sT} offen")
    a(f"s_add_u32 s{sT}, s{sT}, {8<<17}")
    a(f"buffer_store_dwordx4 v[68:71], v3, s[{S_WS}:{S_WS+3}], s{sT} offen")
    a(f"s_add_u32 s{sT}, s{sT}, {8<<17}")
    a(f"s_cmp_ge_u32 s{sW}, 4")
    a("s_cbranch_scc1 PR_SKIP3")
    a(f"buffer_store_dwordx4 v[72:75], v3, s[{S_WS}:{S_WS+3}], s{sT} offen")
    a.label("PR_SKIP3")
    a(f"s_cmp_ge_u32 s{sW}, 5")
    a("s_cbranch_scc1 PR_END")
    a("s_waitcnt vmcnt(0)")
    W = 80
    for c in range(2):
        for q in range(2):
            a(f"v_lshlrev_b32 v{W+4*c+2*q}, 16, v{SH+2*c+q}")
            a(f"v_and_b32 v{W+4*c+2*q+1}, 0xffff0000, v{SH+2*c+q}")
    KL, KH = 88, 100
    for j in range(11):
        a(f"v_lshlrev_b32 v{KL+j}, 16, v{KR+j}")
        a(f"v_and_b32 v{KH+j}, 0xffff0000, v{KR+j}")
    OL, OH = 112, 120
    for s in range(8):
        a(f"v_mul_f32 v22, v{KL+s}, v{W+3}")
        a(f"v_mul_f32 v23, v{KH+s}, v{W+7}")
        rnd_pair(a, 24, 22, 23, 22, 23)
        for j in (2, 1, 0):
            a(f"v_mul_f32 v25, v{KL+s+3-j}, v{W+j}")
            a(f"v_mul_f32 v26, v{KH+s+3-j}, v{W+4+j}")
            rnd_pair(a, 24, 25, 26, 25, 26)
            a("v_add_f32 v22, v22, v25")
            a("v_add_f32 v23, v23, v26")
            rnd_pair(a, 24, 22, 23, 22, 23)
        a(f"v_lshlrev_b32 v25, 16, v{VR+s}")
        a(f"v_and_b32 v26, 0xffff0000, v{VR+s}")
        a(f"v_mul_f32 v{OL+s}, v22, v25")
        a(f"v_mul_f32 v{OH+s}, v23, v26")
    for q in range(4):
        a(f"v_cvt_pk_bf16_f32 v{64+q}, v{OL+2*q}, v{OL+2*q+1}")
        a(f"v_cvt_pk_bf16_f32 v{68+q}, v{OH+2*q}, v{OH+2*q+1}")
    a("v_mul_u32_u24 v22, 10240, v6")
    a("v_lshrrev_b32 v23, 5, v5")
    a("v_mul_u32_u24 v23, 80, v23")
    a("v_add_u32 v22, v22, v23")
    a("v_and_b32 v23, 31, v5")
    a("v_lshl_add_u32 v22, v23, 1, v22")
    a("v_add_u32 v23, 5120, v22")
    a(f"s_mov_b32 s{sT}, {WS_KVT}")
    a(f"buffer_store_dwordx4 v[64:67], v22, s[{S_WS}:{S_WS+3}], s{sT} offen")
    a(f"buffer_store_dwordx4 v[68:71], v23, s[{S_WS}:{S_WS+3}], s{sT} offen")
    a.label("PR_END")
    a("s_endpgm")
    return dict(name="prep_kernel", grid=256, block=512, lds=32768, vgpr=128)

def gen_conv(a):
    S_H, S_WS, S_D = 4, 8, 12
    sW, sT, sT2, sCH, sKH, sLB, sCL = 16, 17, 18, 19, 20, 21, 22
    CHB = 4 * 4160 + 7680
    RED = 4 * CHB
    a("s_cmp_ge_u32 s2, 160")
    a("s_cbranch_scc1 CV_END")
    a(f"s_load_dwordx4 s[24:27], s[0:1], {KA['ssm_k']}")
    a(f"s_load_dwordx2 s[28:29], s[0:1], {KA['ws']}")
    a("v_lshrrev_b32 v1, 6, v0")
    a("v_and_b32 v0, 63, v0")
    a(f"v_readfirstlane_b32 s{sW}, v1")
    a(f"s_lshr_b32 s{sCL}, s{sW}, 1")
    a(f"s_and_b32 s{sKH}, s{sW}, 1")
    a(f"s_lshl_b32 s{sCH}, s2, 2")
    a(f"s_add_u32 s{sCH}, s{sCH}, s{sCL}")
    a(f"s_mul_i32 s{sLB}, s{sCL}, {CHB}")
    a("v_lshlrev_b32 v2, 4, v0")
    a("s_waitcnt lgkmcnt(0)")
    srd(a, S_H, 24, 25, 2621440)
    srd(a, S_D, 26, 27, 1280)
    srd(a, S_WS, 28, 29, 64 * MB)
    a(f"s_lshl_b32 s{sT}, s{sCH}, 12")
    a(f"s_lshl_b32 s{sT2}, s{sKH}, 2")
    a(f"s_sub_u32 s{sT}, s{sT}, s{sT2}")
    a(f"v_add_u32 v3, s{sT}, v2")
    a(f"s_mul_i32 s{sT2}, s{sKH}, {2*4160}")
    a(f"s_add_u32 s{sT2}, s{sT2}, s{sLB}")
    for rr in range(2):
        if rr: a("v_subrev_u32 v3, 2, v3")
        a("v_add_u32 v4, 1024, v3")
        a(f"s_add_u32 m0, s{sT2}, {rr*4160+64}")
        a(f"buffer_load_dwordx4 v3, s[{S_H}:{S_H+3}], 0 offen lds")
        a(f"s_add_u32 m0, s{sT2}, {rr*4160+64+1024}")
        for i in range(3):
            a(f"buffer_load_dwordx4 v4, s[{S_H}:{S_H+3}], 0 offen offset:{1024*i} lds")
    a(f"s_mul_i32 s{sT}, s{sCH}, 5120")
    a(f"s_add_u32 s{sT}, s{sT}, {WS_KVT}")
    a(f"s_add_u32 s{sT2}, s{sLB}, {4*4160}")
    a("v_mov_b32 v8, 0")
    a("v_mov_b32 v9, 0")
    a("v_mov_b32 v10, 0")
    a("v_mov_b32 v11, 0")
    a(f"v_add_u32 v5, s{sT2}, v2")
    a(f"s_cmp_eq_u32 s{sKH}, 0")
    a("s_cbranch_scc1 CV_Z")
    a(f"s_add_u32 m0, s{sT2}, 2560")
    for i in range(4):
        a(f"buffer_load_dwordx4 v2, s[{S_WS}:{S_WS+3}], s{sT} offen offset:{1024*i} lds")
    a("s_branch CV_Z2")
    a.label("CV_Z")
    a(f"s_add_u32 m0, s{sT2}, {2560+4096}")
    a(f"s_add_u32 s{sT}, s{sT}, 4096")
    a(f"buffer_load_dwordx4 v2, s[{S_WS}:{S_WS+3}], s{sT} offen lds")
    a("ds_write_b128 v5, v[8:11]")
    a("ds_write_b128 v5, v[8:11] offset:1024")
    a("v_lshlrev_b32 v6, 3, v0")
    a(f"v_add_u32 v6, s{sT2}, v6")
    a("ds_write_b64 v6, v[8:9] offset:2048")
    a.label("CV_Z2")
    a("v_and_b32 v6, 7, v0")
    a("v_bfe_u32 v7, v0, 3, 1")
    a(f"s_lshl_b32 s{sT}, s{sKH}, 1")
    a(f"v_add_u32 v7, s{sT}, v7")
    a("v_lshlrev_b32 v12, 1, v6")
    a(f"s_lshl_b32 s{sT}, s{sCH}, 12")
    a(f"buffer_load_ushort v13, v12, s[{S_H}:{S_H+3}], s{sT} offen")
    a(f"s_lshl_b32 s{sT}, s{sCH}, 1")
    a(f"buffer_load_ushort v14, v8, s[{S_D}:{S_D+3}], s{sT} offen")
    a("v_add_u32 v6, v6, v7")
    a("v_mul_u32_u24 v12, 4160, v7")
    a("v_lshl_add_u32 v12, v6, 1, v12")
    a(f"v_add_u32 v12, s{sLB}, v12")
    vA, vB = 16, 17
    a("v_bfe_u32 v18, v0, 2, 2")
    a("v_mul_u32_u24 v18, 4160, v18")
    a("v_bfe_u32 v19, v0, 4, 1")
    a("v_lshl_add_u32 v18, v19, 5, v18")
    a("v_and_b32 v19, 3, v0")
    a("v_lshl_add_u32 v18, v19, 3, v18")
    a("v_lshrrev_b32 v19, 5, v0")
    a("v_lshlrev_b32 v20, 4, v19")
    a("v_sub_u32 v18, v18, v20")
    a(f"s_lshl_b32 s{sT}, s{sKH}, 5")
    a(f"s_sub_u32 s{sT}, s{sLB}, s{sT}")
    a(f"s_add_u32 s{sT}, s{sT}, {64-8}")
    a(f"v_add_u32 v{vA}, s{sT}, v18")
    a("v_and_b32 v21, 31, v0")
    a("v_mul_u32_u24 v18, 80, v21")
    a("v_add_u32 v18, v18, v20")
    a(f"s_lshl_b32 s{sT}, s{sKH}, 5")
    a(f"s_add_u32 s{sT}, s{sT}, s{sLB}")
    a(f"s_add_u32 s{sT}, s{sT}, {4*4160+2560-31*80}")
    a(f"v_add_u32 v{vB}, s{sT}, v18")
    a("v_lshlrev_b32 v20, 3, v19")
    a("v_sub_u32 v20, v21, v20")
    a(f"s_lshl_b32 s{sT}, s{sKH}, 4")
    a(f"v_subrev_u32 v20, s{sT}, v20")
    a("v_mov_b32 v22, 0xffff")
    MK = 24
    for q in range(4):
        a(f"v_cmp_le_i32 vcc, {2*q}, v20")
        a(f"v_cndmask_b32 v{MK+q}, 0, v22, vcc")
        a(f"v_cmp_le_i32 vcc, {2*q+1}, v20")
        a(f"v_cndmask_b32 v{MK+q}, v{MK+q}, -1, vcc")
    a("s_waitcnt vmcnt(0)")
    a("v_cmp_gt_u32 vcc, 8, v6")
    a("v_cmp_gt_u32 s[30:31], 16, v0")
    a("s_and_b64 exec, vcc, s[30:31]")
    a("ds_write_b16 v12, v13 offset:64")
    a("s_mov_b64 exec, -1")
    a("s_waitcnt lgkmcnt(0)")
    a("s_barrier")
    F = [32, 48, 64]
    Y0, Y1, Y2 = 96, 112, 128
    def reads(d):
        f = F[d % 3]
        return [f"ds_read_b64_tr_b16 {vr(f,2)}, v{vA} offset:{64*d+8}",
                f"ds_read_b64_tr_b16 {vr(f+2,2)}, v{vA} offset:{64*d}",
                f"ds_read_b128 {vr(f+8,4)}, v{vB} offset:{80*(31-d)}",
                f"ds_read_b128 {vr(f+12,4)}, v{vB} offset:{80*(31-d)+2560}",
                f"ds_read_b64_tr_b16 {vr(f+4,2)}, v{vA} offset:{64*d+8+2048}",
                f"ds_read_b64_tr_b16 {vr(f+6,2)}, v{vA} offset:{64*d+2048}"]
    for x in reads(0) + reads(1): a(x)
    for d in range(32):
        f = F[d % 3]
        nx = reads(d + 2) if d + 2 < 32 else []
        a(f"s_waitcnt lgkmcnt({6 if d + 1 < 32 else 0})")
        if d == 0:
            for q in range(4): a(f"v_and_b32 v{f+q}, v{f+q}, v{MK+q}")
        c = lambda y: "0" if d == 0 else vr(y, 16)
        a(f"{MFMA32} {vr(Y0,16)}, {vr(f,4)}, {vr(f+8,4)}, {c(Y0)}")
        for x in nx[0:2]: a(x)
        a(f"{MFMA32} {vr(Y1,16)}, {vr(f,4)}, {vr(f+12,4)}, {c(Y1)}")
        for x in nx[2:4]: a(x)
        a(f"{MFMA32} {vr(Y2,16)}, {vr(f+4,4)}, {vr(f+8,4)}, {c(Y2)}")
        for x in nx[4:6]: a(x)
    for r in range(16): a(f"v_add_f32 v{Y1+r}, v{Y1+r}, v{Y2+r}")
    a(f"s_lshl_b32 s{sT}, s{sW}, 12")
    a(f"s_add_u32 s{sT}, s{sT}, {RED}")
    a(f"v_add_u32 v3, s{sT}, v2")
    a(f"s_xor_b32 s{sT2}, s{sW}, 1")
    a(f"s_lshl_b32 s{sT2}, s{sT2}, 12")
    a(f"s_add_u32 s{sT2}, s{sT2}, {RED}")
    a(f"v_add_u32 v4, s{sT2}, v2")
    a(f"s_cmp_eq_u32 s{sKH}, 0")
    a("s_cbranch_scc1 CV_K0")
    for q in range(4): a(f"ds_write_b128 v3, {vr(Y0+4*q,4)} offset:{1024*q}")
    for r in range(16): a(f"v_mov_b32 v{Y0+r}, v{Y1+r}")
    a("s_branch CV_K1")
    a.label("CV_K0")
    for q in range(4): a(f"ds_write_b128 v3, {vr(Y1+4*q,4)} offset:{1024*q}")
    a.label("CV_K1")
    a("s_waitcnt lgkmcnt(0)")
    a("s_barrier")
    for q in range(4): a(f"ds_read_b128 {vr(Y2+4*q,4)}, v4 offset:{1024*q}")
    a("v_mul_u32_u24 v5, 80, v21")
    a("v_lshl_add_u32 v5, v19, 3, v5")
    a(f"s_mul_i32 s{sT}, s{sKH}, 2560")
    a(f"s_add_u32 s{sT}, s{sT}, s{sLB}")
    a(f"s_add_u32 s{sT}, s{sT}, {4*4160+2560}")
    a(f"v_add_u32 v5, s{sT}, v5")
    for q in range(4): a(f"ds_read_b64 {vr(32+2*q,2)}, v5 offset:{16*q}")
    a("v_lshlrev_b32 v14, 16, v14")
    a("v_lshlrev_b32 v6, 6, v21")
    a("v_lshl_add_u32 v6, v19, 3, v6")
    a(f"s_lshl_b32 s{sT}, s{sCH}, 12")
    a(f"s_lshl_b32 s{sT2}, s{sKH}, 11")
    a(f"s_add_u32 s{sT}, s{sT}, s{sT2}")
    a(f"s_add_u32 s{sT}, s{sT}, {WS_Y2T}")
    a("s_waitcnt lgkmcnt(0)")
    for q in range(4):
        for hf in range(2):
            r = 4 * q + 2 * hf
            a(f"v_add_f32 v40, v{Y0+r}, v{Y2+r}")
            a(f"v_add_f32 v41, v{Y0+r+1}, v{Y2+r+1}")
            rnd_pair(a, 42, 40, 41, 40, 41)
            a(f"v_lshlrev_b32 v43, 16, v{32+2*q+hf}")
            a(f"v_and_b32 v44, 0xffff0000, v{32+2*q+hf}")
            a("v_mul_f32 v43, v43, v14")
            a("v_mul_f32 v44, v44, v14")
            rnd_pair(a, 42, 43, 44, 43, 44)
            a("v_add_f32 v40, v40, v43")
            a("v_add_f32 v41, v41, v44")
            a(f"v_cvt_pk_bf16_f32 v{48+2*q+hf}, v40, v41")
        a(f"buffer_store_dwordx2 {vr(48+2*q,2)}, v6, s[{S_WS}:{S_WS+3}], s{sT} offen offset:{16*q}")
    a.label("CV_END")
    a("s_endpgm")
    return dict(name="conv_kernel", grid=160, block=512, lds=RED + 32768, vgpr=144)


import struct
def f32hex(x): return "0x%08x" % struct.unpack("<I", struct.pack("<f", x))[0]

class VM:
    def __init__(self): self.tags = []
    def add(self, tag): self.tags.append(tag)
    def wait(self, *tags):
        last = max(i for i, t in enumerate(self.tags) if t in tags)
        return len(self.tags) - 1 - last

def interleave(a, mfmas, fillers, ngaps):
    tot = sum(c for c, _ in fillers)
    fi, acc = 0, 0.0
    for g, (pre, m, post) in enumerate(mfmas):
        for x in pre: a(x)
        a(m)
        for x in post: a(x)
        lim = tot * min(1.0, (g + 1) / ngaps) if ngaps else tot
        while fi < len(fillers) and acc + fillers[fi][0] * 0.5 <= lim:
            acc += fillers[fi][0]
            for x in fillers[fi][1]: a(x)
            fi += 1
    while fi < len(fillers):
        for x in fillers[fi][1]: a(x)
        fi += 1

def gen_attn(a):
    S_WQ, S_X, S_K, S_V, S_CTX = 4, 8, 12, 16, 20
    sW, sG, sRB, sH, sP, sN1, sS, sT, sT2, sMST, sTHR, sM0K, sM0V, sBASE, sROW, sWQO, sM0Q, sCT1, sCT2, sWRAP = range(24, 44)
    sHIST = [44, 45]
    sEV = 46
    sMK = 48
    vL16, vKA, vVA, vD0, vCTX, vWD, vXA = 1, 2, 3, 4, 5, 6, 8
    vAW = 10
    FR, T, P, S, O, Q, NEGM = 32, 64, [80, 88], [96, 112], 128, 192, 224
    vL, vL1, vTA, vTB, vX0, vX1, vX2, vX3, vNINF = range(240, 249)
    D = int(OPT.get('D', 5))
    R0, R1, R2 = 0, 65536, 131072
    sp = Stamps(a)
    a("s_cmp_ge_u32 s2, 256")
    a("s_cbranch_scc1 AT_END")
    sp.real(); sp.mark()
    a(f"s_load_dwordx2 s[56:57], s[0:1], {KA['A_q']}")
    a(f"s_load_dwordx2 s[58:59], s[0:1], {KA['w_q']}")
    a(f"s_load_dwordx2 s[60:61], s[0:1], {KA['ws']}")
    a("v_lshrrev_b32 v1, 6, v0")
    a("v_and_b32 v0, 63, v0")
    a(f"v_readfirstlane_b32 s{sW}, v1")
    a(f"s_and_b32 s{sH}, s2, 31")
    a(f"s_lshr_b32 s{sP}, s2, 5")
    a(f"s_lshr_b32 s{sG}, s{sW}, 2")
    a(f"s_and_b32 s{sRB}, s{sW}, 3")
    a(f"v_lshlrev_b32 v{vL16}, 4, v0")
    a("v_lshrrev_b32 v14, 4, v0")
    a("v_and_b32 v15, 15, v0")
    a("v_lshlrev_b32 v16, 2, v14")
    a("v_xor_b32 v15, v15, v16")
    a("v_lshlrev_b32 v15, 4, v15")
    a(f"v_lshl_add_u32 v{vWD}, v14, 13, v15")
    a(f"v_add_u32 v{vWD+1}, {4*8192-1024}, v{vWD}")
    a(f"s_lshl_b32 s{sWQO}, s{sW}, 16")
    a(f"s_lshl_b32 s{sT}, s{sH}, 8")
    a(f"s_add_u32 s{sWQO}, s{sWQO}, s{sT}")
    a(f"s_lshl_b32 s{sM0Q}, s{sW}, 11")
    a(f"s_sub_u32 s{sT}, 15, s{sP}")
    a(f"s_lshl_b32 s{sT2}, s{sRB}, 5")
    a(f"s_lshl_b32 s{sCT2}, s{sT}, 7")
    a(f"s_add_u32 s{sCT2}, s{sCT2}, s{sT2}")
    a(f"s_lshl_b32 s{sCT1}, s{sP}, 7")
    a(f"s_add_u32 s{sCT1}, s{sCT1}, s{sT2}")
    a(f"s_cmp_eq_u32 s{sG}, 0")
    a(f"s_cselect_b32 s{sROW}, s{sCT1}, s{sCT2}")
    a("v_and_b32 v14, 31, v0")
    a("v_lshrrev_b32 v15, 5, v0")
    a(f"v_add_u32 v16, s{sROW}, v14")
    a("v_mul_u32_u24 v16, 1280, v16")
    a(f"v_lshl_add_u32 v{vXA}, v15, 4, v16")
    a("s_waitcnt lgkmcnt(0)")
    srd(a, S_X, 56, 57, 2621440)
    srd(a, S_WQ, 58, 59, 5242880)
    srd(a, S_K, 60, 61, SZ_KF, WS_KF)
    srd(a, S_V, 60, 61, SZ_KF, WS_VF)
    srd(a, S_CTX, 60, 61, 16 * MB, WS_CTX)
    vm = VM()
    XR = lambda c: 32 + (c % 6) * 16
    def wq_dma(c):
        a(f"s_add_u32 m0, s{sM0Q}, {R1 + (c % 6) * 16384}")
        a(f"s_add_u32 s{sT}, s{sWQO}, {c*64*8192}")
        a(f"buffer_load_dwordx4 v{vWD}, s[{S_WQ}:{S_WQ+3}], s{sT} offen lds")
        a(f"buffer_load_dwordx4 v{vWD+1}, s[{S_WQ}:{S_WQ+3}], s{sT} offen offset:1024 lds")
        vm.add(("w", c)); vm.add(("w", c))
    def x_load(c):
        for t in range(4):
            a(f"buffer_load_dwordx4 {vr(XR(c)+4*t,4)}, v{vXA}, s[{S_X}:{S_X+3}], 0 offen offset:{c*128+t*32}")
            vm.add(("x", c))
    for c in range(6):
        wq_dma(c); x_load(c)
    a(f"s_lshl_b32 s{sN1}, s{sP}, 2")
    a(f"s_add_u32 s{sN1}, s{sN1}, 4")
    a(f"s_lshl_b32 s{sBASE}, s{sH}, 19")
    a(f"s_lshl_b32 s{sT}, s{sRB}, 11")
    a(f"s_add_u32 s{sBASE}, s{sBASE}, s{sT}")
    a(f"s_lshl_b32 s{sM0K}, s{sG}, 15")
    a(f"s_add_u32 s{sM0K}, s{sM0K}, s{sT}")
    a(f"s_add_u32 s{sM0V}, s{sM0K}, {R1}")
    a(f"s_sub_u32 s{sT}, 34, s{sN1}")
    a(f"s_lshl_b32 s{sT}, s{sT}, 13")
    a(f"s_add_u32 s{sT}, s{sT}, s{sBASE}")
    a(f"s_sub_u32 s{sT2}, s{sN1}, 4")
    a(f"s_sub_u32 s{sWRAP}, s{sN1}, 3")
    a(f"s_cmp_eq_u32 s{sG}, 0")
    a(f"s_cselect_b32 s{sHIST[0]}, s{sBASE}, s{sT}")
    a(f"s_cselect_b32 s{sMST}, s{sT2}, 30")
    a(f"s_cselect_b32 s{sN1}, s{sN1}, 100")
    a(f"s_cselect_b32 s{sWRAP}, s{sWRAP}, 100")
    a(f"s_mov_b64 s[{sEV}:{sEV+1}], 15")
    a(f"s_add_u32 s{sT}, s{sMST}, 1")
    a(f"s_lshl_b64 s[{sEV}:{sEV+1}], s[{sEV}:{sEV+1}], s{sT}")
    a(f"s_mov_b64 s[56:57], 7")
    a(f"s_lshl_b64 s[56:57], s[56:57], s{sN1}")
    a(f"s_or_b64 s[{sEV}:{sEV+1}], s[{sEV}:{sEV+1}], s[56:57]")
    a(f"s_or_b32 s{sEV}, s{sEV}, 2")
    a(f"s_mov_b32 s{sTHR}, {f32hex(4096.0)}")
    def kdma(e, soff):
        a(f"s_add_u32 m0, s{sM0K}, {(e & 3) * 8192}")
        a("s_nop 0")
        a(f"buffer_load_dwordx4 v{vL16}, s[{S_K}:{S_K+3}], s{soff} offen lds")
        a(f"buffer_load_dwordx4 v{vL16}, s[{S_K}:{S_K+3}], s{soff} offen offset:1024 lds")
    a(f"s_mov_b32 s{sT2}, s{sHIST[0]}")
    kdma(0, sT2); vm.add("k0"); vm.add("k0")
    a(f"s_add_u32 s{sHIST[1]}, s{sT2}, 8192")
    kdma(1, sHIST[1]); vm.add("k1"); vm.add("k1")
    a(f"s_add_u32 s{sHIST[0]}, s{sT2}, 16384")
    kdma(2, sHIST[0]); vm.add("k2"); vm.add("k2")
    a(f"s_mov_b32 s62, s{sT2}")
    a(f"s_lshl_b32 s{sT}, s{sG}, 15")
    a(f"v_add_u32 v{vKA}, s{sT}, v{vL16}")
    a(f"v_add_u32 v{vVA}, {R1}, v{vKA}")
    a("v_bfe_u32 v16, v0, 2, 2")
    a("v_lshl_add_u32 v17, v15, 3, v16")
    a("v_lshlrev_b32 v17, 8, v17")
    a("v_bfe_u32 v18, v0, 4, 1")
    a("v_lshl_add_u32 v17, v18, 5, v17")
    a("v_bfe_u32 v19, v0, 1, 1")
    a("v_lshl_add_u32 v17, v19, 4, v17")
    a("v_and_b32 v19, 1, v0")
    a("v_lshl_add_u32 v17, v19, 3, v17")
    a(f"v_add_u32 v17, {R1}, v17")
    for dt in range(4):
        a(f"v_xor_b32 v19, {dt}, v16")
        a(f"v_lshl_add_u32 v{vAW+dt}, v19, 6, v17")
        a(f"v_add_u32 v{vAW+10+dt}, {3*16384}, v{vAW+dt}")
    a(f"s_lshl_b32 s{sT}, s{sRB}, 5")
    a(f"v_add_u32 v{vD0}, s{sT}, v14")
    a("v_lshlrev_b32 v19, 2, v15")
    a(f"v_sub_u32 v{vD0}, v{vD0}, v19")
    a("v_and_b32 v19, 15, v0")
    a("v_lshlrev_b32 v19, 4, v19")
    a("v_lshl_add_u32 v19, v15, 8, v19")
    a(f"v_lshl_add_u32 v{vCTX}, v18, 17, v19")
    a(f"s_lshl_b32 s{sT}, s{sH}, 12")
    for c in (sCT1, sCT2):
        a(f"s_lshl_b32 s{c}, s{c}, 13")
        a(f"s_add_u32 s{c}, s{c}, s{sT}")
    a(f"v_mov_b32 v{vNINF}, 0xff800000")
    WF = [Q, Q + 16]
    def wreads(c, t):
        s = t & 1
        sl = c % 6
        base = vAW if sl < 3 else vAW + 10
        return [f"ds_read_b64_tr_b16 {vr(WF[s]+dt*4+hf*2,2)}, v{base+dt} offset:{(sl%3)*16384+t*4096+hf*1024}"
                for dt in range(4) for hf in range(2)]
    def kread(e, t): return f"ds_read_b128 {vr(FR+4*t,4)}, v{vKA} offset:{(e&3)*8192+t*1024}"
    def vread(e, i): return f"ds_read_b128 {vr(FR+4*i,4)}, v{vVA} offset:{(e&3)*8192+i*1024}"
    a(f"s_waitcnt vmcnt({vm.wait(('w', 0))})")
    a("s_barrier")
    sp.mark()
    for x in wreads(0, 0): a(x)
    for c in range(10):
        for t in range(4):
            nxt = []
            a("s_waitcnt lgkmcnt(0)")
            if t == 0: a(f"s_waitcnt vmcnt({vm.wait(('x', c))})")
            if t < 3:
                nxt = wreads(c, t + 1)
            elif c < 9:
                a(f"s_waitcnt vmcnt({vm.wait(('w', c + 1))})")
                a("s_barrier")
                nxt = wreads(c + 1, 0)
            else:
                a(f"s_waitcnt vmcnt({vm.wait('k0', 'k1')})")
                a("s_barrier")
                nxt = [kread(0, i) for i in range(D)]
            for dt in range(4):
                acc = vr(O + 16 * dt, 16)
                cin = "0" if (c == 0 and t == 0) else acc
                a(f"{MFMA32} {acc}, {vr(WF[t&1]+4*dt,4)}, {vr(XR(c)+4*t,4)}, {cin}")
                for x in nxt[3 * dt: 3 * dt + 3]: a(x)
            if t == 3 and c + 6 < 10:
                wq_dma(c + 6); x_load(c + 6)
    a(f"s_mov_b32 m0, s{sM0V}")
    a("s_nop 0")
    a(f"buffer_load_dwordx4 v{vL16}, s[{S_V}:{S_V+3}], s62 offen lds")
    a(f"buffer_load_dwordx4 v{vL16}, s[{S_V}:{S_V+3}], s62 offen offset:1024 lds")
    sp.mark()
    a(f"s_mov_b32 s{sT}, {f32hex(1.4426950408889634 * 128 ** -0.5)}")
    for r in range(16): a(f"v_mov_b32 v{NEGM+r}, 0")
    a(f"v_mov_b32 v{vL}, 0")
    for i in range(32):
        a(f"v_mul_f32 v{O+2*i}, s{sT}, v{O+2*i}")
        a(f"v_mul_f32 v{O+2*i+1}, s{sT}, v{O+2*i+1}")
        a(f"v_cvt_pk_bf16_f32 v{Q+i}, v{O+2*i}, v{O+2*i+1}")
    for r in range(64): a(f"v_mov_b32 v{O+r}, 0")
    a(f"s_lshl_b32 s{sT}, s{sRB}, 13")
    a(f"s_add_u32 s{sT}, s{sT}, {R2}")
    a(f"v_add_u32 v9, s{sT}, v{vL16}")
    a(f"s_cmp_eq_u32 s{sG}, 0")
    a("s_cbranch_scc1 AT_NOSTASH")
    for t in range(8): a(f"ds_write_b128 v9, {vr(Q+4*t,4)} offset:{1024*t}")
    a("s_waitcnt lgkmcnt(0)")
    a.label("AT_NOSTASH")
    a(f"s_mov_b32 s{sS}, 0")

    handlers = []
    def rowmax(dst, tmp, src):
        a(f"v_max3_f32 v{dst}, v{src}, v{src+1}, v{src+2}")
        for r in range(3, 15, 2): a(f"v_max3_f32 v{dst}, v{dst}, v{src+r}, v{src+r+1}")
        a(f"v_max_f32 v{dst}, v{dst}, v{src+15}")
        a(f"v_mov_b32 v{tmp}, v{dst}")
        a(f"v_permlane32_swap_b32 v{dst}, v{tmp}")
        a(f"v_max_f32 v{dst}, v{dst}, v{tmp}")
    def sm_ops(Sc, Pw):
        f = []
        for r in range(16):
            f.append((2, [f"v_exp_f32 v{T+r%8}, v{Sc+r}"]))
            if r % 2 == 1 and r >= 3:
                q = r - 3
                f.append((1, [f"v_add_f32 v{vTA}, v{T+q%8}, v{T+(q+1)%8}" if q == 0 else f"v_add_f32 v{vTA}, v{vTA}, v{T+q%8}"]))
                if q > 0: f.append((1, [f"v_add_f32 v{vTB}, v{vTB}, v{T+(q+1)%8}" if q > 2 else f"v_mov_b32 v{vTB}, v{T+(q+1)%8}"]))
                f.append((1, [f"v_cvt_pk_bf16_f32 v{Pw+q//2}, v{T+q%8}, v{T+(q+1)%8}"]))
        f.append((1, [f"v_add_f32 v{vTA}, v{vTA}, v{T+6}"]))
        f.append((1, [f"v_add_f32 v{vTB}, v{vTB}, v{T+7}"]))
        f.append((1, [f"v_cvt_pk_bf16_f32 v{Pw+7}, v{T+6}, v{T+7}"]))
        f.append((1, [f"v_add_f32 v{vTA}, v{vTA}, v{vTB}"]))
        return f
    def store_ctx(dts, sct, src):
        n = 0
        for dt in dts:
            for R in range(2):
                d = T + (n % 4) * 4
                n += 1
                for e in range(4):
                    a(f"v_cvt_pk_bf16_f32 v{d+e}, v{src(dt)+8*R+2*e}, v{src(dt)+8*R+2*e+1}")
                a(f"buffer_store_dwordx4 {vr(d,4)}, v{vCTX}, s[{S_CTX}:{S_CTX+3}], s{sct} offen offset:{dt*1024+R*512}")

    def slot(j, name, qk=True, sm=True, pv=True, nxt="k", dma=True, last=False):
        par = j & 1
        Sc, Sn, Pw, Pr = S[1 - par], S[par], P[1 - par], P[par]
        a.label(name)
        if sm or pv:
            a(f"s_bitcmp1_b64 s[{sEV}:{sEV+1}], s{sS}")
            a(f"s_cbranch_scc1 {name}_EV")
            a.label(name + "_GO")
            handlers.append(("ev", name, Sc))
        ms = []
        if qk:
            for t in range(8):
                if 'm16' in OPT:
                    kt, ds = t >> 2, t & 3
                    mm = []
                    for q in range(2):
                        d = vr(Sn + 8 * q + 4 * kt, 4)
                        mm.append(f"{MFMA16} {d}, {vr(FR+4*t,4)}, {vr(Q+16*q+4*ds,4)}, {vr(NEGM+4*q,4) if ds == 0 else d}")
                    ms.append(("\n".join(mm), kread(j, t)))
                else:
                    ms.append((f"{MFMA32} {vr(Sn,16)}, {vr(FR+4*t,4)}, {vr(Q+4*t,4)}, {vr(NEGM if t == 0 else Sn,16)}", kread(j, t)))
        if pv:
            for i in range(8):
                if 'm16' in OPT:
                    mm = []
                    for q in range(2):
                        o = vr(O + 8 * i + 4 * q, 4)
                        mm.append(f"{MFMA16} {o}, {vr(FR+4*i,4)}, {vr(Pr+4*q,4)}, {o}")
                    ms.append(("\n".join(mm), vread(j - 2, i)))
                else:
                    o = vr(O + 16 * (i & 3), 16)
                    ms.append((f"{MFMA32} {o}, {vr(FR+4*i,4)}, {vr(Pr+4*(i>>2),4)}, {o}", vread(j - 2, i)))
        rd = [m[1] for m in ms]
        if nxt == "k": rd += [kread(j + 1, i) for i in range(D)]
        elif nxt == "v": rd += [vread(j - 1, i) for i in range(D)]
        dm = []
        if dma and 'nodma' not in OPT:
            h0, h1 = sHIST[1 - par], sHIST[par]
            dm.append([f"s_add_u32 m0, s{sM0V}, {((j + 1) & 3) * 8192}", f"s_add_u32 s{sT}, s{h1}, 8192",
                       f"buffer_load_dwordx4 v{vL16}, s[{S_V}:{S_V+3}], s{h0} offen lds"])
            dm.append([f"buffer_load_dwordx4 v{vL16}, s[{S_V}:{S_V+3}], s{h0} offen offset:1024 lds",
                       f"s_cmp_eq_u32 s{sS}, s{sWRAP}", f"s_cselect_b32 s{sT}, s{sBASE}, s{sT}",
                       f"s_cmp_ge_u32 s{sS}, 31", f"s_cselect_b32 s{h0}, 0x80000000, s{sT}"])
            dm.append([f"s_add_u32 m0, s{sM0K}, {((j + 3) & 3) * 8192}", "s_nop 0",
                       f"buffer_load_dwordx4 v{vL16}, s[{S_K}:{S_K+3}], s{h0} offen lds"])
            dm.append([f"buffer_load_dwordx4 v{vL16}, s[{S_K}:{S_K+3}], s{h0} offen offset:1024 lds"])
        groups = []
        n = len(ms)
        for m in range(n):
            pre = []
            if m % 2 == 0:
                out = min(len(rd), m + D) - (m + 2)
                pre.append(f"s_waitcnt lgkmcnt({max(out, 0)})")
            post = [rd[m + D]] if m + D < len(rd) else []
            if 'halfread' in OPT and (m + D) % 2 == 1: post = []
            if m % 2 == 1 and m // 2 < len(dm): post += dm[m // 2]
            groups.append((pre, ms[m][0], post))
        if 'm16' in OPT:
            g2 = []
            for pre, m, post in groups:
                m1, m2 = m.split("\n")
                g2.append((pre, m1, [])); g2.append(([], m2, post))
            groups = g2; n = 2 * n
        interleave(a, groups, sm_ops(Sc, Pw) if (sm and 'nosm' not in OPT) else [], max(n - 1, 1))
        if sm and 'nosm' not in OPT:
            a(f"v_cmp_lt_f32 vcc, s{sTHR}, v{vTA}")
            a(f"s_cbranch_vccnz {name}_SLOW")
            a.label(name + "_RET")
            a(f"v_add_f32 v{vL}, v{vL}, v{vTA}")
            handlers.append(("slow", name, Sc, Sn, Pw))
        if not last:
            a(f"s_add_u32 s{sS}, s{sS}, 1")
            a(f"s_waitcnt vmcnt({4 if dma else 0})")
            if 'nobar' not in OPT: a("s_barrier")

    if 'prio' in OPT:
        a(f"s_cmp_eq_u32 s{sG}, {OPT['prio']}")
        a("s_cbranch_scc0 AT_PRIO")
        a("s_setprio 1")
        a.label("AT_PRIO")
    slot(0, "AT_S0", sm=False, pv=False)
    slot(1, "AT_S1", pv=False)
    sp.mark()
    slot(2, "AT_L2"); slot(3, "AT_L3"); slot(0, "AT_L0")
    a(f"s_cmp_eq_u32 s{sS}, 33")
    a("s_cbranch_scc1 AT_S33")
    slot(1, "AT_L1")
    a("s_branch AT_L2")
    slot(1, "AT_S33", nxt="v")
    slot(2, "AT_S34", qk=False, nxt="v", dma=False)
    slot(3, "AT_S35", qk=False, sm=False, nxt=None, dma=False, last=True)
    sp.mark()
    a("s_barrier")
    a(f"v_mov_b32 v{vX0}, v{vL}")
    a(f"v_permlane32_swap_b32 v{vL}, v{vX0}")
    a(f"v_add_f32 v{vL}, v{vL}, v{vX0}")
    a(f"s_mul_i32 s{sT}, s{sW}, {8192+512}")
    a(f"s_xor_b32 s{sT2}, s{sW}, 4")
    a(f"s_mul_i32 s{sT2}, s{sT2}, {8192+512}")
    a(f"v_add_u32 v14, s{sT}, v{vL16}")
    a(f"v_add_u32 v15, s{sT2}, v{vL16}")
    a("v_lshlrev_b32 v16, 3, v0")
    a(f"v_add_u32 v17, s{sT2}, v16")
    a(f"v_add_u32 v16, s{sT}, v16")
    a(f"v_mov_b32 v{vX0}, v{NEGM}")
    a(f"v_mov_b32 v{vX1}, v{vL}")
    a(f"ds_write_b64 v16, v[{vX0}:{vX1}] offset:8192")
    a(f"s_cmp_eq_u32 s{sG}, 0")
    a("s_cbranch_scc1 AT_MA")
    for q in range(8): a(f"ds_write_b128 v14, {vr(O+4*q,4)} offset:{1024*q}")
    for r in range(32): a(f"v_mov_b32 v{O+r}, v{O+32+r}")
    a(f"s_add_u32 s{sCT2}, s{sCT2}, 2048")
    a("s_branch AT_MB")
    a.label("AT_MA")
    for q in range(8): a(f"ds_write_b128 v14, {vr(O+32+4*q,4)} offset:{1024*q}")
    a.label("AT_MB")
    a("s_waitcnt lgkmcnt(0)")
    a("s_barrier")
    a(f"ds_read_b64 v[{vX2}:{vX3}], v17 offset:8192")
    for q in range(8): a(f"ds_read_b128 {vr(O+32+4*q,4)}, v15 offset:{1024*q}")
    a("s_waitcnt lgkmcnt(8)")
    a(f"v_min_f32 v{vTA}, v{vX0}, v{vX2}")
    a(f"v_sub_f32 v{vX0}, v{vTA}, v{vX0}")
    a(f"v_sub_f32 v{vX2}, v{vTA}, v{vX2}")
    a(f"v_exp_f32 v{vX0}, v{vX0}")
    a(f"v_exp_f32 v{vX2}, v{vX2}")
    a(f"v_mul_f32 v{vTA}, v{vX1}, v{vX0}")
    a(f"v_fmac_f32 v{vTA}, v{vX3}, v{vX2}")
    a(f"v_rcp_f32 v{vTA}, v{vTA}")
    a(f"v_mul_f32 v{vX0}, v{vX0}, v{vTA}")
    a(f"v_mul_f32 v{vX2}, v{vX2}, v{vTA}")
    for r in range(32): a(f"v_mul_f32 v{O+r}, v{O+r}, v{vX0}")
    a("s_waitcnt lgkmcnt(0)")
    for r in range(32): a(f"v_fmac_f32 v{O+r}, v{O+32+r}, v{vX2}")
    store_ctx((0, 1), sCT2, lambda dt: O + 16 * dt)
    if STAMP:
        sp.mark(); a("s_waitcnt vmcnt(0)"); sp.mark(); sp.real(); a("s_waitcnt lgkmcnt(0)")
        sp.flush(100, sW, 0, slot=0); sp.flush(100, sW, 4, slot=1)
    a.label("AT_END")
    a("s_endpgm")
    for hd in handlers:
        if hd[0] == "ev":
            _, name, Sc = hd
            a.label(name + "_EV")
            a(f"s_sub_u32 s{sT}, s{sS}, s{sN1}")
            a(f"s_cmp_lg_u32 s{sT}, 2")
            a(f"s_cbranch_scc1 {name}_E1")
            a(f"v_mov_b32 v{vX0}, v{vL1}")
            a(f"v_permlane32_swap_b32 v{vL1}, v{vX0}")
            a(f"v_add_f32 v{vL1}, v{vL1}, v{vX0}")
            a(f"v_rcp_f32 v{vL1}, v{vL1}")
            for r in range(64): a(f"v_mul_f32 v{O+r}, v{O+r}, v{vL1}")
            store_ctx(range(4), sCT1, lambda dt: O + 16 * dt)
            for r in range(64): a(f"v_mov_b32 v{O+r}, 0")
            a.label(name + "_E1")
            a(f"s_cmp_lg_u32 s{sT}, 0")
            a(f"s_cbranch_scc1 {name}_E2")
            for t in range(8): a(f"ds_read_b128 {vr(Q+4*t,4)}, v9 offset:{1024*t}")
            for r in range(16): a(f"v_mov_b32 v{NEGM+r}, 0")
            a("s_waitcnt lgkmcnt(0)")
            a.label(name + "_E2")
            a(f"s_sub_u32 s{sT2}, s{sS}, s{sMST}")
            a(f"s_sub_u32 s{sT2}, s{sT2}, 1")
            a(f"s_cmp_ge_u32 s{sT2}, 4")
            a(f"s_cbranch_scc1 {name}_E3")
            a(f"s_lshl_b32 s{sT2}, s{sT2}, 5")
            a(f"v_subrev_u32 v{vX0}, s{sT2}, v{vD0}")
            for q in range(4):
                for e in range(4):
                    a(f"v_cmp_le_i32 s[{sMK+2*e}:{sMK+2*e+1}], {8*q+e}, v{vX0}")
                for e in range(4):
                    r = 4 * q + e
                    a(f"v_cndmask_b32 v{Sc+r}, v{vNINF}, v{Sc+r}, s[{sMK+2*e}:{sMK+2*e+1}]")
            a.label(name + "_E3")
            a(f"s_cmp_eq_u32 s{sT}, 1")
            a(f"s_cbranch_scc1 {name}_E4")
            a(f"s_cmp_lg_u32 s{sS}, 1")
            a(f"s_cbranch_scc1 {name}_GO")
            a.label(name + "_E4")
            a(f"v_mov_b32 v{vL1}, v{vL}")
            a(f"v_mov_b32 v{vL}, 0")
            rowmax(vX0, vX1, Sc)
            for r in range(16): a(f"v_sub_f32 v{NEGM+r}, v{NEGM+r}, v{vX0}")
            for r in range(16): a(f"v_sub_f32 v{Sc+r}, v{Sc+r}, v{vX0}")
            a(f"s_branch {name}_GO")
        else:
            _, name, Sc, Sn, Pw = hd
            a.label(name + "_SLOW")
            rowmax(vX0, vX1, Sc)
            a(f"v_max_f32 v{vX0}, 0, v{vX0}")
            a(f"v_exp_f32 v{vX1}, -v{vX0}")
            for r in range(16): a(f"v_sub_f32 v{NEGM+r}, v{NEGM+r}, v{vX0}")
            for r in range(16): a(f"v_sub_f32 v{Sn+r}, v{Sn+r}, v{vX0}")
            for r in range(16): a(f"v_sub_f32 v{Sc+r}, v{Sc+r}, v{vX0}")
            for r in range(64): a(f"v_mul_f32 v{O+r}, v{O+r}, v{vX1}")
            a(f"v_mul_f32 v{vL}, v{vL}, v{vX1}")
            for c, ops in sm_ops(Sc, Pw):
                for x in ops: a(x)
            a(f"s_branch {name}_RET")
    return dict(name="attn_kernel", grid=256, block=512, lds=163840, vgpr=256)


def gen_oproj(a):
    S_WS, S_X, S_OUT = 4, 8, 12
    sW, sT, sT2, sMT, sNT, sKO = 16, 17, 18, 19, 20, 21
    NS = 6
    vB = 4
    ST = 32
    YB = 81920
    sp = Stamps(a)
    a("s_cmp_ge_u32 s2, 256")
    a("s_cbranch_scc1 OP_END")
    sp.real(); sp.mark()
    a(f"s_load_dwordx2 s[24:25], s[0:1], {KA['ws']}")
    a(f"s_load_dwordx2 s[26:27], s[0:1], {KA['A_q']}")
    a(f"s_load_dwordx2 s[28:29], s[0:1], {KA['out']}")
    a("v_lshrrev_b32 v1, 6, v0")
    a("v_and_b32 v0, 63, v0")
    a(f"v_readfirstlane_b32 s{sW}, v1")
    a(f"s_and_b32 s{sMT}, s2, 7")
    a(f"s_lshl_b32 s{sMT}, s{sMT}, 2")
    a(f"s_bfe_u32 s{sT}, s2, 0x20003")
    a(f"s_add_u32 s{sMT}, s{sMT}, s{sT}")
    a(f"s_lshr_b32 s{sNT}, s2, 5")
    a("v_lshlrev_b32 v1, 4, v0")
    a(f"s_lshl_b32 s{sT}, s{sMT}, 19")
    a(f"s_add_u32 s{sT}, s{sT}, {WS_CTX}")
    a(f"v_add_u32 v{vB}, s{sT}, v1")
    for i in range(1, 4): a(f"v_add_u32 v{vB+i}, {i*131072}, v{vB}")
    a(f"s_mul_i32 s{sT}, s{sNT}, {5*131072}")
    a(f"s_add_u32 s{sT}, s{sT}, {WS_WOT}")
    a(f"v_add_u32 v{vB+4}, s{sT}, v1")
    for j in range(1, 5): a(f"v_add_u32 v{vB+4+j}, {j*131072}, v{vB+4}")
    a(f"s_lshl_b32 s{sKO}, s{sW}, 15")
    a("s_waitcnt lgkmcnt(0)")
    srd(a, S_WS, 24, 25, 64 * MB)
    srd(a, S_X, 26, 27, 2621440)
    srd(a, S_OUT, 28, 29, 2621440)
    vm = VM()
    def loads(ks):
        out = []
        base = ST + (ks % NS) * 36
        for n in (4, 0, 5, 1, 6, 2, 7, 3, 8):
            pre = []
            if n == 4 and ks % 4 == 0 and ks: pre.append(f"s_add_u32 s{sKO}, s{sKO}, 4096")
            out.append(pre + [f"buffer_load_dwordx4 {vr(base+4*n,4)}, v{vB+n}, s[{S_WS}:{S_WS+3}], s{sKO} offen offset:{(ks%4)*1024}"])
        return out
    def emit(g, tag):
        for x in g: a(x)
        vm.add(tag)
    for ks in range(NS - 1):
        for g in loads(ks): emit(g, ks)
    a("v_lshrrev_b32 v2, 3, v0")
    a("v_and_b32 v3, 7, v0")
    a("v_lshlrev_b32 v3, 4, v3")
    a("v_lshl_add_u32 v2, v2, 12, v3")
    a(f"s_mul_i32 s{sT}, s{sNT}, {80*4096}")
    a(f"s_lshl_b32 s{sT2}, s{sMT}, 7")
    a(f"s_add_u32 s{sT}, s{sT}, s{sT2}")
    a(f"s_lshl_b32 s{sT2}, s{sW}, 15")
    a(f"s_add_u32 s{sT}, s{sT}, s{sT2}")
    a(f"s_add_u32 s{sT}, s{sT}, {WS_Y2T}")
    a(f"s_lshl_b32 s{sT2}, s{sW}, 10")
    for i in range(3):
        if i == 2:
            a(f"s_cmp_ge_u32 s{sW}, 2")
            a(f"s_cselect_b32 s{sT}, 0x80000000, s{sT}")
        a(f"s_add_u32 m0, s{sT2}, {YB + 4096*i}")
        a("s_nop 0")
        emit([f"buffer_load_dwordx4 v2, s[{S_WS}:{S_WS+3}], s{sT} offen lds"], "y")
        if i < 2: a(f"s_add_u32 s{sT}, s{sT}, {32*4096}")
    a("v_and_b32 v2, 15, v0")
    a("v_lshrrev_b32 v3, 4, v0")
    a(f"s_lshl_b32 s{sT}, s{sMT}, 6")
    a(f"s_lshl_b32 s{sT2}, s{sW}, 4")
    a(f"s_add_u32 s{sT}, s{sT}, s{sT2}")
    a(f"v_add_u32 v2, s{sT}, v2")
    a("v_mul_u32_u24 v13, 1280, v2")
    a("v_lshl_add_u32 v13, v3, 3, v13")
    a(f"s_mul_i32 s{sT}, s{sNT}, 160")
    a(f"v_add_u32 v13, s{sT}, v13")
    a("v_lshlrev_b32 v2, 2, v2")
    a(f"s_mov_b32 s{sT}, {WS_G}")
    emit([f"buffer_load_dword v14, v2, s[{S_WS}:{S_WS+3}], s{sT} offen"], "y")
    for j in range(5):
        emit([f"buffer_load_dwordx2 {vr(16+2*j,2)}, v13, s[{S_X}:{S_X+3}], 0 offen offset:{32*j}"], "y")
    for ks in range(32):
        base = ST + (ks % NS) * 36
        nx = loads(ks + NS - 1) if ks + NS - 1 < 32 else []
        a(f"s_waitcnt vmcnt({vm.wait(ks)})")
        if ks == 0: sp.mark()
        n = 0
        for j in range(5):
            for i in range(4):
                acc = f"a[{(i*5+j)*4}:{(i*5+j)*4+3}]"
                a(f"{MFMA16} {acc}, {vr(base+16+4*j,4)}, {vr(base+4*i,4)}, {'0' if ks == 0 else acc}")
                if n % 2 == 0 and n // 2 < len(nx): emit(nx[n // 2], ks + NS - 1)
                n += 1
    sp.mark()
    a(f"s_mul_i32 s{sT}, s{sW}, 20480")
    a(f"v_add_u32 v4, s{sT}, v1")
    for i in range(4):
        for j in range(5):
            a(f"ds_write_b128 v4, a[{(i*5+j)*4}:{(i*5+j)*4+3}] offset:{(i*5+j)*1024}")
    a(f"s_mul_i32 s{sT}, s{sW}, 5120")
    a(f"v_add_u32 v5, s{sT}, v1")
    a("v_add_u32 v6, 40960, v5")
    a("v_lshrrev_b32 v7, 2, v0")
    a("v_lshlrev_b32 v7, 7, v7")
    a("v_and_b32 v8, 3, v0")
    a("v_lshl_add_u32 v7, v8, 3, v7")
    a(f"s_lshl_b32 s{sT}, s{sW}, 5")
    a(f"s_add_u32 s{sT}, s{sT}, {YB}")
    a(f"v_add_u32 v7, s{sT}, v7")
    a("s_waitcnt vmcnt(0) lgkmcnt(0)")
    a("s_barrier")
    for j in range(5):
        for src in range(4):
            a(f"ds_read_b128 {vr(32+(j*4+src)*4,4)}, v{5 if src < 2 else 6} offset:{(src%2)*20480+j*1024}")
        a(f"ds_read_b64_tr_b16 {vr(112+2*j,2)}, v7 offset:{j*2048}")
    a("v_sub_f32 v15, 1.0, v14")
    rnd_pair(a, 26, 15, 15, 15, 27)
    for j in range(5):
        a(f"s_waitcnt lgkmcnt({min(15, 5*(4-j))})")
        b = 32 + j * 16
        for r in range(4):
            a(f"v_add_f32 v{b+r}, v{b+r}, v{b+4+r}")
            a(f"v_add_f32 v{b+8+r}, v{b+8+r}, v{b+12+r}")
        for r in range(4):
            a(f"v_add_f32 v{b+r}, v{b+r}, v{b+8+r}")
        for hf in range(2):
            rnd_pair(a, 26, b + 2 * hf, b + 2 * hf + 1, b + 4, b + 5)
            a(f"v_mul_f32 v{b+4}, v15, v{b+4}")
            a(f"v_mul_f32 v{b+5}, v15, v{b+5}")
            rnd_pair(a, 26, b + 4, b + 5, b + 4, b + 5)
            a(f"v_lshlrev_b32 v{b+6}, 16, v{16+2*j+hf}")
            a(f"v_and_b32 v{b+7}, 0xffff0000, v{16+2*j+hf}")
            a(f"v_lshlrev_b32 v{b+8}, 16, v{112+2*j+hf}")
            a(f"v_and_b32 v{b+9}, 0xffff0000, v{112+2*j+hf}")
            a(f"v_mul_f32 v{b+6}, v{b+6}, v{b+8}")
            a(f"v_mul_f32 v{b+7}, v{b+7}, v{b+9}")
            rnd_pair(a, 26, b + 6, b + 7, b + 6, b + 7)
            a(f"v_mul_f32 v{b+6}, v14, v{b+6}")
            a(f"v_mul_f32 v{b+7}, v14, v{b+7}")
            rnd_pair(a, 26, b + 6, b + 7, b + 6, b + 7)
            a(f"v_add_f32 v{b+6}, v{b+6}, v{b+4}")
            a(f"v_add_f32 v{b+7}, v{b+7}, v{b+5}")
            a(f"v_cvt_pk_bf16_f32 v{b+12+hf}, v{b+6}, v{b+7}")
        a(f"buffer_store_dwordx2 {vr(b+12,2)}, v13, s[{S_OUT}:{S_OUT+3}], 0 offen offset:{32*j}")
    if STAMP:
        sp.mark(); a("s_waitcnt vmcnt(0)"); sp.mark(); sp.real(); a("s_waitcnt lgkmcnt(0)")
        sp.flush(100, sW, 0, slot=0); sp.flush(100, sW, 3, slot=1)
    a.label("OP_END")
    a("s_endpgm")
    return dict(name="oproj_kernel", grid=256, block=256, lds=YB + 12288, vgpr=336)

KERNELS = {"prep": gen_prep, "conv": gen_conv, "kvproj": gen_kvproj, "attn": gen_attn, "oproj": gen_oproj}

def build(names, path, verbose=False):
    hdr = open("gated_mix__ssm_conv_h3__compressed_kv_cla__prompt.s.ref").read().split("\n")
    hdr = [l for l in hdr if l.startswith(";") and "@launch" not in l and "Override" not in l and "grid=ceil" not in l]
    codes, descs, launches = [], [], []
    for n in names:
        a = Asm()
        info = KERNELS[n](a)
        k = fix_hazards(a.lines, verbose)
        print(f"{n}: {len(a.lines)} lines, {k} nops inserted")
        c, d = kernel_text(info["name"], a.lines, info["vgpr"], extra="  .amdhsa_float_denorm_mode_32 3\n")
        codes.append(c); descs.append(d)
        launches.append(f"; @launch kernel={info['name']} grid=({info['grid']},1,1) block=({info['block']},1,1) lds={info['lds']}")
    txt = "\n".join(hdr + launches) + '\n.amdgcn_target "amdgcn-amd-amdhsa--gfx950"\n.text\n' + "\n".join(codes) + \
          '\n.section .rodata,"a"\n' + "\n".join(descs)
    open(path, "w").write(txt)

if __name__ == "__main__":
    names = sys.argv[2].split(",") if len(sys.argv) > 2 else list(KERNELS)
    build(names, sys.argv[1] if len(sys.argv) > 1 else "k.s", verbose="-v" in sys.argv)
```

```python
class VM:
    def __init__(self): self.tags = []
    def add(self, tag): self.tags.append(tag)
    def wait(self, *tags):
        idx = [i for i, t in enumerate(self.tags) if t in tags]
        if not idx: return None
        return len(self.tags) - 1 - max(idx)

class Stream:
    def __init__(self, a, vm, dist=8, per_gap=2, bar_delay=3):
        self.a, self.vm = a, vm
        self.dist, self.per_gap, self.bar_delay = dist, per_gap, bar_delay
        self.ops = []
        self.reads = []
        self.bars = {}
        self.fill = []
        self.fill_rate = 2.0
    def op(self, text, uses): self.ops.append((text, uses))
    def read(self, fid, text, reg, stage, key=None): self.reads.append(dict(id=fid, text=text, reg=reg, stage=stage, key=key))
    def barrier_after_stage(self, stage, vm_tags, after=(), pre=None):
        self.bars[stage] = dict(tags=vm_tags, after=list(after), pre=pre)
    def filler(self, earliest, cost, item): self.fill.append((earliest, cost, item))
    def _emit_item(self, item):
        if callable(item): item(); return
        for x in item:
            if isinstance(x, tuple):
                self.a(x[0]); self.vm.add(x[1])
            else: self.a(x)
    def run(self, open_stages, preissued=0):
        a = self.a
        n = len(self.ops)
        first, last = {}, {}
        for m, (_, uses) in enumerate(self.ops):
            for f in uses:
                first.setdefault(f, m); last[f] = m
        prev = {}
        for r in self.reads:
            r["first"] = first.get(r["id"], n + self.dist)
            if r["key"] is None: r["key"] = r["first"]
            p = prev.get(r["reg"])
            r["free"] = last.get(p["id"], -1) if p else -1
            prev[r["reg"]] = r
        stage_last = {}
        for i, r in enumerate(self.reads): stage_last[r["stage"]] = i
        opened = set(open_stages)
        ri = preissued
        done = 0
        pend_bar = {}
        urgent = []
        fi, facc = 0, 0.0
        def wait_reads(upto):
            nonlocal done
            if upto > done:
                a(f"s_waitcnt lgkmcnt({min(15, ri - upto)})")
                done = upto if ri - upto <= 15 else max(done, ri - 15)
        def do_barrier(st):
            b = self.bars[st]
            wait_reads(stage_last[st] + 1)
            if b["pre"]: b["pre"]()
            w = self.vm.wait(*b["tags"]) if b["tags"] else None
            if w is not None: a(f"s_waitcnt vmcnt({min(w, 63)})")
            a("s_barrier")
            opened.add(st + 1)
            urgent.extend(b["after"])
        def issue(m, force_upto=-1):
            nonlocal ri
            k = 0
            fidx = max([i for i in range(ri, min(len(self.reads), ri + 64)) if self.reads[i]["first"] <= force_upto], default=-1)
            while ri < len(self.reads):
                r = self.reads[ri]
                forced = ri <= fidx
                if force_upto >= 0 and not forced: break
                if r["stage"] not in opened:
                    if forced:
                        st = r["stage"] - 1
                        pend_bar.pop(st, None); do_barrier(st)
                    else: break
                if not forced and (k >= self.per_gap or r["key"] - self.dist > m or r["free"] > m): break
                assert r["free"] <= m, ("register ring too small", r)
                a(r["text"]); ri += 1; k += 1
                if ri - 1 == stage_last[r["stage"]] and r["stage"] in self.bars:
                    pend_bar[r["stage"]] = m + self.bar_delay
        for m, (text, uses) in enumerate(self.ops):
            issue(m - 1, force_upto=m)
            need = 0
            for i in range(done, ri):
                if self.reads[i]["first"] <= m + 1: need = i + 1
            must = any(self.reads[i]["first"] <= m for i in range(done, ri))
            if must: wait_reads(need)
            a(text)
            for st in [s for s, p in pend_bar.items() if p <= m]:
                del pend_bar[st]; do_barrier(st)
            issue(m)
            if urgent:
                self._emit_item(urgent.pop(0))
            else:
                facc = min(facc + self.fill_rate, 2 * self.fill_rate + 2)
                while fi < len(self.fill) and self.fill[fi][0] <= m and self.fill[fi][1] <= facc:
                    facc -= self.fill[fi][1]
                    self._emit_item(self.fill[fi][2]); fi += 1
        for st in sorted(pend_bar): do_barrier(st)
        issue(n + 10 * self.dist)
        while ri < len(self.reads) and self.reads[ri]["stage"] in opened:
            issue(n + 10 * self.dist)
        for it in urgent: self._emit_item(it)
        while fi < len(self.fill):
            self._emit_item(self.fill[fi][2]); fi += 1
        return ri
```

```python
import sys, struct
from asmlib import *
from sched import *

MB = 1 << 20
WS_KF, WS_VF, WS_CTX, WS_WOT, WS_KVT, WS_Y2T, WS_G = 0, 16 * MB, 32 * MB, 48 * MB, 56 * MB, 60 * MB, 63 * MB
KA = dict(A_q=0, A_k=8, A_v=16, shift=24, ssm_k=32, ssm_D=40, B_x=48, c_kv=56, w_q=64, w_uk=72, w_uv=80, w_o=88,
          gate=96, out=104, dbg=112, ws=120)
MFMA32 = "v_mfma_f32_32x32x16_bf16"
MFMA16 = "v_mfma_f32_16x16x32_bf16"
STAMP = "-stamp" in sys.argv
OPT = {x[2:].split("=")[0]: (x.split("=")[1] if "=" in x else "1") for x in sys.argv if x.startswith("--")}
OOB = "0x80000000"
def f32hex(x): return "0x%08x" % struct.unpack("<I", struct.pack("<f", x))[0]

def srd(a, d, lo, hi, size, add=0):
    if add:
        a(f"s_add_u32 s{d}, s{lo}, {add}")
        a(f"s_addc_u32 s{d+1}, s{hi}, 0")
    else:
        a(f"s_mov_b32 s{d}, s{lo}")
        a(f"s_mov_b32 s{d+1}, s{hi}")
    a(f"s_mov_b32 s{d+2}, {size}")
    a(f"s_mov_b32 s{d+3}, 0x00020000")
def S4(d): return f"s[{d}:{d+3}]"

class Stamps:
    def __init__(self, a, base=70, region=0):
        self.a, self.base, self.n, self.region = a, base, 0, region
    def mark(self, name=""):
        if not STAMP: return
        if name not in OPT.get("marks", "start,kv0,kv,q,end").split(","): return
        assert self.base + 2 * self.n + 3 <= 101
        self.a(f"s_memtime s[{self.base+2*self.n}:{self.base+2*self.n+1}]")
        self.a(f"s_memrealtime s[{self.base+2*self.n+2}:{self.base+2*self.n+3}]")
        self.n += 2
    def flush(self, wg, sW, wave, slot=0):
        if not STAMP: return
        a = self.a
        lab = a.uid("STK")
        a(f"s_cmp_lg_u32 s{sW}, {wave}")
        a(f"s_cbranch_scc1 {lab}")
        a(f"s_load_dwordx2 s[60:61], s[0:1], {KA['ws']}")
        a("s_waitcnt lgkmcnt(0)")
        a(f"s_add_u32 s60, s60, {128*MB + self.region*65536 + slot*64}")
        a("s_addc_u32 s61, s61, 0")
        a("s_mov_b32 s62, 65536")
        a("s_mov_b32 s63, 0x00020000")
        a("s_lshl_b32 s3, s2, 7")
        a("v_mov_b32 v1, s3")
        for i in range(self.n):
            a(f"v_mov_b32 v2, s{self.base+2*i}")
            a(f"buffer_store_dword v2, v1, s[60:63], 0 offen offset:{4*i}")
        a("s_getreg_b32 s3, hwreg(HW_REG_XCC_ID)")
        a("v_mov_b32 v2, s3")
        a(f"buffer_store_dword v2, v1, s[60:63], 0 offen offset:60")
        a("s_waitcnt vmcnt(0)")
        a.label(lab)

def rnd_pair(d, lo, hi, olo, ohi):
    return [f"v_cvt_pk_bf16_f32 v{d}, v{lo}, v{hi}", f"v_lshlrev_b32 v{olo}, 16, v{d}", f"v_and_b32 v{ohi}, 0xffff0000, v{d}"]

def interleave(a, mfmas, fillers, ngaps):
    tot = sum(c for c, _ in fillers)
    fi, acc = 0, 0.0
    for g, (pre, m, post) in enumerate(mfmas):
        for x in pre: a(x)
        a(m)
        for x in post: a(x)
        lim = tot * min(1.0, (g + 1) / ngaps) if ngaps else tot
        while fi < len(fillers) and acc + fillers[fi][0] * 0.5 <= lim:
            acc += fillers[fi][0]
            for x in fillers[fi][1]: a(x)
            fi += 1
    while fi < len(fillers):
        for x in fillers[fi][1]: a(x)
        fi += 1

def gen_main(a):
    S_C, S_W, S_WS, S_V, S_X, S_WQ, S_DBG = 4, 8, 12, 16, 20, 24, 28
    (sW, sH, sP, sG, sRB, sT, sT2, sCO, sWO, sM0C, sM0W, sOB, sROW, sXO, sQWO, sN1, sS, sMST, sTHR, sM0K, sM0V,
     sBASE, sCT1, sCT2, sWRAP) = range(32, 57)
    sHIST = [57, 58, 59, 60]
    sEV = 62
    PT = 64
    S_T = 76
    sMK = 4
    vL16, vCD, vWD, vAC, vAW, vXD, vQW, vWOT, vKVT = 1, 2, 6, 10, 12, 16, 20, 22, 23
    WFR, CFR, ACC = [32, 48], 64, 128
    sp = Stamps(a, base=80)
    vm = VM()
    a("s_cmp_ge_u32 s2, 256")
    a("s_cbranch_scc1 M_END")
    sp.mark("start")
    a(f"s_load_dwordx2 s[44:45], s[0:1], {KA['c_kv']}")
    a(f"s_load_dwordx4 s[48:51], s[0:1], {KA['w_uk']}")
    a("v_lshrrev_b32 v1, 6, v0")
    a("v_mov_b32 v31, v0")
    a("v_and_b32 v0, 63, v0")
    a(f"v_readfirstlane_b32 s{sW}, v1")
    a(f"s_and_b32 s{sH}, s2, 7")
    a("s_lshr_b32 s3, s2, 6")
    a("s_lshl_b32 s3, s3, 3")
    a(f"s_add_u32 s{sH}, s{sH}, s3")
    a(f"s_bfe_u32 s{sP}, s2, 0x30003")
    a(f"s_lshr_b32 s{sG}, s{sW}, 2")
    a("v_lshrrev_b32 v24, 3, v0")
    a("v_and_b32 v25, 7, v0")
    a("v_lshrrev_b32 v26, 4, v0")
    a("v_xor_b32 v25, v25, v26")
    a("v_lshlrev_b32 v25, 4, v25")
    a("v_xor_b32 v27, 64, v25")
    a(f"v_lshl_add_u32 v{vCD}, v24, 10, v25")
    a(f"v_lshl_add_u32 v{vCD+1}, v24, 10, v27")
    a(f"v_add_u32 v{vCD+1}, {8192-1024}, v{vCD+1}")
    a(f"v_add_u32 v{vCD+2}, {2*(8192-1024)}, v{vCD}")
    a(f"v_add_u32 v{vCD+3}, {2*(8192-1024)}, v{vCD+1}")
    a("v_and_b32 v28, 15, v0")
    a("v_lshlrev_b32 v29, 1, v26")
    a("v_xor_b32 v28, v28, v29")
    a("v_lshlrev_b32 v28, 4, v28")
    a(f"v_lshl_add_u32 v{vWD}, v26, 13, v28")
    a(f"v_add_u32 v{vWD+1}, {4*8192-1024}, v{vWD}")
    a(f"v_xor_b32 v{vWD+2}, 128, v{vWD}")
    a(f"v_add_u32 v{vWD+2}, {2*(4*8192-1024)}, v{vWD+2}")
    a(f"v_add_u32 v{vWD+3}, {4*8192-1024}, v{vWD+2}")
    a(f"s_and_b32 s{sRB}, s{sW}, 3")
    a(f"s_lshl_b32 s{sCO}, s{sP}, 18")
    a(f"s_lshl_b32 s{sT}, s{sW}, 15")
    a(f"s_add_u32 s{sCO}, s{sCO}, s{sT}")
    a(f"s_lshl_b32 s{sWO}, s{sRB}, 17")
    a(f"s_lshl_b32 s{sT}, s{sH}, 8")
    a(f"s_add_u32 s{sWO}, s{sWO}, s{sT}")
    a(f"s_lshl_b32 s{sM0C}, s{sW}, 12")
    a(f"s_add_u32 s{sM0W}, s{sM0C}, 65536")
    a("s_waitcnt lgkmcnt(0)")
    srd(a, S_C, 44, 45, 2 * MB)
    a(f"s_cmp_eq_u32 s{sG}, 0")
    a(f"s_cselect_b32 s{S_W}, s48, s50")
    a(f"s_cselect_b32 s{S_W+1}, s49, s51")
    a(f"s_mov_b32 s{S_W+2}, {4*MB}")
    a(f"s_mov_b32 s{S_W+3}, 0x00020000")
    def kv_dma(st):
        buf = (st & 1) * 32768
        tg = ("kv", st)
        out = [[f"s_add_u32 m0, s{sM0C}, {buf}", f"s_add_u32 s{sT}, s{sCO}, {st*128}",
                (f"buffer_load_dwordx4 v{vCD}, {S4(S_C)}, s{sT} offen lds", tg)]]
        for i in range(1, 4): out.append([(f"buffer_load_dwordx4 v{vCD+i}, {S4(S_C)}, s{sT} offen offset:{i*1024} lds", tg)])
        out.append([f"s_add_u32 m0, s{sM0W}, {buf}", f"s_add_u32 s{sT}, s{sWO}, {st*64*8192}",
                    (f"buffer_load_dwordx4 v{vWD}, {S4(S_W)}, s{sT} offen lds", tg)])
        for i in range(1, 4): out.append([(f"buffer_load_dwordx4 v{vWD+i}, {S4(S_W)}, s{sT} offen offset:{i*1024} lds", tg)])
        return out
    def emit(items):
        for it in items:
            for x in it:
                if isinstance(x, tuple): a(x[0]); vm.add(x[1])
                else: a(x)
    emit(kv_dma(0))
    a(f"s_load_dwordx2 s[44:45], s[0:1], {KA['A_q']}")
    a(f"s_load_dwordx2 s[46:47], s[0:1], {KA['w_q']}")
    a(f"s_load_dwordx4 s[48:51], s[0:1], {KA['dbg']}")
    a(f"s_load_dwordx4 s[{PT}:{PT+3}], s[0:1], {KA['A_k']}")
    a(f"s_load_dwordx2 s[{PT+4}:{PT+5}], s[0:1], {KA['shift']}")
    a(f"s_load_dwordx4 s[{PT+8}:{PT+11}], s[0:1], {KA['w_o']}")
    a(f"v_lshlrev_b32 v{vL16}, 4, v0")
    a("v_mul_u32_u24 v28, 1280, v24")
    a(f"v_add_u32 v{vXD}, v28, v25")
    a(f"v_add_u32 v{vXD+1}, v28, v27")
    a(f"v_add_u32 v{vXD+1}, {8*1280-1024}, v{vXD+1}")
    a(f"v_add_u32 v{vXD+2}, {2*(8*1280-1024)}, v{vXD}")
    a(f"v_add_u32 v{vXD+3}, {2*(8*1280-1024)}, v{vXD+1}")
    a(f"s_and_b32 s3, s{sW}, 1")
    a("s_lshl_b32 s3, s3, 7")
    a(f"v_xor_b32 v{vQW}, s3, v{vWD}")
    a(f"v_add_u32 v{vQW+1}, {4*8192-1024}, v{vQW}")
    emit(kv_dma(1))
    vPF, vPFW, vSC = 116, 117, 118
    if 'pf' in OPT:
        a(f"v_lshlrev_b32 v{vPF}, 7, v0")
        a("v_bfe_u32 v24, v0, 1, 4")
        a("v_and_b32 v25, 1, v0")
        a("v_lshlrev_b32 v25, 7, v25")
        a(f"v_lshl_add_u32 v{vPFW}, v24, 13, v25")
        a("s_lshr_b32 s3, s2, 3")
        a("s_lshl_b32 s3, s3, 16")
        a(f"s_lshl_b32 s{sT}, s{sW}, 13")
        a(f"s_add_u32 s3, s3, s{sT}")
        emit([[(f"buffer_load_dword v{vSC}, v{vPF}, {S4(S_C)}, s3 offen", "pf")]])
        a(f"s_lshl_b32 s3, s{sP}, 19")
        a(f"s_add_u32 s3, s3, s{sWO}")
        emit([[(f"buffer_load_dword v{vSC}, v{vPFW}, {S4(S_W)}, s3 offen", "pf")]])
    def frag_addrs(vR, rowoff_sgpr, vWa, nt_sgpr, wbase_sgpr):
        a("v_and_b32 v24, 15, v0")
        a("v_lshrrev_b32 v25, 4, v0")
        a("v_bfe_u32 v26, v0, 1, 3")
        a("v_xor_b32 v26, v26, v25")
        a("v_lshlrev_b32 v26, 4, v26")
        a("v_lshl_add_u32 v26, v24, 7, v26")
        a(f"v_add_u32 v{vR}, s{rowoff_sgpr}, v26")
        a(f"v_xor_b32 v{vR+1}, 64, v{vR}")
        a("v_bfe_u32 v24, v0, 2, 2")
        a("v_lshl_add_u32 v26, v25, 3, v24")
        a("v_lshlrev_b32 v26, 8, v26")
        a("v_and_b32 v27, 3, v0")
        a("v_lshl_add_u32 v26, v27, 3, v26")
        a(f"v_add_u32 v26, s{wbase_sgpr}, v26")
        a("v_and_b32 v25, 1, v25")
        a("v_lshl_add_u32 v24, v25, 2, v24")
        a(f"v_xor_b32 v24, s{nt_sgpr}, v24")
        for nt in range(4):
            a(f"v_xor_b32 v25, {nt}, v24")
            a(f"v_lshl_add_u32 v{vWa+nt}, v25, 5, v26")
    a(f"s_and_b32 s{sT}, s{sW}, 1")
    a(f"s_lshl_b32 s{sT}, s{sT}, 14")
    a(f"s_and_b32 s{sT2}, s{sW}, 2")
    a(f"s_lshl_b32 s{sT2}, s{sT2}, 1")
    a(f"s_lshl_b32 s3, s{sG}, 14")
    a("s_add_u32 s3, s3, 65536")
    frag_addrs(vAC, sT, vAW, sT2, 3)
    WOB = 131072
    a("v_lshrrev_b32 v24, 2, v0")
    a("v_mul_u32_u24 v24, 672, v24")
    a("v_and_b32 v25, 3, v0")
    a("v_lshl_add_u32 v24, v25, 3, v24")
    a(f"s_lshl_b32 s{sT}, s{sW}, 5")
    a(f"s_add_u32 s{sT}, s{sT}, {WOB}")
    a(f"v_add_u32 v{vWOT}, s{sT}, v24")
    a("v_mul_u32_u24 v25, 1639, v31")
    a("v_lshrrev_b32 v25, 16, v25")
    a("v_mul_u32_u24 v26, 40, v25")
    a("v_sub_u32 v26, v31, v26")
    a(f"s_lshr_b32 s{sT}, s2, 3")
    a(f"s_lshl_b32 s{sT}, s{sT}, 6")
    a(f"v_lshl_add_u32 v25, v25, 3, s{sT}")
    a(f"s_and_b32 s{sT2}, s2, 7")
    a(f"s_mul_i32 s{sT2}, s{sT2}, 40")
    a(f"v_add_u32 v26, s{sT2}, v26")
    a("v_mul_u32_u24 v27, 1280, v25")
    a("v_lshl_add_u32 v27, v26, 2, v27")
    a("v_add_u32 v28, 5120, v27")
    a("v_subrev_u32 v29, 3840, v27")
    a(f"v_mov_b32 v30, {OOB}")
    a("v_cmp_eq_u32 vcc, 0, v25")
    a(f"v_mul_u32_u24 v{vKVT}, 10240, v26")
    a("v_lshrrev_b32 v24, 5, v25")
    a("v_cndmask_b32 v29, v29, v30, vcc")
    a("v_cmp_gt_u32 vcc, 320, v31")
    a("v_mul_u32_u24 v24, 80, v24")
    a(f"v_add_u32 v{vKVT}, v{vKVT}, v24")
    a("v_and_b32 v24, 31, v25")
    a(f"v_lshl_add_u32 v{vKVT}, v24, 1, v{vKVT}")
    a("v_cndmask_b32 v27, v30, v27, vcc")
    a("v_cndmask_b32 v28, v30, v28, vcc")
    a("v_cndmask_b32 v29, v30, v29, vcc")
    a(f"v_cndmask_b32 v{vKVT}, v30, v{vKVT}, vcc")
    a("v_lshlrev_b32 v26, 4, v26")
    a("v_mul_u32_u24 v24, 20, v0")
    a("s_waitcnt lgkmcnt(0)")
    srd(a, S_WS, 50, 51, 64 * MB)
    srd(a, S_V, 50, 51, 16 * MB, WS_VF)
    srd(a, S_X, 44, 45, 2621440)
    srd(a, S_WQ, 46, 47, 5242880)
    srd(a, S_DBG, 48, 49, 256)
    a(f"s_sub_u32 s{sT}, 15, s{sP}")
    a(f"s_lshl_b32 s{sT2}, s{sRB}, 5")
    a(f"s_lshl_b32 s{sCT2}, s{sT}, 7")
    a(f"s_add_u32 s{sCT2}, s{sCT2}, s{sT2}")
    a(f"s_lshl_b32 s{sCT1}, s{sP}, 7")
    a(f"s_add_u32 s{sCT1}, s{sCT1}, s{sT2}")
    a(f"s_cmp_eq_u32 s{sG}, 0")
    a(f"s_cselect_b32 s{sROW}, s{sCT1}, s{sCT2}")
    a(f"s_mul_i32 s{sXO}, s{sROW}, 1280")
    a(f"s_lshl_b32 s{sQWO}, s{sW}, 16")
    a(f"s_lshl_b32 s{sT}, s{sH}, 8")
    a(f"s_add_u32 s{sQWO}, s{sQWO}, s{sT}")
    a(f"s_lshl_b32 s{sT}, s{sH}, 12")
    a(f"s_add_u32 s{sT}, s{sT}, {WS_CTX}")
    for c in (sCT1, sCT2):
        a(f"s_lshl_b32 s{c}, s{c}, 13")
        a(f"s_add_u32 s{c}, s{c}, s{sT}")
    a(f"s_lshl_b32 s{sOB}, s{sH}, 6")
    a(f"s_lshl_b32 s{sT}, s{sP}, 3")
    a(f"s_add_u32 s{sOB}, s{sOB}, s{sT}")
    a(f"s_and_b32 s{sT}, s{sW}, 1")
    a(f"s_lshl_b32 s{sT}, s{sT}, 2")
    a(f"s_add_u32 s{sOB}, s{sOB}, s{sT}")
    a(f"s_lshl_b32 s{sOB}, s{sOB}, 13")
    a(f"s_bfe_u32 s{sT}, s{sW}, 0x10001")
    a(f"s_add_u32 s{sT2}, s{sG}, 11")
    a(f"s_lshl_b32 s{sT}, s{sT}, s{sT2}")
    a(f"s_add_u32 s{sOB}, s{sOB}, s{sT}")
    a(f"s_lshl_b32 s{sT}, s{sG}, 24")
    a(f"s_add_u32 s{sOB}, s{sOB}, s{sT}")
    a(f"s_lshl_b32 s{sN1}, s{sP}, 2")
    a(f"s_add_u32 s{sN1}, s{sN1}, 4")
    a(f"s_lshl_b32 s{sBASE}, s{sH}, 19")
    a(f"s_lshl_b32 s{sT}, s{sRB}, 11")
    a(f"s_add_u32 s{sBASE}, s{sBASE}, s{sT}")
    a(f"s_lshl_b32 s{sM0K}, s{sW}, 11")
    a(f"s_add_u32 s{sM0V}, s{sM0K}, 65536")
    a(f"s_sub_u32 s{sT}, 34, s{sN1}")
    a(f"s_lshl_b32 s{sT}, s{sT}, 13")
    a(f"s_add_u32 s{sT}, s{sT}, s{sBASE}")
    a(f"s_sub_u32 s{sT2}, s{sN1}, 4")
    a(f"s_sub_u32 s{sWRAP}, s{sN1}, 3")
    a(f"s_cmp_eq_u32 s{sG}, 0")
    a(f"s_cselect_b32 s{sHIST[0]}, s{sBASE}, s{sT}")
    a(f"s_cselect_b32 s{sMST}, s{sT2}, 30")
    a(f"s_cselect_b32 s{sN1}, s{sN1}, 100")
    a(f"s_cselect_b32 s{sWRAP}, s{sWRAP}, 100")
    a(f"s_add_u32 s{sHIST[1]}, s{sHIST[0]}, 8192")
    a(f"s_add_u32 s{sHIST[2]}, s{sHIST[0]}, 16384")
    a(f"s_mov_b64 s[{sEV}:{sEV+1}], 15")
    a(f"s_add_u32 s{sT}, s{sMST}, 1")
    a(f"s_lshl_b64 s[{sEV}:{sEV+1}], s[{sEV}:{sEV+1}], s{sT}")
    a(f"s_mov_b64 s[{PT+6}:{PT+7}], 7")
    a(f"s_lshl_b64 s[{PT+6}:{PT+7}], s[{PT+6}:{PT+7}], s{sN1}")
    a(f"s_or_b64 s[{sEV}:{sEV+1}], s[{sEV}:{sEV+1}], s[{PT+6}:{PT+7}]")
    a(f"s_or_b32 s{sEV}, s{sEV}, 2")
    a(f"s_mov_b32 s{sTHR}, {f32hex(4096.0)}")
    a(f"s_mov_b32 s{S_T+3}, 0x00020000")

    XB = [0, 32768, 131072]
    def q_dma_x(k):
        tg = ("q", k)
        out = [[f"s_add_u32 m0, s{sM0C}, {XB[(k+2)%3]}", f"s_add_u32 s{sT}, s{sXO}, {k*128}",
                (f"buffer_load_dwordx4 v{vXD}, {S4(S_X)}, s{sT} offen lds", tg)]]
        for i in range(1, 4): out.append([(f"buffer_load_dwordx4 v{vXD+i}, {S4(S_X)}, s{sT} offen offset:{i*1024} lds", tg)])
        return out
    def q_dma_w(k):
        tg = ("q", k)
        return [[f"s_add_u32 m0, s{sM0V}, {(k%3)*16384}", f"s_add_u32 s{sT}, s{sQWO}, {k*64*8192}",
                 (f"buffer_load_dwordx4 v{vQW}, {S4(S_WQ)}, s{sT} offen lds", tg)],
                [(f"buffer_load_dwordx4 v{vQW+1}, {S4(S_WQ)}, s{sT} offen offset:1024 lds", tg)]]
    GX, GXT, GWT, GW, KR, VR, SH = 80, 84, 85, 86, 90, 101, 110
    def tsrd(lo, size): return [f"s_mov_b32 s{S_T}, s{lo}", f"s_mov_b32 s{S_T+1}, s{lo+1}", f"s_mov_b32 s{S_T+2}, {size}"]
    def side_loads():
        L = []
        it = tsrd(PT + 8, 5242880) + [f"s_lshr_b32 s3, s2, 1", "s_lshl_b32 s3, s3, 5", f"s_lshl_b32 s{sT2}, s{sW}, 2",
              f"s_add_u32 s3, s3, s{sT2}", "s_mul_i32 s3, s3, 1280", f"s_and_b32 s{sS}, s2, 1", f"s_mul_i32 s{sS}, s{sS}, 640",
              f"s_add_u32 s3, s3, s{sS}", f"s_mul_i32 s{sT2}, s{sT2}, 672", "s_mov_b32 exec_hi, 0xff"]
        for i in range(4):
            it += [f"s_add_u32 m0, s{sT2}, {WOB+672*i}", f"s_add_u32 s{sS}, s3, {1280*i}",
                   (f"buffer_load_dwordx4 v{vL16}, {S4(S_T)}, s{sS} offen lds", "pr")]
        it += ["s_mov_b32 exec_hi, -1"]
        L.append(it)
        L.append(["s_lshl_b32 s3, s2, 3", f"s_add_u32 s3, s3, s{sW}", "s_mul_i32 s3, s3, 1280",
                  (f"buffer_load_dwordx4 {vr(GX,4)}, v24, {S4(S_X)}, s3 offen", "pr"),
                  (f"buffer_load_dword v{GXT}, v24, {S4(S_X)}, s3 offen offset:16", "pr")])
        L.append(tsrd(PT + 10, 1280) + [(f"buffer_load_dwordx4 {vr(GW,4)}, v24, {S4(S_T)}, 0 offen", "pr"),
                  (f"buffer_load_dword v{GWT}, v24, {S4(S_T)}, 0 offen offset:16", "pr")])
        L.append(tsrd(PT + 4, 5120) + [(f"buffer_load_dwordx4 {vr(SH,4)}, v26, {S4(S_T)}, 0 offen", "pr")])
        for j in range(11):
            o = f"v29, {S4(S_T)}, 0 offen offset:{1280*j}" if j < 3 else f"v{27 if j < 7 else 28}, {S4(S_T)}, 0 offen offset:{1280*((j-3)%4)}"
            L.append((tsrd(PT, 2621440) if j == 0 else []) + [(f"buffer_load_dword v{KR+j}, {o}", "pr")])
        for j in range(8):
            L.append((tsrd(PT + 2, 2621440) if j == 0 else []) +
                     [(f"buffer_load_dword v{VR+j}, v{27 if j < 4 else 28}, {S4(S_T)}, 0 offen offset:{1280*(j%4)}", "pr")])
        if 'pf' in OPT:
            L.append(["s_lshr_b32 s3, s2, 3", "s_lshl_b32 s3, s3, 3", f"s_add_u32 s3, s3, s{sW}", "s_mul_i32 s3, s3, 10240",
                      (f"buffer_load_dword v{vSC}, v{vPF}, {S4(S_X)}, s3 offen", "pf")])
            L.append([(f"buffer_load_dword v{vSC}, v{vPF}, {S4(S_X)}, s3 offen offset:2048", "pf")])
            L.append([f"s_lshl_b32 s3, s{sP}, 3", f"s_add_u32 s3, s3, s{sW}", f"s_mul_i32 s3, s3, {10*8192}", f"s_lshl_b32 s{sT2}, s{sH}, 8",
                      f"s_add_u32 s3, s3, s{sT2}", (f"buffer_load_dword v{vSC}, v{vPFW}, {S4(S_WQ)}, s3 offen", "pf")])
        return L

    def side_jobs():
        L = []
        t0, t1, t2, t3, t4, t5 = 24, 25, 26, 27, 28, 29
        for i in range(3):
            L.append([f"ds_read_b64_tr_b16 v[{116+4*i}:{117+4*i}], v{vWOT} offset:{256*i}"])
            L.append([f"ds_read_b64_tr_b16 v[{118+4*i}:{119+4*i}], v{vWOT} offset:{256*i+16*672}"])
        L.append([f"v_mov_b32 v{t0}, 0"])
        for x, w in [(GX + i, GW + i) for i in range(4)] + [(GXT, GWT)]:
            L += [[s] for s in [f"v_lshlrev_b32 v{t1}, 16, v{x}", f"v_and_b32 v{t2}, 0xffff0000, v{x}",
                                f"v_lshlrev_b32 v{t3}, 16, v{w}", f"v_and_b32 v{t4}, 0xffff0000, v{w}",
                                f"v_mul_f32 v{t1}, v{t1}, v{t3}", f"v_mul_f32 v{t2}, v{t2}, v{t4}"] + rnd_pair(t3, t1, t2, t1, t2) +
                               [f"v_add_f32 v{t0}, v{t0}, v{t1}", f"v_add_f32 v{t0}, v{t0}, v{t2}"]]
        for m in ("row_shr:1", "row_shr:2", "row_shr:4", "row_shr:8"):
            L.append([f"v_add_f32_dpp v{t0}, v{t0}, v{t0} {m} row_mask:0xf bank_mask:0xf bound_ctrl:0"])
        L.append([f"v_add_f32_dpp v{t0}, v{t0}, v{t0} row_bcast:15 row_mask:0xa bank_mask:0xf"])
        L.append([f"v_add_f32_dpp v{t0}, v{t0}, v{t0} row_bcast:31 row_mask:0xc bank_mask:0xf"])
        L += [[s] for s in rnd_pair(t1, t0, t0, t0, t2)[:2] +
              [f"v_mul_f32 v{t0}, 0xbfb8aa3b, v{t0}", f"v_exp_f32 v{t0}, v{t0}", f"v_cmp_eq_u32 vcc, 63, v0",
               f"v_add_f32 v{t0}, 1.0, v{t0}", f"v_rcp_f32 v{t0}, v{t0}", f"v_cndmask_b32 v{t2}, v30, 0, vcc"] +
              rnd_pair(t1, t0, t0, t0, t3)[:2]]
        L.append(["s_lshl_b32 s3, s2, 3", f"s_add_u32 s3, s3, s{sW}", "s_lshl_b32 s3, s3, 2", f"s_add_u32 s3, s3, {WS_G}",
                  (f"buffer_store_dword v{t0}, v{t2}, {S4(S_WS)}, s3 offen", "pr2")])
        L.append(["s_and_b32 s3, s2, 1", "s_mul_i32 s3, s3, 20", f"s_add_u32 s3, s3, s{sW}", "s_lshl_b32 s3, s3, 17",
                  f"s_lshr_b32 s{sT2}, s2, 1", f"s_lshl_b32 s{sT2}, s{sT2}, 10", f"s_add_u32 s3, s3, s{sT2}",
                  f"s_add_u32 s3, s3, {WS_WOT}", (f"buffer_store_dwordx4 v[116:119], v{vL16}, {S4(S_WS)}, s3 offen", "pr2")])
        L.append([f"s_add_u32 s3, s3, {8<<17}", (f"buffer_store_dwordx4 v[120:123], v{vL16}, {S4(S_WS)}, s3 offen", "pr2")])
        L.append([f"s_add_u32 s3, s3, {8<<17}", f"s_cmp_ge_u32 s{sW}, 4", f"s_cselect_b32 s3, {OOB}, s3",
                  (f"buffer_store_dwordx4 v[124:127], v{vL16}, {S4(S_WS)}, s3 offen", "pr2")])
        W = 80
        for c in range(2):
            for q in range(2):
                L.append([f"v_lshlrev_b32 v{W+4*c+2*q}, 16, v{SH+2*c+q}"])
                L.append([f"v_and_b32 v{W+4*c+2*q+1}, 0xffff0000, v{SH+2*c+q}"])
        KL, KH = [110, 111, 112, 113], [88, 89, 109, 114]
        def unp(j): return [f"v_lshlrev_b32 v{KL[j%4]}, 16, v{KR+j}", f"v_and_b32 v{KH[j%4]}, 0xffff0000, v{KR+j}"]
        for j in range(3): L += [[s] for s in unp(j)]
        for s in range(8):
            ops = unp(s + 3)
            ops += [f"v_mul_f32 v{t0}, v{KL[s%4]}, v{W+3}", f"v_mul_f32 v{t1}, v{KH[s%4]}, v{W+7}"] + rnd_pair(t2, t0, t1, t0, t1)
            for j in (2, 1, 0):
                ops += [f"v_mul_f32 v{t3}, v{KL[(s+3-j)%4]}, v{W+j}", f"v_mul_f32 v{t4}, v{KH[(s+3-j)%4]}, v{W+4+j}"]
                ops += rnd_pair(t2, t3, t4, t3, t4)
                ops += [f"v_add_f32 v{t0}, v{t0}, v{t3}", f"v_add_f32 v{t1}, v{t1}, v{t4}"] + rnd_pair(t2, t0, t1, t0, t1)
            ops += [f"v_lshlrev_b32 v{t3}, 16, v{VR+s}", f"v_and_b32 v{t4}, 0xffff0000, v{VR+s}"]
            if s % 2 == 0:
                ops += [f"v_mul_f32 v118, v{t0}, v{t3}", f"v_mul_f32 v119, v{t1}, v{t4}"]
            else:
                ops += [f"v_mul_f32 v{t0}, v{t0}, v{t3}", f"v_mul_f32 v{t1}, v{t1}, v{t4}",
                        f"v_cvt_pk_bf16_f32 v{120+s//2}, v118, v{t0}", f"v_cvt_pk_bf16_f32 v{124+s//2}, v119, v{t1}"]
            L += [[x] for x in ops]
        L.append([f"s_mov_b32 s3, {WS_KVT}", (f"buffer_store_dwordx4 v[120:123], v{vKVT}, {S4(S_WS)}, s3 offen", "pr2")])
        L.append([f"s_mov_b32 s3, {WS_KVT+5120}", (f"buffer_store_dwordx4 v[124:127], v{vKVT}, {S4(S_WS)}, s3 offen", "pr2")])
        return L

    def kdma(e, tg):
        return [[f"s_add_u32 m0, s{sM0K}, {(e & 3) * 16384}", "s_nop 0",
                 (f"buffer_load_dwordx4 v{vL16}, {S4(S_WS)}, s{sHIST[e&3]} offen sc1 lds", tg)],
                [(f"buffer_load_dwordx4 v{vL16}, {S4(S_WS)}, s{sHIST[e&3]} offen offset:1024 sc1 lds", tg)]]
    def publish(wave, which):
        lab = a.uid("PUB")
        a(f"s_cmp_lg_u32 s{sW}, {wave}")
        a(f"s_cbranch_scc1 {lab}")
        a("s_mov_b64 exec, 1")
        a(f"v_mov_b32 v24, {1 << (8 * which)}")
        a("v_mov_b32 v25, 0")
        a(f"s_lshl_b32 s3, s{sH}, 2")
        a(f"buffer_atomic_add v24, v25, {S4(S_DBG)}, s3 offen sc1")
        a("s_mov_b64 exec, -1")
        a.label(lab)
    def poll(wave, which):
        if 'nopoll' in OPT: return
        lab = a.uid("POLL")
        a(f"s_cmp_lg_u32 s{sW}, {wave}")
        a(f"s_cbranch_scc1 {lab}D")
        a("v_mov_b32 v25, 0")
        a(f"s_lshl_b32 s3, s{sH}, 2")
        a(f"s_mov_b32 s{sT2}, 0")
        a.label(lab)
        a(f"buffer_load_dword v24, v25, {S4(S_DBG)}, s3 offen {OPT.get('pollsc', 'sc1').replace('_', ' ')}")
        a("s_waitcnt vmcnt(0)")
        a(f"v_readfirstlane_b32 s{S_T}, v24")
        a(f"s_add_u32 s{sT2}, s{sT2}, 1")
        a(f"s_bitcmp1_b32 s{S_T}, {3 + 8 * which}")
        a(f"s_cbranch_scc1 {lab}K")
        a(f"s_sleep {OPT.get('sleep', 2)}")
        a(f"s_cmp_lt_u32 s{sT2}, 100000")
        a(f"s_cbranch_scc1 {lab}")
        a.label(lab + "K")
        if 'inv' in OPT:
            a("buffer_inv sc1")
            a("s_waitcnt vmcnt(0)")
        a.label(lab + "D")

    a(f"s_waitcnt vmcnt({vm.wait(('kv', 0))})")
    a("s_barrier")
    sp.mark("kv0")
    a(f"s_cmp_lg_u32 s{sG}, 0")
    a("s_cbranch_scc1 M_KVV")
    vm0 = list(vm.tags)
    spn = sp.n
    vAX, vAQ, vST = 2, 6, 10
    QA = 128
    PK = lambda z: (240 + 4 * z) if z < 4 else (80 + 4 * (z - 4))
    endwait = []
    for part in range(2):
        if part: a.label("M_KVV")
        vm.tags = list(vm0)
        sp.n = spn
        S = Stream(a, vm, dist=12, per_gap=2, bar_delay=3)
        S.fill_rate = 1.5
        rl = []
        for st in range(8):
            buf = (st & 1) * 32768
            for u in range(2):
                x = 2 * st + u
                for nt in range(4):
                    for hf in range(2):
                        rg = WFR[x & 1] + 4 * nt + 2 * hf
                        rl.append((32 * x + nt - 6, ("w", x, nt, hf),
                                   f"ds_read_b64_tr_b16 {vr(rg,2)}, v{vAW+nt} offset:{buf+u*8192+hf*1024}", rg, st))
                for kt in range(8):
                    rg = CFR + 4 * (kt % 4)
                    rl.append((32 * x + 4 * kt, ("c", x, kt), f"ds_read_b128 {vr(rg,4)}, v{vAC+u} offset:{buf+kt*2048}", rg, st))
                    for nt in range(4):
                        idx = kt * 4 + nt if part == 0 else ((kt >> 1) * 4 + nt) * 2 + (kt & 1)
                        acc = vr(ACC + 4 * idx, 4)
                        w, c = vr(WFR[x & 1] + 4 * nt, 4), vr(rg, 4)
                        cin = "0" if x == 0 else acc
                        S.op(f"{MFMA16} {acc}, {w}, {c}, {cin}" if part == 0 else f"{MFMA16} {acc}, {c}, {w}, {cin}",
                             [("w", x, nt, 0), ("w", x, nt, 1), ("c", x, kt)])
            after = kv_dma(st + 2) if st < 6 else []
            if st == 5: after = after + q_dma_x(0)
            if st == 6: after = q_dma_w(0) + q_dma_x(1) + q_dma_w(1)
            if st == 7: after = q_dma_x(2) + q_dma_w(2)
            after = [lambda st=st: sp.mark(f"k{st}")] + after
            S.barrier_after_stage(st, [("kv", st + 1)] + (["pr", "pf"] if st == 1 else []) if st < 7 else [("q", 0)], after)
        rl.sort(key=lambda r: (r[4], r[0]))
        for r in rl: S.read(r[1], r[2], r[3], r[4], r[0])
        for it in side_loads(): S.filler(4, 2.5, it)
        for it in side_jobs(): S.filler(128, 1, it)
        S.run([0])
        sp.mark("kv")
        a(f"s_lshr_b32 s{sT}, s{sW}, 1")
        a(f"s_lshl_b32 s{sT}, s{sT}, 13")
        a(f"s_and_b32 s{sT2}, s{sW}, 1")
        a(f"s_lshl_b32 s{sT2}, s{sT2}, 2")
        a("s_mov_b32 s3, 65536")
        frag_addrs(vAX, sT, vAQ, sT2, 3)
        a(f"v_add_u32 v{vAX+2}, 131072, v{vAX}")
        a(f"v_add_u32 v{vAX+3}, 131072, v{vAX+1}")
        S = Stream(a, vm, dist=10, per_gap=2, bar_delay=3)
        S.fill_rate = 1.0
        rl = []
        KPUB = int(OPT.get('kpub', 5))
        for k in range(10):
            xb = XB[(k + 2) % 3]
            for u in range(2):
                x = 2 * k + u
                for nt in range(4):
                    for hf in range(2):
                        rg = WFR[x & 1] + 4 * nt + 2 * hf
                        rl.append((16 * x + nt - 5, ("w", x, nt, hf),
                                   f"ds_read_b64_tr_b16 {vr(rg,2)}, v{vAQ+nt} offset:{(k%3)*16384+u*8192+hf*1024}", rg, k))
                for qi in range(4):
                    rg = CFR + 4 * qi
                    av = vAX + u + (2 if xb == 131072 else 0)
                    rl.append((16 * x + 4 * qi, ("c", x, qi), f"ds_read_b128 {vr(rg,4)}, v{av} offset:{(xb%131072)+qi*2048}", rg, k))
                    for nt in range(4):
                        acc = vr(QA + 4 * (qi * 4 + nt), 4)
                        S.op(f"{MFMA16} {acc}, {vr(WFR[x&1]+4*nt,4)}, {vr(rg,4)}, {'0' if x == 0 else acc}",
                             [("w", x, nt, 0), ("w", x, nt, 1), ("c", x, qi)])
            tags, after, pre = [("q", k + 1)], [], None
            if k + 3 <= 9: after = q_dma_x(k + 3) + q_dma_w(k + 3)
            if k == KPUB and part == 0: tags.append("st"); after = [lambda: publish(0, 0)] + after
            if k == 7:
                if part == 0: pre = lambda: poll(0, 0)
                after = kdma(0, "k0") + kdma(1, "k0")
            if k == 8: after = kdma(2, "k2")
            if k == 9: tags = []
            after = [lambda k=k: sp.mark(f"q{k}")] + after
            S.barrier_after_stage(k, tags, after, pre)
        rl.sort(key=lambda r: (r[4], r[0]))
        for r in rl: S.read(r[1], r[2], r[3], r[4], r[0])
        npre = 10
        for r in rl[:npre]: a(r[2])
        a(f"v_add_u32 v{vST}, {4096 >> part}, v{vL16}")
        for z in list(range(4, 16)) + list(range(4)):
            for e in range(4):
                a(f"v_cvt_pk_bf16_f32 v{PK(z)+e}, v{ACC+8*z+2*e}, v{ACC+8*z+2*e+1}")
        SC = " sc1" if 'nosc1' not in OPT else ""
        st0, stp = (2, int(OPT.get('stp', 7))) if part == 0 else (int(OPT.get('vst', 120)), int(OPT.get('stp', 7)) + 2)
        for z in range(16 if 'nost' not in OPT else 1):
            j, c = z >> 2, z & 3
            S.filler(st0 + stp * z, 1, [f"s_add_u32 s3, s{sOB}, {j*8192}",
                     (f"buffer_store_dwordx4 {vr(PK(z),4)}, v{vST if c >> 1 else vL16}, {S4(S_WS)}, s3 offen offset:{(c&1)*1024}{SC}", "st")])
        S.run([0], preissued=npre)
        endwait.append(vm.wait("k0", "st"))
        if part == 0: a("s_branch M_KVD")
    a.label("M_KVD")
    sp.mark("q")
    vKA, vVA, vD0, vQ2 = 2, 3, 4, 5
    FR, T, P, SS, O, Q, NEGM = 32, 64, [80, 88], [96, 112], 128, 192, 224
    vL, vL1, vTA, vX0, vNINF = 232, 234, 236, 238, 246
    D = int(OPT.get('D', 5))
    a(f"s_mov_b32 s{sT}, {f32hex(1.4426950408889634 * 128 ** -0.5)}")
    a(f"s_lshr_b32 s{sT2}, s{sW}, 1")
    a(f"s_lshl_b32 s{sT2}, s{sT2}, 14")
    a(f"s_and_b32 s3, s{sW}, 1")
    a("s_lshl_b32 s3, s3, 11")
    a(f"s_add_u32 s{sT2}, s{sT2}, s3")
    a(f"s_add_u32 s{sT2}, s{sT2}, 98304")
    a(f"v_add_u32 v6, s{sT2}, v{vL16}")
    a(f"s_lshl_b32 s{sT2}, s{sW}, 13")
    a(f"s_add_u32 s{sT2}, s{sT2}, 98304")
    a(f"v_add_u32 v{vQ2}, s{sT2}, v{vL16}")
    a(f"s_lshl_b32 s{sT2}, s{sG}, 13")
    a(f"v_add_u32 v{vKA}, s{sT2}, v{vL16}")
    a(f"v_add_u32 v{vVA}, 65536, v{vKA}")
    for f in range(8):
        for e in range(4):
            r = QA + 8 * f + 2 * e
            a(f"v_mul_f32 v{r}, s{sT}, v{r}")
            a(f"v_mul_f32 v{r+1}, s{sT}, v{r+1}")
            a(f"v_cvt_pk_bf16_f32 v{Q+4*f+e}, v{r}, v{r+1}")
        a(f"ds_write_b128 v6, {vr(Q+4*f,4)} offset:{(f>>1)*4096+(f&1)*1024}")
    a("v_and_b32 v7, 15, v0")
    a("v_lshrrev_b32 v8, 4, v0")
    a(f"s_lshl_b32 s{sT}, s{sRB}, 5")
    a(f"v_add_u32 v{vD0}, s{sT}, v7")
    a("v_lshlrev_b32 v8, 2, v8")
    a(f"v_sub_u32 v{vD0}, v{vD0}, v8")
    a(f"v_mov_b32 v{vNINF}, 0xff800000")
    for r in range(8): a(f"v_mov_b32 v{NEGM+r}, 0")
    a(f"v_mov_b32 v{vL}, 0")
    a(f"v_mov_b32 v{vL+1}, 0")
    a(f"s_waitcnt vmcnt({min(endwait)}) lgkmcnt(0)")
    a("s_barrier")
    publish(4, 1)
    sp.mark("qx")
    def kread(e, t): return f"ds_read_b128 {vr(FR+4*t,4)}, v{vKA} offset:{(e&3)*16384+t*1024}"
    def vread(e, i): return f"ds_read_b128 {vr(FR+4*i,4)}, v{vVA} offset:{(e&3)*16384+i*1024}"
    for f in range(8): a(f"ds_read_b128 {vr(Q+4*f,4)}, v{vQ2} offset:{f*1024}")
    for i in range(D): a(kread(0, i))
    for r in range(64): a(f"v_mov_b32 v{O+r}, 0")
    a(f"s_mov_b32 s{sS}, 0")

    handlers = []
    def xreduce(op, x, tmp):
        a(f"v_mov_b32 v{tmp}, v{x}")
        a(f"v_permlane16_swap_b32 v{x}, v{tmp}")
        a(f"{op} v{x}, v{x}, v{tmp}")
        a(f"v_mov_b32 v{tmp}, v{x}")
        a(f"v_permlane32_swap_b32 v{x}, v{tmp}")
        a(f"{op} v{x}, v{x}, v{tmp}")
    def rowmax(dst, tmp, src):
        a(f"v_max3_f32 v{dst}, v{src}, v{src+1}, v{src+2}")
        a(f"v_max3_f32 v{dst}, v{dst}, v{src+3}, v{src+4}")
        a(f"v_max3_f32 v{dst}, v{dst}, v{src+5}, v{src+6}")
        a(f"v_max_f32 v{dst}, v{dst}, v{src+7}")
        xreduce("v_max_f32", dst, tmp)
    def sm_ops(Sc, Pw):
        f = []
        def post(q):
            t = vTA + (q >> 3)
            if q % 8 == 0: f.append((1, [f"v_add_f32 v{t}, v{T+q%8}, v{T+(q+1)%8}"]))
            else:
                f.append((1, [f"v_add_f32 v{t}, v{t}, v{T+q%8}"]))
                f.append((1, [f"v_add_f32 v{t}, v{t}, v{T+(q+1)%8}"]))
            f.append((1, [f"v_cvt_pk_bf16_f32 v{Pw+q//2}, v{T+q%8}, v{T+(q+1)%8}"]))
        for r in range(16):
            f.append((2, [f"v_exp_f32 v{T+r%8}, v{Sc+r}"]))
            if r % 2 == 1 and r >= 3: post(r - 3)
        post(14)
        f.append((1, [f"v_max_f32 v{vX0}, v{vTA}, v{vTA+1}"]))
        return f
    def store_ctx(qis, sct, obase):
        n = 0
        for qi in qis:
            for u in range(4):
                d = T + (n % 4) * 4
                n += 1
                src = obase(qi) + 8 * u
                for e in range(4): a(f"v_cvt_pk_bf16_f32 v{d+e}, v{src+2*e}, v{src+2*e+1}")
                if u == 0 and qi == 1 and len(qis) == 2: a(f"s_add_u32 s{sct}, s{sct}, 131072")
                a(f"buffer_store_dwordx4 {vr(d,4)}, v{vL16}, {S4(S_WS)}, s{sct} offen offset:{u*1024}")

    def slot(j, name, qk=True, sm=True, pv=True, nxt="k", dma=True, last=False, vlist=None, prefetched=True, prebar=None, vmw=4):
        par = j & 1
        if vlist is None: vlist = [j]
        Sc, Sn, Pw, Pr = SS[1 - par], SS[par], P[1 - par], P[par]
        a.label(name)
        if sm or pv:
            a(f"s_bitcmp1_b64 s[{sEV}:{sEV+1}], s{sS}")
            a(f"s_cbranch_scc1 {name}_EV")
            a.label(name + "_GO")
            handlers.append(("ev", name, Sc))
        ms = []
        if qk:
            for t in range(8):
                kt, u = t >> 2, t & 3
                mm = []
                for qi in range(2):
                    d = vr(Sn + 8 * qi + 4 * kt, 4)
                    mm.append(f"{MFMA16} {d}, {vr(FR+4*t,4)}, {vr(Q+16*qi+4*u,4)}, {vr(NEGM+4*qi,4) if u == 0 else d}")
                ms.append((mm, kread(j, t)))
        if pv:
            for i in range(8):
                mm = []
                for qi in range(2):
                    o = vr(O + 32 * qi + 4 * i, 4)
                    mm.append(f"{MFMA16} {o}, {vr(FR+4*i,4)}, {vr(Pr+4*qi,4)}, {o}")
                ms.append((mm, vread(j - 2, i)))
        rd = [m[1] for m in ms]
        if nxt == "k": rd += [kread(j + 1, i) for i in range(D)]
        elif nxt == "v": rd += [vread(j - 1, i) for i in range(D)]
        dm = []
        def vd(e): return [[f"s_add_u32 m0, s{sM0V}, {(e & 3) * 16384}", "s_nop 0",
                            f"buffer_load_dwordx4 v{vL16}, {S4(S_V)}, s{sHIST[e&3]} offen sc1 lds"],
                           [f"buffer_load_dwordx4 v{vL16}, {S4(S_V)}, s{sHIST[e&3]} offen offset:1024 sc1 lds"]]
        if dma:
            for e in vlist: dm += vd(e)
            h0, h1 = sHIST[(j + 3) & 3], sHIST[(j + 2) & 3]
            pre = [f"s_add_u32 s{sT}, s{h1}, 8192", f"s_cmp_eq_u32 s{sS}, s{sWRAP}", f"s_cselect_b32 s{sT}, s{sBASE}, s{sT}",
                   f"s_add_u32 m0, s{sM0K}, {((j + 3) & 3) * 16384}", f"s_cmp_ge_u32 s{sS}, 31", f"s_cselect_b32 s{h0}, {OOB}, s{sT}"]
            dm.append(pre + [f"buffer_load_dwordx4 v{vL16}, {S4(S_WS)}, s{h0} offen sc1 lds"])
            dm.append([f"buffer_load_dwordx4 v{vL16}, {S4(S_WS)}, s{h0} offen offset:1024 sc1 lds"])
        groups = []
        n = len(ms)
        if not prefetched:
            for x in rd[:D]: a(x)
        dpos = list(range(1, n, 2)) if len(dm) <= n // 2 else list(range(n))
        for m in range(n):
            pre = []
            if m % 2 == 0:
                out = min(len(rd), m + D) - (m + 2)
                pre.append(f"s_waitcnt lgkmcnt({max(out, 0)})")
            post = [rd[m + D]] if m + D < len(rd) else []
            if m in dpos and dpos.index(m) < len(dm): post += dm[dpos.index(m)]
            groups.append((pre, ms[m][0][0], []))
            groups.append(([], ms[m][0][1], post))
        interleave(a, groups, sm_ops(Sc, Pw) if sm else [], max(2 * n - 2, 1))
        if sm:
            a(f"v_cmp_lt_f32 vcc, s{sTHR}, v{vX0}")
            a(f"s_cbranch_vccnz {name}_SLOW")
            a.label(name + "_RET")
            a(f"v_add_f32 v{vL}, v{vL}, v{vTA}")
            a(f"v_add_f32 v{vL+1}, v{vL+1}, v{vTA+1}")
            handlers.append(("slow", name, Sc, Sn, Pw))
        if not last:
            a(f"s_add_u32 s{sS}, s{sS}, 1")
            if prebar: prebar()
            a(f"s_waitcnt vmcnt({vmw if dma else 0})")
            a("s_barrier")

    slot(0, "AT_S0", sm=False, pv=False, vlist=[], prebar=lambda: poll(4, 1), vmw=2)
    slot(1, "AT_S1", pv=False, vlist=[0, 1])
    sp.mark("s1")
    slot(2, "AT_L2"); slot(3, "AT_L3"); slot(0, "AT_L0")
    a(f"s_cmp_eq_u32 s{sS}, 33")
    a("s_cbranch_scc1 AT_S33")
    slot(1, "AT_L1")
    a("s_branch AT_L2")
    slot(1, "AT_S33", nxt=None)
    slot(2, "AT_S34", qk=False, nxt=None, dma=False, prefetched=False)
    slot(3, "AT_S35", qk=False, sm=False, nxt=None, dma=False, last=True, prefetched=False)
    a("s_barrier")
    xreduce("v_add_f32", vL, vX0)
    xreduce("v_add_f32", vL + 1, vX0 + 1)
    a(f"s_mul_i32 s{sT}, s{sW}, {8192+512}")
    a(f"s_xor_b32 s{sT2}, s{sW}, 4")
    a(f"s_mul_i32 s{sT2}, s{sT2}, {8192+512}")
    a(f"v_add_u32 v14, s{sT}, v{vL16}")
    a(f"v_add_u32 v15, s{sT2}, v{vL16}")
    a("v_lshlrev_b32 v16, 3, v0")
    a(f"v_add_u32 v17, s{sT2}, v16")
    a(f"v_add_u32 v16, s{sT}, v16")
    X0, X1, X2, X3, X4, X5 = range(vX0, vX0 + 6)
    a(f"s_cmp_eq_u32 s{sG}, 0")
    a("s_cbranch_scc1 AT_MA")
    a(f"v_mov_b32 v{X4}, v{NEGM}")
    a(f"v_mov_b32 v{X5}, v{vL}")
    a(f"v_mov_b32 v{X0}, v{NEGM+4}")
    a(f"v_mov_b32 v{X1}, v{vL+1}")
    for q in range(8): a(f"ds_write_b128 v14, {vr(O+4*q,4)} offset:{1024*q}")
    for r in range(32): a(f"v_mov_b32 v{O+r}, v{O+32+r}")
    a(f"s_add_u32 s{sCT2}, s{sCT2}, 131072")
    a("s_branch AT_MB")
    a.label("AT_MA")
    a(f"v_mov_b32 v{X4}, v{NEGM+4}")
    a(f"v_mov_b32 v{X5}, v{vL+1}")
    a(f"v_mov_b32 v{X0}, v{NEGM}")
    a(f"v_mov_b32 v{X1}, v{vL}")
    for q in range(8): a(f"ds_write_b128 v14, {vr(O+32+4*q,4)} offset:{1024*q}")
    a.label("AT_MB")
    a(f"ds_write_b64 v16, v[{X4}:{X5}] offset:8192")
    a("s_waitcnt lgkmcnt(0)")
    a("s_barrier")
    a(f"ds_read_b64 v[{X2}:{X3}], v17 offset:8192")
    for q in range(8): a(f"ds_read_b128 {vr(O+32+4*q,4)}, v15 offset:{1024*q}")
    a("s_waitcnt lgkmcnt(8)")
    a(f"v_min_f32 v{vTA}, v{X0}, v{X2}")
    a(f"v_sub_f32 v{X0}, v{vTA}, v{X0}")
    a(f"v_sub_f32 v{X2}, v{vTA}, v{X2}")
    a(f"v_exp_f32 v{X0}, v{X0}")
    a(f"v_exp_f32 v{X2}, v{X2}")
    a(f"v_mul_f32 v{vTA}, v{X1}, v{X0}")
    a(f"v_fmac_f32 v{vTA}, v{X3}, v{X2}")
    a(f"v_rcp_f32 v{vTA}, v{vTA}")
    a(f"v_mul_f32 v{X0}, v{X0}, v{vTA}")
    a(f"v_mul_f32 v{X2}, v{X2}, v{vTA}")
    for r in range(32): a(f"v_mul_f32 v{O+r}, v{O+r}, v{X0}")
    a("s_waitcnt lgkmcnt(0)")
    for r in range(32): a(f"v_fmac_f32 v{O+r}, v{O+32+r}, v{X2}")
    store_ctx((0,), sCT2, lambda qi: O)
    if STAMP:
        a("s_waitcnt vmcnt(0)")
        sp.mark("end")
        a("s_waitcnt lgkmcnt(0)")
        sp.flush(100, sW, 0, slot=0); sp.flush(100, sW, 4, slot=1)
    a.label("M_END")
    a("s_endpgm")
    for hd in handlers:
        if hd[0] == "ev":
            _, name, Sc = hd
            a.label(name + "_EV")
            a(f"s_sub_u32 s{sT}, s{sS}, s{sN1}")
            a(f"s_cmp_lg_u32 s{sT}, 2")
            a(f"s_cbranch_scc1 {name}_E1")
            xreduce("v_add_f32", vL1, vX0)
            xreduce("v_add_f32", vL1 + 1, vX0 + 1)
            a(f"v_rcp_f32 v{vL1}, v{vL1}")
            a(f"v_rcp_f32 v{vL1+1}, v{vL1+1}")
            for r in range(64): a(f"v_mul_f32 v{O+r}, v{O+r}, v{vL1+(r>>5)}")
            store_ctx((0, 1), sCT1, lambda qi: O + 32 * qi)
            for r in range(64): a(f"v_mov_b32 v{O+r}, 0")
            a.label(name + "_E1")
            a(f"s_cmp_lg_u32 s{sT}, 0")
            a(f"s_cbranch_scc1 {name}_E2")
            for t in range(8): a(f"ds_read_b128 {vr(Q+4*t,4)}, v{vQ2} offset:{32768+1024*t}")
            for r in range(8): a(f"v_mov_b32 v{NEGM+r}, 0")
            a("s_waitcnt lgkmcnt(0)")
            a.label(name + "_E2")
            a(f"s_sub_u32 s{sT2}, s{sS}, s{sMST}")
            a(f"s_sub_u32 s{sT2}, s{sT2}, 1")
            a(f"s_cmp_ge_u32 s{sT2}, 4")
            a(f"s_cbranch_scc1 {name}_E3")
            a(f"s_lshl_b32 s{sT2}, s{sT2}, 5")
            a(f"v_subrev_u32 v{vX0}, s{sT2}, v{vD0}")
            for qi in range(2):
                for kt in range(2):
                    for e in range(4):
                        a(f"v_cmp_le_i32 s[{sMK+2*e}:{sMK+2*e+1}], {16*kt+e-16*qi}, v{vX0}")
                    for e in range(4):
                        r = Sc + 8 * qi + 4 * kt + e
                        a(f"v_cndmask_b32 v{r}, v{vNINF}, v{r}, s[{sMK+2*e}:{sMK+2*e+1}]")
            a.label(name + "_E3")
            a(f"s_cmp_eq_u32 s{sT}, 1")
            a(f"s_cbranch_scc1 {name}_E4")
            a(f"s_cmp_lg_u32 s{sS}, 1")
            a(f"s_cbranch_scc1 {name}_GO")
            a.label(name + "_E4")
            for qi in range(2):
                a(f"v_mov_b32 v{vL1+qi}, v{vL+qi}")
                a(f"v_mov_b32 v{vL+qi}, 0")
                rowmax(vX0 + qi, vX0 + 2 + qi, Sc + 8 * qi)
            for r in range(8): a(f"v_sub_f32 v{NEGM+r}, v{NEGM+r}, v{vX0+(r>>2)}")
            for r in range(16): a(f"v_sub_f32 v{Sc+r}, v{Sc+r}, v{vX0+(r>>3)}")
            a(f"s_branch {name}_GO")
        else:
            _, name, Sc, Sn, Pw = hd
            a.label(name + "_SLOW")
            for qi in range(2):
                rowmax(vX0 + qi, vX0 + 2 + qi, Sc + 8 * qi)
                a(f"v_max_f32 v{vX0+qi}, 0, v{vX0+qi}")
                a(f"v_exp_f32 v{vX0+2+qi}, -v{vX0+qi}")
            for r in range(8): a(f"v_sub_f32 v{NEGM+r}, v{NEGM+r}, v{vX0+(r>>2)}")
            for r in range(16): a(f"v_sub_f32 v{Sn+r}, v{Sn+r}, v{vX0+(r>>3)}")
            for r in range(16): a(f"v_sub_f32 v{Sc+r}, v{Sc+r}, v{vX0+(r>>3)}")
            for r in range(64): a(f"v_mul_f32 v{O+r}, v{O+r}, v{vX0+2+(r>>5)}")
            for qi in range(2): a(f"v_mul_f32 v{vL+qi}, v{vL+qi}, v{vX0+2+qi}")
            for c, ops in sm_ops(Sc, Pw):
                for x in ops: a(x)
            a(f"s_branch {name}_RET")
    return dict(name="main_kernel", grid=256, block=512, lds=163840, vgpr=256)

import gen as G1
G1.STAMP = False
KERNELS = {"main": gen_main, "conv": G1.gen_conv, "oproj": G1.gen_oproj}

def build(names, path, verbose=False):
    hdr = open("gated_mix__ssm_conv_h3__compressed_kv_cla__prompt.s.ref").read().split("\n")
    hdr = [l for l in hdr if l.startswith(";") and "@launch" not in l and "Override" not in l and "grid=ceil" not in l]
    codes, descs, launches = [], [], []
    for n in names:
        a = Asm()
        info = KERNELS[n](a)
        k = fix_hazards(a.lines, verbose)
        print(f"{n}: {len(a.lines)} lines, {k} nops inserted")
        c, d = kernel_text(info["name"], a.lines, info["vgpr"], extra="  .amdhsa_float_denorm_mode_32 3\n")
        codes.append(c); descs.append(d)
        launches.append(f"; @launch kernel={info['name']} grid=({info['grid']},1,1) block=({info['block']},1,1) lds={info['lds']}")
    txt = "\n".join(hdr + launches) + '\n.amdgcn_target "amdgcn-amd-amdhsa--gfx950"\n.text\n' + "\n".join(codes) + \
          '\n.section .rodata,"a"\n' + "\n".join(descs)
    open(path, "w").write(txt)

if __name__ == "__main__":
    names = sys.argv[2].split(",") if len(sys.argv) > 2 else list(KERNELS)
    build(names, sys.argv[1] if len(sys.argv) > 1 else "k2.s", verbose="-v" in sys.argv)
```

```python
def gen_tail(a, E):
    globals().update(E)
    S_WS, S_X, S_OUT, S_H, S_D, S_DBG = 4, 8, 12, 16, 20, 24
    sW, sT, sT2, sMT, sNT, sKO, sCH, sLB, sNC = range(28, 37)
    NS = int(OPT.get('ns', 4))
    vB, ST, ACC = 4, 32, 176
    RB = 0
    YB = 61440
    CNT = YB + 10240
    CB = CNT + 256
    CHB = 4 * 4160 + 7680
    sp = Stamps(a, base=70, region=1)
    a("s_cmp_ge_u32 s2, 256")
    a("s_cbranch_scc1 T_END")
    sp.mark("start")
    for d, k in ((S_WS, 'ws'), (S_X, 'A_q'), (S_OUT, 'out'), (S_H, 'ssm_k'), (S_D, 'ssm_D'), (S_DBG, 'dbg')):
        a(f"s_load_dwordx2 s[{d}:{d+1}], s[0:1], {KA[k]}")
    a("v_lshrrev_b32 v1, 6, v0")
    a("v_and_b32 v0, 63, v0")
    a(f"v_readfirstlane_b32 s{sW}, v1")
    a(f"s_and_b32 s{sMT}, s2, 7")
    a(f"s_lshl_b32 s{sMT}, s{sMT}, 2")
    a(f"s_bfe_u32 s{sT}, s2, 0x20003")
    a(f"s_add_u32 s{sMT}, s{sMT}, s{sT}")
    a(f"s_lshr_b32 s{sNT}, s2, 5")
    a("v_lshlrev_b32 v1, 4, v0")
    for d, sz in ((S_WS, 64 * MB), (S_X, 2621440), (S_OUT, 2621440), (S_H, 2621440), (S_D, 1280), (S_DBG, 256)):
        a(f"s_mov_b32 s{d+2}, {sz}")
        a(f"s_mov_b32 s{d+3}, 0x00020000")
    a(f"s_cmp_ge_u32 s{sW}, 4")
    a("s_cbranch_scc1 T_SIDE")
    a(f"s_lshl_b32 s{sT}, s{sMT}, 19")
    a(f"s_add_u32 s{sT}, s{sT}, {WS_CTX}")
    a(f"v_add_u32 v{vB}, s{sT}, v1")
    for i in range(1, 4): a(f"v_add_u32 v{vB+i}, {i*131072}, v{vB}")
    a(f"s_mul_i32 s{sT}, s{sNT}, {5*131072}")
    a(f"s_add_u32 s{sT}, s{sT}, {WS_WOT}")
    a(f"v_add_u32 v{vB+4}, s{sT}, v1")
    for j in range(1, 5): a(f"v_add_u32 v{vB+4+j}, {j*131072}, v{vB+4}")
    a(f"s_lshl_b32 s{sKO}, s{sW}, 15")
    a("s_waitcnt lgkmcnt(0)")
    vm = VM()
    def loads(ks):
        out = []
        base = ST + (ks % NS) * 36
        for n in (4, 0, 5, 1, 6, 2, 7, 3, 8):
            pre = []
            if n == 4 and ks % 4 == 0 and ks: pre.append(f"s_add_u32 s{sKO}, s{sKO}, 4096")
            out.append(pre + [f"buffer_load_dwordx4 {vr(base+4*n,4)}, v{vB+n}, {S4(S_WS)}, s{sKO} offen offset:{(ks%4)*1024}"])
        return out
    def emit(g, tag):
        for x in g: a(x)
        vm.add(tag)
    for ks in range(NS - 1):
        for g in loads(ks): emit(g, ks)
    a("s_barrier")
    a("v_and_b32 v2, 15, v0")
    a("v_lshrrev_b32 v3, 4, v0")
    a(f"s_lshl_b32 s{sT}, s{sMT}, 6")
    a(f"s_lshl_b32 s{sT2}, s{sW}, 4")
    a(f"s_add_u32 s{sT}, s{sT}, s{sT2}")
    a(f"v_add_u32 v2, s{sT}, v2")
    a("v_mul_u32_u24 v13, 1280, v2")
    a("v_lshl_add_u32 v13, v3, 3, v13")
    a(f"s_mul_i32 s{sT}, s{sNT}, 160")
    a(f"v_add_u32 v13, s{sT}, v13")
    a("v_lshlrev_b32 v2, 2, v2")
    AC = lambda i, j: ACC + (i * 5 + j) * 4
    for ks in range(32):
        base = ST + (ks % NS) * 36
        nx = loads(ks + NS - 1) if ks + NS - 1 < 32 else []
        if ks + NS - 1 == 32:
            nx = [[f"s_mov_b32 s{sT}, {WS_G}", f"buffer_load_dword v14, v2, {S4(S_WS)}, s{sT} offen"]]
            nx += [[f"buffer_load_dwordx2 {vr(16+2*j,2)}, v13, {S4(S_X)}, 0 offen offset:{32*j}"] for j in range(5)]
        a(f"s_waitcnt vmcnt({vm.wait(ks)})")
        if ks == 0: sp.mark("t0")
        if ks == int(OPT.get('ksig', 27)):
            a(f"v_mov_b32 v26, {CNT}")
            a("v_mov_b32 v27, 4")
            a("s_mov_b64 exec, 1")
            a("ds_add_u32 v26, v27")
            a("s_mov_b64 exec, -1")
        n = 0
        for j in range(5):
            for i in range(4):
                acc = vr(AC(i, j), 4)
                a(f"{MFMA16} {acc}, {vr(base+16+4*j,4)}, {vr(base+4*i,4)}, {'0' if ks == 0 else acc}")
                if n % 2 == 0 and n // 2 < len(nx): emit(nx[n // 2], ks + NS - 1)
                n += 1
    sp.mark("t1")
    for i in range(4):
        lab = a.uid("TSK")
        a(f"s_cmp_eq_u32 s{sW}, {i}")
        a(f"s_cbranch_scc1 {lab}")
        a(f"s_sub_u32 s{sT}, s{sW}, {i+1}")
        a(f"s_and_b32 s{sT}, s{sT}, 3")
        a(f"s_mul_i32 s{sT}, s{sT}, 5120")
        a(f"v_add_u32 v4, s{sT}, v1")
        for j in range(5): a(f"ds_write_b128 v4, {vr(AC(i,j),4)} offset:{RB+i*15360+j*1024}")
        a(f"s_branch {lab}N")
        a.label(lab)
        for r in range(20): a(f"v_mov_b32 v{32+(r>>2)*16+12+(r&3)}, v{AC(i,0)+r}")
        a.label(lab + "N")
    a(f"s_mul_i32 s{sT}, s{sW}, 15360")
    a(f"v_add_u32 v5, s{sT}, v1")
    a("v_lshrrev_b32 v7, 2, v0")
    a("v_lshlrev_b32 v7, 7, v7")
    a("v_and_b32 v8, 3, v0")
    a("v_lshl_add_u32 v7, v8, 3, v7")
    a(f"s_lshl_b32 s{sT}, s{sW}, 5")
    a(f"s_add_u32 s{sT}, s{sT}, {YB}")
    a(f"v_add_u32 v7, s{sT}, v7")
    a("s_waitcnt vmcnt(0) lgkmcnt(0)")
    a("s_barrier")
    sp.mark("t2")
    for j in range(5):
        for src in range(3):
            a(f"ds_read_b128 {vr(32+(j*4+src)*4,4)}, v5 offset:{RB+src*5120+j*1024}")
        a(f"ds_read_b64_tr_b16 {vr(112+2*j,2)}, v7 offset:{j*2048}")
    a("v_sub_f32 v15, 1.0, v14")
    for x in rnd_pair(26, 15, 15, 15, 27): a(x)
    for j in range(5):
        a(f"s_waitcnt lgkmcnt({min(15, 4*(4-j))})")
        b = 32 + j * 16
        for r in range(4):
            a(f"v_add_f32 v{b+r}, v{b+r}, v{b+4+r}")
            a(f"v_add_f32 v{b+8+r}, v{b+8+r}, v{b+12+r}")
        for r in range(4): a(f"v_add_f32 v{b+r}, v{b+r}, v{b+8+r}")
        for hf in range(2):
            L = rnd_pair(26, b + 2 * hf, b + 2 * hf + 1, b + 4, b + 5)
            L += [f"v_mul_f32 v{b+4}, v15, v{b+4}", f"v_mul_f32 v{b+5}, v15, v{b+5}"] + rnd_pair(26, b + 4, b + 5, b + 4, b + 5)
            L += [f"v_lshlrev_b32 v{b+6}, 16, v{16+2*j+hf}", f"v_and_b32 v{b+7}, 0xffff0000, v{16+2*j+hf}",
                  f"v_lshlrev_b32 v{b+8}, 16, v{112+2*j+hf}", f"v_and_b32 v{b+9}, 0xffff0000, v{112+2*j+hf}",
                  f"v_mul_f32 v{b+6}, v{b+6}, v{b+8}", f"v_mul_f32 v{b+7}, v{b+7}, v{b+9}"] + rnd_pair(26, b + 6, b + 7, b + 6, b + 7)
            L += [f"v_mul_f32 v{b+6}, v14, v{b+6}", f"v_mul_f32 v{b+7}, v14, v{b+7}"] + rnd_pair(26, b + 6, b + 7, b + 6, b + 7)
            L += [f"v_add_f32 v{b+6}, v{b+6}, v{b+4}", f"v_add_f32 v{b+7}, v{b+7}, v{b+5}",
                  f"v_cvt_pk_bf16_f32 v{b+12+hf}, v{b+6}, v{b+7}"]
            for x in L: a(x)
        a(f"buffer_store_dwordx2 {vr(b+12,2)}, v13, {S4(S_OUT)}, 0 offen offset:{32*j}")
    if STAMP:
        a("s_waitcnt vmcnt(0)"); sp.mark("end"); a("s_waitcnt lgkmcnt(0)")
        sp.flush(100, sW, 0, slot=0)
    a("s_endpgm")
    a.label("T_SIDE")
    a("s_setprio 3")
    a("s_waitcnt lgkmcnt(0)")
    a(f"s_and_b32 s{sNC}, s2, 1")
    a(f"s_sub_u32 s{sNC}, 3, s{sNC}")
    a(f"s_cmp_lg_u32 s{sW}, 7")
    a("s_cbranch_scc1 T_CONV")
    a(f"v_mov_b32 v2, {CNT}")
    a("v_mov_b32 v3, 0")
    a("ds_write_b32 v2, v3")
    a("s_waitcnt lgkmcnt(0)")
    a("s_barrier")
    a("v_lshrrev_b32 v2, 3, v0")
    a("v_and_b32 v4, 7, v0")
    a("v_lshlrev_b32 v4, 4, v4")
    a("v_lshl_add_u32 v2, v2, 12, v4")
    a(f"s_lshl_b32 s3, s{sNT}, 12")
    a(f"s_add_u32 s3, s3, {WS_FLG}")
    a("v_and_b32 v3, 31, v0")
    a("v_lshlrev_b32 v3, 2, v3")
    a(f"s_mov_b32 s{sT2}, 0")
    a(f"v_mov_b32 v6, {CNT}")
    a.label("T_LPOLL")
    a("s_sleep 8")
    a("ds_read_b32 v5, v6")
    a("s_waitcnt lgkmcnt(0)")
    a(f"v_readfirstlane_b32 s{sT}, v5")
    a(f"s_add_u32 s{sT2}, s{sT2}, 1")
    a(f"s_cmp_ge_u32 s{sT}, {OPT.get('nsig', 16)}")
    a("s_cbranch_scc1 T_POLL1")
    a(f"s_cmp_lt_u32 s{sT2}, 100000")
    a("s_cbranch_scc1 T_LPOLL")
    a.label("T_POLL")
    a(f"s_sleep {OPT.get('tsleep', 24)}")
    a.label("T_POLL1")
    a(f"buffer_load_dword v5, v3, {S4(S_WS)}, s3 offen sc1")
    a("s_waitcnt vmcnt(0)")
    a("v_cmp_eq_u32 vcc, 0, v5")
    a(f"s_add_u32 s{sT2}, s{sT2}, 1")
    a("s_cbranch_vccz T_POK")
    a(f"s_cmp_lt_u32 s{sT2}, 100000")
    a("s_cbranch_scc1 T_POLL")
    a.label("T_POK")
    a(f"s_mul_i32 s{sT}, s{sNT}, {80*4096}")
    a(f"s_lshl_b32 s{sT2}, s{sMT}, 7")
    a(f"s_add_u32 s{sT}, s{sT}, s{sT2}")
    a(f"s_add_u32 s{sT}, s{sT}, {WS_Y2T}")
    for i in range(10):
        a(f"s_mov_b32 m0, {YB + 1024*i}")
        if i: a(f"s_add_u32 s{sT}, s{sT}, {8*4096}")
        a(f"buffer_load_dwordx4 v2, {S4(S_WS)}, s{sT} offen sc1 lds")
    a("s_waitcnt vmcnt(0)")
    a("s_barrier")
    a("s_endpgm")
    a.label("T_CONV")
    a(f"s_sub_u32 s{sT}, s{sW}, 4")
    a(f"s_cmp_ge_u32 s{sT}, s{sNC}")
    a("s_cbranch_scc1 T_END")
    a(f"s_lshr_b32 s{sCH}, s2, 1")
    a(f"s_mul_i32 s{sCH}, s{sCH}, 5")
    a(f"s_and_b32 s{sT2}, s2, 1")
    a(f"s_mul_i32 s{sT2}, s{sT2}, 3")
    a(f"s_add_u32 s{sCH}, s{sCH}, s{sT2}")
    a(f"s_add_u32 s{sCH}, s{sCH}, s{sT}")
    a(f"s_mul_i32 s{sLB}, s{sT}, {CHB}")
    a(f"s_add_u32 s{sLB}, s{sLB}, {CB}")
    a(f"s_mul_i32 s{sT}, s{sCH}, 5120")
    a(f"s_add_u32 s{sT}, s{sT}, {WS_KVT}")
    a(f"s_add_u32 m0, s{sLB}, {4*4160+2560}")
    a("s_nop 0")
    for i in range(4): a(f"buffer_load_dwordx4 v1, {S4(S_WS)}, s{sT} offen offset:{1024*i} lds")
    a(f"s_add_u32 m0, s{sLB}, {4*4160+2560+4096}")
    a(f"s_add_u32 s{sT}, s{sT}, 4096")
    a(f"buffer_load_dwordx4 v1, {S4(S_WS)}, s{sT} offen lds")
    a(f"s_lshl_b32 s{sT}, s{sCH}, 12")
    a(f"v_add_u32 v3, s{sT}, v1")
    for rr in range(4):
        if rr: a("v_subrev_u32 v3, 2, v3")
        a("v_add_u32 v4, 1024, v3")
        a(f"s_add_u32 m0, s{sLB}, {rr*4160+64}")
        a(f"buffer_load_dwordx4 v3, {S4(S_H)}, 0 offen lds")
        a(f"s_add_u32 m0, s{sLB}, {rr*4160+64+1024}")
        for i in range(3): a(f"buffer_load_dwordx4 v4, {S4(S_H)}, 0 offen offset:{1024*i} lds")
    for r in range(8, 12): a(f"v_mov_b32 v{r}, 0")
    a(f"s_add_u32 s{sT2}, s{sLB}, {4*4160}")
    a(f"v_add_u32 v5, s{sT2}, v1")
    a("ds_write_b128 v5, v[8:11]")
    a("ds_write_b128 v5, v[8:11] offset:1024")
    a("v_lshlrev_b32 v6, 3, v0")
    a(f"v_add_u32 v6, s{sT2}, v6")
    a("ds_write_b64 v6, v[8:9] offset:2048")
    a("v_and_b32 v6, 7, v0")
    a("v_bfe_u32 v7, v0, 3, 2")
    a("v_lshlrev_b32 v12, 1, v6")
    a(f"buffer_load_ushort v13, v12, {S4(S_H)}, s{sT} offen")
    a(f"s_lshl_b32 s{sT}, s{sCH}, 1")
    a(f"buffer_load_ushort v14, v8, {S4(S_D)}, s{sT} offen")
    a("v_add_u32 v6, v6, v7")
    a("v_mul_u32_u24 v12, 4160, v7")
    a("v_lshl_add_u32 v12, v6, 1, v12")
    a(f"v_add_u32 v12, s{sLB}, v12")
    vA, vBq = 16, 17
    a("v_bfe_u32 v18, v0, 2, 2")
    a("v_mul_u32_u24 v18, 4160, v18")
    a("v_bfe_u32 v19, v0, 4, 1")
    a("v_lshl_add_u32 v18, v19, 5, v18")
    a("v_and_b32 v19, 3, v0")
    a("v_lshl_add_u32 v18, v19, 3, v18")
    a("v_lshrrev_b32 v19, 5, v0")
    a("v_lshlrev_b32 v20, 4, v19")
    a("v_sub_u32 v18, v18, v20")
    a(f"s_add_u32 s{sT}, s{sLB}, {64-8-32}")
    a(f"v_add_u32 v{vA}, s{sT}, v18")
    a("v_and_b32 v21, 31, v0")
    a("v_mul_u32_u24 v18, 80, v21")
    a("v_add_u32 v18, v18, v20")
    a(f"s_add_u32 s{sT}, s{sLB}, {4*4160+2560-31*80}")
    a(f"v_add_u32 v{vBq}, s{sT}, v18")
    a("v_lshlrev_b32 v20, 3, v19")
    a("v_sub_u32 v20, v21, v20")
    a("v_mov_b32 v22, 0xffff")
    MK = 24
    for kh in range(2):
        for q in range(4):
            a(f"v_cmp_le_i32 vcc, {2*q+16*kh}, v20")
            a(f"v_cmp_le_i32 s[40:41], {2*q+1+16*kh}, v20")
            a(f"v_cndmask_b32 v{MK+4*kh+q}, 0, v22, vcc")
            a(f"v_cndmask_b32 v{MK+4*kh+q}, v{MK+4*kh+q}, -1, s[40:41]")
    a("s_barrier")
    a("s_waitcnt vmcnt(0)")
    sp.n = 2; sp.mark("t0")
    a("v_cmp_gt_u32 vcc, 8, v6")
    a("s_and_b32 exec_lo, vcc_lo, exec_lo")
    a("s_mov_b32 exec_hi, 0")
    a("ds_write_b16 v12, v13 offset:64")
    a("s_mov_b64 exec, -1")
    F = [32, 48, 64]
    Y0, Y1, Y2 = 96, 112, 128
    def reads(it):
        d, kh = it >> 1, it & 1
        f = F[it % 3]
        o = 64 * d + 32 * (1 - kh)
        return [f"ds_read_b64_tr_b16 {vr(f,2)}, v{vA} offset:{o+8}",
                f"ds_read_b64_tr_b16 {vr(f+2,2)}, v{vA} offset:{o}",
                f"ds_read_b128 {vr(f+8,4)}, v{vBq} offset:{80*(31-d)+32*kh}",
                f"ds_read_b128 {vr(f+12,4)}, v{vBq} offset:{80*(31-d)+2560+32*kh}",
                f"ds_read_b64_tr_b16 {vr(f+4,2)}, v{vA} offset:{o+8+2048}",
                f"ds_read_b64_tr_b16 {vr(f+6,2)}, v{vA} offset:{o+2048}"]
    for x in reads(0) + reads(1): a(x)
    a("s_setprio 0")
    for it in range(64):
        if it == int(OPT.get('cprio', 64)): a("s_setprio 3")
        f = F[it % 3]
        nx = reads(it + 2) if it + 2 < 64 else []
        a(f"s_waitcnt lgkmcnt({6 if it + 1 < 64 else 0})")
        if it < 2:
            for q in range(4): a(f"v_and_b32 v{f+q}, v{f+q}, v{MK+4*it+q}")
        c = lambda y: "0" if it == 0 else vr(y, 16)
        a(f"{MFMA32} {vr(Y0,16)}, {vr(f,4)}, {vr(f+8,4)}, {c(Y0)}")
        for x in nx[0:2]: a(x)
        a(f"{MFMA32} {vr(Y1,16)}, {vr(f,4)}, {vr(f+12,4)}, {c(Y1)}")
        for x in nx[2:4]: a(x)
        a(f"{MFMA32} {vr(Y2,16)}, {vr(f+4,4)}, {vr(f+8,4)}, {c(Y2)}")
        for x in nx[4:6]: a(x)
    sp.mark("t1")
    a("s_setprio 3")
    a("v_mul_u32_u24 v5, 80, v21")
    a("v_lshl_add_u32 v5, v19, 3, v5")
    a(f"s_add_u32 s{sT}, s{sLB}, {4*4160+2560}")
    a(f"v_add_u32 v5, s{sT}, v5")
    for t in range(2):
        for q in range(4): a(f"ds_read_b64 {vr(32+8*t+2*q,2)}, v5 offset:{2560*t+16*q}")
    a("v_lshlrev_b32 v14, 16, v14")
    a("v_lshlrev_b32 v6, 6, v21")
    a("v_lshl_add_u32 v6, v19, 3, v6")
    a(f"v_add_u32 v6, s{sLB}, v6")
    a(f"v_add_u32 v7, s{sLB}, v1")
    for r in range(16): a(f"v_add_f32 v{Y1+r}, v{Y1+r}, v{Y2+r}")
    a("s_waitcnt lgkmcnt(0)")
    for t in range(2):
        Y = Y0 if t == 0 else Y1
        for q in range(4):
            for hf in range(2):
                r = Y + 4 * q + 2 * hf
                kvr = 32 + 8 * t + 2 * q + hf
                L = rnd_pair(52, r, r + 1, 50, 51)
                L += [f"v_lshlrev_b32 v53, 16, v{kvr}", f"v_and_b32 v54, 0xffff0000, v{kvr}",
                      "v_mul_f32 v53, v53, v14", "v_mul_f32 v54, v54, v14"] + rnd_pair(52, 53, 54, 53, 54)
                L += ["v_add_f32 v50, v50, v53", "v_add_f32 v51, v51, v54", f"v_cvt_pk_bf16_f32 v{56+2*(q&1)+hf}, v50, v51"]
                for x in L: a(x)
            a(f"ds_write_b64 v6, {vr(56+2*(q&1),2)} offset:{2048*t+16*q}")
    a("s_waitcnt lgkmcnt(0)")
    for i in range(4): a(f"ds_read_b128 {vr(64+4*i,4)}, v7 offset:{1024*i}")
    a(f"s_lshl_b32 s{sT}, s{sCH}, 12")
    a(f"s_add_u32 s{sT}, s{sT}, {WS_Y2T}")
    for i in range(4):
        a(f"s_waitcnt lgkmcnt({3-i})")
        a(f"buffer_store_dwordx4 {vr(64+4*i,4)}, v1, {S4(S_WS)}, s{sT} offen offset:{1024*i} sc1")
    sp.mark("t2")
    a("s_waitcnt vmcnt(0)")
    if STAMP:
        sp.mark("end"); a("s_waitcnt lgkmcnt(0)"); sp.flush(100, sW, 4, slot=1)
    a("s_mov_b64 exec, 1")
    a(f"v_mov_b32 v2, {CNT}")
    a("v_mov_b32 v3, 1")
    a("ds_add_rtn_u32 v4, v2, v3")
    a("s_waitcnt lgkmcnt(0)")
    a(f"v_readfirstlane_b32 s{sT}, v4")
    a(f"s_add_u32 s{sT}, s{sT}, 1")
    a(f"s_and_b32 s{sT}, s{sT}, 3")
    a(f"s_cmp_lg_u32 s{sT}, s{sNC}")
    a("s_cbranch_scc1 T_END")
    a(f"s_lshl_b32 s3, s{sNT}, 12")
    a(f"s_and_b32 s{sT}, s2, 31")
    a(f"s_lshl_b32 s{sT}, s{sT}, 2")
    a(f"s_add_u32 s3, s3, s{sT}")
    a(f"s_add_u32 s3, s3, {WS_FLG}")
    a(f"buffer_store_dword v3, v8, {S4(S_WS)}, s3 offen sc1")
    a.label("T_END")
    a("s_endpgm")
    return dict(name="tail_kernel", grid=256, block=512, lds=CB + 3 * CHB, vgpr=256)
```

```python
class VM:
    def __init__(self): self.tags = []; self.ghost = set()
    def add(self, tag): self.tags.append(tag)
    def wait(self, *tags):
        idx = [i for i, t in enumerate(self.tags) if t in tags]
        if not idx: return None
        return len([t for t in self.tags[max(idx) + 1:] if t not in self.ghost])

class Stream:
    def __init__(self, a, vm, dist=8, per_gap=2, bar_delay=3):
        self.a, self.vm = a, vm
        self.dist, self.per_gap, self.bar_delay = dist, per_gap, bar_delay
        self.ops = []
        self.reads = []
        self.bars = {}
        self.fill = []
        self.fill_rate = 2.0
        self.timed = []
    def op(self, text, uses): self.ops.append((text, uses))
    def read(self, fid, text, reg, stage, key=None): self.reads.append(dict(id=fid, text=text, reg=reg, stage=stage, key=key))
    def barrier_after_stage(self, stage, vm_tags, after=(), pre=None):
        self.bars[stage] = dict(tags=vm_tags, after=list(after), pre=pre)
    def filler(self, earliest, cost, item): self.fill.append((earliest, cost, item))
    def _emit_item(self, item):
        if callable(item): item(); return
        for x in item:
            if isinstance(x, tuple):
                self.a(x[0]); self.vm.add(x[1])
            else: self.a(x)
    def run(self, open_stages, preissued=0):
        a = self.a
        n = len(self.ops)
        first, last = {}, {}
        for m, (_, uses) in enumerate(self.ops):
            for f in uses:
                first.setdefault(f, m); last[f] = m
        prev = {}
        for r in self.reads:
            r["first"] = first.get(r["id"], n + self.dist)
            if r["key"] is None: r["key"] = r["first"]
            p = prev.get(r["reg"])
            r["free"] = last.get(p["id"], -1) if p else -1
            prev[r["reg"]] = r
        stage_last = {}
        for i, r in enumerate(self.reads): stage_last[r["stage"]] = i
        opened = set(open_stages)
        ri = preissued
        done = 0
        pend_bar = {}
        urgent = []
        fi, facc = 0, 0.0
        def wait_reads(upto):
            nonlocal done
            if upto > done:
                a(f"s_waitcnt lgkmcnt({min(15, ri - upto)})")
                done = upto if ri - upto <= 15 else max(done, ri - 15)
        def do_barrier(st):
            b = self.bars[st]
            wait_reads(stage_last[st] + 1)
            if b["pre"]: b["pre"]()
            w = self.vm.wait(*b["tags"]) if b["tags"] else None
            if w is not None: a(f"s_waitcnt vmcnt({min(w, 63)})")
            a("s_barrier")
            opened.add(st + 1)
            urgent.extend(b["after"])
        def issue(m, force_upto=-1):
            nonlocal ri
            k = 0
            fidx = max([i for i in range(ri, min(len(self.reads), ri + 64)) if self.reads[i]["first"] <= force_upto], default=-1)
            while ri < len(self.reads):
                r = self.reads[ri]
                forced = ri <= fidx
                if force_upto >= 0 and not forced: break
                if r["stage"] not in opened:
                    if forced:
                        st = r["stage"] - 1
                        pend_bar.pop(st, None); do_barrier(st)
                    else: break
                if not forced and (k >= self.per_gap or r["key"] - self.dist > m or r["free"] > m): break
                assert r["free"] <= m, ("register ring too small", r)
                a(r["text"]); ri += 1; k += 1
                if ri - 1 == stage_last[r["stage"]] and r["stage"] in self.bars:
                    pend_bar[r["stage"]] = m + self.bar_delay
        for m, (text, uses) in enumerate(self.ops):
            issue(m - 1, force_upto=m)
            need = 0
            for i in range(done, ri):
                if self.reads[i]["first"] <= m + 1: need = i + 1
            must = any(self.reads[i]["first"] <= m for i in range(done, ri))
            if must: wait_reads(need)
            a(text)
            for st in [s for s, p in pend_bar.items() if p <= m]:
                del pend_bar[st]; do_barrier(st)
            issue(m)
            while self.timed and self.timed[0][0] <= m and not urgent:
                assert m <= self.timed[0][2], "timed item past its deadline"
                self._emit_item(self.timed.pop(0)[1])
            if urgent:
                self._emit_item(urgent.pop(0))
            else:
                facc = min(facc + self.fill_rate, 2 * self.fill_rate + 2)
                while fi < len(self.fill) and self.fill[fi][0] <= m and self.fill[fi][1] <= facc:
                    facc -= self.fill[fi][1]
                    self._emit_item(self.fill[fi][2]); fi += 1
        for st in sorted(pend_bar): do_barrier(st)
        issue(n + 10 * self.dist)
        while ri < len(self.reads) and self.reads[ri]["stage"] in opened:
            issue(n + 10 * self.dist)
        for it in urgent: self._emit_item(it)
        assert not self.timed
        while fi < len(self.fill):
            self._emit_item(self.fill[fi][2]); fi += 1
        return ri
```

```python
import sys, struct
from asmlib import *
from sched import *

MB = 1 << 20
WS_KF, WS_VF, WS_CTX, WS_WOT, WS_KVT, WS_Y2T, WS_G = 0, 16 * MB, 32 * MB, 48 * MB, 56 * MB, 60 * MB, 63 * MB
KA = dict(A_q=0, A_k=8, A_v=16, shift=24, ssm_k=32, ssm_D=40, B_x=48, c_kv=56, w_q=64, w_uk=72, w_uv=80, w_o=88,
          gate=96, out=104, dbg=112, ws=120)
MFMA32 = "v_mfma_f32_32x32x16_bf16"
MFMA16 = "v_mfma_f32_16x16x32_bf16"
STAMP = "-stamp" in sys.argv
OPT = {x[2:].split("=")[0]: (x.split("=")[1] if "=" in x else "1") for x in sys.argv if x.startswith("--")}
WS_FLG = 63 * MB + 524288
OOB = "0x80000000"
def f32hex(x): return "0x%08x" % struct.unpack("<I", struct.pack("<f", x))[0]

def srd(a, d, lo, hi, size, add=0):
    if add:
        a(f"s_add_u32 s{d}, s{lo}, {add}")
        a(f"s_addc_u32 s{d+1}, s{hi}, 0")
    else:
        a(f"s_mov_b32 s{d}, s{lo}")
        a(f"s_mov_b32 s{d+1}, s{hi}")
    a(f"s_mov_b32 s{d+2}, {size}")
    a(f"s_mov_b32 s{d+3}, 0x00020000")
def S4(d): return f"s[{d}:{d+3}]"

class Stamps:
    def __init__(self, a, base=70, region=0):
        self.a, self.base, self.n, self.region = a, base, 0, region
    def mark(self, name=""):
        if not STAMP: return
        if name not in OPT.get("marks", "start,kv,q,s1,end,t0,t1,t2").split(","): return
        assert self.base + 2 * self.n + 3 <= 101
        self.a(f"s_memtime s[{self.base+2*self.n}:{self.base+2*self.n+1}]")
        self.a(f"s_memrealtime s[{self.base+2*self.n+2}:{self.base+2*self.n+3}]")
        self.n += 2
    def flush(self, wg, sW, wave, slot=0):
        if not STAMP: return
        a = self.a
        lab = a.uid("STK")
        a(f"s_cmp_lg_u32 s{sW}, {wave}")
        a(f"s_cbranch_scc1 {lab}")
        a(f"s_load_dwordx2 s[60:61], s[0:1], {KA['ws']}")
        a("s_waitcnt lgkmcnt(0)")
        a(f"s_add_u32 s60, s60, {128*MB + self.region*65536 + slot*64}")
        a("s_addc_u32 s61, s61, 0")
        a("s_mov_b32 s62, 65536")
        a("s_mov_b32 s63, 0x00020000")
        a("s_lshl_b32 s3, s2, 7")
        a("v_mov_b32 v1, s3")
        for i in range(self.n):
            a(f"v_mov_b32 v2, s{self.base+2*i}")
            a(f"buffer_store_dword v2, v1, s[60:63], 0 offen offset:{4*i}")
        a("s_getreg_b32 s3, hwreg(HW_REG_XCC_ID)")
        a("v_mov_b32 v2, s3")
        a(f"buffer_store_dword v2, v1, s[60:63], 0 offen offset:60")
        a("s_waitcnt vmcnt(0)")
        a.label(lab)

def rnd_pair(d, lo, hi, olo, ohi):
    return [f"v_cvt_pk_bf16_f32 v{d}, v{lo}, v{hi}", f"v_lshlrev_b32 v{olo}, 16, v{d}", f"v_and_b32 v{ohi}, 0xffff0000, v{d}"]

def interleave(a, mfmas, fillers, ngaps):
    tot = sum(c for c, _ in fillers)
    fi, acc = 0, 0.0
    for g, (pre, m, post) in enumerate(mfmas):
        for x in pre: a(x)
        a(m)
        for x in post: a(x)
        lim = tot * min(1.0, (g + 1) / ngaps) if ngaps else tot
        while fi < len(fillers) and acc + fillers[fi][0] * 0.5 <= lim:
            acc += fillers[fi][0]
            for x in fillers[fi][1]: a(x)
            fi += 1
    while fi < len(fillers):
        for x in fillers[fi][1]: a(x)
        fi += 1

def gen_main(a):
    S_C, S_W, S_WS, S_V, S_X, S_WQ, S_DBG = 4, 8, 12, 16, 20, 24, 28
    (sW, sH, sP, sG, sRB, sT, sT2, sCO, sWO, sM0C, sM0W, sOB, sROW, sXO, sQWO, sN1, sS, sMST, sTHR, sM0K, sM0V,
     sBASE, sCT1, sCT2, sWRAP) = range(32, 57)
    sHIST = [57, 58, 59, 60]
    sEV = 62
    PT = 64
    S_T = 76
    sMK = 4
    vL16, vCD, vWD, vAC, vAW, vXD, vQW, vWOT, vKVT = 1, 2, 6, 10, 12, 16, 20, 22, 23
    WFR, CFR, ACC = [32, 48], 64, 128
    sp = Stamps(a, base=80)
    vm = VM()
    a("s_cmp_ge_u32 s2, 256")
    a("s_cbranch_scc1 M_END")
    sp.mark("start")
    a(f"s_load_dwordx2 s[44:45], s[0:1], {KA['c_kv']}")
    a(f"s_load_dwordx4 s[48:51], s[0:1], {KA['w_uk']}")
    a("v_lshrrev_b32 v1, 6, v0")
    a("v_mov_b32 v31, v0")
    a("v_and_b32 v0, 63, v0")
    a(f"v_readfirstlane_b32 s{sW}, v1")
    a(f"s_and_b32 s{sH}, s2, 7")
    a("s_lshr_b32 s3, s2, 6")
    a("s_lshl_b32 s3, s3, 3")
    a(f"s_add_u32 s{sH}, s{sH}, s3")
    a(f"s_bfe_u32 s{sP}, s2, 0x30003")
    a(f"s_lshr_b32 s{sG}, s{sW}, 2")
    a("v_lshrrev_b32 v24, 3, v0")
    a("v_and_b32 v25, 7, v0")
    a("v_lshrrev_b32 v26, 4, v0")
    a("v_xor_b32 v25, v25, v26")
    a("v_lshlrev_b32 v25, 4, v25")
    a("v_xor_b32 v27, 64, v25")
    a(f"v_lshl_add_u32 v{vCD}, v24, 10, v25")
    a(f"v_lshl_add_u32 v{vCD+1}, v24, 10, v27")
    a(f"v_add_u32 v{vCD+1}, {8192-1024}, v{vCD+1}")
    a(f"v_add_u32 v{vCD+2}, {2*(8192-1024)}, v{vCD}")
    a(f"v_add_u32 v{vCD+3}, {2*(8192-1024)}, v{vCD+1}")
    a("v_and_b32 v28, 15, v0")
    a("v_lshlrev_b32 v29, 1, v26")
    a("v_xor_b32 v28, v28, v29")
    a("v_lshlrev_b32 v28, 4, v28")
    a(f"v_lshl_add_u32 v{vWD}, v26, 13, v28")
    a(f"v_add_u32 v{vWD+1}, {4*8192-1024}, v{vWD}")
    a(f"v_xor_b32 v{vWD+2}, 128, v{vWD}")
    a(f"v_add_u32 v{vWD+2}, {2*(4*8192-1024)}, v{vWD+2}")
    a(f"v_add_u32 v{vWD+3}, {4*8192-1024}, v{vWD+2}")
    a(f"s_and_b32 s{sRB}, s{sW}, 3")
    a(f"s_lshl_b32 s{sCO}, s{sP}, 18")
    a(f"s_lshl_b32 s{sT}, s{sW}, 15")
    a(f"s_add_u32 s{sCO}, s{sCO}, s{sT}")
    a(f"s_lshl_b32 s{sWO}, s{sRB}, 17")
    a(f"s_lshl_b32 s{sT}, s{sH}, 8")
    a(f"s_add_u32 s{sWO}, s{sWO}, s{sT}")
    a(f"s_lshl_b32 s{sM0C}, s{sW}, 12")
    a(f"s_add_u32 s{sM0W}, s{sM0C}, 65536")
    a("s_waitcnt lgkmcnt(0)")
    srd(a, S_C, 44, 45, 2 * MB)
    a(f"s_cmp_eq_u32 s{sG}, 0")
    a(f"s_cselect_b32 s{S_W}, s48, s50")
    a(f"s_cselect_b32 s{S_W+1}, s49, s51")
    a(f"s_mov_b32 s{S_W+2}, {4*MB}")
    a(f"s_mov_b32 s{S_W+3}, 0x00020000")
    def kv_dma(st):
        buf = (st & 1) * 32768
        tg = ("kv", st)
        out = [[f"s_add_u32 m0, s{sM0C}, {buf}", f"s_add_u32 s{sT}, s{sCO}, {st*128}",
                (f"buffer_load_dwordx4 v{vCD}, {S4(S_C)}, s{sT} offen lds", tg)]]
        for i in range(1, 4): out.append([(f"buffer_load_dwordx4 v{vCD+i}, {S4(S_C)}, s{sT} offen offset:{i*1024} lds", tg)])
        out.append([f"s_add_u32 m0, s{sM0W}, {buf}", f"s_add_u32 s{sT}, s{sWO}, {st*64*8192}",
                    (f"buffer_load_dwordx4 v{vWD}, {S4(S_W)}, s{sT} offen lds", tg)])
        for i in range(1, 4): out.append([(f"buffer_load_dwordx4 v{vWD+i}, {S4(S_W)}, s{sT} offen offset:{i*1024} lds", tg)])
        return out
    def emit(items):
        for it in items:
            for x in it:
                if isinstance(x, tuple): a(x[0]); vm.add(x[1])
                else: a(x)
    emit(kv_dma(0))
    a(f"s_load_dwordx2 s[44:45], s[0:1], {KA['A_q']}")
    a(f"s_load_dwordx2 s[46:47], s[0:1], {KA['w_q']}")
    a(f"s_load_dwordx4 s[48:51], s[0:1], {KA['dbg']}")
    a(f"s_load_dwordx4 s[{PT}:{PT+3}], s[0:1], {KA['A_k']}")
    a(f"s_load_dwordx2 s[{PT+4}:{PT+5}], s[0:1], {KA['shift']}")
    a(f"s_load_dwordx4 s[{PT+8}:{PT+11}], s[0:1], {KA['w_o']}")
    a(f"v_lshlrev_b32 v{vL16}, 4, v0")
    a("v_mul_u32_u24 v28, 1280, v24")
    a(f"v_add_u32 v{vXD}, v28, v25")
    a(f"v_add_u32 v{vXD+1}, v28, v27")
    a(f"v_add_u32 v{vXD+1}, {8*1280-1024}, v{vXD+1}")
    a(f"v_add_u32 v{vXD+2}, {2*(8*1280-1024)}, v{vXD}")
    a(f"v_add_u32 v{vXD+3}, {2*(8*1280-1024)}, v{vXD+1}")
    a(f"s_and_b32 s3, s{sW}, 1")
    a("s_lshl_b32 s3, s3, 7")
    a(f"v_xor_b32 v{vQW}, s3, v{vWD}")
    a(f"v_add_u32 v{vQW+1}, {4*8192-1024}, v{vQW}")
    emit(kv_dma(1))
    vPF, vPFW, vSC = 116, 117, 118
    if 'nopf' not in OPT:
        a(f"v_lshlrev_b32 v{vPF}, 7, v0")
        a("v_lshrrev_b32 v24, 1, v0")
        a("v_and_b32 v25, 1, v0")
        a("v_lshlrev_b32 v25, 7, v25")
        a(f"v_lshl_add_u32 v{vPFW}, v24, 13, v25")
        a("s_lshl_b32 s3, s2, 13")
        a(f"s_lshl_b32 s{sT}, s{sW}, 10")
        a(f"s_add_u32 s3, s3, s{sT}")
        a("s_mov_b64 exec, 0xff")
        emit([[(f"buffer_load_dword v{vSC}, v{vPF}, {S4(S_C)}, s3 offen sc1", "pf")]])
        a(f"s_lshl_b32 s3, s{sP}, 19")
        a(f"s_add_u32 s3, s3, s{sWO}")
        a("s_mov_b32 exec_lo, -1")
        emit([[(f"buffer_load_dword v{vSC}, v{vPFW}, {S4(S_W)}, s3 offen sc1", "pf")]])
        a("s_mov_b64 exec, -1")
    def frag_addrs(vR, rowoff_sgpr, vWa, nt_sgpr, wbase_sgpr):
        a("v_and_b32 v24, 15, v0")
        a("v_lshrrev_b32 v25, 4, v0")
        a("v_bfe_u32 v26, v0, 1, 3")
        a("v_xor_b32 v26, v26, v25")
        a("v_lshlrev_b32 v26, 4, v26")
        a("v_lshl_add_u32 v26, v24, 7, v26")
        a(f"v_add_u32 v{vR}, s{rowoff_sgpr}, v26")
        a(f"v_xor_b32 v{vR+1}, 64, v{vR}")
        a("v_bfe_u32 v24, v0, 2, 2")
        a("v_lshl_add_u32 v26, v25, 3, v24")
        a("v_lshlrev_b32 v26, 8, v26")
        a("v_and_b32 v27, 3, v0")
        a("v_lshl_add_u32 v26, v27, 3, v26")
        a(f"v_add_u32 v26, s{wbase_sgpr}, v26")
        a("v_and_b32 v25, 1, v25")
        a("v_lshl_add_u32 v24, v25, 2, v24")
        a(f"v_xor_b32 v24, s{nt_sgpr}, v24")
        for nt in range(4):
            a(f"v_xor_b32 v25, {nt}, v24")
            a(f"v_lshl_add_u32 v{vWa+nt}, v25, 5, v26")
    a(f"s_and_b32 s{sT}, s{sW}, 1")
    a(f"s_lshl_b32 s{sT}, s{sT}, 14")
    a(f"s_and_b32 s{sT2}, s{sW}, 2")
    a(f"s_lshl_b32 s{sT2}, s{sT2}, 1")
    a(f"s_lshl_b32 s3, s{sG}, 14")
    a("s_add_u32 s3, s3, 65536")
    frag_addrs(vAC, sT, vAW, sT2, 3)
    WOB = 131072
    a("v_lshrrev_b32 v24, 2, v0")
    a("v_mul_u32_u24 v24, 672, v24")
    a("v_and_b32 v25, 3, v0")
    a("v_lshl_add_u32 v24, v25, 3, v24")
    a(f"s_lshl_b32 s{sT}, s{sW}, 5")
    a(f"s_add_u32 s{sT}, s{sT}, {WOB}")
    a(f"v_add_u32 v{vWOT}, s{sT}, v24")
    a("v_mul_u32_u24 v25, 1639, v31")
    a("v_lshrrev_b32 v25, 16, v25")
    a("v_mul_u32_u24 v26, 40, v25")
    a("v_sub_u32 v26, v31, v26")
    a(f"s_lshr_b32 s{sT}, s2, 3")
    a(f"s_lshl_b32 s{sT}, s{sT}, 6")
    a(f"v_lshl_add_u32 v25, v25, 3, s{sT}")
    a(f"s_and_b32 s{sT2}, s2, 7")
    a(f"s_mul_i32 s{sT2}, s{sT2}, 40")
    a(f"v_add_u32 v26, s{sT2}, v26")
    a("v_mul_u32_u24 v27, 1280, v25")
    a("v_lshl_add_u32 v27, v26, 2, v27")
    a("v_add_u32 v28, 5120, v27")
    a("v_subrev_u32 v29, 3840, v27")
    a(f"v_mov_b32 v30, {OOB}")
    a("v_cmp_eq_u32 vcc, 0, v25")
    a(f"v_mul_u32_u24 v{vKVT}, 10240, v26")
    a("v_lshrrev_b32 v24, 5, v25")
    a("v_cndmask_b32 v29, v29, v30, vcc")
    a("v_cmp_gt_u32 vcc, 320, v31")
    a("v_mul_u32_u24 v24, 80, v24")
    a(f"v_add_u32 v{vKVT}, v{vKVT}, v24")
    a("v_and_b32 v24, 31, v25")
    a(f"v_lshl_add_u32 v{vKVT}, v24, 1, v{vKVT}")
    a("v_cndmask_b32 v27, v30, v27, vcc")
    a("v_cndmask_b32 v28, v30, v28, vcc")
    a("v_cndmask_b32 v29, v30, v29, vcc")
    a(f"v_cndmask_b32 v{vKVT}, v30, v{vKVT}, vcc")
    a("v_lshlrev_b32 v26, 4, v26")
    a("v_mul_u32_u24 v24, 20, v0")
    a("s_waitcnt lgkmcnt(0)")
    srd(a, S_WS, 50, 51, 64 * MB)
    srd(a, S_V, 50, 51, 16 * MB, WS_VF)
    srd(a, S_X, 44, 45, 2621440)
    srd(a, S_WQ, 46, 47, 5242880)
    srd(a, S_DBG, 48, 49, 256)
    a(f"s_sub_u32 s{sT}, 15, s{sP}")
    a(f"s_lshl_b32 s{sT2}, s{sRB}, 5")
    a(f"s_lshl_b32 s{sCT2}, s{sT}, 7")
    a(f"s_add_u32 s{sCT2}, s{sCT2}, s{sT2}")
    a(f"s_lshl_b32 s{sCT1}, s{sP}, 7")
    a(f"s_add_u32 s{sCT1}, s{sCT1}, s{sT2}")
    a(f"s_cmp_eq_u32 s{sG}, 0")
    a(f"s_cselect_b32 s{sROW}, s{sCT1}, s{sCT2}")
    a(f"s_mul_i32 s{sXO}, s{sROW}, 1280")
    a(f"s_lshl_b32 s{sQWO}, s{sW}, 16")
    a(f"s_lshl_b32 s{sT}, s{sH}, 8")
    a(f"s_add_u32 s{sQWO}, s{sQWO}, s{sT}")
    a(f"s_lshl_b32 s{sT}, s{sH}, 12")
    a(f"s_add_u32 s{sT}, s{sT}, {WS_CTX}")
    for c in (sCT1, sCT2):
        a(f"s_lshl_b32 s{c}, s{c}, 13")
        a(f"s_add_u32 s{c}, s{c}, s{sT}")
    a(f"s_lshl_b32 s{sOB}, s{sH}, 6")
    a(f"s_lshl_b32 s{sT}, s{sP}, 3")
    a(f"s_add_u32 s{sOB}, s{sOB}, s{sT}")
    a(f"s_and_b32 s{sT}, s{sW}, 1")
    a(f"s_lshl_b32 s{sT}, s{sT}, 2")
    a(f"s_add_u32 s{sOB}, s{sOB}, s{sT}")
    a(f"s_lshl_b32 s{sOB}, s{sOB}, 13")
    a(f"s_bfe_u32 s{sT}, s{sW}, 0x10001")
    a(f"s_add_u32 s{sT2}, s{sG}, 11")
    a(f"s_lshl_b32 s{sT}, s{sT}, s{sT2}")
    a(f"s_add_u32 s{sOB}, s{sOB}, s{sT}")
    a(f"s_lshl_b32 s{sT}, s{sG}, 24")
    a(f"s_add_u32 s{sOB}, s{sOB}, s{sT}")
    a(f"s_lshl_b32 s{sN1}, s{sP}, 2")
    a(f"s_add_u32 s{sN1}, s{sN1}, 4")
    a(f"s_lshl_b32 s{sBASE}, s{sH}, 19")
    a(f"s_lshl_b32 s{sT}, s{sRB}, 11")
    a(f"s_add_u32 s{sBASE}, s{sBASE}, s{sT}")
    a(f"s_lshl_b32 s{sM0K}, s{sW}, 11")
    a(f"s_add_u32 s{sM0V}, s{sM0K}, 65536")
    a(f"s_sub_u32 s{sT}, 34, s{sN1}")
    a(f"s_lshl_b32 s{sT}, s{sT}, 13")
    a(f"s_add_u32 s{sT}, s{sT}, s{sBASE}")
    a(f"s_sub_u32 s{sT2}, s{sN1}, 4")
    a(f"s_sub_u32 s{sWRAP}, s{sN1}, 3")
    a(f"s_cmp_eq_u32 s{sG}, 0")
    a(f"s_cselect_b32 s{sHIST[0]}, s{sBASE}, s{sT}")
    a(f"s_cselect_b32 s{sMST}, s{sT2}, 30")
    a(f"s_cselect_b32 s{sN1}, s{sN1}, 100")
    a(f"s_cselect_b32 s{sWRAP}, s{sWRAP}, 100")
    a(f"s_add_u32 s{sHIST[1]}, s{sHIST[0]}, 8192")
    a(f"s_add_u32 s{sHIST[2]}, s{sHIST[0]}, 16384")
    a(f"s_mov_b64 s[{sEV}:{sEV+1}], 15")
    a(f"s_add_u32 s{sT}, s{sMST}, 1")
    a(f"s_lshl_b64 s[{sEV}:{sEV+1}], s[{sEV}:{sEV+1}], s{sT}")
    a(f"s_mov_b64 s[{PT+6}:{PT+7}], 7")
    a(f"s_lshl_b64 s[{PT+6}:{PT+7}], s[{PT+6}:{PT+7}], s{sN1}")
    a(f"s_or_b64 s[{sEV}:{sEV+1}], s[{sEV}:{sEV+1}], s[{PT+6}:{PT+7}]")
    a(f"s_or_b32 s{sEV}, s{sEV}, 2")
    a(f"s_mov_b32 s{sTHR}, {f32hex(4096.0)}")
    a(f"s_mov_b32 s{S_T+3}, 0x00020000")

    XB = [0, 32768, 131072]
    def q_dma_x(k):
        tg = ("q", k)
        out = [[f"s_add_u32 m0, s{sM0C}, {XB[(k+2)%3]}", f"s_add_u32 s{sT}, s{sXO}, {k*128}",
                (f"buffer_load_dwordx4 v{vXD}, {S4(S_X)}, s{sT} offen lds", tg)]]
        for i in range(1, 4): out.append([(f"buffer_load_dwordx4 v{vXD+i}, {S4(S_X)}, s{sT} offen offset:{i*1024} lds", tg)])
        return out
    def q_dma_w(k):
        tg = ("q", k)
        return [[f"s_add_u32 m0, s{sM0V}, {(k%3)*16384}", f"s_add_u32 s{sT}, s{sQWO}, {k*64*8192}",
                 (f"buffer_load_dwordx4 v{vQW}, {S4(S_WQ)}, s{sT} offen lds", tg)],
                [(f"buffer_load_dwordx4 v{vQW+1}, {S4(S_WQ)}, s{sT} offen offset:1024 lds", tg)]]
    GX, GXT, GWT, GW, KR, VR, SH = 80, 84, 85, 86, 90, 101, 110
    def tsrd(lo, size): return [f"s_mov_b32 s{S_T}, s{lo}", f"s_mov_b32 s{S_T+1}, s{lo+1}", f"s_mov_b32 s{S_T+2}, {size}"]
    def side_loads():
        L = []
        it = tsrd(PT + 8, 5242880) + [f"s_lshr_b32 s3, s2, 1", "s_lshl_b32 s3, s3, 5", f"s_lshl_b32 s{sT2}, s{sW}, 2",
              f"s_add_u32 s3, s3, s{sT2}", "s_mul_i32 s3, s3, 1280", f"s_and_b32 s{sS}, s2, 1", f"s_mul_i32 s{sS}, s{sS}, 640",
              f"s_add_u32 s3, s3, s{sS}", f"s_mul_i32 s{sT2}, s{sT2}, 672", "s_mov_b32 exec_hi, 0xff"]
        for i in range(4):
            it += [f"s_add_u32 m0, s{sT2}, {WOB+672*i}", f"s_add_u32 s{sS}, s3, {1280*i}",
                   (f"buffer_load_dwordx4 v{vL16}, {S4(S_T)}, s{sS} offen lds", "pr")]
        it += ["s_mov_b32 exec_hi, -1"]
        L.append(it)
        L.append(["s_lshl_b32 s3, s2, 3", f"s_add_u32 s3, s3, s{sW}", "s_mul_i32 s3, s3, 1280",
                  (f"buffer_load_dwordx4 {vr(GX,4)}, v24, {S4(S_X)}, s3 offen", "pr"),
                  (f"buffer_load_dword v{GXT}, v24, {S4(S_X)}, s3 offen offset:16", "pr")])
        L.append(tsrd(PT + 10, 1280) + [(f"buffer_load_dwordx4 {vr(GW,4)}, v24, {S4(S_T)}, 0 offen", "pr"),
                  (f"buffer_load_dword v{GWT}, v24, {S4(S_T)}, 0 offen offset:16", "pr")])
        L.append(tsrd(PT + 4, 5120) + [(f"buffer_load_dwordx4 {vr(SH,4)}, v26, {S4(S_T)}, 0 offen", "pr")])
        for j in range(11):
            o = f"v29, {S4(S_T)}, 0 offen offset:{1280*j}" if j < 3 else f"v{27 if j < 7 else 28}, {S4(S_T)}, 0 offen offset:{1280*((j-3)%4)}"
            L.append((tsrd(PT, 2621440) if j == 0 else []) + [(f"buffer_load_dword v{KR+j}, {o}", "pr")])
        for j in range(8):
            L.append((tsrd(PT + 2, 2621440) if j == 0 else []) +
                     [(f"buffer_load_dword v{VR+j}, v{27 if j < 4 else 28}, {S4(S_T)}, 0 offen offset:{1280*(j%4)}", "pr")])
        if 'nopf' not in OPT:
            L.insert(0, [f"s_lshl_b32 s3, s{sP}, 3", f"s_add_u32 s3, s3, s{sW}", f"s_mul_i32 s3, s3, {10*8192}", f"s_lshl_b32 s{sT2}, s{sH}, 8",
                      f"s_add_u32 s3, s3, s{sT2}", "s_mov_b64 exec, 0xfffff",
                      (f"buffer_load_dword v{vSC}, v{vPFW}, {S4(S_WQ)}, s3 offen sc1", "pf"), "s_mov_b64 exec, -1"])
        return L

    def side_jobs():
        L = []
        t0, t1, t2, t3, t4, t5 = 24, 25, 26, 27, 28, 29
        for i in range(3):
            L.append([f"ds_read_b64_tr_b16 v[{116+4*i}:{117+4*i}], v{vWOT} offset:{256*i}"])
            L.append([f"ds_read_b64_tr_b16 v[{118+4*i}:{119+4*i}], v{vWOT} offset:{256*i+16*672}"])
        L.append([f"v_mov_b32 v{t0}, 0"])
        for x, w in [(GX + i, GW + i) for i in range(4)] + [(GXT, GWT)]:
            L += [[s] for s in [f"v_lshlrev_b32 v{t1}, 16, v{x}", f"v_and_b32 v{t2}, 0xffff0000, v{x}",
                                f"v_lshlrev_b32 v{t3}, 16, v{w}", f"v_and_b32 v{t4}, 0xffff0000, v{w}",
                                f"v_mul_f32 v{t1}, v{t1}, v{t3}", f"v_mul_f32 v{t2}, v{t2}, v{t4}"] + rnd_pair(t3, t1, t2, t1, t2) +
                               [f"v_add_f32 v{t0}, v{t0}, v{t1}", f"v_add_f32 v{t0}, v{t0}, v{t2}"]]
        for m in ("row_shr:1", "row_shr:2", "row_shr:4", "row_shr:8"):
            L.append([f"v_add_f32_dpp v{t0}, v{t0}, v{t0} {m} row_mask:0xf bank_mask:0xf bound_ctrl:0"])
        L.append([f"v_add_f32_dpp v{t0}, v{t0}, v{t0} row_bcast:15 row_mask:0xa bank_mask:0xf"])
        L.append([f"v_add_f32_dpp v{t0}, v{t0}, v{t0} row_bcast:31 row_mask:0xc bank_mask:0xf"])
        L += [[s] for s in rnd_pair(t1, t0, t0, t0, t2)[:2] +
              [f"v_mul_f32 v{t0}, 0xbfb8aa3b, v{t0}", f"v_exp_f32 v{t0}, v{t0}", f"v_cmp_eq_u32 vcc, 63, v0",
               f"v_add_f32 v{t0}, 1.0, v{t0}", f"v_rcp_f32 v{t0}, v{t0}", f"v_cndmask_b32 v{t2}, v30, 0, vcc"] +
              rnd_pair(t1, t0, t0, t0, t3)[:2]]
        L.append(["s_lshl_b32 s3, s2, 3", f"s_add_u32 s3, s3, s{sW}", "s_lshl_b32 s3, s3, 2", f"s_add_u32 s3, s3, {WS_G}",
                  (f"buffer_store_dword v{t0}, v{t2}, {S4(S_WS)}, s3 offen", "pr2")])
        L.append(["s_lshr_b32 s3, s2, 5", "s_lshl_b32 s3, s3, 12", f"s_and_b32 s{sT2}, s2, 31", f"s_lshl_b32 s{sT2}, s{sT2}, 2",
                  f"s_add_u32 s3, s3, s{sT2}", f"s_add_u32 s3, s3, {WS_FLG}", f"v_mov_b32 v{t1}, 0",
                  (f"buffer_store_dword v{t1}, v{t2}, {S4(S_WS)}, s3 offen", "pr2")])
        L.append(["s_and_b32 s3, s2, 1", "s_mul_i32 s3, s3, 20", f"s_add_u32 s3, s3, s{sW}", "s_lshl_b32 s3, s3, 17",
                  f"s_lshr_b32 s{sT2}, s2, 1", f"s_lshl_b32 s{sT2}, s{sT2}, 10", f"s_add_u32 s3, s3, s{sT2}",
                  f"s_add_u32 s3, s3, {WS_WOT}", (f"buffer_store_dwordx4 v[116:119], v{vL16}, {S4(S_WS)}, s3 offen", "pr2")])
        L.append([f"s_add_u32 s3, s3, {8<<17}", (f"buffer_store_dwordx4 v[120:123], v{vL16}, {S4(S_WS)}, s3 offen", "pr2")])
        L.append([f"s_add_u32 s3, s3, {8<<17}", f"s_cmp_ge_u32 s{sW}, 4", f"s_cselect_b32 s3, {OOB}, s3",
                  (f"buffer_store_dwordx4 v[124:127], v{vL16}, {S4(S_WS)}, s3 offen", "pr2")])
        W = 80
        for c in range(2):
            for q in range(2):
                L.append([f"v_lshlrev_b32 v{W+4*c+2*q}, 16, v{SH+2*c+q}"])
                L.append([f"v_and_b32 v{W+4*c+2*q+1}, 0xffff0000, v{SH+2*c+q}"])
        KL, KH = [110, 111, 112, 113], [88, 89, 109, 114]
        def unp(j): return [f"v_lshlrev_b32 v{KL[j%4]}, 16, v{KR+j}", f"v_and_b32 v{KH[j%4]}, 0xffff0000, v{KR+j}"]
        for j in range(3): L += [[s] for s in unp(j)]
        for s in range(8):
            ops = unp(s + 3)
            ops += [f"v_mul_f32 v{t0}, v{KL[s%4]}, v{W+3}", f"v_mul_f32 v{t1}, v{KH[s%4]}, v{W+7}"] + rnd_pair(t2, t0, t1, t0, t1)
            for j in (2, 1, 0):
                ops += [f"v_mul_f32 v{t3}, v{KL[(s+3-j)%4]}, v{W+j}", f"v_mul_f32 v{t4}, v{KH[(s+3-j)%4]}, v{W+4+j}"]
                ops += rnd_pair(t2, t3, t4, t3, t4)
                ops += [f"v_add_f32 v{t0}, v{t0}, v{t3}", f"v_add_f32 v{t1}, v{t1}, v{t4}"] + rnd_pair(t2, t0, t1, t0, t1)
            ops += [f"v_lshlrev_b32 v{t3}, 16, v{VR+s}", f"v_and_b32 v{t4}, 0xffff0000, v{VR+s}"]
            if s % 2 == 0:
                ops += [f"v_mul_f32 v118, v{t0}, v{t3}", f"v_mul_f32 v119, v{t1}, v{t4}"]
            else:
                ops += [f"v_mul_f32 v{t0}, v{t0}, v{t3}", f"v_mul_f32 v{t1}, v{t1}, v{t4}",
                        f"v_cvt_pk_bf16_f32 v{120+s//2}, v118, v{t0}", f"v_cvt_pk_bf16_f32 v{124+s//2}, v119, v{t1}"]
            L += [[x] for x in ops]
        L.append([f"s_mov_b32 s3, {WS_KVT}", (f"buffer_store_dwordx4 v[120:123], v{vKVT}, {S4(S_WS)}, s3 offen", "pr2")])
        L.append([f"s_mov_b32 s3, {WS_KVT+5120}", (f"buffer_store_dwordx4 v[124:127], v{vKVT}, {S4(S_WS)}, s3 offen", "pr2")])
        return L

    def kdma(e, tg):
        return [[f"s_add_u32 m0, s{sM0K}, {(e & 3) * 16384}", "s_nop 0",
                 (f"buffer_load_dwordx4 v{vL16}, {S4(S_WS)}, s{sHIST[e&3]} offen sc1 lds", tg)],
                [(f"buffer_load_dwordx4 v{vL16}, {S4(S_WS)}, s{sHIST[e&3]} offen offset:1024 sc1 lds", tg)]]
    def publish(wave, which):
        lab = a.uid("PUB")
        a(f"s_cmp_lg_u32 s{sW}, {wave}")
        a(f"s_cbranch_scc1 {lab}")
        a("s_mov_b64 exec, 1")
        a(f"v_mov_b32 v24, {1 << (8 * which)}")
        a("v_mov_b32 v25, 0")
        a(f"s_lshl_b32 s3, s{sH}, 2")
        a(f"buffer_atomic_add v24, v25, {S4(S_DBG)}, s3 offen sc1")
        a("s_mov_b64 exec, -1")
        a.label(lab)
    def poll(wave, which):
        if 'nopoll' in OPT: return
        lab = a.uid("POLL")
        a(f"s_cmp_lg_u32 s{sW}, {wave}")
        a(f"s_cbranch_scc1 {lab}D")
        a("v_mov_b32 v25, 0")
        a(f"s_lshl_b32 s3, s{sH}, 2")
        a(f"s_mov_b32 s{sT2}, 0")
        a.label(lab)
        a(f"buffer_load_dword v24, v25, {S4(S_DBG)}, s3 offen {OPT.get('pollsc', 'sc1').replace('_', ' ')}")
        a("s_waitcnt vmcnt(0)")
        a(f"v_readfirstlane_b32 s{S_T}, v24")
        a(f"s_add_u32 s{sT2}, s{sT2}, 1")
        a(f"s_bitcmp1_b32 s{S_T}, {3 + 8 * which}")
        a(f"s_cbranch_scc1 {lab}K")
        a(f"s_sleep {OPT.get('sleep', 2)}")
        a(f"s_cmp_lt_u32 s{sT2}, 100000")
        a(f"s_cbranch_scc1 {lab}")
        a.label(lab + "K")
        if 'inv' in OPT:
            a("buffer_inv sc1")
            a("s_waitcnt vmcnt(0)")
        a.label(lab + "D")

    a(f"s_waitcnt vmcnt({vm.wait(('kv', 0))})")
    a("s_barrier")
    sp.mark("kv0")
    a(f"s_cmp_lg_u32 s{sG}, 0")
    a("s_cbranch_scc1 M_KVV")
    vm0 = list(vm.tags)
    spn = sp.n
    vAX, vAQ, vST = 2, 6, 10
    QA = 128
    PK = lambda z: (240 + 4 * z) if z < 4 else (80 + 4 * (z - 4))
    endwait = []
    for part in range(2):
        if part: a.label("M_KVV")
        vm.tags = list(vm0)
        sp.n = spn
        S = Stream(a, vm, dist=12, per_gap=2, bar_delay=3)
        S.fill_rate = 1.5
        rl = []
        for st in range(8):
            buf = (st & 1) * 32768
            for u in range(2):
                x = 2 * st + u
                for nt in range(4):
                    for hf in range(2):
                        rg = WFR[x & 1] + 4 * nt + 2 * hf
                        rl.append((32 * x + nt - 6, ("w", x, nt, hf),
                                   f"ds_read_b64_tr_b16 {vr(rg,2)}, v{vAW+nt} offset:{buf+u*8192+hf*1024}", rg, st))
                for kt in range(8):
                    rg = CFR + 4 * (kt % 4)
                    rl.append((32 * x + 4 * kt, ("c", x, kt), f"ds_read_b128 {vr(rg,4)}, v{vAC+u} offset:{buf+kt*2048}", rg, st))
                    for nt in range(4):
                        idx = kt * 4 + nt if part == 0 else ((kt >> 1) * 4 + nt) * 2 + (kt & 1)
                        acc = vr(ACC + 4 * idx, 4)
                        w, c = vr(WFR[x & 1] + 4 * nt, 4), vr(rg, 4)
                        cin = "0" if x == 0 else acc
                        S.op(f"{MFMA16} {acc}, {w}, {c}, {cin}" if part == 0 else f"{MFMA16} {acc}, {c}, {w}, {cin}",
                             [("w", x, nt, 0), ("w", x, nt, 1), ("c", x, kt)])
            after = kv_dma(st + 2) if st < 6 else []
            if st == 5: after = after + q_dma_x(0)
            if st == 6: after = q_dma_w(0) + q_dma_x(1) + q_dma_w(1)
            if st == 7: after = q_dma_x(2) + q_dma_w(2)
            after = [lambda st=st: sp.mark(f"k{st}")] + after
            S.barrier_after_stage(st, [("kv", st + 1)] + (["pr", "pf"] if st == 1 else []) if st < 7 else [("q", 0)], after)
        rl.sort(key=lambda r: (r[4], r[0]))
        for r in rl: S.read(r[1], r[2], r[3], r[4], r[0])
        for it in side_loads(): S.filler(4, 2.5, it)
        for it in side_jobs(): S.filler(128, 1, it)
        S.run([0])
        sp.mark("kv")
        a(f"s_lshr_b32 s{sT}, s{sW}, 1")
        a(f"s_lshl_b32 s{sT}, s{sT}, 13")
        a(f"s_and_b32 s{sT2}, s{sW}, 1")
        a(f"s_lshl_b32 s{sT2}, s{sT2}, 2")
        a("s_mov_b32 s3, 65536")
        frag_addrs(vAX, sT, vAQ, sT2, 3)
        a(f"v_add_u32 v{vAX+2}, 131072, v{vAX}")
        a(f"v_add_u32 v{vAX+3}, 131072, v{vAX+1}")
        S = Stream(a, vm, dist=10, per_gap=2, bar_delay=3)
        S.fill_rate = 1.0
        rl = []
        KPUB = int(OPT.get('kpub', 5))
        for k in range(10):
            xb = XB[(k + 2) % 3]
            for u in range(2):
                x = 2 * k + u
                for nt in range(4):
                    for hf in range(2):
                        rg = WFR[x & 1] + 4 * nt + 2 * hf
                        rl.append((16 * x + nt - 5, ("w", x, nt, hf),
                                   f"ds_read_b64_tr_b16 {vr(rg,2)}, v{vAQ+nt} offset:{(k%3)*16384+u*8192+hf*1024}", rg, k))
                for qi in range(4):
                    rg = CFR + 4 * qi
                    av = vAX + u + (2 if xb == 131072 else 0)
                    rl.append((16 * x + 4 * qi, ("c", x, qi), f"ds_read_b128 {vr(rg,4)}, v{av} offset:{(xb%131072)+qi*2048}", rg, k))
                    for nt in range(4):
                        acc = vr(QA + 4 * (qi * 4 + nt), 4)
                        S.op(f"{MFMA16} {acc}, {vr(WFR[x&1]+4*nt,4)}, {vr(rg,4)}, {'0' if x == 0 else acc}",
                             [("w", x, nt, 0), ("w", x, nt, 1), ("c", x, qi)])
            tags, after, pre = [("q", k + 1)], [], None
            if k + 3 <= 9: after = q_dma_x(k + 3) + q_dma_w(k + 3)
            if k == KPUB and part == 0: tags.append("st"); after = [lambda: publish(0, 0)] + after
            if k == 7:
                if part == 0: pre = lambda: poll(0, 0)
                after = kdma(0, "k0") + kdma(1, "k0")
            if k == 8: after = kdma(2, "k2")
            if k == 9: tags = []
            after = [lambda k=k: sp.mark(f"q{k}")] + after
            S.barrier_after_stage(k, tags, after, pre)
        rl.sort(key=lambda r: (r[4], r[0]))
        for r in rl: S.read(r[1], r[2], r[3], r[4], r[0])
        npre = 10
        for r in rl[:npre]: a(r[2])
        a(f"v_add_u32 v{vST}, {4096 >> part}, v{vL16}")
        for z in list(range(4, 16)) + list(range(4)):
            for e in range(4):
                a(f"v_cvt_pk_bf16_f32 v{PK(z)+e}, v{ACC+8*z+2*e}, v{ACC+8*z+2*e+1}")
        SC = " " + OPT.get('stsc', 'sc1').replace('_', ' ')
        st0, stp = (2, int(OPT.get('stp', 7))) if part == 0 else (int(OPT.get('vst', 120)), int(OPT.get('stp', 7)) + 2)
        for z in range(16 if 'nost' not in OPT else 1):
            j, c = z >> 2, z & 3
            S.filler(st0 + stp * z, 1, [f"s_add_u32 s3, s{sOB}, {j*8192}",
                     (f"buffer_store_dwordx4 {vr(PK(z),4)}, v{vST if c >> 1 else vL16}, {S4(S_WS)}, s3 offen offset:{(c&1)*1024}{SC}", "st")])
        S.run([0], preissued=npre)
        endwait.append(vm.wait("k0", "st"))
        if part == 0: a("s_branch M_KVD")
    a.label("M_KVD")
    sp.mark("q")
    vKA, vVA, vD0, vQ2 = 2, 3, 4, 5
    FR, T, P, SS, O, Q, NEGM = 32, 64, [80, 88], [96, 112], 128, 192, 224
    vL, vL1, vTA, vX0, vNINF = 232, 234, 236, 238, 246
    D = int(OPT.get('D', 5))
    a(f"s_mov_b32 s{sT}, {f32hex(1.4426950408889634 * 128 ** -0.5)}")
    a(f"s_lshr_b32 s{sT2}, s{sW}, 1")
    a(f"s_lshl_b32 s{sT2}, s{sT2}, 14")
    a(f"s_and_b32 s3, s{sW}, 1")
    a("s_lshl_b32 s3, s3, 11")
    a(f"s_add_u32 s{sT2}, s{sT2}, s3")
    a(f"s_add_u32 s{sT2}, s{sT2}, 98304")
    a(f"v_add_u32 v6, s{sT2}, v{vL16}")
    a(f"s_lshl_b32 s{sT2}, s{sW}, 13")
    a(f"s_add_u32 s{sT2}, s{sT2}, 98304")
    a(f"v_add_u32 v{vQ2}, s{sT2}, v{vL16}")
    a(f"s_lshl_b32 s{sT2}, s{sG}, 13")
    a(f"v_add_u32 v{vKA}, s{sT2}, v{vL16}")
    a(f"v_add_u32 v{vVA}, 65536, v{vKA}")
    for f in range(8):
        for e in range(4):
            r = QA + 8 * f + 2 * e
            a(f"v_mul_f32 v{r}, s{sT}, v{r}")
            a(f"v_mul_f32 v{r+1}, s{sT}, v{r+1}")
            a(f"v_cvt_pk_bf16_f32 v{Q+4*f+e}, v{r}, v{r+1}")
        a(f"ds_write_b128 v6, {vr(Q+4*f,4)} offset:{(f>>1)*4096+(f&1)*1024}")
    a("v_and_b32 v7, 15, v0")
    a("v_lshrrev_b32 v8, 4, v0")
    a(f"s_lshl_b32 s{sT}, s{sRB}, 5")
    a(f"v_add_u32 v{vD0}, s{sT}, v7")
    a("v_lshlrev_b32 v8, 2, v8")
    a(f"v_sub_u32 v{vD0}, v{vD0}, v8")
    a(f"v_mov_b32 v{vNINF}, 0xff800000")
    for r in range(8): a(f"v_mov_b32 v{NEGM+r}, 0")
    a(f"v_mov_b32 v{vL}, 0")
    a(f"v_mov_b32 v{vL+1}, 0")
    a(f"s_waitcnt vmcnt({min(endwait)}) lgkmcnt(0)")
    a("s_barrier")
    publish(4, 1)
    sp.mark("qx")
    def kread(e, t): return f"ds_read_b128 {vr(FR+4*t,4)}, v{vKA} offset:{(e&3)*16384+t*1024}"
    def vread(e, i): return f"ds_read_b128 {vr(FR+4*i,4)}, v{vVA} offset:{(e&3)*16384+i*1024}"
    for f in range(8): a(f"ds_read_b128 {vr(Q+4*f,4)}, v{vQ2} offset:{f*1024}")
    for i in range(D): a(kread(0, i))
    for r in range(64): a(f"v_mov_b32 v{O+r}, 0")
    a(f"s_mov_b32 s{sS}, 0")

    handlers = []
    def xreduce(op, x, tmp):
        a(f"v_mov_b32 v{tmp}, v{x}")
        a(f"v_permlane16_swap_b32 v{x}, v{tmp}")
        a(f"{op} v{x}, v{x}, v{tmp}")
        a(f"v_mov_b32 v{tmp}, v{x}")
        a(f"v_permlane32_swap_b32 v{x}, v{tmp}")
        a(f"{op} v{x}, v{x}, v{tmp}")
    def rowmax(dst, tmp, src):
        a(f"v_max3_f32 v{dst}, v{src}, v{src+1}, v{src+2}")
        a(f"v_max3_f32 v{dst}, v{dst}, v{src+3}, v{src+4}")
        a(f"v_max3_f32 v{dst}, v{dst}, v{src+5}, v{src+6}")
        a(f"v_max_f32 v{dst}, v{dst}, v{src+7}")
        xreduce("v_max_f32", dst, tmp)
    def sm_ops(Sc, Pw):
        f = []
        def post(q):
            t = vTA + (q >> 3)
            if q % 8 == 0: f.append((1, [f"v_add_f32 v{t}, v{T+q%8}, v{T+(q+1)%8}"]))
            else:
                f.append((1, [f"v_add_f32 v{t}, v{t}, v{T+q%8}"]))
                f.append((1, [f"v_add_f32 v{t}, v{t}, v{T+(q+1)%8}"]))
            f.append((1, [f"v_cvt_pk_bf16_f32 v{Pw+q//2}, v{T+q%8}, v{T+(q+1)%8}"]))
        for r in range(16):
            f.append((2, [f"v_exp_f32 v{T+r%8}, v{Sc+r}"]))
            if r % 2 == 1 and r >= 3: post(r - 3)
        post(14)
        f.append((1, [f"v_max_f32 v{vX0}, v{vTA}, v{vTA+1}"]))
        return f
    def store_ctx(qis, sct, obase):
        n = 0
        for qi in qis:
            for u in range(4):
                d = T + (n % 4) * 4
                n += 1
                src = obase(qi) + 8 * u
                for e in range(4): a(f"v_cvt_pk_bf16_f32 v{d+e}, v{src+2*e}, v{src+2*e+1}")
                if u == 0 and qi == 1 and len(qis) == 2: a(f"s_add_u32 s{sct}, s{sct}, 131072")
                a(f"buffer_store_dwordx4 {vr(d,4)}, v{vL16}, {S4(S_WS)}, s{sct} offen offset:{u*1024}")

    def slot(j, name, qk=True, sm=True, pv=True, nxt="k", dma=True, last=False, vlist=None, prefetched=True, prebar=None, vmw=4):
        par = j & 1
        if vlist is None: vlist = [j]
        Sc, Sn, Pw, Pr = SS[1 - par], SS[par], P[1 - par], P[par]
        a.label(name)
        if sm or pv:
            a(f"s_bitcmp1_b64 s[{sEV}:{sEV+1}], s{sS}")
            a(f"s_cbranch_scc1 {name}_EV")
            a.label(name + "_GO")
            handlers.append(("ev", name, Sc))
        ms = []
        if qk:
            for t in range(8):
                kt, u = t >> 2, t & 3
                mm = []
                for qi in range(2):
                    d = vr(Sn + 8 * qi + 4 * kt, 4)
                    mm.append(f"{MFMA16} {d}, {vr(FR+4*t,4)}, {vr(Q+16*qi+4*u,4)}, {vr(NEGM+4*qi,4) if u == 0 else d}")
                ms.append((mm, kread(j, t)))
        if pv:
            for i in range(8):
                mm = []
                for qi in range(2):
                    o = vr(O + 32 * qi + 4 * i, 4)
                    mm.append(f"{MFMA16} {o}, {vr(FR+4*i,4)}, {vr(Pr+4*qi,4)}, {o}")
                ms.append((mm, vread(j - 2, i)))
        rd = [m[1] for m in ms]
        if nxt == "k": rd += [kread(j + 1, i) for i in range(D)]
        elif nxt == "v": rd += [vread(j - 1, i) for i in range(D)]
        dm = []
        def vd(e): return [[f"s_add_u32 m0, s{sM0V}, {(e & 3) * 16384}", "s_nop 0",
                            f"buffer_load_dwordx4 v{vL16}, {S4(S_V)}, s{sHIST[e&3]} offen sc1 lds"],
                           [f"buffer_load_dwordx4 v{vL16}, {S4(S_V)}, s{sHIST[e&3]} offen offset:1024 sc1 lds"]]
        if dma:
            for e in vlist: dm += vd(e)
            h0, h1 = sHIST[(j + 3) & 3], sHIST[(j + 2) & 3]
            pre = [f"s_add_u32 s{sT}, s{h1}, 8192", f"s_cmp_eq_u32 s{sS}, s{sWRAP}", f"s_cselect_b32 s{sT}, s{sBASE}, s{sT}",
                   f"s_add_u32 m0, s{sM0K}, {((j + 3) & 3) * 16384}", f"s_cmp_ge_u32 s{sS}, 31", f"s_cselect_b32 s{h0}, {OOB}, s{sT}"]
            dm.append(pre + [f"buffer_load_dwordx4 v{vL16}, {S4(S_WS)}, s{h0} offen sc1 lds"])
            dm.append([f"buffer_load_dwordx4 v{vL16}, {S4(S_WS)}, s{h0} offen offset:1024 sc1 lds"])
        groups = []
        n = len(ms)
        if not prefetched:
            for x in rd[:D]: a(x)
        dpos = list(range(1, n, 2)) if len(dm) <= n // 2 else list(range(n))
        for m in range(n):
            pre = []
            if m % 2 == 0:
                out = min(len(rd), m + D) - (m + 2)
                pre.append(f"s_waitcnt lgkmcnt({max(out, 0)})")
            post = [rd[m + D]] if m + D < len(rd) else []
            if m in dpos and dpos.index(m) < len(dm): post += dm[dpos.index(m)]
            groups.append((pre, ms[m][0][0], []))
            groups.append(([], ms[m][0][1], post))
        interleave(a, groups, sm_ops(Sc, Pw) if sm else [], max(2 * n - 2, 1))
        if sm:
            a(f"v_cmp_lt_f32 vcc, s{sTHR}, v{vX0}")
            a(f"s_cbranch_vccnz {name}_SLOW")
            a.label(name + "_RET")
            a(f"v_add_f32 v{vL}, v{vL}, v{vTA}")
            a(f"v_add_f32 v{vL+1}, v{vL+1}, v{vTA+1}")
            handlers.append(("slow", name, Sc, Sn, Pw))
        if not last:
            a(f"s_add_u32 s{sS}, s{sS}, 1")
            if prebar: prebar()
            a(f"s_waitcnt vmcnt({vmw if dma else 0})")
            a("s_barrier")

    slot(0, "AT_S0", sm=False, pv=False, vlist=[], prebar=lambda: poll(4, 1), vmw=2)
    slot(1, "AT_S1", pv=False, vlist=[0, 1])
    sp.mark("s1")
    slot(2, "AT_L2"); slot(3, "AT_L3"); slot(0, "AT_L0")
    a(f"s_cmp_eq_u32 s{sS}, 33")
    a("s_cbranch_scc1 AT_S33")
    slot(1, "AT_L1")
    a("s_branch AT_L2")
    slot(1, "AT_S33", nxt=None)
    slot(2, "AT_S34", qk=False, nxt=None, dma=False, prefetched=False)
    slot(3, "AT_S35", qk=False, sm=False, nxt=None, dma=False, last=True, prefetched=False)
    a("s_barrier")
    xreduce("v_add_f32", vL, vX0)
    xreduce("v_add_f32", vL + 1, vX0 + 1)
    a(f"s_mul_i32 s{sT}, s{sW}, {8192+512}")
    a(f"s_xor_b32 s{sT2}, s{sW}, 4")
    a(f"s_mul_i32 s{sT2}, s{sT2}, {8192+512}")
    a(f"v_add_u32 v14, s{sT}, v{vL16}")
    a(f"v_add_u32 v15, s{sT2}, v{vL16}")
    a("v_lshlrev_b32 v16, 3, v0")
    a(f"v_add_u32 v17, s{sT2}, v16")
    a(f"v_add_u32 v16, s{sT}, v16")
    X0, X1, X2, X3, X4, X5 = range(vX0, vX0 + 6)
    a(f"s_cmp_eq_u32 s{sG}, 0")
    a("s_cbranch_scc1 AT_MA")
    a(f"v_mov_b32 v{X4}, v{NEGM}")
    a(f"v_mov_b32 v{X5}, v{vL}")
    a(f"v_mov_b32 v{X0}, v{NEGM+4}")
    a(f"v_mov_b32 v{X1}, v{vL+1}")
    for q in range(8): a(f"ds_write_b128 v14, {vr(O+4*q,4)} offset:{1024*q}")
    for r in range(32): a(f"v_mov_b32 v{O+r}, v{O+32+r}")
    a(f"s_add_u32 s{sCT2}, s{sCT2}, 131072")
    a("s_branch AT_MB")
    a.label("AT_MA")
    a(f"v_mov_b32 v{X4}, v{NEGM+4}")
    a(f"v_mov_b32 v{X5}, v{vL+1}")
    a(f"v_mov_b32 v{X0}, v{NEGM}")
    a(f"v_mov_b32 v{X1}, v{vL}")
    for q in range(8): a(f"ds_write_b128 v14, {vr(O+32+4*q,4)} offset:{1024*q}")
    a.label("AT_MB")
    a(f"ds_write_b64 v16, v[{X4}:{X5}] offset:8192")
    a("s_waitcnt lgkmcnt(0)")
    a("s_barrier")
    a(f"ds_read_b64 v[{X2}:{X3}], v17 offset:8192")
    for q in range(8): a(f"ds_read_b128 {vr(O+32+4*q,4)}, v15 offset:{1024*q}")
    a("s_waitcnt lgkmcnt(8)")
    a(f"v_min_f32 v{vTA}, v{X0}, v{X2}")
    a(f"v_sub_f32 v{X0}, v{vTA}, v{X0}")
    a(f"v_sub_f32 v{X2}, v{vTA}, v{X2}")
    a(f"v_exp_f32 v{X0}, v{X0}")
    a(f"v_exp_f32 v{X2}, v{X2}")
    a(f"v_mul_f32 v{vTA}, v{X1}, v{X0}")
    a(f"v_fmac_f32 v{vTA}, v{X3}, v{X2}")
    a(f"v_rcp_f32 v{vTA}, v{vTA}")
    a(f"v_mul_f32 v{X0}, v{X0}, v{vTA}")
    a(f"v_mul_f32 v{X2}, v{X2}, v{vTA}")
    for r in range(32): a(f"v_mul_f32 v{O+r}, v{O+r}, v{X0}")
    a("s_waitcnt lgkmcnt(0)")
    for r in range(32): a(f"v_fmac_f32 v{O+r}, v{O+32+r}, v{X2}")
    store_ctx((0,), sCT2, lambda qi: O)
    if STAMP:
        a("s_waitcnt vmcnt(0)")
        sp.mark("end")
        a("s_waitcnt lgkmcnt(0)")
        sp.flush(100, sW, 0, slot=0); sp.flush(100, sW, 4, slot=1)
    a.label("M_END")
    a("s_endpgm")
    for hd in handlers:
        if hd[0] == "ev":
            _, name, Sc = hd
            a.label(name + "_EV")
            a(f"s_sub_u32 s{sT}, s{sS}, s{sN1}")
            a(f"s_cmp_lg_u32 s{sT}, 2")
            a(f"s_cbranch_scc1 {name}_E1")
            xreduce("v_add_f32", vL1, vX0)
            xreduce("v_add_f32", vL1 + 1, vX0 + 1)
            a(f"v_rcp_f32 v{vL1}, v{vL1}")
            a(f"v_rcp_f32 v{vL1+1}, v{vL1+1}")
            for r in range(64): a(f"v_mul_f32 v{O+r}, v{O+r}, v{vL1+(r>>5)}")
            store_ctx((0, 1), sCT1, lambda qi: O + 32 * qi)
            for r in range(64): a(f"v_mov_b32 v{O+r}, 0")
            a.label(name + "_E1")
            a(f"s_cmp_lg_u32 s{sT}, 0")
            a(f"s_cbranch_scc1 {name}_E2")
            for t in range(8): a(f"ds_read_b128 {vr(Q+4*t,4)}, v{vQ2} offset:{32768+1024*t}")
            for r in range(8): a(f"v_mov_b32 v{NEGM+r}, 0")
            a("s_waitcnt lgkmcnt(0)")
            a.label(name + "_E2")
            a(f"s_sub_u32 s{sT2}, s{sS}, s{sMST}")
            a(f"s_sub_u32 s{sT2}, s{sT2}, 1")
            a(f"s_cmp_ge_u32 s{sT2}, 4")
            a(f"s_cbranch_scc1 {name}_E3")
            a(f"s_lshl_b32 s{sT2}, s{sT2}, 5")
            a(f"v_subrev_u32 v{vX0}, s{sT2}, v{vD0}")
            for qi in range(2):
                for kt in range(2):
                    for e in range(4):
                        a(f"v_cmp_le_i32 s[{sMK+2*e}:{sMK+2*e+1}], {16*kt+e-16*qi}, v{vX0}")
                    for e in range(4):
                        r = Sc + 8 * qi + 4 * kt + e
                        a(f"v_cndmask_b32 v{r}, v{vNINF}, v{r}, s[{sMK+2*e}:{sMK+2*e+1}]")
            a.label(name + "_E3")
            a(f"s_cmp_eq_u32 s{sT}, 1")
            a(f"s_cbranch_scc1 {name}_E4")
            a(f"s_cmp_lg_u32 s{sS}, 1")
            a(f"s_cbranch_scc1 {name}_GO")
            a.label(name + "_E4")
            for qi in range(2):
                a(f"v_mov_b32 v{vL1+qi}, v{vL+qi}")
                a(f"v_mov_b32 v{vL+qi}, 0")
                rowmax(vX0 + qi, vX0 + 2 + qi, Sc + 8 * qi)
            for r in range(8): a(f"v_sub_f32 v{NEGM+r}, v{NEGM+r}, v{vX0+(r>>2)}")
            for r in range(16): a(f"v_sub_f32 v{Sc+r}, v{Sc+r}, v{vX0+(r>>3)}")
            a(f"s_branch {name}_GO")
        else:
            _, name, Sc, Sn, Pw = hd
            a.label(name + "_SLOW")
            for qi in range(2):
                rowmax(vX0 + qi, vX0 + 2 + qi, Sc + 8 * qi)
                a(f"v_max_f32 v{vX0+qi}, 0, v{vX0+qi}")
                a(f"v_exp_f32 v{vX0+2+qi}, -v{vX0+qi}")
            for r in range(8): a(f"v_sub_f32 v{NEGM+r}, v{NEGM+r}, v{vX0+(r>>2)}")
            for r in range(16): a(f"v_sub_f32 v{Sn+r}, v{Sn+r}, v{vX0+(r>>3)}")
            for r in range(16): a(f"v_sub_f32 v{Sc+r}, v{Sc+r}, v{vX0+(r>>3)}")
            for r in range(64): a(f"v_mul_f32 v{O+r}, v{O+r}, v{vX0+2+(r>>5)}")
            for qi in range(2): a(f"v_mul_f32 v{vL+qi}, v{vL+qi}, v{vX0+2+qi}")
            for c, ops in sm_ops(Sc, Pw):
                for x in ops: a(x)
            a(f"s_branch {name}_RET")
    return dict(name="main_kernel", grid=256, block=512, lds=163840, vgpr=256)

import gen as G1
G1.STAMP = False
import gen_tail
KERNELS = {"main": gen_main, "conv": G1.gen_conv, "oproj": G1.gen_oproj, "tail": lambda a: gen_tail.gen_tail(a, {k: v for k, v in globals().items() if not k.startswith("__")})}

def build(names, path, verbose=False):
    hdr = open("gated_mix__ssm_conv_h3__compressed_kv_cla__prompt.s.ref").read().split("\n")
    hdr = [l for l in hdr if l.startswith(";") and "@launch" not in l and "Override" not in l and "grid=ceil" not in l]
    codes, descs, launches = [], [], []
    for n in names:
        a = Asm()
        info = KERNELS[n](a)
        k = fix_hazards(a.lines, verbose)
        print(f"{n}: {len(a.lines)} lines, {k} nops inserted")
        c, d = kernel_text(info["name"], a.lines, info["vgpr"], extra="  .amdhsa_float_denorm_mode_32 3\n")
        codes.append(c); descs.append(d)
        launches.append(f"; @launch kernel={info['name']} grid=({info['grid']},1,1) block=({info['block']},1,1) lds={info['lds']}")
    txt = "\n".join(hdr + launches) + '\n.amdgcn_target "amdgcn-amd-amdhsa--gfx950"\n.text\n' + "\n".join(codes) + \
          '\n.section .rodata,"a"\n' + "\n".join(descs)
    open(path, "w").write(txt)

if __name__ == "__main__":
    names = sys.argv[2].split(",") if len(sys.argv) > 2 else list(KERNELS)
    build(names, sys.argv[1] if len(sys.argv) > 1 else "k2.s", verbose="-v" in sys.argv)
```

```python
import sys, struct
from asmlib import *
from sched import *

MB = 1 << 20
WS_KF, WS_VF, WS_CTX, WS_WOT, WS_KVT, WS_Y2T, WS_G = 0, 16 * MB, 32 * MB, 48 * MB, 56 * MB, 60 * MB, 63 * MB
KA = dict(A_q=0, A_k=8, A_v=16, shift=24, ssm_k=32, ssm_D=40, B_x=48, c_kv=56, w_q=64, w_uk=72, w_uv=80, w_o=88,
          gate=96, out=104, dbg=112, ws=120)
MFMA32 = "v_mfma_f32_32x32x16_bf16"
MFMA16 = "v_mfma_f32_16x16x32_bf16"
STAMP = "-stamp" in sys.argv
OPT = {x[2:].split("=")[0]: (x.split("=")[1] if "=" in x else "1") for x in sys.argv if x.startswith("--")}
WS_FLG = 63 * MB + 524288
WS_FL2 = 63 * MB + 655360
OOB = "0x80000000"
def f32hex(x): return "0x%08x" % struct.unpack("<I", struct.pack("<f", x))[0]

def srd(a, d, lo, hi, size, add=0):
    if add:
        a(f"s_add_u32 s{d}, s{lo}, {add}")
        a(f"s_addc_u32 s{d+1}, s{hi}, 0")
    else:
        a(f"s_mov_b32 s{d}, s{lo}")
        a(f"s_mov_b32 s{d+1}, s{hi}")
    a(f"s_mov_b32 s{d+2}, {size}")
    a(f"s_mov_b32 s{d+3}, 0x00020000")
def S4(d): return f"s[{d}:{d+3}]"

class Stamps:
    def __init__(self, a, base=70, region=0):
        self.a, self.base, self.n, self.region = a, base, 0, region
    def mark(self, name=""):
        if not STAMP: return
        if name not in OPT.get("marks", "start,kv,q,s1,end,t0,t1,t2").split(","): return
        assert self.base + 2 * self.n + 3 <= 101
        self.a(f"s_memtime s[{self.base+2*self.n}:{self.base+2*self.n+1}]")
        self.a(f"s_memrealtime s[{self.base+2*self.n+2}:{self.base+2*self.n+3}]")
        self.n += 2
    def flush(self, wg, sW, wave, slot=0):
        if not STAMP: return
        a = self.a
        lab = a.uid("STK")
        a(f"s_cmp_lg_u32 s{sW}, {wave}")
        a(f"s_cbranch_scc1 {lab}")
        a(f"s_load_dwordx2 s[60:61], s[0:1], {KA['ws']}")
        a("s_waitcnt lgkmcnt(0)")
        a(f"s_add_u32 s60, s60, {128*MB + self.region*65536 + slot*64}")
        a("s_addc_u32 s61, s61, 0")
        a("s_mov_b32 s62, 65536")
        a("s_mov_b32 s63, 0x00020000")
        a("s_lshl_b32 s3, s2, 7")
        a("v_mov_b32 v1, s3")
        for i in range(self.n):
            a(f"v_mov_b32 v2, s{self.base+2*i}")
            a(f"buffer_store_dword v2, v1, s[60:63], 0 offen offset:{4*i}")
        a("s_getreg_b32 s3, hwreg(HW_REG_XCC_ID)")
        a("v_mov_b32 v2, s3")
        a(f"buffer_store_dword v2, v1, s[60:63], 0 offen offset:60")
        a("s_waitcnt vmcnt(0)")
        a.label(lab)

def rnd_pair(d, lo, hi, olo, ohi):
    return [f"v_cvt_pk_bf16_f32 v{d}, v{lo}, v{hi}", f"v_lshlrev_b32 v{olo}, 16, v{d}", f"v_and_b32 v{ohi}, 0xffff0000, v{d}"]

def interleave(a, mfmas, fillers, ngaps):
    tot = sum(c for c, _ in fillers)
    fi, acc = 0, 0.0
    for g, (pre, m, post) in enumerate(mfmas):
        for x in pre: a(x)
        a(m)
        for x in post: a(x)
        lim = tot * min(1.0, (g + 1) / ngaps) if ngaps else tot
        while fi < len(fillers) and acc + fillers[fi][0] * 0.5 <= lim:
            acc += fillers[fi][0]
            for x in fillers[fi][1]: a(x)
            fi += 1
    while fi < len(fillers):
        for x in fillers[fi][1]: a(x)
        fi += 1

def gen_main(a):
    S_C, S_W, S_WS, S_V, S_X, S_WQ, S_DBG = 4, 8, 12, 16, 20, 24, 28
    (sW, sH, sP, sG, sRB, sT, sT2, sCO, sWO, sM0C, sM0W, sOB, sROW, sXO, sQWO, sN1, sS, sMST, sTHR, sM0K, sM0V,
     sBASE, sCT1, sCT2, sWRAP) = range(32, 57)
    sHIST = [57, 58, 59, 60]
    sEV = 62
    PT = 64
    S_T = 76
    sMK = 4
    vL16, vCD, vWD, vAC, vAW, vXD, vQW, vWOT, vKVT = 1, 2, 6, 10, 12, 16, 20, 22, 23
    WFR, CFR, ACC = [32, 48], 64, 128
    sp = Stamps(a, base=80)
    vm = VM()
    a("s_cmp_ge_u32 s2, 256")
    a("s_cbranch_scc1 M_END")
    sp.mark("start")
    a(f"s_load_dwordx2 s[44:45], s[0:1], {KA['c_kv']}")
    a(f"s_load_dwordx4 s[48:51], s[0:1], {KA['w_uk']}")
    a("v_lshrrev_b32 v1, 6, v0")
    a("v_mov_b32 v31, v0")
    a("v_and_b32 v0, 63, v0")
    a(f"v_readfirstlane_b32 s{sW}, v1")
    a(f"s_and_b32 s{sH}, s2, 7")
    a("s_lshr_b32 s3, s2, 6")
    a("s_lshl_b32 s3, s3, 3")
    a(f"s_add_u32 s{sH}, s{sH}, s3")
    a(f"s_bfe_u32 s{sP}, s2, 0x30003")
    a(f"s_lshr_b32 s{sG}, s{sW}, 2")
    a("v_lshrrev_b32 v24, 3, v0")
    a("v_and_b32 v25, 7, v0")
    a("v_lshrrev_b32 v26, 4, v0")
    a("v_xor_b32 v25, v25, v26")
    a("v_lshlrev_b32 v25, 4, v25")
    a("v_xor_b32 v27, 64, v25")
    a(f"v_lshl_add_u32 v{vCD}, v24, 10, v25")
    a(f"v_lshl_add_u32 v{vCD+1}, v24, 10, v27")
    a(f"v_add_u32 v{vCD+1}, {8192-1024}, v{vCD+1}")
    a(f"v_add_u32 v{vCD+2}, {2*(8192-1024)}, v{vCD}")
    a(f"v_add_u32 v{vCD+3}, {2*(8192-1024)}, v{vCD+1}")
    a("v_and_b32 v28, 15, v0")
    a("v_lshlrev_b32 v29, 1, v26")
    a("v_xor_b32 v28, v28, v29")
    a("v_lshlrev_b32 v28, 4, v28")
    a(f"v_lshl_add_u32 v{vWD}, v26, 13, v28")
    a(f"v_add_u32 v{vWD+1}, {4*8192-1024}, v{vWD}")
    a(f"v_xor_b32 v{vWD+2}, 128, v{vWD}")
    a(f"v_add_u32 v{vWD+2}, {2*(4*8192-1024)}, v{vWD+2}")
    a(f"v_add_u32 v{vWD+3}, {4*8192-1024}, v{vWD+2}")
    a(f"s_and_b32 s{sRB}, s{sW}, 3")
    a(f"s_lshl_b32 s{sCO}, s{sP}, 18")
    a(f"s_lshl_b32 s{sT}, s{sW}, 15")
    a(f"s_add_u32 s{sCO}, s{sCO}, s{sT}")
    a(f"s_lshl_b32 s{sWO}, s{sRB}, 17")
    a(f"s_lshl_b32 s{sT}, s{sH}, 8")
    a(f"s_add_u32 s{sWO}, s{sWO}, s{sT}")
    a(f"s_lshl_b32 s{sM0C}, s{sW}, 12")
    a(f"s_add_u32 s{sM0W}, s{sM0C}, 65536")
    a("s_waitcnt lgkmcnt(0)")
    srd(a, S_C, 44, 45, 2 * MB)
    a(f"s_cmp_eq_u32 s{sG}, 0")
    a(f"s_cselect_b32 s{S_W}, s48, s50")
    a(f"s_cselect_b32 s{S_W+1}, s49, s51")
    a(f"s_mov_b32 s{S_W+2}, {4*MB}")
    a(f"s_mov_b32 s{S_W+3}, 0x00020000")
    def kv_dma(st):
        buf = (st & 1) * 32768
        tg = ("kv", st)
        out = [[f"s_add_u32 m0, s{sM0C}, {buf}", f"s_add_u32 s{sT}, s{sCO}, {st*128}",
                (f"buffer_load_dwordx4 v{vCD}, {S4(S_C)}, s{sT} offen lds", tg)]]
        for i in range(1, 4): out.append([(f"buffer_load_dwordx4 v{vCD+i}, {S4(S_C)}, s{sT} offen offset:{i*1024} lds", tg)])
        out.append([f"s_add_u32 m0, s{sM0W}, {buf}", f"s_add_u32 s{sT}, s{sWO}, {st*64*8192}",
                    (f"buffer_load_dwordx4 v{vWD}, {S4(S_W)}, s{sT} offen lds", tg)])
        for i in range(1, 4): out.append([(f"buffer_load_dwordx4 v{vWD+i}, {S4(S_W)}, s{sT} offen offset:{i*1024} lds", tg)])
        return out
    def emit(items):
        for it in items:
            for x in it:
                if isinstance(x, tuple): a(x[0]); vm.add(x[1])
                else: a(x)
    emit(kv_dma(0))
    a(f"s_load_dwordx2 s[44:45], s[0:1], {KA['A_q']}")
    a(f"s_load_dwordx2 s[46:47], s[0:1], {KA['w_q']}")
    a(f"s_load_dwordx4 s[48:51], s[0:1], {KA['dbg']}")
    a(f"s_load_dwordx4 s[{PT}:{PT+3}], s[0:1], {KA['A_k']}")
    a(f"s_load_dwordx2 s[{PT+4}:{PT+5}], s[0:1], {KA['shift']}")
    a(f"s_load_dwordx4 s[{PT+8}:{PT+11}], s[0:1], {KA['w_o']}")
    a(f"v_lshlrev_b32 v{vL16}, 4, v0")
    a("v_mul_u32_u24 v28, 1280, v24")
    a(f"v_add_u32 v{vXD}, v28, v25")
    a(f"v_add_u32 v{vXD+1}, v28, v27")
    a(f"v_add_u32 v{vXD+1}, {8*1280-1024}, v{vXD+1}")
    a(f"v_add_u32 v{vXD+2}, {2*(8*1280-1024)}, v{vXD}")
    a(f"v_add_u32 v{vXD+3}, {2*(8*1280-1024)}, v{vXD+1}")
    a(f"s_and_b32 s3, s{sW}, 1")
    a("s_lshl_b32 s3, s3, 7")
    a(f"v_xor_b32 v{vQW}, s3, v{vWD}")
    a(f"v_add_u32 v{vQW+1}, {4*8192-1024}, v{vQW}")
    emit(kv_dma(1))
    vPF, vPFW, vSC = 116, 115, 117
    if 'nopf' not in OPT:
        a(f"v_lshlrev_b32 v{vPF}, 7, v0")
        a("v_lshrrev_b32 v24, 1, v0")
        a("v_and_b32 v25, 1, v0")
        a("v_lshlrev_b32 v25, 7, v25")
        a(f"v_lshl_add_u32 v{vPFW}, v24, 13, v25")
        a("s_lshl_b32 s3, s2, 13")
        a(f"s_lshl_b32 s{sT}, s{sW}, 10")
        a(f"s_add_u32 s3, s3, s{sT}")
        a("s_mov_b64 exec, 0xff")
        emit([[(f"buffer_load_dword v{vSC}, v{vPF}, {S4(S_C)}, s3 offen sc1", "pf")]])
        a(f"s_lshl_b32 s3, s{sP}, 19")
        a(f"s_add_u32 s3, s3, s{sWO}")
        a("s_mov_b32 exec_lo, -1")
        emit([[(f"buffer_load_dword v{vSC}, v{vPFW}, {S4(S_W)}, s3 offen sc1", "pf")]])
        a("s_mov_b64 exec, -1")
    def frag_addrs(vR, rowoff_sgpr, vWa, nt_sgpr, wbase_sgpr):
        a("v_and_b32 v24, 15, v0")
        a("v_lshrrev_b32 v25, 4, v0")
        a("v_bfe_u32 v26, v0, 1, 3")
        a("v_xor_b32 v26, v26, v25")
        a("v_lshlrev_b32 v26, 4, v26")
        a("v_lshl_add_u32 v26, v24, 7, v26")
        a(f"v_add_u32 v{vR}, s{rowoff_sgpr}, v26")
        a(f"v_xor_b32 v{vR+1}, 64, v{vR}")
        a("v_bfe_u32 v24, v0, 2, 2")
        a("v_lshl_add_u32 v26, v25, 3, v24")
        a("v_lshlrev_b32 v26, 8, v26")
        a("v_and_b32 v27, 3, v0")
        a("v_lshl_add_u32 v26, v27, 3, v26")
        a(f"v_add_u32 v26, s{wbase_sgpr}, v26")
        a("v_and_b32 v25, 1, v25")
        a("v_lshl_add_u32 v24, v25, 2, v24")
        a(f"v_xor_b32 v24, s{nt_sgpr}, v24")
        for nt in range(4):
            a(f"v_xor_b32 v25, {nt}, v24")
            a(f"v_lshl_add_u32 v{vWa+nt}, v25, 5, v26")
    a(f"s_and_b32 s{sT}, s{sW}, 1")
    a(f"s_lshl_b32 s{sT}, s{sT}, 14")
    a(f"s_and_b32 s{sT2}, s{sW}, 2")
    a(f"s_lshl_b32 s{sT2}, s{sT2}, 1")
    a(f"s_lshl_b32 s3, s{sG}, 14")
    a("s_add_u32 s3, s3, 65536")
    frag_addrs(vAC, sT, vAW, sT2, 3)
    WOB = 131072
    a("v_lshrrev_b32 v24, 2, v0")
    a("v_mul_u32_u24 v24, 672, v24")
    a("v_and_b32 v25, 3, v0")
    a("v_lshl_add_u32 v24, v25, 3, v24")
    a(f"s_lshl_b32 s{sT}, s{sW}, 5")
    a(f"s_add_u32 s{sT}, s{sT}, {WOB}")
    a(f"v_add_u32 v{vWOT}, s{sT}, v24")
    a("v_mul_u32_u24 v25, 1639, v31")
    a("v_lshrrev_b32 v25, 16, v25")
    a("v_mul_u32_u24 v26, 40, v25")
    a("v_sub_u32 v26, v31, v26")
    a(f"s_lshr_b32 s{sT}, s2, 3")
    a(f"s_lshl_b32 s{sT}, s{sT}, 6")
    a(f"v_lshl_add_u32 v25, v25, 3, s{sT}")
    a(f"s_and_b32 s{sT2}, s2, 7")
    a(f"s_mul_i32 s{sT2}, s{sT2}, 40")
    a(f"v_add_u32 v26, s{sT2}, v26")
    a("v_mul_u32_u24 v27, 1280, v25")
    a("v_lshl_add_u32 v27, v26, 2, v27")
    a("v_add_u32 v28, 5120, v27")
    a("v_subrev_u32 v29, 3840, v27")
    a(f"v_mov_b32 v30, {OOB}")
    a("v_cmp_eq_u32 vcc, 0, v25")
    a(f"v_mul_u32_u24 v{vKVT}, 10240, v26")
    a("v_lshrrev_b32 v24, 5, v25")
    a("v_cndmask_b32 v29, v29, v30, vcc")
    a("v_cmp_gt_u32 vcc, 320, v31")
    a("v_mul_u32_u24 v24, 80, v24")
    a(f"v_add_u32 v{vKVT}, v{vKVT}, v24")
    a("v_and_b32 v24, 31, v25")
    a(f"v_lshl_add_u32 v{vKVT}, v24, 1, v{vKVT}")
    a("v_cndmask_b32 v27, v30, v27, vcc")
    a("v_cndmask_b32 v28, v30, v28, vcc")
    a("v_cndmask_b32 v29, v30, v29, vcc")
    a(f"v_cndmask_b32 v{vKVT}, v30, v{vKVT}, vcc")
    a("v_lshlrev_b32 v26, 4, v26")
    a("v_mul_u32_u24 v24, 20, v0")
    a("s_waitcnt lgkmcnt(0)")
    srd(a, S_WS, 50, 51, 64 * MB)
    srd(a, S_V, 50, 51, 16 * MB, WS_VF)
    srd(a, S_X, 44, 45, 2621440)
    srd(a, S_WQ, 46, 47, 5242880)
    srd(a, S_DBG, 48, 49, 256)
    a(f"s_sub_u32 s{sT}, 15, s{sP}")
    a(f"s_lshl_b32 s{sT2}, s{sRB}, 5")
    a(f"s_lshl_b32 s{sCT2}, s{sT}, 7")
    a(f"s_add_u32 s{sCT2}, s{sCT2}, s{sT2}")
    a(f"s_lshl_b32 s{sCT1}, s{sP}, 7")
    a(f"s_add_u32 s{sCT1}, s{sCT1}, s{sT2}")
    a(f"s_cmp_eq_u32 s{sG}, 0")
    a(f"s_cselect_b32 s{sROW}, s{sCT1}, s{sCT2}")
    a(f"s_mul_i32 s{sXO}, s{sROW}, 1280")
    a(f"s_lshl_b32 s{sQWO}, s{sW}, 16")
    a(f"s_lshl_b32 s{sT}, s{sH}, 8")
    a(f"s_add_u32 s{sQWO}, s{sQWO}, s{sT}")
    a(f"s_lshl_b32 s{sT}, s{sH}, 12")
    a(f"s_add_u32 s{sT}, s{sT}, {WS_CTX}")
    for c in (sCT1, sCT2):
        a(f"s_lshl_b32 s{c}, s{c}, 13")
        a(f"s_add_u32 s{c}, s{c}, s{sT}")
    a(f"s_lshl_b32 s{sOB}, s{sH}, 6")
    a(f"s_lshl_b32 s{sT}, s{sP}, 3")
    a(f"s_add_u32 s{sOB}, s{sOB}, s{sT}")
    a(f"s_and_b32 s{sT}, s{sW}, 1")
    a(f"s_lshl_b32 s{sT}, s{sT}, 2")
    a(f"s_add_u32 s{sOB}, s{sOB}, s{sT}")
    a(f"s_lshl_b32 s{sOB}, s{sOB}, 13")
    a(f"s_bfe_u32 s{sT}, s{sW}, 0x10001")
    a(f"s_add_u32 s{sT2}, s{sG}, 11")
    a(f"s_lshl_b32 s{sT}, s{sT}, s{sT2}")
    a(f"s_add_u32 s{sOB}, s{sOB}, s{sT}")
    a(f"s_lshl_b32 s{sT}, s{sG}, 24")
    a(f"s_add_u32 s{sOB}, s{sOB}, s{sT}")
    a(f"s_lshl_b32 s{sN1}, s{sP}, 2")
    a(f"s_add_u32 s{sN1}, s{sN1}, 4")
    a(f"s_lshl_b32 s{sHIST[0]}, s{sH}, 19")
    a(f"s_lshl_b32 s{sT}, s{sRB}, 11")
    a(f"s_add_u32 s{sHIST[0]}, s{sHIST[0]}, s{sT}")
    a(f"s_lshl_b32 s{sM0K}, s{sW}, 11")
    a(f"s_add_u32 s{sM0V}, s{sM0K}, 65536")
    a(f"s_sub_u32 s{sT2}, s{sN1}, 4")
    a(f"s_sub_u32 s{sWRAP}, s{sN1}, 2")
    a(f"s_sub_u32 s{sWRAP}, s{sWRAP}, s{sG}")
    a(f"s_mov_b32 s{sBASE}, 16384")
    a(f"s_cmp_eq_u32 s{sG}, 0")
    a(f"s_cselect_b32 s{sMST}, s{sT2}, 99")
    a(f"s_cselect_b32 s{sN1}, s{sN1}, 100")
    a(f"s_add_u32 s{sHIST[1]}, s{sHIST[0]}, 8192")
    a(f"s_add_u32 s{sHIST[2]}, s{sHIST[0]}, 16384")
    a(f"s_mov_b64 s[{sEV}:{sEV+1}], 63")
    a(f"s_add_u32 s{sT}, s{sMST}, 1")
    a(f"s_lshl_b64 s[{sEV}:{sEV+1}], s[{sEV}:{sEV+1}], s{sT}")
    a(f"s_or_b32 s{sEV}, s{sEV}, 2")
    a(f"s_or_b32 s{sEV+1}, s{sEV+1}, 6")
    a(f"s_mov_b32 s{sTHR}, {f32hex(4096.0)}")
    a(f"s_mov_b32 s{S_T+3}, 0x00020000")

    XB = [0, 32768, 131072]
    def q_dma_x(k):
        tg = ("q", k)
        out = [[f"s_add_u32 m0, s{sM0C}, {XB[(k+2)%3]}", f"s_add_u32 s{sT}, s{sXO}, {k*128}",
                (f"buffer_load_dwordx4 v{vXD}, {S4(S_X)}, s{sT} offen lds", tg)]]
        for i in range(1, 4): out.append([(f"buffer_load_dwordx4 v{vXD+i}, {S4(S_X)}, s{sT} offen offset:{i*1024} lds", tg)])
        return out
    def q_dma_w(k):
        tg = ("q", k)
        return [[f"s_add_u32 m0, s{sM0V}, {(k%3)*16384}", f"s_add_u32 s{sT}, s{sQWO}, {k*64*8192}",
                 (f"buffer_load_dwordx4 v{vQW}, {S4(S_WQ)}, s{sT} offen lds", tg)],
                [(f"buffer_load_dwordx4 v{vQW+1}, {S4(S_WQ)}, s{sT} offen offset:1024 lds", tg)]]
    GX, GXT, GWT, GW, KR, VR, SH = 80, 84, 85, 86, 90, 101, 110
    def tsrd(lo, size): return [f"s_mov_b32 s{S_T}, s{lo}", f"s_mov_b32 s{S_T+1}, s{lo+1}", f"s_mov_b32 s{S_T+2}, {size}"]
    def side_loads():
        L = []
        it = tsrd(PT + 8, 5242880) + [f"s_lshr_b32 s3, s2, 1", "s_lshl_b32 s3, s3, 5", f"s_lshl_b32 s{sT2}, s{sW}, 2",
              f"s_add_u32 s3, s3, s{sT2}", "s_mul_i32 s3, s3, 1280", f"s_and_b32 s{sS}, s2, 1", f"s_mul_i32 s{sS}, s{sS}, 640",
              f"s_add_u32 s3, s3, s{sS}", f"s_mul_i32 s{sT2}, s{sT2}, 672", "s_mov_b32 exec_hi, 0xff"]
        for i in range(4):
            it += [f"s_add_u32 m0, s{sT2}, {WOB+672*i}", f"s_add_u32 s{sS}, s3, {1280*i}",
                   (f"buffer_load_dwordx4 v{vL16}, {S4(S_T)}, s{sS} offen lds", "prA")]
        it += ["s_mov_b32 exec_hi, -1"]
        L.append(it)
        L.append(["s_lshl_b32 s3, s2, 3", f"s_add_u32 s3, s3, s{sW}", "s_mul_i32 s3, s3, 1280",
                  (f"buffer_load_dwordx4 {vr(GX,4)}, v24, {S4(S_X)}, s3 offen", "prA"),
                  (f"buffer_load_dword v{GXT}, v24, {S4(S_X)}, s3 offen offset:16", "prA")])
        L.append(tsrd(PT + 10, 1280) + [(f"buffer_load_dwordx4 {vr(GW,4)}, v24, {S4(S_T)}, 0 offen", "prA"),
                  (f"buffer_load_dword v{GWT}, v24, {S4(S_T)}, 0 offen offset:16", "prA")])
        L.append(tsrd(PT + 4, 5120) + [(f"buffer_load_dwordx4 {vr(SH,4)}, v26, {S4(S_T)}, 0 offen", "pr")])
        for j in range(11):
            o = f"v29, {S4(S_T)}, 0 offen offset:{1280*j}" if j < 3 else f"v{27 if j < 7 else 28}, {S4(S_T)}, 0 offen offset:{1280*((j-3)%4)}"
            L.append((tsrd(PT, 2621440) if j == 0 else []) + [(f"buffer_load_dword v{KR+j}, {o}", "pr")])
        for j in range(8):
            L.append((tsrd(PT + 2, 2621440) if j == 0 else []) +
                     [(f"buffer_load_dword v{VR+j}, v{27 if j < 4 else 28}, {S4(S_T)}, 0 offen offset:{1280*(j%4)}", "pr")])
        if 'nopf' not in OPT:
            L.insert(0, [f"s_lshl_b32 s3, s{sP}, 3", f"s_add_u32 s3, s3, s{sW}", f"s_mul_i32 s3, s3, {10*8192}", f"s_lshl_b32 s{sT2}, s{sH}, 8",
                      f"s_add_u32 s3, s3, s{sT2}", "s_mov_b64 exec, 0xfffff",
                      (f"buffer_load_dword v{vPFW}, v{vPFW}, {S4(S_WQ)}, s3 offen sc1", "pfq"), "s_mov_b64 exec, -1"])
        return L

    def side_jobs():
        L = []
        t0, t1, t2, t3, t4, t5 = 24, 25, 26, 27, 28, 29
        for i in range(3):
            L.append([f"ds_read_b64_tr_b16 v[{116+4*i}:{117+4*i}], v{vWOT} offset:{256*i}"])
            L.append([f"ds_read_b64_tr_b16 v[{118+4*i}:{119+4*i}], v{vWOT} offset:{256*i+16*672}"])
        L.append([f"v_mov_b32 v{t0}, 0"])
        for x, w in [(GX + i, GW + i) for i in range(4)] + [(GXT, GWT)]:
            L += [[s] for s in [f"v_lshlrev_b32 v{t1}, 16, v{x}", f"v_and_b32 v{t2}, 0xffff0000, v{x}",
                                f"v_lshlrev_b32 v{t3}, 16, v{w}", f"v_and_b32 v{t4}, 0xffff0000, v{w}",
                                f"v_fmac_f32 v{t0}, v{t1}, v{t3}", f"v_fmac_f32 v{t0}, v{t2}, v{t4}"]]
        for m in ("row_shr:1", "row_shr:2", "row_shr:4", "row_shr:8"):
            L.append([f"v_add_f32_dpp v{t0}, v{t0}, v{t0} {m} row_mask:0xf bank_mask:0xf bound_ctrl:0"])
        L.append([f"v_add_f32_dpp v{t0}, v{t0}, v{t0} row_bcast:15 row_mask:0xa bank_mask:0xf"])
        L.append([f"v_add_f32_dpp v{t0}, v{t0}, v{t0} row_bcast:31 row_mask:0xc bank_mask:0xf"])
        L += [[s] for s in rnd_pair(t1, t0, t0, t0, t2)[:2] +
              [f"v_mul_f32 v{t0}, 0xbfb8aa3b, v{t0}", f"v_exp_f32 v{t0}, v{t0}", f"v_cmp_eq_u32 vcc, 63, v0",
               f"v_add_f32 v{t0}, 1.0, v{t0}", f"v_rcp_f32 v{t0}, v{t0}", f"v_cndmask_b32 v{t2}, v30, 0, vcc"] +
              rnd_pair(t1, t0, t0, t0, t3)[:2]]
        L.append(["s_lshl_b32 s3, s2, 3", f"s_add_u32 s3, s3, s{sW}", "s_lshl_b32 s3, s3, 2", f"s_add_u32 s3, s3, {WS_G}",
                  (f"buffer_store_dword v{t0}, v{t2}, {S4(S_WS)}, s3 offen", "pr2")])
        L.append(["s_lshr_b32 s3, s2, 5", "s_lshl_b32 s3, s3, 12", f"s_and_b32 s{sT2}, s2, 31", f"s_lshl_b32 s{sT2}, s{sT2}, 2",
                  f"s_add_u32 s3, s3, s{sT2}", f"s_add_u32 s3, s3, {WS_FLG}", f"v_mov_b32 v{t1}, 0",
                  (f"buffer_store_dword v{t1}, v{t2}, {S4(S_WS)}, s3 offen", "pr2")])
        L.append(["s_and_b32 s3, s2, 1", "s_mul_i32 s3, s3, 20", f"s_add_u32 s3, s3, s{sW}", "s_lshl_b32 s3, s3, 17",
                  f"s_lshr_b32 s{sT2}, s2, 1", f"s_lshl_b32 s{sT2}, s{sT2}, 10", f"s_add_u32 s3, s3, s{sT2}",
                  f"s_add_u32 s3, s3, {WS_WOT}", (f"buffer_store_dwordx4 v[116:119], v{vL16}, {S4(S_WS)}, s3 offen", "pr2")])
        L.append([f"s_add_u32 s3, s3, {8<<17}", (f"buffer_store_dwordx4 v[120:123], v{vL16}, {S4(S_WS)}, s3 offen", "pr2")])
        L.append([f"s_add_u32 s3, s3, {8<<17}", f"s_cmp_ge_u32 s{sW}, 4", f"s_cselect_b32 s3, {OOB}, s3",
                  (f"buffer_store_dwordx4 v[124:127], v{vL16}, {S4(S_WS)}, s3 offen", "pr2")])
        W = 80
        for c in range(2):
            for q in range(2):
                L.append([f"v_lshlrev_b32 v{W+4*c+2*q}, 16, v{SH+2*c+q}"])
                L.append([f"v_and_b32 v{W+4*c+2*q+1}, 0xffff0000, v{SH+2*c+q}"])
        KL, KH = [110, 111, 112, 113], [88, 89, 109, 114]
        def unp(j): return [f"v_lshlrev_b32 v{KL[j%4]}, 16, v{KR+j}", f"v_and_b32 v{KH[j%4]}, 0xffff0000, v{KR+j}"]
        for j in range(3): L += [[s] for s in unp(j)]
        for s in range(8):
            ops = unp(s + 3)
            ops += [f"v_mul_f32 v{t0}, v{KL[s%4]}, v{W+3}", f"v_mul_f32 v{t1}, v{KH[s%4]}, v{W+7}"]
            for j in (2, 1, 0):
                ops += [f"v_fmac_f32 v{t0}, v{KL[(s+3-j)%4]}, v{W+j}", f"v_fmac_f32 v{t1}, v{KH[(s+3-j)%4]}, v{W+4+j}"]
            ops += [f"v_lshlrev_b32 v{t3}, 16, v{VR+s}", f"v_and_b32 v{t4}, 0xffff0000, v{VR+s}"]
            if s % 2 == 0:
                ops += [f"v_mul_f32 v118, v{t0}, v{t3}", f"v_mul_f32 v119, v{t1}, v{t4}"]
            else:
                ops += [f"v_mul_f32 v{t0}, v{t0}, v{t3}", f"v_mul_f32 v{t1}, v{t1}, v{t4}",
                        f"v_cvt_pk_bf16_f32 v{120+s//2}, v118, v{t0}", f"v_cvt_pk_bf16_f32 v{124+s//2}, v119, v{t1}"]
            L += [[x] for x in ops]
        L.append([f"s_mov_b32 s3, {WS_KVT}", (f"buffer_store_dwordx4 v[120:123], v{vKVT}, {S4(S_WS)}, s3 offen", "pr2")])
        L.append([f"s_mov_b32 s3, {WS_KVT+5120}", (f"buffer_store_dwordx4 v[124:127], v{vKVT}, {S4(S_WS)}, s3 offen", "pr2")])
        return L

    def kdma(e, tg):
        return [[f"s_add_u32 m0, s{sM0K}, {(e & 3) * 16384}", "s_nop 0",
                 (f"buffer_load_dwordx4 v{vL16}, {S4(S_WS)}, s{sHIST[e&3]} offen sc1 lds", tg)],
                [(f"buffer_load_dwordx4 v{vL16}, {S4(S_WS)}, s{sHIST[e&3]} offen offset:1024 sc1 lds", tg)]]
    vPOLL, vZERO, vFL = 24, 25, 26
    vCL = 31
    def only(wave, body, extra=None):
        lab = a.uid("ONLY")
        a(f"s_cmp_lg_u32 s{sW}, {wave}")
        a(f"s_cbranch_scc1 {lab}")
        if extra:
            a(extra); a(f"s_cbranch_scc1 {lab}")
        for x in body: a(x)
        a.label(lab)
    def clear_line():
        only(3, [f"s_lshl_b32 s3, s{sH}, 12", f"s_add_u32 s3, s3, {WS_FL2}", f"v_mov_b32 v{vCL}, 0", "v_lshlrev_b32 v116, 2, v0",
                 f"buffer_store_dword v{vCL}, v116, {S4(S_WS)}, s3 offen sc1"], f"s_cmp_lg_u32 s{sP}, 0")
    def clean_set():
        only(3, ["s_mov_b64 exec, 1", "v_mov_b32 v117, 1", f"s_lshl_b32 s3, s{sH}, 2",
                 f"buffer_store_dword v117, v{vCL}, {S4(S_DBG)}, s3 offen sc1", "s_mov_b64 exec, -1"], f"s_cmp_lg_u32 s{sP}, 0")
    def clean_issue(site):
        a(f"s_bfe_u32 s{sT2}, s2, 0x10003")
        only(2, [f"s_lshl_b32 s3, s{sH}, 2", f"v_mov_b32 v{vCL}, 0",
                 f"buffer_load_dword v{vCL}, v{vCL}, {S4(S_DBG)}, s3 offen sc1"], f"s_cmp_lg_u32 s{sT2}, {site}")
    def clean_check():
        lab = a.uid("CLN")
        a(f"s_cmp_lg_u32 s{sW}, 2")
        a(f"s_cbranch_scc1 {lab}D")
        a(f"s_lshl_b32 s3, s{sH}, 2")
        a(f"s_mov_b32 s{sT2}, 0")
        a(f"s_branch {lab}C")
        a.label(lab)
        a("s_sleep 32")
        a(f"buffer_load_dword v{vCL}, v{vZERO}, {S4(S_DBG)}, s3 offen sc1")
        a("s_waitcnt vmcnt(0)")
        a.label(lab + "C")
        a(f"v_readfirstlane_b32 s{S_T}, v{vCL}")
        a(f"s_add_u32 s{sT2}, s{sT2}, 1")
        a(f"s_cmp_lg_u32 s{S_T}, 0")
        a(f"s_cbranch_scc1 {lab}D")
        a(f"s_cmp_lt_u32 s{sT2}, 100000")
        a(f"s_cbranch_scc1 {lab}")
        a.label(lab + "D")
    def publish(wave, which):
        only(wave, ["s_mov_b64 exec, 1", f"v_mov_b32 v{vPOLL}, 1", f"s_lshl_b32 s3, s{sH}, 10", f"s_add_u32 s3, s3, s{sP}",
                    "s_lshl_b32 s3, s3, 2", f"s_add_u32 s3, s3, {WS_FL2 + 32 * which}",
                    f"buffer_store_dword v{vPOLL}, v{vZERO}, {S4(S_WS)}, s3 offen sc1", "s_mov_b64 exec, -1"])
    def poll_issue(wave):
        only(wave, [f"s_lshl_b32 s3, s{sH}, 12", f"s_add_u32 s3, s3, {WS_FL2}",
                    f"buffer_load_dword v{vPOLL}, v{vFL}, {S4(S_WS)}, s3 offen sc1"])
    def poll(wave, need, vmw):
        if 'nopoll' in OPT: return
        lab = a.uid("POLL")
        a(f"s_cmp_lg_u32 s{sW}, {wave}")
        a(f"s_cbranch_scc1 {lab}D")
        a(f"s_lshl_b32 s3, s{sH}, 12")
        a(f"s_add_u32 s3, s3, {WS_FL2}")
        a(f"s_mov_b32 s{sT2}, 0")
        a(f"s_waitcnt vmcnt({vmw})")
        a(f"s_branch {lab}C")
        a.label(lab)
        a(f"s_sleep {OPT.get('sleep', 8)}")
        a(f"buffer_load_dword v{vPOLL}, v{vFL}, {S4(S_WS)}, s3 offen sc1")
        a("s_waitcnt vmcnt(0)")
        a.label(lab + "C")
        a(f"v_cmp_eq_u32 vcc, 0, v{vPOLL}")
        a(f"s_add_u32 s{sT2}, s{sT2}, 1")
        a(f"s_and_b32 s{S_T}, vcc_lo, {need}")
        a(f"s_cbranch_scc0 {lab}D")
        a(f"s_cmp_lt_u32 s{sT2}, 100000")
        a(f"s_cbranch_scc1 {lab}")
        a.label(lab + "D")

    a(f"s_waitcnt vmcnt({vm.wait(('kv', 0))})")
    a("s_barrier")
    sp.mark("kv0")
    a(f"s_cmp_lg_u32 s{sG}, 0")
    a("s_cbranch_scc1 M_KVV")
    vm0 = list(vm.tags)
    spn = sp.n
    vAX, vAQ, vST = 2, 6, 10
    QA = 128
    PK = lambda z: (240 + 4 * z) if z < 4 else (80 + 4 * (z - 4))
    endwait = []
    for part in range(2):
        if part: a.label("M_KVV")
        vm.tags = list(vm0)
        sp.n = spn
        S = Stream(a, vm, dist=int(OPT.get('kd', 12)), per_gap=int(OPT.get('kpg', 2)), bar_delay=int(OPT.get('kbd', 3)))
        S.fill_rate = float(OPT.get('fr', 1.0))
        rl = []
        sl = side_loads()
        for st in range(8):
            buf = (st & 1) * 32768
            for u in range(2):
                x = 2 * st + u
                for nt in range(4):
                    for hf in range(2):
                        rg = WFR[x & 1] + 4 * nt + 2 * hf
                        rl.append((32 * x + nt - 6, ("w", x, nt, hf),
                                   f"ds_read_b64_tr_b16 {vr(rg,2)}, v{vAW+nt} offset:{buf+u*8192+hf*1024}", rg, st))
                for kt in range(8):
                    rg = CFR + 4 * (kt % int(OPT.get('kring', 4)))
                    rl.append((32 * x + 4 * kt, ("c", x, kt), f"ds_read_b128 {vr(rg,4)}, v{vAC+u} offset:{buf+kt*2048}", rg, st))
                    for nt in range(4):
                        idx = kt * 4 + nt if part == 0 else ((kt >> 1) * 4 + nt) * 2 + (kt & 1)
                        acc = vr(ACC + 4 * idx, 4)
                        w, c = vr(WFR[x & 1] + 4 * nt, 4), vr(rg, 4)
                        cin = "0" if x == 0 else acc
                        S.op(f"{MFMA16} {acc}, {w}, {c}, {cin}" if part == 0 else f"{MFMA16} {acc}, {c}, {w}, {cin}",
                             [("w", x, nt, 0), ("w", x, nt, 1), ("c", x, kt)])
            after = kv_dma(st + 2) if st < 6 else []
            if st == 5: after = after + q_dma_x(0)
            if st == 6: after = q_dma_w(0) + q_dma_x(1) + q_dma_w(1)
            if st == 7: after = q_dma_x(2) + q_dma_w(2)
            if part == 1: after = [[] for _ in range(int(OPT.get('stag', 14)))] + after
            if 'noside' not in OPT:
                if st == 0: after = after + sl[1:5]
                if st == 1: after = after + sl[5:16]
                if st == 2: after = after + sl[16:] + sl[0:1]
            if part == 0:
                if st == 0: after = after + [clear_line]
                if st == 2: after = [clean_set] + after
                if st in (4, 5): after = after + [lambda st=st: clean_issue(st - 4)]
            tags = [("kv", st + 1)] if st < 7 else [("q", 0)]
            if st == 2: tags += ["prA", "pf"]
            if st == 4: tags += ["pr", "pfq"]
            after = [lambda st=st: sp.mark(f"k{st}")] + after
            S.barrier_after_stage(st, tags, after)
        rl.sort(key=lambda r: (r[4], r[0]))
        for r in rl: S.read(r[1], r[2], r[3], r[4], r[0])
        sj = side_jobs()
        nk = [i for i, it in enumerate(sj) if f"v_lshlrev_b32 v80, 16, v{SH}" in it][0]
        if 'noside' in OPT: sj = []
        for it in sj[:nk]: S.filler(3 * 64 + 24, 1, it)
        for it in sj[nk:]: S.filler(5 * 64, 1, it)
        S.run([0])
        sp.mark("kv")
        a(f"s_lshr_b32 s{sT}, s{sW}, 1")
        a(f"s_lshl_b32 s{sT}, s{sT}, 13")
        a(f"s_and_b32 s{sT2}, s{sW}, 1")
        a(f"s_lshl_b32 s{sT2}, s{sT2}, 2")
        a("s_mov_b32 s3, 65536")
        frag_addrs(vAX, sT, vAQ, sT2, 3)
        a(f"v_add_u32 v{vAX+2}, 131072, v{vAX}")
        a(f"v_add_u32 v{vAX+3}, 131072, v{vAX+1}")
        S = Stream(a, vm, dist=10, per_gap=2, bar_delay=3)
        S.fill_rate = 1.0
        rl = []
        KPUB, VPUB = int(OPT.get('kpub', 4)), int(OPT.get('vpub', 9))
        for k in range(10):
            xb = XB[(k + 2) % 3]
            for u in range(2):
                x = 2 * k + u
                for nt in range(4):
                    for hf in range(2):
                        rg = WFR[x & 1] + 4 * nt + 2 * hf
                        rl.append((16 * x + nt - 5, ("w", x, nt, hf),
                                   f"ds_read_b64_tr_b16 {vr(rg,2)}, v{vAQ+nt} offset:{(k%3)*16384+u*8192+hf*1024}", rg, k))
                for qi in range(4):
                    rg = CFR + 4 * qi
                    av = vAX + u + (2 if xb == 131072 else 0)
                    rl.append((16 * x + 4 * qi, ("c", x, qi), f"ds_read_b128 {vr(rg,4)}, v{av} offset:{(xb%131072)+qi*2048}", rg, k))
                    for nt in range(4):
                        acc = vr(QA + 4 * (qi * 4 + nt), 4)
                        S.op(f"{MFMA16} {acc}, {vr(WFR[x&1]+4*nt,4)}, {vr(rg,4)}, {'0' if x == 0 else acc}",
                             [("w", x, nt, 0), ("w", x, nt, 1), ("c", x, qi)])
            tags, after, pre = [("q", k + 1)], [], None
            if k + 3 <= 9: after = q_dma_x(k + 3) + q_dma_w(k + 3)
            if k == 0 and part == 0: pre = clean_check
            if k == KPUB and part == 0: tags.append("st"); after = [lambda: publish(0, 0)] + after
            KP = int(OPT.get('kpoll', 7))
            if k == KP - 1 and part == 0: after = [lambda: (poll_issue(1), vm.add("mark"), vm.ghost.add("mark"))] + after
            if k == KP:
                if part == 0: pre = lambda: poll(1, 1, vm.wait("mark"))
                after = kdma(0, "k0") + kdma(1, "k0")
            if k == 8: after = after + kdma(2, "k2")
            if k == 9: tags = []
            if k == VPUB and part == 1: tags.append("st"); after = [lambda: publish(4, 1)] + after
            after = [lambda k=k: sp.mark(f"q{k}")] + after
            S.barrier_after_stage(k, tags, after, pre)
        rl.sort(key=lambda r: (r[4], r[0]))
        for r in rl: S.read(r[1], r[2], r[3], r[4], r[0])
        npre = 10
        for r in rl[:npre]: a(r[2])
        a(f"v_add_u32 v{vST}, {4096 >> part}, v{vL16}")
        a(f"v_mov_b32 v{vZERO}, 0")
        a(f"v_and_b32 v{vFL}, 15, v0")
        a(f"v_lshlrev_b32 v{vFL}, 2, v{vFL}")
        for z in list(range(4, 16)) + list(range(4)):
            for e in range(4):
                a(f"v_cvt_pk_bf16_f32 v{PK(z)+e}, v{ACC+8*z+2*e}, v{ACC+8*z+2*e+1}")
        SC = " " + OPT.get('stsc', 'sc1').replace('_', ' ')
        st0, stp = (2, int(OPT.get('stp', 5))) if part == 0 else (int(OPT.get('vst', 90)), int(OPT.get('stpv', 9)))
        for z in range(16 if 'nost' not in OPT else 1):
            j, c = z >> 2, z & 3
            S.filler(st0 + stp * z, 1, [f"s_add_u32 s3, s{sOB}, {j*8192}",
                     (f"buffer_store_dwordx4 {vr(PK(z),4)}, v{vST if c >> 1 else vL16}, {S4(S_WS)}, s3 offen offset:{(c&1)*1024}{SC}", "st")])
        S.run([0], preissued=npre)
        endwait.append(vm.wait("k0"))
        if part == 0: a("s_branch M_KVD")
    a.label("M_KVD")
    sp.mark("q")
    vKA, vVA, vD0, vQ2 = 2, 3, 4, 5
    FR, T, P, SS, O, Q, NEGM = 32, 64, [80, 88], [96, 112], 128, 192, 224
    vL, vL1, vTA, vX0, vNINF = 232, 234, 236, 238, 246
    D = int(OPT.get('D', 5))
    a(f"s_mov_b32 s{sT}, {f32hex(1.4426950408889634 * 128 ** -0.5)}")
    a(f"s_lshr_b32 s{sT2}, s{sW}, 1")
    a(f"s_lshl_b32 s{sT2}, s{sT2}, 14")
    a(f"s_and_b32 s3, s{sW}, 1")
    a("s_lshl_b32 s3, s3, 11")
    a(f"s_add_u32 s{sT2}, s{sT2}, s3")
    a(f"s_add_u32 s{sT2}, s{sT2}, 98304")
    a(f"v_add_u32 v6, s{sT2}, v{vL16}")
    a(f"s_lshl_b32 s{sT2}, s{sW}, 13")
    a(f"s_add_u32 s{sT2}, s{sT2}, 98304")
    a(f"v_add_u32 v{vQ2}, s{sT2}, v{vL16}")
    a(f"s_lshl_b32 s{sT2}, s{sG}, 13")
    a(f"v_add_u32 v{vKA}, s{sT2}, v{vL16}")
    a(f"v_add_u32 v{vVA}, 65536, v{vKA}")
    for f in range(8):
        for e in range(4):
            r = QA + 8 * f + 2 * e
            a(f"v_mul_f32 v{r}, s{sT}, v{r}")
            a(f"v_mul_f32 v{r+1}, s{sT}, v{r+1}")
            a(f"v_cvt_pk_bf16_f32 v{Q+4*f+e}, v{r}, v{r+1}")
        a(f"ds_write_b128 v6, {vr(Q+4*f,4)} offset:{(f>>1)*4096+(f&1)*1024}")
    a("v_and_b32 v7, 15, v0")
    a("v_lshrrev_b32 v8, 4, v0")
    a(f"s_lshl_b32 s{sT}, s{sRB}, 5")
    a(f"v_add_u32 v{vD0}, s{sT}, v7")
    a("v_lshlrev_b32 v8, 2, v8")
    a(f"v_sub_u32 v{vD0}, v{vD0}, v8")
    a(f"v_mov_b32 v{vNINF}, 0xff800000")
    for r in range(8): a(f"v_mov_b32 v{NEGM+r}, 0")
    a(f"v_mov_b32 v{vL}, 0")
    a(f"v_mov_b32 v{vL+1}, 0")
    a(f"s_waitcnt vmcnt({min(endwait)}) lgkmcnt(0)")
    a("s_barrier")
    poll_issue(5)
    sp.mark("qx")
    def kread(e, t): return f"ds_read_b128 {vr(FR+4*t,4)}, v{vKA} offset:{(e&3)*16384+t*1024}"
    def vread(e, i): return f"ds_read_b128 {vr(FR+4*i,4)}, v{vVA} offset:{(e&3)*16384+i*1024}"
    for f in range(8): a(f"ds_read_b128 {vr(Q+4*f,4)}, v{vQ2} offset:{f*1024}")
    for i in range(D): a(kread(0, i))
    for r in range(64): a(f"v_mov_b32 v{O+r}, 0")
    a(f"s_mov_b32 s{sS}, 0")

    handlers = []
    def xreduce(op, x, tmp):
        a(f"v_mov_b32 v{tmp}, v{x}")
        a(f"v_permlane16_swap_b32 v{x}, v{tmp}")
        a(f"{op} v{x}, v{x}, v{tmp}")
        a(f"v_mov_b32 v{tmp}, v{x}")
        a(f"v_permlane32_swap_b32 v{x}, v{tmp}")
        a(f"{op} v{x}, v{x}, v{tmp}")
    def rowmax(dst, tmp, src):
        a(f"v_max3_f32 v{dst}, v{src}, v{src+1}, v{src+2}")
        a(f"v_max3_f32 v{dst}, v{dst}, v{src+3}, v{src+4}")
        a(f"v_max3_f32 v{dst}, v{dst}, v{src+5}, v{src+6}")
        a(f"v_max_f32 v{dst}, v{dst}, v{src+7}")
        xreduce("v_max_f32", dst, tmp)
    def sm_ops(Sc, Pw):
        f = []
        def post(q):
            t = vTA + (q >> 3)
            if q % 8 == 0: f.append((1, [f"v_add_f32 v{t}, v{T+q%8}, v{T+(q+1)%8}"]))
            else:
                f.append((1, [f"v_add_f32 v{t}, v{t}, v{T+q%8}"]))
                f.append((1, [f"v_add_f32 v{t}, v{t}, v{T+(q+1)%8}"]))
            f.append((1, [f"v_cvt_pk_bf16_f32 v{Pw+q//2}, v{T+q%8}, v{T+(q+1)%8}"]))
        for r in range(16):
            f.append((2, [f"v_exp_f32 v{T+r%8}, v{Sc+r}"]))
            if r % 2 == 1 and r >= 3: post(r - 3)
        post(14)
        f.append((1, [f"v_max_f32 v{vX0}, v{vTA}, v{vTA+1}"]))
        return f
    def store_ctx(qis, sct, obase):
        n = 0
        for qi in qis:
            for u in range(4):
                d = T + (n % 4) * 4
                n += 1
                src = obase(qi) + 8 * u
                for e in range(4): a(f"v_cvt_pk_bf16_f32 v{d+e}, v{src+2*e}, v{src+2*e+1}")
                if u == 0 and qi == 1 and len(qis) == 2: a(f"s_add_u32 s{sct}, s{sct}, 131072")
                a(f"buffer_store_dwordx4 {vr(d,4)}, v{vL16}, {S4(S_WS)}, s{sct} offen offset:{u*1024}")

    def slot(j, name, qk=True, sm=True, pv=True, nxt="k", dma=True, last=False, vlist=None, prefetched=True, prebar=None, vmw=4):
        par = j & 1
        if vlist is None: vlist = [j]
        Sc, Sn, Pw, Pr = SS[1 - par], SS[par], P[1 - par], P[par]
        a.label(name)
        if sm or pv:
            a(f"s_bitcmp1_b64 s[{sEV}:{sEV+1}], s{sS}")
            a(f"s_cbranch_scc1 {name}_EV")
            a.label(name + "_GO")
            handlers.append(("ev", name, Sc))
        ms = []
        if qk:
            for t in range(8):
                kt, u = t >> 2, t & 3
                mm = []
                for qi in range(2):
                    d = vr(Sn + 8 * qi + 4 * kt, 4)
                    mm.append(f"{MFMA16} {d}, {vr(FR+4*t,4)}, {vr(Q+16*qi+4*u,4)}, {vr(NEGM+4*qi,4) if u == 0 else d}")
                ms.append((mm, kread(j, t)))
        if pv:
            for i in range(8):
                mm = []
                for qi in range(2):
                    o = vr(O + 32 * qi + 4 * i, 4)
                    mm.append(f"{MFMA16} {o}, {vr(FR+4*i,4)}, {vr(Pr+4*qi,4)}, {o}")
                ms.append((mm, vread(j - 2, i)))
        rd = [m[1] for m in ms]
        if nxt == "k": rd += [kread(j + 1, i) for i in range(D)]
        elif nxt == "v": rd += [vread(j - 1, i) for i in range(D)]
        dm = []
        def vd(e): return [[f"s_add_u32 m0, s{sM0V}, {(e & 3) * 16384}", "s_nop 0",
                            f"buffer_load_dwordx4 v{vL16}, {S4(S_V)}, s{sHIST[e&3]} offen sc1 lds"],
                           [f"buffer_load_dwordx4 v{vL16}, {S4(S_V)}, s{sHIST[e&3]} offen offset:1024 sc1 lds"]]
        if dma:
            for e in vlist: dm += vd(e)
            h0, h1 = sHIST[(j + 3) & 3], sHIST[(j + 2) & 3]
            pre = [f"s_cmp_ge_u32 s{sS}, s{sWRAP}", f"s_cselect_b32 s{sT}, s{sBASE}, 8192", f"s_add_u32 s{sT}, s{sT}, s{h1}",
                   f"s_add_u32 m0, s{sM0K}, {((j + 3) & 3) * 16384}", f"s_cmp_ge_u32 s{sS}, 31", f"s_cselect_b32 s{h0}, {OOB}, s{sT}"]
            dm.append(pre + [f"buffer_load_dwordx4 v{vL16}, {S4(S_WS)}, s{h0} offen sc1 lds"])
            dm.append([f"buffer_load_dwordx4 v{vL16}, {S4(S_WS)}, s{h0} offen offset:1024 sc1 lds"])
        groups = []
        n = len(ms)
        if not prefetched:
            for x in rd[:D]: a(x)
        dpos = list(range(1, n, 2)) if len(dm) <= n // 2 else list(range(n))
        for m in range(n):
            pre = []
            if m % 2 == 0:
                out = min(len(rd), m + D) - (m + 2)
                pre.append(f"s_waitcnt lgkmcnt({max(out, 0)})")
            post = [rd[m + D]] if m + D < len(rd) else []
            if m in dpos and dpos.index(m) < len(dm): post += dm[dpos.index(m)]
            groups.append((pre, ms[m][0][0], []))
            groups.append(([], ms[m][0][1], post))
        interleave(a, groups, sm_ops(Sc, Pw) if sm else [], max(2 * n - 2, 1))
        if sm:
            a(f"v_cmp_lt_f32 vcc, s{sTHR}, v{vX0}")
            a(f"s_cbranch_vccnz {name}_SLOW")
            a.label(name + "_RET")
            a(f"v_add_f32 v{vL}, v{vL}, v{vTA}")
            a(f"v_add_f32 v{vL+1}, v{vL+1}, v{vTA+1}")
            handlers.append(("slow", name, Sc, Sn, Pw))
        if not last:
            a(f"s_add_u32 s{sS}, s{sS}, 1")
            if prebar: prebar()
            a(f"s_waitcnt vmcnt({vmw if dma else 0})")
            a("s_barrier")

    slot(0, "AT_S0", sm=False, pv=False, vlist=[], prebar=lambda: poll(5, 0x101, 2), vmw=2)
    slot(1, "AT_S1", pv=False, vlist=[0, 1])
    sp.mark("s1")
    poll_issue(2)
    slot(2, "AT_S2", prebar=lambda: poll(2, 0xffff, 4))
    sp.mark("s2")
    a("s_branch AT_L3")
    slot(2, "AT_L2"); slot(3, "AT_L3"); slot(0, "AT_L0")
    a(f"s_cmp_eq_u32 s{sS}, 33")
    a("s_cbranch_scc1 AT_S33")
    slot(1, "AT_L1")
    a("s_branch AT_L2")
    slot(1, "AT_S33", nxt=None)
    slot(2, "AT_S34", qk=False, nxt=None, dma=False, prefetched=False)
    slot(3, "AT_S35", qk=False, sm=False, nxt=None, dma=False, last=True, prefetched=False)
    a("s_barrier")
    xreduce("v_add_f32", vL, vX0)
    xreduce("v_add_f32", vL + 1, vX0 + 1)
    a(f"s_mul_i32 s{sT}, s{sW}, {8192+512}")
    a(f"s_xor_b32 s{sT2}, s{sW}, 4")
    a(f"s_mul_i32 s{sT2}, s{sT2}, {8192+512}")
    a(f"v_add_u32 v14, s{sT}, v{vL16}")
    a(f"v_add_u32 v15, s{sT2}, v{vL16}")
    a("v_lshlrev_b32 v16, 3, v0")
    a(f"v_add_u32 v17, s{sT2}, v16")
    a(f"v_add_u32 v16, s{sT}, v16")
    X0, X1, X2, X3, X4, X5 = range(vX0, vX0 + 6)
    a(f"s_cmp_eq_u32 s{sG}, 0")
    a("s_cbranch_scc1 AT_MA")
    a(f"v_mov_b32 v{X4}, v{NEGM}")
    a(f"v_mov_b32 v{X5}, v{vL}")
    a(f"v_mov_b32 v{X0}, v{NEGM+4}")
    a(f"v_mov_b32 v{X1}, v{vL+1}")
    for q in range(8): a(f"ds_write_b128 v14, {vr(O+4*q,4)} offset:{1024*q}")
    for r in range(32): a(f"v_mov_b32 v{O+r}, v{O+32+r}")
    a(f"s_add_u32 s{sCT2}, s{sCT2}, 131072")
    a("s_branch AT_MB")
    a.label("AT_MA")
    a(f"v_mov_b32 v{X4}, v{NEGM+4}")
    a(f"v_mov_b32 v{X5}, v{vL+1}")
    a(f"v_mov_b32 v{X0}, v{NEGM}")
    a(f"v_mov_b32 v{X1}, v{vL}")
    for q in range(8): a(f"ds_write_b128 v14, {vr(O+32+4*q,4)} offset:{1024*q}")
    a.label("AT_MB")
    a(f"ds_write_b64 v16, v[{X4}:{X5}] offset:8192")
    a("s_waitcnt lgkmcnt(0)")
    a("s_barrier")
    a(f"ds_read_b64 v[{X2}:{X3}], v17 offset:8192")
    for q in range(8): a(f"ds_read_b128 {vr(O+32+4*q,4)}, v15 offset:{1024*q}")
    a("s_waitcnt lgkmcnt(8)")
    a(f"v_min_f32 v{vTA}, v{X0}, v{X2}")
    a(f"v_sub_f32 v{X0}, v{vTA}, v{X0}")
    a(f"v_sub_f32 v{X2}, v{vTA}, v{X2}")
    a(f"v_exp_f32 v{X0}, v{X0}")
    a(f"v_exp_f32 v{X2}, v{X2}")
    a(f"v_mul_f32 v{vTA}, v{X1}, v{X0}")
    a(f"v_fmac_f32 v{vTA}, v{X3}, v{X2}")
    a(f"v_rcp_f32 v{vTA}, v{vTA}")
    a(f"v_mul_f32 v{X0}, v{X0}, v{vTA}")
    a(f"v_mul_f32 v{X2}, v{X2}, v{vTA}")
    for r in range(32): a(f"v_mul_f32 v{O+r}, v{O+r}, v{X0}")
    a("s_waitcnt lgkmcnt(0)")
    for r in range(32): a(f"v_fmac_f32 v{O+r}, v{O+32+r}, v{X2}")
    store_ctx((0,), sCT2, lambda qi: O)
    if STAMP:
        a("s_waitcnt vmcnt(0)")
        sp.mark("end")
        a("s_waitcnt lgkmcnt(0)")
        sp.flush(100, sW, 0, slot=0); sp.flush(100, sW, 4, slot=1)
    a.label("M_END")
    a("s_endpgm")
    for hd in handlers:
        if hd[0] == "ev":
            _, name, Sc = hd
            a.label(name + "_EV")
            a(f"s_sub_u32 s{sT}, s{sS}, s{sN1}")
            a(f"s_cmp_lg_u32 s{sT}, 2")
            a(f"s_cbranch_scc1 {name}_E1")
            xreduce("v_add_f32", vL1, vX0)
            xreduce("v_add_f32", vL1 + 1, vX0 + 1)
            a(f"v_rcp_f32 v{vL1}, v{vL1}")
            a(f"v_rcp_f32 v{vL1+1}, v{vL1+1}")
            for r in range(64): a(f"v_mul_f32 v{O+r}, v{O+r}, v{vL1+(r>>5)}")
            store_ctx((0, 1), sCT1, lambda qi: O + 32 * qi)
            for r in range(64): a(f"v_mov_b32 v{O+r}, 0")
            a.label(name + "_E1")
            a(f"s_cmp_lg_u32 s{sT}, 0")
            a(f"s_cbranch_scc1 {name}_E2")
            for t in range(8): a(f"ds_read_b128 {vr(Q+4*t,4)}, v{vQ2} offset:{32768+1024*t}")
            for r in range(8): a(f"v_mov_b32 v{NEGM+r}, 0")
            a("s_waitcnt lgkmcnt(0)")
            a.label(name + "_E2")
            a(f"s_sub_u32 s{sT2}, s{sS}, s{sMST}")
            a(f"s_sub_u32 s{sT2}, s{sT2}, 1")
            a(f"s_cmp_lt_u32 s{sT2}, 4")
            a(f"s_cbranch_scc1 {name}_EM")
            a(f"s_cmp_lt_u32 s{sS}, 33")
            a(f"s_cbranch_scc1 {name}_E3")
            a(f"s_sub_u32 s{sT2}, s{sS}, 33")
            a(f"s_lshl_b32 s{sT2}, s{sT2}, 1")
            a(f"s_add_u32 s{sT2}, s{sT2}, s{sG}")
            a.label(name + "_EM")
            a(f"s_lshl_b32 s{sT2}, s{sT2}, 5")
            a(f"v_subrev_u32 v{vX0}, s{sT2}, v{vD0}")
            for qi in range(2):
                for kt in range(2):
                    for e in range(4):
                        a(f"v_cmp_le_i32 s[{sMK+2*e}:{sMK+2*e+1}], {16*kt+e-16*qi}, v{vX0}")
                    for e in range(4):
                        r = Sc + 8 * qi + 4 * kt + e
                        a(f"v_cndmask_b32 v{r}, v{vNINF}, v{r}, s[{sMK+2*e}:{sMK+2*e+1}]")
            a.label(name + "_E3")
            a(f"s_cmp_eq_u32 s{sT}, 1")
            a(f"s_cbranch_scc1 {name}_E4")
            a(f"s_cmp_lg_u32 s{sS}, 1")
            a(f"s_cbranch_scc1 {name}_GO")
            a.label(name + "_E4")
            for qi in range(2):
                a(f"v_mov_b32 v{vL1+qi}, v{vL+qi}")
                a(f"v_mov_b32 v{vL+qi}, 0")
                rowmax(vX0 + qi, vX0 + 2 + qi, Sc + 8 * qi)
            for r in range(8): a(f"v_sub_f32 v{NEGM+r}, v{NEGM+r}, v{vX0+(r>>2)}")
            for r in range(16): a(f"v_sub_f32 v{Sc+r}, v{Sc+r}, v{vX0+(r>>3)}")
            a(f"s_branch {name}_GO")
        else:
            _, name, Sc, Sn, Pw = hd
            a.label(name + "_SLOW")
            for qi in range(2):
                rowmax(vX0 + qi, vX0 + 2 + qi, Sc + 8 * qi)
                a(f"v_max_f32 v{vX0+qi}, 0, v{vX0+qi}")
                a(f"v_exp_f32 v{vX0+2+qi}, -v{vX0+qi}")
            for r in range(8): a(f"v_sub_f32 v{NEGM+r}, v{NEGM+r}, v{vX0+(r>>2)}")
            for r in range(16): a(f"v_sub_f32 v{Sn+r}, v{Sn+r}, v{vX0+(r>>3)}")
            for r in range(16): a(f"v_sub_f32 v{Sc+r}, v{Sc+r}, v{vX0+(r>>3)}")
            for r in range(64): a(f"v_mul_f32 v{O+r}, v{O+r}, v{vX0+2+(r>>5)}")
            for qi in range(2): a(f"v_mul_f32 v{vL+qi}, v{vL+qi}, v{vX0+2+qi}")
            for c, ops in sm_ops(Sc, Pw):
                for x in ops: a(x)
            a(f"s_branch {name}_RET")
    return dict(name="main_kernel", grid=256, block=512, lds=163840, vgpr=256)

import gen as G1
G1.STAMP = False
import gen_tail
KERNELS = {"main": gen_main, "conv": G1.gen_conv, "oproj": G1.gen_oproj, "tail": lambda a: gen_tail.gen_tail(a, {k: v for k, v in globals().items() if not k.startswith("__")})}

def build(names, path, verbose=False):
    hdr = open("gated_mix__ssm_conv_h3__compressed_kv_cla__prompt.s.ref").read().split("\n")
    hdr = [l for l in hdr if l.startswith(";") and "@launch" not in l and "Override" not in l and "grid=ceil" not in l]
    codes, descs, launches = [], [], []
    for n in names:
        a = Asm()
        info = KERNELS[n](a)
        k = fix_hazards(a.lines, verbose)
        print(f"{n}: {len(a.lines)} lines, {k} nops inserted")
        c, d = kernel_text(info["name"], a.lines, info["vgpr"], extra="  .amdhsa_float_denorm_mode_32 3\n")
        codes.append(c); descs.append(d)
        launches.append(f"; @launch kernel={info['name']} grid=({info['grid']},1,1) block=({info['block']},1,1) lds={info['lds']}")
    txt = "\n".join(hdr + launches) + '\n.amdgcn_target "amdgcn-amd-amdhsa--gfx950"\n.text\n' + "\n".join(codes) + \
          '\n.section .rodata,"a"\n' + "\n".join(descs)
    open(path, "w").write(txt)

if __name__ == "__main__":
    names = sys.argv[2].split(",") if len(sys.argv) > 2 else list(KERNELS)
    build(names, sys.argv[1] if len(sys.argv) > 1 else "k2.s", verbose="-v" in sys.argv)
```

```python
def gen_tail(a, E, fused=None):
    globals().update(E)
    SC = ' sc1' if fused else ''
    S_WS, S_X, S_OUT, S_H, S_D, S_DBG = 4, 8, 12, 16, 20, 24
    sW, sT, sT2, sMT, sNT, sKO, sCH, sLB, sNC = range(28, 37)
    NS = int(OPT.get('ns', 4))
    vB, ST, ACC = 4, 32, 176
    RB = 0
    YB = 61440
    CNT = YB + 10240
    CB = CNT + 256
    CHB = 4 * 4160 + 7680
    RDY = CNT + 64
    sPUB = 37
    if fused:
        sp = fused["sp"]
        a(f"s_sub_u32 s{sPUB+1}, 15, s{fused['sP']}")
        a(f"s_lshl_b32 s{sPUB+1}, s{sPUB+1}, 12")
        a(f"s_lshl_b32 s{sPUB}, s{fused['sH']}, 2")
        a(f"s_add_u32 s{sPUB}, s{sPUB}, s{sPUB+1}")
        a(f"s_add_u32 s{sPUB}, s{sPUB}, {WS_FL3}")
        a(f"s_mov_b32 s{sW}, s{fused['sW']}")
    else:
        sp = Stamps(a, base=70, region=1)
        a("s_cmp_ge_u32 s2, 256")
        a("s_cbranch_scc1 T_END")
        sp.mark("start")
    for d, k in ((S_WS, 'ws'), (S_X, 'A_q'), (S_OUT, 'out'), (S_H, 'ssm_k'), (S_D, 'ssm_D'), (S_DBG, 'dbg')):
        a(f"s_load_dwordx2 s[{d}:{d+1}], s[0:1], {KA[k]}")
    if not fused:
        a("v_lshrrev_b32 v1, 6, v0")
        a("v_and_b32 v0, 63, v0")
        a(f"v_readfirstlane_b32 s{sW}, v1")
    a(f"s_and_b32 s{sMT}, s2, 7")
    a(f"s_lshl_b32 s{sMT}, s{sMT}, 2")
    a(f"s_bfe_u32 s{sT}, s2, 0x20003")
    a(f"s_add_u32 s{sMT}, s{sMT}, s{sT}")
    a(f"s_lshr_b32 s{sNT}, s2, 5")
    a("v_lshlrev_b32 v1, 4, v0")
    for d, sz in ((S_WS, 64 * MB), (S_X, 2621440), (S_OUT, 2621440), (S_H, 2621440), (S_D, 1280), (S_DBG, 256)):
        a(f"s_mov_b32 s{d+2}, {sz}")
        a(f"s_mov_b32 s{d+3}, 0x00020000")
    a(f"s_cmp_ge_u32 s{sW}, 4")
    a("s_cbranch_scc1 T_SIDE")
    a(f"s_lshl_b32 s{sT}, s{sMT}, 19")
    a(f"s_add_u32 s{sT}, s{sT}, {WS_CTX}")
    a(f"v_add_u32 v{vB}, s{sT}, v1")
    for i in range(1, 4): a(f"v_add_u32 v{vB+i}, {i*131072}, v{vB}")
    a(f"s_mul_i32 s{sT}, s{sNT}, {5*131072}")
    a(f"s_add_u32 s{sT}, s{sT}, {WS_WOT}")
    a(f"v_add_u32 v{vB+4}, s{sT}, v1")
    for j in range(1, 5): a(f"v_add_u32 v{vB+4+j}, {j*131072}, v{vB+4}")
    a(f"s_lshl_b32 s{sKO}, s{sW}, 15")
    a("s_waitcnt lgkmcnt(0)")
    vm = VM()
    def loads(ks):
        out = []
        base = ST + (ks % NS) * 36
        for n in (4, 0, 5, 1, 6, 2, 7, 3, 8):
            pre = []
            if n == 4 and ks % 4 == 0 and ks: pre.append(f"s_add_u32 s{sKO}, s{sKO}, 4096")
            out.append(pre + [f"buffer_load_dwordx4 {vr(base+4*n,4)}, v{vB+n}, {S4(S_WS)}, s{sKO} offen offset:{(ks%4)*1024}{SC}"])
        return out
    def emit(g, tag):
        for x in g: a(x)
        vm.add(tag)
    if fused:
        for ks in range(NS - 1):
            for g in loads(ks)[0::2]: emit(g, ks)
        a(f"s_waitcnt vmcnt({5 * (NS - 1)})")
        a("s_barrier")
        sp.mark("tb")
        a(f"v_mov_b32 v2, {RDY}")
        a(f"s_mov_b32 s{sT2}, 0")
        a.label("T_RDY")
        a("ds_read_b32 v3, v2")
        a("s_waitcnt lgkmcnt(0)")
        a(f"v_readfirstlane_b32 s{sT}, v3")
        a(f"s_add_u32 s{sT2}, s{sT2}, 1")
        a(f"s_cmp_lg_u32 s{sT}, 0")
        a("s_cbranch_scc1 T_RDY2")
        a("s_sleep 2")
        a(f"s_cmp_lt_u32 s{sT2}, 4000000")
        a("s_cbranch_scc1 T_RDY")
        a.label("T_RDY2")
        for ks in range(NS - 1):
            for g in loads(ks)[1::2]: emit(g, ks)
    else:
        for ks in range(NS - 1):
            for g in loads(ks): emit(g, ks)
        a("s_barrier")
    a("v_and_b32 v2, 15, v0")
    a("v_lshrrev_b32 v3, 4, v0")
    a(f"s_lshl_b32 s{sT}, s{sMT}, 6")
    a(f"s_lshl_b32 s{sT2}, s{sW}, 4")
    a(f"s_add_u32 s{sT}, s{sT}, s{sT2}")
    a(f"v_add_u32 v2, s{sT}, v2")
    a("v_mul_u32_u24 v13, 1280, v2")
    a("v_lshl_add_u32 v13, v3, 3, v13")
    a(f"s_mul_i32 s{sT}, s{sNT}, 160")
    a(f"v_add_u32 v13, s{sT}, v13")
    a("v_lshlrev_b32 v2, 2, v2")
    AC = lambda i, j: ACC + (i * 5 + j) * 4
    for ks in range(32):
        base = ST + (ks % NS) * 36
        nx = loads(ks + NS - 1) if ks + NS - 1 < 32 else []
        if ks + NS - 1 == 32:
            nx = [[f"s_mov_b32 s{sT}, {WS_G}", f"buffer_load_dword v14, v2, {S4(S_WS)}, s{sT} offen{SC}"]]
            nx += [[f"buffer_load_dwordx2 {vr(16+2*j,2)}, v13, {S4(S_X)}, 0 offen offset:{32*j}"] for j in range(5)]
        a(f"s_waitcnt vmcnt({vm.wait(ks)})")
        if ks == 0: sp.mark("t0")
        if ks == int(OPT.get('ksig', 27)):
            a(f"v_mov_b32 v26, {CNT}")
            a("v_mov_b32 v27, 4")
            a("s_mov_b64 exec, 1")
            a("ds_add_u32 v26, v27")
            a("s_mov_b64 exec, -1")
        n = 0
        for j in range(5):
            for i in range(4):
                acc = vr(AC(i, j), 4)
                a(f"{MFMA16} {acc}, {vr(base+16+4*j,4)}, {vr(base+4*i,4)}, {'0' if ks == 0 else acc}")
                if n % 2 == 0 and n // 2 < len(nx): emit(nx[n // 2], ks + NS - 1)
                n += 1
    sp.mark("t1")
    for i in range(4):
        lab = a.uid("TSK")
        a(f"s_cmp_eq_u32 s{sW}, {i}")
        a(f"s_cbranch_scc1 {lab}")
        a(f"s_sub_u32 s{sT}, s{sW}, {i+1}")
        a(f"s_and_b32 s{sT}, s{sT}, 3")
        a(f"s_mul_i32 s{sT}, s{sT}, 5120")
        a(f"v_add_u32 v4, s{sT}, v1")
        for j in range(5): a(f"ds_write_b128 v4, {vr(AC(i,j),4)} offset:{RB+i*15360+j*1024}")
        a(f"s_branch {lab}N")
        a.label(lab)
        for r in range(20): a(f"v_mov_b32 v{32+(r>>2)*16+12+(r&3)}, v{AC(i,0)+r}")
        a.label(lab + "N")
    a(f"s_mul_i32 s{sT}, s{sW}, 15360")
    a(f"v_add_u32 v5, s{sT}, v1")
    a("v_lshrrev_b32 v7, 2, v0")
    a("v_lshlrev_b32 v7, 7, v7")
    a("v_and_b32 v8, 3, v0")
    a("v_lshl_add_u32 v7, v8, 3, v7")
    a(f"s_lshl_b32 s{sT}, s{sW}, 5")
    a(f"s_add_u32 s{sT}, s{sT}, {YB}")
    a(f"v_add_u32 v7, s{sT}, v7")
    a("s_waitcnt vmcnt(0) lgkmcnt(0)")
    a("s_barrier")
    sp.mark("t2")
    for j in range(5):
        for src in range(3):
            a(f"ds_read_b128 {vr(32+(j*4+src)*4,4)}, v5 offset:{RB+src*5120+j*1024}")
        a(f"ds_read_b64_tr_b16 {vr(112+2*j,2)}, v7 offset:{j*2048}")
    a("v_sub_f32 v15, 1.0, v14")
    for x in rnd_pair(26, 15, 15, 15, 27): a(x)
    for j in range(5):
        a(f"s_waitcnt lgkmcnt({min(15, 4*(4-j))})")
        b = 32 + j * 16
        for r in range(4):
            a(f"v_add_f32 v{b+r}, v{b+r}, v{b+4+r}")
            a(f"v_add_f32 v{b+8+r}, v{b+8+r}, v{b+12+r}")
        for r in range(4): a(f"v_add_f32 v{b+r}, v{b+r}, v{b+8+r}")
        for hf in range(2):
            L = rnd_pair(26, b + 2 * hf, b + 2 * hf + 1, b + 4, b + 5)
            L += [f"v_mul_f32 v{b+4}, v15, v{b+4}", f"v_mul_f32 v{b+5}, v15, v{b+5}"] + rnd_pair(26, b + 4, b + 5, b + 4, b + 5)
            L += [f"v_lshlrev_b32 v{b+6}, 16, v{16+2*j+hf}", f"v_and_b32 v{b+7}, 0xffff0000, v{16+2*j+hf}",
                  f"v_lshlrev_b32 v{b+8}, 16, v{112+2*j+hf}", f"v_and_b32 v{b+9}, 0xffff0000, v{112+2*j+hf}",
                  f"v_mul_f32 v{b+6}, v{b+6}, v{b+8}", f"v_mul_f32 v{b+7}, v{b+7}, v{b+9}"] + rnd_pair(26, b + 6, b + 7, b + 6, b + 7)
            L += [f"v_mul_f32 v{b+6}, v14, v{b+6}", f"v_mul_f32 v{b+7}, v14, v{b+7}"] + rnd_pair(26, b + 6, b + 7, b + 6, b + 7)
            L += [f"v_add_f32 v{b+6}, v{b+6}, v{b+4}", f"v_add_f32 v{b+7}, v{b+7}, v{b+5}",
                  f"v_cvt_pk_bf16_f32 v{b+12+hf}, v{b+6}, v{b+7}"]
            for x in L: a(x)
        a(f"buffer_store_dwordx2 {vr(b+12,2)}, v13, {S4(S_OUT)}, 0 offen offset:{32*j}")
    if STAMP:
        a("s_waitcnt vmcnt(0)"); sp.mark("end"); a("s_waitcnt lgkmcnt(0)")
        sp.flush(100, sW, 0, slot=0); sp.flush(100, sW, 3, slot=1) if fused else None
    a("s_endpgm")
    a.label("T_SIDE")
    a("s_setprio 3")
    a("s_waitcnt lgkmcnt(0)")
    a(f"s_and_b32 s{sNC}, s2, 1")
    a(f"s_sub_u32 s{sNC}, 3, s{sNC}")
    a(f"s_cmp_lg_u32 s{sW}, 7")
    a("s_cbranch_scc1 T_CONV")
    a(f"v_mov_b32 v2, {CNT}")
    a("v_mov_b32 v3, 0")
    a("ds_write_b32 v2, v3")
    a("ds_write_b32 v2, v3 offset:64")
    a("s_waitcnt vmcnt(0) lgkmcnt(0)")
    a("s_barrier")
    if fused:
        a("v_mov_b32 v4, 1")
        a("s_mov_b64 exec, 1")
        a(f"buffer_store_dword v4, v3, {S4(S_WS)}, s{sPUB} offen sc1")
        a("s_mov_b64 exec, -1")
        a("v_and_b32 v3, 31, v0")
        a("v_lshlrev_b32 v3, 2, v3")
        a(f"s_lshr_b32 s3, s{sMT}, 1")
        a("s_lshl_b32 s3, s3, 12")
        a(f"s_add_u32 s3, s3, {WS_FL3}")
        a(f"s_mov_b32 s{sT2}, 0")
        a("s_branch T_CP1")
        a.label("T_CP")
        a(f"s_sleep {OPT.get('csleep', 8)}")
        a.label("T_CP1")
        a(f"buffer_load_dword v5, v3, {S4(S_WS)}, s3 offen sc1")
        a("s_waitcnt vmcnt(0)")
        a("v_cmp_eq_u32 vcc, 0, v5")
        a(f"s_add_u32 s{sT2}, s{sT2}, 1")
        a("s_cbranch_vccz T_CP2")
        a(f"s_cmp_lt_u32 s{sT2}, 100000")
        a("s_cbranch_scc1 T_CP")
        a.label("T_CP2")
        a("ds_write_b32 v2, v4 offset:64")
    a("v_lshrrev_b32 v2, 3, v0")
    a("v_and_b32 v4, 7, v0")
    a("v_lshlrev_b32 v4, 4, v4")
    a("v_lshl_add_u32 v2, v2, 12, v4")
    a(f"s_lshl_b32 s3, s{sNT}, 12")
    a(f"s_add_u32 s3, s3, {WS_FLG}")
    a("v_and_b32 v3, 31, v0")
    a("v_lshlrev_b32 v3, 2, v3")
    a(f"s_mov_b32 s{sT2}, 0")
    a(f"v_mov_b32 v6, {CNT}")
    a.label("T_LPOLL")
    a("s_sleep 8")
    a("ds_read_b32 v5, v6")
    a("s_waitcnt lgkmcnt(0)")
    a(f"v_readfirstlane_b32 s{sT}, v5")
    a(f"s_add_u32 s{sT2}, s{sT2}, 1")
    a(f"s_cmp_ge_u32 s{sT}, {OPT.get('nsig', 16)}")
    a("s_cbranch_scc1 T_POLL1")
    a(f"s_cmp_lt_u32 s{sT2}, 100000")
    a("s_cbranch_scc1 T_LPOLL")
    a.label("T_POLL")
    a(f"s_sleep {OPT.get('tsleep', 24)}")
    a.label("T_POLL1")
    a(f"buffer_load_dword v5, v3, {S4(S_WS)}, s3 offen sc1")
    a("s_waitcnt vmcnt(0)")
    a("v_cmp_eq_u32 vcc, 0, v5")
    a(f"s_add_u32 s{sT2}, s{sT2}, 1")
    a("s_cbranch_vccz T_POK")
    a(f"s_cmp_lt_u32 s{sT2}, 100000")
    a("s_cbranch_scc1 T_POLL")
    a.label("T_POK")
    a(f"s_mul_i32 s{sT}, s{sNT}, {80*4096}")
    a(f"s_lshl_b32 s{sT2}, s{sMT}, 7")
    a(f"s_add_u32 s{sT}, s{sT}, s{sT2}")
    a(f"s_add_u32 s{sT}, s{sT}, {WS_Y2T}")
    for i in range(10):
        a(f"s_mov_b32 m0, {YB + 1024*i}")
        if i: a(f"s_add_u32 s{sT}, s{sT}, {8*4096}")
        a(f"buffer_load_dwordx4 v2, {S4(S_WS)}, s{sT} offen sc1 lds")
    a("s_waitcnt vmcnt(0)")
    a("s_barrier")
    a("s_endpgm")
    a.label("T_CONV")
    a(f"s_sub_u32 s{sT}, s{sW}, 4")
    a(f"s_cmp_ge_u32 s{sT}, s{sNC}")
    a("s_cbranch_scc1 T_WEND")
    a(f"s_lshr_b32 s{sCH}, s2, 1")
    a(f"s_mul_i32 s{sCH}, s{sCH}, 5")
    a(f"s_and_b32 s{sT2}, s2, 1")
    a(f"s_mul_i32 s{sT2}, s{sT2}, 3")
    a(f"s_add_u32 s{sCH}, s{sCH}, s{sT2}")
    a(f"s_add_u32 s{sCH}, s{sCH}, s{sT}")
    a(f"s_mul_i32 s{sLB}, s{sT}, {CHB}")
    a(f"s_add_u32 s{sLB}, s{sLB}, {CB}")
    a(f"s_mul_i32 s{sT}, s{sCH}, 5120")
    a(f"s_add_u32 s{sT}, s{sT}, {WS_KVT}")
    a(f"s_add_u32 m0, s{sLB}, {4*4160+2560}")
    a("s_nop 0")
    for i in range(4): a(f"buffer_load_dwordx4 v1, {S4(S_WS)}, s{sT} offen offset:{1024*i}{SC} lds")
    a(f"s_add_u32 m0, s{sLB}, {4*4160+2560+4096}")
    a(f"s_add_u32 s{sT}, s{sT}, 4096")
    a(f"buffer_load_dwordx4 v1, {S4(S_WS)}, s{sT} offen{SC} lds")
    a(f"s_lshl_b32 s{sT}, s{sCH}, 12")
    a(f"v_add_u32 v3, s{sT}, v1")
    for rr in range(4):
        if rr: a("v_subrev_u32 v3, 2, v3")
        a("v_add_u32 v4, 1024, v3")
        a(f"s_add_u32 m0, s{sLB}, {rr*4160+64}")
        a(f"buffer_load_dwordx4 v3, {S4(S_H)}, 0 offen lds")
        a(f"s_add_u32 m0, s{sLB}, {rr*4160+64+1024}")
        for i in range(3): a(f"buffer_load_dwordx4 v4, {S4(S_H)}, 0 offen offset:{1024*i} lds")
    for r in range(8, 12): a(f"v_mov_b32 v{r}, 0")
    a(f"s_add_u32 s{sT2}, s{sLB}, {4*4160}")
    a(f"v_add_u32 v5, s{sT2}, v1")
    a("ds_write_b128 v5, v[8:11]")
    a("ds_write_b128 v5, v[8:11] offset:1024")
    a("v_lshlrev_b32 v6, 3, v0")
    a(f"v_add_u32 v6, s{sT2}, v6")
    a("ds_write_b64 v6, v[8:9] offset:2048")
    a("v_and_b32 v6, 7, v0")
    a("v_bfe_u32 v7, v0, 3, 2")
    a("v_lshlrev_b32 v12, 1, v6")
    a(f"buffer_load_ushort v13, v12, {S4(S_H)}, s{sT} offen")
    a(f"s_lshl_b32 s{sT}, s{sCH}, 1")
    a(f"buffer_load_ushort v14, v8, {S4(S_D)}, s{sT} offen")
    a("v_add_u32 v6, v6, v7")
    a("v_mul_u32_u24 v12, 4160, v7")
    a("v_lshl_add_u32 v12, v6, 1, v12")
    a(f"v_add_u32 v12, s{sLB}, v12")
    vA, vBq = 16, 17
    a("v_bfe_u32 v18, v0, 2, 2")
    a("v_mul_u32_u24 v18, 4160, v18")
    a("v_bfe_u32 v19, v0, 4, 1")
    a("v_lshl_add_u32 v18, v19, 5, v18")
    a("v_and_b32 v19, 3, v0")
    a("v_lshl_add_u32 v18, v19, 3, v18")
    a("v_lshrrev_b32 v19, 5, v0")
    a("v_lshlrev_b32 v20, 4, v19")
    a("v_sub_u32 v18, v18, v20")
    a(f"s_add_u32 s{sT}, s{sLB}, {64-8-32}")
    a(f"v_add_u32 v{vA}, s{sT}, v18")
    a("v_and_b32 v21, 31, v0")
    a("v_mul_u32_u24 v18, 80, v21")
    a("v_add_u32 v18, v18, v20")
    a(f"s_add_u32 s{sT}, s{sLB}, {4*4160+2560-31*80}")
    a(f"v_add_u32 v{vBq}, s{sT}, v18")
    a("v_lshlrev_b32 v20, 3, v19")
    a("v_sub_u32 v20, v21, v20")
    a("v_mov_b32 v22, 0xffff")
    MK = 24
    for kh in range(2):
        for q in range(4):
            a(f"v_cmp_le_i32 vcc, {2*q+16*kh}, v20")
            a(f"v_cmp_le_i32 s[40:41], {2*q+1+16*kh}, v20")
            a(f"v_cndmask_b32 v{MK+4*kh+q}, 0, v22, vcc")
            a(f"v_cndmask_b32 v{MK+4*kh+q}, v{MK+4*kh+q}, -1, s[40:41]")
    if fused: a("s_waitcnt vmcnt(23)")
    a("s_barrier")
    a("s_waitcnt vmcnt(0)")
    if fused: sp.off = True
    sp.n = 2; sp.mark("t0")
    a("v_cmp_gt_u32 vcc, 8, v6")
    a("s_and_b32 exec_lo, vcc_lo, exec_lo")
    a("s_mov_b32 exec_hi, 0")
    a("ds_write_b16 v12, v13 offset:64")
    a("s_mov_b64 exec, -1")
    F = [32, 48, 64]
    Y0, Y1, Y2 = 96, 112, 128
    def reads(it):
        d, kh = it >> 1, it & 1
        f = F[it % 3]
        o = 64 * d + 32 * (1 - kh)
        return [f"ds_read_b64_tr_b16 {vr(f,2)}, v{vA} offset:{o+8}",
                f"ds_read_b64_tr_b16 {vr(f+2,2)}, v{vA} offset:{o}",
                f"ds_read_b128 {vr(f+8,4)}, v{vBq} offset:{80*(31-d)+32*kh}",
                f"ds_read_b128 {vr(f+12,4)}, v{vBq} offset:{80*(31-d)+2560+32*kh}",
                f"ds_read_b64_tr_b16 {vr(f+4,2)}, v{vA} offset:{o+8+2048}",
                f"ds_read_b64_tr_b16 {vr(f+6,2)}, v{vA} offset:{o+2048}"]
    for x in reads(0) + reads(1): a(x)
    a("s_setprio 0")
    for it in range(64):
        if it == int(OPT.get('cprio', 64)): a("s_setprio 3")
        f = F[it % 3]
        nx = reads(it + 2) if it + 2 < 64 else []
        a(f"s_waitcnt lgkmcnt({6 if it + 1 < 64 else 0})")
        if it < 2:
            for q in range(4): a(f"v_and_b32 v{f+q}, v{f+q}, v{MK+4*it+q}")
        c = lambda y: "0" if it == 0 else vr(y, 16)
        a(f"{MFMA32} {vr(Y0,16)}, {vr(f,4)}, {vr(f+8,4)}, {c(Y0)}")
        for x in nx[0:2]: a(x)
        a(f"{MFMA32} {vr(Y1,16)}, {vr(f,4)}, {vr(f+12,4)}, {c(Y1)}")
        for x in nx[2:4]: a(x)
        a(f"{MFMA32} {vr(Y2,16)}, {vr(f+4,4)}, {vr(f+8,4)}, {c(Y2)}")
        for x in nx[4:6]: a(x)
    sp.mark("t1")
    a("s_setprio 3")
    a("v_mul_u32_u24 v5, 80, v21")
    a("v_lshl_add_u32 v5, v19, 3, v5")
    a(f"s_add_u32 s{sT}, s{sLB}, {4*4160+2560}")
    a(f"v_add_u32 v5, s{sT}, v5")
    for t in range(2):
        for q in range(4): a(f"ds_read_b64 {vr(32+8*t+2*q,2)}, v5 offset:{2560*t+16*q}")
    a("v_lshlrev_b32 v14, 16, v14")
    a("v_lshlrev_b32 v6, 6, v21")
    a("v_lshl_add_u32 v6, v19, 3, v6")
    a(f"v_add_u32 v6, s{sLB}, v6")
    a(f"v_add_u32 v7, s{sLB}, v1")
    for r in range(16): a(f"v_add_f32 v{Y1+r}, v{Y1+r}, v{Y2+r}")
    a("s_waitcnt lgkmcnt(0)")
    for t in range(2):
        Y = Y0 if t == 0 else Y1
        for q in range(4):
            for hf in range(2):
                r = Y + 4 * q + 2 * hf
                kvr = 32 + 8 * t + 2 * q + hf
                L = rnd_pair(52, r, r + 1, 50, 51)
                L += [f"v_lshlrev_b32 v53, 16, v{kvr}", f"v_and_b32 v54, 0xffff0000, v{kvr}",
                      "v_mul_f32 v53, v53, v14", "v_mul_f32 v54, v54, v14"] + rnd_pair(52, 53, 54, 53, 54)
                L += ["v_add_f32 v50, v50, v53", "v_add_f32 v51, v51, v54", f"v_cvt_pk_bf16_f32 v{56+2*(q&1)+hf}, v50, v51"]
                for x in L: a(x)
            a(f"ds_write_b64 v6, {vr(56+2*(q&1),2)} offset:{2048*t+16*q}")
    a("s_waitcnt lgkmcnt(0)")
    for i in range(4): a(f"ds_read_b128 {vr(64+4*i,4)}, v7 offset:{1024*i}")
    a(f"s_lshl_b32 s{sT}, s{sCH}, 12")
    a(f"s_add_u32 s{sT}, s{sT}, {WS_Y2T}")
    for i in range(4):
        a(f"s_waitcnt lgkmcnt({3-i})")
        a(f"buffer_store_dwordx4 {vr(64+4*i,4)}, v1, {S4(S_WS)}, s{sT} offen offset:{1024*i} sc1")
    sp.mark("t2")
    a("s_waitcnt vmcnt(0)")
    if STAMP and not fused:
        sp.mark("end"); a("s_waitcnt lgkmcnt(0)"); sp.flush(100, sW, 4, slot=1)
    a("s_mov_b64 exec, 1")
    a(f"v_mov_b32 v2, {CNT}")
    a("v_mov_b32 v3, 1")
    a("ds_add_rtn_u32 v4, v2, v3")
    a("s_waitcnt lgkmcnt(0)")
    a(f"v_readfirstlane_b32 s{sT}, v4")
    a(f"s_add_u32 s{sT}, s{sT}, 1")
    a(f"s_and_b32 s{sT}, s{sT}, 3")
    a(f"s_cmp_lg_u32 s{sT}, s{sNC}")
    a("s_cbranch_scc1 T_END")
    a(f"s_lshl_b32 s3, s{sNT}, 12")
    a(f"s_and_b32 s{sT}, s2, 31")
    a(f"s_lshl_b32 s{sT}, s{sT}, 2")
    a(f"s_add_u32 s3, s3, s{sT}")
    a(f"s_add_u32 s3, s3, {WS_FLG}")
    a(f"buffer_store_dword v3, v8, {S4(S_WS)}, s3 offen sc1")
    a.label("T_WEND")
    a("s_waitcnt vmcnt(0)")
    a.label("T_END")
    a("s_endpgm")
    return dict(name="tail_kernel", grid=256, block=512, lds=CB + 3 * CHB, vgpr=256)
```

```python
import sys, struct
from asmlib import *
from sched import *
import gen_tail

MB = 1 << 20
WS_KF, WS_VF, WS_CTX, WS_WOT, WS_KVT, WS_Y2T, WS_G = 0, 16 * MB, 32 * MB, 48 * MB, 56 * MB, 60 * MB, 63 * MB
KA = dict(A_q=0, A_k=8, A_v=16, shift=24, ssm_k=32, ssm_D=40, B_x=48, c_kv=56, w_q=64, w_uk=72, w_uv=80, w_o=88,
          gate=96, out=104, dbg=112, ws=120)
MFMA32 = "v_mfma_f32_32x32x16_bf16"
MFMA16 = "v_mfma_f32_16x16x32_bf16"
STAMP = "-stamp" in sys.argv
OPT = {x[2:].split("=")[0]: (x.split("=")[1] if "=" in x else "1") for x in sys.argv if x.startswith("--")}
WS_FLG = 63 * MB + 524288
WS_FL2 = 63 * MB + 655360
WS_FL3 = WS_FL2 + 131072
FUSE = 'nofuse' not in OPT
OOB = "0x80000000"
def f32hex(x): return "0x%08x" % struct.unpack("<I", struct.pack("<f", x))[0]

def srd(a, d, lo, hi, size, add=0):
    if add:
        a(f"s_add_u32 s{d}, s{lo}, {add}")
        a(f"s_addc_u32 s{d+1}, s{hi}, 0")
    else:
        a(f"s_mov_b32 s{d}, s{lo}")
        a(f"s_mov_b32 s{d+1}, s{hi}")
    a(f"s_mov_b32 s{d+2}, {size}")
    a(f"s_mov_b32 s{d+3}, 0x00020000")
def S4(d): return f"s[{d}:{d+3}]"

class Stamps:
    def __init__(self, a, base=70, region=0):
        self.a, self.base, self.n, self.region = a, base, 0, region
    off = False
    def mark(self, name=""):
        if not STAMP or self.off: return
        if name not in OPT.get("marks", "start,kv,q,s1,end,t0,t1,t2").split(","): return
        assert self.base + 2 * self.n + 3 <= 101
        self.a(f"s_memtime s[{self.base+2*self.n}:{self.base+2*self.n+1}]")
        self.a(f"s_memrealtime s[{self.base+2*self.n+2}:{self.base+2*self.n+3}]")
        self.n += 2
    def flush(self, wg, sW, wave, slot=0):
        if not STAMP: return
        a = self.a
        lab = a.uid("STK")
        a(f"s_cmp_lg_u32 s{sW}, {wave}")
        a(f"s_cbranch_scc1 {lab}")
        a(f"s_load_dwordx2 s[60:61], s[0:1], {KA['ws']}")
        a("s_waitcnt lgkmcnt(0)")
        a(f"s_add_u32 s60, s60, {128*MB + self.region*65536 + slot*64}")
        a("s_addc_u32 s61, s61, 0")
        a("s_mov_b32 s62, 65536")
        a("s_mov_b32 s63, 0x00020000")
        a("s_lshl_b32 s3, s2, 7")
        a("v_mov_b32 v1, s3")
        for i in range(self.n):
            a(f"v_mov_b32 v2, s{self.base+2*i}")
            a(f"buffer_store_dword v2, v1, s[60:63], 0 offen offset:{4*i}")
        a("s_getreg_b32 s3, hwreg(HW_REG_XCC_ID)")
        a("v_mov_b32 v2, s3")
        a(f"buffer_store_dword v2, v1, s[60:63], 0 offen offset:60")
        a("s_waitcnt vmcnt(0)")
        a.label(lab)

def rnd_pair(d, lo, hi, olo, ohi):
    return [f"v_cvt_pk_bf16_f32 v{d}, v{lo}, v{hi}", f"v_lshlrev_b32 v{olo}, 16, v{d}", f"v_and_b32 v{ohi}, 0xffff0000, v{d}"]

def interleave(a, mfmas, fillers, ngaps):
    tot = sum(c for c, _ in fillers)
    fi, acc = 0, 0.0
    for g, (pre, m, post) in enumerate(mfmas):
        for x in pre: a(x)
        a(m)
        for x in post: a(x)
        lim = tot * min(1.0, (g + 1) / ngaps) if ngaps else tot
        while fi < len(fillers) and acc + fillers[fi][0] * 0.5 <= lim:
            acc += fillers[fi][0]
            for x in fillers[fi][1]: a(x)
            fi += 1
    while fi < len(fillers):
        for x in fillers[fi][1]: a(x)
        fi += 1

def gen_main(a):
    S_C, S_W, S_WS, S_V, S_X, S_WQ, S_DBG = 4, 8, 12, 16, 20, 24, 28
    (sW, sH, sP, sG, sRB, sT, sT2, sCO, sWO, sM0C, sM0W, sOB, sROW, sXO, sQWO, sN1, sS, sMST, sTHR, sM0K, sM0V,
     sBASE, sCT1, sCT2, sWRAP) = range(32, 57)
    sHIST = [57, 58, 59, 60]
    sEV = 62
    PT = 64
    S_T = 76
    sMK = 4
    vL16, vCD, vWD, vAC, vAW, vXD, vQW, vWOT, vKVT = 1, 2, 6, 10, 12, 16, 20, 22, 23
    WFR, CFR, ACC = [32, 48], 64, 128
    sp = Stamps(a, base=80)
    vm = VM()
    a("s_cmp_ge_u32 s2, 256")
    a("s_cbranch_scc1 M_END")
    sp.mark("start")
    a(f"s_load_dwordx2 s[44:45], s[0:1], {KA['c_kv']}")
    a(f"s_load_dwordx4 s[48:51], s[0:1], {KA['w_uk']}")
    a("v_lshrrev_b32 v1, 6, v0")
    a("v_mov_b32 v31, v0")
    a("v_and_b32 v0, 63, v0")
    a(f"v_readfirstlane_b32 s{sW}, v1")
    a(f"s_and_b32 s{sH}, s2, 7")
    a("s_lshr_b32 s3, s2, 6")
    a("s_lshl_b32 s3, s3, 3")
    a(f"s_add_u32 s{sH}, s{sH}, s3")
    a(f"s_bfe_u32 s{sP}, s2, 0x30003")
    a(f"s_lshr_b32 s{sG}, s{sW}, 2")
    a("v_lshrrev_b32 v24, 3, v0")
    a("v_and_b32 v25, 7, v0")
    a("v_lshrrev_b32 v26, 4, v0")
    a("v_xor_b32 v25, v25, v26")
    a("v_lshlrev_b32 v25, 4, v25")
    a("v_xor_b32 v27, 64, v25")
    a(f"v_lshl_add_u32 v{vCD}, v24, 10, v25")
    a(f"v_lshl_add_u32 v{vCD+1}, v24, 10, v27")
    a(f"v_add_u32 v{vCD+1}, {8192-1024}, v{vCD+1}")
    a(f"v_add_u32 v{vCD+2}, {2*(8192-1024)}, v{vCD}")
    a(f"v_add_u32 v{vCD+3}, {2*(8192-1024)}, v{vCD+1}")
    a("v_and_b32 v28, 15, v0")
    a("v_lshlrev_b32 v29, 1, v26")
    a("v_xor_b32 v28, v28, v29")
    a("v_lshlrev_b32 v28, 4, v28")
    a(f"v_lshl_add_u32 v{vWD}, v26, 13, v28")
    a(f"v_add_u32 v{vWD+1}, {4*8192-1024}, v{vWD}")
    a(f"v_xor_b32 v{vWD+2}, 128, v{vWD}")
    a(f"v_add_u32 v{vWD+2}, {2*(4*8192-1024)}, v{vWD+2}")
    a(f"v_add_u32 v{vWD+3}, {4*8192-1024}, v{vWD+2}")
    a(f"s_and_b32 s{sRB}, s{sW}, 3")
    a(f"s_lshl_b32 s{sCO}, s{sP}, 18")
    a(f"s_lshl_b32 s{sT}, s{sW}, 15")
    a(f"s_add_u32 s{sCO}, s{sCO}, s{sT}")
    a(f"s_lshl_b32 s{sWO}, s{sRB}, 17")
    a(f"s_lshl_b32 s{sT}, s{sH}, 8")
    a(f"s_add_u32 s{sWO}, s{sWO}, s{sT}")
    a(f"s_lshl_b32 s{sM0C}, s{sW}, 12")
    a(f"s_add_u32 s{sM0W}, s{sM0C}, 65536")
    a("s_waitcnt lgkmcnt(0)")
    srd(a, S_C, 44, 45, 2 * MB)
    a(f"s_cmp_eq_u32 s{sG}, 0")
    a(f"s_cselect_b32 s{S_W}, s48, s50")
    a(f"s_cselect_b32 s{S_W+1}, s49, s51")
    a(f"s_mov_b32 s{S_W+2}, {4*MB}")
    a(f"s_mov_b32 s{S_W+3}, 0x00020000")
    def kv_dma(st):
        buf = (st & 1) * 32768
        tg = ("kv", st)
        out = [[f"s_add_u32 m0, s{sM0C}, {buf}", f"s_add_u32 s{sT}, s{sCO}, {st*128}",
                (f"buffer_load_dwordx4 v{vCD}, {S4(S_C)}, s{sT} offen lds", tg)]]
        for i in range(1, 4): out.append([(f"buffer_load_dwordx4 v{vCD+i}, {S4(S_C)}, s{sT} offen offset:{i*1024} lds", tg)])
        out.append([f"s_add_u32 m0, s{sM0W}, {buf}", f"s_add_u32 s{sT}, s{sWO}, {st*64*8192}",
                    (f"buffer_load_dwordx4 v{vWD}, {S4(S_W)}, s{sT} offen lds", tg)])
        for i in range(1, 4): out.append([(f"buffer_load_dwordx4 v{vWD+i}, {S4(S_W)}, s{sT} offen offset:{i*1024} lds", tg)])
        return out
    def emit(items):
        for it in items:
            for x in it:
                if isinstance(x, tuple): a(x[0]); vm.add(x[1])
                else: a(x)
    emit(kv_dma(0))
    a(f"s_load_dwordx2 s[44:45], s[0:1], {KA['A_q']}")
    a(f"s_load_dwordx2 s[46:47], s[0:1], {KA['w_q']}")
    a(f"s_load_dwordx4 s[48:51], s[0:1], {KA['dbg']}")
    a(f"s_load_dwordx4 s[{PT}:{PT+3}], s[0:1], {KA['A_k']}")
    a(f"s_load_dwordx2 s[{PT+4}:{PT+5}], s[0:1], {KA['shift']}")
    a(f"s_load_dwordx4 s[{PT+8}:{PT+11}], s[0:1], {KA['w_o']}")
    a(f"v_lshlrev_b32 v{vL16}, 4, v0")
    a("v_mul_u32_u24 v28, 1280, v24")
    a(f"v_add_u32 v{vXD}, v28, v25")
    a(f"v_add_u32 v{vXD+1}, v28, v27")
    a(f"v_add_u32 v{vXD+1}, {8*1280-1024}, v{vXD+1}")
    a(f"v_add_u32 v{vXD+2}, {2*(8*1280-1024)}, v{vXD}")
    a(f"v_add_u32 v{vXD+3}, {2*(8*1280-1024)}, v{vXD+1}")
    a(f"s_and_b32 s3, s{sW}, 1")
    a("s_lshl_b32 s3, s3, 7")
    a(f"v_xor_b32 v{vQW}, s3, v{vWD}")
    a(f"v_add_u32 v{vQW+1}, {4*8192-1024}, v{vQW}")
    emit(kv_dma(1))
    vPF, vPFW, vSC = 116, 115, 117
    if 'nopf' not in OPT:
        a(f"v_lshlrev_b32 v{vPF}, 7, v0")
        a("v_lshrrev_b32 v24, 1, v0")
        a("v_and_b32 v25, 1, v0")
        a("v_lshlrev_b32 v25, 7, v25")
        a(f"v_lshl_add_u32 v{vPFW}, v24, 13, v25")
        a("s_lshl_b32 s3, s2, 13")
        a(f"s_lshl_b32 s{sT}, s{sW}, 10")
        a(f"s_add_u32 s3, s3, s{sT}")
        a("s_mov_b64 exec, 0xff")
        emit([[(f"buffer_load_dword v{vSC}, v{vPF}, {S4(S_C)}, s3 offen sc1", "pf")]])
        a(f"s_lshl_b32 s3, s{sP}, 19")
        a(f"s_add_u32 s3, s3, s{sWO}")
        a("s_mov_b32 exec_lo, -1")
        emit([[(f"buffer_load_dword v{vSC}, v{vPFW}, {S4(S_W)}, s3 offen sc1", "pf")]])
        a("s_mov_b64 exec, -1")
    def frag_addrs(vR, rowoff_sgpr, vWa, nt_sgpr, wbase_sgpr):
        a("v_and_b32 v24, 15, v0")
        a("v_lshrrev_b32 v25, 4, v0")
        a("v_bfe_u32 v26, v0, 1, 3")
        a("v_xor_b32 v26, v26, v25")
        a("v_lshlrev_b32 v26, 4, v26")
        a("v_lshl_add_u32 v26, v24, 7, v26")
        a(f"v_add_u32 v{vR}, s{rowoff_sgpr}, v26")
        a(f"v_xor_b32 v{vR+1}, 64, v{vR}")
        a("v_bfe_u32 v24, v0, 2, 2")
        a("v_lshl_add_u32 v26, v25, 3, v24")
        a("v_lshlrev_b32 v26, 8, v26")
        a("v_and_b32 v27, 3, v0")
        a("v_lshl_add_u32 v26, v27, 3, v26")
        a(f"v_add_u32 v26, s{wbase_sgpr}, v26")
        a("v_and_b32 v25, 1, v25")
        a("v_lshl_add_u32 v24, v25, 2, v24")
        a(f"v_xor_b32 v24, s{nt_sgpr}, v24")
        for nt in range(4):
            a(f"v_xor_b32 v25, {nt}, v24")
            a(f"v_lshl_add_u32 v{vWa+nt}, v25, 5, v26")
    a(f"s_and_b32 s{sT}, s{sW}, 1")
    a(f"s_lshl_b32 s{sT}, s{sT}, 14")
    a(f"s_and_b32 s{sT2}, s{sW}, 2")
    a(f"s_lshl_b32 s{sT2}, s{sT2}, 1")
    a(f"s_lshl_b32 s3, s{sG}, 14")
    a("s_add_u32 s3, s3, 65536")
    frag_addrs(vAC, sT, vAW, sT2, 3)
    WOB = 131072
    a("v_lshrrev_b32 v24, 2, v0")
    a("v_mul_u32_u24 v24, 672, v24")
    a("v_and_b32 v25, 3, v0")
    a("v_lshl_add_u32 v24, v25, 3, v24")
    a(f"s_lshl_b32 s{sT}, s{sW}, 5")
    a(f"s_add_u32 s{sT}, s{sT}, {WOB}")
    a(f"v_add_u32 v{vWOT}, s{sT}, v24")
    a("v_mul_u32_u24 v25, 1639, v31")
    a("v_lshrrev_b32 v25, 16, v25")
    a("v_mul_u32_u24 v26, 40, v25")
    a("v_sub_u32 v26, v31, v26")
    a(f"s_lshr_b32 s{sT}, s2, 3")
    a(f"s_lshl_b32 s{sT}, s{sT}, 6")
    a(f"v_lshl_add_u32 v25, v25, 3, s{sT}")
    a(f"s_and_b32 s{sT2}, s2, 7")
    a(f"s_mul_i32 s{sT2}, s{sT2}, 40")
    a(f"v_add_u32 v26, s{sT2}, v26")
    a("v_mul_u32_u24 v27, 1280, v25")
    a("v_lshl_add_u32 v27, v26, 2, v27")
    a("v_add_u32 v28, 5120, v27")
    a("v_subrev_u32 v29, 3840, v27")
    a(f"v_mov_b32 v30, {OOB}")
    a("v_cmp_eq_u32 vcc, 0, v25")
    a(f"v_mul_u32_u24 v{vKVT}, 10240, v26")
    a("v_lshrrev_b32 v24, 5, v25")
    a("v_cndmask_b32 v29, v29, v30, vcc")
    a("v_cmp_gt_u32 vcc, 320, v31")
    a("v_mul_u32_u24 v24, 80, v24")
    a(f"v_add_u32 v{vKVT}, v{vKVT}, v24")
    a("v_and_b32 v24, 31, v25")
    a(f"v_lshl_add_u32 v{vKVT}, v24, 1, v{vKVT}")
    a("v_cndmask_b32 v27, v30, v27, vcc")
    a("v_cndmask_b32 v28, v30, v28, vcc")
    a("v_cndmask_b32 v29, v30, v29, vcc")
    a(f"v_cndmask_b32 v{vKVT}, v30, v{vKVT}, vcc")
    a("v_lshlrev_b32 v26, 4, v26")
    a("v_mul_u32_u24 v24, 20, v0")
    a("s_waitcnt lgkmcnt(0)")
    srd(a, S_WS, 50, 51, 64 * MB)
    srd(a, S_V, 50, 51, 16 * MB, WS_VF)
    srd(a, S_X, 44, 45, 2621440)
    srd(a, S_WQ, 46, 47, 5242880)
    srd(a, S_DBG, 48, 49, 256)
    a(f"s_sub_u32 s{sT}, 15, s{sP}")
    a(f"s_lshl_b32 s{sT2}, s{sRB}, 5")
    a(f"s_lshl_b32 s{sCT2}, s{sT}, 7")
    a(f"s_add_u32 s{sCT2}, s{sCT2}, s{sT2}")
    a(f"s_lshl_b32 s{sCT1}, s{sP}, 7")
    a(f"s_add_u32 s{sCT1}, s{sCT1}, s{sT2}")
    a(f"s_cmp_eq_u32 s{sG}, 0")
    a(f"s_cselect_b32 s{sROW}, s{sCT1}, s{sCT2}")
    a(f"s_mul_i32 s{sXO}, s{sROW}, 1280")
    a(f"s_lshl_b32 s{sQWO}, s{sW}, 16")
    a(f"s_lshl_b32 s{sT}, s{sH}, 8")
    a(f"s_add_u32 s{sQWO}, s{sQWO}, s{sT}")
    a(f"s_lshl_b32 s{sT}, s{sH}, 12")
    a(f"s_add_u32 s{sT}, s{sT}, {WS_CTX}")
    for c in (sCT1, sCT2):
        a(f"s_lshl_b32 s{c}, s{c}, 13")
        a(f"s_add_u32 s{c}, s{c}, s{sT}")
    a(f"s_lshl_b32 s{sOB}, s{sH}, 6")
    a(f"s_lshl_b32 s{sT}, s{sP}, 3")
    a(f"s_add_u32 s{sOB}, s{sOB}, s{sT}")
    a(f"s_and_b32 s{sT}, s{sW}, 1")
    a(f"s_lshl_b32 s{sT}, s{sT}, 2")
    a(f"s_add_u32 s{sOB}, s{sOB}, s{sT}")
    a(f"s_lshl_b32 s{sOB}, s{sOB}, 13")
    a(f"s_bfe_u32 s{sT}, s{sW}, 0x10001")
    a(f"s_add_u32 s{sT2}, s{sG}, 11")
    a(f"s_lshl_b32 s{sT}, s{sT}, s{sT2}")
    a(f"s_add_u32 s{sOB}, s{sOB}, s{sT}")
    a(f"s_lshl_b32 s{sT}, s{sG}, 24")
    a(f"s_add_u32 s{sOB}, s{sOB}, s{sT}")
    a(f"s_lshl_b32 s{sN1}, s{sP}, 2")
    a(f"s_add_u32 s{sN1}, s{sN1}, 4")
    a(f"s_lshl_b32 s{sHIST[0]}, s{sH}, 19")
    a(f"s_lshl_b32 s{sT}, s{sRB}, 11")
    a(f"s_add_u32 s{sHIST[0]}, s{sHIST[0]}, s{sT}")
    a(f"s_lshl_b32 s{sM0K}, s{sW}, 11")
    a(f"s_add_u32 s{sM0V}, s{sM0K}, 65536")
    a(f"s_sub_u32 s{sT2}, s{sN1}, 4")
    a(f"s_sub_u32 s{sWRAP}, s{sN1}, 2")
    a(f"s_sub_u32 s{sWRAP}, s{sWRAP}, s{sG}")
    a(f"s_mov_b32 s{sBASE}, 16384")
    a(f"s_cmp_eq_u32 s{sG}, 0")
    a(f"s_cselect_b32 s{sMST}, s{sT2}, 99")
    a(f"s_cselect_b32 s{sN1}, s{sN1}, 100")
    a(f"s_add_u32 s{sHIST[1]}, s{sHIST[0]}, 8192")
    a(f"s_add_u32 s{sHIST[2]}, s{sHIST[0]}, 16384")
    a(f"s_mov_b64 s[{sEV}:{sEV+1}], {127 if FUSE else 63}")
    a(f"s_add_u32 s{sT}, s{sMST}, 1")
    a(f"s_lshl_b64 s[{sEV}:{sEV+1}], s[{sEV}:{sEV+1}], s{sT}")
    a(f"s_or_b32 s{sEV}, s{sEV}, 2")
    a(f"s_or_b32 s{sEV+1}, s{sEV+1}, 6")
    a(f"s_mov_b32 s{sTHR}, {f32hex(4096.0)}")
    a(f"s_mov_b32 s{S_T+3}, 0x00020000")

    XB = [0, 32768, 131072]
    def q_dma_x(k):
        tg = ("q", k)
        out = [[f"s_add_u32 m0, s{sM0C}, {XB[(k+2)%3]}", f"s_add_u32 s{sT}, s{sXO}, {k*128}",
                (f"buffer_load_dwordx4 v{vXD}, {S4(S_X)}, s{sT} offen lds", tg)]]
        for i in range(1, 4): out.append([(f"buffer_load_dwordx4 v{vXD+i}, {S4(S_X)}, s{sT} offen offset:{i*1024} lds", tg)])
        return out
    def q_dma_w(k):
        tg = ("q", k)
        return [[f"s_add_u32 m0, s{sM0V}, {(k%3)*16384}", f"s_add_u32 s{sT}, s{sQWO}, {k*64*8192}",
                 (f"buffer_load_dwordx4 v{vQW}, {S4(S_WQ)}, s{sT} offen lds", tg)],
                [(f"buffer_load_dwordx4 v{vQW+1}, {S4(S_WQ)}, s{sT} offen offset:1024 lds", tg)]]
    GX, GXT, GWT, GW, KR, VR, SH = 80, 84, 85, 86, 90, 101, 110
    def tsrd(lo, size): return [f"s_mov_b32 s{S_T}, s{lo}", f"s_mov_b32 s{S_T+1}, s{lo+1}", f"s_mov_b32 s{S_T+2}, {size}"]
    def side_loads():
        L = []
        it = tsrd(PT + 8, 5242880) + [f"s_lshr_b32 s3, s2, 1", "s_lshl_b32 s3, s3, 5", f"s_lshl_b32 s{sT2}, s{sW}, 2",
              f"s_add_u32 s3, s3, s{sT2}", "s_mul_i32 s3, s3, 1280", f"s_and_b32 s{sS}, s2, 1", f"s_mul_i32 s{sS}, s{sS}, 640",
              f"s_add_u32 s3, s3, s{sS}", f"s_mul_i32 s{sT2}, s{sT2}, 672", "s_mov_b32 exec_hi, 0xff"]
        for i in range(4):
            it += [f"s_add_u32 m0, s{sT2}, {WOB+672*i}", f"s_add_u32 s{sS}, s3, {1280*i}",
                   (f"buffer_load_dwordx4 v{vL16}, {S4(S_T)}, s{sS} offen lds", "prA")]
        it += ["s_mov_b32 exec_hi, -1"]
        L.append(it)
        L.append(["s_lshl_b32 s3, s2, 3", f"s_add_u32 s3, s3, s{sW}", "s_mul_i32 s3, s3, 1280",
                  (f"buffer_load_dwordx4 {vr(GX,4)}, v24, {S4(S_X)}, s3 offen", "prA"),
                  (f"buffer_load_dword v{GXT}, v24, {S4(S_X)}, s3 offen offset:16", "prA")])
        L.append(tsrd(PT + 10, 1280) + [(f"buffer_load_dwordx4 {vr(GW,4)}, v24, {S4(S_T)}, 0 offen", "prA"),
                  (f"buffer_load_dword v{GWT}, v24, {S4(S_T)}, 0 offen offset:16", "prA")])
        L.append(tsrd(PT + 4, 5120) + [(f"buffer_load_dwordx4 {vr(SH,4)}, v26, {S4(S_T)}, 0 offen", "pr")])
        for j in range(11):
            o = f"v29, {S4(S_T)}, 0 offen offset:{1280*j}" if j < 3 else f"v{27 if j < 7 else 28}, {S4(S_T)}, 0 offen offset:{1280*((j-3)%4)}"
            L.append((tsrd(PT, 2621440) if j == 0 else []) + [(f"buffer_load_dword v{KR+j}, {o}", "pr")])
        for j in range(8):
            L.append((tsrd(PT + 2, 2621440) if j == 0 else []) +
                     [(f"buffer_load_dword v{VR+j}, v{27 if j < 4 else 28}, {S4(S_T)}, 0 offen offset:{1280*(j%4)}", "pr")])
        if 'nopf' not in OPT:
            L.insert(0, [f"s_lshl_b32 s3, s{sP}, 3", f"s_add_u32 s3, s3, s{sW}", f"s_mul_i32 s3, s3, {10*8192}", f"s_lshl_b32 s{sT2}, s{sH}, 8",
                      f"s_add_u32 s3, s3, s{sT2}", "s_mov_b64 exec, 0xfffff",
                      (f"buffer_load_dword v{vPFW}, v{vPFW}, {S4(S_WQ)}, s3 offen sc1", "pfq"), "s_mov_b64 exec, -1"])
        return L

    def side_jobs():
        L = []
        t0, t1, t2, t3, t4, t5 = 24, 25, 26, 27, 28, 29
        for i in range(3):
            L.append([f"ds_read_b64_tr_b16 v[{116+4*i}:{117+4*i}], v{vWOT} offset:{256*i}"])
            L.append([f"ds_read_b64_tr_b16 v[{118+4*i}:{119+4*i}], v{vWOT} offset:{256*i+16*672}"])
        L.append([f"v_mov_b32 v{t0}, 0"])
        for x, w in [(GX + i, GW + i) for i in range(4)] + [(GXT, GWT)]:
            L += [[s] for s in [f"v_lshlrev_b32 v{t1}, 16, v{x}", f"v_and_b32 v{t2}, 0xffff0000, v{x}",
                                f"v_lshlrev_b32 v{t3}, 16, v{w}", f"v_and_b32 v{t4}, 0xffff0000, v{w}",
                                f"v_mul_f32 v{t1}, v{t1}, v{t3}", f"v_mul_f32 v{t2}, v{t2}, v{t4}"] + rnd_pair(t3, t1, t2, t1, t2) +
                               [f"v_add_f32 v{t0}, v{t0}, v{t1}", f"v_add_f32 v{t0}, v{t0}, v{t2}"]]
        for m in ("row_shr:1", "row_shr:2", "row_shr:4", "row_shr:8"):
            L.append([f"v_add_f32_dpp v{t0}, v{t0}, v{t0} {m} row_mask:0xf bank_mask:0xf bound_ctrl:0"])
        L.append([f"v_add_f32_dpp v{t0}, v{t0}, v{t0} row_bcast:15 row_mask:0xa bank_mask:0xf"])
        L.append([f"v_add_f32_dpp v{t0}, v{t0}, v{t0} row_bcast:31 row_mask:0xc bank_mask:0xf"])
        L += [[s] for s in rnd_pair(t1, t0, t0, t0, t2)[:2] +
              [f"v_mul_f32 v{t0}, 0xbfb8aa3b, v{t0}", f"v_exp_f32 v{t0}, v{t0}", f"v_cmp_eq_u32 vcc, 63, v0",
               f"v_add_f32 v{t0}, 1.0, v{t0}", f"v_rcp_f32 v{t0}, v{t0}", f"v_cndmask_b32 v{t2}, v30, 0, vcc"] +
              rnd_pair(t1, t0, t0, t0, t3)[:2]]
        L.append(["s_lshl_b32 s3, s2, 3", f"s_add_u32 s3, s3, s{sW}", "s_lshl_b32 s3, s3, 2", f"s_add_u32 s3, s3, {WS_G}",
                  (f"buffer_store_dword v{t0}, v{t2}, {S4(S_WS)}, s3 offen{' sc1' if FUSE else ''}", "pr2")])
        if not FUSE: L.append(["s_lshr_b32 s3, s2, 5", "s_lshl_b32 s3, s3, 12", f"s_and_b32 s{sT2}, s2, 31", f"s_lshl_b32 s{sT2}, s{sT2}, 2",
                  f"s_add_u32 s3, s3, s{sT2}", f"s_add_u32 s3, s3, {WS_FLG}", f"v_mov_b32 v{t1}, 0",
                  (f"buffer_store_dword v{t1}, v{t2}, {S4(S_WS)}, s3 offen{' sc1' if FUSE else ''}", "pr2")])
        L.append(["s_and_b32 s3, s2, 1", "s_mul_i32 s3, s3, 20", f"s_add_u32 s3, s3, s{sW}", "s_lshl_b32 s3, s3, 17",
                  f"s_lshr_b32 s{sT2}, s2, 1", f"s_lshl_b32 s{sT2}, s{sT2}, 10", f"s_add_u32 s3, s3, s{sT2}",
                  f"s_add_u32 s3, s3, {WS_WOT}", (f"buffer_store_dwordx4 v[116:119], v{vL16}, {S4(S_WS)}, s3 offen{' sc1' if FUSE else ''}", "pr2")])
        L.append([f"s_add_u32 s3, s3, {8<<17}", (f"buffer_store_dwordx4 v[120:123], v{vL16}, {S4(S_WS)}, s3 offen{' sc1' if FUSE else ''}", "pr2")])
        L.append([f"s_add_u32 s3, s3, {8<<17}", f"s_cmp_ge_u32 s{sW}, 4", f"s_cselect_b32 s3, {OOB}, s3",
                  (f"buffer_store_dwordx4 v[124:127], v{vL16}, {S4(S_WS)}, s3 offen{' sc1' if FUSE else ''}", "pr2")])
        W = 80
        for c in range(2):
            for q in range(2):
                L.append([f"v_lshlrev_b32 v{W+4*c+2*q}, 16, v{SH+2*c+q}"])
                L.append([f"v_and_b32 v{W+4*c+2*q+1}, 0xffff0000, v{SH+2*c+q}"])
        KL, KH = [110, 111, 112, 113], [88, 89, 109, 114]
        def unp(j): return [f"v_lshlrev_b32 v{KL[j%4]}, 16, v{KR+j}", f"v_and_b32 v{KH[j%4]}, 0xffff0000, v{KR+j}"]
        for j in range(3): L += [[s] for s in unp(j)]
        for s in range(8):
            ops = unp(s + 3)
            ops += [f"v_mul_f32 v{t0}, v{KL[s%4]}, v{W+3}", f"v_mul_f32 v{t1}, v{KH[s%4]}, v{W+7}"]
            for j in (2, 1, 0):
                ops += [f"v_fmac_f32 v{t0}, v{KL[(s+3-j)%4]}, v{W+j}", f"v_fmac_f32 v{t1}, v{KH[(s+3-j)%4]}, v{W+4+j}"]
            ops += [f"v_lshlrev_b32 v{t3}, 16, v{VR+s}", f"v_and_b32 v{t4}, 0xffff0000, v{VR+s}"]
            if s % 2 == 0:
                ops += [f"v_mul_f32 v118, v{t0}, v{t3}", f"v_mul_f32 v119, v{t1}, v{t4}"]
            else:
                ops += [f"v_mul_f32 v{t0}, v{t0}, v{t3}", f"v_mul_f32 v{t1}, v{t1}, v{t4}",
                        f"v_cvt_pk_bf16_f32 v{120+s//2}, v118, v{t0}", f"v_cvt_pk_bf16_f32 v{124+s//2}, v119, v{t1}"]
            L += [[x] for x in ops]
        L.append([f"s_mov_b32 s3, {WS_KVT}", (f"buffer_store_dwordx4 v[120:123], v{vKVT}, {S4(S_WS)}, s3 offen{' sc1' if FUSE else ''}", "pr2")])
        L.append([f"s_mov_b32 s3, {WS_KVT+5120}", (f"buffer_store_dwordx4 v[124:127], v{vKVT}, {S4(S_WS)}, s3 offen{' sc1' if FUSE else ''}", "pr2")])
        return L

    def kdma(e, tg):
        return [[f"s_add_u32 m0, s{sM0K}, {(e & 3) * 16384}", "s_nop 0",
                 (f"buffer_load_dwordx4 v{vL16}, {S4(S_WS)}, s{sHIST[e&3]} offen sc1 lds", tg)],
                [(f"buffer_load_dwordx4 v{vL16}, {S4(S_WS)}, s{sHIST[e&3]} offen offset:1024 sc1 lds", tg)]]
    vPOLL, vZERO, vFL = 24, 25, 26
    vCL = 31
    def only(wave, body, extra=None):
        lab = a.uid("ONLY")
        a(f"s_cmp_lg_u32 s{sW}, {wave}")
        a(f"s_cbranch_scc1 {lab}")
        if extra:
            a(extra); a(f"s_cbranch_scc1 {lab}")
        for x in body: a(x)
        a.label(lab)
    def clear_line():
        body = [f"s_lshl_b32 s3, s{sH}, 12", f"s_add_u32 s3, s3, {WS_FL2 - WS_FLG}", "v_lshl_add_u32 v116, v0, 2, s3",
                f"s_lshl_b32 s3, s{sH}, 2", f"s_add_u32 s3, s3, {WS_FL3 - WS_FLG - 16 * 4096}", "v_lshl_add_u32 v118, v0, 12, s3",
                "v_cmp_le_u32 vcc, 16, v0", "v_and_b32 v119, 7, v0", "v_lshl_add_u32 v119, v119, 3, s2", "v_cndmask_b32 v116, v116, v118, vcc",
                "v_lshrrev_b32 v118, 5, v119", "v_and_b32 v119, 31, v119", "v_lshlrev_b32 v119, 2, v119", "v_lshl_add_u32 v118, v118, 12, v119",
                "v_cmp_le_u32 vcc, 32, v0", f"v_mov_b32 v{vCL}, 0", f"s_mov_b32 s3, {WS_FLG}", "v_cndmask_b32 v116, v116, v118, vcc",
                f"buffer_store_dword v{vCL}, v116, {S4(S_WS)}, s3 offen sc1"]
        only(3, body, f"s_cmp_lg_u32 s{sP}, 0")
    def clean_set():
        only(3, ["s_mov_b64 exec, 1", "v_mov_b32 v117, 1", f"s_lshl_b32 s3, s{sH}, 2",
                 f"buffer_store_dword v117, v{vCL}, {S4(S_DBG)}, s3 offen sc1", "s_mov_b64 exec, -1"], f"s_cmp_lg_u32 s{sP}, 0")
    def clean_issue(site):
        a(f"s_bfe_u32 s{sT2}, s2, 0x10003")
        only(2, [f"v_and_b32 v{vCL}, 31, v0", f"v_lshlrev_b32 v{vCL}, 2, v{vCL}",
                 f"buffer_load_dword v{vCL}, v{vCL}, {S4(S_DBG)}, 0 offen sc1"], f"s_cmp_lg_u32 s{sT2}, {site}")
    def clean_check():
        lab = a.uid("CLN")
        a(f"s_cmp_lg_u32 s{sW}, 2")
        a(f"s_cbranch_scc1 {lab}D")
        a(f"s_mov_b32 s{sT2}, 0")
        a(f"s_branch {lab}C")
        a.label(lab)
        a("s_sleep 32")
        a(f"buffer_load_dword v{vCL}, v{vFL}, {S4(S_DBG)}, 0 offen sc1")
        a("s_waitcnt vmcnt(0)")
        a.label(lab + "C")
        a(f"v_cmp_eq_u32 vcc, 0, v{vCL}")
        a(f"s_add_u32 s{sT2}, s{sT2}, 1")
        a(f"s_cbranch_vccz {lab}D")
        a(f"s_cmp_lt_u32 s{sT2}, 100000")
        a(f"s_cbranch_scc1 {lab}")
        a.label(lab + "D")
    def publish(wave, which):
        only(wave, ["s_mov_b64 exec, 1", f"v_mov_b32 v{vPOLL}, 1", f"s_lshl_b32 s3, s{sH}, 10", f"s_add_u32 s3, s3, s{sP}",
                    "s_lshl_b32 s3, s3, 2", f"s_add_u32 s3, s3, {WS_FL2 + 32 * which}",
                    f"buffer_store_dword v{vPOLL}, v{vZERO}, {S4(S_WS)}, s3 offen sc1", "s_mov_b64 exec, -1"])
    def line_addr(ctx0): return [f"s_mov_b32 s3, {WS_FL3}"] if ctx0 else [f"s_lshl_b32 s3, s{sH}, 12", f"s_add_u32 s3, s3, {WS_FL2}"]
    def poll_issue(wave, ctx0=False):
        only(wave, line_addr(ctx0) + [
                    f"buffer_load_dword v{vPOLL}, v{vFL}, {S4(S_WS)}, s3 offen sc1"])
    def poll(wave, need, vmw, ctx0=False):
        if 'nopoll' in OPT: return
        lab = a.uid("POLL")
        a(f"s_cmp_lg_u32 s{sW}, {wave}")
        a(f"s_cbranch_scc1 {lab}D")
        for x in line_addr(ctx0): a(x)
        a(f"s_mov_b32 s{sT2}, 0")
        a(f"s_waitcnt vmcnt({vmw})")
        a(f"s_branch {lab}C")
        a.label(lab)
        a(f"s_sleep {OPT.get('sleep', 8)}")
        a(f"buffer_load_dword v{vPOLL}, v{vFL}, {S4(S_WS)}, s3 offen sc1")
        a("s_waitcnt vmcnt(0)")
        a.label(lab + "C")
        a(f"v_cmp_eq_u32 vcc, 0, v{vPOLL}")
        a(f"s_add_u32 s{sT2}, s{sT2}, 1")
        a(f"s_and_b32 s{S_T}, vcc_lo, {need}")
        a(f"s_cbranch_scc0 {lab}D")
        a(f"s_cmp_lt_u32 s{sT2}, 100000")
        a(f"s_cbranch_scc1 {lab}")
        a.label(lab + "D")

    a(f"s_waitcnt vmcnt({vm.wait(('kv', 0))})")
    a("s_barrier")
    sp.mark("kv0")
    a(f"s_cmp_lg_u32 s{sG}, 0")
    a("s_cbranch_scc1 M_KVV")
    vm0 = list(vm.tags)
    spn = sp.n
    vAX, vAQ, vST = 2, 6, 10
    QA = 128
    PK = lambda z: (240 + 4 * z) if z < 4 else (80 + 4 * (z - 4))
    endwait = []
    for part in range(2):
        if part: a.label("M_KVV")
        vm.tags = list(vm0)
        sp.n = spn
        S = Stream(a, vm, dist=int(OPT.get('kd', 12)), per_gap=int(OPT.get('kpg', 2)), bar_delay=int(OPT.get('kbd', 3)))
        S.fill_rate = float(OPT.get('fr', 1.0))
        rl = []
        sl = side_loads()
        for st in range(8):
            buf = (st & 1) * 32768
            for u in range(2):
                x = 2 * st + u
                for nt in range(4):
                    for hf in range(2):
                        rg = WFR[x & 1] + 4 * nt + 2 * hf
                        rl.append((32 * x + nt - 6, ("w", x, nt, hf),
                                   f"ds_read_b64_tr_b16 {vr(rg,2)}, v{vAW+nt} offset:{buf+u*8192+hf*1024}", rg, st))
                for kt in range(8):
                    rg = CFR + 4 * (kt % int(OPT.get('kring', 4)))
                    rl.append((32 * x + 4 * kt, ("c", x, kt), f"ds_read_b128 {vr(rg,4)}, v{vAC+u} offset:{buf+kt*2048}", rg, st))
                    for nt in range(4):
                        idx = kt * 4 + nt if part == 0 else ((kt >> 1) * 4 + nt) * 2 + (kt & 1)
                        acc = vr(ACC + 4 * idx, 4)
                        w, c = vr(WFR[x & 1] + 4 * nt, 4), vr(rg, 4)
                        cin = "0" if x == 0 else acc
                        S.op(f"{MFMA16} {acc}, {w}, {c}, {cin}" if part == 0 else f"{MFMA16} {acc}, {c}, {w}, {cin}",
                             [("w", x, nt, 0), ("w", x, nt, 1), ("c", x, kt)])
            after = kv_dma(st + 2) if st < 6 else []
            if st == 5: after = after + q_dma_x(0)
            if st == 6: after = q_dma_w(0) + q_dma_x(1) + q_dma_w(1)
            if st == 7: after = q_dma_x(2) + q_dma_w(2)
            if part == 1: after = [[] for _ in range(int(OPT.get('stag', 14)))] + after
            if 'noside' not in OPT:
                if st == 0: after = after + sl[1:5]
                if st == 1: after = after + sl[5:16]
                if st == 2: after = after + sl[16:] + sl[0:1]
            if part == 0:
                if st == 0: after = after + [clear_line]
                if st == 2: after = [clean_set] + after
                if st in (4, 5): after = after + [lambda st=st: clean_issue(st - 4)]
            tags = [("kv", st + 1)] if st < 7 else [("q", 0)]
            if st == 2: tags += ["prA", "pf"]
            if st == 4: tags += ["pr", "pfq"]
            after = [lambda st=st: sp.mark(f"k{st}")] + after
            S.barrier_after_stage(st, tags, after)
        rl.sort(key=lambda r: (r[4], r[0]))
        for r in rl: S.read(r[1], r[2], r[3], r[4], r[0])
        sj = side_jobs()
        nk = [i for i, it in enumerate(sj) if f"v_lshlrev_b32 v80, 16, v{SH}" in it][0]
        if 'noside' in OPT: sj = []
        for it in sj[:nk]: S.filler(3 * 64 + 24, 1, it)
        for it in sj[nk:]: S.filler(5 * 64, 1, it)
        S.run([0])
        sp.mark("kv")
        a(f"s_lshr_b32 s{sT}, s{sW}, 1")
        a(f"s_lshl_b32 s{sT}, s{sT}, 13")
        a(f"s_and_b32 s{sT2}, s{sW}, 1")
        a(f"s_lshl_b32 s{sT2}, s{sT2}, 2")
        a("s_mov_b32 s3, 65536")
        frag_addrs(vAX, sT, vAQ, sT2, 3)
        a(f"v_add_u32 v{vAX+2}, 131072, v{vAX}")
        a(f"v_add_u32 v{vAX+3}, 131072, v{vAX+1}")
        S = Stream(a, vm, dist=10, per_gap=2, bar_delay=3)
        S.fill_rate = 1.0
        rl = []
        KPUB, VPUB = int(OPT.get('kpub', 4)), int(OPT.get('vpub', 9))
        for k in range(10):
            xb = XB[(k + 2) % 3]
            for u in range(2):
                x = 2 * k + u
                for nt in range(4):
                    for hf in range(2):
                        rg = WFR[x & 1] + 4 * nt + 2 * hf
                        rl.append((16 * x + nt - 5, ("w", x, nt, hf),
                                   f"ds_read_b64_tr_b16 {vr(rg,2)}, v{vAQ+nt} offset:{(k%3)*16384+u*8192+hf*1024}", rg, k))
                for qi in range(4):
                    rg = CFR + 4 * qi
                    av = vAX + u + (2 if xb == 131072 else 0)
                    rl.append((16 * x + 4 * qi, ("c", x, qi), f"ds_read_b128 {vr(rg,4)}, v{av} offset:{(xb%131072)+qi*2048}", rg, k))
                    for nt in range(4):
                        acc = vr(QA + 4 * (qi * 4 + nt), 4)
                        S.op(f"{MFMA16} {acc}, {vr(WFR[x&1]+4*nt,4)}, {vr(rg,4)}, {'0' if x == 0 else acc}",
                             [("w", x, nt, 0), ("w", x, nt, 1), ("c", x, qi)])
            tags, after, pre = [("q", k + 1)], [], None
            if k + 3 <= 9: after = q_dma_x(k + 3) + q_dma_w(k + 3)
            if k == 0 and part == 0: pre = clean_check
            if k == KPUB: tags.append("pr2")
            if k == KPUB and part == 0: tags.append("st"); after = [lambda: publish(0, 0)] + after
            KP = int(OPT.get('kpoll', 7))
            if k == KP - 1 and part == 0: after = [lambda: (poll_issue(1), vm.add("mark"), vm.ghost.add("mark"))] + after
            if k == KP:
                if part == 0: pre = lambda: poll(1, 1, vm.wait("mark"))
                after = kdma(0, "k0") + kdma(1, "k0")
            if k == 8: after = after + kdma(2, "k2")
            if k == 9: tags = []
            if k == VPUB and part == 1: tags.append("st"); after = [lambda: publish(4, 1)] + after
            after = [lambda k=k: sp.mark(f"q{k}")] + after
            S.barrier_after_stage(k, tags, after, pre)
        rl.sort(key=lambda r: (r[4], r[0]))
        for r in rl: S.read(r[1], r[2], r[3], r[4], r[0])
        npre = 10
        for r in rl[:npre]: a(r[2])
        a(f"v_add_u32 v{vST}, {4096 >> part}, v{vL16}")
        a(f"v_mov_b32 v{vZERO}, 0")
        a(f"v_and_b32 v{vFL}, 31, v0")
        a(f"v_lshlrev_b32 v{vFL}, 2, v{vFL}")
        for z in list(range(4, 16)) + list(range(4)):
            for e in range(4):
                a(f"v_cvt_pk_bf16_f32 v{PK(z)+e}, v{ACC+8*z+2*e}, v{ACC+8*z+2*e+1}")
        SC = " " + OPT.get('stsc', 'sc1').replace('_', ' ')
        st0, stp = (2, int(OPT.get('stp', 5))) if part == 0 else (int(OPT.get('vst', 90)), int(OPT.get('stpv', 9)))
        for z in range(16 if 'nost' not in OPT else 1):
            j, c = z >> 2, z & 3
            S.filler(st0 + stp * z, 1, [f"s_add_u32 s3, s{sOB}, {j*8192}",
                     (f"buffer_store_dwordx4 {vr(PK(z),4)}, v{vST if c >> 1 else vL16}, {S4(S_WS)}, s3 offen offset:{(c&1)*1024}{SC}", "st")])
        S.run([0], preissued=npre)
        endwait.append(vm.wait("k0"))
        if part == 0: a("s_branch M_KVD")
    a.label("M_KVD")
    sp.mark("q")
    vKA, vVA, vD0, vQ2 = 2, 3, 4, 5
    FR, T, P, SS, O, Q, NEGM = 32, 64, [80, 88], [96, 112], 128, 192, 224
    vL, vL1, vTA, vX0, vNINF = 232, 234, 236, 238, 246
    D = int(OPT.get('D', 5))
    a(f"s_mov_b32 s{sT}, {f32hex(1.4426950408889634 * 128 ** -0.5)}")
    a(f"s_lshr_b32 s{sT2}, s{sW}, 1")
    a(f"s_lshl_b32 s{sT2}, s{sT2}, 14")
    a(f"s_and_b32 s3, s{sW}, 1")
    a("s_lshl_b32 s3, s3, 11")
    a(f"s_add_u32 s{sT2}, s{sT2}, s3")
    a(f"s_add_u32 s{sT2}, s{sT2}, 98304")
    a(f"v_add_u32 v6, s{sT2}, v{vL16}")
    a(f"s_lshl_b32 s{sT2}, s{sW}, 13")
    a(f"s_add_u32 s{sT2}, s{sT2}, 98304")
    a(f"v_add_u32 v{vQ2}, s{sT2}, v{vL16}")
    a(f"s_lshl_b32 s{sT2}, s{sG}, 13")
    a(f"v_add_u32 v{vKA}, s{sT2}, v{vL16}")
    a(f"v_add_u32 v{vVA}, 65536, v{vKA}")
    for f in range(8):
        for e in range(4):
            r = QA + 8 * f + 2 * e
            a(f"v_mul_f32 v{r}, s{sT}, v{r}")
            a(f"v_mul_f32 v{r+1}, s{sT}, v{r+1}")
            a(f"v_cvt_pk_bf16_f32 v{Q+4*f+e}, v{r}, v{r+1}")
        a(f"ds_write_b128 v6, {vr(Q+4*f,4)} offset:{(f>>1)*4096+(f&1)*1024}")
    a("v_and_b32 v7, 15, v0")
    a("v_lshrrev_b32 v8, 4, v0")
    a(f"s_lshl_b32 s{sT}, s{sRB}, 5")
    a(f"v_add_u32 v{vD0}, s{sT}, v7")
    a("v_lshlrev_b32 v8, 2, v8")
    a(f"v_sub_u32 v{vD0}, v{vD0}, v8")
    a(f"v_mov_b32 v{vNINF}, 0xff800000")
    for r in range(8): a(f"v_mov_b32 v{NEGM+r}, 0")
    a(f"v_mov_b32 v{vL}, 0")
    a(f"v_mov_b32 v{vL+1}, 0")
    a(f"s_waitcnt vmcnt({min(endwait)}) lgkmcnt(0)")
    a("s_barrier")
    poll_issue(5)
    sp.mark("qx")
    def kread(e, t): return f"ds_read_b128 {vr(FR+4*t,4)}, v{vKA} offset:{(e&3)*16384+t*1024}"
    def vread(e, i): return f"ds_read_b128 {vr(FR+4*i,4)}, v{vVA} offset:{(e&3)*16384+i*1024}"
    for f in range(8): a(f"ds_read_b128 {vr(Q+4*f,4)}, v{vQ2} offset:{f*1024}")
    for i in range(D): a(kread(0, i))
    for r in range(64): a(f"v_mov_b32 v{O+r}, 0")
    a(f"s_mov_b32 s{sS}, 0")

    handlers = []
    def xreduce(op, x, tmp):
        a(f"v_mov_b32 v{tmp}, v{x}")
        a(f"v_permlane16_swap_b32 v{x}, v{tmp}")
        a(f"{op} v{x}, v{x}, v{tmp}")
        a(f"v_mov_b32 v{tmp}, v{x}")
        a(f"v_permlane32_swap_b32 v{x}, v{tmp}")
        a(f"{op} v{x}, v{x}, v{tmp}")
    def rowmax(dst, tmp, src):
        a(f"v_max3_f32 v{dst}, v{src}, v{src+1}, v{src+2}")
        a(f"v_max3_f32 v{dst}, v{dst}, v{src+3}, v{src+4}")
        a(f"v_max3_f32 v{dst}, v{dst}, v{src+5}, v{src+6}")
        a(f"v_max_f32 v{dst}, v{dst}, v{src+7}")
        xreduce("v_max_f32", dst, tmp)
    def sm_ops(Sc, Pw):
        f = []
        def post(q):
            t = vTA + (q >> 3)
            if q % 8 == 0: f.append((1, [f"v_add_f32 v{t}, v{T+q%8}, v{T+(q+1)%8}"]))
            else:
                f.append((1, [f"v_add_f32 v{t}, v{t}, v{T+q%8}"]))
                f.append((1, [f"v_add_f32 v{t}, v{t}, v{T+(q+1)%8}"]))
            f.append((1, [f"v_cvt_pk_bf16_f32 v{Pw+q//2}, v{T+q%8}, v{T+(q+1)%8}"]))
        for r in range(16):
            f.append((2, [f"v_exp_f32 v{T+r%8}, v{Sc+r}"]))
            if r % 2 == 1 and r >= 3: post(r - 3)
        post(14)
        f.append((1, [f"v_max_f32 v{vX0}, v{vTA}, v{vTA+1}"]))
        return f
    def store_ctx(qis, sct, obase):
        n = 0
        for qi in qis:
            for u in range(4):
                d = T + (n % 4) * 4
                n += 1
                src = obase(qi) + 8 * u
                for e in range(4): a(f"v_cvt_pk_bf16_f32 v{d+e}, v{src+2*e}, v{src+2*e+1}")
                if u == 0 and qi == 1 and len(qis) == 2: a(f"s_add_u32 s{sct}, s{sct}, 131072")
                a(f"buffer_store_dwordx4 {vr(d,4)}, v{vL16}, {S4(S_WS)}, s{sct} offen offset:{u*1024}{' sc1' if FUSE else ''}")

    def slot(j, name, qk=True, sm=True, pv=True, nxt="k", dma=True, last=False, vlist=None, prefetched=True, prebar=None, vmw=4):
        par = j & 1
        if vlist is None: vlist = [j]
        Sc, Sn, Pw, Pr = SS[1 - par], SS[par], P[1 - par], P[par]
        a.label(name)
        if sm or pv:
            a(f"s_bitcmp1_b64 s[{sEV}:{sEV+1}], s{sS}")
            a(f"s_cbranch_scc1 {name}_EV")
            a.label(name + "_GO")
            handlers.append(("ev", name, Sc))
        ms = []
        if qk:
            for t in range(8):
                kt, u = t >> 2, t & 3
                mm = []
                for qi in range(2):
                    d = vr(Sn + 8 * qi + 4 * kt, 4)
                    mm.append(f"{MFMA16} {d}, {vr(FR+4*t,4)}, {vr(Q+16*qi+4*u,4)}, {vr(NEGM+4*qi,4) if u == 0 else d}")
                ms.append((mm, kread(j, t)))
        if pv:
            for i in range(8):
                mm = []
                for qi in range(2):
                    o = vr(O + 32 * qi + 4 * i, 4)
                    mm.append(f"{MFMA16} {o}, {vr(FR+4*i,4)}, {vr(Pr+4*qi,4)}, {o}")
                ms.append((mm, vread(j - 2, i)))
        rd = [m[1] for m in ms]
        if nxt == "k": rd += [kread(j + 1, i) for i in range(D)]
        elif nxt == "v": rd += [vread(j - 1, i) for i in range(D)]
        dm = []
        def vd(e): return [[f"s_add_u32 m0, s{sM0V}, {(e & 3) * 16384}", "s_nop 0",
                            f"buffer_load_dwordx4 v{vL16}, {S4(S_V)}, s{sHIST[e&3]} offen sc1 lds"],
                           [f"buffer_load_dwordx4 v{vL16}, {S4(S_V)}, s{sHIST[e&3]} offen offset:1024 sc1 lds"]]
        if dma:
            for e in vlist: dm += vd(e)
            h0, h1 = sHIST[(j + 3) & 3], sHIST[(j + 2) & 3]
            pre = [f"s_cmp_ge_u32 s{sS}, s{sWRAP}", f"s_cselect_b32 s{sT}, s{sBASE}, 8192", f"s_add_u32 s{sT}, s{sT}, s{h1}",
                   f"s_add_u32 m0, s{sM0K}, {((j + 3) & 3) * 16384}", f"s_cmp_ge_u32 s{sS}, 31", f"s_cselect_b32 s{h0}, {OOB}, s{sT}"]
            dm.append(pre + [f"buffer_load_dwordx4 v{vL16}, {S4(S_WS)}, s{h0} offen sc1 lds"])
            dm.append([f"buffer_load_dwordx4 v{vL16}, {S4(S_WS)}, s{h0} offen offset:1024 sc1 lds"])
        groups = []
        n = len(ms)
        if not prefetched:
            for x in rd[:D]: a(x)
        dpos = list(range(1, n, 2)) if len(dm) <= n // 2 else list(range(n))
        for m in range(n):
            pre = []
            if m % 2 == 0:
                out = min(len(rd), m + D) - (m + 2)
                pre.append(f"s_waitcnt lgkmcnt({max(out, 0)})")
            post = [rd[m + D]] if m + D < len(rd) else []
            if m in dpos and dpos.index(m) < len(dm): post += dm[dpos.index(m)]
            groups.append((pre, ms[m][0][0], []))
            groups.append(([], ms[m][0][1], post))
        interleave(a, groups, sm_ops(Sc, Pw) if sm else [], max(2 * n - 2, 1))
        if sm:
            a(f"v_cmp_lt_f32 vcc, s{sTHR}, v{vX0}")
            a(f"s_cbranch_vccnz {name}_SLOW")
            a.label(name + "_RET")
            a(f"v_add_f32 v{vL}, v{vL}, v{vTA}")
            a(f"v_add_f32 v{vL+1}, v{vL+1}, v{vTA+1}")
            handlers.append(("slow", name, Sc, Sn, Pw))
        if not last:
            a(f"s_add_u32 s{sS}, s{sS}, 1")
            if prebar: prebar()
            a(f"s_waitcnt vmcnt({vmw if dma else 0})")
            a("s_barrier")

    slot(0, "AT_S0", sm=False, pv=False, vlist=[], prebar=lambda: poll(5, 0x101, 2), vmw=2)
    slot(1, "AT_S1", pv=False, vlist=[0, 1])
    sp.mark("s1")
    poll_issue(2)
    slot(2, "AT_S2", prebar=lambda: poll(2, 0xffff, 4))
    sp.mark("s2")
    a("s_branch AT_L3")
    slot(2, "AT_L2"); slot(3, "AT_L3"); slot(0, "AT_L0")
    a(f"s_cmp_eq_u32 s{sS}, 33")
    a("s_cbranch_scc1 AT_P33")
    slot(1, "AT_L1")
    a("s_branch AT_L2")
    a.label("AT_P33")
    if FUSE: poll_issue(6, True)
    slot(1, "AT_S33", nxt=None, prebar=(lambda: poll(6, -1, 4, True)) if FUSE else None)
    slot(2, "AT_S34", qk=False, nxt=None, dma=False, prefetched=False)
    slot(3, "AT_S35", qk=False, sm=False, nxt=None, dma=False, last=True, prefetched=False)
    a("s_barrier")
    xreduce("v_add_f32", vL, vX0)
    xreduce("v_add_f32", vL + 1, vX0 + 1)
    a(f"s_mul_i32 s{sT}, s{sW}, {8192+512}")
    a(f"s_xor_b32 s{sT2}, s{sW}, 4")
    a(f"s_mul_i32 s{sT2}, s{sT2}, {8192+512}")
    a(f"v_add_u32 v14, s{sT}, v{vL16}")
    a(f"v_add_u32 v15, s{sT2}, v{vL16}")
    a("v_lshlrev_b32 v16, 3, v0")
    a(f"v_add_u32 v17, s{sT2}, v16")
    a(f"v_add_u32 v16, s{sT}, v16")
    X0, X1, X2, X3, X4, X5 = range(vX0, vX0 + 6)
    a(f"s_cmp_eq_u32 s{sG}, 0")
    a("s_cbranch_scc1 AT_MA")
    a(f"v_mov_b32 v{X4}, v{NEGM}")
    a(f"v_mov_b32 v{X5}, v{vL}")
    a(f"v_mov_b32 v{X0}, v{NEGM+4}")
    a(f"v_mov_b32 v{X1}, v{vL+1}")
    for q in range(8): a(f"ds_write_b128 v14, {vr(O+4*q,4)} offset:{1024*q}")
    for r in range(32): a(f"v_mov_b32 v{O+r}, v{O+32+r}")
    a(f"s_add_u32 s{sCT2}, s{sCT2}, 131072")
    a("s_branch AT_MB")
    a.label("AT_MA")
    a(f"v_mov_b32 v{X4}, v{NEGM+4}")
    a(f"v_mov_b32 v{X5}, v{vL+1}")
    a(f"v_mov_b32 v{X0}, v{NEGM}")
    a(f"v_mov_b32 v{X1}, v{vL}")
    for q in range(8): a(f"ds_write_b128 v14, {vr(O+32+4*q,4)} offset:{1024*q}")
    a.label("AT_MB")
    a(f"ds_write_b64 v16, v[{X4}:{X5}] offset:8192")
    a("s_waitcnt lgkmcnt(0)")
    a("s_barrier")
    a(f"ds_read_b64 v[{X2}:{X3}], v17 offset:8192")
    for q in range(8): a(f"ds_read_b128 {vr(O+32+4*q,4)}, v15 offset:{1024*q}")
    a("s_waitcnt lgkmcnt(8)")
    a(f"v_min_f32 v{vTA}, v{X0}, v{X2}")
    a(f"v_sub_f32 v{X0}, v{vTA}, v{X0}")
    a(f"v_sub_f32 v{X2}, v{vTA}, v{X2}")
    a(f"v_exp_f32 v{X0}, v{X0}")
    a(f"v_exp_f32 v{X2}, v{X2}")
    a(f"v_mul_f32 v{vTA}, v{X1}, v{X0}")
    a(f"v_fmac_f32 v{vTA}, v{X3}, v{X2}")
    a(f"v_rcp_f32 v{vTA}, v{vTA}")
    a(f"v_mul_f32 v{X0}, v{X0}, v{vTA}")
    a(f"v_mul_f32 v{X2}, v{X2}, v{vTA}")
    for r in range(32): a(f"v_mul_f32 v{O+r}, v{O+r}, v{X0}")
    a("s_waitcnt lgkmcnt(0)")
    for r in range(32): a(f"v_fmac_f32 v{O+r}, v{O+32+r}, v{X2}")
    store_ctx((0,), sCT2, lambda qi: O)
    if FUSE:
        sp.mark("att")
        gen_tail.gen_tail(a, {k: v for k, v in globals().items() if not k.startswith("__")}, dict(sW=sW, sH=sH, sP=sP, sp=sp))
    elif STAMP:
        a("s_waitcnt vmcnt(0)")
        sp.mark("end")
        a("s_waitcnt lgkmcnt(0)")
        sp.flush(100, sW, 0, slot=0); sp.flush(100, sW, 4, slot=1)
    a.label("M_END")
    a("s_endpgm")
    for hd in handlers:
        if hd[0] == "ev":
            _, name, Sc = hd
            a.label(name + "_EV")
            a(f"s_sub_u32 s{sT}, s{sS}, s{sN1}")
            a(f"s_cmp_lg_u32 s{sT}, 2")
            a(f"s_cbranch_scc1 {name}_E1")
            xreduce("v_add_f32", vL1, vX0)
            xreduce("v_add_f32", vL1 + 1, vX0 + 1)
            a(f"v_rcp_f32 v{vL1}, v{vL1}")
            a(f"v_rcp_f32 v{vL1+1}, v{vL1+1}")
            for r in range(64): a(f"v_mul_f32 v{O+r}, v{O+r}, v{vL1+(r>>5)}")
            store_ctx((0, 1), sCT1, lambda qi: O + 32 * qi)
            for r in range(64): a(f"v_mov_b32 v{O+r}, 0")
            a.label(name + "_E1")
            if FUSE:
                only(0, ["s_mov_b64 exec, 1", f"v_mov_b32 v{vX0}, 1", f"s_lshl_b32 s3, s{sP}, 10", f"s_add_u32 s3, s3, s{sH}", "s_lshl_b32 s3, s3, 2",
                         f"s_add_u32 s3, s3, {WS_FL3}", f"buffer_store_dword v{vX0}, v{vZERO}, {S4(S_WS)}, s3 offen sc1", "s_mov_b64 exec, -1"],
                     f"s_cmp_lg_u32 s{sT}, 3")
            a(f"s_cmp_lg_u32 s{sT}, 0")
            a(f"s_cbranch_scc1 {name}_E2")
            for t in range(8): a(f"ds_read_b128 {vr(Q+4*t,4)}, v{vQ2} offset:{32768+1024*t}")
            for r in range(8): a(f"v_mov_b32 v{NEGM+r}, 0")
            a("s_waitcnt lgkmcnt(0)")
            a.label(name + "_E2")
            a(f"s_sub_u32 s{sT2}, s{sS}, s{sMST}")
            a(f"s_sub_u32 s{sT2}, s{sT2}, 1")
            a(f"s_cmp_lt_u32 s{sT2}, 4")
            a(f"s_cbranch_scc1 {name}_EM")
            a(f"s_cmp_lt_u32 s{sS}, 33")
            a(f"s_cbranch_scc1 {name}_E3")
            a(f"s_sub_u32 s{sT2}, s{sS}, 33")
            a(f"s_lshl_b32 s{sT2}, s{sT2}, 1")
            a(f"s_add_u32 s{sT2}, s{sT2}, s{sG}")
            a.label(name + "_EM")
            a(f"s_lshl_b32 s{sT2}, s{sT2}, 5")
            a(f"v_subrev_u32 v{vX0}, s{sT2}, v{vD0}")
            for qi in range(2):
                for kt in range(2):
                    for e in range(4):
                        a(f"v_cmp_le_i32 s[{sMK+2*e}:{sMK+2*e+1}], {16*kt+e-16*qi}, v{vX0}")
                    for e in range(4):
                        r = Sc + 8 * qi + 4 * kt + e
                        a(f"v_cndmask_b32 v{r}, v{vNINF}, v{r}, s[{sMK+2*e}:{sMK+2*e+1}]")
            a.label(name + "_E3")
            a(f"s_cmp_eq_u32 s{sT}, 1")
            a(f"s_cbranch_scc1 {name}_E4")
            a(f"s_cmp_lg_u32 s{sS}, 1")
            a(f"s_cbranch_scc1 {name}_GO")
            a.label(name + "_E4")
            for qi in range(2):
                a(f"v_mov_b32 v{vL1+qi}, v{vL+qi}")
                a(f"v_mov_b32 v{vL+qi}, 0")
                rowmax(vX0 + qi, vX0 + 2 + qi, Sc + 8 * qi)
            for r in range(8): a(f"v_sub_f32 v{NEGM+r}, v{NEGM+r}, v{vX0+(r>>2)}")
            for r in range(16): a(f"v_sub_f32 v{Sc+r}, v{Sc+r}, v{vX0+(r>>3)}")
            a(f"s_branch {name}_GO")
        else:
            _, name, Sc, Sn, Pw = hd
            a.label(name + "_SLOW")
            for qi in range(2):
                rowmax(vX0 + qi, vX0 + 2 + qi, Sc + 8 * qi)
                a(f"v_max_f32 v{vX0+qi}, 0, v{vX0+qi}")
                a(f"v_exp_f32 v{vX0+2+qi}, -v{vX0+qi}")
            for r in range(8): a(f"v_sub_f32 v{NEGM+r}, v{NEGM+r}, v{vX0+(r>>2)}")
            for r in range(16): a(f"v_sub_f32 v{Sn+r}, v{Sn+r}, v{vX0+(r>>3)}")
            for r in range(16): a(f"v_sub_f32 v{Sc+r}, v{Sc+r}, v{vX0+(r>>3)}")
            for r in range(64): a(f"v_mul_f32 v{O+r}, v{O+r}, v{vX0+2+(r>>5)}")
            for qi in range(2): a(f"v_mul_f32 v{vL+qi}, v{vL+qi}, v{vX0+2+qi}")
            for c, ops in sm_ops(Sc, Pw):
                for x in ops: a(x)
            a(f"s_branch {name}_RET")
    return dict(name="gated_mix__ssm_conv_h3__compressed_kv_cla__prompt_kernel" if FUSE else "main_kernel", grid=256, block=512, lds=163840, vgpr=256)

import gen as G1
G1.STAMP = False
KERNELS = {"main": gen_main, "conv": G1.gen_conv, "oproj": G1.gen_oproj, "tail": lambda a: gen_tail.gen_tail(a, {k: v for k, v in globals().items() if not k.startswith("__")})}

def build(names, path, verbose=False):
    hdr = open("gated_mix__ssm_conv_h3__compressed_kv_cla__prompt.s.ref").read().split("\n")
    hdr = [l for l in hdr if l.startswith(";") and "@launch" not in l and "Override" not in l and "grid=ceil" not in l]
    codes, descs, launches = [], [], []
    for n in names:
        a = Asm()
        info = KERNELS[n](a)
        k = fix_hazards(a.lines, verbose)
        print(f"{n}: {len(a.lines)} lines, {k} nops inserted")
        c, d = kernel_text(info["name"], a.lines, info["vgpr"], extra="  .amdhsa_float_denorm_mode_32 3\n")
        codes.append(c); descs.append(d)
        kn = "" if "plain" in OPT else f"kernel={info['name']} "
        launches.append(f"; @launch {kn}grid=({info['grid']},1,1) block=({info['block']},1,1) lds={info['lds']}")
    txt = "\n".join(hdr + launches) + '\n.amdgcn_target "amdgcn-amd-amdhsa--gfx950"\n.text\n' + "\n".join(codes) + \
          '\n.section .rodata,"a"\n' + "\n".join(descs)
    open(path, "w").write(txt)

if __name__ == "__main__":
    names = sys.argv[2].split(",") if len(sys.argv) > 2 else list(KERNELS)
    build(names, sys.argv[1] if len(sys.argv) > 1 else "k2.s", verbose="-v" in sys.argv)
```

```python
def gen_tail(a, E, fused=None):
    globals().update(E)
    SC = ' sc1' if fused else ''
    S_WS, S_X, S_OUT, S_H, S_D, S_DBG = 4, 8, 12, 16, 20, 24
    sW, sT, sT2, sMT, sNT, sKO, sCH, sLB, sNC = range(28, 37)
    NS = int(OPT.get('ns', 4))
    vB, ST, ACC = 4, 32, 176
    RB = 0
    YB = 61440
    CNT = YB + 10240
    CB = CNT + 256
    CHB = 4 * 4160 + 512 + 4096
    RDY = CNT + 64
    sPUB = 37
    if fused:
        sp = fused["sp"]
        a(f"s_sub_u32 s{sPUB+1}, 15, s{fused['sP']}")
        a(f"s_lshl_b32 s{sPUB+1}, s{sPUB+1}, 12")
        a(f"s_lshl_b32 s{sPUB}, s{fused['sH']}, 2")
        a(f"s_add_u32 s{sPUB}, s{sPUB}, s{sPUB+1}")
        a(f"s_add_u32 s{sPUB}, s{sPUB}, {WS_FL3}")
        a(f"s_mov_b32 s{sW}, s{fused['sW']}")
    else:
        sp = Stamps(a, base=70, region=1)
        a("s_cmp_ge_u32 s2, 256")
        a("s_cbranch_scc1 T_END")
        sp.mark("start")
    for d, k in ((S_WS, 'ws'), (S_X, 'A_q'), (S_OUT, 'out'), (S_H, 'ssm_k'), (S_D, 'ssm_D'), (S_DBG, 'dbg')):
        a(f"s_load_dwordx2 s[{d}:{d+1}], s[0:1], {KA[k]}")
    if not fused:
        a("v_lshrrev_b32 v1, 6, v0")
        a("v_and_b32 v0, 63, v0")
        a(f"v_readfirstlane_b32 s{sW}, v1")
    omap = int(OPT.get('omap', 0))
    if omap == 0:
        a(f"s_and_b32 s{sMT}, s2, 7")
        a(f"s_lshl_b32 s{sMT}, s{sMT}, 2")
        a(f"s_bfe_u32 s{sT}, s2, 0x20003")
        a(f"s_add_u32 s{sMT}, s{sMT}, s{sT}")
        a(f"s_lshr_b32 s{sNT}, s2, 5")
    elif omap == 1:
        a(f"s_and_b32 s{sMT}, s2, 3")
        a(f"s_lshl_b32 s{sMT}, s{sMT}, 3")
        a(f"s_bfe_u32 s{sT}, s2, 0x30003")
        a(f"s_add_u32 s{sMT}, s{sMT}, s{sT}")
        a(f"s_and_b32 s{sNT}, s2, 4")
        a(f"s_lshr_b32 s{sT}, s2, 6")
        a(f"s_add_u32 s{sNT}, s{sNT}, s{sT}")
    else:
        a(f"s_and_b32 s{sMT}, s2, 1")
        a(f"s_lshl_b32 s{sMT}, s{sMT}, 4")
        a(f"s_bfe_u32 s{sT}, s2, 0x40003")
        a(f"s_add_u32 s{sMT}, s{sMT}, s{sT}")
        a(f"s_and_b32 s{sNT}, s2, 6")
        a(f"s_lshr_b32 s{sT}, s2, 7")
        a(f"s_add_u32 s{sNT}, s{sNT}, s{sT}")
    a("v_lshlrev_b32 v1, 4, v0")
    for d, sz in ((S_WS, 64 * MB), (S_X, 2621440), (S_OUT, 2621440), (S_H, 2621440), (S_D, 1280), (S_DBG, 256)):
        a(f"s_mov_b32 s{d+2}, {sz}")
        a(f"s_mov_b32 s{d+3}, 0x00020000")
    a(f"s_cmp_ge_u32 s{sW}, 4")
    a("s_cbranch_scc1 T_SIDE")
    a(f"s_mul_i32 s{sT}, s{sMT}, {4*CS}")
    a(f"s_add_u32 s{sT}, s{sT}, {WS_CTX}")
    a(f"v_add_u32 v{vB}, s{sT}, v1")
    for i in range(1, 4): a(f"v_add_u32 v{vB+i}, {i*CS}, v{vB}")
    a(f"s_mul_i32 s{sT}, s{sNT}, {5*CS}")
    a(f"s_add_u32 s{sT}, s{sT}, {WS_WOT}")
    a(f"v_add_u32 v{vB+4}, s{sT}, v1")
    for j in range(1, 5): a(f"v_add_u32 v{vB+4+j}, {j*CS}, v{vB+4}")
    a(f"s_lshl_b32 s{sKO}, s{sW}, 15")
    a("s_waitcnt lgkmcnt(0)")
    vm = VM()
    KO = [sKO, 38]
    a(f"s_add_u32 s{KO[1]}, s{KO[0]}, 4096")
    def load(ks, n):
        base = ST + (ks % NS) * 36
        return f"buffer_load_dwordx4 {vr(base+4*n,4)}, v{vB+n}, {S4(S_WS)}, s{KO[(ks//4)&1]} offen offset:{(ks%4)*1024}{SC}"
    def emit(x, tag):
        a(x); vm.add(tag)
    if fused:
        for ks in range(NS):
            for n in range(4, 9): emit(load(ks, n), ks)
        a(f"s_waitcnt vmcnt({5 * NS})")
        a("s_barrier")
        sp.mark("tb")
        a(f"v_mov_b32 v2, {RDY}")
        a(f"s_mov_b32 s{sT2}, 0")
        a.label("T_RDY")
        a("ds_read_b32 v3, v2")
        a("s_waitcnt lgkmcnt(0)")
        a(f"v_readfirstlane_b32 s{sT}, v3")
        a(f"s_add_u32 s{sT2}, s{sT2}, 1")
        a(f"s_cmp_lg_u32 s{sT}, 0")
        a("s_cbranch_scc1 T_RDY2")
        a("s_sleep 2")
        a(f"s_cmp_lt_u32 s{sT2}, 4000000")
        a("s_cbranch_scc1 T_RDY")
        a.label("T_RDY2")
        for ks in range(NS):
            for n in range(4): emit(load(ks, n), ks)
    else:
        for ks in range(NS):
            for n in range(9): emit(load(ks, n), ks)
        a("s_barrier")
    a("v_and_b32 v2, 15, v0")
    a("v_lshrrev_b32 v3, 4, v0")
    a(f"s_lshl_b32 s{sT}, s{sMT}, 6")
    a(f"s_lshl_b32 s{sT2}, s{sW}, 4")
    a(f"s_add_u32 s{sT}, s{sT}, s{sT2}")
    a(f"v_add_u32 v2, s{sT}, v2")
    a("v_mul_u32_u24 v13, 1280, v2")
    a("v_lshl_add_u32 v13, v3, 3, v13")
    a(f"s_mul_i32 s{sT}, s{sNT}, 160")
    a(f"v_add_u32 v13, s{sT}, v13")
    a("v_lshlrev_b32 v2, 2, v2")
    AC = lambda i, j: ACC + (i * 5 + j) * 4
    assert NS == 4
    for ks in range(32):
        base = ST + (ks % NS) * 36
        a(f"s_waitcnt vmcnt({vm.wait(ks)})")
        if ks == 0: sp.mark("t0")
        sp.mark(f"o{ks}")
        if ks % 4 == 0 and ks: a(f"s_add_u32 s{KO[(ks//4+1)&1]}, s{KO[(ks//4+1)&1]}, 8192")
        if ks == int(OPT.get('ksig', 27)):
            a(f"v_mov_b32 v26, {CNT}")
            a("v_mov_b32 v27, 4")
            a("s_mov_b64 exec, 1")
            a("ds_add_u32 v26, v27")
            a("s_mov_b64 exec, -1")
        for j in range(5):
            for i in range(4):
                acc = vr(AC(i, j), 4)
                a(f"{MFMA16} {acc}, {vr(base+16+4*j,4)}, {vr(base+4*i,4)}, {'0' if ks == 0 else acc}")
                if ks + NS < 32:
                    if i == 3: emit(load(ks + NS, 4 + j), ks + NS)
                    if j == 4: emit(load(ks + NS, i), ks + NS)
                elif ks + NS == 32 and i == 3:
                    emit(f"buffer_load_dwordx2 {vr(16+2*j,2)}, v13, {S4(S_X)}, 0 offen offset:{32*j}", "x")
                    if j == 0:
                        a(f"s_mov_b32 s{sT}, {WS_G}")
                        emit(f"buffer_load_dword v14, v2, {S4(S_WS)}, s{sT} offen{SC}", "x")
    sp.mark("t1")
    for i in range(4):
        lab = a.uid("TSK")
        a(f"s_cmp_eq_u32 s{sW}, {i}")
        a(f"s_cbranch_scc1 {lab}")
        a(f"s_sub_u32 s{sT}, s{sW}, {i+1}")
        a(f"s_and_b32 s{sT}, s{sT}, 3")
        a(f"s_mul_i32 s{sT}, s{sT}, 5120")
        a(f"v_add_u32 v4, s{sT}, v1")
        for j in range(5): a(f"ds_write_b128 v4, {vr(AC(i,j),4)} offset:{RB+i*15360+j*1024}")
        a(f"s_branch {lab}N")
        a.label(lab)
        for r in range(20): a(f"v_mov_b32 v{32+(r>>2)*16+12+(r&3)}, v{AC(i,0)+r}")
        a.label(lab + "N")
    a(f"s_mul_i32 s{sT}, s{sW}, 15360")
    a(f"v_add_u32 v5, s{sT}, v1")
    a("v_lshrrev_b32 v7, 2, v0")
    a("v_lshlrev_b32 v7, 7, v7")
    a("v_and_b32 v8, 3, v0")
    a("v_lshl_add_u32 v7, v8, 3, v7")
    a(f"s_lshl_b32 s{sT}, s{sW}, 5")
    a(f"s_add_u32 s{sT}, s{sT}, {YB}")
    a(f"v_add_u32 v7, s{sT}, v7")
    a("s_waitcnt vmcnt(0) lgkmcnt(0)")
    a("s_barrier")
    sp.mark("t2")
    for j in range(5):
        for src in range(3):
            a(f"ds_read_b128 {vr(32+(j*4+src)*4,4)}, v5 offset:{RB+src*5120+j*1024}")
        a(f"ds_read_b64_tr_b16 {vr(112+2*j,2)}, v7 offset:{j*2048}")
    a("v_sub_f32 v15, 1.0, v14")
    for x in rnd_pair(26, 15, 15, 15, 27): a(x)
    for j in range(5):
        a(f"s_waitcnt lgkmcnt({min(15, 4*(4-j))})")
        b = 32 + j * 16
        for r in range(4):
            a(f"v_add_f32 v{b+r}, v{b+r}, v{b+4+r}")
            a(f"v_add_f32 v{b+8+r}, v{b+8+r}, v{b+12+r}")
        for r in range(4): a(f"v_add_f32 v{b+r}, v{b+r}, v{b+8+r}")
        for hf in range(2):
            L = rnd_pair(26, b + 2 * hf, b + 2 * hf + 1, b + 4, b + 5)
            L += [f"v_mul_f32 v{b+4}, v15, v{b+4}", f"v_mul_f32 v{b+5}, v15, v{b+5}"] + rnd_pair(26, b + 4, b + 5, b + 4, b + 5)
            L += [f"v_lshlrev_b32 v{b+6}, 16, v{16+2*j+hf}", f"v_and_b32 v{b+7}, 0xffff0000, v{16+2*j+hf}",
                  f"v_lshlrev_b32 v{b+8}, 16, v{112+2*j+hf}", f"v_and_b32 v{b+9}, 0xffff0000, v{112+2*j+hf}",
                  f"v_mul_f32 v{b+6}, v{b+6}, v{b+8}", f"v_mul_f32 v{b+7}, v{b+7}, v{b+9}"] + rnd_pair(26, b + 6, b + 7, b + 6, b + 7)
            L += [f"v_mul_f32 v{b+6}, v14, v{b+6}", f"v_mul_f32 v{b+7}, v14, v{b+7}"] + rnd_pair(26, b + 6, b + 7, b + 6, b + 7)
            L += [f"v_add_f32 v{b+6}, v{b+6}, v{b+4}", f"v_add_f32 v{b+7}, v{b+7}, v{b+5}",
                  f"v_cvt_pk_bf16_f32 v{b+12+hf}, v{b+6}, v{b+7}"]
            for x in L: a(x)
        a(f"buffer_store_dwordx2 {vr(b+12,2)}, v13, {S4(S_OUT)}, 0 offen offset:{32*j}")
    if STAMP:
        a("s_waitcnt vmcnt(0)"); sp.mark("end"); a("s_waitcnt lgkmcnt(0)")
        sp.flush(100, sW, 0, slot=0); sp.flush(100, sW, 3, slot=1) if fused else None
    a("s_endpgm")
    a.label("T_SIDE")
    a("s_setprio 3")
    a("s_waitcnt lgkmcnt(0)")
    a(f"s_and_b32 s{sNC}, s2, 1")
    a(f"s_sub_u32 s{sNC}, 3, s{sNC}")
    a(f"s_cmp_lg_u32 s{sW}, 7")
    a("s_cbranch_scc1 T_CONV")
    a(f"v_mov_b32 v2, {CNT}")
    a("v_mov_b32 v3, 0")
    a("ds_write_b32 v2, v3")
    a("ds_write_b32 v2, v3 offset:64")
    a("s_waitcnt vmcnt(0) lgkmcnt(0)")
    a("s_barrier")
    if fused:
        a("v_mov_b32 v4, 1")
        a("s_mov_b64 exec, 1")
        a(f"buffer_store_dword v4, v3, {S4(S_WS)}, s{sPUB} offen sc1")
        a("s_mov_b64 exec, -1")
        a("v_and_b32 v3, 31, v0")
        a("v_lshlrev_b32 v3, 2, v3")
        a(f"s_lshr_b32 s3, s{sMT}, 1")
        a("s_lshl_b32 s3, s3, 12")
        a(f"s_add_u32 s3, s3, {WS_FL3}")
        a(f"s_mov_b32 s{sT2}, 0")
        a("s_branch T_CP1")
        a.label("T_CP")
        a(f"s_sleep {OPT.get('csleep', 8)}")
        a.label("T_CP1")
        a(f"buffer_load_dword v5, v3, {S4(S_WS)}, s3 offen sc1")
        a("s_waitcnt vmcnt(0)")
        a("v_cmp_eq_u32 vcc, 0, v5")
        a(f"s_add_u32 s{sT2}, s{sT2}, 1")
        a("s_cbranch_vccz T_CP2")
        a(f"s_cmp_lt_u32 s{sT2}, 100000")
        a("s_cbranch_scc1 T_CP")
        a.label("T_CP2")
        a("ds_write_b32 v2, v4 offset:64")
    a("v_lshrrev_b32 v2, 3, v0")
    a("v_and_b32 v4, 7, v0")
    a("v_lshlrev_b32 v4, 4, v4")
    a("v_lshl_add_u32 v2, v2, 12, v4")
    a(f"s_lshl_b32 s3, s{sNT}, 12")
    a(f"s_add_u32 s3, s3, {WS_FLG}")
    a("v_and_b32 v3, 31, v0")
    a("v_lshlrev_b32 v3, 2, v3")
    a(f"s_mov_b32 s{sT2}, 0")
    a(f"v_mov_b32 v6, {CNT}")
    a.label("T_LPOLL")
    a("s_sleep 8")
    a("ds_read_b32 v5, v6")
    a("s_waitcnt lgkmcnt(0)")
    a(f"v_readfirstlane_b32 s{sT}, v5")
    a(f"s_add_u32 s{sT2}, s{sT2}, 1")
    a(f"s_cmp_ge_u32 s{sT}, {OPT.get('nsig', 16)}")
    a("s_cbranch_scc1 T_POLL1")
    a(f"s_cmp_lt_u32 s{sT2}, 100000")
    a("s_cbranch_scc1 T_LPOLL")
    a.label("T_POLL")
    a(f"s_sleep {OPT.get('tsleep', 24)}")
    a.label("T_POLL1")
    a(f"buffer_load_dword v5, v3, {S4(S_WS)}, s3 offen sc1")
    a("s_waitcnt vmcnt(0)")
    a("v_cmp_eq_u32 vcc, 0, v5")
    a(f"s_add_u32 s{sT2}, s{sT2}, 1")
    a("s_cbranch_vccz T_POK")
    a(f"s_cmp_lt_u32 s{sT2}, 100000")
    a("s_cbranch_scc1 T_POLL")
    a.label("T_POK")
    a(f"s_mul_i32 s{sT}, s{sNT}, {80*4096}")
    a(f"s_lshl_b32 s{sT2}, s{sMT}, 7")
    a(f"s_add_u32 s{sT}, s{sT}, s{sT2}")
    a(f"s_add_u32 s{sT}, s{sT}, {WS_Y2T}")
    for i in range(10):
        a(f"s_mov_b32 m0, {YB + 1024*i}")
        if i: a(f"s_add_u32 s{sT}, s{sT}, {8*4096}")
        a(f"buffer_load_dwordx4 v2, {S4(S_WS)}, s{sT} offen sc1 lds")
    a("s_waitcnt vmcnt(0)")
    a("s_barrier")
    a("s_endpgm")
    a.label("T_CONV")
    a(f"s_sub_u32 s{sT}, s{sW}, 4")
    a(f"s_cmp_ge_u32 s{sT}, s{sNC}")
    a("s_cbranch_scc1 T_WEND")
    a(f"s_lshr_b32 s{sCH}, s2, 1")
    a(f"s_mul_i32 s{sCH}, s{sCH}, 5")
    a(f"s_and_b32 s{sT2}, s2, 1")
    a(f"s_mul_i32 s{sT2}, s{sT2}, 3")
    a(f"s_add_u32 s{sCH}, s{sCH}, s{sT2}")
    a(f"s_add_u32 s{sCH}, s{sCH}, s{sT}")
    a(f"s_mul_i32 s{sLB}, s{sT}, {CHB}")
    a(f"s_add_u32 s{sLB}, s{sLB}, {CB}")
    if fused:
        a("s_waitcnt vmcnt(0)")
        a("s_barrier")
    KVB = 4 * 4160 + 512
    a(f"s_lshl_b32 s{sT}, s{sCH}, 12")
    a(f"s_add_u32 s{sT2}, s{sT}, {WS_KVT}")
    a(f"s_add_u32 m0, s{sLB}, {KVB}")
    a(f"v_add_u32 v3, s{sT}, v1")
    for i in range(4): a(f"buffer_load_dwordx4 v1, {S4(S_WS)}, s{sT2} offen offset:{1024*i}{SC} lds")
    for rr in range(4):
        if rr: a("v_subrev_u32 v3, 2, v3")
        a("v_add_u32 v4, 1024, v3")
        a(f"s_add_u32 m0, s{sLB}, {rr*4160+64}")
        a(f"buffer_load_dwordx4 v3, {S4(S_H)}, 0 offen lds")
        a(f"s_add_u32 m0, s{sLB}, {rr*4160+64+1024}")
        for i in range(3): a(f"buffer_load_dwordx4 v4, {S4(S_H)}, 0 offen offset:{1024*i} lds")
    a("v_mov_b32 v8, 0")
    a("v_mov_b32 v9, 0")
    a("v_lshlrev_b32 v5, 3, v0")
    a(f"v_add_u32 v6, s{sLB}, v5")
    a(f"ds_write_b64 v6, v[8:9] offset:{4*4160}")
    a("v_and_b32 v6, 7, v0")
    a("v_bfe_u32 v7, v0, 3, 2")
    a("v_lshlrev_b32 v12, 1, v6")
    a(f"buffer_load_ushort v13, v12, {S4(S_H)}, s{sT} offen")
    a(f"s_lshl_b32 s{sT}, s{sCH}, 1")
    a(f"buffer_load_ushort v14, v8, {S4(S_D)}, s{sT} offen")
    a("v_add_u32 v6, v6, v7")
    a("v_mul_u32_u24 v12, 4160, v7")
    a("v_lshl_add_u32 v12, v6, 1, v12")
    a(f"v_add_u32 v12, s{sLB}, v12")
    vA, vBq, vO = 16, 17, 15
    a("v_bfe_u32 v18, v0, 2, 2")
    a("v_mul_u32_u24 v18, 4160, v18")
    a("v_and_b32 v19, 3, v0")
    a("v_lshl_add_u32 v18, v19, 3, v18")
    a("v_lshrrev_b32 v19, 4, v0")
    a("v_lshlrev_b32 v20, 4, v19")
    a("v_sub_u32 v18, v18, v20")
    a(f"s_add_u32 s{sT}, s{sLB}, {64+32-8}")
    a(f"v_add_u32 v{vA}, s{sT}, v18")
    a("v_and_b32 v21, 15, v0")
    a("v_lshl_add_u32 v18, v21, 5, v20")
    a(f"s_add_u32 s{sT}, s{sLB}, {KVB-32-7*64}")
    a(f"v_add_u32 v{vBq}, s{sT}, v18")
    a(f"v_lshlrev_b32 v{vO}, 5, v21")
    a(f"v_lshl_add_u32 v{vO}, v19, 3, v{vO}")
    a("v_lshlrev_b32 v20, 3, v19")
    a("v_sub_u32 v20, v21, v20")
    a("v_mov_b32 v22, 0xffff")
    MK = 24
    for q in range(4):
        a(f"v_cmp_le_i32 vcc, {2*q-16}, v20")
        a(f"v_cmp_le_i32 s[40:41], {2*q+1-16}, v20")
        a(f"v_cndmask_b32 v{MK+q}, 0, v22, vcc")
        a(f"v_cndmask_b32 v{MK+q}, v{MK+q}, -1, s[40:41]")
    if not fused: a("s_barrier")
    a("s_waitcnt vmcnt(0)")
    if fused: sp.off = True
    sp.n = 2; sp.mark("t0")
    a("v_cmp_gt_u32 vcc, 8, v6")
    a("s_and_b32 exec_lo, vcc_lo, exec_lo")
    a("s_mov_b32 exec_hi, 0")
    a("ds_write_b16 v12, v13 offset:64")
    a("s_mov_b64 exec, -1")
    a("s_setprio 0")
    FA, FB, Y = [32, 96], [64, 128], 160
    S = Stream(a, VM(), dist=14, per_gap=2)
    rl = []
    for d0 in range(8):
        s = d0 & 1
        base = 36 * d0
        n = 0
        for m in range(8):
            o = 64 * (d0 + 8 * m)
            rl.append((base + n, ("a", d0, m, 0), f"ds_read_b64_tr_b16 {vr(FA[s]+4*m,2)}, v{vA} offset:{o+8}", FA[s] + 4 * m))
            rl.append((base + n, ("a", d0, m, 1), f"ds_read_b64_tr_b16 {vr(FA[s]+4*m+2,2)}, v{vA} offset:{o}", FA[s] + 4 * m + 2))
            for c in range(8 - m):
                if m == 0: rl.append((base + n - 4, ("b", d0, c), f"ds_read_b128 {vr(FB[s]+4*c,4)}, v{vBq} offset:{512*c+64*(7-d0)}", FB[s] + 4 * c))
                acc = vr(Y + 4 * (c + m), 4)
                txt = f"{MFMA16} {acc}, {vr(FA[s]+4*m,4)}, {vr(FB[s]+4*c,4)}, {'0' if (d0 == 0 and m == 0) else acc}"
                if d0 == 0 and m == 0 and c == 0:
                    txt = "\n".join(f"v_and_b32 v{FA[0]+q}, v{FA[0]+q}, v{MK+q}" for q in range(4)) + "\n" + txt
                S.op(txt, [("a", d0, m, 0), ("a", d0, m, 1), ("b", d0, c)])
                n += 1
    rl.sort(key=lambda r: r[0])
    for r in rl: S.read(r[1], r[2], r[3], 0, r[0])
    S.run([0])
    sp.mark("t1")
    a("s_setprio 3")
    a(f"s_add_u32 s{sT}, s{sLB}, {KVB}")
    a(f"v_add_u32 v5, s{sT}, v{vO}")
    for t in range(8): a(f"ds_read_b64 {vr(32+2*t,2)}, v5 offset:{512*t}")
    a("v_lshlrev_b32 v14, 16, v14")
    a(f"s_lshl_b32 s{sT}, s{sCH}, 12")
    a(f"s_add_u32 s{sT}, s{sT}, {WS_Y2T}")
    a("s_waitcnt lgkmcnt(0)")
    for t in range(8):
        for hf in range(2):
            r = Y + 4 * t + 2 * hf
            kvr = 32 + 2 * t + hf
            L = rnd_pair(52, r, r + 1, 50, 51)
            L += [f"v_lshlrev_b32 v53, 16, v{kvr}", f"v_and_b32 v54, 0xffff0000, v{kvr}",
                  "v_mul_f32 v53, v53, v14", "v_mul_f32 v54, v54, v14"] + rnd_pair(52, 53, 54, 53, 54)
            L += ["v_add_f32 v50, v50, v53", "v_add_f32 v51, v51, v54", f"v_cvt_pk_bf16_f32 v{64+2*t+hf}, v50, v51"]
            for x in L: a(x)
        a(f"buffer_store_dwordx2 {vr(64+2*t,2)}, v{vO}, {S4(S_WS)}, s{sT} offen offset:{512*t} sc1")
    sp.mark("t2")
    a("s_waitcnt vmcnt(0)")
    if STAMP and not fused:
        sp.mark("end"); a("s_waitcnt lgkmcnt(0)"); sp.flush(100, sW, 4, slot=1)
    a("s_mov_b64 exec, 1")
    a(f"v_mov_b32 v2, {CNT}")
    a("v_mov_b32 v3, 1")
    a("ds_add_rtn_u32 v4, v2, v3")
    a("s_waitcnt lgkmcnt(0)")
    a(f"v_readfirstlane_b32 s{sT}, v4")
    a(f"s_add_u32 s{sT}, s{sT}, 1")
    a(f"s_and_b32 s{sT}, s{sT}, 3")
    a(f"s_cmp_lg_u32 s{sT}, s{sNC}")
    a("s_cbranch_scc1 T_END")
    a("s_lshr_b32 s3, s2, 5")
    a("s_lshl_b32 s3, s3, 12")
    a(f"s_and_b32 s{sT}, s2, 31")
    a(f"s_lshl_b32 s{sT}, s{sT}, 2")
    a(f"s_add_u32 s3, s3, s{sT}")
    a(f"s_add_u32 s3, s3, {WS_FLG}")
    a(f"buffer_store_dword v3, v8, {S4(S_WS)}, s3 offen sc1")
    a.label("T_WEND")
    a("s_waitcnt vmcnt(0)")
    a.label("T_END")
    a("s_endpgm")
    return dict(name="tail_kernel", grid=256, block=512, lds=CB + 3 * CHB, vgpr=256)
```

```python
import sys, struct
from asmlib import *
from sched import *
import gen_tail

MB = 1 << 20
WS_KF, WS_VF, WS_CTX, WS_WOT, WS_KVT, WS_Y2T, WS_G = 0, 16 * MB, 32 * MB, 49 * MB, 56 * MB, 60 * MB, 63 * MB
KA = dict(A_q=0, A_k=8, A_v=16, shift=24, ssm_k=32, ssm_D=40, B_x=48, c_kv=56, w_q=64, w_uk=72, w_uv=80, w_o=88,
          gate=96, out=104, dbg=112, ws=120)
MFMA32 = "v_mfma_f32_32x32x16_bf16"
MFMA16 = "v_mfma_f32_16x16x32_bf16"
STAMP = "-stamp" in sys.argv
OPT = {x[2:].split("=")[0]: (x.split("=")[1] if "=" in x else "1") for x in sys.argv if x.startswith("--")}
WS_FLG = 63 * MB + 524288
WS_FL2 = 63 * MB + 655360
WS_FL3 = WS_FL2 + 131072
FUSE = 'nofuse' not in OPT
CS = 131072 + int(OPT.get('cspad', 1024))
OOB = "0x80000000"
def f32hex(x): return "0x%08x" % struct.unpack("<I", struct.pack("<f", x))[0]

def srd(a, d, lo, hi, size, add=0):
    if add:
        a(f"s_add_u32 s{d}, s{lo}, {add}")
        a(f"s_addc_u32 s{d+1}, s{hi}, 0")
    else:
        a(f"s_mov_b32 s{d}, s{lo}")
        a(f"s_mov_b32 s{d+1}, s{hi}")
    a(f"s_mov_b32 s{d+2}, {size}")
    a(f"s_mov_b32 s{d+3}, 0x00020000")
def S4(d): return f"s[{d}:{d+3}]"

class Stamps:
    def __init__(self, a, base=70, region=0):
        self.a, self.base, self.n, self.region = a, base, 0, region
    off = False
    def mark(self, name=""):
        if not STAMP or self.off: return
        if name not in OPT.get("marks", "start,kv,q,s1,end,t0,t1,t2").split(","): return
        assert self.base + 2 * self.n + 3 <= 101
        self.a(f"s_memtime s[{self.base+2*self.n}:{self.base+2*self.n+1}]")
        self.a(f"s_memrealtime s[{self.base+2*self.n+2}:{self.base+2*self.n+3}]")
        self.n += 2
    def flush(self, wg, sW, wave, slot=0):
        if not STAMP: return
        a = self.a
        lab = a.uid("STK")
        a(f"s_cmp_lg_u32 s{sW}, {wave}")
        a(f"s_cbranch_scc1 {lab}")
        a(f"s_load_dwordx2 s[60:61], s[0:1], {KA['ws']}")
        a("s_waitcnt lgkmcnt(0)")
        a(f"s_add_u32 s60, s60, {128*MB + self.region*65536 + slot*64}")
        a("s_addc_u32 s61, s61, 0")
        a("s_mov_b32 s62, 65536")
        a("s_mov_b32 s63, 0x00020000")
        a("s_lshl_b32 s3, s2, 7")
        a("v_mov_b32 v1, s3")
        for i in range(self.n):
            a(f"v_mov_b32 v2, s{self.base+2*i}")
            a(f"buffer_store_dword v2, v1, s[60:63], 0 offen offset:{4*i}")
        a("s_getreg_b32 s3, hwreg(HW_REG_XCC_ID)")
        a("v_mov_b32 v2, s3")
        a(f"buffer_store_dword v2, v1, s[60:63], 0 offen offset:60")
        a("s_waitcnt vmcnt(0)")
        a.label(lab)

def rnd_pair(d, lo, hi, olo, ohi):
    return [f"v_cvt_pk_bf16_f32 v{d}, v{lo}, v{hi}", f"v_lshlrev_b32 v{olo}, 16, v{d}", f"v_and_b32 v{ohi}, 0xffff0000, v{d}"]

def interleave(a, mfmas, fillers, ngaps):
    tot = sum(c for c, _ in fillers)
    fi, acc = 0, 0.0
    for g, (pre, m, post) in enumerate(mfmas):
        for x in pre: a(x)
        a(m)
        for x in post: a(x)
        lim = tot * min(1.0, (g + 1) / ngaps) if ngaps else tot
        while fi < len(fillers) and acc + fillers[fi][0] * 0.5 <= lim:
            acc += fillers[fi][0]
            for x in fillers[fi][1]: a(x)
            fi += 1
    while fi < len(fillers):
        for x in fillers[fi][1]: a(x)
        fi += 1

def gen_main(a):
    S_C, S_W, S_WS, S_V, S_X, S_WQ, S_DBG = 4, 8, 12, 16, 20, 24, 28
    (sW, sH, sP, sG, sRB, sT, sT2, sCO, sWO, sM0C, sM0W, sOB, sROW, sXO, sQWO, sN1, sS, sMST, sTHR, sM0K, sM0V,
     sBASE, sCT1, sCT2, sWRAP) = range(32, 57)
    sHIST = [57, 58, 59, 60]
    sEV = 62
    PT = 64
    S_T = 76
    sMK = 4
    vL16, vCD, vWD, vAC, vAW, vXD, vQW, vWOT, vKVT = 1, 2, 6, 10, 12, 16, 20, 22, 23
    WFR, CFR, ACC = [32, 48], 64, 128
    sp = Stamps(a, base=80)
    vm = VM()
    a("s_cmp_ge_u32 s2, 256")
    a("s_cbranch_scc1 M_END")
    sp.mark("start")
    a(f"s_load_dwordx2 s[44:45], s[0:1], {KA['c_kv']}")
    a(f"s_load_dwordx4 s[48:51], s[0:1], {KA['w_uk']}")
    a("v_lshrrev_b32 v1, 6, v0")
    a("v_mov_b32 v31, v0")
    a("v_and_b32 v0, 63, v0")
    a(f"v_readfirstlane_b32 s{sW}, v1")
    a(f"s_and_b32 s{sH}, s2, 7")
    a("s_lshr_b32 s3, s2, 6")
    a("s_lshl_b32 s3, s3, 3")
    a(f"s_add_u32 s{sH}, s{sH}, s3")
    a(f"s_bfe_u32 s{sP}, s2, 0x30003")
    a(f"s_lshr_b32 s{sG}, s{sW}, 2")
    a("v_lshrrev_b32 v24, 3, v0")
    a("v_and_b32 v25, 7, v0")
    a("v_lshrrev_b32 v26, 4, v0")
    a("v_xor_b32 v25, v25, v26")
    a("v_lshlrev_b32 v25, 4, v25")
    a("v_xor_b32 v27, 64, v25")
    a(f"v_lshl_add_u32 v{vCD}, v24, 10, v25")
    a(f"v_lshl_add_u32 v{vCD+1}, v24, 10, v27")
    a(f"v_add_u32 v{vCD+1}, {8192-1024}, v{vCD+1}")
    a(f"v_add_u32 v{vCD+2}, {2*(8192-1024)}, v{vCD}")
    a(f"v_add_u32 v{vCD+3}, {2*(8192-1024)}, v{vCD+1}")
    a("v_and_b32 v28, 15, v0")
    a("v_lshlrev_b32 v29, 1, v26")
    a("v_xor_b32 v28, v28, v29")
    a("v_lshlrev_b32 v28, 4, v28")
    a(f"v_lshl_add_u32 v{vWD}, v26, 13, v28")
    a(f"v_add_u32 v{vWD+1}, {4*8192-1024}, v{vWD}")
    a(f"v_xor_b32 v{vWD+2}, 128, v{vWD}")
    a(f"v_add_u32 v{vWD+2}, {2*(4*8192-1024)}, v{vWD+2}")
    a(f"v_add_u32 v{vWD+3}, {4*8192-1024}, v{vWD+2}")
    a(f"s_and_b32 s{sRB}, s{sW}, 3")
    a(f"s_lshl_b32 s{sCO}, s{sP}, 18")
    a(f"s_lshl_b32 s{sT}, s{sW}, 15")
    a(f"s_add_u32 s{sCO}, s{sCO}, s{sT}")
    a(f"s_lshl_b32 s{sWO}, s{sRB}, 17")
    a(f"s_lshl_b32 s{sT}, s{sH}, 8")
    a(f"s_add_u32 s{sWO}, s{sWO}, s{sT}")
    a(f"s_lshl_b32 s{sM0C}, s{sW}, 12")
    a(f"s_add_u32 s{sM0W}, s{sM0C}, 65536")
    a("s_waitcnt lgkmcnt(0)")
    srd(a, S_C, 44, 45, 2 * MB)
    a(f"s_cmp_eq_u32 s{sG}, 0")
    a(f"s_cselect_b32 s{S_W}, s48, s50")
    a(f"s_cselect_b32 s{S_W+1}, s49, s51")
    a(f"s_mov_b32 s{S_W+2}, {4*MB}")
    a(f"s_mov_b32 s{S_W+3}, 0x00020000")
    def kv_dma(st):
        buf = (st & 1) * 32768
        tg = ("kv", st)
        out = [[f"s_add_u32 m0, s{sM0C}, {buf}", f"s_add_u32 s{sT}, s{sCO}, {st*128}",
                (f"buffer_load_dwordx4 v{vCD}, {S4(S_C)}, s{sT} offen lds", tg)]]
        for i in range(1, 4): out.append([(f"buffer_load_dwordx4 v{vCD+i}, {S4(S_C)}, s{sT} offen offset:{i*1024} lds", tg)])
        out.append([f"s_add_u32 m0, s{sM0W}, {buf}", f"s_add_u32 s{sT}, s{sWO}, {st*64*8192}",
                    (f"buffer_load_dwordx4 v{vWD}, {S4(S_W)}, s{sT} offen lds", tg)])
        for i in range(1, 4): out.append([(f"buffer_load_dwordx4 v{vWD+i}, {S4(S_W)}, s{sT} offen offset:{i*1024} lds", tg)])
        return out
    def emit(items):
        for it in items:
            for x in it:
                if isinstance(x, tuple): a(x[0]); vm.add(x[1])
                else: a(x)
    emit(kv_dma(0))
    a(f"s_load_dwordx2 s[44:45], s[0:1], {KA['A_q']}")
    a(f"s_load_dwordx2 s[46:47], s[0:1], {KA['w_q']}")
    a(f"s_load_dwordx4 s[48:51], s[0:1], {KA['dbg']}")
    a(f"s_load_dwordx4 s[{PT}:{PT+3}], s[0:1], {KA['A_k']}")
    a(f"s_load_dwordx2 s[{PT+4}:{PT+5}], s[0:1], {KA['shift']}")
    a(f"s_load_dwordx4 s[{PT+8}:{PT+11}], s[0:1], {KA['w_o']}")
    a(f"v_lshlrev_b32 v{vL16}, 4, v0")
    a("v_mul_u32_u24 v28, 1280, v24")
    a(f"v_add_u32 v{vXD}, v28, v25")
    a(f"v_add_u32 v{vXD+1}, v28, v27")
    a(f"v_add_u32 v{vXD+1}, {8*1280-1024}, v{vXD+1}")
    a(f"v_add_u32 v{vXD+2}, {2*(8*1280-1024)}, v{vXD}")
    a(f"v_add_u32 v{vXD+3}, {2*(8*1280-1024)}, v{vXD+1}")
    a(f"s_and_b32 s3, s{sW}, 1")
    a("s_lshl_b32 s3, s3, 7")
    a(f"v_xor_b32 v{vQW}, s3, v{vWD}")
    a(f"v_add_u32 v{vQW+1}, {4*8192-1024}, v{vQW}")
    emit(kv_dma(1))
    vPF, vPFW, vSC = 116, 115, 117
    if 'nopf' not in OPT:
        a(f"v_lshlrev_b32 v{vPF}, 7, v0")
        a("v_lshrrev_b32 v24, 1, v0")
        a("v_and_b32 v25, 1, v0")
        a("v_lshlrev_b32 v25, 7, v25")
        a(f"v_lshl_add_u32 v{vPFW}, v24, 13, v25")
        a("s_lshl_b32 s3, s2, 13")
        a(f"s_lshl_b32 s{sT}, s{sW}, 10")
        a(f"s_add_u32 s3, s3, s{sT}")
        a("s_mov_b64 exec, 0xff")
        emit([[(f"buffer_load_dword v{vSC}, v{vPF}, {S4(S_C)}, s3 offen sc1", "pf")]])
        a(f"s_lshl_b32 s3, s{sP}, 19")
        a(f"s_add_u32 s3, s3, s{sWO}")
        a("s_mov_b32 exec_lo, -1")
        emit([[(f"buffer_load_dword v{vSC}, v{vPFW}, {S4(S_W)}, s3 offen sc1", "pf")]])
        a("s_mov_b64 exec, -1")
    def frag_addrs(vR, rowoff_sgpr, vWa, nt_sgpr, wbase_sgpr):
        a("v_and_b32 v24, 15, v0")
        a("v_lshrrev_b32 v25, 4, v0")
        a("v_bfe_u32 v26, v0, 1, 3")
        a("v_xor_b32 v26, v26, v25")
        a("v_lshlrev_b32 v26, 4, v26")
        a("v_lshl_add_u32 v26, v24, 7, v26")
        a(f"v_add_u32 v{vR}, s{rowoff_sgpr}, v26")
        a(f"v_xor_b32 v{vR+1}, 64, v{vR}")
        a("v_bfe_u32 v24, v0, 2, 2")
        a("v_lshl_add_u32 v26, v25, 3, v24")
        a("v_lshlrev_b32 v26, 8, v26")
        a("v_and_b32 v27, 3, v0")
        a("v_lshl_add_u32 v26, v27, 3, v26")
        a(f"v_add_u32 v26, s{wbase_sgpr}, v26")
        a("v_and_b32 v25, 1, v25")
        a("v_lshl_add_u32 v24, v25, 2, v24")
        a(f"v_xor_b32 v24, s{nt_sgpr}, v24")
        for nt in range(4):
            a(f"v_xor_b32 v25, {nt}, v24")
            a(f"v_lshl_add_u32 v{vWa+nt}, v25, 5, v26")
    a(f"s_and_b32 s{sT}, s{sW}, 1")
    a(f"s_lshl_b32 s{sT}, s{sT}, 14")
    a(f"s_and_b32 s{sT2}, s{sW}, 2")
    a(f"s_lshl_b32 s{sT2}, s{sT2}, 1")
    a(f"s_lshl_b32 s3, s{sG}, 14")
    a("s_add_u32 s3, s3, 65536")
    frag_addrs(vAC, sT, vAW, sT2, 3)
    WOB = 131072
    a("v_lshrrev_b32 v24, 2, v0")
    a("v_mul_u32_u24 v24, 672, v24")
    a("v_and_b32 v25, 3, v0")
    a("v_lshl_add_u32 v24, v25, 3, v24")
    a(f"s_lshl_b32 s{sT}, s{sW}, 5")
    a(f"s_add_u32 s{sT}, s{sT}, {WOB}")
    a(f"v_add_u32 v{vWOT}, s{sT}, v24")
    if 'kvmap' in OPT:
        a("v_and_b32 v25, 7, v31")
        a("v_lshrrev_b32 v26, 3, v31")
    else:
        a("v_mul_u32_u24 v25, 1639, v31")
        a("v_lshrrev_b32 v25, 16, v25")
        a("v_mul_u32_u24 v26, 40, v25")
        a("v_sub_u32 v26, v31, v26")
    a(f"s_lshr_b32 s{sT}, s2, 3")
    a(f"s_lshl_b32 s{sT}, s{sT}, 6")
    a(f"v_lshl_add_u32 v25, v25, 3, s{sT}")
    a(f"s_and_b32 s{sT2}, s2, 7")
    a(f"s_mul_i32 s{sT2}, s{sT2}, 40")
    a(f"v_add_u32 v26, s{sT2}, v26")
    a("v_mul_u32_u24 v27, 1280, v25")
    a("v_lshl_add_u32 v27, v26, 2, v27")
    a("v_add_u32 v28, 5120, v27")
    a("v_subrev_u32 v29, 3840, v27")
    a(f"v_mov_b32 v30, {OOB}")
    a("v_cmp_eq_u32 vcc, 0, v25")
    a(f"v_lshlrev_b32 v{vKVT}, 13, v26")
    a(f"v_lshl_add_u32 v{vKVT}, v25, 1, v{vKVT}")
    a("v_cndmask_b32 v29, v29, v30, vcc")
    a("v_cmp_gt_u32 vcc, 320, v31")
    a("v_cndmask_b32 v27, v30, v27, vcc")
    a("v_cndmask_b32 v28, v30, v28, vcc")
    a("v_cndmask_b32 v29, v30, v29, vcc")
    a(f"v_cndmask_b32 v{vKVT}, v30, v{vKVT}, vcc")
    a("v_lshlrev_b32 v26, 4, v26")
    a("v_mul_u32_u24 v24, 20, v0")
    a("s_waitcnt lgkmcnt(0)")
    srd(a, S_WS, 50, 51, 64 * MB)
    srd(a, S_V, 50, 51, 16 * MB, WS_VF)
    srd(a, S_X, 44, 45, 2621440)
    srd(a, S_WQ, 46, 47, 5242880)
    srd(a, S_DBG, 48, 49, 256)
    a(f"s_sub_u32 s{sT}, 15, s{sP}")
    a(f"s_lshl_b32 s{sT2}, s{sRB}, 5")
    a(f"s_lshl_b32 s{sCT2}, s{sT}, 7")
    a(f"s_add_u32 s{sCT2}, s{sCT2}, s{sT2}")
    a(f"s_lshl_b32 s{sCT1}, s{sP}, 7")
    a(f"s_add_u32 s{sCT1}, s{sCT1}, s{sT2}")
    a(f"s_cmp_eq_u32 s{sG}, 0")
    a(f"s_cselect_b32 s{sROW}, s{sCT1}, s{sCT2}")
    a(f"s_mul_i32 s{sXO}, s{sROW}, 1280")
    a(f"s_lshl_b32 s{sQWO}, s{sW}, 16")
    a(f"s_lshl_b32 s{sT}, s{sH}, 8")
    a(f"s_add_u32 s{sQWO}, s{sQWO}, s{sT}")
    a(f"s_lshl_b32 s{sT}, s{sH}, 12")
    a(f"s_add_u32 s{sT}, s{sT}, {WS_CTX}")
    for c in (sCT1, sCT2):
        a(f"s_mul_i32 s{c}, s{c}, {CS // 16}")
        a(f"s_add_u32 s{c}, s{c}, s{sT}")
    a(f"s_lshl_b32 s{sOB}, s{sH}, 6")
    a(f"s_lshl_b32 s{sT}, s{sP}, 3")
    a(f"s_add_u32 s{sOB}, s{sOB}, s{sT}")
    a(f"s_and_b32 s{sT}, s{sW}, 1")
    a(f"s_lshl_b32 s{sT}, s{sT}, 2")
    a(f"s_add_u32 s{sOB}, s{sOB}, s{sT}")
    a(f"s_lshl_b32 s{sOB}, s{sOB}, 13")
    a(f"s_bfe_u32 s{sT}, s{sW}, 0x10001")
    a(f"s_add_u32 s{sT2}, s{sG}, 11")
    a(f"s_lshl_b32 s{sT}, s{sT}, s{sT2}")
    a(f"s_add_u32 s{sOB}, s{sOB}, s{sT}")
    a(f"s_lshl_b32 s{sT}, s{sG}, 24")
    a(f"s_add_u32 s{sOB}, s{sOB}, s{sT}")
    a(f"s_lshl_b32 s{sN1}, s{sP}, 2")
    a(f"s_add_u32 s{sN1}, s{sN1}, 4")
    a(f"s_lshl_b32 s{sHIST[0]}, s{sH}, 19")
    a(f"s_lshl_b32 s{sT}, s{sRB}, 11")
    a(f"s_add_u32 s{sHIST[0]}, s{sHIST[0]}, s{sT}")
    a(f"s_lshl_b32 s{sM0K}, s{sW}, 11")
    a(f"s_add_u32 s{sM0V}, s{sM0K}, 65536")
    a(f"s_sub_u32 s{sT2}, s{sN1}, 4")
    a(f"s_sub_u32 s{sWRAP}, s{sN1}, 2")
    a(f"s_sub_u32 s{sWRAP}, s{sWRAP}, s{sG}")
    a(f"s_mov_b32 s{sBASE}, 16384")
    a(f"s_cmp_eq_u32 s{sG}, 0")
    a(f"s_cselect_b32 s{sMST}, s{sT2}, 99")
    a(f"s_cselect_b32 s{sN1}, s{sN1}, 100")
    a(f"s_add_u32 s{sHIST[1]}, s{sHIST[0]}, 8192")
    a(f"s_add_u32 s{sHIST[2]}, s{sHIST[0]}, 16384")
    a(f"s_mov_b64 s[{sEV}:{sEV+1}], {(127 if FUSE else 63) if 'noev' not in OPT else 64}")
    a(f"s_add_u32 s{sT}, s{sMST}, 1")
    a(f"s_lshl_b64 s[{sEV}:{sEV+1}], s[{sEV}:{sEV+1}], s{sT}")
    a(f"s_or_b32 s{sEV}, s{sEV}, 2")
    a(f"s_or_b32 s{sEV+1}, s{sEV+1}, 6")
    a(f"s_mov_b32 s{sTHR}, 0x40004000")
    a(f"s_mov_b32 s{S_T+3}, 0x00020000")

    XB = [0, 32768, 131072]
    def q_dma_x(k):
        tg = ("q", k)
        out = [[f"s_add_u32 m0, s{sM0C}, {XB[(k+2)%3]}", f"s_add_u32 s{sT}, s{sXO}, {k*128}",
                (f"buffer_load_dwordx4 v{vXD}, {S4(S_X)}, s{sT} offen lds", tg)]]
        for i in range(1, 4): out.append([(f"buffer_load_dwordx4 v{vXD+i}, {S4(S_X)}, s{sT} offen offset:{i*1024} lds", tg)])
        return out
    def q_dma_w(k):
        tg = ("q", k)
        return [[f"s_add_u32 m0, s{sM0V}, {(k%3)*16384}", f"s_add_u32 s{sT}, s{sQWO}, {k*64*8192}",
                 (f"buffer_load_dwordx4 v{vQW}, {S4(S_WQ)}, s{sT} offen lds", tg)],
                [(f"buffer_load_dwordx4 v{vQW+1}, {S4(S_WQ)}, s{sT} offen offset:1024 lds", tg)]]
    GX, GXT, GWT, GW, KR, VR, SH = 80, 84, 85, 86, 90, 101, 110
    def tsrd(lo, size): return [f"s_mov_b32 s{S_T}, s{lo}", f"s_mov_b32 s{S_T+1}, s{lo+1}", f"s_mov_b32 s{S_T+2}, {size}"]
    def side_loads():
        L = []
        it = tsrd(PT + 8, 5242880) + [f"s_lshr_b32 s3, s2, 1", "s_lshl_b32 s3, s3, 5", f"s_lshl_b32 s{sT2}, s{sW}, 2",
              f"s_add_u32 s3, s3, s{sT2}", "s_mul_i32 s3, s3, 1280", f"s_and_b32 s{sS}, s2, 1", f"s_mul_i32 s{sS}, s{sS}, 640",
              f"s_add_u32 s3, s3, s{sS}", f"s_mul_i32 s{sT2}, s{sT2}, 672", "s_mov_b32 exec_hi, 0xff"]
        for i in range(4):
            it += [f"s_add_u32 m0, s{sT2}, {WOB+672*i}", f"s_add_u32 s{sS}, s3, {1280*i}",
                   (f"buffer_load_dwordx4 v{vL16}, {S4(S_T)}, s{sS} offen lds", "prA")]
        it += ["s_mov_b32 exec_hi, -1"]
        L.append(it)
        L.append(["s_lshl_b32 s3, s2, 3", f"s_add_u32 s3, s3, s{sW}", "s_mul_i32 s3, s3, 1280",
                  (f"buffer_load_dwordx4 {vr(GX,4)}, v24, {S4(S_X)}, s3 offen", "prA"),
                  (f"buffer_load_dword v{GXT}, v24, {S4(S_X)}, s3 offen offset:16", "prA")])
        L.append(tsrd(PT + 10, 1280) + [(f"buffer_load_dwordx4 {vr(GW,4)}, v24, {S4(S_T)}, 0 offen", "prA"),
                  (f"buffer_load_dword v{GWT}, v24, {S4(S_T)}, 0 offen offset:16", "prA")])
        L.append(tsrd(PT + 4, 5120) + [(f"buffer_load_dwordx4 {vr(SH,4)}, v26, {S4(S_T)}, 0 offen", "pr")])
        for j in range(11):
            o = f"v29, {S4(S_T)}, 0 offen offset:{1280*j}" if j < 3 else f"v{27 if j < 7 else 28}, {S4(S_T)}, 0 offen offset:{1280*((j-3)%4)}"
            L.append((tsrd(PT, 2621440) if j == 0 else []) + [(f"buffer_load_dword v{KR+j}, {o}", "pr")])
        for j in range(8):
            L.append((tsrd(PT + 2, 2621440) if j == 0 else []) +
                     [(f"buffer_load_dword v{VR+j}, v{27 if j < 4 else 28}, {S4(S_T)}, 0 offen offset:{1280*(j%4)}", "pr")])
        if 'nopf' not in OPT:
            L.insert(0, [f"s_lshl_b32 s3, s{sP}, 3", f"s_add_u32 s3, s3, s{sW}", f"s_mul_i32 s3, s3, {10*8192}", f"s_lshl_b32 s{sT2}, s{sH}, 8",
                      f"s_add_u32 s3, s3, s{sT2}", "s_mov_b64 exec, 0xfffff",
                      (f"buffer_load_dword v{vPFW}, v{vPFW}, {S4(S_WQ)}, s3 offen sc1", "pfq"), "s_mov_b64 exec, -1"])
        return L

    def side_jobs():
        L = []
        t0, t1, t2, t3, t4, t5 = 24, 25, 26, 27, 28, 29
        for i in range(3):
            L.append([f"ds_read_b64_tr_b16 v[{116+4*i}:{117+4*i}], v{vWOT} offset:{256*i}"])
            L.append([f"ds_read_b64_tr_b16 v[{118+4*i}:{119+4*i}], v{vWOT} offset:{256*i+16*672}"])
        L.append([f"v_mov_b32 v{t0}, 0"])
        for x, w in [(GX + i, GW + i) for i in range(4)] + [(GXT, GWT)]:
            L += [[s] for s in [f"v_lshlrev_b32 v{t1}, 16, v{x}", f"v_and_b32 v{t2}, 0xffff0000, v{x}",
                                f"v_lshlrev_b32 v{t3}, 16, v{w}", f"v_and_b32 v{t4}, 0xffff0000, v{w}",
                                f"v_mul_f32 v{t1}, v{t1}, v{t3}", f"v_mul_f32 v{t2}, v{t2}, v{t4}"] + rnd_pair(t3, t1, t2, t1, t2) +
                               [f"v_add_f32 v{t0}, v{t0}, v{t1}", f"v_add_f32 v{t0}, v{t0}, v{t2}"]]
        for m in ("row_shr:1", "row_shr:2", "row_shr:4", "row_shr:8"):
            L.append([f"v_add_f32_dpp v{t0}, v{t0}, v{t0} {m} row_mask:0xf bank_mask:0xf bound_ctrl:0"])
        L.append([f"v_add_f32_dpp v{t0}, v{t0}, v{t0} row_bcast:15 row_mask:0xa bank_mask:0xf"])
        L.append([f"v_add_f32_dpp v{t0}, v{t0}, v{t0} row_bcast:31 row_mask:0xc bank_mask:0xf"])
        L += [[s] for s in rnd_pair(t1, t0, t0, t0, t2)[:2] +
              [f"v_mul_f32 v{t0}, 0xbfb8aa3b, v{t0}", f"v_exp_f32 v{t0}, v{t0}", f"v_cmp_eq_u32 vcc, 63, v0",
               f"v_add_f32 v{t0}, 1.0, v{t0}", f"v_rcp_f32 v{t0}, v{t0}", f"v_cndmask_b32 v{t2}, v30, 0, vcc"] +
              rnd_pair(t1, t0, t0, t0, t3)[:2]]
        L.append(["s_lshl_b32 s3, s2, 3", f"s_add_u32 s3, s3, s{sW}", "s_lshl_b32 s3, s3, 2", f"s_add_u32 s3, s3, {WS_G}",
                  (f"buffer_store_dword v{t0}, v{t2}, {S4(S_WS)}, s3 offen{' sc1' if FUSE else ''}", "pr2")])
        if not FUSE: L.append(["s_lshr_b32 s3, s2, 5", "s_lshl_b32 s3, s3, 12", f"s_and_b32 s{sT2}, s2, 31", f"s_lshl_b32 s{sT2}, s{sT2}, 2",
                  f"s_add_u32 s3, s3, s{sT2}", f"s_add_u32 s3, s3, {WS_FLG}", f"v_mov_b32 v{t1}, 0",
                  (f"buffer_store_dword v{t1}, v{t2}, {S4(S_WS)}, s3 offen{' sc1' if FUSE else ''}", "pr2")])
        L.append(["s_and_b32 s3, s2, 1", "s_mul_i32 s3, s3, 20", f"s_add_u32 s3, s3, s{sW}", f"s_mul_i32 s3, s3, {CS}",
                  f"s_lshr_b32 s{sT2}, s2, 1", f"s_lshl_b32 s{sT2}, s{sT2}, 10", f"s_add_u32 s3, s3, s{sT2}",
                  f"s_add_u32 s3, s3, {WS_WOT}", (f"buffer_store_dwordx4 v[116:119], v{vL16}, {S4(S_WS)}, s3 offen{' sc1' if FUSE else ''}", "pr2")])
        L.append([f"s_add_u32 s3, s3, {8*CS}", (f"buffer_store_dwordx4 v[120:123], v{vL16}, {S4(S_WS)}, s3 offen{' sc1' if FUSE else ''}", "pr2")])
        L.append([f"s_add_u32 s3, s3, {8*CS}", f"s_cmp_ge_u32 s{sW}, 4", f"s_cselect_b32 s3, {OOB}, s3",
                  (f"buffer_store_dwordx4 v[124:127], v{vL16}, {S4(S_WS)}, s3 offen{' sc1' if FUSE else ''}", "pr2")])
        W = 80
        for c in range(2):
            for q in range(2):
                L.append([f"v_lshlrev_b32 v{W+4*c+2*q}, 16, v{SH+2*c+q}"])
                L.append([f"v_and_b32 v{W+4*c+2*q+1}, 0xffff0000, v{SH+2*c+q}"])
        KL, KH = [110, 111, 112, 113], [88, 89, 109, 114]
        def unp(j): return [f"v_lshlrev_b32 v{KL[j%4]}, 16, v{KR+j}", f"v_and_b32 v{KH[j%4]}, 0xffff0000, v{KR+j}"]
        for j in range(3): L += [[s] for s in unp(j)]
        for s in range(8):
            ops = unp(s + 3)
            ops += [f"v_mul_f32 v{t0}, v{KL[s%4]}, v{W+3}", f"v_mul_f32 v{t1}, v{KH[s%4]}, v{W+7}"]
            for j in (2, 1, 0):
                ops += [f"v_fmac_f32 v{t0}, v{KL[(s+3-j)%4]}, v{W+j}", f"v_fmac_f32 v{t1}, v{KH[(s+3-j)%4]}, v{W+4+j}"]
            ops += [f"v_lshlrev_b32 v{t3}, 16, v{VR+s}", f"v_and_b32 v{t4}, 0xffff0000, v{VR+s}"]
            if s % 2 == 0:
                ops += [f"v_mul_f32 v118, v{t0}, v{t3}", f"v_mul_f32 v119, v{t1}, v{t4}"]
            else:
                ops += [f"v_mul_f32 v{t0}, v{t0}, v{t3}", f"v_mul_f32 v{t1}, v{t1}, v{t4}",
                        f"v_cvt_pk_bf16_f32 v{120+s//2}, v118, v{t0}", f"v_cvt_pk_bf16_f32 v{124+s//2}, v119, v{t1}"]
            L += [[x] for x in ops]
        L.append([f"s_mov_b32 s3, {WS_KVT}", (f"buffer_store_dwordx4 v[120:123], v{vKVT}, {S4(S_WS)}, s3 offen{' sc1' if FUSE else ''}", "pr2")])
        L.append([f"s_mov_b32 s3, {WS_KVT+4096}", (f"buffer_store_dwordx4 v[124:127], v{vKVT}, {S4(S_WS)}, s3 offen{' sc1' if FUSE else ''}", "pr2")])
        return L

    def kdma(e, tg):
        return [[f"s_add_u32 m0, s{sM0K}, {(e & 3) * 16384}", "s_nop 0",
                 (f"buffer_load_dwordx4 v{vL16}, {S4(S_WS)}, s{sHIST[e&3]} offen sc1 lds", tg)],
                [(f"buffer_load_dwordx4 v{vL16}, {S4(S_WS)}, s{sHIST[e&3]} offen offset:1024 sc1 lds", tg)]]
    vPOLL, vZERO, vFL = 24, 25, 26
    vCL = 31
    def only(wave, body, extra=None):
        lab = a.uid("ONLY")
        a(f"s_cmp_lg_u32 s{sW}, {wave}")
        a(f"s_cbranch_scc1 {lab}")
        if extra:
            a(extra); a(f"s_cbranch_scc1 {lab}")
        for x in body: a(x)
        a.label(lab)
    def clear_line():
        body = [f"s_lshl_b32 s3, s{sH}, 12", f"s_add_u32 s3, s3, {WS_FL2 - WS_FLG}", "v_lshl_add_u32 v116, v0, 2, s3",
                f"s_lshl_b32 s3, s{sH}, 2", f"s_add_u32 s3, s3, {WS_FL3 - WS_FLG - 16 * 4096}", "v_lshl_add_u32 v118, v0, 12, s3",
                "v_cmp_le_u32 vcc, 16, v0", "v_and_b32 v119, 7, v0", "v_lshl_add_u32 v119, v119, 3, s2", "v_cndmask_b32 v116, v116, v118, vcc",
                "v_lshrrev_b32 v118, 5, v119", "v_and_b32 v119, 31, v119", "v_lshlrev_b32 v119, 2, v119", "v_lshl_add_u32 v118, v118, 12, v119",
                "v_cmp_le_u32 vcc, 32, v0", f"v_mov_b32 v{vCL}, 0", f"s_mov_b32 s3, {WS_FLG}", "v_cndmask_b32 v116, v116, v118, vcc",
                f"buffer_store_dword v{vCL}, v116, {S4(S_WS)}, s3 offen sc1"]
        only(3, body, f"s_cmp_lg_u32 s{sP}, 0")
    def clean_set():
        only(3, ["s_mov_b64 exec, 1", "v_mov_b32 v117, 1", f"s_lshl_b32 s3, s{sH}, 2",
                 f"buffer_store_dword v117, v{vCL}, {S4(S_DBG)}, s3 offen sc1", "s_mov_b64 exec, -1"], f"s_cmp_lg_u32 s{sP}, 0")
    def clean_issue(site):
        a(f"s_bfe_u32 s{sT2}, s2, 0x10003")
        only(2, [f"v_and_b32 v{vCL}, 31, v0", f"v_lshlrev_b32 v{vCL}, 2, v{vCL}",
                 f"buffer_load_dword v{vCL}, v{vCL}, {S4(S_DBG)}, 0 offen sc1"], f"s_cmp_lg_u32 s{sT2}, {site}")
    def clean_check():
        lab = a.uid("CLN")
        a(f"s_cmp_lg_u32 s{sW}, 2")
        a(f"s_cbranch_scc1 {lab}D")
        a(f"s_mov_b32 s{sT2}, 0")
        a(f"s_branch {lab}C")
        a.label(lab)
        a("s_sleep 32")
        a(f"buffer_load_dword v{vCL}, v{vFL}, {S4(S_DBG)}, 0 offen sc1")
        a("s_waitcnt vmcnt(0)")
        a.label(lab + "C")
        a(f"v_cmp_eq_u32 vcc, 0, v{vCL}")
        a(f"s_add_u32 s{sT2}, s{sT2}, 1")
        a(f"s_cbranch_vccz {lab}D")
        a(f"s_cmp_lt_u32 s{sT2}, 100000")
        a(f"s_cbranch_scc1 {lab}")
        a.label(lab + "D")
    def publish(wave, which):
        only(wave, ["s_mov_b64 exec, 1", f"v_mov_b32 v{vPOLL}, 1", f"s_lshl_b32 s3, s{sH}, 10", f"s_add_u32 s3, s3, s{sP}",
                    "s_lshl_b32 s3, s3, 2", f"s_add_u32 s3, s3, {WS_FL2 + 32 * which}",
                    f"buffer_store_dword v{vPOLL}, v{vZERO}, {S4(S_WS)}, s3 offen sc1", "s_mov_b64 exec, -1"])
    def line_addr(ctx0): return [f"s_mov_b32 s3, {WS_FL3}"] if ctx0 else [f"s_lshl_b32 s3, s{sH}, 12", f"s_add_u32 s3, s3, {WS_FL2}"]
    def poll_issue(wave, ctx0=False):
        only(wave, line_addr(ctx0) + [
                    f"buffer_load_dword v{vPOLL}, v{vFL}, {S4(S_WS)}, s3 offen sc1"])
    def poll(wave, need, vmw, ctx0=False):
        if 'nopoll' in OPT: return
        lab = a.uid("POLL")
        a(f"s_cmp_lg_u32 s{sW}, {wave}")
        a(f"s_cbranch_scc1 {lab}D")
        for x in line_addr(ctx0): a(x)
        a(f"s_mov_b32 s{sT2}, 0")
        a(f"s_waitcnt vmcnt({vmw})")
        a(f"s_branch {lab}C")
        a.label(lab)
        a(f"s_sleep {OPT.get('sleep', 8)}")
        a(f"buffer_load_dword v{vPOLL}, v{vFL}, {S4(S_WS)}, s3 offen sc1")
        a("s_waitcnt vmcnt(0)")
        a.label(lab + "C")
        a(f"v_cmp_eq_u32 vcc, 0, v{vPOLL}")
        a(f"s_add_u32 s{sT2}, s{sT2}, 1")
        a(f"s_and_b32 s{S_T}, vcc_lo, {need}")
        a(f"s_cbranch_scc0 {lab}D")
        a(f"s_cmp_lt_u32 s{sT2}, 100000")
        a(f"s_cbranch_scc1 {lab}")
        a.label(lab + "D")

    a(f"s_waitcnt vmcnt({vm.wait(('kv', 0))})")
    a("s_barrier")
    sp.mark("kv0")
    a(f"s_cmp_lg_u32 s{sG}, 0")
    a("s_cbranch_scc1 M_KVV")
    vm0 = list(vm.tags)
    spn = sp.n
    vAX, vAQ, vST = 2, 6, 10
    QA = 128
    PK = lambda z: (240 + 4 * z) if z < 4 else (80 + 4 * (z - 4))
    endwait = []
    for part in range(2):
        if part: a.label("M_KVV")
        vm.tags = list(vm0)
        sp.n = spn
        S = Stream(a, vm, dist=int(OPT.get('kd', 12)), per_gap=int(OPT.get('kpg', 2)), bar_delay=int(OPT.get('kbd', 3)))
        S.fill_rate = float(OPT.get('fr', 1.0))
        rl = []
        sl = side_loads()
        SH0 = int(OPT.get('sh0', 0))
        for st in range(8):
            buf = (st & 1) * 32768
            for u in range(2):
                x = 2 * st + u
                for nt in range(4):
                    for hf in range(2):
                        rg = WFR[x & 1] + 4 * nt + 2 * hf
                        rl.append((32 * x + nt - 6, ("w", x, nt, hf),
                                   f"ds_read_b64_tr_b16 {vr(rg,2)}, v{vAW+nt} offset:{buf+u*8192+hf*1024}", rg, st))
                for kt in range(8):
                    rg = CFR + 4 * (kt % int(OPT.get('kring', 4)))
                    rl.append((32 * x + 4 * kt, ("c", x, kt), f"ds_read_b128 {vr(rg,4)}, v{vAC+u} offset:{buf+kt*2048}", rg, st))
                    for nt in range(4):
                        idx = kt * 4 + nt if part == 0 else ((kt >> 1) * 4 + nt) * 2 + (kt & 1)
                        acc = vr(ACC + 4 * idx, 4)
                        w, c = vr(WFR[x & 1] + 4 * nt, 4), vr(rg, 4)
                        cin = "0" if x == 0 else acc
                        S.op(f"{MFMA16} {acc}, {w}, {c}, {cin}" if part == 0 else f"{MFMA16} {acc}, {c}, {w}, {cin}",
                             [("w", x, nt, 0), ("w", x, nt, 1), ("c", x, kt)])
            after = kv_dma(st + 2) if st < 6 else []
            if st == 5: after = after + q_dma_x(0)
            if st == 6: after = q_dma_w(0) + q_dma_x(1) + q_dma_w(1)
            if st == 7: after = q_dma_x(2) + q_dma_w(2)
            if part == 1: after = [[] for _ in range(int(OPT.get('stag', 14)))] + after
            if 'noside' not in OPT:
                if st == SH0: after = after + sl[1:5]
                if st == SH0 + 1: after = after + sl[5:16]
                if st == SH0 + 2: after = after + sl[16:] + sl[0:1]
            if part == 0:
                if st == 0: after = after + [clear_line]
                if st == 2: after = [clean_set] + after
                if st in (4, 5): after = after + [lambda st=st: clean_issue(st - 4)]
            tags = [("kv", st + 1)] if st < 7 else [("q", 0)]
            if st == 2: tags += ["pf"]
            if st == SH0 + 2: tags += ["prA"]
            if st == SH0 + 4: tags += ["pr", "pfq"]
            after = [lambda st=st: sp.mark(f"k{st}")] + after
            S.barrier_after_stage(st, tags, after)
        rl.sort(key=lambda r: (r[4], r[0]))
        for r in rl: S.read(r[1], r[2], r[3], r[4], r[0])
        sj = side_jobs()
        nk = [i for i, it in enumerate(sj) if f"v_lshlrev_b32 v80, 16, v{SH}" in it][0]
        if 'noside' in OPT: sj = []
        for it in sj[:nk]: S.filler((SH0 + 3) * 64 + 24, 1, it)
        for it in sj[nk:]: S.filler((SH0 + 5) * 64, 1, it)
        S.run([0])
        sp.mark("kv")
        a(f"s_lshr_b32 s{sT}, s{sW}, 1")
        a(f"s_lshl_b32 s{sT}, s{sT}, 13")
        a(f"s_and_b32 s{sT2}, s{sW}, 1")
        a(f"s_lshl_b32 s{sT2}, s{sT2}, 2")
        a("s_mov_b32 s3, 65536")
        frag_addrs(vAX, sT, vAQ, sT2, 3)
        a(f"v_add_u32 v{vAX+2}, 131072, v{vAX}")
        a(f"v_add_u32 v{vAX+3}, 131072, v{vAX+1}")
        S = Stream(a, vm, dist=10, per_gap=2, bar_delay=3)
        S.fill_rate = 1.0
        rl = []
        EARLYV = 'latev' not in OPT
        KPUB, VPUB = int(OPT.get('kpub', 4)), int(OPT.get('vpub', 8 if EARLYV else 9))
        for k in range(10):
            xb = XB[(k + 2) % 3]
            for u in range(2):
                x = 2 * k + u
                for nt in range(4):
                    for hf in range(2):
                        rg = WFR[x & 1] + 4 * nt + 2 * hf
                        rl.append((16 * x + nt - 5, ("w", x, nt, hf),
                                   f"ds_read_b64_tr_b16 {vr(rg,2)}, v{vAQ+nt} offset:{(k%3)*16384+u*8192+hf*1024}", rg, k))
                for qi in range(4):
                    rg = CFR + 4 * qi
                    av = vAX + u + (2 if xb == 131072 else 0)
                    rl.append((16 * x + 4 * qi, ("c", x, qi), f"ds_read_b128 {vr(rg,4)}, v{av} offset:{(xb%131072)+qi*2048}", rg, k))
                    for nt in range(4):
                        acc = vr(QA + 4 * (qi * 4 + nt), 4)
                        S.op(f"{MFMA16} {acc}, {vr(WFR[x&1]+4*nt,4)}, {vr(rg,4)}, {'0' if x == 0 else acc}",
                             [("w", x, nt, 0), ("w", x, nt, 1), ("c", x, qi)])
            tags, after, pre = [("q", k + 1)], [], None
            if k + 3 <= 9: after = q_dma_x(k + 3) + q_dma_w(k + 3)
            if k == 0 and part == 0: pre = clean_check
            if k == KPUB: tags.append("pr2")
            if k == KPUB and part == 0: tags.append("st"); after = [lambda: publish(0, 0)] + after
            KP = int(OPT.get('kpoll', 7))
            if k == KP - 1 and part == 0: after = [lambda: (poll_issue(1), vm.add("mark"), vm.ghost.add("mark"))] + after
            if k == KP:
                if part == 0: pre = lambda: poll(1, 1, vm.wait("mark"))
                after = kdma(0, "k0") + kdma(1, "k0")
            if k == 8: after = after + kdma(2, "k2")
            if k == 9: tags = []
            if k == VPUB and part == 1: tags.append("st"); after = [lambda: publish(4, 1)] + after
            if k == 9 and part == 1 and EARLYV: after = after + [lambda: poll_issue(5)]
            after = [lambda k=k: sp.mark(f"q{k}")] + after
            S.barrier_after_stage(k, tags, after, pre)
        rl.sort(key=lambda r: (r[4], r[0]))
        for r in rl: S.read(r[1], r[2], r[3], r[4], r[0])
        npre = 10
        for r in rl[:npre]: a(r[2])
        a(f"v_add_u32 v{vST}, {4096 >> part}, v{vL16}")
        a(f"v_mov_b32 v{vZERO}, 0")
        a(f"v_and_b32 v{vFL}, 31, v0")
        a(f"v_lshlrev_b32 v{vFL}, 2, v{vFL}")
        for z in list(range(4, 16)) + list(range(4)):
            for e in range(4):
                a(f"v_cvt_pk_bf16_f32 v{PK(z)+e}, v{ACC+8*z+2*e}, v{ACC+8*z+2*e+1}")
        SC = " " + OPT.get('stsc', 'sc1').replace('_', ' ')
        st0, stp = (2, int(OPT.get('stp', 5))) if part == 0 else (int(OPT.get('vst', 84)), int(OPT.get('stpv', 8)))
        for z in range(16 if 'nost' not in OPT else 1):
            j, c = z >> 2, z & 3
            S.filler(st0 + stp * z, 1, [f"s_add_u32 s3, s{sOB}, {j*8192}",
                     (f"buffer_store_dwordx4 {vr(PK(z),4)}, v{vST if c >> 1 else vL16}, {S4(S_WS)}, s3 offen offset:{(c&1)*1024}{SC}", "st")])
        S.run([0], preissued=npre)
        endwait.append(vm.wait("k0"))
        if part == 0: a("s_branch M_KVD")
    a.label("M_KVD")
    sp.mark("q")
    vKA, vVA, vD0, vQ2 = 2, 3, 4, 5
    FR, T, P, SS, O, Q, NEGM = 32, 64, [80, 88], [96, 112], 128, 192, 224
    LS, ONES, vTA, vX0, vNINF = 248, 232, 236, 238, 246
    BIAS = 12.0
    D = int(OPT.get('D', 5))
    a(f"s_mov_b32 s{sT}, {f32hex(1.4426950408889634 * 128 ** -0.5)}")
    a(f"s_lshr_b32 s{sT2}, s{sW}, 1")
    a(f"s_lshl_b32 s{sT2}, s{sT2}, 14")
    a(f"s_and_b32 s3, s{sW}, 1")
    a("s_lshl_b32 s3, s3, 11")
    a(f"s_add_u32 s{sT2}, s{sT2}, s3")
    a(f"s_add_u32 s{sT2}, s{sT2}, 98304")
    a(f"v_add_u32 v6, s{sT2}, v{vL16}")
    a(f"s_lshl_b32 s{sT2}, s{sW}, 13")
    a(f"s_add_u32 s{sT2}, s{sT2}, 98304")
    a(f"v_add_u32 v{vQ2}, s{sT2}, v{vL16}")
    a(f"s_lshl_b32 s{sT2}, s{sG}, 13")
    a(f"v_add_u32 v{vKA}, s{sT2}, v{vL16}")
    a(f"v_add_u32 v{vVA}, 65536, v{vKA}")
    for f in range(8):
        for e in range(4):
            r = QA + 8 * f + 2 * e
            a(f"v_mul_f32 v{r}, s{sT}, v{r}")
            a(f"v_mul_f32 v{r+1}, s{sT}, v{r+1}")
            a(f"v_cvt_pk_bf16_f32 v{Q+4*f+e}, v{r}, v{r+1}")
        a(f"ds_write_b128 v6, {vr(Q+4*f,4)} offset:{(f>>1)*4096+(f&1)*1024}")
    a("v_and_b32 v7, 15, v0")
    a("v_lshrrev_b32 v8, 4, v0")
    a(f"s_lshl_b32 s{sT}, s{sRB}, 5")
    a(f"v_add_u32 v{vD0}, s{sT}, v7")
    a("v_lshlrev_b32 v8, 2, v8")
    a(f"v_sub_u32 v{vD0}, v{vD0}, v8")
    a(f"v_mov_b32 v{vNINF}, 0xff800000")
    for r in range(8): a(f"v_mov_b32 v{NEGM+r}, 0")
    for r in range(4): a(f"v_mov_b32 v{ONES+r}, 0x3f803f80")
    if EARLYV: poll(5, 0x101, 0)
    a(f"s_waitcnt vmcnt({min(endwait)}) lgkmcnt(0)")
    a("s_barrier")
    if not EARLYV: poll_issue(5)
    sp.mark("qx")
    def kread(e, t): return f"ds_read_b128 {vr(FR+4*t,4)}, v{vKA} offset:{(e&3)*16384+t*1024}"
    def vread(e, i): return f"ds_read_b128 {vr(FR+4*i,4)}, v{vVA} offset:{(e&3)*16384+i*1024}"
    for f in range(8): a(f"ds_read_b128 {vr(Q+4*f,4)}, v{vQ2} offset:{f*1024}")
    for i in range(D): a(kread(0, i))
    a(f"s_mov_b32 s{sS}, 0")

    handlers = []
    def xreduce(op, x, tmp):
        a(f"v_mov_b32 v{tmp}, v{x}")
        a(f"v_permlane16_swap_b32 v{x}, v{tmp}")
        a(f"{op} v{x}, v{x}, v{tmp}")
        a(f"v_mov_b32 v{tmp}, v{x}")
        a(f"v_permlane32_swap_b32 v{x}, v{tmp}")
        a(f"{op} v{x}, v{x}, v{tmp}")
    def rowmax(dst, tmp, src):
        a(f"v_max3_f32 v{dst}, v{src}, v{src+1}, v{src+2}")
        a(f"v_max3_f32 v{dst}, v{dst}, v{src+3}, v{src+4}")
        a(f"v_max3_f32 v{dst}, v{dst}, v{src+5}, v{src+6}")
        a(f"v_max_f32 v{dst}, v{dst}, v{src+7}")
        xreduce("v_max_f32", dst, tmp)
    def sm_ops(Sc, Pw):
        f = []
        def post(q):
            f.append((1, [f"v_cvt_pk_bf16_f32 v{Pw+q//2}, v{T+q%8}, v{T+(q+1)%8}"]))
            k = q // 2
            if k == 3: f.append((1, [f"v_or3_b32 v{vTA}, v{Pw}, v{Pw+1}, v{Pw+2}"]))
            if k == 5: f.append((1, [f"v_or3_b32 v{vTA}, v{vTA}, v{Pw+3}, v{Pw+4}"]))
            if k == 7:
                f.append((1, [f"v_or3_b32 v{vTA}, v{vTA}, v{Pw+5}, v{Pw+6}"]))
                f.append((1, [f"v_bitop3_b32 v{vTA}, v{vTA}, v{Pw+7}, s{sTHR} bitop3:0xa8"]))
        for r in range(16):
            f.append((2, [f"v_exp_f32 v{T+r%8}, v{Sc+r}"]))
            if r % 2 == 1 and r >= 3: post(r - 3)
        post(14)
        return f
    def store_ctx(qis, sct, obase):
        n = 0
        for qi in qis:
            for u in range(4):
                d = T + (n % 4) * 4
                n += 1
                src = obase(qi) + 8 * u
                for e in range(4): a(f"v_cvt_pk_bf16_f32 v{d+e}, v{src+2*e}, v{src+2*e+1}")
                if u == 0 and qi == 1 and len(qis) == 2: a(f"s_add_u32 s{sct}, s{sct}, {CS}")
                a(f"buffer_store_dwordx4 {vr(d,4)}, v{vL16}, {S4(S_WS)}, s{sct} offen offset:{u*1024}{' sc1' if FUSE else ''}")

    def slot(j, name, qk=True, sm=True, pv=True, nxt="k", dma=True, last=False, vlist=None, prefetched=True, prebar=None, vmw=4, fresh=False):
        par = j & 1
        if vlist is None: vlist = [j]
        Sc, Sn, Pw, Pr = SS[1 - par], SS[par], P[1 - par], P[par]
        a.label(name)
        if sm or pv:
            a(f"s_bitcmp1_b64 s[{sEV}:{sEV+1}], s{sS}")
            a(f"s_cbranch_scc1 {name}_EV")
            a.label(name + "_GO")
            handlers.append(("ev", name, Sc))
        ms = []
        if qk:
            for t in range(8):
                kt, u = t >> 2, t & 3
                mm = []
                for qi in range(2):
                    d = vr(Sn + 8 * qi + 4 * kt, 4)
                    mm.append(f"{MFMA16} {d}, {vr(FR+4*t,4)}, {vr(Q+16*qi+4*u,4)}, {vr(NEGM+4*qi,4) if u == 0 else d}")
                ms.append((mm, kread(j, t)))
        if pv:
            for i in range(8):
                mm = []
                for qi in range(2):
                    o = vr(O + 32 * qi + 4 * i, 4)
                    mm.append(f"{MFMA16} {o}, {vr(FR+4*i,4)}, {vr(Pr+4*qi,4)}, {'0' if fresh else o}")
                ms.append((mm, vread(j - 2, i)))
        rd = [m[1] for m in ms]
        if nxt == "k": rd += [kread(j + 1, i) for i in range(D)]
        elif nxt == "v": rd += [vread(j - 1, i) for i in range(D)]
        dm = []
        def vd(e): return [[f"s_add_u32 m0, s{sM0V}, {(e & 3) * 16384}", "s_nop 0",
                            f"buffer_load_dwordx4 v{vL16}, {S4(S_V)}, s{sHIST[e&3]} offen sc1 lds"],
                           [f"buffer_load_dwordx4 v{vL16}, {S4(S_V)}, s{sHIST[e&3]} offen offset:1024 sc1 lds"]]
        if dma and not ('nodma' in OPT and name.startswith('AT_L')):
            for e in vlist: dm += vd(e)
            h0, h1 = sHIST[(j + 3) & 3], sHIST[(j + 2) & 3]
            pre = [f"s_cmp_ge_u32 s{sS}, s{sWRAP}", f"s_cselect_b32 s{sT}, s{sBASE}, 8192", f"s_add_u32 s{sT}, s{sT}, s{h1}",
                   f"s_add_u32 m0, s{sM0K}, {((j + 3) & 3) * 16384}", f"s_cmp_ge_u32 s{sS}, 31", f"s_cselect_b32 s{h0}, {OOB}, s{sT}"]
            dm.append(pre + [f"buffer_load_dwordx4 v{vL16}, {S4(S_WS)}, s{h0} offen sc1 lds"])
            dm.append([f"buffer_load_dwordx4 v{vL16}, {S4(S_WS)}, s{h0} offen offset:1024 sc1 lds"])
        groups = []
        n = len(ms)
        if not prefetched:
            for x in rd[:D]: a(x)
        dpos = list(range(1, n, 2)) if len(dm) <= n // 2 else list(range(n))
        for m in range(n):
            pre = []
            if m % 2 == 0:
                out = min(len(rd), m + D) - (m + 2)
                pre.append(f"s_waitcnt lgkmcnt({max(out, 0)})")
            post = [rd[m + D]] if m + D < len(rd) else []
            if 'halfread' in OPT and (m + D) % 2 == 1: post = []
            if m in dpos and dpos.index(m) < len(dm): post += dm[dpos.index(m)]
            groups.append((pre, ms[m][0][0], []))
            groups.append(([], ms[m][0][1], post))
            if pv and m == n - 5:
                for qi in range(2): groups.append(([], f"{MFMA16} {vr(LS+4*qi,4)}, {vr(ONES,4)}, {vr(Pr+4*qi,4)}, {'0' if fresh else vr(LS+4*qi,4)}", []))
        interleave(a, groups, sm_ops(Sc, Pw) if (sm and 'nosm' not in OPT) else [], max(2 * n - 2, 1))
        if sm:
            a(f"v_cmp_ne_u32 vcc, 0, v{vTA}")
            a(f"s_cbranch_vccnz {name}_SLOW")
            a.label(name + "_RET")
            handlers.append(("slow", name, Sc, Sn, Pw))
        if not last:
            a(f"s_add_u32 s{sS}, s{sS}, 1")
            if prebar: prebar()
            a(f"s_waitcnt vmcnt({vmw if dma else 0})")
            if not ('nobar' in OPT and name.startswith('AT_L')): a("s_barrier")

    if 'prio' in OPT:
        a(f"s_cmp_eq_u32 s{sG}, {OPT['prio']}")
        a("s_cbranch_scc0 AT_PRIO")
        a("s_setprio 1")
        a.label("AT_PRIO")
    if EARLYV:
        slot(0, "AT_S0", sm=False, pv=False)
        sp.mark("s0")
        slot(1, "AT_S1", pv=False)
    else:
        slot(0, "AT_S0", sm=False, pv=False, vlist=[], prebar=lambda: poll(5, 0x101, 2), vmw=2)
        sp.mark("s0")
        slot(1, "AT_S1", pv=False, vlist=[0, 1])
    sp.mark("s1")
    poll_issue(2)
    slot(2, "AT_S2", prebar=lambda: poll(2, 0xffff, 4), fresh=True)
    sp.mark("s2")
    a("s_branch AT_L3")
    slot(2, "AT_L2"); slot(3, "AT_L3"); slot(0, "AT_L0")
    a(f"s_cmp_eq_u32 s{sS}, 33")
    a("s_cbranch_scc1 AT_P33")
    slot(1, "AT_L1")
    a("s_branch AT_L2")
    a.label("AT_P33")
    sp.mark("s32")
    if FUSE: poll_issue(6, True)
    slot(1, "AT_S33", nxt=None, prebar=(lambda: poll(6, -1, 4, True)) if FUSE else None)
    slot(2, "AT_S34", qk=False, nxt=None, dma=False, prefetched=False)
    slot(3, "AT_S35", qk=False, sm=False, nxt=None, dma=False, last=True, prefetched=False)
    sp.mark("s35")
    a("s_barrier")
    a(f"s_mul_i32 s{sT}, s{sW}, {8192+512}")
    a(f"s_xor_b32 s{sT2}, s{sW}, 4")
    a(f"s_mul_i32 s{sT2}, s{sT2}, {8192+512}")
    a(f"v_add_u32 v14, s{sT}, v{vL16}")
    a(f"v_add_u32 v15, s{sT2}, v{vL16}")
    a("v_lshlrev_b32 v16, 3, v0")
    a(f"v_add_u32 v17, s{sT2}, v16")
    a(f"v_add_u32 v16, s{sT}, v16")
    X0, X1, X2, X3, X4, X5 = range(vX0, vX0 + 6)
    a(f"s_cmp_eq_u32 s{sG}, 0")
    a("s_cbranch_scc1 AT_MA")
    a(f"v_mov_b32 v{X4}, v{NEGM}")
    a(f"v_mov_b32 v{X5}, v{LS}")
    a(f"v_mov_b32 v{X0}, v{NEGM+4}")
    a(f"v_mov_b32 v{X1}, v{LS+4}")
    for q in range(8): a(f"ds_write_b128 v14, {vr(O+4*q,4)} offset:{1024*q}")
    for r in range(32): a(f"v_mov_b32 v{O+r}, v{O+32+r}")
    a(f"s_add_u32 s{sCT2}, s{sCT2}, {CS}")
    a("s_branch AT_MB")
    a.label("AT_MA")
    a(f"v_mov_b32 v{X4}, v{NEGM+4}")
    a(f"v_mov_b32 v{X5}, v{LS+4}")
    a(f"v_mov_b32 v{X0}, v{NEGM}")
    a(f"v_mov_b32 v{X1}, v{LS}")
    for q in range(8): a(f"ds_write_b128 v14, {vr(O+32+4*q,4)} offset:{1024*q}")
    a.label("AT_MB")
    a(f"ds_write_b64 v16, v[{X4}:{X5}] offset:8192")
    a("s_waitcnt lgkmcnt(0)")
    a("s_barrier")
    a(f"ds_read_b64 v[{X2}:{X3}], v17 offset:8192")
    for q in range(8): a(f"ds_read_b128 {vr(O+32+4*q,4)}, v15 offset:{1024*q}")
    a("s_waitcnt lgkmcnt(8)")
    a(f"v_min_f32 v{vTA}, v{X0}, v{X2}")
    a(f"v_sub_f32 v{X0}, v{vTA}, v{X0}")
    a(f"v_sub_f32 v{X2}, v{vTA}, v{X2}")
    a(f"v_exp_f32 v{X0}, v{X0}")
    a(f"v_exp_f32 v{X2}, v{X2}")
    a(f"v_mul_f32 v{vTA}, v{X1}, v{X0}")
    a(f"v_fmac_f32 v{vTA}, v{X3}, v{X2}")
    a(f"v_rcp_f32 v{vTA}, v{vTA}")
    a(f"v_mul_f32 v{X0}, v{X0}, v{vTA}")
    a(f"v_mul_f32 v{X2}, v{X2}, v{vTA}")
    for r in range(32): a(f"v_mul_f32 v{O+r}, v{O+r}, v{X0}")
    a("s_waitcnt lgkmcnt(0)")
    for r in range(32): a(f"v_fmac_f32 v{O+r}, v{O+32+r}, v{X2}")
    store_ctx((0,), sCT2, lambda qi: O)
    if FUSE:
        sp.mark("att")
        gen_tail.gen_tail(a, {k: v for k, v in globals().items() if not k.startswith("__")}, dict(sW=sW, sH=sH, sP=sP, sp=sp))
    elif STAMP:
        a("s_waitcnt vmcnt(0)")
        sp.mark("end")
        a("s_waitcnt lgkmcnt(0)")
        sp.flush(100, sW, 0, slot=0); sp.flush(100, sW, 4, slot=1)
    a.label("M_END")
    a("s_endpgm")
    for hd in handlers:
        if hd[0] == "ev":
            _, name, Sc = hd
            a.label(name + "_EV")
            a(f"s_sub_u32 s{sT}, s{sS}, s{sN1}")
            a(f"s_cmp_lg_u32 s{sT}, 2")
            a(f"s_cbranch_scc1 {name}_E1")
            a(f"v_rcp_f32 v{vX0}, v{LS}")
            a(f"v_rcp_f32 v{vX0+1}, v{LS+4}")
            for r in range(8): a(f"v_mov_b32 v{LS+r}, 0")
            for r in range(64): a(f"v_mul_f32 v{O+r}, v{O+r}, v{vX0+(r>>5)}")
            store_ctx((0, 1), sCT1, lambda qi: O + 32 * qi)
            for r in range(64): a(f"v_mov_b32 v{O+r}, 0")
            a.label(name + "_E1")
            if FUSE:
                only(0, ["s_mov_b64 exec, 1", f"v_mov_b32 v{vX0}, 1", f"s_lshl_b32 s3, s{sP}, 10", f"s_add_u32 s3, s3, s{sH}", "s_lshl_b32 s3, s3, 2",
                         f"s_add_u32 s3, s3, {WS_FL3}", f"buffer_store_dword v{vX0}, v{vZERO}, {S4(S_WS)}, s3 offen sc1", "s_mov_b64 exec, -1"],
                     f"s_cmp_lg_u32 s{sT}, 3")
            a(f"s_cmp_lg_u32 s{sT}, 0")
            a(f"s_cbranch_scc1 {name}_E2")
            for t in range(8): a(f"ds_read_b128 {vr(Q+4*t,4)}, v{vQ2} offset:{32768+1024*t}")
            for r in range(8): a(f"v_mov_b32 v{NEGM+r}, 0")
            a("s_waitcnt lgkmcnt(0)")
            a.label(name + "_E2")
            a(f"s_sub_u32 s{sT2}, s{sS}, s{sMST}")
            a(f"s_sub_u32 s{sT2}, s{sT2}, 1")
            a(f"s_cmp_lt_u32 s{sT2}, 4")
            a(f"s_cbranch_scc1 {name}_EM")
            a(f"s_cmp_lt_u32 s{sS}, 33")
            a(f"s_cbranch_scc1 {name}_E3")
            a(f"s_sub_u32 s{sT2}, s{sS}, 33")
            a(f"s_lshl_b32 s{sT2}, s{sT2}, 1")
            a(f"s_add_u32 s{sT2}, s{sT2}, s{sG}")
            a.label(name + "_EM")
            a(f"s_lshl_b32 s{sT2}, s{sT2}, 5")
            a(f"v_subrev_u32 v{vX0}, s{sT2}, v{vD0}")
            for qi in range(2):
                for kt in range(2):
                    for e in range(4):
                        a(f"v_cmp_le_i32 s[{sMK+2*e}:{sMK+2*e+1}], {16*kt+e-16*qi}, v{vX0}")
                    for e in range(4):
                        r = Sc + 8 * qi + 4 * kt + e
                        a(f"v_cndmask_b32 v{r}, v{vNINF}, v{r}, s[{sMK+2*e}:{sMK+2*e+1}]")
            a.label(name + "_E3")
            a(f"s_cmp_eq_u32 s{sT}, 1")
            a(f"s_cbranch_scc1 {name}_E4")
            a(f"s_cmp_lg_u32 s{sS}, 1")
            a(f"s_cbranch_scc1 {name}_GO")
            a.label(name + "_E4")
            for qi in range(2):
                rowmax(vX0 + qi, vX0 + 2 + qi, Sc + 8 * qi)
                a(f"v_add_f32 v{vX0+qi}, {f32hex(BIAS)}, v{vX0+qi}")
            for r in range(8): a(f"v_sub_f32 v{NEGM+r}, v{NEGM+r}, v{vX0+(r>>2)}")
            for r in range(16): a(f"v_sub_f32 v{Sc+r}, v{Sc+r}, v{vX0+(r>>3)}")
            a(f"s_branch {name}_GO")
        else:
            _, name, Sc, Sn, Pw = hd
            a.label(name + "_SLOW")
            for qi in range(2):
                rowmax(vX0 + qi, vX0 + 2 + qi, Sc + 8 * qi)
                a(f"v_add_f32 v{vX0+qi}, {f32hex(BIAS)}, v{vX0+qi}")
                a(f"v_max_f32 v{vX0+qi}, 0, v{vX0+qi}")
                a(f"v_exp_f32 v{vX0+2+qi}, -v{vX0+qi}")
            for r in range(8): a(f"v_sub_f32 v{NEGM+r}, v{NEGM+r}, v{vX0+(r>>2)}")
            for r in range(16): a(f"v_sub_f32 v{Sn+r}, v{Sn+r}, v{vX0+(r>>3)}")
            for r in range(16): a(f"v_sub_f32 v{Sc+r}, v{Sc+r}, v{vX0+(r>>3)}")
            for r in range(64): a(f"v_mul_f32 v{O+r}, v{O+r}, v{vX0+2+(r>>5)}")
            for r in range(8): a(f"v_mul_f32 v{LS+r}, v{LS+r}, v{vX0+2+(r>>2)}")
            for c, ops in sm_ops(Sc, Pw):
                for x in ops: a(x)
            a(f"s_branch {name}_RET")
    return dict(name="gated_mix__ssm_conv_h3__compressed_kv_cla__prompt_kernel" if FUSE else "main_kernel", grid=256, block=512, lds=163840, vgpr=256)

import gen as G1
G1.STAMP = False
KERNELS = {"main": gen_main, "conv": G1.gen_conv, "oproj": G1.gen_oproj, "tail": lambda a: gen_tail.gen_tail(a, {k: v for k, v in globals().items() if not k.startswith("__")})}

def build(names, path, verbose=False):
    hdr = open("gated_mix__ssm_conv_h3__compressed_kv_cla__prompt.s.ref").read().split("\n")
    hdr = [l for l in hdr if l.startswith(";") and "@launch" not in l and "Override" not in l and "grid=ceil" not in l]
    codes, descs, launches = [], [], []
    for n in names:
        a = Asm()
        info = KERNELS[n](a)
        k = fix_hazards(a.lines, verbose)
        print(f"{n}: {len(a.lines)} lines, {k} nops inserted")
        c, d = kernel_text(info["name"], a.lines, info["vgpr"], extra="  .amdhsa_float_denorm_mode_32 3\n")
        codes.append(c); descs.append(d)
        kn = "" if "plain" in OPT else f"kernel={info['name']} "
        launches.append(f"; @launch {kn}grid=({info['grid']},1,1) block=({info['block']},1,1) lds={info['lds']}")
    txt = "\n".join(hdr + launches) + '\n.amdgcn_target "amdgcn-amd-amdhsa--gfx950"\n.text\n' + "\n".join(codes) + \
          '\n.section .rodata,"a"\n' + "\n".join(descs)
    open(path, "w").write(txt)

if __name__ == "__main__":
    names = sys.argv[2].split(",") if len(sys.argv) > 2 else list(KERNELS)
    build(names, sys.argv[1] if len(sys.argv) > 1 else "k2.s", verbose="-v" in sys.argv)
```

```python
import sys, struct
from asmlib import *
from sched import *
import gen_tail

MB = 1 << 20
WS_KF, WS_VF, WS_CTX, WS_WOT, WS_KVT, WS_Y2T, WS_G = 0, 16 * MB, 32 * MB, 49 * MB, 56 * MB, 60 * MB, 63 * MB
KA = dict(A_q=0, A_k=8, A_v=16, shift=24, ssm_k=32, ssm_D=40, B_x=48, c_kv=56, w_q=64, w_uk=72, w_uv=80, w_o=88,
          gate=96, out=104, dbg=112, ws=120)
MFMA32 = "v_mfma_f32_32x32x16_bf16"
MFMA16 = "v_mfma_f32_16x16x32_bf16"
STAMP = "-stamp" in sys.argv
OPT = {x[2:].split("=")[0]: (x.split("=")[1] if "=" in x else "1") for x in sys.argv if x.startswith("--")}
WS_FLG = 63 * MB + 524288
WS_FL2 = 63 * MB + 655360
WS_FL3 = WS_FL2 + 131072
FUSE = 'nofuse' not in OPT
CS = 131072 + int(OPT.get('cspad', 1024))
OOB = "0x80000000"
def f32hex(x): return "0x%08x" % struct.unpack("<I", struct.pack("<f", x))[0]

def srd(a, d, lo, hi, size, add=0):
    if add:
        a(f"s_add_u32 s{d}, s{lo}, {add}")
        a(f"s_addc_u32 s{d+1}, s{hi}, 0")
    else:
        a(f"s_mov_b32 s{d}, s{lo}")
        a(f"s_mov_b32 s{d+1}, s{hi}")
    a(f"s_mov_b32 s{d+2}, {size}")
    a(f"s_mov_b32 s{d+3}, 0x00020000")
def S4(d): return f"s[{d}:{d+3}]"

class Stamps:
    def __init__(self, a, base=70, region=0):
        self.a, self.base, self.n, self.region = a, base, 0, region
    off = False
    def mark(self, name=""):
        if not STAMP or self.off: return
        if name not in OPT.get("marks", "start,kv,q,s1,end,t0,t1,t2").split(","): return
        assert self.base + 2 * self.n + 3 <= 101
        self.a(f"s_memtime s[{self.base+2*self.n}:{self.base+2*self.n+1}]")
        self.a(f"s_memrealtime s[{self.base+2*self.n+2}:{self.base+2*self.n+3}]")
        self.n += 2
    def flush(self, wg, sW, wave, slot=0):
        if not STAMP: return
        a = self.a
        lab = a.uid("STK")
        a(f"s_cmp_lg_u32 s{sW}, {wave}")
        a(f"s_cbranch_scc1 {lab}")
        if 'dbgstamp' in OPT:
            if slot:
                a.label(lab); return
            a(f"s_cmp_lg_u32 s2, {OPT['dbgstamp']}")
            a(f"s_cbranch_scc1 {lab}")
            a(f"s_load_dwordx2 s[60:61], s[0:1], {KA['dbg']}")
            a("s_waitcnt lgkmcnt(0)")
            a("s_mov_b32 s62, 64")
            a("s_mov_b32 s63, 0x00020000")
            a("v_mov_b32 v1, 0")
            for i in range(self.n - 1, 1, -1): a(f"s_sub_u32 s{self.base+2*i}, s{self.base+2*i}, s{self.base+2*i-4}")
        else:
            a(f"s_load_dwordx2 s[60:61], s[0:1], {KA['ws']}")
            a("s_waitcnt lgkmcnt(0)")
            a(f"s_add_u32 s60, s60, {128*MB + self.region*65536 + slot*64}")
            a("s_addc_u32 s61, s61, 0")
            a("s_mov_b32 s62, 65536")
            a("s_mov_b32 s63, 0x00020000")
            a("s_lshl_b32 s3, s2, 7")
            a("v_mov_b32 v1, s3")
        for i in range(self.n):
            a(f"v_mov_b32 v2, s{self.base+2*i}")
            a(f"buffer_store_dword v2, v1, s[60:63], 0 offen offset:{4*i}")
        a("s_getreg_b32 s3, hwreg(HW_REG_XCC_ID)")
        a("v_mov_b32 v2, s3")
        a(f"buffer_store_dword v2, v1, s[60:63], 0 offen offset:60")
        a("s_waitcnt vmcnt(0)")
        a.label(lab)

def rnd_pair(d, lo, hi, olo, ohi):
    return [f"v_cvt_pk_bf16_f32 v{d}, v{lo}, v{hi}", f"v_lshlrev_b32 v{olo}, 16, v{d}", f"v_and_b32 v{ohi}, 0xffff0000, v{d}"]

def interleave(a, mfmas, fillers, ngaps):
    tot = sum(c for c, _ in fillers)
    fi, acc = 0, 0.0
    for g, (pre, m, post) in enumerate(mfmas):
        for x in pre: a(x)
        a(m)
        for x in post: a(x)
        lim = tot * min(1.0, (g + 1) / ngaps) if ngaps else tot
        while fi < len(fillers) and acc + fillers[fi][0] * 0.5 <= lim:
            acc += fillers[fi][0]
            for x in fillers[fi][1]: a(x)
            fi += 1
    while fi < len(fillers):
        for x in fillers[fi][1]: a(x)
        fi += 1

def gen_main(a):
    S_C, S_W, S_WS, S_V, S_X, S_WQ, S_DBG = 4, 8, 12, 16, 20, 24, 28
    (sW, sH, sP, sG, sRB, sT, sT2, sCO, sWO, sM0C, sM0W, sOB, sROW, sXO, sQWO, sN1, sS, sMST, sTHR, sM0K, sM0V,
     sBASE, sCT1, sCT2, sWRAP) = range(32, 57)
    sHIST = [57, 58, 59, 60]
    sEV = 62
    PT = 64
    S_T = 76
    sMK = 4
    vL16, vCD, vWD, vAC, vAW, vXD, vQW, vWOT, vKVT = 1, 2, 6, 10, 12, 16, 20, 22, 23
    WFR, CFR, ACC = [32, 48], 64, 128
    sp = Stamps(a, base=80)
    vm = VM()
    a("s_cmp_ge_u32 s2, 256")
    a("s_cbranch_scc1 M_END")
    sp.mark("start")
    a(f"s_load_dwordx2 s[44:45], s[0:1], {KA['c_kv']}")
    a(f"s_load_dwordx4 s[48:51], s[0:1], {KA['w_uk']}")
    a("v_lshrrev_b32 v1, 6, v0")
    a("v_mov_b32 v31, v0")
    a("v_and_b32 v0, 63, v0")
    a(f"v_readfirstlane_b32 s{sW}, v1")
    a(f"s_and_b32 s{sH}, s2, 7")
    a("s_lshr_b32 s3, s2, 6")
    a("s_lshl_b32 s3, s3, 3")
    a(f"s_add_u32 s{sH}, s{sH}, s3")
    a(f"s_bfe_u32 s{sP}, s2, 0x30003")
    a(f"s_lshr_b32 s{sG}, s{sW}, 2")
    a("v_lshrrev_b32 v24, 3, v0")
    a("v_and_b32 v25, 7, v0")
    a("v_lshrrev_b32 v26, 4, v0")
    a("v_xor_b32 v25, v25, v26")
    a("v_lshlrev_b32 v25, 4, v25")
    a("v_xor_b32 v27, 64, v25")
    a(f"v_lshl_add_u32 v{vCD}, v24, 10, v25")
    a(f"v_lshl_add_u32 v{vCD+1}, v24, 10, v27")
    a(f"v_add_u32 v{vCD+1}, {8192-1024}, v{vCD+1}")
    a(f"v_add_u32 v{vCD+2}, {2*(8192-1024)}, v{vCD}")
    a(f"v_add_u32 v{vCD+3}, {2*(8192-1024)}, v{vCD+1}")
    a("v_and_b32 v28, 15, v0")
    a("v_lshlrev_b32 v29, 1, v26")
    a("v_xor_b32 v28, v28, v29")
    a("v_lshlrev_b32 v28, 4, v28")
    a(f"v_lshl_add_u32 v{vWD}, v26, 13, v28")
    a(f"v_add_u32 v{vWD+1}, {4*8192-1024}, v{vWD}")
    a(f"v_xor_b32 v{vWD+2}, 128, v{vWD}")
    a(f"v_add_u32 v{vWD+2}, {2*(4*8192-1024)}, v{vWD+2}")
    a(f"v_add_u32 v{vWD+3}, {4*8192-1024}, v{vWD+2}")
    a(f"s_and_b32 s{sRB}, s{sW}, 3")
    a(f"s_lshl_b32 s{sCO}, s{sP}, 18")
    a(f"s_lshl_b32 s{sT}, s{sW}, 15")
    a(f"s_add_u32 s{sCO}, s{sCO}, s{sT}")
    a(f"s_lshl_b32 s{sWO}, s{sRB}, 17")
    a(f"s_lshl_b32 s{sT}, s{sH}, 8")
    a(f"s_add_u32 s{sWO}, s{sWO}, s{sT}")
    a(f"s_lshl_b32 s{sM0C}, s{sW}, 12")
    a(f"s_add_u32 s{sM0W}, s{sM0C}, 65536")
    a("s_waitcnt lgkmcnt(0)")
    srd(a, S_C, 44, 45, 2 * MB)
    a(f"s_cmp_eq_u32 s{sG}, 0")
    a(f"s_cselect_b32 s{S_W}, s48, s50")
    a(f"s_cselect_b32 s{S_W+1}, s49, s51")
    a(f"s_mov_b32 s{S_W+2}, {4*MB}")
    a(f"s_mov_b32 s{S_W+3}, 0x00020000")
    def kv_dma(st):
        buf = (st & 1) * 32768
        tg = ("kv", st)
        out = [[f"s_add_u32 m0, s{sM0C}, {buf}", f"s_add_u32 s{sT}, s{sCO}, {st*128}",
                (f"buffer_load_dwordx4 v{vCD}, {S4(S_C)}, s{sT} offen lds", tg)]]
        for i in range(1, 4): out.append([(f"buffer_load_dwordx4 v{vCD+i}, {S4(S_C)}, s{sT} offen offset:{i*1024} lds", tg)])
        out.append([f"s_add_u32 m0, s{sM0W}, {buf}", f"s_add_u32 s{sT}, s{sWO}, {st*64*8192}",
                    (f"buffer_load_dwordx4 v{vWD}, {S4(S_W)}, s{sT} offen lds", tg)])
        for i in range(1, 4): out.append([(f"buffer_load_dwordx4 v{vWD+i}, {S4(S_W)}, s{sT} offen offset:{i*1024} lds", tg)])
        return out
    def emit(items):
        for it in items:
            for x in it:
                if isinstance(x, tuple): a(x[0]); vm.add(x[1])
                else: a(x)
    emit(kv_dma(0))
    a(f"s_load_dwordx2 s[44:45], s[0:1], {KA['A_q']}")
    a(f"s_load_dwordx2 s[46:47], s[0:1], {KA['w_q']}")
    a(f"s_load_dwordx4 s[48:51], s[0:1], {KA['dbg']}")
    a(f"s_load_dwordx4 s[{PT}:{PT+3}], s[0:1], {KA['A_k']}")
    a(f"s_load_dwordx2 s[{PT+4}:{PT+5}], s[0:1], {KA['shift']}")
    a(f"s_load_dwordx4 s[{PT+8}:{PT+11}], s[0:1], {KA['w_o']}")
    a(f"v_lshlrev_b32 v{vL16}, 4, v0")
    a("v_mul_u32_u24 v28, 1280, v24")
    a(f"v_add_u32 v{vXD}, v28, v25")
    a(f"v_add_u32 v{vXD+1}, v28, v27")
    a(f"v_add_u32 v{vXD+1}, {8*1280-1024}, v{vXD+1}")
    a(f"v_add_u32 v{vXD+2}, {2*(8*1280-1024)}, v{vXD}")
    a(f"v_add_u32 v{vXD+3}, {2*(8*1280-1024)}, v{vXD+1}")
    a(f"s_and_b32 s3, s{sW}, 1")
    a("s_lshl_b32 s3, s3, 7")
    a(f"v_xor_b32 v{vQW}, s3, v{vWD}")
    a(f"v_add_u32 v{vQW+1}, {4*8192-1024}, v{vQW}")
    emit(kv_dma(1))
    vPF, vPFW, vSC = 116, 115, 117
    if 'nopf' not in OPT:
        a(f"v_lshlrev_b32 v{vPF}, 7, v0")
        a("v_lshrrev_b32 v24, 1, v0")
        a("v_and_b32 v25, 1, v0")
        a("v_lshlrev_b32 v25, 7, v25")
        a(f"v_lshl_add_u32 v{vPFW}, v24, 13, v25")
        a("s_lshl_b32 s3, s2, 13")
        a(f"s_lshl_b32 s{sT}, s{sW}, 10")
        a(f"s_add_u32 s3, s3, s{sT}")
        a("s_mov_b64 exec, 0xff")
        emit([[(f"buffer_load_dword v{vSC}, v{vPF}, {S4(S_C)}, s3 offen sc1", "pf")]])
        a(f"s_lshl_b32 s3, s{sP}, 19")
        a(f"s_add_u32 s3, s3, s{sWO}")
        a("s_mov_b32 exec_lo, -1")
        emit([[(f"buffer_load_dword v{vSC}, v{vPFW}, {S4(S_W)}, s3 offen sc1", "pf")]])
        a("s_mov_b64 exec, -1")
    def frag_addrs(vR, rowoff_sgpr, vWa, nt_sgpr, wbase_sgpr):
        a("v_and_b32 v24, 15, v0")
        a("v_lshrrev_b32 v25, 4, v0")
        a("v_bfe_u32 v26, v0, 1, 3")
        a("v_xor_b32 v26, v26, v25")
        a("v_lshlrev_b32 v26, 4, v26")
        a("v_lshl_add_u32 v26, v24, 7, v26")
        a(f"v_add_u32 v{vR}, s{rowoff_sgpr}, v26")
        a(f"v_xor_b32 v{vR+1}, 64, v{vR}")
        a("v_bfe_u32 v24, v0, 2, 2")
        a("v_lshl_add_u32 v26, v25, 3, v24")
        a("v_lshlrev_b32 v26, 8, v26")
        a("v_and_b32 v27, 3, v0")
        a("v_lshl_add_u32 v26, v27, 3, v26")
        a(f"v_add_u32 v26, s{wbase_sgpr}, v26")
        a("v_and_b32 v25, 1, v25")
        a("v_lshl_add_u32 v24, v25, 2, v24")
        a(f"v_xor_b32 v24, s{nt_sgpr}, v24")
        for nt in range(4):
            a(f"v_xor_b32 v25, {nt}, v24")
            a(f"v_lshl_add_u32 v{vWa+nt}, v25, 5, v26")
    a(f"s_and_b32 s{sT}, s{sW}, 1")
    a(f"s_lshl_b32 s{sT}, s{sT}, 14")
    a(f"s_and_b32 s{sT2}, s{sW}, 2")
    a(f"s_lshl_b32 s{sT2}, s{sT2}, 1")
    a(f"s_lshl_b32 s3, s{sG}, 14")
    a("s_add_u32 s3, s3, 65536")
    frag_addrs(vAC, sT, vAW, sT2, 3)
    WOB = 131072
    a("v_lshrrev_b32 v24, 2, v0")
    a("v_mul_u32_u24 v24, 672, v24")
    a("v_and_b32 v25, 3, v0")
    a("v_lshl_add_u32 v24, v25, 3, v24")
    a(f"s_lshl_b32 s{sT}, s{sW}, 5")
    a(f"s_add_u32 s{sT}, s{sT}, {WOB}")
    a(f"v_add_u32 v{vWOT}, s{sT}, v24")
    if 'kvmap' in OPT:
        a("v_and_b32 v25, 7, v31")
        a("v_lshrrev_b32 v26, 3, v31")
    else:
        a("v_mul_u32_u24 v25, 1639, v31")
        a("v_lshrrev_b32 v25, 16, v25")
        a("v_mul_u32_u24 v26, 40, v25")
        a("v_sub_u32 v26, v31, v26")
    a(f"s_lshr_b32 s{sT}, s2, 3")
    a(f"s_lshl_b32 s{sT}, s{sT}, 6")
    a(f"v_lshl_add_u32 v25, v25, 3, s{sT}")
    a(f"s_and_b32 s{sT2}, s2, 7")
    a(f"s_mul_i32 s{sT2}, s{sT2}, 40")
    a(f"v_add_u32 v26, s{sT2}, v26")
    a("v_mul_u32_u24 v27, 1280, v25")
    a("v_lshl_add_u32 v27, v26, 2, v27")
    a("v_add_u32 v28, 5120, v27")
    a("v_subrev_u32 v29, 3840, v27")
    a(f"v_mov_b32 v30, {OOB}")
    a("v_cmp_eq_u32 vcc, 0, v25")
    a(f"v_lshlrev_b32 v{vKVT}, 13, v26")
    a(f"v_lshl_add_u32 v{vKVT}, v25, 1, v{vKVT}")
    a("v_cndmask_b32 v29, v29, v30, vcc")
    a("v_cmp_gt_u32 vcc, 320, v31")
    a("v_cndmask_b32 v27, v30, v27, vcc")
    a("v_cndmask_b32 v28, v30, v28, vcc")
    a("v_cndmask_b32 v29, v30, v29, vcc")
    a(f"v_cndmask_b32 v{vKVT}, v30, v{vKVT}, vcc")
    a("v_lshlrev_b32 v26, 4, v26")
    a("v_mul_u32_u24 v24, 20, v0")
    a("s_waitcnt lgkmcnt(0)")
    srd(a, S_WS, 50, 51, 64 * MB)
    srd(a, S_V, 50, 51, 16 * MB, WS_VF)
    srd(a, S_X, 44, 45, 2621440)
    srd(a, S_WQ, 46, 47, 5242880)
    srd(a, S_DBG, 48, 49, 256)
    a(f"s_sub_u32 s{sT}, 15, s{sP}")
    a(f"s_lshl_b32 s{sT2}, s{sRB}, 5")
    a(f"s_lshl_b32 s{sCT2}, s{sT}, 7")
    a(f"s_add_u32 s{sCT2}, s{sCT2}, s{sT2}")
    a(f"s_lshl_b32 s{sCT1}, s{sP}, 7")
    a(f"s_add_u32 s{sCT1}, s{sCT1}, s{sT2}")
    a(f"s_cmp_eq_u32 s{sG}, 0")
    a(f"s_cselect_b32 s{sROW}, s{sCT1}, s{sCT2}")
    a(f"s_mul_i32 s{sXO}, s{sROW}, 1280")
    a(f"s_lshl_b32 s{sQWO}, s{sW}, 16")
    a(f"s_lshl_b32 s{sT}, s{sH}, 8")
    a(f"s_add_u32 s{sQWO}, s{sQWO}, s{sT}")
    a(f"s_lshl_b32 s{sT}, s{sH}, 12")
    a(f"s_add_u32 s{sT}, s{sT}, {WS_CTX}")
    for c in (sCT1, sCT2):
        a(f"s_mul_i32 s{c}, s{c}, {CS // 16}")
        a(f"s_add_u32 s{c}, s{c}, s{sT}")
    a(f"s_lshl_b32 s{sOB}, s{sH}, 6")
    a(f"s_lshl_b32 s{sT}, s{sP}, 3")
    a(f"s_add_u32 s{sOB}, s{sOB}, s{sT}")
    a(f"s_and_b32 s{sT}, s{sW}, 1")
    a(f"s_lshl_b32 s{sT}, s{sT}, 2")
    a(f"s_add_u32 s{sOB}, s{sOB}, s{sT}")
    a(f"s_lshl_b32 s{sOB}, s{sOB}, 13")
    a(f"s_bfe_u32 s{sT}, s{sW}, 0x10001")
    a(f"s_add_u32 s{sT2}, s{sG}, 11")
    a(f"s_lshl_b32 s{sT}, s{sT}, s{sT2}")
    a(f"s_add_u32 s{sOB}, s{sOB}, s{sT}")
    a(f"s_lshl_b32 s{sT}, s{sG}, 24")
    a(f"s_add_u32 s{sOB}, s{sOB}, s{sT}")
    a(f"s_lshl_b32 s{sN1}, s{sP}, 2")
    a(f"s_add_u32 s{sN1}, s{sN1}, 4")
    a(f"s_lshl_b32 s{sHIST[0]}, s{sH}, 19")
    a(f"s_lshl_b32 s{sT}, s{sRB}, 11")
    a(f"s_add_u32 s{sHIST[0]}, s{sHIST[0]}, s{sT}")
    a(f"s_lshl_b32 s{sM0K}, s{sW}, 11")
    a(f"s_add_u32 s{sM0V}, s{sM0K}, 65536")
    a(f"s_sub_u32 s{sT2}, s{sN1}, 4")
    a(f"s_sub_u32 s{sWRAP}, s{sN1}, 2")
    a(f"s_sub_u32 s{sWRAP}, s{sWRAP}, s{sG}")
    a(f"s_mov_b32 s{sBASE}, 16384")
    a(f"s_cmp_eq_u32 s{sG}, 0")
    a(f"s_cselect_b32 s{sMST}, s{sT2}, 99")
    a(f"s_cselect_b32 s{sN1}, s{sN1}, 100")
    a(f"s_add_u32 s{sHIST[1]}, s{sHIST[0]}, 8192")
    a(f"s_add_u32 s{sHIST[2]}, s{sHIST[0]}, 16384")
    a(f"s_mov_b64 s[{sEV}:{sEV+1}], {(127 if FUSE else 63) if 'noev' not in OPT else 64}")
    a(f"s_add_u32 s{sT}, s{sMST}, 1")
    a(f"s_lshl_b64 s[{sEV}:{sEV+1}], s[{sEV}:{sEV+1}], s{sT}")
    a(f"s_or_b32 s{sEV}, s{sEV}, 2")
    a(f"s_or_b32 s{sEV+1}, s{sEV+1}, 6")
    a(f"s_mov_b32 s{sTHR}, 0x40004000")
    a(f"s_mov_b32 s{S_T+3}, 0x00020000")

    XB = [0, 32768, 131072]
    def q_dma_x(k):
        tg = ("q", k)
        out = [[f"s_add_u32 m0, s{sM0C}, {XB[(k+2)%3]}", f"s_add_u32 s{sT}, s{sXO}, {k*128}",
                (f"buffer_load_dwordx4 v{vXD}, {S4(S_X)}, s{sT} offen lds", tg)]]
        for i in range(1, 4): out.append([(f"buffer_load_dwordx4 v{vXD+i}, {S4(S_X)}, s{sT} offen offset:{i*1024} lds", tg)])
        return out
    def q_dma_w(k):
        tg = ("q", k)
        return [[f"s_add_u32 m0, s{sM0V}, {(k%3)*16384}", f"s_add_u32 s{sT}, s{sQWO}, {k*64*8192}",
                 (f"buffer_load_dwordx4 v{vQW}, {S4(S_WQ)}, s{sT} offen lds", tg)],
                [(f"buffer_load_dwordx4 v{vQW+1}, {S4(S_WQ)}, s{sT} offen offset:1024 lds", tg)]]
    GX, GXT, GWT, GW, KR, VR, SH = 80, 84, 85, 86, 90, 101, 110
    def tsrd(lo, size): return [f"s_mov_b32 s{S_T}, s{lo}", f"s_mov_b32 s{S_T+1}, s{lo+1}", f"s_mov_b32 s{S_T+2}, {size}"]
    def side_loads():
        L = []
        it = tsrd(PT + 8, 5242880) + [f"s_lshr_b32 s3, s2, 1", "s_lshl_b32 s3, s3, 5", f"s_lshl_b32 s{sT2}, s{sW}, 2",
              f"s_add_u32 s3, s3, s{sT2}", "s_mul_i32 s3, s3, 1280", f"s_and_b32 s{sS}, s2, 1", f"s_mul_i32 s{sS}, s{sS}, 640",
              f"s_add_u32 s3, s3, s{sS}", f"s_mul_i32 s{sT2}, s{sT2}, 672", "s_mov_b32 exec_hi, 0xff"]
        for i in range(4):
            it += [f"s_add_u32 m0, s{sT2}, {WOB+672*i}", f"s_add_u32 s{sS}, s3, {1280*i}",
                   (f"buffer_load_dwordx4 v{vL16}, {S4(S_T)}, s{sS} offen lds", "prA")]
        it += ["s_mov_b32 exec_hi, -1"]
        L.append(it)
        L.append(["s_lshl_b32 s3, s2, 3", f"s_add_u32 s3, s3, s{sW}", "s_mul_i32 s3, s3, 1280",
                  (f"buffer_load_dwordx4 {vr(GX,4)}, v24, {S4(S_X)}, s3 offen", "prA"),
                  (f"buffer_load_dword v{GXT}, v24, {S4(S_X)}, s3 offen offset:16", "prA")])
        L.append(tsrd(PT + 10, 1280) + [(f"buffer_load_dwordx4 {vr(GW,4)}, v24, {S4(S_T)}, 0 offen", "prA"),
                  (f"buffer_load_dword v{GWT}, v24, {S4(S_T)}, 0 offen offset:16", "prA")])
        L.append(tsrd(PT + 4, 5120) + [(f"buffer_load_dwordx4 {vr(SH,4)}, v26, {S4(S_T)}, 0 offen", "pr")])
        for j in range(11):
            o = f"v29, {S4(S_T)}, 0 offen offset:{1280*j}" if j < 3 else f"v{27 if j < 7 else 28}, {S4(S_T)}, 0 offen offset:{1280*((j-3)%4)}"
            L.append((tsrd(PT, 2621440) if j == 0 else []) + [(f"buffer_load_dword v{KR+j}, {o}", "pr")])
        for j in range(8):
            L.append((tsrd(PT + 2, 2621440) if j == 0 else []) +
                     [(f"buffer_load_dword v{VR+j}, v{27 if j < 4 else 28}, {S4(S_T)}, 0 offen offset:{1280*(j%4)}", "pr")])
        if 'nopf' not in OPT:
            L.insert(0, [f"s_lshl_b32 s3, s{sP}, 3", f"s_add_u32 s3, s3, s{sW}", f"s_mul_i32 s3, s3, {10*8192}", f"s_lshl_b32 s{sT2}, s{sH}, 8",
                      f"s_add_u32 s3, s3, s{sT2}", "s_mov_b64 exec, 0xfffff",
                      (f"buffer_load_dword v{vPFW}, v{vPFW}, {S4(S_WQ)}, s3 offen sc1", "pfq"), "s_mov_b64 exec, -1"])
        return L

    def side_jobs():
        L = []
        t0, t1, t2, t3, t4, t5 = 24, 25, 26, 27, 28, 29
        for i in range(3):
            L.append([f"ds_read_b64_tr_b16 v[{116+4*i}:{117+4*i}], v{vWOT} offset:{256*i}"])
            L.append([f"ds_read_b64_tr_b16 v[{118+4*i}:{119+4*i}], v{vWOT} offset:{256*i+16*672}"])
        L.append([f"v_mov_b32 v{t0}, 0"])
        for x, w in [(GX + i, GW + i) for i in range(4)] + [(GXT, GWT)]:
            L += [[s] for s in [f"v_lshlrev_b32 v{t1}, 16, v{x}", f"v_and_b32 v{t2}, 0xffff0000, v{x}",
                                f"v_lshlrev_b32 v{t3}, 16, v{w}", f"v_and_b32 v{t4}, 0xffff0000, v{w}",
                                f"v_mul_f32 v{t1}, v{t1}, v{t3}", f"v_mul_f32 v{t2}, v{t2}, v{t4}"] + rnd_pair(t3, t1, t2, t1, t2) +
                               [f"v_add_f32 v{t0}, v{t0}, v{t1}", f"v_add_f32 v{t0}, v{t0}, v{t2}"]]
        for m in ("row_shr:1", "row_shr:2", "row_shr:4", "row_shr:8"):
            L.append([f"v_add_f32_dpp v{t0}, v{t0}, v{t0} {m} row_mask:0xf bank_mask:0xf bound_ctrl:0"])
        L.append([f"v_add_f32_dpp v{t0}, v{t0}, v{t0} row_bcast:15 row_mask:0xa bank_mask:0xf"])
        L.append([f"v_add_f32_dpp v{t0}, v{t0}, v{t0} row_bcast:31 row_mask:0xc bank_mask:0xf"])
        L += [[s] for s in rnd_pair(t1, t0, t0, t0, t2)[:2] +
              [f"v_mul_f32 v{t0}, 0xbfb8aa3b, v{t0}", f"v_exp_f32 v{t0}, v{t0}", f"v_cmp_eq_u32 vcc, 63, v0",
               f"v_add_f32 v{t0}, 1.0, v{t0}", f"v_rcp_f32 v{t0}, v{t0}", f"v_cndmask_b32 v{t2}, v30, 0, vcc"] +
              rnd_pair(t1, t0, t0, t0, t3)[:2]]
        L.append(["s_lshl_b32 s3, s2, 3", f"s_add_u32 s3, s3, s{sW}", "s_lshl_b32 s3, s3, 2", f"s_add_u32 s3, s3, {WS_G}",
                  (f"buffer_store_dword v{t0}, v{t2}, {S4(S_WS)}, s3 offen{' sc1' if FUSE else ''}", "pr2")])
        if not FUSE: L.append(["s_lshr_b32 s3, s2, 5", "s_lshl_b32 s3, s3, 12", f"s_and_b32 s{sT2}, s2, 31", f"s_lshl_b32 s{sT2}, s{sT2}, 2",
                  f"s_add_u32 s3, s3, s{sT2}", f"s_add_u32 s3, s3, {WS_FLG}", f"v_mov_b32 v{t1}, 0",
                  (f"buffer_store_dword v{t1}, v{t2}, {S4(S_WS)}, s3 offen{' sc1' if FUSE else ''}", "pr2")])
        L.append(["s_and_b32 s3, s2, 1", "s_mul_i32 s3, s3, 20", f"s_add_u32 s3, s3, s{sW}", f"s_mul_i32 s3, s3, {CS}",
                  f"s_lshr_b32 s{sT2}, s2, 1", f"s_lshl_b32 s{sT2}, s{sT2}, 10", f"s_add_u32 s3, s3, s{sT2}",
                  f"s_add_u32 s3, s3, {WS_WOT}", (f"buffer_store_dwordx4 v[116:119], v{vL16}, {S4(S_WS)}, s3 offen{' sc1' if FUSE else ''}", "pr2")])
        L.append([f"s_add_u32 s3, s3, {8*CS}", (f"buffer_store_dwordx4 v[120:123], v{vL16}, {S4(S_WS)}, s3 offen{' sc1' if FUSE else ''}", "pr2")])
        L.append([f"s_add_u32 s3, s3, {8*CS}", f"s_cmp_ge_u32 s{sW}, 4", f"s_cselect_b32 s3, {OOB}, s3",
                  (f"buffer_store_dwordx4 v[124:127], v{vL16}, {S4(S_WS)}, s3 offen{' sc1' if FUSE else ''}", "pr2")])
        W = 80
        for c in range(2):
            for q in range(2):
                L.append([f"v_lshlrev_b32 v{W+4*c+2*q}, 16, v{SH+2*c+q}"])
                L.append([f"v_and_b32 v{W+4*c+2*q+1}, 0xffff0000, v{SH+2*c+q}"])
        KL, KH = [110, 111, 112, 113], [88, 89, 109, 114]
        def unp(j): return [f"v_lshlrev_b32 v{KL[j%4]}, 16, v{KR+j}", f"v_and_b32 v{KH[j%4]}, 0xffff0000, v{KR+j}"]
        for j in range(3): L += [[s] for s in unp(j)]
        for s in range(8):
            ops = unp(s + 3)
            ops += [f"v_mul_f32 v{t0}, v{KL[s%4]}, v{W+3}", f"v_mul_f32 v{t1}, v{KH[s%4]}, v{W+7}"]
            for j in (2, 1, 0):
                ops += [f"v_fmac_f32 v{t0}, v{KL[(s+3-j)%4]}, v{W+j}", f"v_fmac_f32 v{t1}, v{KH[(s+3-j)%4]}, v{W+4+j}"]
            ops += [f"v_lshlrev_b32 v{t3}, 16, v{VR+s}", f"v_and_b32 v{t4}, 0xffff0000, v{VR+s}"]
            if s % 2 == 0:
                ops += [f"v_mul_f32 v118, v{t0}, v{t3}", f"v_mul_f32 v119, v{t1}, v{t4}"]
            else:
                ops += [f"v_mul_f32 v{t0}, v{t0}, v{t3}", f"v_mul_f32 v{t1}, v{t1}, v{t4}",
                        f"v_cvt_pk_bf16_f32 v{120+s//2}, v118, v{t0}", f"v_cvt_pk_bf16_f32 v{124+s//2}, v119, v{t1}"]
            L += [[x] for x in ops]
        L.append([f"s_mov_b32 s3, {WS_KVT}", (f"buffer_store_dwordx4 v[120:123], v{vKVT}, {S4(S_WS)}, s3 offen{' sc1' if FUSE else ''}", "pr2")])
        L.append([f"s_mov_b32 s3, {WS_KVT+4096}", (f"buffer_store_dwordx4 v[124:127], v{vKVT}, {S4(S_WS)}, s3 offen{' sc1' if FUSE else ''}", "pr2")])
        return L

    def kdma(e, tg):
        return [[f"s_add_u32 m0, s{sM0K}, {(e & 3) * 16384}", "s_nop 0",
                 (f"buffer_load_dwordx4 v{vL16}, {S4(S_WS)}, s{sHIST[e&3]} offen sc1 lds", tg)],
                [(f"buffer_load_dwordx4 v{vL16}, {S4(S_WS)}, s{sHIST[e&3]} offen offset:1024 sc1 lds", tg)]]
    vPOLL, vZERO, vFL = 24, 25, 26
    vCL = 31
    def only(wave, body, extra=None):
        lab = a.uid("ONLY")
        a(f"s_cmp_lg_u32 s{sW}, {wave}")
        a(f"s_cbranch_scc1 {lab}")
        if extra:
            a(extra); a(f"s_cbranch_scc1 {lab}")
        for x in body: a(x)
        a.label(lab)
    def clear_line():
        body = [f"s_lshl_b32 s3, s{sH}, 12", f"s_add_u32 s3, s3, {WS_FL2 - WS_FLG}", "v_lshl_add_u32 v116, v0, 2, s3",
                f"s_lshl_b32 s3, s{sH}, 2", f"s_add_u32 s3, s3, {WS_FL3 - WS_FLG - 16 * 4096}", "v_lshl_add_u32 v118, v0, 12, s3",
                "v_cmp_le_u32 vcc, 16, v0", "v_and_b32 v119, 7, v0", "v_lshl_add_u32 v119, v119, 3, s2", "v_cndmask_b32 v116, v116, v118, vcc",
                "v_lshrrev_b32 v118, 5, v119", "v_and_b32 v119, 31, v119", "v_lshlrev_b32 v119, 2, v119", "v_lshl_add_u32 v118, v118, 12, v119",
                "v_cmp_le_u32 vcc, 32, v0", f"v_mov_b32 v{vCL}, 0", f"s_mov_b32 s3, {WS_FLG}", "v_cndmask_b32 v116, v116, v118, vcc",
                f"buffer_store_dword v{vCL}, v116, {S4(S_WS)}, s3 offen sc1"]
        only(3, body, f"s_cmp_lg_u32 s{sP}, 0")
    def clean_set():
        only(3, ["s_mov_b64 exec, 1", "v_mov_b32 v117, 1", f"s_lshl_b32 s3, s{sH}, 2",
                 f"buffer_store_dword v117, v{vCL}, {S4(S_DBG)}, s3 offen offset:128 sc1", "s_mov_b64 exec, -1"], f"s_cmp_lg_u32 s{sP}, 0")
    def clean_issue(site):
        a(f"s_bfe_u32 s{sT2}, s2, 0x10003")
        only(2, [f"v_and_b32 v{vCL}, 31, v0", f"v_lshlrev_b32 v{vCL}, 2, v{vCL}",
                 f"buffer_load_dword v{vCL}, v{vCL}, {S4(S_DBG)}, 0 offen offset:128 sc1"], f"s_cmp_lg_u32 s{sT2}, {site}")
    def clean_check():
        lab = a.uid("CLN")
        a(f"s_cmp_lg_u32 s{sW}, 2")
        a(f"s_cbranch_scc1 {lab}D")
        a(f"s_mov_b32 s{sT2}, 0")
        a(f"s_branch {lab}C")
        a.label(lab)
        a("s_sleep 32")
        a(f"buffer_load_dword v{vCL}, v{vFL}, {S4(S_DBG)}, 0 offen offset:128 sc1")
        a("s_waitcnt vmcnt(0)")
        a.label(lab + "C")
        a(f"v_cmp_eq_u32 vcc, 0, v{vCL}")
        a(f"s_add_u32 s{sT2}, s{sT2}, 1")
        a(f"s_cbranch_vccz {lab}D")
        a(f"s_cmp_lt_u32 s{sT2}, 100000")
        a(f"s_cbranch_scc1 {lab}")
        a.label(lab + "D")
    def publish(wave, which):
        only(wave, ["s_mov_b64 exec, 1", f"v_mov_b32 v{vPOLL}, 1", f"s_lshl_b32 s3, s{sH}, 10", f"s_add_u32 s3, s3, s{sP}",
                    "s_lshl_b32 s3, s3, 2", f"s_add_u32 s3, s3, {WS_FL2 + 32 * which}",
                    f"buffer_store_dword v{vPOLL}, v{vZERO}, {S4(S_WS)}, s3 offen sc1", "s_mov_b64 exec, -1"])
    def line_addr(ctx0): return [f"s_mov_b32 s3, {WS_FL3}"] if ctx0 else [f"s_lshl_b32 s3, s{sH}, 12", f"s_add_u32 s3, s3, {WS_FL2}"]
    def poll_issue(wave, ctx0=False):
        only(wave, line_addr(ctx0) + [
                    f"buffer_load_dword v{vPOLL}, v{vFL}, {S4(S_WS)}, s3 offen sc1"])
    def poll(wave, need, vmw, ctx0=False):
        if 'nopoll' in OPT: return
        lab = a.uid("POLL")
        a(f"s_cmp_lg_u32 s{sW}, {wave}")
        a(f"s_cbranch_scc1 {lab}D")
        for x in line_addr(ctx0): a(x)
        a(f"s_mov_b32 s{sT2}, 0")
        a(f"s_waitcnt vmcnt({vmw})")
        a(f"s_branch {lab}C")
        a.label(lab)
        a(f"s_sleep {OPT.get('sleep', 8)}")
        a(f"buffer_load_dword v{vPOLL}, v{vFL}, {S4(S_WS)}, s3 offen sc1")
        a("s_waitcnt vmcnt(0)")
        a.label(lab + "C")
        a(f"v_cmp_eq_u32 vcc, 0, v{vPOLL}")
        a(f"s_add_u32 s{sT2}, s{sT2}, 1")
        a(f"s_and_b32 s{S_T}, vcc_lo, {need}")
        a(f"s_cbranch_scc0 {lab}D")
        a(f"s_cmp_lt_u32 s{sT2}, 100000")
        a(f"s_cbranch_scc1 {lab}")
        a.label(lab + "D")

    a(f"s_waitcnt vmcnt({vm.wait(('kv', 0))})")
    a("s_barrier")
    sp.mark("kv0")
    a(f"s_cmp_lg_u32 s{sG}, 0")
    a("s_cbranch_scc1 M_KVV")
    vm0 = list(vm.tags)
    spn = sp.n
    vAX, vAQ, vST = 2, 6, 10
    QA = 128
    PK = lambda z: (240 + 4 * z) if z < 4 else (80 + 4 * (z - 4))
    endwait = []
    for part in range(2):
        if part: a.label("M_KVV")
        vm.tags = list(vm0)
        sp.n = spn
        S = Stream(a, vm, dist=int(OPT.get('kd', 12)), per_gap=int(OPT.get('kpg', 2)), bar_delay=int(OPT.get('kbd', 3)))
        S.fill_rate = float(OPT.get('fr', 1.0))
        rl = []
        sl = side_loads()
        SH0 = int(OPT.get('sh0', 0))
        for st in range(8):
            buf = (st & 1) * 32768
            for u in range(2):
                x = 2 * st + u
                for nt in range(4):
                    for hf in range(2):
                        rg = WFR[x & 1] + 4 * nt + 2 * hf
                        rl.append((32 * x + nt - 6, ("w", x, nt, hf),
                                   f"ds_read_b64_tr_b16 {vr(rg,2)}, v{vAW+nt} offset:{buf+u*8192+hf*1024}", rg, st))
                for kt in range(8):
                    rg = CFR + 4 * (kt % int(OPT.get('kring', 4)))
                    rl.append((32 * x + 4 * kt, ("c", x, kt), f"ds_read_b128 {vr(rg,4)}, v{vAC+u} offset:{buf+kt*2048}", rg, st))
                    for nt in range(4):
                        idx = kt * 4 + nt if part == 0 else ((kt >> 1) * 4 + nt) * 2 + (kt & 1)
                        acc = vr(ACC + 4 * idx, 4)
                        w, c = vr(WFR[x & 1] + 4 * nt, 4), vr(rg, 4)
                        cin = "0" if x == 0 else acc
                        S.op(f"{MFMA16} {acc}, {w}, {c}, {cin}" if part == 0 else f"{MFMA16} {acc}, {c}, {w}, {cin}",
                             [("w", x, nt, 0), ("w", x, nt, 1), ("c", x, kt)])
            after = kv_dma(st + 2) if st < 6 else []
            if st == 5: after = after + q_dma_x(0)
            if st == 6: after = q_dma_w(0) + q_dma_x(1) + q_dma_w(1)
            if st == 7: after = q_dma_x(2) + q_dma_w(2)
            if part == 1: after = [[] for _ in range(int(OPT.get('stag', 14)))] + after
            if 'noside' not in OPT:
                if st == SH0: after = after + sl[1:5]
                if st == SH0 + 1: after = after + sl[5:16]
                if st == SH0 + 2: after = after + sl[16:] + sl[0:1]
            if part == 0:
                if st == 0: after = after + [clear_line]
                if st == 2: after = [clean_set] + after
                if st in (4, 5): after = after + [lambda st=st: clean_issue(st - 4)]
            tags = [("kv", st + 1)] if st < 7 else [("q", 0)]
            if st == 2: tags += ["pf"]
            if st == SH0 + 2: tags += ["prA"]
            if st == SH0 + 4: tags += ["pr", "pfq"]
            after = [lambda st=st: sp.mark(f"k{st}")] + after
            S.barrier_after_stage(st, tags, after)
        rl.sort(key=lambda r: (r[4], r[0]))
        for r in rl: S.read(r[1], r[2], r[3], r[4], r[0])
        sj = side_jobs()
        nk = [i for i, it in enumerate(sj) if f"v_lshlrev_b32 v80, 16, v{SH}" in it][0]
        if 'noside' in OPT: sj = []
        for it in sj[:nk]: S.filler((SH0 + 3) * 64 + 24, 1, it)
        for it in sj[nk:]: S.filler((SH0 + 5) * 64, 1, it)
        S.run([0])
        sp.mark("kv")
        a(f"s_lshr_b32 s{sT}, s{sW}, 1")
        a(f"s_lshl_b32 s{sT}, s{sT}, 13")
        a(f"s_and_b32 s{sT2}, s{sW}, 1")
        a(f"s_lshl_b32 s{sT2}, s{sT2}, 2")
        a("s_mov_b32 s3, 65536")
        frag_addrs(vAX, sT, vAQ, sT2, 3)
        a(f"v_add_u32 v{vAX+2}, 131072, v{vAX}")
        a(f"v_add_u32 v{vAX+3}, 131072, v{vAX+1}")
        S = Stream(a, vm, dist=10, per_gap=2, bar_delay=3)
        S.fill_rate = 1.0
        rl = []
        EARLYV = 'latev' not in OPT
        KPUB, VPUB = int(OPT.get('kpub', 4)), int(OPT.get('vpub', 8 if EARLYV else 9))
        for k in range(10):
            xb = XB[(k + 2) % 3]
            for u in range(2):
                x = 2 * k + u
                for nt in range(4):
                    for hf in range(2):
                        rg = WFR[x & 1] + 4 * nt + 2 * hf
                        rl.append((16 * x + nt - 5, ("w", x, nt, hf),
                                   f"ds_read_b64_tr_b16 {vr(rg,2)}, v{vAQ+nt} offset:{(k%3)*16384+u*8192+hf*1024}", rg, k))
                for qi in range(4):
                    rg = CFR + 4 * qi
                    av = vAX + u + (2 if xb == 131072 else 0)
                    rl.append((16 * x + 4 * qi, ("c", x, qi), f"ds_read_b128 {vr(rg,4)}, v{av} offset:{(xb%131072)+qi*2048}", rg, k))
                    for nt in range(4):
                        acc = vr(QA + 4 * (qi * 4 + nt), 4)
                        S.op(f"{MFMA16} {acc}, {vr(WFR[x&1]+4*nt,4)}, {vr(rg,4)}, {'0' if x == 0 else acc}",
                             [("w", x, nt, 0), ("w", x, nt, 1), ("c", x, qi)])
            tags, after, pre = [("q", k + 1)], [], None
            if k + 3 <= 9: after = q_dma_x(k + 3) + q_dma_w(k + 3)
            if k == 0 and part == 0: pre = clean_check
            if k == KPUB: tags.append("pr2")
            if k == KPUB and part == 0: tags.append("st"); after = [lambda: publish(0, 0)] + after
            KP = int(OPT.get('kpoll', 7))
            if k == KP - 1 and part == 0: after = [lambda: (poll_issue(1), vm.add("mark"), vm.ghost.add("mark"))] + after
            if k == KP:
                if part == 0: pre = lambda: poll(1, 1, vm.wait("mark"))
                after = kdma(0, "k0") + kdma(1, "k0")
            if k == 8: after = after + kdma(2, "k2")
            if k == 9: tags = []
            if k == VPUB and part == 1: tags.append("st"); after = [lambda: publish(4, 1)] + after
            if k == 9 and part == 1 and EARLYV: after = after + [lambda: poll_issue(5)]
            after = [lambda k=k: sp.mark(f"q{k}")] + after
            S.barrier_after_stage(k, tags, after, pre)
        rl.sort(key=lambda r: (r[4], r[0]))
        for r in rl: S.read(r[1], r[2], r[3], r[4], r[0])
        npre = 10
        for r in rl[:npre]: a(r[2])
        a(f"v_add_u32 v{vST}, {4096 >> part}, v{vL16}")
        a(f"v_mov_b32 v{vZERO}, 0")
        a(f"v_and_b32 v{vFL}, 31, v0")
        a(f"v_lshlrev_b32 v{vFL}, 2, v{vFL}")
        for z in list(range(4, 16)) + list(range(4)):
            for e in range(4):
                a(f"v_cvt_pk_bf16_f32 v{PK(z)+e}, v{ACC+8*z+2*e}, v{ACC+8*z+2*e+1}")
        SC = " " + OPT.get('stsc', 'sc1').replace('_', ' ')
        st0, stp = (2, int(OPT.get('stp', 5))) if part == 0 else (int(OPT.get('vst', 84)), int(OPT.get('stpv', 8)))
        for z in range(16 if 'nost' not in OPT else 1):
            j, c = z >> 2, z & 3
            S.filler(st0 + stp * z, 1, [f"s_add_u32 s3, s{sOB}, {j*8192}",
                     (f"buffer_store_dwordx4 {vr(PK(z),4)}, v{vST if c >> 1 else vL16}, {S4(S_WS)}, s3 offen offset:{(c&1)*1024}{SC}", "st")])
        S.run([0], preissued=npre)
        endwait.append(vm.wait("k0"))
        if part == 0: a("s_branch M_KVD")
    a.label("M_KVD")
    sp.mark("q")
    vKA, vVA, vD0, vQ2 = 2, 3, 4, 5
    FR, T, P, SS, O, Q, NEGM = 32, 64, [80, 88], [96, 112], 128, 192, 224
    LS, ONES, vTA, vX0, vNINF = 248, 232, 236, 238, 246
    BIAS = 12.0
    D = int(OPT.get('D', 5))
    a(f"s_mov_b32 s{sT}, {f32hex(1.4426950408889634 * 128 ** -0.5)}")
    a(f"s_lshr_b32 s{sT2}, s{sW}, 1")
    a(f"s_lshl_b32 s{sT2}, s{sT2}, 14")
    a(f"s_and_b32 s3, s{sW}, 1")
    a("s_lshl_b32 s3, s3, 11")
    a(f"s_add_u32 s{sT2}, s{sT2}, s3")
    a(f"s_add_u32 s{sT2}, s{sT2}, 98304")
    a(f"v_add_u32 v6, s{sT2}, v{vL16}")
    a(f"s_lshl_b32 s{sT2}, s{sW}, 13")
    a(f"s_add_u32 s{sT2}, s{sT2}, 98304")
    a(f"v_add_u32 v{vQ2}, s{sT2}, v{vL16}")
    a(f"s_lshl_b32 s{sT2}, s{sG}, 13")
    a(f"v_add_u32 v{vKA}, s{sT2}, v{vL16}")
    a(f"v_add_u32 v{vVA}, 65536, v{vKA}")
    for f in range(8):
        for e in range(4):
            r = QA + 8 * f + 2 * e
            a(f"v_mul_f32 v{r}, s{sT}, v{r}")
            a(f"v_mul_f32 v{r+1}, s{sT}, v{r+1}")
            a(f"v_cvt_pk_bf16_f32 v{Q+4*f+e}, v{r}, v{r+1}")
        a(f"ds_write_b128 v6, {vr(Q+4*f,4)} offset:{(f>>1)*4096+(f&1)*1024}")
    a("v_and_b32 v7, 15, v0")
    a("v_lshrrev_b32 v8, 4, v0")
    a(f"s_lshl_b32 s{sT}, s{sRB}, 5")
    a(f"v_add_u32 v{vD0}, s{sT}, v7")
    a("v_lshlrev_b32 v8, 2, v8")
    a(f"v_sub_u32 v{vD0}, v{vD0}, v8")
    a(f"v_mov_b32 v{vNINF}, 0xff800000")
    for r in range(8): a(f"v_mov_b32 v{NEGM+r}, 0")
    for r in range(4): a(f"v_mov_b32 v{ONES+r}, 0x3f803f80")
    if EARLYV: poll(5, 0x101, 0)
    a(f"s_waitcnt vmcnt({min(endwait)}) lgkmcnt(0)")
    a("s_barrier")
    if not EARLYV: poll_issue(5)
    sp.mark("qx")
    def kread(e, t): return f"ds_read_b128 {vr(FR+4*t,4)}, v{vKA} offset:{(e&3)*16384+t*1024}"
    def vread(e, i): return f"ds_read_b128 {vr(FR+4*i,4)}, v{vVA} offset:{(e&3)*16384+i*1024}"
    for f in range(8): a(f"ds_read_b128 {vr(Q+4*f,4)}, v{vQ2} offset:{f*1024}")
    for i in range(D): a(kread(0, i))
    a(f"s_mov_b32 s{sS}, 0")

    handlers = []
    def xreduce(op, x, tmp):
        a(f"v_mov_b32 v{tmp}, v{x}")
        a(f"v_permlane16_swap_b32 v{x}, v{tmp}")
        a(f"{op} v{x}, v{x}, v{tmp}")
        a(f"v_mov_b32 v{tmp}, v{x}")
        a(f"v_permlane32_swap_b32 v{x}, v{tmp}")
        a(f"{op} v{x}, v{x}, v{tmp}")
    def rowmax(dst, tmp, src):
        a(f"v_max3_f32 v{dst}, v{src}, v{src+1}, v{src+2}")
        a(f"v_max3_f32 v{dst}, v{dst}, v{src+3}, v{src+4}")
        a(f"v_max3_f32 v{dst}, v{dst}, v{src+5}, v{src+6}")
        a(f"v_max_f32 v{dst}, v{dst}, v{src+7}")
        xreduce("v_max_f32", dst, tmp)
    def sm_ops(Sc, Pw):
        f = []
        def post(q):
            f.append((1, [f"v_cvt_pk_bf16_f32 v{Pw+q//2}, v{T+q%8}, v{T+(q+1)%8}"]))
            k = q // 2
            if k == 3: f.append((1, [f"v_or3_b32 v{vTA}, v{Pw}, v{Pw+1}, v{Pw+2}"]))
            if k == 5: f.append((1, [f"v_or3_b32 v{vTA}, v{vTA}, v{Pw+3}, v{Pw+4}"]))
            if k == 7:
                f.append((1, [f"v_or3_b32 v{vTA}, v{vTA}, v{Pw+5}, v{Pw+6}"]))
                f.append((1, [f"v_bitop3_b32 v{vTA}, v{vTA}, v{Pw+7}, s{sTHR} bitop3:0xa8"]))
        for r in range(16):
            f.append((2, [f"v_exp_f32 v{T+r%8}, v{Sc+r}"]))
            if r % 2 == 1 and r >= 3: post(r - 3)
        post(14)
        return f
    def store_ctx(qis, sct, obase):
        n = 0
        for qi in qis:
            for u in range(4):
                d = T + (n % 4) * 4
                n += 1
                src = obase(qi) + 8 * u
                for e in range(4): a(f"v_cvt_pk_bf16_f32 v{d+e}, v{src+2*e}, v{src+2*e+1}")
                if u == 0 and qi == 1 and len(qis) == 2: a(f"s_add_u32 s{sct}, s{sct}, {CS}")
                a(f"buffer_store_dwordx4 {vr(d,4)}, v{vL16}, {S4(S_WS)}, s{sct} offen offset:{u*1024}{' sc1' if FUSE else ''}")

    def slot(j, name, qk=True, sm=True, pv=True, nxt="k", dma=True, last=False, vlist=None, prefetched=True, prebar=None, vmw=4, fresh=False):
        par = j & 1
        if vlist is None: vlist = [j]
        Sc, Sn, Pw, Pr = SS[1 - par], SS[par], P[1 - par], P[par]
        a.label(name)
        if sm or pv:
            a(f"s_bitcmp1_b64 s[{sEV}:{sEV+1}], s{sS}")
            a(f"s_cbranch_scc1 {name}_EV")
            a.label(name + "_GO")
            handlers.append(("ev", name, Sc))
        ms = []
        if qk:
            for t in range(8):
                kt, u = t >> 2, t & 3
                mm = []
                for qi in range(2):
                    d = vr(Sn + 8 * qi + 4 * kt, 4)
                    mm.append(f"{MFMA16} {d}, {vr(FR+4*t,4)}, {vr(Q+16*qi+4*u,4)}, {vr(NEGM+4*qi,4) if u == 0 else d}")
                ms.append((mm, kread(j, t)))
        if pv:
            for i in range(8):
                mm = []
                for qi in range(2):
                    o = vr(O + 32 * qi + 4 * i, 4)
                    mm.append(f"{MFMA16} {o}, {vr(FR+4*i,4)}, {vr(Pr+4*qi,4)}, {'0' if fresh else o}")
                ms.append((mm, vread(j - 2, i)))
        rd = [m[1] for m in ms]
        if nxt == "k": rd += [kread(j + 1, i) for i in range(D)]
        elif nxt == "v": rd += [vread(j - 1, i) for i in range(D)]
        dm = []
        def vd(e): return [[f"s_add_u32 m0, s{sM0V}, {(e & 3) * 16384}", "s_nop 0",
                            f"buffer_load_dwordx4 v{vL16}, {S4(S_V)}, s{sHIST[e&3]} offen sc1 lds"],
                           [f"buffer_load_dwordx4 v{vL16}, {S4(S_V)}, s{sHIST[e&3]} offen offset:1024 sc1 lds"]]
        if dma and not ('nodma' in OPT and name.startswith('AT_L')):
            for e in vlist: dm += vd(e)
            h0, h1 = sHIST[(j + 3) & 3], sHIST[(j + 2) & 3]
            pre = [f"s_cmp_ge_u32 s{sS}, s{sWRAP}", f"s_cselect_b32 s{sT}, s{sBASE}, 8192", f"s_add_u32 s{sT}, s{sT}, s{h1}",
                   f"s_add_u32 m0, s{sM0K}, {((j + 3) & 3) * 16384}", f"s_cmp_ge_u32 s{sS}, 31", f"s_cselect_b32 s{h0}, {OOB}, s{sT}"]
            dm.append(pre + [f"buffer_load_dwordx4 v{vL16}, {S4(S_WS)}, s{h0} offen sc1 lds"])
            dm.append([f"buffer_load_dwordx4 v{vL16}, {S4(S_WS)}, s{h0} offen offset:1024 sc1 lds"])
        groups = []
        n = len(ms)
        if not prefetched:
            for x in rd[:D]: a(x)
        dpos = list(range(1, n, 2)) if len(dm) <= n // 2 else list(range(n))
        for m in range(n):
            pre = []
            if m % 2 == 0:
                out = min(len(rd), m + D) - (m + 2)
                pre.append(f"s_waitcnt lgkmcnt({max(out, 0)})")
            post = [rd[m + D]] if m + D < len(rd) else []
            if 'halfread' in OPT and (m + D) % 2 == 1: post = []
            if m in dpos and dpos.index(m) < len(dm): post += dm[dpos.index(m)]
            groups.append((pre, ms[m][0][0], []))
            groups.append(([], ms[m][0][1], post))
            if pv and m == n - 5:
                for qi in range(2): groups.append(([], f"{MFMA16} {vr(LS+4*qi,4)}, {vr(ONES,4)}, {vr(Pr+4*qi,4)}, {'0' if fresh else vr(LS+4*qi,4)}", []))
        interleave(a, groups, sm_ops(Sc, Pw) if (sm and 'nosm' not in OPT) else [], max(2 * n - 2, 1))
        if sm:
            a(f"v_cmp_ne_u32 vcc, 0, v{vTA}")
            a(f"s_cbranch_vccnz {name}_SLOW")
            a.label(name + "_RET")
            handlers.append(("slow", name, Sc, Sn, Pw))
        if not last:
            a(f"s_add_u32 s{sS}, s{sS}, 1")
            if prebar: prebar()
            a(f"s_waitcnt vmcnt({vmw if dma else 0})")
            if not ('nobar' in OPT and name.startswith('AT_L')): a("s_barrier")

    if 'prio' in OPT:
        a(f"s_cmp_eq_u32 s{sG}, {OPT['prio']}")
        a("s_cbranch_scc0 AT_PRIO")
        a("s_setprio 1")
        a.label("AT_PRIO")
    if EARLYV:
        slot(0, "AT_S0", sm=False, pv=False)
        sp.mark("s0")
        slot(1, "AT_S1", pv=False)
    else:
        slot(0, "AT_S0", sm=False, pv=False, vlist=[], prebar=lambda: poll(5, 0x101, 2), vmw=2)
        sp.mark("s0")
        slot(1, "AT_S1", pv=False, vlist=[0, 1])
    sp.mark("s1")
    poll_issue(2)
    slot(2, "AT_S2", prebar=lambda: poll(2, 0xffff, 4), fresh=True)
    sp.mark("s2")
    a("s_branch AT_L3")
    slot(2, "AT_L2"); slot(3, "AT_L3"); slot(0, "AT_L0")
    a(f"s_cmp_eq_u32 s{sS}, 33")
    a("s_cbranch_scc1 AT_P33")
    slot(1, "AT_L1")
    a("s_branch AT_L2")
    a.label("AT_P33")
    sp.mark("s32")
    if FUSE: poll_issue(6, True)
    slot(1, "AT_S33", nxt=None, prebar=(lambda: poll(6, -1, 4, True)) if FUSE else None)
    slot(2, "AT_S34", qk=False, nxt=None, dma=False, prefetched=False)
    slot(3, "AT_S35", qk=False, sm=False, nxt=None, dma=False, last=True, prefetched=False)
    sp.mark("s35")
    a("s_barrier")
    a(f"s_mul_i32 s{sT}, s{sW}, {8192+512}")
    a(f"s_xor_b32 s{sT2}, s{sW}, 4")
    a(f"s_mul_i32 s{sT2}, s{sT2}, {8192+512}")
    a(f"v_add_u32 v14, s{sT}, v{vL16}")
    a(f"v_add_u32 v15, s{sT2}, v{vL16}")
    a("v_lshlrev_b32 v16, 3, v0")
    a(f"v_add_u32 v17, s{sT2}, v16")
    a(f"v_add_u32 v16, s{sT}, v16")
    X0, X1, X2, X3, X4, X5 = range(vX0, vX0 + 6)
    a(f"s_cmp_eq_u32 s{sG}, 0")
    a("s_cbranch_scc1 AT_MA")
    a(f"v_mov_b32 v{X4}, v{NEGM}")
    a(f"v_mov_b32 v{X5}, v{LS}")
    a(f"v_mov_b32 v{X0}, v{NEGM+4}")
    a(f"v_mov_b32 v{X1}, v{LS+4}")
    for q in range(8): a(f"ds_write_b128 v14, {vr(O+4*q,4)} offset:{1024*q}")
    for r in range(32): a(f"v_mov_b32 v{O+r}, v{O+32+r}")
    a(f"s_add_u32 s{sCT2}, s{sCT2}, {CS}")
    a("s_branch AT_MB")
    a.label("AT_MA")
    a(f"v_mov_b32 v{X4}, v{NEGM+4}")
    a(f"v_mov_b32 v{X5}, v{LS+4}")
    a(f"v_mov_b32 v{X0}, v{NEGM}")
    a(f"v_mov_b32 v{X1}, v{LS}")
    for q in range(8): a(f"ds_write_b128 v14, {vr(O+32+4*q,4)} offset:{1024*q}")
    a.label("AT_MB")
    a(f"ds_write_b64 v16, v[{X4}:{X5}] offset:8192")
    a("s_waitcnt lgkmcnt(0)")
    a("s_barrier")
    a(f"ds_read_b64 v[{X2}:{X3}], v17 offset:8192")
    for q in range(8): a(f"ds_read_b128 {vr(O+32+4*q,4)}, v15 offset:{1024*q}")
    a("s_waitcnt lgkmcnt(8)")
    a(f"v_min_f32 v{vTA}, v{X0}, v{X2}")
    a(f"v_sub_f32 v{X0}, v{vTA}, v{X0}")
    a(f"v_sub_f32 v{X2}, v{vTA}, v{X2}")
    a(f"v_exp_f32 v{X0}, v{X0}")
    a(f"v_exp_f32 v{X2}, v{X2}")
    a(f"v_mul_f32 v{vTA}, v{X1}, v{X0}")
    a(f"v_fmac_f32 v{vTA}, v{X3}, v{X2}")
    a(f"v_rcp_f32 v{vTA}, v{vTA}")
    a(f"v_mul_f32 v{X0}, v{X0}, v{vTA}")
    a(f"v_mul_f32 v{X2}, v{X2}, v{vTA}")
    for r in range(32): a(f"v_mul_f32 v{O+r}, v{O+r}, v{X0}")
    a("s_waitcnt lgkmcnt(0)")
    for r in range(32): a(f"v_fmac_f32 v{O+r}, v{O+32+r}, v{X2}")
    store_ctx((0,), sCT2, lambda qi: O)
    if FUSE:
        sp.mark("att")
        gen_tail.gen_tail(a, {k: v for k, v in globals().items() if not k.startswith("__")}, dict(sW=sW, sH=sH, sP=sP, sp=sp))
    elif STAMP:
        a("s_waitcnt vmcnt(0)")
        sp.mark("end")
        a("s_waitcnt lgkmcnt(0)")
        sp.flush(100, sW, 0, slot=0); sp.flush(100, sW, 4, slot=1)
    a.label("M_END")
    a("s_endpgm")
    for hd in handlers:
        if hd[0] == "ev":
            _, name, Sc = hd
            a.label(name + "_EV")
            a(f"s_sub_u32 s{sT}, s{sS}, s{sN1}")
            a(f"s_cmp_lg_u32 s{sT}, 2")
            a(f"s_cbranch_scc1 {name}_E1")
            a(f"v_rcp_f32 v{vX0}, v{LS}")
            a(f"v_rcp_f32 v{vX0+1}, v{LS+4}")
            for r in range(8): a(f"v_mov_b32 v{LS+r}, 0")
            for r in range(64): a(f"v_mul_f32 v{O+r}, v{O+r}, v{vX0+(r>>5)}")
            store_ctx((0, 1), sCT1, lambda qi: O + 32 * qi)
            for r in range(64): a(f"v_mov_b32 v{O+r}, 0")
            a.label(name + "_E1")
            if FUSE:
                only(0, ["s_mov_b64 exec, 1", f"v_mov_b32 v{vX0}, 1", f"s_lshl_b32 s3, s{sP}, 10", f"s_add_u32 s3, s3, s{sH}", "s_lshl_b32 s3, s3, 2",
                         f"s_add_u32 s3, s3, {WS_FL3}", f"buffer_store_dword v{vX0}, v{vZERO}, {S4(S_WS)}, s3 offen sc1", "s_mov_b64 exec, -1"],
                     f"s_cmp_lg_u32 s{sT}, 3")
            a(f"s_cmp_lg_u32 s{sT}, 0")
            a(f"s_cbranch_scc1 {name}_E2")
            for t in range(8): a(f"ds_read_b128 {vr(Q+4*t,4)}, v{vQ2} offset:{32768+1024*t}")
            for r in range(8): a(f"v_mov_b32 v{NEGM+r}, 0")
            a("s_waitcnt lgkmcnt(0)")
            a.label(name + "_E2")
            a(f"s_sub_u32 s{sT2}, s{sS}, s{sMST}")
            a(f"s_sub_u32 s{sT2}, s{sT2}, 1")
            a(f"s_cmp_lt_u32 s{sT2}, 4")
            a(f"s_cbranch_scc1 {name}_EM")
            a(f"s_cmp_lt_u32 s{sS}, 33")
            a(f"s_cbranch_scc1 {name}_E3")
            a(f"s_sub_u32 s{sT2}, s{sS}, 33")
            a(f"s_lshl_b32 s{sT2}, s{sT2}, 1")
            a(f"s_add_u32 s{sT2}, s{sT2}, s{sG}")
            a.label(name + "_EM")
            a(f"s_lshl_b32 s{sT2}, s{sT2}, 5")
            a(f"v_subrev_u32 v{vX0}, s{sT2}, v{vD0}")
            for qi in range(2):
                for kt in range(2):
                    for e in range(4):
                        a(f"v_cmp_le_i32 s[{sMK+2*e}:{sMK+2*e+1}], {16*kt+e-16*qi}, v{vX0}")
                    for e in range(4):
                        r = Sc + 8 * qi + 4 * kt + e
                        a(f"v_cndmask_b32 v{r}, v{vNINF}, v{r}, s[{sMK+2*e}:{sMK+2*e+1}]")
            a.label(name + "_E3")
            a(f"s_cmp_eq_u32 s{sT}, 1")
            a(f"s_cbranch_scc1 {name}_E4")
            a(f"s_cmp_lg_u32 s{sS}, 1")
            a(f"s_cbranch_scc1 {name}_GO")
            a.label(name + "_E4")
            for qi in range(2):
                rowmax(vX0 + qi, vX0 + 2 + qi, Sc + 8 * qi)
                a(f"v_add_f32 v{vX0+qi}, {f32hex(BIAS)}, v{vX0+qi}")
            for r in range(8): a(f"v_sub_f32 v{NEGM+r}, v{NEGM+r}, v{vX0+(r>>2)}")
            for r in range(16): a(f"v_sub_f32 v{Sc+r}, v{Sc+r}, v{vX0+(r>>3)}")
            a(f"s_branch {name}_GO")
        else:
            _, name, Sc, Sn, Pw = hd
            a.label(name + "_SLOW")
            for qi in range(2):
                rowmax(vX0 + qi, vX0 + 2 + qi, Sc + 8 * qi)
                a(f"v_add_f32 v{vX0+qi}, {f32hex(BIAS)}, v{vX0+qi}")
                a(f"v_max_f32 v{vX0+qi}, 0, v{vX0+qi}")
                a(f"v_exp_f32 v{vX0+2+qi}, -v{vX0+qi}")
            for r in range(8): a(f"v_sub_f32 v{NEGM+r}, v{NEGM+r}, v{vX0+(r>>2)}")
            for r in range(16): a(f"v_sub_f32 v{Sn+r}, v{Sn+r}, v{vX0+(r>>3)}")
            for r in range(16): a(f"v_sub_f32 v{Sc+r}, v{Sc+r}, v{vX0+(r>>3)}")
            for r in range(64): a(f"v_mul_f32 v{O+r}, v{O+r}, v{vX0+2+(r>>5)}")
            for r in range(8): a(f"v_mul_f32 v{LS+r}, v{LS+r}, v{vX0+2+(r>>2)}")
            for c, ops in sm_ops(Sc, Pw):
                for x in ops: a(x)
            a(f"s_branch {name}_RET")
    return dict(name="gated_mix__ssm_conv_h3__compressed_kv_cla__prompt_kernel" if FUSE else "main_kernel", grid=256, block=512, lds=163840, vgpr=256)

import gen as G1
G1.STAMP = False
KERNELS = {"main": gen_main, "conv": G1.gen_conv, "oproj": G1.gen_oproj, "tail": lambda a: gen_tail.gen_tail(a, {k: v for k, v in globals().items() if not k.startswith("__")})}

def build(names, path, verbose=False):
    hdr = open("gated_mix__ssm_conv_h3__compressed_kv_cla__prompt.s.ref").read().split("\n")
    hdr = [l for l in hdr if l.startswith(";") and "@launch" not in l and "Override" not in l and "grid=ceil" not in l]
    codes, descs, launches = [], [], []
    for n in names:
        a = Asm()
        info = KERNELS[n](a)
        k = fix_hazards(a.lines, verbose)
        print(f"{n}: {len(a.lines)} lines, {k} nops inserted")
        c, d = kernel_text(info["name"], a.lines, info["vgpr"], extra="  .amdhsa_float_denorm_mode_32 3\n")
        codes.append(c); descs.append(d)
        kn = "" if "plain" in OPT else f"kernel={info['name']} "
        launches.append(f"; @launch {kn}grid=({info['grid']},1,1) block=({info['block']},1,1) lds={info['lds']}")
    txt = "\n".join(hdr + launches) + '\n.amdgcn_target "amdgcn-amd-amdhsa--gfx950"\n.text\n' + "\n".join(codes) + \
          '\n.section .rodata,"a"\n' + "\n".join(descs)
    open(path, "w").write(txt)

if __name__ == "__main__":
    names = sys.argv[2].split(",") if len(sys.argv) > 2 else list(KERNELS)
    build(names, sys.argv[1] if len(sys.argv) > 1 else "k2.s", verbose="-v" in sys.argv)
```

```python
import sys, struct
from asmlib import *
from sched import *
import gen_tail

MB = 1 << 20
WS_KF, WS_VF, WS_CTX, WS_WOT, WS_KVT, WS_Y2T, WS_G = 0, 16 * MB, 32 * MB, 49 * MB, 56 * MB, 60 * MB, 63 * MB
KA = dict(A_q=0, A_k=8, A_v=16, shift=24, ssm_k=32, ssm_D=40, B_x=48, c_kv=56, w_q=64, w_uk=72, w_uv=80, w_o=88,
          gate=96, out=104, dbg=112, ws=120)
MFMA32 = "v_mfma_f32_32x32x16_bf16"
MFMA16 = "v_mfma_f32_16x16x32_bf16"
STAMP = "-stamp" in sys.argv
OPT = {x[2:].split("=")[0]: (x.split("=")[1] if "=" in x else "1") for x in sys.argv if x.startswith("--")}
WS_FLG = 63 * MB + 524288
WS_FL2 = 63 * MB + 655360
WS_FL3 = WS_FL2 + 131072
FUSE = 'nofuse' not in OPT
CS = 131072 + int(OPT.get('cspad', 1024))
OOB = "0x80000000"
def f32hex(x): return "0x%08x" % struct.unpack("<I", struct.pack("<f", x))[0]

def srd(a, d, lo, hi, size, add=0):
    if add:
        a(f"s_add_u32 s{d}, s{lo}, {add}")
        a(f"s_addc_u32 s{d+1}, s{hi}, 0")
    else:
        a(f"s_mov_b32 s{d}, s{lo}")
        a(f"s_mov_b32 s{d+1}, s{hi}")
    a(f"s_mov_b32 s{d+2}, {size}")
    a(f"s_mov_b32 s{d+3}, 0x00020000")
def S4(d): return f"s[{d}:{d+3}]"

class Stamps:
    def __init__(self, a, base=70, region=0):
        self.a, self.base, self.n, self.region = a, base, 0, region
    off = False
    def mark(self, name=""):
        if not STAMP or self.off: return
        if name not in OPT.get("marks", "start,kv,q,s1,end,t0,t1,t2").split(","): return
        assert self.base + 2 * self.n + 3 <= 101
        self.a(f"s_memtime s[{self.base+2*self.n}:{self.base+2*self.n+1}]")
        self.a(f"s_memrealtime s[{self.base+2*self.n+2}:{self.base+2*self.n+3}]")
        self.n += 2
    def flush(self, wg, sW, wave, slot=0):
        if not STAMP: return
        a = self.a
        lab = a.uid("STK")
        a(f"s_cmp_lg_u32 s{sW}, {wave}")
        a(f"s_cbranch_scc1 {lab}")
        if 'dbgstamp' in OPT:
            if slot:
                a.label(lab); return
            a(f"s_cmp_lg_u32 s2, {OPT['dbgstamp']}")
            a(f"s_cbranch_scc1 {lab}")
            a(f"s_load_dwordx2 s[60:61], s[0:1], {KA['dbg']}")
            a("s_waitcnt lgkmcnt(0)")
            a("s_mov_b32 s62, 64")
            a("s_mov_b32 s63, 0x00020000")
            a("v_mov_b32 v1, 0")
            for i in range(self.n - 1, 1, -1): a(f"s_sub_u32 s{self.base+2*i}, s{self.base+2*i}, s{self.base+2*i-4}")
        else:
            a(f"s_load_dwordx2 s[60:61], s[0:1], {KA['ws']}")
            a("s_waitcnt lgkmcnt(0)")
            a(f"s_add_u32 s60, s60, {128*MB + self.region*65536 + slot*64}")
            a("s_addc_u32 s61, s61, 0")
            a("s_mov_b32 s62, 65536")
            a("s_mov_b32 s63, 0x00020000")
            a("s_lshl_b32 s3, s2, 7")
            a("v_mov_b32 v1, s3")
        for i in range(self.n):
            a(f"v_mov_b32 v2, s{self.base+2*i}")
            a(f"buffer_store_dword v2, v1, s[60:63], 0 offen offset:{4*i}")
        a("s_getreg_b32 s3, hwreg(HW_REG_XCC_ID)")
        a("v_mov_b32 v2, s3")
        a(f"buffer_store_dword v2, v1, s[60:63], 0 offen offset:60")
        a("s_waitcnt vmcnt(0)")
        a.label(lab)

def rnd_pair(d, lo, hi, olo, ohi):
    return [f"v_cvt_pk_bf16_f32 v{d}, v{lo}, v{hi}", f"v_lshlrev_b32 v{olo}, 16, v{d}", f"v_and_b32 v{ohi}, 0xffff0000, v{d}"]

def interleave(a, mfmas, fillers, ngaps):
    tot = sum(c for c, _ in fillers)
    fi, acc = 0, 0.0
    for g, (pre, m, post) in enumerate(mfmas):
        for x in pre: a(x)
        a(m)
        for x in post: a(x)
        lim = tot * min(1.0, (g + 1) / ngaps) if ngaps else tot
        while fi < len(fillers) and acc + fillers[fi][0] * 0.5 <= lim:
            acc += fillers[fi][0]
            for x in fillers[fi][1]: a(x)
            fi += 1
    while fi < len(fillers):
        for x in fillers[fi][1]: a(x)
        fi += 1

def gen_main(a):
    S_C, S_W, S_WS, S_V, S_X, S_WQ, S_DBG = 4, 8, 12, 16, 20, 24, 28
    (sW, sH, sP, sG, sRB, sT, sT2, sCO, sWO, sM0C, sM0W, sOB, sROW, sXO, sQWO, sN1, sS, sMST, sTHR, sM0K, sM0V,
     sBASE, sCT1, sCT2, sWRAP) = range(32, 57)
    sHIST = [57, 58, 59, 60]
    sEV = 62
    PT = 64
    S_T = 76
    sMK = 4
    vL16, vCD, vWD, vAC, vAW, vXD, vQW, vWOT, vKVT = 1, 2, 6, 10, 12, 16, 20, 22, 23
    WFR, CFR, ACC = [32, 48], 64, 128
    sp = Stamps(a, base=80)
    vm = VM()
    a("s_cmp_ge_u32 s2, 256")
    a("s_cbranch_scc1 M_END")
    sp.mark("start")
    a(f"s_load_dwordx2 s[44:45], s[0:1], {KA['c_kv']}")
    a(f"s_load_dwordx4 s[48:51], s[0:1], {KA['w_uk']}")
    a("v_lshrrev_b32 v1, 6, v0")
    a("v_mov_b32 v31, v0")
    a("v_and_b32 v0, 63, v0")
    a(f"v_readfirstlane_b32 s{sW}, v1")
    a(f"s_and_b32 s{sH}, s2, 7")
    a("s_lshr_b32 s3, s2, 6")
    a("s_lshl_b32 s3, s3, 3")
    a(f"s_add_u32 s{sH}, s{sH}, s3")
    a(f"s_bfe_u32 s{sP}, s2, 0x30003")
    a(f"s_lshr_b32 s{sG}, s{sW}, 2")
    a("v_lshrrev_b32 v24, 3, v0")
    a("v_and_b32 v25, 7, v0")
    a("v_lshrrev_b32 v26, 4, v0")
    a("v_xor_b32 v25, v25, v26")
    a("v_lshlrev_b32 v25, 4, v25")
    a("v_xor_b32 v27, 64, v25")
    a(f"v_lshl_add_u32 v{vCD}, v24, 10, v25")
    a(f"v_lshl_add_u32 v{vCD+1}, v24, 10, v27")
    a(f"v_add_u32 v{vCD+1}, {8192-1024}, v{vCD+1}")
    a(f"v_add_u32 v{vCD+2}, {2*(8192-1024)}, v{vCD}")
    a(f"v_add_u32 v{vCD+3}, {2*(8192-1024)}, v{vCD+1}")
    a("v_and_b32 v28, 15, v0")
    a("v_lshlrev_b32 v29, 1, v26")
    a("v_xor_b32 v28, v28, v29")
    a("v_lshlrev_b32 v28, 4, v28")
    a(f"v_lshl_add_u32 v{vWD}, v26, 13, v28")
    a(f"v_add_u32 v{vWD+1}, {4*8192-1024}, v{vWD}")
    a(f"v_xor_b32 v{vWD+2}, 128, v{vWD}")
    a(f"v_add_u32 v{vWD+2}, {2*(4*8192-1024)}, v{vWD+2}")
    a(f"v_add_u32 v{vWD+3}, {4*8192-1024}, v{vWD+2}")
    a(f"s_and_b32 s{sRB}, s{sW}, 3")
    a(f"s_lshl_b32 s{sCO}, s{sP}, 18")
    a(f"s_lshl_b32 s{sT}, s{sW}, 15")
    a(f"s_add_u32 s{sCO}, s{sCO}, s{sT}")
    a(f"s_lshl_b32 s{sWO}, s{sRB}, 17")
    a(f"s_lshl_b32 s{sT}, s{sH}, 8")
    a(f"s_add_u32 s{sWO}, s{sWO}, s{sT}")
    a(f"s_lshl_b32 s{sM0C}, s{sW}, 12")
    a(f"s_add_u32 s{sM0W}, s{sM0C}, 65536")
    a("s_waitcnt lgkmcnt(0)")
    srd(a, S_C, 44, 45, 2 * MB)
    a(f"s_cmp_eq_u32 s{sG}, 0")
    a(f"s_cselect_b32 s{S_W}, s48, s50")
    a(f"s_cselect_b32 s{S_W+1}, s49, s51")
    a(f"s_mov_b32 s{S_W+2}, {4*MB}")
    a(f"s_mov_b32 s{S_W+3}, 0x00020000")
    def kv_dma(st):
        buf = (st & 1) * 32768
        tg = ("kv", st)
        out = [[f"s_add_u32 m0, s{sM0C}, {buf}", f"s_add_u32 s{sT}, s{sCO}, {st*128}",
                (f"buffer_load_dwordx4 v{vCD}, {S4(S_C)}, s{sT} offen lds", tg)]]
        for i in range(1, 4): out.append([(f"buffer_load_dwordx4 v{vCD+i}, {S4(S_C)}, s{sT} offen offset:{i*1024} lds", tg)])
        out.append([f"s_add_u32 m0, s{sM0W}, {buf}", f"s_add_u32 s{sT}, s{sWO}, {st*64*8192}",
                    (f"buffer_load_dwordx4 v{vWD}, {S4(S_W)}, s{sT} offen lds", tg)])
        for i in range(1, 4): out.append([(f"buffer_load_dwordx4 v{vWD+i}, {S4(S_W)}, s{sT} offen offset:{i*1024} lds", tg)])
        return out
    def emit(items):
        for it in items:
            for x in it:
                if isinstance(x, tuple): a(x[0]); vm.add(x[1])
                else: a(x)
    emit(kv_dma(0))
    a(f"s_load_dwordx2 s[44:45], s[0:1], {KA['A_q']}")
    a(f"s_load_dwordx2 s[46:47], s[0:1], {KA['w_q']}")
    a(f"s_load_dwordx4 s[48:51], s[0:1], {KA['dbg']}")
    a(f"s_load_dwordx4 s[{PT}:{PT+3}], s[0:1], {KA['A_k']}")
    a(f"s_load_dwordx2 s[{PT+4}:{PT+5}], s[0:1], {KA['shift']}")
    a(f"s_load_dwordx4 s[{PT+8}:{PT+11}], s[0:1], {KA['w_o']}")
    a(f"v_lshlrev_b32 v{vL16}, 4, v0")
    a("v_mul_u32_u24 v28, 1280, v24")
    a(f"v_add_u32 v{vXD}, v28, v25")
    a(f"v_add_u32 v{vXD+1}, v28, v27")
    a(f"v_add_u32 v{vXD+1}, {8*1280-1024}, v{vXD+1}")
    a(f"v_add_u32 v{vXD+2}, {2*(8*1280-1024)}, v{vXD}")
    a(f"v_add_u32 v{vXD+3}, {2*(8*1280-1024)}, v{vXD+1}")
    a(f"s_and_b32 s3, s{sW}, 1")
    a("s_lshl_b32 s3, s3, 7")
    a(f"v_xor_b32 v{vQW}, s3, v{vWD}")
    a(f"v_add_u32 v{vQW+1}, {4*8192-1024}, v{vQW}")
    emit(kv_dma(1))
    vPF, vPFW, vSC = 116, 115, 117
    if 'nopf' not in OPT:
        a(f"v_lshlrev_b32 v{vPF}, 7, v0")
        a("v_lshrrev_b32 v24, 1, v0")
        a("v_and_b32 v25, 1, v0")
        a("v_lshlrev_b32 v25, 7, v25")
        a(f"v_lshl_add_u32 v{vPFW}, v24, 13, v25")
        a("s_lshl_b32 s3, s2, 13")
        a(f"s_lshl_b32 s{sT}, s{sW}, 10")
        a(f"s_add_u32 s3, s3, s{sT}")
        a("s_mov_b64 exec, 0xff")
        emit([[(f"buffer_load_dword v{vSC}, v{vPF}, {S4(S_C)}, s3 offen sc1", "pf")]])
        a(f"s_lshl_b32 s3, s{sP}, 19")
        a(f"s_add_u32 s3, s3, s{sWO}")
        a("s_mov_b32 exec_lo, -1")
        emit([[(f"buffer_load_dword v{vSC}, v{vPFW}, {S4(S_W)}, s3 offen sc1", "pf")]])
        a("s_mov_b64 exec, -1")
    def frag_addrs(vR, rowoff_sgpr, vWa, nt_sgpr, wbase_sgpr):
        a("v_and_b32 v24, 15, v0")
        a("v_lshrrev_b32 v25, 4, v0")
        a("v_bfe_u32 v26, v0, 1, 3")
        a("v_xor_b32 v26, v26, v25")
        a("v_lshlrev_b32 v26, 4, v26")
        a("v_lshl_add_u32 v26, v24, 7, v26")
        a(f"v_add_u32 v{vR}, s{rowoff_sgpr}, v26")
        a(f"v_xor_b32 v{vR+1}, 64, v{vR}")
        a("v_bfe_u32 v24, v0, 2, 2")
        a("v_lshl_add_u32 v26, v25, 3, v24")
        a("v_lshlrev_b32 v26, 8, v26")
        a("v_and_b32 v27, 3, v0")
        a("v_lshl_add_u32 v26, v27, 3, v26")
        a(f"v_add_u32 v26, s{wbase_sgpr}, v26")
        a("v_and_b32 v25, 1, v25")
        a("v_lshl_add_u32 v24, v25, 2, v24")
        a(f"v_xor_b32 v24, s{nt_sgpr}, v24")
        for nt in range(4):
            a(f"v_xor_b32 v25, {nt}, v24")
            a(f"v_lshl_add_u32 v{vWa+nt}, v25, 5, v26")
    a(f"s_and_b32 s{sT}, s{sW}, 1")
    a(f"s_lshl_b32 s{sT}, s{sT}, 14")
    a(f"s_and_b32 s{sT2}, s{sW}, 2")
    a(f"s_lshl_b32 s{sT2}, s{sT2}, 1")
    a(f"s_lshl_b32 s3, s{sG}, 14")
    a("s_add_u32 s3, s3, 65536")
    frag_addrs(vAC, sT, vAW, sT2, 3)
    WOB = 131072
    a("v_lshrrev_b32 v24, 2, v0")
    a("v_mul_u32_u24 v24, 672, v24")
    a("v_and_b32 v25, 3, v0")
    a("v_lshl_add_u32 v24, v25, 3, v24")
    a(f"s_lshl_b32 s{sT}, s{sW}, 5")
    a(f"s_add_u32 s{sT}, s{sT}, {WOB}")
    a(f"v_add_u32 v{vWOT}, s{sT}, v24")
    if 'kvmap' in OPT:
        a("v_and_b32 v25, 7, v31")
        a("v_lshrrev_b32 v26, 3, v31")
    else:
        a("v_mul_u32_u24 v25, 1639, v31")
        a("v_lshrrev_b32 v25, 16, v25")
        a("v_mul_u32_u24 v26, 40, v25")
        a("v_sub_u32 v26, v31, v26")
    a(f"s_lshr_b32 s{sT}, s2, 3")
    a(f"s_lshl_b32 s{sT}, s{sT}, 6")
    a(f"v_lshl_add_u32 v25, v25, 3, s{sT}")
    a(f"s_and_b32 s{sT2}, s2, 7")
    a(f"s_mul_i32 s{sT2}, s{sT2}, 40")
    a(f"v_add_u32 v26, s{sT2}, v26")
    a("v_mul_u32_u24 v27, 1280, v25")
    a("v_lshl_add_u32 v27, v26, 2, v27")
    a("v_add_u32 v28, 5120, v27")
    a("v_subrev_u32 v29, 3840, v27")
    a(f"v_mov_b32 v30, {OOB}")
    a("v_cmp_eq_u32 vcc, 0, v25")
    a(f"v_lshlrev_b32 v{vKVT}, 13, v26")
    a(f"v_lshl_add_u32 v{vKVT}, v25, 1, v{vKVT}")
    a("v_cndmask_b32 v29, v29, v30, vcc")
    a("v_cmp_gt_u32 vcc, 320, v31")
    a("v_cndmask_b32 v27, v30, v27, vcc")
    a("v_cndmask_b32 v28, v30, v28, vcc")
    a("v_cndmask_b32 v29, v30, v29, vcc")
    a(f"v_cndmask_b32 v{vKVT}, v30, v{vKVT}, vcc")
    a("v_lshlrev_b32 v26, 4, v26")
    a("v_mul_u32_u24 v24, 20, v0")
    a("s_waitcnt lgkmcnt(0)")
    srd(a, S_WS, 50, 51, 64 * MB)
    srd(a, S_V, 50, 51, 16 * MB, WS_VF)
    srd(a, S_X, 44, 45, 2621440)
    srd(a, S_WQ, 46, 47, 5242880)
    srd(a, S_DBG, 48, 49, 256)
    a(f"s_sub_u32 s{sT}, 15, s{sP}")
    a(f"s_lshl_b32 s{sT2}, s{sRB}, 5")
    a(f"s_lshl_b32 s{sCT2}, s{sT}, 7")
    a(f"s_add_u32 s{sCT2}, s{sCT2}, s{sT2}")
    a(f"s_lshl_b32 s{sCT1}, s{sP}, 7")
    a(f"s_add_u32 s{sCT1}, s{sCT1}, s{sT2}")
    a(f"s_cmp_eq_u32 s{sG}, 0")
    a(f"s_cselect_b32 s{sROW}, s{sCT1}, s{sCT2}")
    a(f"s_mul_i32 s{sXO}, s{sROW}, 1280")
    a(f"s_lshl_b32 s{sQWO}, s{sW}, 16")
    a(f"s_lshl_b32 s{sT}, s{sH}, 8")
    a(f"s_add_u32 s{sQWO}, s{sQWO}, s{sT}")
    a(f"s_lshl_b32 s{sT}, s{sH}, 12")
    a(f"s_add_u32 s{sT}, s{sT}, {WS_CTX}")
    for c in (sCT1, sCT2):
        a(f"s_mul_i32 s{c}, s{c}, {CS // 16}")
        a(f"s_add_u32 s{c}, s{c}, s{sT}")
    a(f"s_lshl_b32 s{sOB}, s{sH}, 6")
    a(f"s_lshl_b32 s{sT}, s{sP}, 3")
    a(f"s_add_u32 s{sOB}, s{sOB}, s{sT}")
    a(f"s_and_b32 s{sT}, s{sW}, 1")
    a(f"s_lshl_b32 s{sT}, s{sT}, 2")
    a(f"s_add_u32 s{sOB}, s{sOB}, s{sT}")
    a(f"s_lshl_b32 s{sOB}, s{sOB}, 13")
    a(f"s_bfe_u32 s{sT}, s{sW}, 0x10001")
    a(f"s_add_u32 s{sT2}, s{sG}, 11")
    a(f"s_lshl_b32 s{sT}, s{sT}, s{sT2}")
    a(f"s_add_u32 s{sOB}, s{sOB}, s{sT}")
    a(f"s_lshl_b32 s{sT}, s{sG}, 24")
    a(f"s_add_u32 s{sOB}, s{sOB}, s{sT}")
    a(f"s_lshl_b32 s{sN1}, s{sP}, 2")
    a(f"s_add_u32 s{sN1}, s{sN1}, 4")
    a(f"s_lshl_b32 s{sHIST[0]}, s{sH}, 19")
    a(f"s_lshl_b32 s{sT}, s{sRB}, 11")
    a(f"s_add_u32 s{sHIST[0]}, s{sHIST[0]}, s{sT}")
    a(f"s_lshl_b32 s{sM0K}, s{sW}, 11")
    a(f"s_add_u32 s{sM0V}, s{sM0K}, 65536")
    a(f"s_sub_u32 s{sT2}, s{sN1}, 4")
    a(f"s_sub_u32 s{sWRAP}, s{sN1}, 2")
    a(f"s_sub_u32 s{sWRAP}, s{sWRAP}, s{sG}")
    a(f"s_mov_b32 s{sBASE}, 16384")
    a(f"s_cmp_eq_u32 s{sG}, 0")
    a(f"s_cselect_b32 s{sMST}, s{sT2}, 99")
    a(f"s_cselect_b32 s{sN1}, s{sN1}, 100")
    a(f"s_add_u32 s{sHIST[1]}, s{sHIST[0]}, 8192")
    a(f"s_add_u32 s{sHIST[2]}, s{sHIST[0]}, 16384")
    a(f"s_mov_b64 s[{sEV}:{sEV+1}], {(127 if FUSE else 63) if 'noev' not in OPT else 64}")
    a(f"s_add_u32 s{sT}, s{sMST}, 1")
    a(f"s_lshl_b64 s[{sEV}:{sEV+1}], s[{sEV}:{sEV+1}], s{sT}")
    a(f"s_or_b32 s{sEV}, s{sEV}, 2")
    a(f"s_or_b32 s{sEV+1}, s{sEV+1}, 6")
    a(f"s_mov_b32 s{sTHR}, 0x40004000")
    a(f"s_mov_b32 s{S_T+3}, 0x00020000")
    if 'tlb' in OPT:
        a(f"s_lshl_b32 s{sT}, s{sW}, 2")
        a(f"s_lshr_b32 s3, 0xdba84210, s{sT}")
        a("s_and_b32 s3, s3, 15")
        a("s_lshl_b32 s3, s3, 3")
        a(f"s_load_dwordx2 s[{S_T}:{S_T+1}], s[0:1], s3")
        a(f"s_lshr_b32 s3, 0x5a8a5555, s{sT}")
        a("s_and_b32 s3, s3, 15")
        a(f"s_lshl_b32 s{S_T+2}, s3, 19")
        a("v_lshlrev_b32 v118, 20, v0")
        a("s_lshl_b32 s3, s2, 10")
        a(f"s_lshr_b32 s{sT}, s2, 3")
        a(f"s_lshl_b32 s{sT}, s{sT}, 21")
        a(f"s_lshl_b32 s{sT2}, s{sW}, 12")
        a(f"s_add_u32 s{sT}, s{sT}, s{sT2}")
        a("s_waitcnt lgkmcnt(0)")
        a("s_mov_b64 exec, 0x3f")
        emit([[(f"buffer_load_dword v{vSC}, v118, {S4(S_T)}, s3 offen sc1", "pf")]])
        a("s_mov_b64 exec, 3")
        emit([[(f"buffer_load_dword v{vSC}, v118, {S4(S_WS)}, s{sT} offen sc1", "pf")]])
        a("s_mov_b64 exec, -1")

    XB = [0, 32768, 131072]
    def q_dma_x(k):
        tg = ("q", k)
        out = [[f"s_add_u32 m0, s{sM0C}, {XB[(k+2)%3]}", f"s_add_u32 s{sT}, s{sXO}, {k*128}",
                (f"buffer_load_dwordx4 v{vXD}, {S4(S_X)}, s{sT} offen lds", tg)]]
        for i in range(1, 4): out.append([(f"buffer_load_dwordx4 v{vXD+i}, {S4(S_X)}, s{sT} offen offset:{i*1024} lds", tg)])
        return out
    def q_dma_w(k):
        tg = ("q", k)
        return [[f"s_add_u32 m0, s{sM0V}, {(k%3)*16384}", f"s_add_u32 s{sT}, s{sQWO}, {k*64*8192}",
                 (f"buffer_load_dwordx4 v{vQW}, {S4(S_WQ)}, s{sT} offen lds", tg)],
                [(f"buffer_load_dwordx4 v{vQW+1}, {S4(S_WQ)}, s{sT} offen offset:1024 lds", tg)]]
    GX, GXT, GWT, GW, KR, VR, SH = 80, 84, 85, 86, 90, 101, 110
    def tsrd(lo, size): return [f"s_mov_b32 s{S_T}, s{lo}", f"s_mov_b32 s{S_T+1}, s{lo+1}", f"s_mov_b32 s{S_T+2}, {size}"]
    def side_loads():
        L = []
        it = tsrd(PT + 8, 5242880) + [f"s_lshr_b32 s3, s2, 1", "s_lshl_b32 s3, s3, 5", f"s_lshl_b32 s{sT2}, s{sW}, 2",
              f"s_add_u32 s3, s3, s{sT2}", "s_mul_i32 s3, s3, 1280", f"s_and_b32 s{sS}, s2, 1", f"s_mul_i32 s{sS}, s{sS}, 640",
              f"s_add_u32 s3, s3, s{sS}", f"s_mul_i32 s{sT2}, s{sT2}, 672", "s_mov_b32 exec_hi, 0xff"]
        for i in range(4):
            it += [f"s_add_u32 m0, s{sT2}, {WOB+672*i}", f"s_add_u32 s{sS}, s3, {1280*i}",
                   (f"buffer_load_dwordx4 v{vL16}, {S4(S_T)}, s{sS} offen lds", "prA")]
        it += ["s_mov_b32 exec_hi, -1"]
        L.append(it)
        L.append(["s_lshl_b32 s3, s2, 3", f"s_add_u32 s3, s3, s{sW}", "s_mul_i32 s3, s3, 1280",
                  (f"buffer_load_dwordx4 {vr(GX,4)}, v24, {S4(S_X)}, s3 offen", "prA"),
                  (f"buffer_load_dword v{GXT}, v24, {S4(S_X)}, s3 offen offset:16", "prA")])
        L.append(tsrd(PT + 10, 1280) + [(f"buffer_load_dwordx4 {vr(GW,4)}, v24, {S4(S_T)}, 0 offen", "prA"),
                  (f"buffer_load_dword v{GWT}, v24, {S4(S_T)}, 0 offen offset:16", "prA")])
        L.append(tsrd(PT + 4, 5120) + [(f"buffer_load_dwordx4 {vr(SH,4)}, v26, {S4(S_T)}, 0 offen", "pr")])
        for j in range(11):
            o = f"v29, {S4(S_T)}, 0 offen offset:{1280*j}" if j < 3 else f"v{27 if j < 7 else 28}, {S4(S_T)}, 0 offen offset:{1280*((j-3)%4)}"
            L.append((tsrd(PT, 2621440) if j == 0 else []) + [(f"buffer_load_dword v{KR+j}, {o}", "pr")])
        for j in range(8):
            L.append((tsrd(PT + 2, 2621440) if j == 0 else []) +
                     [(f"buffer_load_dword v{VR+j}, v{27 if j < 4 else 28}, {S4(S_T)}, 0 offen offset:{1280*(j%4)}", "pr")])
        if 'nopf' not in OPT:
            L.insert(0, [f"s_lshl_b32 s3, s{sP}, 3", f"s_add_u32 s3, s3, s{sW}", f"s_mul_i32 s3, s3, {10*8192}", f"s_lshl_b32 s{sT2}, s{sH}, 8",
                      f"s_add_u32 s3, s3, s{sT2}", "s_mov_b64 exec, 0xfffff",
                      (f"buffer_load_dword v{vPFW}, v{vPFW}, {S4(S_WQ)}, s3 offen sc1", "pfq"), "s_mov_b64 exec, -1"])
        return L

    def side_jobs():
        L = []
        t0, t1, t2, t3, t4, t5 = 24, 25, 26, 27, 28, 29
        for i in range(3):
            L.append([f"ds_read_b64_tr_b16 v[{116+4*i}:{117+4*i}], v{vWOT} offset:{256*i}"])
            L.append([f"ds_read_b64_tr_b16 v[{118+4*i}:{119+4*i}], v{vWOT} offset:{256*i+16*672}"])
        L.append([f"v_mov_b32 v{t0}, 0"])
        for x, w in [(GX + i, GW + i) for i in range(4)] + [(GXT, GWT)]:
            L += [[s] for s in [f"v_lshlrev_b32 v{t1}, 16, v{x}", f"v_and_b32 v{t2}, 0xffff0000, v{x}",
                                f"v_lshlrev_b32 v{t3}, 16, v{w}", f"v_and_b32 v{t4}, 0xffff0000, v{w}",
                                f"v_mul_f32 v{t1}, v{t1}, v{t3}", f"v_mul_f32 v{t2}, v{t2}, v{t4}"] + rnd_pair(t3, t1, t2, t1, t2) +
                               [f"v_add_f32 v{t0}, v{t0}, v{t1}", f"v_add_f32 v{t0}, v{t0}, v{t2}"]]
        for m in ("row_shr:1", "row_shr:2", "row_shr:4", "row_shr:8"):
            L.append([f"v_add_f32_dpp v{t0}, v{t0}, v{t0} {m} row_mask:0xf bank_mask:0xf bound_ctrl:0"])
        L.append([f"v_add_f32_dpp v{t0}, v{t0}, v{t0} row_bcast:15 row_mask:0xa bank_mask:0xf"])
        L.append([f"v_add_f32_dpp v{t0}, v{t0}, v{t0} row_bcast:31 row_mask:0xc bank_mask:0xf"])
        L += [[s] for s in rnd_pair(t1, t0, t0, t0, t2)[:2] +
              [f"v_mul_f32 v{t0}, 0xbfb8aa3b, v{t0}", f"v_exp_f32 v{t0}, v{t0}", f"v_cmp_eq_u32 vcc, 63, v0",
               f"v_add_f32 v{t0}, 1.0, v{t0}", f"v_rcp_f32 v{t0}, v{t0}", f"v_cndmask_b32 v{t2}, v30, 0, vcc"] +
              rnd_pair(t1, t0, t0, t0, t3)[:2]]
        L.append(["s_lshl_b32 s3, s2, 3", f"s_add_u32 s3, s3, s{sW}", "s_lshl_b32 s3, s3, 2", f"s_add_u32 s3, s3, {WS_G}",
                  (f"buffer_store_dword v{t0}, v{t2}, {S4(S_WS)}, s3 offen{' sc1' if FUSE else ''}", "pr2")])
        if not FUSE: L.append(["s_lshr_b32 s3, s2, 5", "s_lshl_b32 s3, s3, 12", f"s_and_b32 s{sT2}, s2, 31", f"s_lshl_b32 s{sT2}, s{sT2}, 2",
                  f"s_add_u32 s3, s3, s{sT2}", f"s_add_u32 s3, s3, {WS_FLG}", f"v_mov_b32 v{t1}, 0",
                  (f"buffer_store_dword v{t1}, v{t2}, {S4(S_WS)}, s3 offen{' sc1' if FUSE else ''}", "pr2")])
        L.append(["s_and_b32 s3, s2, 1", "s_mul_i32 s3, s3, 20", f"s_add_u32 s3, s3, s{sW}", f"s_mul_i32 s3, s3, {CS}",
                  f"s_lshr_b32 s{sT2}, s2, 1", f"s_lshl_b32 s{sT2}, s{sT2}, 10", f"s_add_u32 s3, s3, s{sT2}",
                  f"s_add_u32 s3, s3, {WS_WOT}", (f"buffer_store_dwordx4 v[116:119], v{vL16}, {S4(S_WS)}, s3 offen{' sc1' if FUSE else ''}", "pr2")])
        L.append([f"s_add_u32 s3, s3, {8*CS}", (f"buffer_store_dwordx4 v[120:123], v{vL16}, {S4(S_WS)}, s3 offen{' sc1' if FUSE else ''}", "pr2")])
        L.append([f"s_add_u32 s3, s3, {8*CS}", f"s_cmp_ge_u32 s{sW}, 4", f"s_cselect_b32 s3, {OOB}, s3",
                  (f"buffer_store_dwordx4 v[124:127], v{vL16}, {S4(S_WS)}, s3 offen{' sc1' if FUSE else ''}", "pr2")])
        W = 80
        for c in range(2):
            for q in range(2):
                L.append([f"v_lshlrev_b32 v{W+4*c+2*q}, 16, v{SH+2*c+q}"])
                L.append([f"v_and_b32 v{W+4*c+2*q+1}, 0xffff0000, v{SH+2*c+q}"])
        KL, KH = [110, 111, 112, 113], [88, 89, 109, 114]
        def unp(j): return [f"v_lshlrev_b32 v{KL[j%4]}, 16, v{KR+j}", f"v_and_b32 v{KH[j%4]}, 0xffff0000, v{KR+j}"]
        for j in range(3): L += [[s] for s in unp(j)]
        for s in range(8):
            ops = unp(s + 3)
            ops += [f"v_mul_f32 v{t0}, v{KL[s%4]}, v{W+3}", f"v_mul_f32 v{t1}, v{KH[s%4]}, v{W+7}"]
            for j in (2, 1, 0):
                ops += [f"v_fmac_f32 v{t0}, v{KL[(s+3-j)%4]}, v{W+j}", f"v_fmac_f32 v{t1}, v{KH[(s+3-j)%4]}, v{W+4+j}"]
            ops += [f"v_lshlrev_b32 v{t3}, 16, v{VR+s}", f"v_and_b32 v{t4}, 0xffff0000, v{VR+s}"]
            if s % 2 == 0:
                ops += [f"v_mul_f32 v118, v{t0}, v{t3}", f"v_mul_f32 v119, v{t1}, v{t4}"]
            else:
                ops += [f"v_mul_f32 v{t0}, v{t0}, v{t3}", f"v_mul_f32 v{t1}, v{t1}, v{t4}",
                        f"v_cvt_pk_bf16_f32 v{120+s//2}, v118, v{t0}", f"v_cvt_pk_bf16_f32 v{124+s//2}, v119, v{t1}"]
            L += [[x] for x in ops]
        L.append([f"s_mov_b32 s3, {WS_KVT}", (f"buffer_store_dwordx4 v[120:123], v{vKVT}, {S4(S_WS)}, s3 offen{' sc1' if FUSE else ''}", "pr2")])
        L.append([f"s_mov_b32 s3, {WS_KVT+4096}", (f"buffer_store_dwordx4 v[124:127], v{vKVT}, {S4(S_WS)}, s3 offen{' sc1' if FUSE else ''}", "pr2")])
        return L

    def kdma(e, tg):
        return [[f"s_add_u32 m0, s{sM0K}, {(e & 3) * 16384}", "s_nop 0",
                 (f"buffer_load_dwordx4 v{vL16}, {S4(S_WS)}, s{sHIST[e&3]} offen sc1 lds", tg)],
                [(f"buffer_load_dwordx4 v{vL16}, {S4(S_WS)}, s{sHIST[e&3]} offen offset:1024 sc1 lds", tg)]]
    vPOLL, vZERO, vFL = 24, 25, 26
    vCL = 31
    def only(wave, body, extra=None):
        lab = a.uid("ONLY")
        a(f"s_cmp_lg_u32 s{sW}, {wave}")
        a(f"s_cbranch_scc1 {lab}")
        if extra:
            a(extra); a(f"s_cbranch_scc1 {lab}")
        for x in body: a(x)
        a.label(lab)
    def clear_line():
        body = [f"s_lshl_b32 s3, s{sH}, 12", f"s_add_u32 s3, s3, {WS_FL2 - WS_FLG}", "v_lshl_add_u32 v116, v0, 2, s3",
                f"s_lshl_b32 s3, s{sH}, 2", f"s_add_u32 s3, s3, {WS_FL3 - WS_FLG - 16 * 4096}", "v_lshl_add_u32 v118, v0, 12, s3",
                "v_cmp_le_u32 vcc, 16, v0", "v_and_b32 v119, 7, v0", "v_lshl_add_u32 v119, v119, 3, s2", "v_cndmask_b32 v116, v116, v118, vcc",
                "v_lshrrev_b32 v118, 5, v119", "v_and_b32 v119, 31, v119", "v_lshlrev_b32 v119, 2, v119", "v_lshl_add_u32 v118, v118, 12, v119",
                "v_cmp_le_u32 vcc, 32, v0", f"v_mov_b32 v{vCL}, 0", f"s_mov_b32 s3, {WS_FLG}", "v_cndmask_b32 v116, v116, v118, vcc",
                f"buffer_store_dword v{vCL}, v116, {S4(S_WS)}, s3 offen sc1"]
        only(3, body, f"s_cmp_lg_u32 s{sP}, 0")
    def clean_set():
        only(3, ["s_mov_b64 exec, 1", "v_mov_b32 v117, 1", f"s_lshl_b32 s3, s{sH}, 2",
                 f"buffer_store_dword v117, v{vCL}, {S4(S_DBG)}, s3 offen offset:128 sc1", "s_mov_b64 exec, -1"], f"s_cmp_lg_u32 s{sP}, 0")
    def clean_issue(site):
        a(f"s_bfe_u32 s{sT2}, s2, 0x10003")
        only(2, [f"v_and_b32 v{vCL}, 31, v0", f"v_lshlrev_b32 v{vCL}, 2, v{vCL}",
                 f"buffer_load_dword v{vCL}, v{vCL}, {S4(S_DBG)}, 0 offen offset:128 sc1"], f"s_cmp_lg_u32 s{sT2}, {site}")
    def clean_check():
        lab = a.uid("CLN")
        a(f"s_cmp_lg_u32 s{sW}, 2")
        a(f"s_cbranch_scc1 {lab}D")
        a(f"s_mov_b32 s{sT2}, 0")
        a(f"s_branch {lab}C")
        a.label(lab)
        a("s_sleep 32")
        a(f"buffer_load_dword v{vCL}, v{vFL}, {S4(S_DBG)}, 0 offen offset:128 sc1")
        a("s_waitcnt vmcnt(0)")
        a.label(lab + "C")
        a(f"v_cmp_eq_u32 vcc, 0, v{vCL}")
        a(f"s_add_u32 s{sT2}, s{sT2}, 1")
        a(f"s_cbranch_vccz {lab}D")
        a(f"s_cmp_lt_u32 s{sT2}, 100000")
        a(f"s_cbranch_scc1 {lab}")
        a.label(lab + "D")
    def publish(wave, which):
        only(wave, ["s_mov_b64 exec, 1", f"v_mov_b32 v{vPOLL}, 1", f"s_lshl_b32 s3, s{sH}, 10", f"s_add_u32 s3, s3, s{sP}",
                    "s_lshl_b32 s3, s3, 2", f"s_add_u32 s3, s3, {WS_FL2 + 32 * which}",
                    f"buffer_store_dword v{vPOLL}, v{vZERO}, {S4(S_WS)}, s3 offen sc1", "s_mov_b64 exec, -1"])
    def line_addr(ctx0): return [f"s_mov_b32 s3, {WS_FL3}"] if ctx0 else [f"s_lshl_b32 s3, s{sH}, 12", f"s_add_u32 s3, s3, {WS_FL2}"]
    def poll_issue(wave, ctx0=False):
        only(wave, line_addr(ctx0) + [
                    f"buffer_load_dword v{vPOLL}, v{vFL}, {S4(S_WS)}, s3 offen sc1"])
    def poll(wave, need, vmw, ctx0=False):
        if 'nopoll' in OPT: return
        lab = a.uid("POLL")
        a(f"s_cmp_lg_u32 s{sW}, {wave}")
        a(f"s_cbranch_scc1 {lab}D")
        for x in line_addr(ctx0): a(x)
        a(f"s_mov_b32 s{sT2}, 0")
        a(f"s_waitcnt vmcnt({vmw})")
        a(f"s_branch {lab}C")
        a.label(lab)
        a(f"s_sleep {OPT.get('sleep', 8)}")
        a(f"buffer_load_dword v{vPOLL}, v{vFL}, {S4(S_WS)}, s3 offen sc1")
        a("s_waitcnt vmcnt(0)")
        a.label(lab + "C")
        a(f"v_cmp_eq_u32 vcc, 0, v{vPOLL}")
        a(f"s_add_u32 s{sT2}, s{sT2}, 1")
        a(f"s_and_b32 s{S_T}, vcc_lo, {need}")
        a(f"s_cbranch_scc0 {lab}D")
        a(f"s_cmp_lt_u32 s{sT2}, 100000")
        a(f"s_cbranch_scc1 {lab}")
        a.label(lab + "D")

    a(f"s_waitcnt vmcnt({vm.wait(('kv', 0))})")
    a("s_barrier")
    sp.mark("kv0")
    a(f"s_cmp_lg_u32 s{sG}, 0")
    a("s_cbranch_scc1 M_KVV")
    vm0 = list(vm.tags)
    spn = sp.n
    vAX, vAQ, vST = 2, 6, 10
    QA = 128
    PK = lambda z: (240 + 4 * z) if z < 4 else (80 + 4 * (z - 4))
    endwait = []
    for part in range(2):
        if part: a.label("M_KVV")
        vm.tags = list(vm0)
        sp.n = spn
        S = Stream(a, vm, dist=int(OPT.get('kd', 12)), per_gap=int(OPT.get('kpg', 2)), bar_delay=int(OPT.get('kbd', 3)))
        S.fill_rate = float(OPT.get('fr', 1.0))
        rl = []
        sl = side_loads()
        SH0 = int(OPT.get('sh0', 0))
        for st in range(8):
            buf = (st & 1) * 32768
            for u in range(2):
                x = 2 * st + u
                for nt in range(4):
                    for hf in range(2):
                        rg = WFR[x & 1] + 4 * nt + 2 * hf
                        rl.append((32 * x + nt - 6, ("w", x, nt, hf),
                                   f"ds_read_b64_tr_b16 {vr(rg,2)}, v{vAW+nt} offset:{buf+u*8192+hf*1024}", rg, st))
                for kt in range(8):
                    rg = CFR + 4 * (kt % int(OPT.get('kring', 4)))
                    rl.append((32 * x + 4 * kt, ("c", x, kt), f"ds_read_b128 {vr(rg,4)}, v{vAC+u} offset:{buf+kt*2048}", rg, st))
                    for nt in range(4):
                        idx = kt * 4 + nt if part == 0 else ((kt >> 1) * 4 + nt) * 2 + (kt & 1)
                        acc = vr(ACC + 4 * idx, 4)
                        w, c = vr(WFR[x & 1] + 4 * nt, 4), vr(rg, 4)
                        cin = "0" if x == 0 else acc
                        S.op(f"{MFMA16} {acc}, {w}, {c}, {cin}" if part == 0 else f"{MFMA16} {acc}, {c}, {w}, {cin}",
                             [("w", x, nt, 0), ("w", x, nt, 1), ("c", x, kt)])
            after = kv_dma(st + 2) if st < 6 else []
            if st == 5: after = after + q_dma_x(0)
            if st == 6: after = q_dma_w(0) + q_dma_x(1) + q_dma_w(1)
            if st == 7: after = q_dma_x(2) + q_dma_w(2)
            if part == 1: after = [[] for _ in range(int(OPT.get('stag', 14)))] + after
            if 'noside' not in OPT:
                if st == SH0: after = after + sl[1:5]
                if st == SH0 + 1: after = after + sl[5:16]
                if st == SH0 + 2: after = after + sl[16:] + sl[0:1]
            if part == 0:
                if st == 0: after = after + [clear_line]
                if st == 2: after = [clean_set] + after
                if st in (4, 5): after = after + [lambda st=st: clean_issue(st - 4)]
            tags = [("kv", st + 1)] if st < 7 else [("q", 0)]
            if st == 2: tags += ["pf"]
            if st == SH0 + 2: tags += ["prA"]
            if st == SH0 + 4: tags += ["pr", "pfq"]
            after = [lambda st=st: sp.mark(f"k{st}")] + after
            S.barrier_after_stage(st, tags, after)
        rl.sort(key=lambda r: (r[4], r[0]))
        for r in rl: S.read(r[1], r[2], r[3], r[4], r[0])
        sj = side_jobs()
        nk = [i for i, it in enumerate(sj) if f"v_lshlrev_b32 v80, 16, v{SH}" in it][0]
        if 'noside' in OPT: sj = []
        for it in sj[:nk]: S.filler((SH0 + 3) * 64 + 24, 1, it)
        for it in sj[nk:]: S.filler((SH0 + 5) * 64, 1, it)
        S.run([0])
        sp.mark("kv")
        a(f"s_lshr_b32 s{sT}, s{sW}, 1")
        a(f"s_lshl_b32 s{sT}, s{sT}, 13")
        a(f"s_and_b32 s{sT2}, s{sW}, 1")
        a(f"s_lshl_b32 s{sT2}, s{sT2}, 2")
        a("s_mov_b32 s3, 65536")
        frag_addrs(vAX, sT, vAQ, sT2, 3)
        a(f"v_add_u32 v{vAX+2}, 131072, v{vAX}")
        a(f"v_add_u32 v{vAX+3}, 131072, v{vAX+1}")
        S = Stream(a, vm, dist=10, per_gap=2, bar_delay=3)
        S.fill_rate = 1.0
        rl = []
        EARLYV = 'latev' not in OPT
        KPUB, VPUB = int(OPT.get('kpub', 4)), int(OPT.get('vpub', 8 if EARLYV else 9))
        for k in range(10):
            xb = XB[(k + 2) % 3]
            for u in range(2):
                x = 2 * k + u
                for nt in range(4):
                    for hf in range(2):
                        rg = WFR[x & 1] + 4 * nt + 2 * hf
                        rl.append((16 * x + nt - 5, ("w", x, nt, hf),
                                   f"ds_read_b64_tr_b16 {vr(rg,2)}, v{vAQ+nt} offset:{(k%3)*16384+u*8192+hf*1024}", rg, k))
                for qi in range(4):
                    rg = CFR + 4 * qi
                    av = vAX + u + (2 if xb == 131072 else 0)
                    rl.append((16 * x + 4 * qi, ("c", x, qi), f"ds_read_b128 {vr(rg,4)}, v{av} offset:{(xb%131072)+qi*2048}", rg, k))
                    for nt in range(4):
                        acc = vr(QA + 4 * (qi * 4 + nt), 4)
                        S.op(f"{MFMA16} {acc}, {vr(WFR[x&1]+4*nt,4)}, {vr(rg,4)}, {'0' if x == 0 else acc}",
                             [("w", x, nt, 0), ("w", x, nt, 1), ("c", x, qi)])
            tags, after, pre = [("q", k + 1)], [], None
            if k + 3 <= 9: after = q_dma_x(k + 3) + q_dma_w(k + 3)
            if k == 0 and part == 0: pre = clean_check
            if k == KPUB: tags.append("pr2")
            if k == KPUB and part == 0: tags.append("st"); after = [lambda: publish(0, 0)] + after
            KP = int(OPT.get('kpoll', 7))
            if k == KP - 1 and part == 0: after = [lambda: (poll_issue(1), vm.add("mark"), vm.ghost.add("mark"))] + after
            if k == KP:
                if part == 0: pre = lambda: poll(1, 1, vm.wait("mark"))
                after = kdma(0, "k0") + kdma(1, "k0")
            if k == 8: after = after + kdma(2, "k2")
            if k == 9: tags = []
            if k == VPUB and part == 1: tags.append("st"); after = [lambda: publish(4, 1)] + after
            if k == 9 and part == 1 and EARLYV: after = after + [lambda: poll_issue(5)]
            after = [lambda k=k: sp.mark(f"q{k}")] + after
            S.barrier_after_stage(k, tags, after, pre)
        rl.sort(key=lambda r: (r[4], r[0]))
        for r in rl: S.read(r[1], r[2], r[3], r[4], r[0])
        npre = 10
        for r in rl[:npre]: a(r[2])
        a(f"v_add_u32 v{vST}, {4096 >> part}, v{vL16}")
        a(f"v_mov_b32 v{vZERO}, 0")
        a(f"v_and_b32 v{vFL}, 31, v0")
        a(f"v_lshlrev_b32 v{vFL}, 2, v{vFL}")
        for z in list(range(4, 16)) + list(range(4)):
            for e in range(4):
                a(f"v_cvt_pk_bf16_f32 v{PK(z)+e}, v{ACC+8*z+2*e}, v{ACC+8*z+2*e+1}")
        SC = " " + OPT.get('stsc', 'sc1').replace('_', ' ')
        st0, stp = (2, int(OPT.get('stp', 5))) if part == 0 else (int(OPT.get('vst', 84)), int(OPT.get('stpv', 8)))
        for z in range(16 if 'nost' not in OPT else 1):
            j, c = z >> 2, z & 3
            S.filler(st0 + stp * z, 1, [f"s_add_u32 s3, s{sOB}, {j*8192}",
                     (f"buffer_store_dwordx4 {vr(PK(z),4)}, v{vST if c >> 1 else vL16}, {S4(S_WS)}, s3 offen offset:{(c&1)*1024}{SC}", "st")])
        S.run([0], preissued=npre)
        endwait.append(vm.wait("k0"))
        if part == 0: a("s_branch M_KVD")
    a.label("M_KVD")
    sp.mark("q")
    vKA, vVA, vD0, vQ2 = 2, 3, 4, 5
    FR, T, P, SS, O, Q, NEGM = 32, 64, [80, 88], [96, 112], 128, 192, 224
    LS, ONES, vTA, vX0, vNINF = 248, 232, 236, 238, 246
    BIAS = 12.0
    D = int(OPT.get('D', 5))
    a(f"s_mov_b32 s{sT}, {f32hex(1.4426950408889634 * 128 ** -0.5)}")
    a(f"s_lshr_b32 s{sT2}, s{sW}, 1")
    a(f"s_lshl_b32 s{sT2}, s{sT2}, 14")
    a(f"s_and_b32 s3, s{sW}, 1")
    a("s_lshl_b32 s3, s3, 11")
    a(f"s_add_u32 s{sT2}, s{sT2}, s3")
    a(f"s_add_u32 s{sT2}, s{sT2}, 98304")
    a(f"v_add_u32 v6, s{sT2}, v{vL16}")
    a(f"s_lshl_b32 s{sT2}, s{sW}, 13")
    a(f"s_add_u32 s{sT2}, s{sT2}, 98304")
    a(f"v_add_u32 v{vQ2}, s{sT2}, v{vL16}")
    a(f"s_lshl_b32 s{sT2}, s{sG}, 13")
    a(f"v_add_u32 v{vKA}, s{sT2}, v{vL16}")
    a(f"v_add_u32 v{vVA}, 65536, v{vKA}")
    for f in range(8):
        for e in range(4):
            r = QA + 8 * f + 2 * e
            a(f"v_mul_f32 v{r}, s{sT}, v{r}")
            a(f"v_mul_f32 v{r+1}, s{sT}, v{r+1}")
            a(f"v_cvt_pk_bf16_f32 v{Q+4*f+e}, v{r}, v{r+1}")
        a(f"ds_write_b128 v6, {vr(Q+4*f,4)} offset:{(f>>1)*4096+(f&1)*1024}")
    a("v_and_b32 v7, 15, v0")
    a("v_lshrrev_b32 v8, 4, v0")
    a(f"s_lshl_b32 s{sT}, s{sRB}, 5")
    a(f"v_add_u32 v{vD0}, s{sT}, v7")
    a("v_lshlrev_b32 v8, 2, v8")
    a(f"v_sub_u32 v{vD0}, v{vD0}, v8")
    a(f"v_mov_b32 v{vNINF}, 0xff800000")
    for r in range(8): a(f"v_mov_b32 v{NEGM+r}, 0")
    for r in range(4): a(f"v_mov_b32 v{ONES+r}, 0x3f803f80")
    if EARLYV: poll(5, 0x101, 0)
    a(f"s_waitcnt vmcnt({min(endwait)}) lgkmcnt(0)")
    a("s_barrier")
    if not EARLYV: poll_issue(5)
    sp.mark("qx")
    def kread(e, t): return f"ds_read_b128 {vr(FR+4*t,4)}, v{vKA} offset:{(e&3)*16384+t*1024}"
    def vread(e, i): return f"ds_read_b128 {vr(FR+4*i,4)}, v{vVA} offset:{(e&3)*16384+i*1024}"
    for f in range(8): a(f"ds_read_b128 {vr(Q+4*f,4)}, v{vQ2} offset:{f*1024}")
    for i in range(D): a(kread(0, i))
    a(f"s_mov_b32 s{sS}, 0")

    handlers = []
    def xreduce(op, x, tmp):
        a(f"v_mov_b32 v{tmp}, v{x}")
        a(f"v_permlane16_swap_b32 v{x}, v{tmp}")
        a(f"{op} v{x}, v{x}, v{tmp}")
        a(f"v_mov_b32 v{tmp}, v{x}")
        a(f"v_permlane32_swap_b32 v{x}, v{tmp}")
        a(f"{op} v{x}, v{x}, v{tmp}")
    def rowmax(dst, tmp, src):
        a(f"v_max3_f32 v{dst}, v{src}, v{src+1}, v{src+2}")
        a(f"v_max3_f32 v{dst}, v{dst}, v{src+3}, v{src+4}")
        a(f"v_max3_f32 v{dst}, v{dst}, v{src+5}, v{src+6}")
        a(f"v_max_f32 v{dst}, v{dst}, v{src+7}")
        xreduce("v_max_f32", dst, tmp)
    def sm_ops(Sc, Pw):
        f = []
        def post(q):
            f.append((1, [f"v_cvt_pk_bf16_f32 v{Pw+q//2}, v{T+q%8}, v{T+(q+1)%8}"]))
            k = q // 2
            if k == 3: f.append((1, [f"v_or3_b32 v{vTA}, v{Pw}, v{Pw+1}, v{Pw+2}"]))
            if k == 5: f.append((1, [f"v_or3_b32 v{vTA}, v{vTA}, v{Pw+3}, v{Pw+4}"]))
            if k == 7:
                f.append((1, [f"v_or3_b32 v{vTA}, v{vTA}, v{Pw+5}, v{Pw+6}"]))
                f.append((1, [f"v_bitop3_b32 v{vTA}, v{vTA}, v{Pw+7}, s{sTHR} bitop3:0xa8"]))
        for r in range(16):
            f.append((2, [f"v_exp_f32 v{T+r%8}, v{Sc+r}"]))
            if r % 2 == 1 and r >= 3: post(r - 3)
        post(14)
        return f
    def store_ctx(qis, sct, obase):
        n = 0
        for qi in qis:
            for u in range(4):
                d = T + (n % 4) * 4
                n += 1
                src = obase(qi) + 8 * u
                for e in range(4): a(f"v_cvt_pk_bf16_f32 v{d+e}, v{src+2*e}, v{src+2*e+1}")
                if u == 0 and qi == 1 and len(qis) == 2: a(f"s_add_u32 s{sct}, s{sct}, {CS}")
                a(f"buffer_store_dwordx4 {vr(d,4)}, v{vL16}, {S4(S_WS)}, s{sct} offen offset:{u*1024}{' sc1' if FUSE else ''}")

    def slot(j, name, qk=True, sm=True, pv=True, nxt="k", dma=True, last=False, vlist=None, prefetched=True, prebar=None, vmw=4, fresh=False):
        par = j & 1
        if vlist is None: vlist = [j]
        Sc, Sn, Pw, Pr = SS[1 - par], SS[par], P[1 - par], P[par]
        a.label(name)
        if sm or pv:
            a(f"s_bitcmp1_b64 s[{sEV}:{sEV+1}], s{sS}")
            a(f"s_cbranch_scc1 {name}_EV")
            a.label(name + "_GO")
            handlers.append(("ev", name, Sc))
        ms = []
        if qk:
            for t in range(8):
                kt, u = t >> 2, t & 3
                mm = []
                for qi in range(2):
                    d = vr(Sn + 8 * qi + 4 * kt, 4)
                    mm.append(f"{MFMA16} {d}, {vr(FR+4*t,4)}, {vr(Q+16*qi+4*u,4)}, {vr(NEGM+4*qi,4) if u == 0 else d}")
                ms.append((mm, kread(j, t)))
        if pv:
            for i in range(8):
                mm = []
                for qi in range(2):
                    o = vr(O + 32 * qi + 4 * i, 4)
                    mm.append(f"{MFMA16} {o}, {vr(FR+4*i,4)}, {vr(Pr+4*qi,4)}, {'0' if fresh else o}")
                ms.append((mm, vread(j - 2, i)))
        rd = [m[1] for m in ms]
        if nxt == "k": rd += [kread(j + 1, i) for i in range(D)]
        elif nxt == "v": rd += [vread(j - 1, i) for i in range(D)]
        dm = []
        def vd(e): return [[f"s_add_u32 m0, s{sM0V}, {(e & 3) * 16384}", "s_nop 0",
                            f"buffer_load_dwordx4 v{vL16}, {S4(S_V)}, s{sHIST[e&3]} offen sc1 lds"],
                           [f"buffer_load_dwordx4 v{vL16}, {S4(S_V)}, s{sHIST[e&3]} offen offset:1024 sc1 lds"]]
        if dma and not ('nodma' in OPT and name.startswith('AT_L')):
            for e in vlist: dm += vd(e)
            h0, h1 = sHIST[(j + 3) & 3], sHIST[(j + 2) & 3]
            pre = [f"s_cmp_ge_u32 s{sS}, s{sWRAP}", f"s_cselect_b32 s{sT}, s{sBASE}, 8192", f"s_add_u32 s{sT}, s{sT}, s{h1}",
                   f"s_add_u32 m0, s{sM0K}, {((j + 3) & 3) * 16384}", f"s_cmp_ge_u32 s{sS}, 31", f"s_cselect_b32 s{h0}, {OOB}, s{sT}"]
            dm.append(pre + [f"buffer_load_dwordx4 v{vL16}, {S4(S_WS)}, s{h0} offen sc1 lds"])
            dm.append([f"buffer_load_dwordx4 v{vL16}, {S4(S_WS)}, s{h0} offen offset:1024 sc1 lds"])
        groups = []
        n = len(ms)
        if not prefetched:
            for x in rd[:D]: a(x)
        dpos = list(range(1, n, 2)) if len(dm) <= n // 2 else list(range(n))
        for m in range(n):
            pre = []
            if m % 2 == 0:
                out = min(len(rd), m + D) - (m + 2)
                pre.append(f"s_waitcnt lgkmcnt({max(out, 0)})")
            post = [rd[m + D]] if m + D < len(rd) else []
            if 'halfread' in OPT and (m + D) % 2 == 1: post = []
            if m in dpos and dpos.index(m) < len(dm): post += dm[dpos.index(m)]
            groups.append((pre, ms[m][0][0], []))
            groups.append(([], ms[m][0][1], post))
            if pv and m == n - 5:
                for qi in range(2): groups.append(([], f"{MFMA16} {vr(LS+4*qi,4)}, {vr(ONES,4)}, {vr(Pr+4*qi,4)}, {'0' if fresh else vr(LS+4*qi,4)}", []))
        interleave(a, groups, sm_ops(Sc, Pw) if (sm and 'nosm' not in OPT) else [], max(2 * n - 2, 1))
        if sm:
            a(f"v_cmp_ne_u32 vcc, 0, v{vTA}")
            a(f"s_cbranch_vccnz {name}_SLOW")
            a.label(name + "_RET")
            handlers.append(("slow", name, Sc, Sn, Pw))
        if not last:
            a(f"s_add_u32 s{sS}, s{sS}, 1")
            if prebar: prebar()
            a(f"s_waitcnt vmcnt({vmw if dma else 0})")
            if not ('nobar' in OPT and name.startswith('AT_L')): a("s_barrier")

    if 'prio' in OPT:
        a(f"s_cmp_eq_u32 s{sG}, {OPT['prio']}")
        a("s_cbranch_scc0 AT_PRIO")
        a("s_setprio 1")
        a.label("AT_PRIO")
    if EARLYV:
        slot(0, "AT_S0", sm=False, pv=False)
        sp.mark("s0")
        slot(1, "AT_S1", pv=False)
    else:
        slot(0, "AT_S0", sm=False, pv=False, vlist=[], prebar=lambda: poll(5, 0x101, 2), vmw=2)
        sp.mark("s0")
        slot(1, "AT_S1", pv=False, vlist=[0, 1])
    sp.mark("s1")
    poll_issue(2)
    slot(2, "AT_S2", prebar=lambda: poll(2, 0xffff, 4), fresh=True)
    sp.mark("s2")
    a("s_branch AT_L3")
    slot(2, "AT_L2"); slot(3, "AT_L3"); slot(0, "AT_L0")
    a(f"s_cmp_eq_u32 s{sS}, 33")
    a("s_cbranch_scc1 AT_P33")
    slot(1, "AT_L1")
    a("s_branch AT_L2")
    a.label("AT_P33")
    sp.mark("s32")
    if FUSE: poll_issue(6, True)
    slot(1, "AT_S33", nxt=None, prebar=(lambda: poll(6, -1, 4, True)) if FUSE else None)
    slot(2, "AT_S34", qk=False, nxt=None, dma=False, prefetched=False)
    slot(3, "AT_S35", qk=False, sm=False, nxt=None, dma=False, last=True, prefetched=False)
    sp.mark("s35")
    a("s_barrier")
    a(f"s_mul_i32 s{sT}, s{sW}, {8192+512}")
    a(f"s_xor_b32 s{sT2}, s{sW}, 4")
    a(f"s_mul_i32 s{sT2}, s{sT2}, {8192+512}")
    a(f"v_add_u32 v14, s{sT}, v{vL16}")
    a(f"v_add_u32 v15, s{sT2}, v{vL16}")
    a("v_lshlrev_b32 v16, 3, v0")
    a(f"v_add_u32 v17, s{sT2}, v16")
    a(f"v_add_u32 v16, s{sT}, v16")
    X0, X1, X2, X3, X4, X5 = range(vX0, vX0 + 6)
    a(f"s_cmp_eq_u32 s{sG}, 0")
    a("s_cbranch_scc1 AT_MA")
    a(f"v_mov_b32 v{X4}, v{NEGM}")
    a(f"v_mov_b32 v{X5}, v{LS}")
    a(f"v_mov_b32 v{X0}, v{NEGM+4}")
    a(f"v_mov_b32 v{X1}, v{LS+4}")
    for q in range(8): a(f"ds_write_b128 v14, {vr(O+4*q,4)} offset:{1024*q}")
    for r in range(32): a(f"v_mov_b32 v{O+r}, v{O+32+r}")
    a(f"s_add_u32 s{sCT2}, s{sCT2}, {CS}")
    a("s_branch AT_MB")
    a.label("AT_MA")
    a(f"v_mov_b32 v{X4}, v{NEGM+4}")
    a(f"v_mov_b32 v{X5}, v{LS+4}")
    a(f"v_mov_b32 v{X0}, v{NEGM}")
    a(f"v_mov_b32 v{X1}, v{LS}")
    for q in range(8): a(f"ds_write_b128 v14, {vr(O+32+4*q,4)} offset:{1024*q}")
    a.label("AT_MB")
    a(f"ds_write_b64 v16, v[{X4}:{X5}] offset:8192")
    a("s_waitcnt lgkmcnt(0)")
    a("s_barrier")
    a(f"ds_read_b64 v[{X2}:{X3}], v17 offset:8192")
    for q in range(8): a(f"ds_read_b128 {vr(O+32+4*q,4)}, v15 offset:{1024*q}")
    a("s_waitcnt lgkmcnt(8)")
    a(f"v_min_f32 v{vTA}, v{X0}, v{X2}")
    a(f"v_sub_f32 v{X0}, v{vTA}, v{X0}")
    a(f"v_sub_f32 v{X2}, v{vTA}, v{X2}")
    a(f"v_exp_f32 v{X0}, v{X0}")
    a(f"v_exp_f32 v{X2}, v{X2}")
    a(f"v_mul_f32 v{vTA}, v{X1}, v{X0}")
    a(f"v_fmac_f32 v{vTA}, v{X3}, v{X2}")
    a(f"v_rcp_f32 v{vTA}, v{vTA}")
    a(f"v_mul_f32 v{X0}, v{X0}, v{vTA}")
    a(f"v_mul_f32 v{X2}, v{X2}, v{vTA}")
    for r in range(32): a(f"v_mul_f32 v{O+r}, v{O+r}, v{X0}")
    a("s_waitcnt lgkmcnt(0)")
    for r in range(32): a(f"v_fmac_f32 v{O+r}, v{O+32+r}, v{X2}")
    store_ctx((0,), sCT2, lambda qi: O)
    if FUSE:
        sp.mark("att")
        gen_tail.gen_tail(a, {k: v for k, v in globals().items() if not k.startswith("__")}, dict(sW=sW, sH=sH, sP=sP, sp=sp))
    elif STAMP:
        a("s_waitcnt vmcnt(0)")
        sp.mark("end")
        a("s_waitcnt lgkmcnt(0)")
        sp.flush(100, sW, 0, slot=0); sp.flush(100, sW, 4, slot=1)
    a.label("M_END")
    a("s_endpgm")
    for hd in handlers:
        if hd[0] == "ev":
            _, name, Sc = hd
            a.label(name + "_EV")
            a(f"s_sub_u32 s{sT}, s{sS}, s{sN1}")
            a(f"s_cmp_lg_u32 s{sT}, 2")
            a(f"s_cbranch_scc1 {name}_E1")
            a(f"v_rcp_f32 v{vX0}, v{LS}")
            a(f"v_rcp_f32 v{vX0+1}, v{LS+4}")
            for r in range(8): a(f"v_mov_b32 v{LS+r}, 0")
            for r in range(64): a(f"v_mul_f32 v{O+r}, v{O+r}, v{vX0+(r>>5)}")
            store_ctx((0, 1), sCT1, lambda qi: O + 32 * qi)
            for r in range(64): a(f"v_mov_b32 v{O+r}, 0")
            a.label(name + "_E1")
            if FUSE:
                only(0, ["s_mov_b64 exec, 1", f"v_mov_b32 v{vX0}, 1", f"s_lshl_b32 s3, s{sP}, 10", f"s_add_u32 s3, s3, s{sH}", "s_lshl_b32 s3, s3, 2",
                         f"s_add_u32 s3, s3, {WS_FL3}", f"buffer_store_dword v{vX0}, v{vZERO}, {S4(S_WS)}, s3 offen sc1", "s_mov_b64 exec, -1"],
                     f"s_cmp_lg_u32 s{sT}, 3")
            a(f"s_cmp_lg_u32 s{sT}, 0")
            a(f"s_cbranch_scc1 {name}_E2")
            for t in range(8): a(f"ds_read_b128 {vr(Q+4*t,4)}, v{vQ2} offset:{32768+1024*t}")
            for r in range(8): a(f"v_mov_b32 v{NEGM+r}, 0")
            a("s_waitcnt lgkmcnt(0)")
            a.label(name + "_E2")
            a(f"s_sub_u32 s{sT2}, s{sS}, s{sMST}")
            a(f"s_sub_u32 s{sT2}, s{sT2}, 1")
            a(f"s_cmp_lt_u32 s{sT2}, 4")
            a(f"s_cbranch_scc1 {name}_EM")
            a(f"s_cmp_lt_u32 s{sS}, 33")
            a(f"s_cbranch_scc1 {name}_E3")
            a(f"s_sub_u32 s{sT2}, s{sS}, 33")
            a(f"s_lshl_b32 s{sT2}, s{sT2}, 1")
            a(f"s_add_u32 s{sT2}, s{sT2}, s{sG}")
            a.label(name + "_EM")
            a(f"s_lshl_b32 s{sT2}, s{sT2}, 5")
            a(f"v_subrev_u32 v{vX0}, s{sT2}, v{vD0}")
            for qi in range(2):
                for kt in range(2):
                    for e in range(4):
                        a(f"v_cmp_le_i32 s[{sMK+2*e}:{sMK+2*e+1}], {16*kt+e-16*qi}, v{vX0}")
                    for e in range(4):
                        r = Sc + 8 * qi + 4 * kt + e
                        a(f"v_cndmask_b32 v{r}, v{vNINF}, v{r}, s[{sMK+2*e}:{sMK+2*e+1}]")
            a.label(name + "_E3")
            a(f"s_cmp_eq_u32 s{sT}, 1")
            a(f"s_cbranch_scc1 {name}_E4")
            a(f"s_cmp_lg_u32 s{sS}, 1")
            a(f"s_cbranch_scc1 {name}_GO")
            a.label(name + "_E4")
            for qi in range(2):
                rowmax(vX0 + qi, vX0 + 2 + qi, Sc + 8 * qi)
                a(f"v_add_f32 v{vX0+qi}, {f32hex(BIAS)}, v{vX0+qi}")
            for r in range(8): a(f"v_sub_f32 v{NEGM+r}, v{NEGM+r}, v{vX0+(r>>2)}")
            for r in range(16): a(f"v_sub_f32 v{Sc+r}, v{Sc+r}, v{vX0+(r>>3)}")
            a(f"s_branch {name}_GO")
        else:
            _, name, Sc, Sn, Pw = hd
            a.label(name + "_SLOW")
            for qi in range(2):
                rowmax(vX0 + qi, vX0 + 2 + qi, Sc + 8 * qi)
                a(f"v_add_f32 v{vX0+qi}, {f32hex(BIAS)}, v{vX0+qi}")
                a(f"v_max_f32 v{vX0+qi}, 0, v{vX0+qi}")
                a(f"v_exp_f32 v{vX0+2+qi}, -v{vX0+qi}")
            for r in range(8): a(f"v_sub_f32 v{NEGM+r}, v{NEGM+r}, v{vX0+(r>>2)}")
            for r in range(16): a(f"v_sub_f32 v{Sn+r}, v{Sn+r}, v{vX0+(r>>3)}")
            for r in range(16): a(f"v_sub_f32 v{Sc+r}, v{Sc+r}, v{vX0+(r>>3)}")
            for r in range(64): a(f"v_mul_f32 v{O+r}, v{O+r}, v{vX0+2+(r>>5)}")
            for r in range(8): a(f"v_mul_f32 v{LS+r}, v{LS+r}, v{vX0+2+(r>>2)}")
            for c, ops in sm_ops(Sc, Pw):
                for x in ops: a(x)
            a(f"s_branch {name}_RET")
    return dict(name="gated_mix__ssm_conv_h3__compressed_kv_cla__prompt_kernel" if FUSE else "main_kernel", grid=256, block=512, lds=163840, vgpr=256)

import gen as G1
G1.STAMP = False
KERNELS = {"main": gen_main, "conv": G1.gen_conv, "oproj": G1.gen_oproj, "tail": lambda a: gen_tail.gen_tail(a, {k: v for k, v in globals().items() if not k.startswith("__")})}

def build(names, path, verbose=False):
    hdr = open("gated_mix__ssm_conv_h3__compressed_kv_cla__prompt.s.ref").read().split("\n")
    hdr = [l for l in hdr if l.startswith(";") and "@launch" not in l and "Override" not in l and "grid=ceil" not in l]
    codes, descs, launches = [], [], []
    for n in names:
        a = Asm()
        info = KERNELS[n](a)
        k = fix_hazards(a.lines, verbose)
        print(f"{n}: {len(a.lines)} lines, {k} nops inserted")
        c, d = kernel_text(info["name"], a.lines, info["vgpr"], extra="  .amdhsa_float_denorm_mode_32 3\n")
        codes.append(c); descs.append(d)
        kn = "" if "plain" in OPT else f"kernel={info['name']} "
        launches.append(f"; @launch {kn}grid=({info['grid']},1,1) block=({info['block']},1,1) lds={info['lds']}")
    txt = "\n".join(hdr + launches) + '\n.amdgcn_target "amdgcn-amd-amdhsa--gfx950"\n.text\n' + "\n".join(codes) + \
          '\n.section .rodata,"a"\n' + "\n".join(descs)
    open(path, "w").write(txt)

if __name__ == "__main__":
    names = sys.argv[2].split(",") if len(sys.argv) > 2 else list(KERNELS)
    build(names, sys.argv[1] if len(sys.argv) > 1 else "k2.s", verbose="-v" in sys.argv)
```

```python
def gen_tail(a, E, fused=None):
    globals().update(E)
    SC = ' sc1' if fused else ''
    S_WS, S_X, S_OUT, S_H, S_D, S_DBG = 4, 8, 12, 16, 20, 24
    sW, sT, sT2, sMT, sNT, sKO, sCH, sLB, sNC = range(28, 37)
    NS = int(OPT.get('ns', 4))
    vB, ST, ACC = 4, 32, 176
    RB = 0
    YB = 61440
    CNT = YB + 10240
    CB = CNT + 256
    CHB = 4 * 4160 + 512 + 4096
    RDY = CNT + 64
    sPUB = 37
    if fused:
        sp = fused["sp"]
        a(f"s_sub_u32 s{sPUB+1}, 15, s{fused['sP']}")
        a(f"s_lshl_b32 s{sPUB+1}, s{sPUB+1}, 12")
        a(f"s_lshl_b32 s{sPUB}, s{fused['sH']}, 2")
        a(f"s_add_u32 s{sPUB}, s{sPUB}, s{sPUB+1}")
        a(f"s_add_u32 s{sPUB}, s{sPUB}, {WS_FL3}")
        a(f"s_mov_b32 s{sW}, s{fused['sW']}")
    else:
        sp = Stamps(a, base=70, region=1)
        a("s_cmp_ge_u32 s2, 256")
        a("s_cbranch_scc1 T_END")
        sp.mark("start")
    for d, k in ((S_WS, 'ws'), (S_X, 'A_q'), (S_OUT, 'out'), (S_H, 'ssm_k'), (S_D, 'ssm_D'), (S_DBG, 'dbg')):
        a(f"s_load_dwordx2 s[{d}:{d+1}], s[0:1], {KA[k]}")
    if not fused:
        a("v_lshrrev_b32 v1, 6, v0")
        a("v_and_b32 v0, 63, v0")
        a(f"v_readfirstlane_b32 s{sW}, v1")
    omap = int(OPT.get('omap', 1))
    if omap == 0:
        a(f"s_and_b32 s{sMT}, s2, 7")
        a(f"s_lshl_b32 s{sMT}, s{sMT}, 2")
        a(f"s_bfe_u32 s{sT}, s2, 0x20003")
        a(f"s_add_u32 s{sMT}, s{sMT}, s{sT}")
        a(f"s_lshr_b32 s{sNT}, s2, 5")
    elif omap == 1:
        a(f"s_and_b32 s{sMT}, s2, 3")
        a(f"s_lshl_b32 s{sMT}, s{sMT}, 3")
        a(f"s_bfe_u32 s{sT}, s2, 0x30003")
        a(f"s_add_u32 s{sMT}, s{sMT}, s{sT}")
        a(f"s_and_b32 s{sNT}, s2, 4")
        a(f"s_lshr_b32 s{sT}, s2, 6")
        a(f"s_add_u32 s{sNT}, s{sNT}, s{sT}")
    else:
        a(f"s_and_b32 s{sMT}, s2, 1")
        a(f"s_lshl_b32 s{sMT}, s{sMT}, 4")
        a(f"s_bfe_u32 s{sT}, s2, 0x40003")
        a(f"s_add_u32 s{sMT}, s{sMT}, s{sT}")
        a(f"s_and_b32 s{sNT}, s2, 6")
        a(f"s_lshr_b32 s{sT}, s2, 7")
        a(f"s_add_u32 s{sNT}, s{sNT}, s{sT}")
    a("v_lshlrev_b32 v1, 4, v0")
    for d, sz in ((S_WS, 64 * MB), (S_X, 2621440), (S_OUT, 2621440), (S_H, 2621440), (S_D, 1280), (S_DBG, 256)):
        a(f"s_mov_b32 s{d+2}, {sz}")
        a(f"s_mov_b32 s{d+3}, 0x00020000")
    a(f"s_cmp_ge_u32 s{sW}, 4")
    a("s_cbranch_scc1 T_SIDE")
    a(f"s_mul_i32 s{sT}, s{sMT}, {4*CS}")
    a(f"s_add_u32 s{sT}, s{sT}, {WS_CTX}")
    a(f"v_add_u32 v{vB}, s{sT}, v1")
    for i in range(1, 4): a(f"v_add_u32 v{vB+i}, {i*CS}, v{vB}")
    a(f"s_mul_i32 s{sT}, s{sNT}, {5*CS}")
    a(f"s_add_u32 s{sT}, s{sT}, {WS_WOT}")
    a(f"v_add_u32 v{vB+4}, s{sT}, v1")
    for j in range(1, 5): a(f"v_add_u32 v{vB+4+j}, {j*CS}, v{vB+4}")
    a(f"s_lshl_b32 s{sKO}, s{sW}, 15")
    a("s_waitcnt lgkmcnt(0)")
    vm = VM()
    KO = [sKO, 38]
    a(f"s_add_u32 s{KO[1]}, s{KO[0]}, 4096")
    def load(ks, n):
        base = ST + (ks % NS) * 36
        return f"buffer_load_dwordx4 {vr(base+4*n,4)}, v{vB+n}, {S4(S_WS)}, s{KO[(ks//4)&1]} offen offset:{(ks%4)*1024}{SC}"
    def emit(x, tag):
        a(x); vm.add(tag)
    if fused:
        for ks in range(NS):
            for n in range(4, 9): emit(load(ks, n), ks)
        a(f"s_waitcnt vmcnt({5 * NS})")
        a("s_barrier")
        sp.mark("tb")
        if 'wpf' in OPT:
            assert omap == 1
            a("v_lshrrev_b32 v2, 3, v0")
            a(f"v_mul_u32_u24 v2, {CS}, v2")
            a("v_and_b32 v3, 7, v0")
            a("v_lshl_add_u32 v2, v3, 7, v2")
            a(f"s_lshr_b32 s{sT}, s2, 3")
            a(f"s_lshl_b32 s{sT}, s{sT}, 2")
            a(f"s_add_u32 s{sT}, s{sT}, s{sW}")
            a(f"s_lshl_b32 s{sT}, s{sT}, 10")
            a(f"s_and_b32 s{sT2}, s2, 4")
            a(f"s_mul_i32 s{sT2}, s{sT2}, {5*CS}")
            a(f"s_add_u32 s{sT}, s{sT}, s{sT2}")
            a(f"s_add_u32 s{sT}, s{sT}, {WS_WOT}")
            for i in range(3):
                if i == 2: a("s_mov_b32 exec_hi, 0")
                emit(f"buffer_load_dword v15, v2, {S4(S_WS)}, s{sT} offen sc1", "wpf")
                if i < 2: a(f"s_add_u32 s{sT}, s{sT}, {8*CS}")
            a("s_mov_b32 exec_hi, -1")
        a(f"v_mov_b32 v2, {RDY}")
        a(f"s_mov_b32 s{sT2}, 0")
        a.label("T_RDY")
        a("ds_read_b32 v3, v2")
        a("s_waitcnt lgkmcnt(0)")
        a(f"v_readfirstlane_b32 s{sT}, v3")
        a(f"s_add_u32 s{sT2}, s{sT2}, 1")
        a(f"s_cmp_lg_u32 s{sT}, 0")
        a("s_cbranch_scc1 T_RDY2")
        a("s_sleep 2")
        a(f"s_cmp_lt_u32 s{sT2}, 4000000")
        a("s_cbranch_scc1 T_RDY")
        a.label("T_RDY2")
        for ks in range(NS):
            for n in range(4): emit(load(ks, n), ks)
    else:
        for ks in range(NS):
            for n in range(9): emit(load(ks, n), ks)
        a("s_barrier")
    a("v_and_b32 v2, 15, v0")
    a("v_lshrrev_b32 v3, 4, v0")
    a(f"s_lshl_b32 s{sT}, s{sMT}, 6")
    a(f"s_lshl_b32 s{sT2}, s{sW}, 4")
    a(f"s_add_u32 s{sT}, s{sT}, s{sT2}")
    a(f"v_add_u32 v2, s{sT}, v2")
    a("v_mul_u32_u24 v13, 1280, v2")
    a("v_lshl_add_u32 v13, v3, 3, v13")
    a(f"s_mul_i32 s{sT}, s{sNT}, 160")
    a(f"v_add_u32 v13, s{sT}, v13")
    a("v_lshlrev_b32 v2, 2, v2")
    AC = lambda i, j: ACC + (i * 5 + j) * 4
    assert NS == 4
    for ks in range(32):
        base = ST + (ks % NS) * 36
        a(f"s_waitcnt vmcnt({vm.wait(ks)})")
        if ks == 0: sp.mark("t0")
        sp.mark(f"o{ks}")
        if ks % 4 == 0 and ks: a(f"s_add_u32 s{KO[(ks//4+1)&1]}, s{KO[(ks//4+1)&1]}, 8192")
        if ks == int(OPT.get('ksig', 27)):
            a(f"v_mov_b32 v26, {CNT}")
            a("v_mov_b32 v27, 4")
            a("s_mov_b64 exec, 1")
            a("ds_add_u32 v26, v27")
            a("s_mov_b64 exec, -1")
        for j in range(5):
            for i in range(4):
                acc = vr(AC(i, j), 4)
                a(f"{MFMA16} {acc}, {vr(base+16+4*j,4)}, {vr(base+4*i,4)}, {'0' if ks == 0 else acc}")
                if ks + NS < 32:
                    if i == 3: emit(load(ks + NS, 4 + j), ks + NS)
                    if j == 4: emit(load(ks + NS, i), ks + NS)
                elif ks + NS == 32 and i == 3:
                    emit(f"buffer_load_dwordx2 {vr(16+2*j,2)}, v13, {S4(S_X)}, 0 offen offset:{32*j}", "x")
                    if j == 0:
                        a(f"s_mov_b32 s{sT}, {WS_G}")
                        emit(f"buffer_load_dword v14, v2, {S4(S_WS)}, s{sT} offen{SC}", "x")
    sp.mark("t1")
    for i in range(4):
        lab = a.uid("TSK")
        a(f"s_cmp_eq_u32 s{sW}, {i}")
        a(f"s_cbranch_scc1 {lab}")
        a(f"s_sub_u32 s{sT}, s{sW}, {i+1}")
        a(f"s_and_b32 s{sT}, s{sT}, 3")
        a(f"s_mul_i32 s{sT}, s{sT}, 5120")
        a(f"v_add_u32 v4, s{sT}, v1")
        for j in range(5): a(f"ds_write_b128 v4, {vr(AC(i,j),4)} offset:{RB+i*15360+j*1024}")
        a(f"s_branch {lab}N")
        a.label(lab)
        for r in range(20): a(f"v_mov_b32 v{32+(r>>2)*16+12+(r&3)}, v{AC(i,0)+r}")
        a.label(lab + "N")
    a(f"s_mul_i32 s{sT}, s{sW}, 15360")
    a(f"v_add_u32 v5, s{sT}, v1")
    a("v_lshrrev_b32 v7, 2, v0")
    a("v_lshlrev_b32 v7, 7, v7")
    a("v_and_b32 v8, 3, v0")
    a("v_lshl_add_u32 v7, v8, 3, v7")
    a(f"s_lshl_b32 s{sT}, s{sW}, 5")
    a(f"s_add_u32 s{sT}, s{sT}, {YB}")
    a(f"v_add_u32 v7, s{sT}, v7")
    a("s_waitcnt vmcnt(0) lgkmcnt(0)")
    a("s_barrier")
    sp.mark("t2")
    for j in range(5):
        for src in range(3):
            a(f"ds_read_b128 {vr(32+(j*4+src)*4,4)}, v5 offset:{RB+src*5120+j*1024}")
        a(f"ds_read_b64_tr_b16 {vr(112+2*j,2)}, v7 offset:{j*2048}")
    a("v_sub_f32 v15, 1.0, v14")
    for x in rnd_pair(26, 15, 15, 15, 27): a(x)
    for j in range(5):
        a(f"s_waitcnt lgkmcnt({min(15, 4*(4-j))})")
        b = 32 + j * 16
        for r in range(4):
            a(f"v_add_f32 v{b+r}, v{b+r}, v{b+4+r}")
            a(f"v_add_f32 v{b+8+r}, v{b+8+r}, v{b+12+r}")
        for r in range(4): a(f"v_add_f32 v{b+r}, v{b+r}, v{b+8+r}")
        for hf in range(2):
            L = rnd_pair(26, b + 2 * hf, b + 2 * hf + 1, b + 4, b + 5)
            L += [f"v_mul_f32 v{b+4}, v15, v{b+4}", f"v_mul_f32 v{b+5}, v15, v{b+5}"] + rnd_pair(26, b + 4, b + 5, b + 4, b + 5)
            L += [f"v_lshlrev_b32 v{b+6}, 16, v{16+2*j+hf}", f"v_and_b32 v{b+7}, 0xffff0000, v{16+2*j+hf}",
                  f"v_lshlrev_b32 v{b+8}, 16, v{112+2*j+hf}", f"v_and_b32 v{b+9}, 0xffff0000, v{112+2*j+hf}",
                  f"v_mul_f32 v{b+6}, v{b+6}, v{b+8}", f"v_mul_f32 v{b+7}, v{b+7}, v{b+9}"] + rnd_pair(26, b + 6, b + 7, b + 6, b + 7)
            L += [f"v_mul_f32 v{b+6}, v14, v{b+6}", f"v_mul_f32 v{b+7}, v14, v{b+7}"] + rnd_pair(26, b + 6, b + 7, b + 6, b + 7)
            L += [f"v_add_f32 v{b+6}, v{b+6}, v{b+4}", f"v_add_f32 v{b+7}, v{b+7}, v{b+5}",
                  f"v_cvt_pk_bf16_f32 v{b+12+hf}, v{b+6}, v{b+7}"]
            for x in L: a(x)
        a(f"buffer_store_dwordx2 {vr(b+12,2)}, v13, {S4(S_OUT)}, 0 offen offset:{32*j}")
    if STAMP:
        a("s_waitcnt vmcnt(0)"); sp.mark("end"); a("s_waitcnt lgkmcnt(0)")
        sp.flush(100, sW, 0, slot=0); sp.flush(100, sW, 3, slot=1) if fused else None
    a("s_endpgm")
    a.label("T_SIDE")
    a("s_setprio 3")
    a("s_waitcnt lgkmcnt(0)")
    a(f"s_and_b32 s{sNC}, s2, 1")
    a(f"s_sub_u32 s{sNC}, 3, s{sNC}")
    a(f"s_cmp_lg_u32 s{sW}, 7")
    a("s_cbranch_scc1 T_CONV")
    a(f"v_mov_b32 v2, {CNT}")
    a("v_mov_b32 v3, 0")
    a("ds_write_b32 v2, v3")
    a("ds_write_b32 v2, v3 offset:64")
    a("s_waitcnt vmcnt(0) lgkmcnt(0)")
    a("s_barrier")
    if fused:
        a("v_mov_b32 v4, 1")
        a("s_mov_b64 exec, 1")
        a(f"buffer_store_dword v4, v3, {S4(S_WS)}, s{sPUB} offen sc1")
        a("s_mov_b64 exec, -1")
        a("v_and_b32 v3, 31, v0")
        a("v_lshlrev_b32 v3, 2, v3")
        a(f"s_lshr_b32 s3, s{sMT}, 1")
        a("s_lshl_b32 s3, s3, 12")
        a(f"s_add_u32 s3, s3, {WS_FL3}")
        a(f"s_mov_b32 s{sT2}, 0")
        a("s_branch T_CP1")
        a.label("T_CP")
        a(f"s_sleep {OPT.get('csleep', 8)}")
        a.label("T_CP1")
        a(f"buffer_load_dword v5, v3, {S4(S_WS)}, s3 offen sc1")
        a("s_waitcnt vmcnt(0)")
        a("v_cmp_eq_u32 vcc, 0, v5")
        a(f"s_add_u32 s{sT2}, s{sT2}, 1")
        a("s_cbranch_vccz T_CP2")
        a(f"s_cmp_lt_u32 s{sT2}, 100000")
        a("s_cbranch_scc1 T_CP")
        a.label("T_CP2")
        a("ds_write_b32 v2, v4 offset:64")
    a("v_lshrrev_b32 v2, 3, v0")
    a("v_and_b32 v4, 7, v0")
    a("v_lshlrev_b32 v4, 4, v4")
    a("v_lshl_add_u32 v2, v2, 12, v4")
    a(f"s_lshl_b32 s3, s{sNT}, 12")
    a(f"s_add_u32 s3, s3, {WS_FLG}")
    a("v_and_b32 v3, 31, v0")
    a("v_lshlrev_b32 v3, 2, v3")
    a(f"s_mov_b32 s{sT2}, 0")
    a(f"v_mov_b32 v6, {CNT}")
    a.label("T_LPOLL")
    a("s_sleep 8")
    a("ds_read_b32 v5, v6")
    a("s_waitcnt lgkmcnt(0)")
    a(f"v_readfirstlane_b32 s{sT}, v5")
    a(f"s_add_u32 s{sT2}, s{sT2}, 1")
    a(f"s_cmp_ge_u32 s{sT}, {OPT.get('nsig', 16)}")
    a("s_cbranch_scc1 T_POLL1")
    a(f"s_cmp_lt_u32 s{sT2}, 100000")
    a("s_cbranch_scc1 T_LPOLL")
    a.label("T_POLL")
    a(f"s_sleep {OPT.get('tsleep', 24)}")
    a.label("T_POLL1")
    a(f"buffer_load_dword v5, v3, {S4(S_WS)}, s3 offen sc1")
    a("s_waitcnt vmcnt(0)")
    a("v_cmp_eq_u32 vcc, 0, v5")
    a(f"s_add_u32 s{sT2}, s{sT2}, 1")
    a("s_cbranch_vccz T_POK")
    a(f"s_cmp_lt_u32 s{sT2}, 100000")
    a("s_cbranch_scc1 T_POLL")
    a.label("T_POK")
    a(f"s_mul_i32 s{sT}, s{sNT}, {80*4096}")
    a(f"s_lshl_b32 s{sT2}, s{sMT}, 7")
    a(f"s_add_u32 s{sT}, s{sT}, s{sT2}")
    a(f"s_add_u32 s{sT}, s{sT}, {WS_Y2T}")
    for i in range(10):
        a(f"s_mov_b32 m0, {YB + 1024*i}")
        if i: a(f"s_add_u32 s{sT}, s{sT}, {8*4096}")
        a(f"buffer_load_dwordx4 v2, {S4(S_WS)}, s{sT} offen sc1 lds")
    a("s_waitcnt vmcnt(0)")
    a("s_barrier")
    a("s_endpgm")
    a.label("T_CONV")
    a(f"s_sub_u32 s{sT}, s{sW}, 4")
    a(f"s_cmp_ge_u32 s{sT}, s{sNC}")
    a("s_cbranch_scc1 T_WEND")
    a(f"s_lshr_b32 s{sCH}, s2, 1")
    a(f"s_mul_i32 s{sCH}, s{sCH}, 5")
    a(f"s_and_b32 s{sT2}, s2, 1")
    a(f"s_mul_i32 s{sT2}, s{sT2}, 3")
    a(f"s_add_u32 s{sCH}, s{sCH}, s{sT2}")
    a(f"s_add_u32 s{sCH}, s{sCH}, s{sT}")
    a(f"s_mul_i32 s{sLB}, s{sT}, {CHB}")
    a(f"s_add_u32 s{sLB}, s{sLB}, {CB}")
    if fused:
        a("s_waitcnt vmcnt(0)")
        a("s_barrier")
    KVB = 4 * 4160 + 512
    a(f"s_lshl_b32 s{sT}, s{sCH}, 12")
    a(f"s_add_u32 s{sT2}, s{sT}, {WS_KVT}")
    a(f"s_add_u32 m0, s{sLB}, {KVB}")
    a(f"v_add_u32 v3, s{sT}, v1")
    for i in range(4): a(f"buffer_load_dwordx4 v1, {S4(S_WS)}, s{sT2} offen offset:{1024*i}{SC} lds")
    for rr in range(4):
        if rr: a("v_subrev_u32 v3, 2, v3")
        a("v_add_u32 v4, 1024, v3")
        a(f"s_add_u32 m0, s{sLB}, {rr*4160+64}")
        a(f"buffer_load_dwordx4 v3, {S4(S_H)}, 0 offen lds")
        a(f"s_add_u32 m0, s{sLB}, {rr*4160+64+1024}")
        for i in range(3): a(f"buffer_load_dwordx4 v4, {S4(S_H)}, 0 offen offset:{1024*i} lds")
    a("v_mov_b32 v8, 0")
    a("v_mov_b32 v9, 0")
    a("v_lshlrev_b32 v5, 3, v0")
    a(f"v_add_u32 v6, s{sLB}, v5")
    a(f"ds_write_b64 v6, v[8:9] offset:{4*4160}")
    a("v_and_b32 v6, 7, v0")
    a("v_bfe_u32 v7, v0, 3, 2")
    a("v_lshlrev_b32 v12, 1, v6")
    a(f"buffer_load_ushort v13, v12, {S4(S_H)}, s{sT} offen")
    a(f"s_lshl_b32 s{sT}, s{sCH}, 1")
    a(f"buffer_load_ushort v14, v8, {S4(S_D)}, s{sT} offen")
    a("v_add_u32 v6, v6, v7")
    a("v_mul_u32_u24 v12, 4160, v7")
    a("v_lshl_add_u32 v12, v6, 1, v12")
    a(f"v_add_u32 v12, s{sLB}, v12")
    vA, vBq, vO = 16, 17, 15
    a("v_bfe_u32 v18, v0, 2, 2")
    a("v_mul_u32_u24 v18, 4160, v18")
    a("v_and_b32 v19, 3, v0")
    a("v_lshl_add_u32 v18, v19, 3, v18")
    a("v_lshrrev_b32 v19, 4, v0")
    a("v_lshlrev_b32 v20, 4, v19")
    a("v_sub_u32 v18, v18, v20")
    a(f"s_add_u32 s{sT}, s{sLB}, {64+32-8}")
    a(f"v_add_u32 v{vA}, s{sT}, v18")
    a("v_and_b32 v21, 15, v0")
    a("v_lshl_add_u32 v18, v21, 5, v20")
    a(f"s_add_u32 s{sT}, s{sLB}, {KVB-32-7*64}")
    a(f"v_add_u32 v{vBq}, s{sT}, v18")
    a(f"v_lshlrev_b32 v{vO}, 5, v21")
    a(f"v_lshl_add_u32 v{vO}, v19, 3, v{vO}")
    a("v_lshlrev_b32 v20, 3, v19")
    a("v_sub_u32 v20, v21, v20")
    a("v_mov_b32 v22, 0xffff")
    MK = 24
    for q in range(4):
        a(f"v_cmp_le_i32 vcc, {2*q-16}, v20")
        a(f"v_cmp_le_i32 s[40:41], {2*q+1-16}, v20")
        a(f"v_cndmask_b32 v{MK+q}, 0, v22, vcc")
        a(f"v_cndmask_b32 v{MK+q}, v{MK+q}, -1, s[40:41]")
    if not fused: a("s_barrier")
    a("s_waitcnt vmcnt(0)")
    if fused: sp.off = True
    sp.n = 2; sp.mark("t0")
    a("v_cmp_gt_u32 vcc, 8, v6")
    a("s_and_b32 exec_lo, vcc_lo, exec_lo")
    a("s_mov_b32 exec_hi, 0")
    a("ds_write_b16 v12, v13 offset:64")
    a("s_mov_b64 exec, -1")
    a("s_setprio 0")
    FA, FB, Y = [32, 96], [64, 128], 160
    S = Stream(a, VM(), dist=14, per_gap=2)
    rl = []
    for d0 in range(8):
        s = d0 & 1
        base = 36 * d0
        n = 0
        for m in range(8):
            o = 64 * (d0 + 8 * m)
            rl.append((base + n, ("a", d0, m, 0), f"ds_read_b64_tr_b16 {vr(FA[s]+4*m,2)}, v{vA} offset:{o+8}", FA[s] + 4 * m))
            rl.append((base + n, ("a", d0, m, 1), f"ds_read_b64_tr_b16 {vr(FA[s]+4*m+2,2)}, v{vA} offset:{o}", FA[s] + 4 * m + 2))
            for c in range(8 - m):
                if m == 0: rl.append((base + n - 4, ("b", d0, c), f"ds_read_b128 {vr(FB[s]+4*c,4)}, v{vBq} offset:{512*c+64*(7-d0)}", FB[s] + 4 * c))
                acc = vr(Y + 4 * (c + m), 4)
                txt = f"{MFMA16} {acc}, {vr(FA[s]+4*m,4)}, {vr(FB[s]+4*c,4)}, {'0' if (d0 == 0 and m == 0) else acc}"
                if d0 == 0 and m == 0 and c == 0:
                    txt = "\n".join(f"v_and_b32 v{FA[0]+q}, v{FA[0]+q}, v{MK+q}" for q in range(4)) + "\n" + txt
                S.op(txt, [("a", d0, m, 0), ("a", d0, m, 1), ("b", d0, c)])
                n += 1
    rl.sort(key=lambda r: r[0])
    for r in rl: S.read(r[1], r[2], r[3], 0, r[0])
    S.run([0])
    sp.mark("t1")
    a("s_setprio 3")
    a(f"s_add_u32 s{sT}, s{sLB}, {KVB}")
    a(f"v_add_u32 v5, s{sT}, v{vO}")
    for t in range(8): a(f"ds_read_b64 {vr(32+2*t,2)}, v5 offset:{512*t}")
    a("v_lshlrev_b32 v14, 16, v14")
    a(f"s_lshl_b32 s{sT}, s{sCH}, 12")
    a(f"s_add_u32 s{sT}, s{sT}, {WS_Y2T}")
    a("s_waitcnt lgkmcnt(0)")
    for t in range(8):
        for hf in range(2):
            r = Y + 4 * t + 2 * hf
            kvr = 32 + 2 * t + hf
            L = rnd_pair(52, r, r + 1, 50, 51)
            L += [f"v_lshlrev_b32 v53, 16, v{kvr}", f"v_and_b32 v54, 0xffff0000, v{kvr}",
                  "v_mul_f32 v53, v53, v14", "v_mul_f32 v54, v54, v14"] + rnd_pair(52, 53, 54, 53, 54)
            L += ["v_add_f32 v50, v50, v53", "v_add_f32 v51, v51, v54", f"v_cvt_pk_bf16_f32 v{64+2*t+hf}, v50, v51"]
            for x in L: a(x)
        a(f"buffer_store_dwordx2 {vr(64+2*t,2)}, v{vO}, {S4(S_WS)}, s{sT} offen offset:{512*t} sc1")
    sp.mark("t2")
    a("s_waitcnt vmcnt(0)")
    if STAMP and not fused:
        sp.mark("end"); a("s_waitcnt lgkmcnt(0)"); sp.flush(100, sW, 4, slot=1)
    a("s_mov_b64 exec, 1")
    a(f"v_mov_b32 v2, {CNT}")
    a("v_mov_b32 v3, 1")
    a("ds_add_rtn_u32 v4, v2, v3")
    a("s_waitcnt lgkmcnt(0)")
    a(f"v_readfirstlane_b32 s{sT}, v4")
    a(f"s_add_u32 s{sT}, s{sT}, 1")
    a(f"s_and_b32 s{sT}, s{sT}, 3")
    a(f"s_cmp_lg_u32 s{sT}, s{sNC}")
    a("s_cbranch_scc1 T_END")
    a("s_lshr_b32 s3, s2, 5")
    a("s_lshl_b32 s3, s3, 12")
    a(f"s_and_b32 s{sT}, s2, 31")
    a(f"s_lshl_b32 s{sT}, s{sT}, 2")
    a(f"s_add_u32 s3, s3, s{sT}")
    a(f"s_add_u32 s3, s3, {WS_FLG}")
    a(f"buffer_store_dword v3, v8, {S4(S_WS)}, s3 offen sc1")
    a.label("T_WEND")
    a("s_waitcnt vmcnt(0)")
    a.label("T_END")
    a("s_endpgm")
    return dict(name="tail_kernel", grid=256, block=512, lds=CB + 3 * CHB, vgpr=256)
```

```python
import sys, struct
from asmlib import *
from sched import *
import gen_tail

MB = 1 << 20
WS_KF, WS_VF, WS_CTX, WS_WOT, WS_KVT, WS_Y2T, WS_G = 0, 16 * MB, 32 * MB, 49 * MB, 56 * MB, 60 * MB, 63 * MB
KA = dict(A_q=0, A_k=8, A_v=16, shift=24, ssm_k=32, ssm_D=40, B_x=48, c_kv=56, w_q=64, w_uk=72, w_uv=80, w_o=88,
          gate=96, out=104, dbg=112, ws=120)
MFMA32 = "v_mfma_f32_32x32x16_bf16"
MFMA16 = "v_mfma_f32_16x16x32_bf16"
STAMP = "-stamp" in sys.argv
OPT = {x[2:].split("=")[0]: (x.split("=")[1] if "=" in x else "1") for x in sys.argv if x.startswith("--")}
WS_FLG = 63 * MB + 524288
WS_FL2 = 63 * MB + 655360
WS_FL3 = WS_FL2 + 131072
FUSE = 'nofuse' not in OPT
CS = 131072 + int(OPT.get('cspad', 1024))
OOB = "0x80000000"
def f32hex(x): return "0x%08x" % struct.unpack("<I", struct.pack("<f", x))[0]

def srd(a, d, lo, hi, size, add=0):
    if add:
        a(f"s_add_u32 s{d}, s{lo}, {add}")
        a(f"s_addc_u32 s{d+1}, s{hi}, 0")
    else:
        a(f"s_mov_b32 s{d}, s{lo}")
        a(f"s_mov_b32 s{d+1}, s{hi}")
    a(f"s_mov_b32 s{d+2}, {size}")
    a(f"s_mov_b32 s{d+3}, 0x00020000")
def S4(d): return f"s[{d}:{d+3}]"

class Stamps:
    def __init__(self, a, base=70, region=0):
        self.a, self.base, self.n, self.region = a, base, 0, region
    off = False
    def mark(self, name=""):
        if not STAMP or self.off: return
        if name not in OPT.get("marks", "start,kv,q,s1,end,t0,t1,t2").split(","): return
        assert self.base + 2 * self.n + 3 <= 101
        self.a(f"s_memtime s[{self.base+2*self.n}:{self.base+2*self.n+1}]")
        self.a(f"s_memrealtime s[{self.base+2*self.n+2}:{self.base+2*self.n+3}]")
        self.n += 2
    def flush(self, wg, sW, wave, slot=0):
        if not STAMP: return
        a = self.a
        lab = a.uid("STK")
        a(f"s_cmp_lg_u32 s{sW}, {wave}")
        a(f"s_cbranch_scc1 {lab}")
        if 'dbgstamp' in OPT:
            if slot:
                a.label(lab); return
            a(f"s_cmp_lg_u32 s2, {OPT['dbgstamp']}")
            a(f"s_cbranch_scc1 {lab}")
            a(f"s_load_dwordx2 s[60:61], s[0:1], {KA['dbg']}")
            a("s_waitcnt lgkmcnt(0)")
            a("s_mov_b32 s62, 64")
            a("s_mov_b32 s63, 0x00020000")
            a("v_mov_b32 v1, 0")
            for i in range(self.n - 1, 1, -1): a(f"s_sub_u32 s{self.base+2*i}, s{self.base+2*i}, s{self.base+2*i-4}")
        else:
            a(f"s_load_dwordx2 s[60:61], s[0:1], {KA['ws']}")
            a("s_waitcnt lgkmcnt(0)")
            a(f"s_add_u32 s60, s60, {128*MB + self.region*65536 + slot*64}")
            a("s_addc_u32 s61, s61, 0")
            a("s_mov_b32 s62, 65536")
            a("s_mov_b32 s63, 0x00020000")
            a("s_lshl_b32 s3, s2, 7")
            a("v_mov_b32 v1, s3")
        for i in range(self.n):
            a(f"v_mov_b32 v2, s{self.base+2*i}")
            a(f"buffer_store_dword v2, v1, s[60:63], 0 offen offset:{4*i}")
        a("s_getreg_b32 s3, hwreg(HW_REG_XCC_ID)")
        a("v_mov_b32 v2, s3")
        a(f"buffer_store_dword v2, v1, s[60:63], 0 offen offset:60")
        a("s_waitcnt vmcnt(0)")
        a.label(lab)

def rnd_pair(d, lo, hi, olo, ohi):
    return [f"v_cvt_pk_bf16_f32 v{d}, v{lo}, v{hi}", f"v_lshlrev_b32 v{olo}, 16, v{d}", f"v_and_b32 v{ohi}, 0xffff0000, v{d}"]

def interleave(a, mfmas, fillers, ngaps):
    tot = sum(c for c, _ in fillers)
    fi, acc = 0, 0.0
    for g, (pre, m, post) in enumerate(mfmas):
        for x in pre: a(x)
        a(m)
        for x in post: a(x)
        lim = tot * min(1.0, (g + 1) / ngaps) if ngaps else tot
        while fi < len(fillers) and acc + fillers[fi][0] * 0.5 <= lim:
            acc += fillers[fi][0]
            for x in fillers[fi][1]: a(x)
            fi += 1
    while fi < len(fillers):
        for x in fillers[fi][1]: a(x)
        fi += 1

def gen_main(a):
    S_C, S_W, S_WS, S_V, S_X, S_WQ, S_DBG = 4, 8, 12, 16, 20, 24, 28
    (sW, sH, sP, sG, sRB, sT, sT2, sCO, sWO, sM0C, sM0W, sOB, sROW, sXO, sQWO, sN1, sS, sMST, sTHR, sM0K, sM0V,
     sBASE, sCT1, sCT2, sWRAP) = range(32, 57)
    sHIST = [57, 58, 59, 60]
    sEV = 62
    PT = 64
    S_T = 76
    sMK = 4
    vL16, vCD, vWD, vAC, vAW, vXD, vQW, vWOT, vKVT = 1, 2, 6, 10, 12, 16, 20, 22, 23
    WFR, CFR, ACC = [32, 48], 64, 128
    sp = Stamps(a, base=80)
    vm = VM()
    a("s_cmp_ge_u32 s2, 256")
    a("s_cbranch_scc1 M_END")
    sp.mark("start")
    a(f"s_load_dwordx2 s[44:45], s[0:1], {KA['c_kv']}")
    a(f"s_load_dwordx4 s[48:51], s[0:1], {KA['w_uk']}")
    a("v_lshrrev_b32 v1, 6, v0")
    a("v_mov_b32 v31, v0")
    a("v_and_b32 v0, 63, v0")
    a(f"v_readfirstlane_b32 s{sW}, v1")
    a(f"s_and_b32 s{sH}, s2, 7")
    a("s_lshr_b32 s3, s2, 6")
    a("s_lshl_b32 s3, s3, 3")
    a(f"s_add_u32 s{sH}, s{sH}, s3")
    a(f"s_bfe_u32 s{sP}, s2, 0x30003")
    a(f"s_lshr_b32 s{sG}, s{sW}, 2")
    a("v_lshrrev_b32 v24, 3, v0")
    a("v_and_b32 v25, 7, v0")
    a("v_lshrrev_b32 v26, 4, v0")
    a("v_xor_b32 v25, v25, v26")
    a("v_lshlrev_b32 v25, 4, v25")
    a("v_xor_b32 v27, 64, v25")
    a(f"v_lshl_add_u32 v{vCD}, v24, 10, v25")
    a(f"v_lshl_add_u32 v{vCD+1}, v24, 10, v27")
    a(f"v_add_u32 v{vCD+1}, {8192-1024}, v{vCD+1}")
    a(f"v_add_u32 v{vCD+2}, {2*(8192-1024)}, v{vCD}")
    a(f"v_add_u32 v{vCD+3}, {2*(8192-1024)}, v{vCD+1}")
    a("v_and_b32 v28, 15, v0")
    a("v_lshlrev_b32 v29, 1, v26")
    a("v_xor_b32 v28, v28, v29")
    a("v_lshlrev_b32 v28, 4, v28")
    a(f"v_lshl_add_u32 v{vWD}, v26, 13, v28")
    a(f"v_add_u32 v{vWD+1}, {4*8192-1024}, v{vWD}")
    a(f"v_xor_b32 v{vWD+2}, 128, v{vWD}")
    a(f"v_add_u32 v{vWD+2}, {2*(4*8192-1024)}, v{vWD+2}")
    a(f"v_add_u32 v{vWD+3}, {4*8192-1024}, v{vWD+2}")
    a(f"s_and_b32 s{sRB}, s{sW}, 3")
    a(f"s_lshl_b32 s{sCO}, s{sP}, 18")
    a(f"s_lshl_b32 s{sT}, s{sW}, 15")
    a(f"s_add_u32 s{sCO}, s{sCO}, s{sT}")
    a(f"s_lshl_b32 s{sWO}, s{sRB}, 17")
    a(f"s_lshl_b32 s{sT}, s{sH}, 8")
    a(f"s_add_u32 s{sWO}, s{sWO}, s{sT}")
    a(f"s_lshl_b32 s{sM0C}, s{sW}, 12")
    a(f"s_add_u32 s{sM0W}, s{sM0C}, 65536")
    a("s_waitcnt lgkmcnt(0)")
    srd(a, S_C, 44, 45, 2 * MB)
    a(f"s_cmp_eq_u32 s{sG}, 0")
    a(f"s_cselect_b32 s{S_W}, s48, s50")
    a(f"s_cselect_b32 s{S_W+1}, s49, s51")
    a(f"s_mov_b32 s{S_W+2}, {4*MB}")
    a(f"s_mov_b32 s{S_W+3}, 0x00020000")
    def kv_dma(st):
        buf = (st & 1) * 32768
        tg = ("kv", st)
        out = [[f"s_add_u32 m0, s{sM0C}, {buf}", f"s_add_u32 s{sT}, s{sCO}, {st*128}",
                (f"buffer_load_dwordx4 v{vCD}, {S4(S_C)}, s{sT} offen lds", tg)]]
        for i in range(1, 4): out.append([(f"buffer_load_dwordx4 v{vCD+i}, {S4(S_C)}, s{sT} offen offset:{i*1024} lds", tg)])
        out.append([f"s_add_u32 m0, s{sM0W}, {buf}", f"s_add_u32 s{sT}, s{sWO}, {st*64*8192}",
                    (f"buffer_load_dwordx4 v{vWD}, {S4(S_W)}, s{sT} offen lds", tg)])
        for i in range(1, 4): out.append([(f"buffer_load_dwordx4 v{vWD+i}, {S4(S_W)}, s{sT} offen offset:{i*1024} lds", tg)])
        return out
    def emit(items):
        for it in items:
            for x in it:
                if isinstance(x, tuple): a(x[0]); vm.add(x[1])
                else: a(x)
    emit(kv_dma(0))
    a(f"s_load_dwordx2 s[44:45], s[0:1], {KA['A_q']}")
    a(f"s_load_dwordx2 s[46:47], s[0:1], {KA['w_q']}")
    a(f"s_load_dwordx4 s[48:51], s[0:1], {KA['dbg']}")
    a(f"s_load_dwordx4 s[{PT}:{PT+3}], s[0:1], {KA['A_k']}")
    a(f"s_load_dwordx4 s[{PT+4}:{PT+7}], s[0:1], {KA['shift']}")
    a(f"s_load_dwordx4 s[{PT+8}:{PT+11}], s[0:1], {KA['w_o']}")
    a(f"v_lshlrev_b32 v{vL16}, 4, v0")
    a("v_mul_u32_u24 v28, 1280, v24")
    a(f"v_add_u32 v{vXD}, v28, v25")
    a(f"v_add_u32 v{vXD+1}, v28, v27")
    a(f"v_add_u32 v{vXD+1}, {8*1280-1024}, v{vXD+1}")
    a(f"v_add_u32 v{vXD+2}, {2*(8*1280-1024)}, v{vXD}")
    a(f"v_add_u32 v{vXD+3}, {2*(8*1280-1024)}, v{vXD+1}")
    a(f"s_and_b32 s3, s{sW}, 1")
    a("s_lshl_b32 s3, s3, 7")
    a(f"v_xor_b32 v{vQW}, s3, v{vWD}")
    a(f"v_add_u32 v{vQW+1}, {4*8192-1024}, v{vQW}")
    emit(kv_dma(1))
    vPF, vPFW, vSC = 116, 115, 117
    if 'nopf' not in OPT:
        a(f"v_lshlrev_b32 v{vPF}, 7, v0")
        a("v_lshrrev_b32 v24, 1, v0")
        a("v_and_b32 v25, 1, v0")
        a("v_lshlrev_b32 v25, 7, v25")
        a(f"v_lshl_add_u32 v{vPFW}, v24, 13, v25")
        a("s_lshl_b32 s3, s2, 13")
        a(f"s_lshl_b32 s{sT}, s{sW}, 10")
        a(f"s_add_u32 s3, s3, s{sT}")
        a("s_mov_b64 exec, 0xff")
        emit([[(f"buffer_load_dword v{vSC}, v{vPF}, {S4(S_C)}, s3 offen sc1", "pf")]])
        a(f"s_lshl_b32 s3, s{sP}, 19")
        a(f"s_add_u32 s3, s3, s{sWO}")
        a("s_mov_b32 exec_lo, -1")
        emit([[(f"buffer_load_dword v{vSC}, v{vPFW}, {S4(S_W)}, s3 offen sc1", "pf")]])
        a("s_mov_b64 exec, -1")
    def frag_addrs(vR, rowoff_sgpr, vWa, nt_sgpr, wbase_sgpr):
        a("v_and_b32 v24, 15, v0")
        a("v_lshrrev_b32 v25, 4, v0")
        a("v_bfe_u32 v26, v0, 1, 3")
        a("v_xor_b32 v26, v26, v25")
        a("v_lshlrev_b32 v26, 4, v26")
        a("v_lshl_add_u32 v26, v24, 7, v26")
        a(f"v_add_u32 v{vR}, s{rowoff_sgpr}, v26")
        a(f"v_xor_b32 v{vR+1}, 64, v{vR}")
        a("v_bfe_u32 v24, v0, 2, 2")
        a("v_lshl_add_u32 v26, v25, 3, v24")
        a("v_lshlrev_b32 v26, 8, v26")
        a("v_and_b32 v27, 3, v0")
        a("v_lshl_add_u32 v26, v27, 3, v26")
        a(f"v_add_u32 v26, s{wbase_sgpr}, v26")
        a("v_and_b32 v25, 1, v25")
        a("v_lshl_add_u32 v24, v25, 2, v24")
        a(f"v_xor_b32 v24, s{nt_sgpr}, v24")
        for nt in range(4):
            a(f"v_xor_b32 v25, {nt}, v24")
            a(f"v_lshl_add_u32 v{vWa+nt}, v25, 5, v26")
    a(f"s_and_b32 s{sT}, s{sW}, 1")
    a(f"s_lshl_b32 s{sT}, s{sT}, 14")
    a(f"s_and_b32 s{sT2}, s{sW}, 2")
    a(f"s_lshl_b32 s{sT2}, s{sT2}, 1")
    a(f"s_lshl_b32 s3, s{sG}, 14")
    a("s_add_u32 s3, s3, 65536")
    frag_addrs(vAC, sT, vAW, sT2, 3)
    WOB = 131072
    a("v_lshrrev_b32 v24, 2, v0")
    a("v_mul_u32_u24 v24, 672, v24")
    a("v_and_b32 v25, 3, v0")
    a("v_lshl_add_u32 v24, v25, 3, v24")
    a(f"s_lshl_b32 s{sT}, s{sW}, 5")
    a(f"s_add_u32 s{sT}, s{sT}, {WOB}")
    a(f"v_add_u32 v{vWOT}, s{sT}, v24")
    if 'kvmap' in OPT:
        a("v_and_b32 v25, 7, v31")
        a("v_lshrrev_b32 v26, 3, v31")
    else:
        a("v_mul_u32_u24 v25, 1639, v31")
        a("v_lshrrev_b32 v25, 16, v25")
        a("v_mul_u32_u24 v26, 40, v25")
        a("v_sub_u32 v26, v31, v26")
    a(f"s_lshr_b32 s{sT}, s2, 3")
    a(f"s_lshl_b32 s{sT}, s{sT}, 6")
    a(f"v_lshl_add_u32 v25, v25, 3, s{sT}")
    a(f"s_and_b32 s{sT2}, s2, 7")
    a(f"s_mul_i32 s{sT2}, s{sT2}, 40")
    a(f"v_add_u32 v26, s{sT2}, v26")
    a("v_mul_u32_u24 v27, 1280, v25")
    a("v_lshl_add_u32 v27, v26, 2, v27")
    a("v_add_u32 v28, 5120, v27")
    a("v_subrev_u32 v29, 3840, v27")
    a(f"v_mov_b32 v30, {OOB}")
    a("v_cmp_eq_u32 vcc, 0, v25")
    a(f"v_lshlrev_b32 v{vKVT}, 13, v26")
    a(f"v_lshl_add_u32 v{vKVT}, v25, 1, v{vKVT}")
    a("v_cndmask_b32 v29, v29, v30, vcc")
    a("v_cmp_gt_u32 vcc, 320, v31")
    a("v_cndmask_b32 v27, v30, v27, vcc")
    a("v_cndmask_b32 v28, v30, v28, vcc")
    a("v_cndmask_b32 v29, v30, v29, vcc")
    a(f"v_cndmask_b32 v{vKVT}, v30, v{vKVT}, vcc")
    a("v_lshlrev_b32 v26, 4, v26")
    a("v_mul_u32_u24 v24, 20, v0")
    a("s_waitcnt lgkmcnt(0)")
    srd(a, S_WS, 50, 51, 64 * MB)
    srd(a, S_V, 50, 51, 16 * MB, WS_VF)
    srd(a, S_X, 44, 45, 2621440)
    srd(a, S_WQ, 46, 47, 5242880)
    srd(a, S_DBG, 48, 49, 256)
    a(f"s_sub_u32 s{sT}, 15, s{sP}")
    a(f"s_lshl_b32 s{sT2}, s{sRB}, 5")
    a(f"s_lshl_b32 s{sCT2}, s{sT}, 7")
    a(f"s_add_u32 s{sCT2}, s{sCT2}, s{sT2}")
    a(f"s_lshl_b32 s{sCT1}, s{sP}, 7")
    a(f"s_add_u32 s{sCT1}, s{sCT1}, s{sT2}")
    a(f"s_cmp_eq_u32 s{sG}, 0")
    a(f"s_cselect_b32 s{sROW}, s{sCT1}, s{sCT2}")
    a(f"s_mul_i32 s{sXO}, s{sROW}, 1280")
    a(f"s_lshl_b32 s{sQWO}, s{sW}, 16")
    a(f"s_lshl_b32 s{sT}, s{sH}, 8")
    a(f"s_add_u32 s{sQWO}, s{sQWO}, s{sT}")
    a(f"s_lshl_b32 s{sT}, s{sH}, 12")
    a(f"s_add_u32 s{sT}, s{sT}, {WS_CTX}")
    for c in (sCT1, sCT2):
        a(f"s_mul_i32 s{c}, s{c}, {CS // 16}")
        a(f"s_add_u32 s{c}, s{c}, s{sT}")
    a(f"s_lshl_b32 s{sOB}, s{sH}, 6")
    a(f"s_lshl_b32 s{sT}, s{sP}, 3")
    a(f"s_add_u32 s{sOB}, s{sOB}, s{sT}")
    a(f"s_and_b32 s{sT}, s{sW}, 1")
    a(f"s_lshl_b32 s{sT}, s{sT}, 2")
    a(f"s_add_u32 s{sOB}, s{sOB}, s{sT}")
    a(f"s_lshl_b32 s{sOB}, s{sOB}, 13")
    a(f"s_bfe_u32 s{sT}, s{sW}, 0x10001")
    a(f"s_add_u32 s{sT2}, s{sG}, 11")
    a(f"s_lshl_b32 s{sT}, s{sT}, s{sT2}")
    a(f"s_add_u32 s{sOB}, s{sOB}, s{sT}")
    a(f"s_lshl_b32 s{sT}, s{sG}, 24")
    a(f"s_add_u32 s{sOB}, s{sOB}, s{sT}")
    a(f"s_lshl_b32 s{sN1}, s{sP}, 2")
    a(f"s_add_u32 s{sN1}, s{sN1}, 4")
    a(f"s_lshl_b32 s{sHIST[0]}, s{sH}, 19")
    a(f"s_lshl_b32 s{sT}, s{sRB}, 11")
    a(f"s_add_u32 s{sHIST[0]}, s{sHIST[0]}, s{sT}")
    a(f"s_lshl_b32 s{sM0K}, s{sW}, 11")
    a(f"s_add_u32 s{sM0V}, s{sM0K}, 65536")
    a(f"s_sub_u32 s{sT2}, s{sN1}, 4")
    a(f"s_sub_u32 s{sWRAP}, s{sN1}, 2")
    a(f"s_sub_u32 s{sWRAP}, s{sWRAP}, s{sG}")
    a(f"s_mov_b32 s{sBASE}, 16384")
    a(f"s_cmp_eq_u32 s{sG}, 0")
    a(f"s_cselect_b32 s{sMST}, s{sT2}, 99")
    a(f"s_cselect_b32 s{sN1}, s{sN1}, 100")
    a(f"s_add_u32 s{sHIST[1]}, s{sHIST[0]}, 8192")
    a(f"s_add_u32 s{sHIST[2]}, s{sHIST[0]}, 16384")
    a(f"s_mov_b64 s[{sEV}:{sEV+1}], {(127 if FUSE else 63) if 'noev' not in OPT else 64}")
    a(f"s_add_u32 s{sT}, s{sMST}, 1")
    a(f"s_lshl_b64 s[{sEV}:{sEV+1}], s[{sEV}:{sEV+1}], s{sT}")
    a(f"s_or_b32 s{sEV}, s{sEV}, 2")
    a(f"s_or_b32 s{sEV+1}, s{sEV+1}, 6")
    a(f"s_mov_b32 s{sTHR}, 0x40004000")
    a(f"s_mov_b32 s{S_T+3}, 0x00020000")
    if 'tlb' in OPT:
        a(f"s_lshl_b32 s{sT}, s{sW}, 2")
        a(f"s_lshr_b32 s3, 0xdba84210, s{sT}")
        a("s_and_b32 s3, s3, 15")
        a("s_lshl_b32 s3, s3, 3")
        a(f"s_load_dwordx2 s[{S_T}:{S_T+1}], s[0:1], s3")
        a(f"s_lshr_b32 s3, 0x5a8a5555, s{sT}")
        a("s_and_b32 s3, s3, 15")
        a(f"s_lshl_b32 s{S_T+2}, s3, 19")
        a("v_lshlrev_b32 v118, 20, v0")
        a("s_lshl_b32 s3, s2, 10")
        a(f"s_lshr_b32 s{sT}, s2, 3")
        a(f"s_lshl_b32 s{sT}, s{sT}, 21")
        a(f"s_lshl_b32 s{sT2}, s{sW}, 12")
        a(f"s_add_u32 s{sT}, s{sT}, s{sT2}")
        a("s_waitcnt lgkmcnt(0)")
        a("s_mov_b64 exec, 0x3f")
        emit([[(f"buffer_load_dword v{vSC}, v118, {S4(S_T)}, s3 offen sc1", "pf")]])
        a("s_mov_b64 exec, 3")
        emit([[(f"buffer_load_dword v{vSC}, v118, {S4(S_WS)}, s{sT} offen sc1", "pf")]])
        a("s_mov_b64 exec, -1")

    XB = [0, 32768, 131072]
    def q_dma_x(k):
        tg = ("q", k)
        out = [[f"s_add_u32 m0, s{sM0C}, {XB[(k+2)%3]}", f"s_add_u32 s{sT}, s{sXO}, {k*128}",
                (f"buffer_load_dwordx4 v{vXD}, {S4(S_X)}, s{sT} offen lds", tg)]]
        for i in range(1, 4): out.append([(f"buffer_load_dwordx4 v{vXD+i}, {S4(S_X)}, s{sT} offen offset:{i*1024} lds", tg)])
        return out
    def q_dma_w(k):
        tg = ("q", k)
        return [[f"s_add_u32 m0, s{sM0V}, {(k%3)*16384}", f"s_add_u32 s{sT}, s{sQWO}, {k*64*8192}",
                 (f"buffer_load_dwordx4 v{vQW}, {S4(S_WQ)}, s{sT} offen lds", tg)],
                [(f"buffer_load_dwordx4 v{vQW+1}, {S4(S_WQ)}, s{sT} offen offset:1024 lds", tg)]]
    GX, GXT, GWT, GW, KR, VR, SH = 80, 84, 85, 86, 90, 101, 110
    def tsrd(lo, size): return [f"s_mov_b32 s{S_T}, s{lo}", f"s_mov_b32 s{S_T+1}, s{lo+1}", f"s_mov_b32 s{S_T+2}, {size}"]
    def side_loads():
        L = []
        it = tsrd(PT + 8, 5242880) + [f"s_lshr_b32 s3, s2, 1", "s_lshl_b32 s3, s3, 5", f"s_lshl_b32 s{sT2}, s{sW}, 2",
              f"s_add_u32 s3, s3, s{sT2}", "s_mul_i32 s3, s3, 1280", f"s_and_b32 s{sS}, s2, 1", f"s_mul_i32 s{sS}, s{sS}, 640",
              f"s_add_u32 s3, s3, s{sS}", f"s_mul_i32 s{sT2}, s{sT2}, 672", "s_mov_b32 exec_hi, 0xff"]
        for i in range(4):
            it += [f"s_add_u32 m0, s{sT2}, {WOB+672*i}", f"s_add_u32 s{sS}, s3, {1280*i}",
                   (f"buffer_load_dwordx4 v{vL16}, {S4(S_T)}, s{sS} offen lds", "prA")]
        it += ["s_mov_b32 exec_hi, -1"]
        L.append(it)
        L.append(["s_lshl_b32 s3, s2, 3", f"s_add_u32 s3, s3, s{sW}", "s_mul_i32 s3, s3, 1280",
                  (f"buffer_load_dwordx4 {vr(GX,4)}, v24, {S4(S_X)}, s3 offen", "prA"),
                  (f"buffer_load_dword v{GXT}, v24, {S4(S_X)}, s3 offen offset:16", "prA")])
        L.append(tsrd(PT + 10, 1280) + [(f"buffer_load_dwordx4 {vr(GW,4)}, v24, {S4(S_T)}, 0 offen", "prA"),
                  (f"buffer_load_dword v{GWT}, v24, {S4(S_T)}, 0 offen offset:16", "prA")])
        L.append(tsrd(PT + 4, 5120) + [(f"buffer_load_dwordx4 {vr(SH,4)}, v26, {S4(S_T)}, 0 offen", "pr")])
        for j in range(11):
            o = f"v29, {S4(S_T)}, 0 offen offset:{1280*j}" if j < 3 else f"v{27 if j < 7 else 28}, {S4(S_T)}, 0 offen offset:{1280*((j-3)%4)}"
            L.append((tsrd(PT, 2621440) if j == 0 else []) + [(f"buffer_load_dword v{KR+j}, {o}", "pr")])
        for j in range(8):
            L.append((tsrd(PT + 2, 2621440) if j == 0 else []) +
                     [(f"buffer_load_dword v{VR+j}, v{27 if j < 4 else 28}, {S4(S_T)}, 0 offen offset:{1280*(j%4)}", "pr")])
        if 'nohpf' not in OPT:
            L.append(tsrd(PT + 6, 2621440) + ["s_lshr_b32 s3, s2, 1", "s_mul_i32 s3, s3, 5", f"s_and_b32 s{sT2}, s2, 1", f"s_mul_i32 s{sT2}, s{sT2}, 3",
                      f"s_add_u32 s3, s3, s{sT2}", f"s_add_u32 s3, s3, s{sW}", "s_lshl_b32 s3, s3, 12", f"s_cmp_ge_u32 s{sW}, 3",
                      f"s_cselect_b32 s3, {OOB}, s3", "s_mov_b32 exec_hi, 0",
                      (f"buffer_load_dword v109, v{vPF}, {S4(S_T)}, s3 offen sc1", "pr"), "s_mov_b32 exec_hi, -1"])
        if 'nopf' not in OPT:
            L.insert(0, [f"s_lshl_b32 s3, s{sP}, 3", f"s_add_u32 s3, s3, s{sW}", f"s_mul_i32 s3, s3, {10*8192}", f"s_lshl_b32 s{sT2}, s{sH}, 8",
                      f"s_add_u32 s3, s3, s{sT2}", "s_mov_b64 exec, 0xfffff",
                      (f"buffer_load_dword v{vPFW}, v{vPFW}, {S4(S_WQ)}, s3 offen sc1", "pfq"), "s_mov_b64 exec, -1"])
        return L

    def side_jobs():
        L = []
        t0, t1, t2, t3, t4, t5 = 24, 25, 26, 27, 28, 29
        for i in range(3):
            L.append([f"ds_read_b64_tr_b16 v[{116+4*i}:{117+4*i}], v{vWOT} offset:{256*i}"])
            L.append([f"ds_read_b64_tr_b16 v[{118+4*i}:{119+4*i}], v{vWOT} offset:{256*i+16*672}"])
        L.append([f"v_mov_b32 v{t0}, 0"])
        for x, w in [(GX + i, GW + i) for i in range(4)] + [(GXT, GWT)]:
            L += [[s] for s in [f"v_lshlrev_b32 v{t1}, 16, v{x}", f"v_and_b32 v{t2}, 0xffff0000, v{x}",
                                f"v_lshlrev_b32 v{t3}, 16, v{w}", f"v_and_b32 v{t4}, 0xffff0000, v{w}",
                                f"v_mul_f32 v{t1}, v{t1}, v{t3}", f"v_mul_f32 v{t2}, v{t2}, v{t4}"] + rnd_pair(t3, t1, t2, t1, t2) +
                               [f"v_add_f32 v{t0}, v{t0}, v{t1}", f"v_add_f32 v{t0}, v{t0}, v{t2}"]]
        for m in ("row_shr:1", "row_shr:2", "row_shr:4", "row_shr:8"):
            L.append([f"v_add_f32_dpp v{t0}, v{t0}, v{t0} {m} row_mask:0xf bank_mask:0xf bound_ctrl:0"])
        L.append([f"v_add_f32_dpp v{t0}, v{t0}, v{t0} row_bcast:15 row_mask:0xa bank_mask:0xf"])
        L.append([f"v_add_f32_dpp v{t0}, v{t0}, v{t0} row_bcast:31 row_mask:0xc bank_mask:0xf"])
        L += [[s] for s in rnd_pair(t1, t0, t0, t0, t2)[:2] +
              [f"v_mul_f32 v{t0}, 0xbfb8aa3b, v{t0}", f"v_exp_f32 v{t0}, v{t0}", f"v_cmp_eq_u32 vcc, 63, v0",
               f"v_add_f32 v{t0}, 1.0, v{t0}", f"v_rcp_f32 v{t0}, v{t0}", f"v_cndmask_b32 v{t2}, v30, 0, vcc"] +
              rnd_pair(t1, t0, t0, t0, t3)[:2]]
        L.append(["s_lshl_b32 s3, s2, 3", f"s_add_u32 s3, s3, s{sW}", "s_lshl_b32 s3, s3, 2", f"s_add_u32 s3, s3, {WS_G}",
                  (f"buffer_store_dword v{t0}, v{t2}, {S4(S_WS)}, s3 offen{' sc1' if FUSE else ''}", "pr2")])
        if not FUSE: L.append(["s_lshr_b32 s3, s2, 5", "s_lshl_b32 s3, s3, 12", f"s_and_b32 s{sT2}, s2, 31", f"s_lshl_b32 s{sT2}, s{sT2}, 2",
                  f"s_add_u32 s3, s3, s{sT2}", f"s_add_u32 s3, s3, {WS_FLG}", f"v_mov_b32 v{t1}, 0",
                  (f"buffer_store_dword v{t1}, v{t2}, {S4(S_WS)}, s3 offen{' sc1' if FUSE else ''}", "pr2")])
        L.append(["s_and_b32 s3, s2, 1", "s_mul_i32 s3, s3, 20", f"s_add_u32 s3, s3, s{sW}", f"s_mul_i32 s3, s3, {CS}",
                  f"s_lshr_b32 s{sT2}, s2, 1", f"s_lshl_b32 s{sT2}, s{sT2}, 10", f"s_add_u32 s3, s3, s{sT2}",
                  f"s_add_u32 s3, s3, {WS_WOT}", (f"buffer_store_dwordx4 v[116:119], v{vL16}, {S4(S_WS)}, s3 offen{' sc1' if FUSE else ''}", "pr2")])
        L.append([f"s_add_u32 s3, s3, {8*CS}", (f"buffer_store_dwordx4 v[120:123], v{vL16}, {S4(S_WS)}, s3 offen{' sc1' if FUSE else ''}", "pr2")])
        L.append([f"s_add_u32 s3, s3, {8*CS}", f"s_cmp_ge_u32 s{sW}, 4", f"s_cselect_b32 s3, {OOB}, s3",
                  (f"buffer_store_dwordx4 v[124:127], v{vL16}, {S4(S_WS)}, s3 offen{' sc1' if FUSE else ''}", "pr2")])
        W = 80
        for c in range(2):
            for q in range(2):
                L.append([f"v_lshlrev_b32 v{W+4*c+2*q}, 16, v{SH+2*c+q}"])
                L.append([f"v_and_b32 v{W+4*c+2*q+1}, 0xffff0000, v{SH+2*c+q}"])
        KL, KH = [110, 111, 112, 113], [88, 89, 109, 114]
        def unp(j): return [f"v_lshlrev_b32 v{KL[j%4]}, 16, v{KR+j}", f"v_and_b32 v{KH[j%4]}, 0xffff0000, v{KR+j}"]
        for j in range(3): L += [[s] for s in unp(j)]
        for s in range(8):
            ops = unp(s + 3)
            ops += [f"v_mul_f32 v{t0}, v{KL[s%4]}, v{W+3}", f"v_mul_f32 v{t1}, v{KH[s%4]}, v{W+7}"]
            for j in (2, 1, 0):
                ops += [f"v_fmac_f32 v{t0}, v{KL[(s+3-j)%4]}, v{W+j}", f"v_fmac_f32 v{t1}, v{KH[(s+3-j)%4]}, v{W+4+j}"]
            ops += [f"v_lshlrev_b32 v{t3}, 16, v{VR+s}", f"v_and_b32 v{t4}, 0xffff0000, v{VR+s}"]
            if s % 2 == 0:
                ops += [f"v_mul_f32 v118, v{t0}, v{t3}", f"v_mul_f32 v119, v{t1}, v{t4}"]
            else:
                ops += [f"v_mul_f32 v{t0}, v{t0}, v{t3}", f"v_mul_f32 v{t1}, v{t1}, v{t4}",
                        f"v_cvt_pk_bf16_f32 v{120+s//2}, v118, v{t0}", f"v_cvt_pk_bf16_f32 v{124+s//2}, v119, v{t1}"]
            L += [[x] for x in ops]
        L.append([f"s_mov_b32 s3, {WS_KVT}", (f"buffer_store_dwordx4 v[120:123], v{vKVT}, {S4(S_WS)}, s3 offen{' sc1' if FUSE else ''}", "pr2")])
        L.append([f"s_mov_b32 s3, {WS_KVT+4096}", (f"buffer_store_dwordx4 v[124:127], v{vKVT}, {S4(S_WS)}, s3 offen{' sc1' if FUSE else ''}", "pr2")])
        return L

    def kdma(e, tg):
        return [[f"s_add_u32 m0, s{sM0K}, {(e & 3) * 16384}", "s_nop 0",
                 (f"buffer_load_dwordx4 v{vL16}, {S4(S_WS)}, s{sHIST[e&3]} offen sc1 lds", tg)],
                [(f"buffer_load_dwordx4 v{vL16}, {S4(S_WS)}, s{sHIST[e&3]} offen offset:1024 sc1 lds", tg)]]
    vPOLL, vZERO, vFL = 24, 25, 26
    vCL = 31
    def only(wave, body, extra=None):
        lab = a.uid("ONLY")
        a(f"s_cmp_lg_u32 s{sW}, {wave}")
        a(f"s_cbranch_scc1 {lab}")
        if extra:
            a(extra); a(f"s_cbranch_scc1 {lab}")
        for x in body: a(x)
        a.label(lab)
    def clear_line():
        body = [f"s_lshl_b32 s3, s{sH}, 12", f"s_add_u32 s3, s3, {WS_FL2 - WS_FLG}", "v_lshl_add_u32 v116, v0, 2, s3",
                f"s_lshl_b32 s3, s{sH}, 2", f"s_add_u32 s3, s3, {WS_FL3 - WS_FLG - 16 * 4096}", "v_lshl_add_u32 v118, v0, 12, s3",
                "v_cmp_le_u32 vcc, 16, v0", "v_and_b32 v119, 7, v0", "v_lshl_add_u32 v119, v119, 3, s2", "v_cndmask_b32 v116, v116, v118, vcc",
                "v_lshrrev_b32 v118, 5, v119", "v_and_b32 v119, 31, v119", "v_lshlrev_b32 v119, 2, v119", "v_lshl_add_u32 v118, v118, 12, v119",
                "v_cmp_le_u32 vcc, 32, v0", f"v_mov_b32 v{vCL}, 0", f"s_mov_b32 s3, {WS_FLG}", "v_cndmask_b32 v116, v116, v118, vcc",
                f"buffer_store_dword v{vCL}, v116, {S4(S_WS)}, s3 offen sc1"]
        only(3, body, f"s_cmp_lg_u32 s{sP}, 0")
    def clean_set():
        only(3, ["s_mov_b64 exec, 1", "v_mov_b32 v117, 1", f"s_lshl_b32 s3, s{sH}, 2",
                 f"buffer_store_dword v117, v{vCL}, {S4(S_DBG)}, s3 offen offset:128 sc1", "s_mov_b64 exec, -1"], f"s_cmp_lg_u32 s{sP}, 0")
    def clean_issue(site):
        a(f"s_bfe_u32 s{sT2}, s2, 0x10003")
        only(2, [f"v_and_b32 v{vCL}, 31, v0", f"v_lshlrev_b32 v{vCL}, 2, v{vCL}",
                 f"buffer_load_dword v{vCL}, v{vCL}, {S4(S_DBG)}, 0 offen offset:128 sc1"], f"s_cmp_lg_u32 s{sT2}, {site}")
    def clean_check():
        lab = a.uid("CLN")
        a(f"s_cmp_lg_u32 s{sW}, 2")
        a(f"s_cbranch_scc1 {lab}D")
        a(f"s_mov_b32 s{sT2}, 0")
        a(f"s_branch {lab}C")
        a.label(lab)
        a("s_sleep 32")
        a(f"buffer_load_dword v{vCL}, v{vFL}, {S4(S_DBG)}, 0 offen offset:128 sc1")
        a("s_waitcnt vmcnt(0)")
        a.label(lab + "C")
        a(f"v_cmp_eq_u32 vcc, 0, v{vCL}")
        a(f"s_add_u32 s{sT2}, s{sT2}, 1")
        a(f"s_cbranch_vccz {lab}D")
        a(f"s_cmp_lt_u32 s{sT2}, 100000")
        a(f"s_cbranch_scc1 {lab}")
        a.label(lab + "D")
    def publish(wave, which):
        only(wave, ["s_mov_b64 exec, 1", f"v_mov_b32 v{vPOLL}, 1", f"s_lshl_b32 s3, s{sH}, 10", f"s_add_u32 s3, s3, s{sP}",
                    "s_lshl_b32 s3, s3, 2", f"s_add_u32 s3, s3, {WS_FL2 + 32 * which}",
                    f"buffer_store_dword v{vPOLL}, v{vZERO}, {S4(S_WS)}, s3 offen sc1", "s_mov_b64 exec, -1"])
    def line_addr(ctx0): return [f"s_mov_b32 s3, {WS_FL3}"] if ctx0 else [f"s_lshl_b32 s3, s{sH}, 12", f"s_add_u32 s3, s3, {WS_FL2}"]
    def poll_issue(wave, ctx0=False):
        only(wave, line_addr(ctx0) + [
                    f"buffer_load_dword v{vPOLL}, v{vFL}, {S4(S_WS)}, s3 offen sc1"])
    def poll(wave, need, vmw, ctx0=False):
        if 'nopoll' in OPT: return
        lab = a.uid("POLL")
        a(f"s_cmp_lg_u32 s{sW}, {wave}")
        a(f"s_cbranch_scc1 {lab}D")
        for x in line_addr(ctx0): a(x)
        a(f"s_mov_b32 s{sT2}, 0")
        a(f"s_waitcnt vmcnt({vmw})")
        a(f"s_branch {lab}C")
        a.label(lab)
        a(f"s_sleep {OPT.get('sleep', 8)}")
        a(f"buffer_load_dword v{vPOLL}, v{vFL}, {S4(S_WS)}, s3 offen sc1")
        a("s_waitcnt vmcnt(0)")
        a.label(lab + "C")
        a(f"v_cmp_eq_u32 vcc, 0, v{vPOLL}")
        a(f"s_add_u32 s{sT2}, s{sT2}, 1")
        a(f"s_and_b32 s{S_T}, vcc_lo, {need}")
        a(f"s_cbranch_scc0 {lab}D")
        a(f"s_cmp_lt_u32 s{sT2}, 100000")
        a(f"s_cbranch_scc1 {lab}")
        a.label(lab + "D")

    if 'ipf' in OPT:
        only(6, ["s_getpc_b64 s[80:81]" if not STAMP else "s_getpc_b64 s[100:101]",
                 "s_lshr_b32 s3, s2, 3", "s_mul_i32 s3, s3, 3072", "v_lshl_add_u32 v118, v0, 7, s3",
                 "v_min_u32 v118, CODE_SPAN, v118",
                 f"v_mov_b32 v119, s{81 if not STAMP else 101}", f"v_add_co_u32 v118, vcc, s{80 if not STAMP else 100}, v118", "v_addc_co_u32 v119, vcc, 0, v119, vcc",
                 "s_mov_b64 exec, 0xffffff", "global_load_dword v120, v[118:119], off sc1", "s_mov_b64 exec, -1"])
        a.label("M_IPF")
    a(f"s_waitcnt vmcnt({vm.wait(('kv', 0))})")
    a("s_barrier")
    sp.mark("kv0")
    a(f"s_cmp_lg_u32 s{sG}, 0")
    a("s_cbranch_scc1 M_KVV")
    vm0 = list(vm.tags)
    spn = sp.n
    vAX, vAQ, vST = 2, 6, 10
    QA = 128
    PK = lambda z: (240 + 4 * z) if z < 4 else (80 + 4 * (z - 4))
    endwait = []
    for part in range(2):
        if part: a.label("M_KVV")
        vm.tags = list(vm0)
        sp.n = spn
        S = Stream(a, vm, dist=int(OPT.get('kd', 12)), per_gap=int(OPT.get('kpg', 2)), bar_delay=int(OPT.get('kbd', 3)))
        S.fill_rate = float(OPT.get('fr', 1.0))
        rl = []
        sl = side_loads()
        SH0 = int(OPT.get('sh0', 0))
        for st in range(8):
            buf = (st & 1) * 32768
            for u in range(2):
                x = 2 * st + u
                for nt in range(4):
                    for hf in range(2):
                        rg = WFR[x & 1] + 4 * nt + 2 * hf
                        rl.append((32 * x + nt - 6, ("w", x, nt, hf),
                                   f"ds_read_b64_tr_b16 {vr(rg,2)}, v{vAW+nt} offset:{buf+u*8192+hf*1024}", rg, st))
                for kt in range(8):
                    rg = CFR + 4 * (kt % int(OPT.get('kring', 4)))
                    rl.append((32 * x + 4 * kt, ("c", x, kt), f"ds_read_b128 {vr(rg,4)}, v{vAC+u} offset:{buf+kt*2048}", rg, st))
                    for nt in range(4):
                        idx = kt * 4 + nt if part == 0 else ((kt >> 1) * 4 + nt) * 2 + (kt & 1)
                        acc = vr(ACC + 4 * idx, 4)
                        w, c = vr(WFR[x & 1] + 4 * nt, 4), vr(rg, 4)
                        cin = "0" if x == 0 else acc
                        S.op(f"{MFMA16} {acc}, {w}, {c}, {cin}" if part == 0 else f"{MFMA16} {acc}, {c}, {w}, {cin}",
                             [("w", x, nt, 0), ("w", x, nt, 1), ("c", x, kt)])
            after = kv_dma(st + 2) if st < 6 else []
            if st == 5: after = after + q_dma_x(0)
            if st == 6: after = q_dma_w(0) + q_dma_x(1) + q_dma_w(1)
            if st == 7: after = q_dma_x(2) + q_dma_w(2)
            if part == 1: after = [[] for _ in range(int(OPT.get('stag', 14)))] + after
            if 'noside' not in OPT:
                if st == SH0: after = after + sl[1:5]
                if st == SH0 + 1: after = after + sl[5:16]
                if st == SH0 + 2: after = after + sl[16:] + sl[0:1]
            if part == 0:
                if st == 0: after = after + [clear_line]
                if st == 2: after = [clean_set] + after
                if st in (4, 5): after = after + [lambda st=st: clean_issue(st - 4)]
            tags = [("kv", st + 1)] if st < 7 else [("q", 0)]
            if st == 2: tags += ["pf"]
            if st == SH0 + 2: tags += ["prA"]
            if st == SH0 + 4: tags += ["pr", "pfq"]
            after = [lambda st=st: sp.mark(f"k{st}")] + after
            S.barrier_after_stage(st, tags, after)
        rl.sort(key=lambda r: (r[4], r[0]))
        for r in rl: S.read(r[1], r[2], r[3], r[4], r[0])
        sj = side_jobs()
        nk = [i for i, it in enumerate(sj) if f"v_lshlrev_b32 v80, 16, v{SH}" in it][0]
        if 'noside' in OPT: sj = []
        for it in sj[:nk]: S.filler((SH0 + 3) * 64 + 24, 1, it)
        for it in sj[nk:]: S.filler((SH0 + 5) * 64, 1, it)
        S.run([0])
        sp.mark("kv")
        a(f"s_lshr_b32 s{sT}, s{sW}, 1")
        a(f"s_lshl_b32 s{sT}, s{sT}, 13")
        a(f"s_and_b32 s{sT2}, s{sW}, 1")
        a(f"s_lshl_b32 s{sT2}, s{sT2}, 2")
        a("s_mov_b32 s3, 65536")
        frag_addrs(vAX, sT, vAQ, sT2, 3)
        a(f"v_add_u32 v{vAX+2}, 131072, v{vAX}")
        a(f"v_add_u32 v{vAX+3}, 131072, v{vAX+1}")
        S = Stream(a, vm, dist=10, per_gap=2, bar_delay=3)
        S.fill_rate = 1.0
        rl = []
        EARLYV = 'latev' not in OPT
        KPUB, VPUB = int(OPT.get('kpub', 4)), int(OPT.get('vpub', 8 if EARLYV else 9))
        for k in range(10):
            xb = XB[(k + 2) % 3]
            for u in range(2):
                x = 2 * k + u
                for nt in range(4):
                    for hf in range(2):
                        rg = WFR[x & 1] + 4 * nt + 2 * hf
                        rl.append((16 * x + nt - 5, ("w", x, nt, hf),
                                   f"ds_read_b64_tr_b16 {vr(rg,2)}, v{vAQ+nt} offset:{(k%3)*16384+u*8192+hf*1024}", rg, k))
                for qi in range(4):
                    rg = CFR + 4 * qi
                    av = vAX + u + (2 if xb == 131072 else 0)
                    rl.append((16 * x + 4 * qi, ("c", x, qi), f"ds_read_b128 {vr(rg,4)}, v{av} offset:{(xb%131072)+qi*2048}", rg, k))
                    for nt in range(4):
                        acc = vr(QA + 4 * (qi * 4 + nt), 4)
                        S.op(f"{MFMA16} {acc}, {vr(WFR[x&1]+4*nt,4)}, {vr(rg,4)}, {'0' if x == 0 else acc}",
                             [("w", x, nt, 0), ("w", x, nt, 1), ("c", x, qi)])
            tags, after, pre = [("q", k + 1)], [], None
            if k + 3 <= 9: after = q_dma_x(k + 3) + q_dma_w(k + 3)
            if k == 0 and part == 0: pre = clean_check
            if k == KPUB: tags.append("pr2")
            if k == KPUB and part == 0: tags.append("st"); after = [lambda: publish(0, 0)] + after
            KP = int(OPT.get('kpoll', 7))
            if k == KP - 1 and part == 0: after = [lambda: (poll_issue(1), vm.add("mark"), vm.ghost.add("mark"))] + after
            if k == KP:
                if part == 0: pre = lambda: poll(1, 1, vm.wait("mark"))
                after = kdma(0, "k0") + kdma(1, "k0")
            if k == 8: after = after + kdma(2, "k2")
            if k == 9: tags = []
            if k == VPUB and part == 1: tags.append("st"); after = [lambda: publish(4, 1)] + after
            if k == 9 and part == 1 and EARLYV: after = after + [lambda: poll_issue(5)]
            after = [lambda k=k: sp.mark(f"q{k}")] + after
            S.barrier_after_stage(k, tags, after, pre)
        rl.sort(key=lambda r: (r[4], r[0]))
        for r in rl: S.read(r[1], r[2], r[3], r[4], r[0])
        npre = 10
        for r in rl[:npre]: a(r[2])
        a(f"v_add_u32 v{vST}, {4096 >> part}, v{vL16}")
        a(f"v_mov_b32 v{vZERO}, 0")
        a(f"v_and_b32 v{vFL}, 31, v0")
        a(f"v_lshlrev_b32 v{vFL}, 2, v{vFL}")
        for z in list(range(4, 16)) + list(range(4)):
            for e in range(4):
                a(f"v_cvt_pk_bf16_f32 v{PK(z)+e}, v{ACC+8*z+2*e}, v{ACC+8*z+2*e+1}")
        SC = " " + OPT.get('stsc', 'sc1').replace('_', ' ')
        st0, stp = (2, int(OPT.get('stp', 5))) if part == 0 else (int(OPT.get('vst', 84)), int(OPT.get('stpv', 8)))
        for z in range(16 if 'nost' not in OPT else 1):
            j, c = z >> 2, z & 3
            S.filler(st0 + stp * z, 1, [f"s_add_u32 s3, s{sOB}, {j*8192}",
                     (f"buffer_store_dwordx4 {vr(PK(z),4)}, v{vST if c >> 1 else vL16}, {S4(S_WS)}, s3 offen offset:{(c&1)*1024}{SC}", "st")])
        S.run([0], preissued=npre)
        endwait.append(vm.wait("k0"))
        if part == 0: a("s_branch M_KVD")
    a.label("M_KVD")
    sp.mark("q")
    vKA, vVA, vD0, vQ2 = 2, 3, 4, 5
    FR, T, P, SS, O, Q, NEGM = 32, 64, [80, 88], [96, 112], 128, 192, 224
    LS, ONES, vTA, vX0, vNINF = 248, 232, 236, 238, 246
    BIAS = 12.0
    D = int(OPT.get('D', 5))
    a(f"s_mov_b32 s{sT}, {f32hex(1.4426950408889634 * 128 ** -0.5)}")
    a(f"s_lshr_b32 s{sT2}, s{sW}, 1")
    a(f"s_lshl_b32 s{sT2}, s{sT2}, 14")
    a(f"s_and_b32 s3, s{sW}, 1")
    a("s_lshl_b32 s3, s3, 11")
    a(f"s_add_u32 s{sT2}, s{sT2}, s3")
    a(f"s_add_u32 s{sT2}, s{sT2}, 98304")
    a(f"v_add_u32 v6, s{sT2}, v{vL16}")
    a(f"s_lshl_b32 s{sT2}, s{sW}, 13")
    a(f"s_add_u32 s{sT2}, s{sT2}, 98304")
    a(f"v_add_u32 v{vQ2}, s{sT2}, v{vL16}")
    a(f"s_lshl_b32 s{sT2}, s{sG}, 13")
    a(f"v_add_u32 v{vKA}, s{sT2}, v{vL16}")
    a(f"v_add_u32 v{vVA}, 65536, v{vKA}")
    for f in range(8):
        for e in range(4):
            r = QA + 8 * f + 2 * e
            a(f"v_mul_f32 v{r}, s{sT}, v{r}")
            a(f"v_mul_f32 v{r+1}, s{sT}, v{r+1}")
            a(f"v_cvt_pk_bf16_f32 v{Q+4*f+e}, v{r}, v{r+1}")
        a(f"ds_write_b128 v6, {vr(Q+4*f,4)} offset:{(f>>1)*4096+(f&1)*1024}")
    a("v_and_b32 v7, 15, v0")
    a("v_lshrrev_b32 v8, 4, v0")
    a(f"s_lshl_b32 s{sT}, s{sRB}, 5")
    a(f"v_add_u32 v{vD0}, s{sT}, v7")
    a("v_lshlrev_b32 v8, 2, v8")
    a(f"v_sub_u32 v{vD0}, v{vD0}, v8")
    a(f"v_mov_b32 v{vNINF}, 0xff800000")
    for r in range(8): a(f"v_mov_b32 v{NEGM+r}, 0")
    for r in range(4): a(f"v_mov_b32 v{ONES+r}, 0x3f803f80")
    if EARLYV: poll(5, 0x101, 0)
    a(f"s_waitcnt vmcnt({min(endwait)}) lgkmcnt(0)")
    a("s_barrier")
    if not EARLYV: poll_issue(5)
    sp.mark("qx")
    def kread(e, t): return f"ds_read_b128 {vr(FR+4*t,4)}, v{vKA} offset:{(e&3)*16384+t*1024}"
    def vread(e, i): return f"ds_read_b128 {vr(FR+4*i,4)}, v{vVA} offset:{(e&3)*16384+i*1024}"
    for f in range(8): a(f"ds_read_b128 {vr(Q+4*f,4)}, v{vQ2} offset:{f*1024}")
    for i in range(D): a(kread(0, i))
    a(f"s_mov_b32 s{sS}, 0")

    handlers = []
    def xreduce(op, x, tmp):
        a(f"v_mov_b32 v{tmp}, v{x}")
        a(f"v_permlane16_swap_b32 v{x}, v{tmp}")
        a(f"{op} v{x}, v{x}, v{tmp}")
        a(f"v_mov_b32 v{tmp}, v{x}")
        a(f"v_permlane32_swap_b32 v{x}, v{tmp}")
        a(f"{op} v{x}, v{x}, v{tmp}")
    def rowmax(dst, tmp, src):
        a(f"v_max3_f32 v{dst}, v{src}, v{src+1}, v{src+2}")
        a(f"v_max3_f32 v{dst}, v{dst}, v{src+3}, v{src+4}")
        a(f"v_max3_f32 v{dst}, v{dst}, v{src+5}, v{src+6}")
        a(f"v_max_f32 v{dst}, v{dst}, v{src+7}")
        xreduce("v_max_f32", dst, tmp)
    def sm_ops(Sc, Pw):
        f = []
        def post(q):
            f.append((1, [f"v_cvt_pk_bf16_f32 v{Pw+q//2}, v{T+q%8}, v{T+(q+1)%8}"]))
            k = q // 2
            if k == 3: f.append((1, [f"v_or3_b32 v{vTA}, v{Pw}, v{Pw+1}, v{Pw+2}"]))
            if k == 5: f.append((1, [f"v_or3_b32 v{vTA}, v{vTA}, v{Pw+3}, v{Pw+4}"]))
            if k == 7:
                f.append((1, [f"v_or3_b32 v{vTA}, v{vTA}, v{Pw+5}, v{Pw+6}"]))
                f.append((1, [f"v_bitop3_b32 v{vTA}, v{vTA}, v{Pw+7}, s{sTHR} bitop3:0xa8"]))
        for r in range(16):
            f.append((2, [f"v_exp_f32 v{T+r%8}, v{Sc+r}"]))
            if r % 2 == 1 and r >= 3: post(r - 3)
        post(14)
        return f
    def store_ctx(qis, sct, obase):
        n = 0
        for qi in qis:
            for u in range(4):
                d = T + (n % 4) * 4
                n += 1
                src = obase(qi) + 8 * u
                for e in range(4): a(f"v_cvt_pk_bf16_f32 v{d+e}, v{src+2*e}, v{src+2*e+1}")
                if u == 0 and qi == 1 and len(qis) == 2: a(f"s_add_u32 s{sct}, s{sct}, {CS}")
                a(f"buffer_store_dwordx4 {vr(d,4)}, v{vL16}, {S4(S_WS)}, s{sct} offen offset:{u*1024}{' sc1' if FUSE else ''}")

    def slot(j, name, qk=True, sm=True, pv=True, nxt="k", dma=True, last=False, vlist=None, prefetched=True, prebar=None, vmw=4, fresh=False):
        par = j & 1
        if vlist is None: vlist = [j]
        Sc, Sn, Pw, Pr = SS[1 - par], SS[par], P[1 - par], P[par]
        a.label(name)
        if sm or pv:
            a(f"s_bitcmp1_b64 s[{sEV}:{sEV+1}], s{sS}")
            a(f"s_cbranch_scc1 {name}_EV")
            a.label(name + "_GO")
            handlers.append(("ev", name, Sc))
        ms = []
        if qk:
            for t in range(8):
                kt, u = t >> 2, t & 3
                mm = []
                for qi in range(2):
                    d = vr(Sn + 8 * qi + 4 * kt, 4)
                    mm.append(f"{MFMA16} {d}, {vr(FR+4*t,4)}, {vr(Q+16*qi+4*u,4)}, {vr(NEGM+4*qi,4) if u == 0 else d}")
                ms.append((mm, kread(j, t)))
        if pv:
            for i in range(8):
                mm = []
                for qi in range(2):
                    o = vr(O + 32 * qi + 4 * i, 4)
                    mm.append(f"{MFMA16} {o}, {vr(FR+4*i,4)}, {vr(Pr+4*qi,4)}, {'0' if fresh else o}")
                ms.append((mm, vread(j - 2, i)))
        rd = [m[1] for m in ms]
        if nxt == "k": rd += [kread(j + 1, i) for i in range(D)]
        elif nxt == "v": rd += [vread(j - 1, i) for i in range(D)]
        dm = []
        def vd(e): return [[f"s_add_u32 m0, s{sM0V}, {(e & 3) * 16384}", "s_nop 0",
                            f"buffer_load_dwordx4 v{vL16}, {S4(S_V)}, s{sHIST[e&3]} offen sc1 lds"],
                           [f"buffer_load_dwordx4 v{vL16}, {S4(S_V)}, s{sHIST[e&3]} offen offset:1024 sc1 lds"]]
        if dma and not ('nodma' in OPT and name.startswith('AT_L')):
            for e in vlist: dm += vd(e)
            h0, h1 = sHIST[(j + 3) & 3], sHIST[(j + 2) & 3]
            pre = [f"s_cmp_ge_u32 s{sS}, s{sWRAP}", f"s_cselect_b32 s{sT}, s{sBASE}, 8192", f"s_add_u32 s{sT}, s{sT}, s{h1}",
                   f"s_add_u32 m0, s{sM0K}, {((j + 3) & 3) * 16384}", f"s_cmp_ge_u32 s{sS}, 31", f"s_cselect_b32 s{h0}, {OOB}, s{sT}"]
            dm.append(pre + [f"buffer_load_dwordx4 v{vL16}, {S4(S_WS)}, s{h0} offen sc1 lds"])
            dm.append([f"buffer_load_dwordx4 v{vL16}, {S4(S_WS)}, s{h0} offen offset:1024 sc1 lds"])
        groups = []
        n = len(ms)
        if not prefetched:
            for x in rd[:D]: a(x)
        dpos = list(range(1, n, 2)) if len(dm) <= n // 2 else list(range(n))
        for m in range(n):
            pre = []
            if m % 2 == 0:
                out = min(len(rd), m + D) - (m + 2)
                pre.append(f"s_waitcnt lgkmcnt({max(out, 0)})")
            post = [rd[m + D]] if m + D < len(rd) else []
            if 'halfread' in OPT and (m + D) % 2 == 1: post = []
            if m in dpos and dpos.index(m) < len(dm): post += dm[dpos.index(m)]
            groups.append((pre, ms[m][0][0], []))
            groups.append(([], ms[m][0][1], post))
            if pv and m == n - 5:
                for qi in range(2): groups.append(([], f"{MFMA16} {vr(LS+4*qi,4)}, {vr(ONES,4)}, {vr(Pr+4*qi,4)}, {'0' if fresh else vr(LS+4*qi,4)}", []))
        interleave(a, groups, sm_ops(Sc, Pw) if (sm and 'nosm' not in OPT) else [], max(2 * n - 2, 1))
        if sm:
            a(f"v_cmp_ne_u32 vcc, 0, v{vTA}")
            a(f"s_cbranch_vccnz {name}_SLOW")
            a.label(name + "_RET")
            handlers.append(("slow", name, Sc, Sn, Pw))
        if not last:
            a(f"s_add_u32 s{sS}, s{sS}, 1")
            if prebar: prebar()
            a(f"s_waitcnt vmcnt({vmw if dma else 0})")
            if not ('nobar' in OPT and name.startswith('AT_L')): a("s_barrier")

    if 'prio' in OPT:
        a(f"s_cmp_eq_u32 s{sG}, {OPT['prio']}")
        a("s_cbranch_scc0 AT_PRIO")
        a("s_setprio 1")
        a.label("AT_PRIO")
    if EARLYV:
        slot(0, "AT_S0", sm=False, pv=False)
        sp.mark("s0")
        slot(1, "AT_S1", pv=False)
    else:
        slot(0, "AT_S0", sm=False, pv=False, vlist=[], prebar=lambda: poll(5, 0x101, 2), vmw=2)
        sp.mark("s0")
        slot(1, "AT_S1", pv=False, vlist=[0, 1])
    sp.mark("s1")
    poll_issue(2)
    slot(2, "AT_S2", prebar=lambda: poll(2, 0xffff, 4), fresh=True)
    sp.mark("s2")
    a("s_branch AT_L3")
    slot(2, "AT_L2"); slot(3, "AT_L3"); slot(0, "AT_L0")
    a(f"s_cmp_eq_u32 s{sS}, 33")
    a("s_cbranch_scc1 AT_P33")
    slot(1, "AT_L1")
    a("s_branch AT_L2")
    a.label("AT_P33")
    sp.mark("s32")
    if FUSE: poll_issue(6, True)
    slot(1, "AT_S33", nxt=None, prebar=(lambda: poll(6, -1, 4, True)) if FUSE else None)
    slot(2, "AT_S34", qk=False, nxt=None, dma=False, prefetched=False)
    slot(3, "AT_S35", qk=False, sm=False, nxt=None, dma=False, last=True, prefetched=False)
    sp.mark("s35")
    a("s_barrier")
    a(f"s_mul_i32 s{sT}, s{sW}, {8192+512}")
    a(f"s_xor_b32 s{sT2}, s{sW}, 4")
    a(f"s_mul_i32 s{sT2}, s{sT2}, {8192+512}")
    a(f"v_add_u32 v14, s{sT}, v{vL16}")
    a(f"v_add_u32 v15, s{sT2}, v{vL16}")
    a("v_lshlrev_b32 v16, 3, v0")
    a(f"v_add_u32 v17, s{sT2}, v16")
    a(f"v_add_u32 v16, s{sT}, v16")
    X0, X1, X2, X3, X4, X5 = range(vX0, vX0 + 6)
    a(f"s_cmp_eq_u32 s{sG}, 0")
    a("s_cbranch_scc1 AT_MA")
    a(f"v_mov_b32 v{X4}, v{NEGM}")
    a(f"v_mov_b32 v{X5}, v{LS}")
    a(f"v_mov_b32 v{X0}, v{NEGM+4}")
    a(f"v_mov_b32 v{X1}, v{LS+4}")
    for q in range(8): a(f"ds_write_b128 v14, {vr(O+4*q,4)} offset:{1024*q}")
    for r in range(32): a(f"v_mov_b32 v{O+r}, v{O+32+r}")
    a(f"s_add_u32 s{sCT2}, s{sCT2}, {CS}")
    a("s_branch AT_MB")
    a.label("AT_MA")
    a(f"v_mov_b32 v{X4}, v{NEGM+4}")
    a(f"v_mov_b32 v{X5}, v{LS+4}")
    a(f"v_mov_b32 v{X0}, v{NEGM}")
    a(f"v_mov_b32 v{X1}, v{LS}")
    for q in range(8): a(f"ds_write_b128 v14, {vr(O+32+4*q,4)} offset:{1024*q}")
    a.label("AT_MB")
    a(f"ds_write_b64 v16, v[{X4}:{X5}] offset:8192")
    a("s_waitcnt lgkmcnt(0)")
    a("s_barrier")
    a(f"ds_read_b64 v[{X2}:{X3}], v17 offset:8192")
    for q in range(8): a(f"ds_read_b128 {vr(O+32+4*q,4)}, v15 offset:{1024*q}")
    a("s_waitcnt lgkmcnt(8)")
    a(f"v_min_f32 v{vTA}, v{X0}, v{X2}")
    a(f"v_sub_f32 v{X0}, v{vTA}, v{X0}")
    a(f"v_sub_f32 v{X2}, v{vTA}, v{X2}")
    a(f"v_exp_f32 v{X0}, v{X0}")
    a(f"v_exp_f32 v{X2}, v{X2}")
    a(f"v_mul_f32 v{vTA}, v{X1}, v{X0}")
    a(f"v_fmac_f32 v{vTA}, v{X3}, v{X2}")
    a(f"v_rcp_f32 v{vTA}, v{vTA}")
    a(f"v_mul_f32 v{X0}, v{X0}, v{vTA}")
    a(f"v_mul_f32 v{X2}, v{X2}, v{vTA}")
    for r in range(32): a(f"v_mul_f32 v{O+r}, v{O+r}, v{X0}")
    a("s_waitcnt lgkmcnt(0)")
    for r in range(32): a(f"v_fmac_f32 v{O+r}, v{O+32+r}, v{X2}")
    store_ctx((0,), sCT2, lambda qi: O)
    if FUSE:
        sp.mark("att")
        gen_tail.gen_tail(a, {k: v for k, v in globals().items() if not k.startswith("__")}, dict(sW=sW, sH=sH, sP=sP, sp=sp))
    elif STAMP:
        a("s_waitcnt vmcnt(0)")
        sp.mark("end")
        a("s_waitcnt lgkmcnt(0)")
        sp.flush(100, sW, 0, slot=0); sp.flush(100, sW, 4, slot=1)
    a.label("M_END")
    a("s_endpgm")
    for hd in handlers:
        if hd[0] == "ev":
            _, name, Sc = hd
            a.label(name + "_EV")
            a(f"s_sub_u32 s{sT}, s{sS}, s{sN1}")
            a(f"s_cmp_lg_u32 s{sT}, 2")
            a(f"s_cbranch_scc1 {name}_E1")
            a(f"v_rcp_f32 v{vX0}, v{LS}")
            a(f"v_rcp_f32 v{vX0+1}, v{LS+4}")
            for r in range(8): a(f"v_mov_b32 v{LS+r}, 0")
            for r in range(64): a(f"v_mul_f32 v{O+r}, v{O+r}, v{vX0+(r>>5)}")
            store_ctx((0, 1), sCT1, lambda qi: O + 32 * qi)
            for r in range(64): a(f"v_mov_b32 v{O+r}, 0")
            a.label(name + "_E1")
            if FUSE:
                only(0, ["s_mov_b64 exec, 1", f"v_mov_b32 v{vX0}, 1", f"s_lshl_b32 s3, s{sP}, 10", f"s_add_u32 s3, s3, s{sH}", "s_lshl_b32 s3, s3, 2",
                         f"s_add_u32 s3, s3, {WS_FL3}", f"buffer_store_dword v{vX0}, v{vZERO}, {S4(S_WS)}, s3 offen sc1", "s_mov_b64 exec, -1"],
                     f"s_cmp_lg_u32 s{sT}, 3")
            a(f"s_cmp_lg_u32 s{sT}, 0")
            a(f"s_cbranch_scc1 {name}_E2")
            for t in range(8): a(f"ds_read_b128 {vr(Q+4*t,4)}, v{vQ2} offset:{32768+1024*t}")
            for r in range(8): a(f"v_mov_b32 v{NEGM+r}, 0")
            a("s_waitcnt lgkmcnt(0)")
            a.label(name + "_E2")
            a(f"s_sub_u32 s{sT2}, s{sS}, s{sMST}")
            a(f"s_sub_u32 s{sT2}, s{sT2}, 1")
            a(f"s_cmp_lt_u32 s{sT2}, 4")
            a(f"s_cbranch_scc1 {name}_EM")
            a(f"s_cmp_lt_u32 s{sS}, 33")
            a(f"s_cbranch_scc1 {name}_E3")
            a(f"s_sub_u32 s{sT2}, s{sS}, 33")
            a(f"s_lshl_b32 s{sT2}, s{sT2}, 1")
            a(f"s_add_u32 s{sT2}, s{sT2}, s{sG}")
            a.label(name + "_EM")
            a(f"s_lshl_b32 s{sT2}, s{sT2}, 5")
            a(f"v_subrev_u32 v{vX0}, s{sT2}, v{vD0}")
            for qi in range(2):
                for kt in range(2):
                    for e in range(4):
                        a(f"v_cmp_le_i32 s[{sMK+2*e}:{sMK+2*e+1}], {16*kt+e-16*qi}, v{vX0}")
                    for e in range(4):
                        r = Sc + 8 * qi + 4 * kt + e
                        a(f"v_cndmask_b32 v{r}, v{vNINF}, v{r}, s[{sMK+2*e}:{sMK+2*e+1}]")
            a.label(name + "_E3")
            a(f"s_cmp_eq_u32 s{sT}, 1")
            a(f"s_cbranch_scc1 {name}_E4")
            a(f"s_cmp_lg_u32 s{sS}, 1")
            a(f"s_cbranch_scc1 {name}_GO")
            a.label(name + "_E4")
            for qi in range(2):
                rowmax(vX0 + qi, vX0 + 2 + qi, Sc + 8 * qi)
                a(f"v_add_f32 v{vX0+qi}, {f32hex(BIAS)}, v{vX0+qi}")
            for r in range(8): a(f"v_sub_f32 v{NEGM+r}, v{NEGM+r}, v{vX0+(r>>2)}")
            for r in range(16): a(f"v_sub_f32 v{Sc+r}, v{Sc+r}, v{vX0+(r>>3)}")
            a(f"s_branch {name}_GO")
        else:
            _, name, Sc, Sn, Pw = hd
            a.label(name + "_SLOW")
            for qi in range(2):
                rowmax(vX0 + qi, vX0 + 2 + qi, Sc + 8 * qi)
                a(f"v_add_f32 v{vX0+qi}, {f32hex(BIAS)}, v{vX0+qi}")
                a(f"v_max_f32 v{vX0+qi}, 0, v{vX0+qi}")
                a(f"v_exp_f32 v{vX0+2+qi}, -v{vX0+qi}")
            for r in range(8): a(f"v_sub_f32 v{NEGM+r}, v{NEGM+r}, v{vX0+(r>>2)}")
            for r in range(16): a(f"v_sub_f32 v{Sn+r}, v{Sn+r}, v{vX0+(r>>3)}")
            for r in range(16): a(f"v_sub_f32 v{Sc+r}, v{Sc+r}, v{vX0+(r>>3)}")
            for r in range(64): a(f"v_mul_f32 v{O+r}, v{O+r}, v{vX0+2+(r>>5)}")
            for r in range(8): a(f"v_mul_f32 v{LS+r}, v{LS+r}, v{vX0+2+(r>>2)}")
            for c, ops in sm_ops(Sc, Pw):
                for x in ops: a(x)
            a(f"s_branch {name}_RET")
    a.label("M_LAST")
    a("s_endpgm")
    return dict(name="gated_mix__ssm_conv_h3__compressed_kv_cla__prompt_kernel" if FUSE else "main_kernel", grid=256, block=512, lds=163840, vgpr=256)

import gen as G1
G1.STAMP = False
KERNELS = {"main": gen_main, "conv": G1.gen_conv, "oproj": G1.gen_oproj, "tail": lambda a: gen_tail.gen_tail(a, {k: v for k, v in globals().items() if not k.startswith("__")})}

def build(names, path, verbose=False):
    hdr = open("gated_mix__ssm_conv_h3__compressed_kv_cla__prompt.s.ref").read().split("\n")
    hdr = [l for l in hdr if l.startswith(";") and "@launch" not in l and "Override" not in l and "grid=ceil" not in l]
    codes, descs, launches = [], [], []
    for n in names:
        a = Asm()
        info = KERNELS[n](a)
        k = fix_hazards(a.lines, verbose)
        print(f"{n}: {len(a.lines)} lines, {k} nops inserted")
        c, d = kernel_text(info["name"], a.lines, info["vgpr"], extra="  .amdhsa_float_denorm_mode_32 3\n")
        codes.append(c); descs.append(d)
        kn = "" if "plain" in OPT else f"kernel={info['name']} "
        launches.append(f"; @launch {kn}grid=({info['grid']},1,1) block=({info['block']},1,1) lds={info['lds']}")
    txt = "\n".join(hdr + launches) + '\n.amdgcn_target "amdgcn-amd-amdhsa--gfx950"\n.text\n' + "\n".join(codes) + \
          '\n.section .rodata,"a"\n' + "\n".join(descs)
    if "CODE_SPAN" in txt: txt = txt.replace("CODE_SPAN", str(int(OPT["ipf"])))
    open(path, "w").write(txt)

if __name__ == "__main__":
    names = sys.argv[2].split(",") if len(sys.argv) > 2 else list(KERNELS)
    build(names, sys.argv[1] if len(sys.argv) > 1 else "k2.s", verbose="-v" in sys.argv)
```

```python
CHB_ = 4 * 4160 + 512 + 4096
KVB_ = 4 * 4160 + 512
def conv_dma(a, E, sW, S_WS, S_H, s1, s2_, s3_, s4_, vL16, va, vb, CB, skip, SC):
    globals().update(E)
    a(f"s_sub_u32 s{s1}, s{sW}, 4")
    a(f"s_and_b32 s{s2_}, s2, 1")
    a(f"s_sub_u32 s{s3_}, 3, s{s2_}")
    a(f"s_cmp_ge_u32 s{s1}, s{s3_}")
    a(f"s_cbranch_scc1 {skip}")
    a(f"s_lshr_b32 s{s3_}, s2, 1")
    a(f"s_mul_i32 s{s3_}, s{s3_}, 5")
    a(f"s_mul_i32 s{s2_}, s{s2_}, 3")
    a(f"s_add_u32 s{s3_}, s{s3_}, s{s2_}")
    a(f"s_add_u32 s{s3_}, s{s3_}, s{s1}")
    a(f"s_mul_i32 s{s4_}, s{s1}, {CHB_}")
    a(f"s_add_u32 s{s4_}, s{s4_}, {CB}")
    a(f"s_lshl_b32 s{s1}, s{s3_}, 12")
    a(f"s_add_u32 s{s2_}, s{s1}, {WS_KVT}")
    a(f"s_add_u32 m0, s{s4_}, {KVB_}")
    a(f"v_add_u32 v{va}, s{s1}, v{vL16}")
    for i in range(4): a(f"buffer_load_dwordx4 v{vL16}, {S4(S_WS)}, s{s2_} offen offset:{1024*i}{SC} lds")
    for rr in range(4):
        if rr: a(f"v_subrev_u32 v{va}, 2, v{va}")
        a(f"v_add_u32 v{vb}, 1024, v{va}")
        a(f"s_add_u32 m0, s{s4_}, {rr*4160+64}")
        a(f"buffer_load_dwordx4 v{va}, {S4(S_H)}, 0 offen lds")
        a(f"s_add_u32 m0, s{s4_}, {rr*4160+64+1024}")
        for i in range(3): a(f"buffer_load_dwordx4 v{vb}, {S4(S_H)}, 0 offen offset:{1024*i} lds")

def gen_tail(a, E, fused=None):
    globals().update(E)
    SC = ' sc1' if fused else ''
    S_WS, S_X, S_OUT, S_H, S_D, S_DBG = 4, 8, 12, 16, 20, 24
    sW, sT, sT2, sMT, sNT, sKO, sCH, sLB, sNC = range(28, 37)
    NS = int(OPT.get('ns', 4))
    vB, ST, ACC = 4, 32, 176
    RB = 0
    YB = 61440
    CNT = YB + 10240
    CB = 98304
    CHB = 4 * 4160 + 512 + 4096
    RDY = CNT + 64
    sPUB = 37
    if fused:
        sp = fused["sp"]
        a(f"s_sub_u32 s{sPUB+1}, 15, s{fused['sP']}")
        a(f"s_lshl_b32 s{sPUB+1}, s{sPUB+1}, 12")
        a(f"s_lshl_b32 s{sPUB}, s{fused['sH']}, 2")
        a(f"s_add_u32 s{sPUB}, s{sPUB}, s{sPUB+1}")
        a(f"s_add_u32 s{sPUB}, s{sPUB}, {WS_FL3}")
        a(f"s_mov_b32 s{sW}, s{fused['sW']}")
    else:
        sp = Stamps(a, base=70, region=1)
        a("s_cmp_ge_u32 s2, 256")
        a("s_cbranch_scc1 T_END")
        sp.mark("start")
    for d, k in ((S_WS, 'ws'), (S_X, 'A_q'), (S_OUT, 'out'), (S_H, 'ssm_k'), (S_D, 'ssm_D'), (S_DBG, 'dbg')):
        a(f"s_load_dwordx2 s[{d}:{d+1}], s[0:1], {KA[k]}")
    if not fused:
        a("v_lshrrev_b32 v1, 6, v0")
        a("v_and_b32 v0, 63, v0")
        a(f"v_readfirstlane_b32 s{sW}, v1")
    omap = int(OPT.get('omap', 1))
    if omap == 0:
        a(f"s_and_b32 s{sMT}, s2, 7")
        a(f"s_lshl_b32 s{sMT}, s{sMT}, 2")
        a(f"s_bfe_u32 s{sT}, s2, 0x20003")
        a(f"s_add_u32 s{sMT}, s{sMT}, s{sT}")
        a(f"s_lshr_b32 s{sNT}, s2, 5")
    elif omap == 1:
        a(f"s_and_b32 s{sMT}, s2, 3")
        a(f"s_lshl_b32 s{sMT}, s{sMT}, 3")
        a(f"s_bfe_u32 s{sT}, s2, 0x30003")
        a(f"s_add_u32 s{sMT}, s{sMT}, s{sT}")
        a(f"s_and_b32 s{sNT}, s2, 4")
        a(f"s_lshr_b32 s{sT}, s2, 6")
        a(f"s_add_u32 s{sNT}, s{sNT}, s{sT}")
    else:
        a(f"s_and_b32 s{sMT}, s2, 1")
        a(f"s_lshl_b32 s{sMT}, s{sMT}, 4")
        a(f"s_bfe_u32 s{sT}, s2, 0x40003")
        a(f"s_add_u32 s{sMT}, s{sMT}, s{sT}")
        a(f"s_and_b32 s{sNT}, s2, 6")
        a(f"s_lshr_b32 s{sT}, s2, 7")
        a(f"s_add_u32 s{sNT}, s{sNT}, s{sT}")
    a("v_lshlrev_b32 v1, 4, v0")
    for d, sz in ((S_WS, 64 * MB), (S_X, 2621440), (S_OUT, 2621440), (S_H, 2621440), (S_D, 1280), (S_DBG, 256)):
        a(f"s_mov_b32 s{d+2}, {sz}")
        a(f"s_mov_b32 s{d+3}, 0x00020000")
    a(f"s_cmp_ge_u32 s{sW}, 4")
    a("s_cbranch_scc1 T_SIDE")
    a(f"s_mul_i32 s{sT}, s{sMT}, {4*CS}")
    a(f"s_add_u32 s{sT}, s{sT}, {WS_CTX}")
    a(f"v_add_u32 v{vB}, s{sT}, v1")
    for i in range(1, 4): a(f"v_add_u32 v{vB+i}, {i*CS}, v{vB}")
    a(f"s_mul_i32 s{sT}, s{sNT}, {5*CS}")
    a(f"s_add_u32 s{sT}, s{sT}, {WS_WOT}")
    a(f"v_add_u32 v{vB+4}, s{sT}, v1")
    for j in range(1, 5): a(f"v_add_u32 v{vB+4+j}, {j*CS}, v{vB+4}")
    a(f"s_lshl_b32 s{sKO}, s{sW}, 15")
    a("s_waitcnt lgkmcnt(0)")
    vm = VM()
    KO = [sKO, 38]
    a(f"s_add_u32 s{KO[1]}, s{KO[0]}, 4096")
    def load(ks, n):
        base = ST + (ks % NS) * 36
        return f"buffer_load_dwordx4 {vr(base+4*n,4)}, v{vB+n}, {S4(S_WS)}, s{KO[(ks//4)&1]} offen offset:{(ks%4)*1024}{SC}"
    def emit(x, tag):
        a(x); vm.add(tag)
    if fused:
        NW = int(OPT.get('nw', 4))
        a("s_waitcnt vmcnt(0)")
        a("s_barrier")
        sp.mark("tb")
        a(f"v_mov_b32 v2, {RDY}")
        a("ds_read_b32 v3, v2")
        for ks in range(NW):
            for n in range(4, 9): emit(load(ks, n), ks)
        if 'wpf' in OPT:
            assert omap == 1
            a("v_lshrrev_b32 v2, 3, v0")
            a(f"v_mul_u32_u24 v2, {CS}, v2")
            a("v_and_b32 v3, 7, v0")
            a("v_lshl_add_u32 v2, v3, 7, v2")
            a(f"s_lshr_b32 s{sT}, s2, 3")
            a(f"s_lshl_b32 s{sT}, s{sT}, 2")
            a(f"s_add_u32 s{sT}, s{sT}, s{sW}")
            a(f"s_lshl_b32 s{sT}, s{sT}, 10")
            a(f"s_and_b32 s{sT2}, s2, 4")
            a(f"s_mul_i32 s{sT2}, s{sT2}, {5*CS}")
            a(f"s_add_u32 s{sT}, s{sT}, s{sT2}")
            a(f"s_add_u32 s{sT}, s{sT}, {WS_WOT}")
            for i in range(3):
                if i == 2: a("s_mov_b32 exec_hi, 0")
                emit(f"buffer_load_dword v15, v2, {S4(S_WS)}, s{sT} offen sc1", "wpf")
                if i < 2: a(f"s_add_u32 s{sT}, s{sT}, {8*CS}")
            a("s_mov_b32 exec_hi, -1")
        a(f"s_mov_b32 s{sT2}, 0")
        a("s_branch T_RDY1")
        a.label("T_RDY")
        a("s_sleep 2")
        a("ds_read_b32 v3, v2")
        a.label("T_RDY1")
        a("s_waitcnt lgkmcnt(0)")
        a(f"v_readfirstlane_b32 s{sT}, v3")
        a(f"s_add_u32 s{sT2}, s{sT2}, 1")
        a(f"s_cmp_lg_u32 s{sT}, 0")
        a("s_cbranch_scc1 T_RDY2")
        a(f"s_cmp_lt_u32 s{sT2}, 4000000")
        a("s_cbranch_scc1 T_RDY")
        a.label("T_RDY2")
        for ks in range(NS):
            if ks >= NW:
                for n in range(4, 9): emit(load(ks, n), ks)
            for n in range(4): emit(load(ks, n), ks)
    else:
        for ks in range(NS):
            for n in range(9): emit(load(ks, n), ks)
        a("s_barrier")
    a("v_and_b32 v2, 15, v0")
    a("v_lshrrev_b32 v3, 4, v0")
    a(f"s_lshl_b32 s{sT}, s{sMT}, 6")
    a(f"s_lshl_b32 s{sT2}, s{sW}, 4")
    a(f"s_add_u32 s{sT}, s{sT}, s{sT2}")
    a(f"v_add_u32 v2, s{sT}, v2")
    a("v_mul_u32_u24 v13, 1280, v2")
    a("v_lshl_add_u32 v13, v3, 3, v13")
    a(f"s_mul_i32 s{sT}, s{sNT}, 160")
    a(f"v_add_u32 v13, s{sT}, v13")
    a("v_lshlrev_b32 v2, 2, v2")
    AC = lambda i, j: ACC + (i * 5 + j) * 4
    assert NS == 4
    for ks in range(32):
        base = ST + (ks % NS) * 36
        a(f"s_waitcnt vmcnt({vm.wait(ks)})")
        if ks == 0: sp.mark("t0")
        sp.mark(f"o{ks}")
        if ks % 4 == 0 and ks: a(f"s_add_u32 s{KO[(ks//4+1)&1]}, s{KO[(ks//4+1)&1]}, 8192")
        if ks == int(OPT.get('ksig', 27)):
            a(f"v_mov_b32 v26, {CNT}")
            a("v_mov_b32 v27, 4")
            a("s_mov_b64 exec, 1")
            a("ds_add_u32 v26, v27")
            a("s_mov_b64 exec, -1")
        for j in range(5):
            for i in range(4):
                acc = vr(AC(i, j), 4)
                a(f"{MFMA16} {acc}, {vr(base+16+4*j,4)}, {vr(base+4*i,4)}, {'0' if ks == 0 else acc}")
                if ks + NS < 32:
                    if i == 3: emit(load(ks + NS, 4 + j), ks + NS)
                    if j == 4: emit(load(ks + NS, i), ks + NS)
                elif ks + NS == 32 and i == 3:
                    emit(f"buffer_load_dwordx2 {vr(16+2*j,2)}, v13, {S4(S_X)}, 0 offen offset:{32*j}", "x")
                    if j == 0:
                        a(f"s_mov_b32 s{sT}, {WS_G}")
                        emit(f"buffer_load_dword v14, v2, {S4(S_WS)}, s{sT} offen{SC}", "x")
    sp.mark("t1")
    for i in range(4):
        lab = a.uid("TSK")
        a(f"s_cmp_eq_u32 s{sW}, {i}")
        a(f"s_cbranch_scc1 {lab}")
        a(f"s_sub_u32 s{sT}, s{sW}, {i+1}")
        a(f"s_and_b32 s{sT}, s{sT}, 3")
        a(f"s_mul_i32 s{sT}, s{sT}, 5120")
        a(f"v_add_u32 v4, s{sT}, v1")
        for j in range(5): a(f"ds_write_b128 v4, {vr(AC(i,j),4)} offset:{RB+i*15360+j*1024}")
        a(f"s_branch {lab}N")
        a.label(lab)
        for r in range(20): a(f"v_mov_b32 v{32+(r>>2)*16+12+(r&3)}, v{AC(i,0)+r}")
        a.label(lab + "N")
    a(f"s_mul_i32 s{sT}, s{sW}, 15360")
    a(f"v_add_u32 v5, s{sT}, v1")
    a("v_lshrrev_b32 v7, 2, v0")
    a("v_lshlrev_b32 v7, 7, v7")
    a("v_and_b32 v8, 3, v0")
    a("v_lshl_add_u32 v7, v8, 3, v7")
    a(f"s_lshl_b32 s{sT}, s{sW}, 5")
    a(f"s_add_u32 s{sT}, s{sT}, {YB}")
    a(f"v_add_u32 v7, s{sT}, v7")
    a("s_waitcnt vmcnt(0) lgkmcnt(0)")
    a("s_barrier")
    sp.mark("t2")
    for j in range(5):
        for src in range(3):
            a(f"ds_read_b128 {vr(32+(j*4+src)*4,4)}, v5 offset:{RB+src*5120+j*1024}")
        a(f"ds_read_b64_tr_b16 {vr(112+2*j,2)}, v7 offset:{j*2048}")
    a("v_sub_f32 v15, 1.0, v14")
    for x in rnd_pair(26, 15, 15, 15, 27): a(x)
    for j in range(5):
        a(f"s_waitcnt lgkmcnt({min(15, 4*(4-j))})")
        b = 32 + j * 16
        for r in range(4):
            a(f"v_add_f32 v{b+r}, v{b+r}, v{b+4+r}")
            a(f"v_add_f32 v{b+8+r}, v{b+8+r}, v{b+12+r}")
        for r in range(4): a(f"v_add_f32 v{b+r}, v{b+r}, v{b+8+r}")
        for hf in range(2):
            L = rnd_pair(26, b + 2 * hf, b + 2 * hf + 1, b + 4, b + 5)
            L += [f"v_mul_f32 v{b+4}, v15, v{b+4}", f"v_mul_f32 v{b+5}, v15, v{b+5}"] + rnd_pair(26, b + 4, b + 5, b + 4, b + 5)
            L += [f"v_lshlrev_b32 v{b+6}, 16, v{16+2*j+hf}", f"v_and_b32 v{b+7}, 0xffff0000, v{16+2*j+hf}",
                  f"v_lshlrev_b32 v{b+8}, 16, v{112+2*j+hf}", f"v_and_b32 v{b+9}, 0xffff0000, v{112+2*j+hf}",
                  f"v_mul_f32 v{b+6}, v{b+6}, v{b+8}", f"v_mul_f32 v{b+7}, v{b+7}, v{b+9}"] + rnd_pair(26, b + 6, b + 7, b + 6, b + 7)
            L += [f"v_mul_f32 v{b+6}, v14, v{b+6}", f"v_mul_f32 v{b+7}, v14, v{b+7}"] + rnd_pair(26, b + 6, b + 7, b + 6, b + 7)
            L += [f"v_add_f32 v{b+6}, v{b+6}, v{b+4}", f"v_add_f32 v{b+7}, v{b+7}, v{b+5}",
                  f"v_cvt_pk_bf16_f32 v{b+12+hf}, v{b+6}, v{b+7}"]
            for x in L: a(x)
        a(f"buffer_store_dwordx2 {vr(b+12,2)}, v13, {S4(S_OUT)}, 0 offen offset:{32*j} {OPT.get('outsc', '').replace('_', ' ')}")
    if STAMP:
        a("s_waitcnt vmcnt(0)"); sp.mark("end"); a("s_waitcnt lgkmcnt(0)")
        sp.flush(100, sW, 0, slot=0); sp.flush(100, sW, 3, slot=1) if fused else None
    a("s_endpgm")
    a.label("T_SIDE")
    a("s_setprio 3")
    a("s_waitcnt lgkmcnt(0)")
    a(f"s_and_b32 s{sNC}, s2, 1")
    a(f"s_sub_u32 s{sNC}, 3, s{sNC}")
    a(f"s_cmp_lg_u32 s{sW}, 7")
    a("s_cbranch_scc1 T_CONV")
    a(f"v_mov_b32 v2, {CNT}")
    a("v_mov_b32 v3, 0")
    a("ds_write_b32 v2, v3")
    if fused:
        a("v_and_b32 v6, 31, v0")
        a("v_lshlrev_b32 v6, 2, v6")
        a(f"s_lshr_b32 s3, s{sMT}, 1")
        a("s_lshl_b32 s3, s3, 12")
        a(f"s_add_u32 s3, s3, {WS_FL3}")
        a("v_mov_b32 v4, 1")
        if 'epoll' in OPT:
            a(f"buffer_load_dword v5, v6, {S4(S_WS)}, s3 offen sc1")
            a("s_waitcnt vmcnt(0)")
            a("v_cmp_eq_u32 vcc, 0, v5")
            a("s_cmp_eq_u64 vcc, 0")
            a(f"s_cselect_b32 s{sT2}, 1, 0")
        else: a(f"s_mov_b32 s{sT2}, 0")
        a(f"v_mov_b32 v7, s{sT2}")
        a("ds_write_b32 v2, v7 offset:64")
    a("s_waitcnt vmcnt(0) lgkmcnt(0)")
    a("s_barrier")
    if fused:
        a("s_mov_b64 exec, 1")
        a(f"buffer_store_dword v4, v3, {S4(S_WS)}, s{sPUB} offen sc1")
        a("s_mov_b64 exec, -1")
        a("v_mov_b32 v3, v6")
        a(f"s_cmp_eq_u32 s{sT2}, 1")
        a("s_cbranch_scc1 T_CP3")
        a("s_branch T_CP1")
        a.label("T_CP")
        a(f"s_sleep {OPT.get('csleep', 8)}")
        a.label("T_CP1")
        a(f"buffer_load_dword v5, v3, {S4(S_WS)}, s3 offen sc1")
        a("s_waitcnt vmcnt(0)")
        a("v_cmp_eq_u32 vcc, 0, v5")
        a(f"s_add_u32 s{sT2}, s{sT2}, 1")
        a("s_cbranch_vccz T_CP2")
        a(f"s_cmp_lt_u32 s{sT2}, 100000")
        a("s_cbranch_scc1 T_CP")
        a.label("T_CP2")
        a("ds_write_b32 v2, v4 offset:64")
        a.label("T_CP3")
    a("v_lshrrev_b32 v2, 3, v0")
    a("v_and_b32 v4, 7, v0")
    a("v_lshlrev_b32 v4, 4, v4")
    a("v_lshl_add_u32 v2, v2, 12, v4")
    a(f"s_lshl_b32 s3, s{sNT}, 12")
    a(f"s_add_u32 s3, s3, {WS_FLG}")
    a("v_and_b32 v3, 31, v0")
    a("v_lshlrev_b32 v3, 2, v3")
    a(f"s_mov_b32 s{sT2}, 0")
    a(f"v_mov_b32 v6, {CNT}")
    a.label("T_LPOLL")
    a("s_sleep 8")
    a("ds_read_b32 v5, v6")
    a("s_waitcnt lgkmcnt(0)")
    a(f"v_readfirstlane_b32 s{sT}, v5")
    a(f"s_add_u32 s{sT2}, s{sT2}, 1")
    a(f"s_cmp_ge_u32 s{sT}, {OPT.get('nsig', 16)}")
    a("s_cbranch_scc1 T_POLL1")
    a(f"s_cmp_lt_u32 s{sT2}, 100000")
    a("s_cbranch_scc1 T_LPOLL")
    a.label("T_POLL")
    a(f"s_sleep {OPT.get('tsleep', 24)}")
    a.label("T_POLL1")
    a(f"buffer_load_dword v5, v3, {S4(S_WS)}, s3 offen sc1")
    a("s_waitcnt vmcnt(0)")
    a("v_cmp_eq_u32 vcc, 0, v5")
    a(f"s_add_u32 s{sT2}, s{sT2}, 1")
    a("s_cbranch_vccz T_POK")
    a(f"s_cmp_lt_u32 s{sT2}, 100000")
    a("s_cbranch_scc1 T_POLL")
    a.label("T_POK")
    a(f"s_mul_i32 s{sT}, s{sNT}, {80*4096}")
    a(f"s_lshl_b32 s{sT2}, s{sMT}, 7")
    a(f"s_add_u32 s{sT}, s{sT}, s{sT2}")
    a(f"s_add_u32 s{sT}, s{sT}, {WS_Y2T}")
    for i in range(10):
        a(f"s_mov_b32 m0, {YB + 1024*i}")
        if i: a(f"s_add_u32 s{sT}, s{sT}, {8*4096}")
        a(f"buffer_load_dwordx4 v2, {S4(S_WS)}, s{sT} offen sc1 lds")
    a("s_waitcnt vmcnt(0)")
    a("s_barrier")
    a("s_endpgm")
    a.label("T_CONV")
    a(f"s_sub_u32 s{sT}, s{sW}, 4")
    a(f"s_cmp_ge_u32 s{sT}, s{sNC}")
    a("s_cbranch_scc1 T_WEND")
    a(f"s_lshr_b32 s{sCH}, s2, 1")
    a(f"s_mul_i32 s{sCH}, s{sCH}, 5")
    a(f"s_and_b32 s{sT2}, s2, 1")
    a(f"s_mul_i32 s{sT2}, s{sT2}, 3")
    a(f"s_add_u32 s{sCH}, s{sCH}, s{sT2}")
    a(f"s_add_u32 s{sCH}, s{sCH}, s{sT}")
    a(f"s_mul_i32 s{sLB}, s{sT}, {CHB}")
    a(f"s_add_u32 s{sLB}, s{sLB}, {CB}")
    KVB = KVB_
    early = fused and 'lateconv' not in OPT
    if fused and not early:
        a("s_waitcnt vmcnt(0)")
        a("s_barrier")
    if not early: conv_dma(a, E, sW, S_WS, S_H, sT, sT2, sCH, sLB, 1, 3, 4, CB, "T_WEND", SC)
    a(f"s_lshl_b32 s{sT}, s{sCH}, 12")
    a("v_mov_b32 v8, 0")
    a("v_mov_b32 v9, 0")
    a("v_lshlrev_b32 v5, 3, v0")
    a(f"v_add_u32 v6, s{sLB}, v5")
    a(f"ds_write_b64 v6, v[8:9] offset:{4*4160}")
    a("v_and_b32 v6, 7, v0")
    a("v_bfe_u32 v7, v0, 3, 2")
    a("v_lshlrev_b32 v12, 1, v6")
    a(f"buffer_load_ushort v13, v12, {S4(S_H)}, s{sT} offen")
    a(f"s_lshl_b32 s{sT}, s{sCH}, 1")
    a(f"buffer_load_ushort v14, v8, {S4(S_D)}, s{sT} offen")
    a("v_add_u32 v6, v6, v7")
    a("v_mul_u32_u24 v12, 4160, v7")
    a("v_lshl_add_u32 v12, v6, 1, v12")
    a(f"v_add_u32 v12, s{sLB}, v12")
    vA, vBq, vO = 16, 17, 15
    a("v_bfe_u32 v18, v0, 2, 2")
    a("v_mul_u32_u24 v18, 4160, v18")
    a("v_and_b32 v19, 3, v0")
    a("v_lshl_add_u32 v18, v19, 3, v18")
    a("v_lshrrev_b32 v19, 4, v0")
    a("v_lshlrev_b32 v20, 4, v19")
    a("v_sub_u32 v18, v18, v20")
    a(f"s_add_u32 s{sT}, s{sLB}, {64+32-8}")
    a(f"v_add_u32 v{vA}, s{sT}, v18")
    a("v_and_b32 v21, 15, v0")
    a("v_lshl_add_u32 v18, v21, 5, v20")
    a(f"s_add_u32 s{sT}, s{sLB}, {KVB-32-7*64}")
    a(f"v_add_u32 v{vBq}, s{sT}, v18")
    a(f"v_lshlrev_b32 v{vO}, 5, v21")
    a(f"v_lshl_add_u32 v{vO}, v19, 3, v{vO}")
    a("v_lshlrev_b32 v20, 3, v19")
    a("v_sub_u32 v20, v21, v20")
    a("v_mov_b32 v22, 0xffff")
    MK = 24
    for q in range(4):
        a(f"v_cmp_le_i32 vcc, {2*q-16}, v20")
        a(f"v_cmp_le_i32 s[40:41], {2*q+1-16}, v20")
        a(f"v_cndmask_b32 v{MK+q}, 0, v22, vcc")
        a(f"v_cndmask_b32 v{MK+q}, v{MK+q}, -1, s[40:41]")
    if early: a("s_waitcnt vmcnt(2)")
    if early or not fused: a("s_barrier")
    a("s_waitcnt vmcnt(0)")
    if fused: sp.off = True
    sp.n = 2; sp.mark("t0")
    a("v_cmp_gt_u32 vcc, 8, v6")
    a("s_and_b32 exec_lo, vcc_lo, exec_lo")
    a("s_mov_b32 exec_hi, 0")
    a("ds_write_b16 v12, v13 offset:64")
    a("s_mov_b64 exec, -1")
    a("s_setprio 0")
    FA, FB, Y = [32, 96], [64, 128], 160
    S = Stream(a, VM(), dist=14, per_gap=2)
    rl = []
    for d0 in range(8):
        s = d0 & 1
        base = 36 * d0
        n = 0
        for m in range(8):
            o = 64 * (d0 + 8 * m)
            rl.append((base + n, ("a", d0, m, 0), f"ds_read_b64_tr_b16 {vr(FA[s]+4*m,2)}, v{vA} offset:{o+8}", FA[s] + 4 * m))
            rl.append((base + n, ("a", d0, m, 1), f"ds_read_b64_tr_b16 {vr(FA[s]+4*m+2,2)}, v{vA} offset:{o}", FA[s] + 4 * m + 2))
            for c in range(8 - m):
                if m == 0: rl.append((base + n - 4, ("b", d0, c), f"ds_read_b128 {vr(FB[s]+4*c,4)}, v{vBq} offset:{512*c+64*(7-d0)}", FB[s] + 4 * c))
                acc = vr(Y + 4 * (c + m), 4)
                txt = f"{MFMA16} {acc}, {vr(FA[s]+4*m,4)}, {vr(FB[s]+4*c,4)}, {'0' if (d0 == 0 and m == 0) else acc}"
                if d0 == 0 and m == 0 and c == 0:
                    txt = "\n".join(f"v_and_b32 v{FA[0]+q}, v{FA[0]+q}, v{MK+q}" for q in range(4)) + "\n" + txt
                S.op(txt, [("a", d0, m, 0), ("a", d0, m, 1), ("b", d0, c)])
                n += 1
    rl.sort(key=lambda r: r[0])
    for r in rl: S.read(r[1], r[2], r[3], 0, r[0])
    S.run([0])
    sp.mark("t1")
    a("s_setprio 3")
    a(f"s_add_u32 s{sT}, s{sLB}, {KVB}")
    a(f"v_add_u32 v5, s{sT}, v{vO}")
    for t in range(8): a(f"ds_read_b64 {vr(32+2*t,2)}, v5 offset:{512*t}")
    a("v_lshlrev_b32 v14, 16, v14")
    a(f"s_lshl_b32 s{sT}, s{sCH}, 12")
    a(f"s_add_u32 s{sT}, s{sT}, {WS_Y2T}")
    a("s_waitcnt lgkmcnt(0)")
    for t in range(8):
        for hf in range(2):
            r = Y + 4 * t + 2 * hf
            kvr = 32 + 2 * t + hf
            L = rnd_pair(52, r, r + 1, 50, 51)
            L += [f"v_lshlrev_b32 v53, 16, v{kvr}", f"v_and_b32 v54, 0xffff0000, v{kvr}",
                  "v_mul_f32 v53, v53, v14", "v_mul_f32 v54, v54, v14"] + rnd_pair(52, 53, 54, 53, 54)
            L += ["v_add_f32 v50, v50, v53", "v_add_f32 v51, v51, v54", f"v_cvt_pk_bf16_f32 v{64+2*t+hf}, v50, v51"]
            for x in L: a(x)
        a(f"buffer_store_dwordx2 {vr(64+2*t,2)}, v{vO}, {S4(S_WS)}, s{sT} offen offset:{512*t} sc1")
    sp.mark("t2")
    a("s_waitcnt vmcnt(0)")
    if STAMP and not fused:
        sp.mark("end"); a("s_waitcnt lgkmcnt(0)"); sp.flush(100, sW, 4, slot=1)
    a("s_mov_b64 exec, 1")
    a(f"v_mov_b32 v2, {CNT}")
    a("v_mov_b32 v3, 1")
    a("ds_add_rtn_u32 v4, v2, v3")
    a("s_waitcnt lgkmcnt(0)")
    a(f"v_readfirstlane_b32 s{sT}, v4")
    a(f"s_add_u32 s{sT}, s{sT}, 1")
    a(f"s_and_b32 s{sT}, s{sT}, 3")
    a(f"s_cmp_lg_u32 s{sT}, s{sNC}")
    a("s_cbranch_scc1 T_END")
    a("s_lshr_b32 s3, s2, 5")
    a("s_lshl_b32 s3, s3, 12")
    a(f"s_and_b32 s{sT}, s2, 31")
    a(f"s_lshl_b32 s{sT}, s{sT}, 2")
    a(f"s_add_u32 s3, s3, s{sT}")
    a(f"s_add_u32 s3, s3, {WS_FLG}")
    a(f"buffer_store_dword v3, v8, {S4(S_WS)}, s3 offen sc1")
    a.label("T_WEND")
    a("s_waitcnt vmcnt(0)")
    a.label("T_END")
    a("s_endpgm")
    return dict(name="tail_kernel", grid=256, block=512, lds=CB + 3 * CHB, vgpr=256)
```

```python
import sys, struct
from asmlib import *
from sched import *
import gen_tail

MB = 1 << 20
WS_KF, WS_VF, WS_CTX, WS_WOT, WS_KVT, WS_Y2T, WS_G = 0, 16 * MB, 32 * MB, 49 * MB, 56 * MB, 60 * MB, 63 * MB
KA = dict(A_q=0, A_k=8, A_v=16, shift=24, ssm_k=32, ssm_D=40, B_x=48, c_kv=56, w_q=64, w_uk=72, w_uv=80, w_o=88,
          gate=96, out=104, dbg=112, ws=120)
MFMA32 = "v_mfma_f32_32x32x16_bf16"
MFMA16 = "v_mfma_f32_16x16x32_bf16"
STAMP = "-stamp" in sys.argv
OPT = {x[2:].split("=")[0]: (x.split("=")[1] if "=" in x else "1") for x in sys.argv if x.startswith("--")}
WS_FLG = 63 * MB + 524288
WS_FL2 = 63 * MB + 655360
WS_FL3 = WS_FL2 + 131072
FUSE = 'nofuse' not in OPT
CS = 131072 + int(OPT.get('cspad', 1024))
OOB = "0x80000000"
def f32hex(x): return "0x%08x" % struct.unpack("<I", struct.pack("<f", x))[0]

def srd(a, d, lo, hi, size, add=0):
    if add:
        a(f"s_add_u32 s{d}, s{lo}, {add}")
        a(f"s_addc_u32 s{d+1}, s{hi}, 0")
    else:
        a(f"s_mov_b32 s{d}, s{lo}")
        a(f"s_mov_b32 s{d+1}, s{hi}")
    a(f"s_mov_b32 s{d+2}, {size}")
    a(f"s_mov_b32 s{d+3}, 0x00020000")
def S4(d): return f"s[{d}:{d+3}]"

class Stamps:
    def __init__(self, a, base=70, region=0):
        self.a, self.base, self.n, self.region = a, base, 0, region
    off = False
    def mark(self, name=""):
        if not STAMP or self.off: return
        if name not in OPT.get("marks", "start,kv,q,s1,end,t0,t1,t2").split(","): return
        assert self.base + 2 * self.n + 3 <= 101
        self.a(f"s_memtime s[{self.base+2*self.n}:{self.base+2*self.n+1}]")
        self.a(f"s_memrealtime s[{self.base+2*self.n+2}:{self.base+2*self.n+3}]")
        self.n += 2
    def flush(self, wg, sW, wave, slot=0):
        if not STAMP: return
        a = self.a
        lab = a.uid("STK")
        a(f"s_cmp_lg_u32 s{sW}, {wave}")
        a(f"s_cbranch_scc1 {lab}")
        if 'dbgstamp' in OPT:
            if slot:
                a.label(lab); return
            a(f"s_cmp_lg_u32 s2, {OPT['dbgstamp']}")
            a(f"s_cbranch_scc1 {lab}")
            a(f"s_load_dwordx2 s[60:61], s[0:1], {KA['dbg']}")
            a("s_waitcnt lgkmcnt(0)")
            a("s_mov_b32 s62, 64")
            a("s_mov_b32 s63, 0x00020000")
            a("v_mov_b32 v1, 0")
            for i in range(self.n - 1, 1, -1): a(f"s_sub_u32 s{self.base+2*i}, s{self.base+2*i}, s{self.base+2*i-4}")
        else:
            a(f"s_load_dwordx2 s[60:61], s[0:1], {KA['ws']}")
            a("s_waitcnt lgkmcnt(0)")
            a(f"s_add_u32 s60, s60, {128*MB + self.region*65536 + slot*64}")
            a("s_addc_u32 s61, s61, 0")
            a("s_mov_b32 s62, 65536")
            a("s_mov_b32 s63, 0x00020000")
            a("s_lshl_b32 s3, s2, 7")
            a("v_mov_b32 v1, s3")
        for i in range(self.n):
            a(f"v_mov_b32 v2, s{self.base+2*i}")
            a(f"buffer_store_dword v2, v1, s[60:63], 0 offen offset:{4*i}")
        a("s_getreg_b32 s3, hwreg(HW_REG_XCC_ID)")
        a("v_mov_b32 v2, s3")
        a(f"buffer_store_dword v2, v1, s[60:63], 0 offen offset:60")
        a("s_waitcnt vmcnt(0)")
        a.label(lab)

def rnd_pair(d, lo, hi, olo, ohi):
    return [f"v_cvt_pk_bf16_f32 v{d}, v{lo}, v{hi}", f"v_lshlrev_b32 v{olo}, 16, v{d}", f"v_and_b32 v{ohi}, 0xffff0000, v{d}"]

def interleave(a, mfmas, fillers, ngaps):
    tot = sum(c for c, _ in fillers)
    fi, acc = 0, 0.0
    for g, (pre, m, post) in enumerate(mfmas):
        for x in pre: a(x)
        a(m)
        for x in post: a(x)
        lim = tot * min(1.0, (g + 1) / ngaps) if ngaps else tot
        while fi < len(fillers) and acc + fillers[fi][0] * 0.5 <= lim:
            acc += fillers[fi][0]
            for x in fillers[fi][1]: a(x)
            fi += 1
    while fi < len(fillers):
        for x in fillers[fi][1]: a(x)
        fi += 1

def gen_main(a):
    S_C, S_W, S_WS, S_V, S_X, S_WQ, S_DBG = 4, 8, 12, 16, 20, 24, 28
    (sW, sH, sP, sG, sRB, sT, sT2, sCO, sWO, sM0C, sM0W, sOB, sROW, sXO, sQWO, sN1, sS, sMST, sTHR, sM0K, sM0V,
     sBASE, sCT1, sCT2, sWRAP) = range(32, 57)
    sHIST = [57, 58, 59, 60]
    sEV = 62
    PT = 64
    S_T = 76
    sMK = 4
    S_K = S_X
    sNB = 61
    SHARE = 'share' in OPT
    vL16, vCD, vWD, vAC, vAW, vXD, vQW, vWOT, vKVT = 1, 2, 6, 10, 12, 16, 20, 22, 23
    WFR, CFR, ACC = [32, 48], 64, 128
    sp = Stamps(a, base=80)
    vm = VM()
    a("s_cmp_ge_u32 s2, 256")
    a("s_cbranch_scc1 M_END")
    sp.mark("start")
    a(f"s_load_dwordx2 s[44:45], s[0:1], {KA['c_kv']}")
    a(f"s_load_dwordx4 s[48:51], s[0:1], {KA['w_uk']}")
    a("v_lshrrev_b32 v1, 6, v0")
    a("v_mov_b32 v31, v0")
    a("v_and_b32 v0, 63, v0")
    a(f"v_readfirstlane_b32 s{sW}, v1")
    a(f"s_and_b32 s{sH}, s2, 7")
    a("s_lshr_b32 s3, s2, 6")
    a("s_lshl_b32 s3, s3, 3")
    a(f"s_add_u32 s{sH}, s{sH}, s3")
    a(f"s_bfe_u32 s{sP}, s2, 0x30003")
    a(f"s_lshr_b32 s{sG}, s{sW}, 2")
    a("v_lshrrev_b32 v24, 3, v0")
    a("v_and_b32 v25, 7, v0")
    a("v_lshrrev_b32 v26, 4, v0")
    a("v_xor_b32 v25, v25, v26")
    a("v_lshlrev_b32 v25, 4, v25")
    a("v_xor_b32 v27, 64, v25")
    a(f"v_lshl_add_u32 v{vCD}, v24, 10, v25")
    a(f"v_lshl_add_u32 v{vCD+1}, v24, 10, v27")
    a(f"v_add_u32 v{vCD+1}, {8192-1024}, v{vCD+1}")
    a(f"v_add_u32 v{vCD+2}, {2*(8192-1024)}, v{vCD}")
    a(f"v_add_u32 v{vCD+3}, {2*(8192-1024)}, v{vCD+1}")
    a("v_and_b32 v28, 15, v0")
    a("v_lshlrev_b32 v29, 1, v26")
    a("v_xor_b32 v28, v28, v29")
    a("v_lshlrev_b32 v28, 4, v28")
    a(f"v_lshl_add_u32 v{vWD}, v26, 13, v28")
    a(f"v_add_u32 v{vWD+1}, {4*8192-1024}, v{vWD}")
    a(f"v_xor_b32 v{vWD+2}, 128, v{vWD}")
    a(f"v_add_u32 v{vWD+2}, {2*(4*8192-1024)}, v{vWD+2}")
    a(f"v_add_u32 v{vWD+3}, {4*8192-1024}, v{vWD+2}")
    a(f"s_and_b32 s{sRB}, s{sW}, 3")
    a(f"s_lshl_b32 s{sCO}, s{sP}, 18")
    a(f"s_lshl_b32 s{sT}, s{sW}, 15")
    a(f"s_add_u32 s{sCO}, s{sCO}, s{sT}")
    a(f"s_lshl_b32 s{sWO}, s{sRB}, 17")
    a(f"s_lshl_b32 s{sT}, s{sH}, 8")
    a(f"s_add_u32 s{sWO}, s{sWO}, s{sT}")
    a(f"s_lshl_b32 s{sM0C}, s{sW}, 12")
    a(f"s_add_u32 s{sM0W}, s{sM0C}, 65536")
    a("s_waitcnt lgkmcnt(0)")
    srd(a, S_C, 44, 45, 2 * MB)
    a(f"s_cmp_eq_u32 s{sG}, 0")
    a(f"s_cselect_b32 s{S_W}, s48, s50")
    a(f"s_cselect_b32 s{S_W+1}, s49, s51")
    a(f"s_mov_b32 s{S_W+2}, {4*MB}")
    a(f"s_mov_b32 s{S_W+3}, 0x00020000")
    def kv_dma(st):
        buf = (st & 1) * 32768
        tg = ("kv", st)
        out = [[f"s_add_u32 m0, s{sM0C}, {buf}", f"s_add_u32 s{sT}, s{sCO}, {st*128}",
                (f"buffer_load_dwordx4 v{vCD}, {S4(S_C)}, s{sT} offen lds", tg)]]
        for i in range(1, 4): out.append([(f"buffer_load_dwordx4 v{vCD+i}, {S4(S_C)}, s{sT} offen offset:{i*1024} lds", tg)])
        out.append([f"s_add_u32 m0, s{sM0W}, {buf}", f"s_add_u32 s{sT}, s{sWO}, {st*64*8192}",
                    (f"buffer_load_dwordx4 v{vWD}, {S4(S_W)}, s{sT} offen lds", tg)])
        for i in range(1, 4): out.append([(f"buffer_load_dwordx4 v{vWD+i}, {S4(S_W)}, s{sT} offen offset:{i*1024} lds", tg)])
        return out
    def emit(items):
        for it in items:
            for x in it:
                if isinstance(x, tuple): a(x[0]); vm.add(x[1])
                else: a(x)
    emit(kv_dma(0))
    a(f"s_load_dwordx2 s[44:45], s[0:1], {KA['A_q']}")
    a(f"s_load_dwordx2 s[46:47], s[0:1], {KA['w_q']}")
    a(f"s_load_dwordx4 s[48:51], s[0:1], {KA['dbg']}")
    a(f"s_load_dwordx4 s[{PT}:{PT+3}], s[0:1], {KA['A_k']}")
    a(f"s_load_dwordx4 s[{PT+4}:{PT+7}], s[0:1], {KA['shift']}")
    a(f"s_load_dwordx4 s[{PT+8}:{PT+11}], s[0:1], {KA['w_o']}")
    a(f"v_lshlrev_b32 v{vL16}, 4, v0")
    a("v_mul_u32_u24 v28, 1280, v24")
    a(f"v_add_u32 v{vXD}, v28, v25")
    a(f"v_add_u32 v{vXD+1}, v28, v27")
    a(f"v_add_u32 v{vXD+1}, {8*1280-1024}, v{vXD+1}")
    a(f"v_add_u32 v{vXD+2}, {2*(8*1280-1024)}, v{vXD}")
    a(f"v_add_u32 v{vXD+3}, {2*(8*1280-1024)}, v{vXD+1}")
    a(f"s_and_b32 s3, s{sW}, 1")
    a("s_lshl_b32 s3, s3, 7")
    a(f"v_xor_b32 v{vQW}, s3, v{vWD}")
    a(f"v_add_u32 v{vQW+1}, {4*8192-1024}, v{vQW}")
    emit(kv_dma(1))
    vPF, vPFW, vSC = 116, 115, 117
    if 'nopf' not in OPT:
        a(f"v_lshlrev_b32 v{vPF}, 7, v0")
        a("v_lshrrev_b32 v24, 1, v0")
        a("v_and_b32 v25, 1, v0")
        a("v_lshlrev_b32 v25, 7, v25")
        a(f"v_lshl_add_u32 v{vPFW}, v24, 13, v25")
        a("s_lshl_b32 s3, s2, 13")
        a(f"s_lshl_b32 s{sT}, s{sW}, 10")
        a(f"s_add_u32 s3, s3, s{sT}")
        a("s_mov_b64 exec, 0xff")
        emit([[(f"buffer_load_dword v{vSC}, v{vPF}, {S4(S_C)}, s3 offen sc1", "pf")]])
        a(f"s_lshl_b32 s3, s{sP}, 19")
        a(f"s_add_u32 s3, s3, s{sWO}")
        a("s_mov_b32 exec_lo, -1")
        emit([[(f"buffer_load_dword v{vSC}, v{vPFW}, {S4(S_W)}, s3 offen sc1", "pf")]])
        a("s_mov_b64 exec, -1")
    def frag_addrs(vR, rowoff_sgpr, vWa, nt_sgpr, wbase_sgpr):
        a("v_and_b32 v24, 15, v0")
        a("v_lshrrev_b32 v25, 4, v0")
        a("v_bfe_u32 v26, v0, 1, 3")
        a("v_xor_b32 v26, v26, v25")
        a("v_lshlrev_b32 v26, 4, v26")
        a("v_lshl_add_u32 v26, v24, 7, v26")
        a(f"v_add_u32 v{vR}, s{rowoff_sgpr}, v26")
        a(f"v_xor_b32 v{vR+1}, 64, v{vR}")
        a("v_bfe_u32 v24, v0, 2, 2")
        a("v_lshl_add_u32 v26, v25, 3, v24")
        a("v_lshlrev_b32 v26, 8, v26")
        a("v_and_b32 v27, 3, v0")
        a("v_lshl_add_u32 v26, v27, 3, v26")
        a(f"v_add_u32 v26, s{wbase_sgpr}, v26")
        a("v_and_b32 v25, 1, v25")
        a("v_lshl_add_u32 v24, v25, 2, v24")
        a(f"v_xor_b32 v24, s{nt_sgpr}, v24")
        for nt in range(4):
            a(f"v_xor_b32 v25, {nt}, v24")
            a(f"v_lshl_add_u32 v{vWa+nt}, v25, 5, v26")
    a(f"s_and_b32 s{sT}, s{sW}, 1")
    a(f"s_lshl_b32 s{sT}, s{sT}, 14")
    a(f"s_and_b32 s{sT2}, s{sW}, 2")
    a(f"s_lshl_b32 s{sT2}, s{sT2}, 1")
    a(f"s_lshl_b32 s3, s{sG}, 14")
    a("s_add_u32 s3, s3, 65536")
    frag_addrs(vAC, sT, vAW, sT2, 3)
    WOB = 131072
    a("v_lshrrev_b32 v24, 2, v0")
    a("v_mul_u32_u24 v24, 672, v24")
    a("v_and_b32 v25, 3, v0")
    a("v_lshl_add_u32 v24, v25, 3, v24")
    a(f"s_lshl_b32 s{sT}, s{sW}, 5")
    a(f"s_add_u32 s{sT}, s{sT}, {WOB}")
    a(f"v_add_u32 v{vWOT}, s{sT}, v24")
    if 'kvmap' in OPT:
        a("v_and_b32 v25, 7, v31")
        a("v_lshrrev_b32 v26, 3, v31")
    else:
        a("v_mul_u32_u24 v25, 1639, v31")
        a("v_lshrrev_b32 v25, 16, v25")
        a("v_mul_u32_u24 v26, 40, v25")
        a("v_sub_u32 v26, v31, v26")
    a(f"s_lshr_b32 s{sT}, s2, 3")
    a(f"s_lshl_b32 s{sT}, s{sT}, 6")
    a(f"v_lshl_add_u32 v25, v25, 3, s{sT}")
    a(f"s_and_b32 s{sT2}, s2, 7")
    a(f"s_mul_i32 s{sT2}, s{sT2}, 40")
    a(f"v_add_u32 v26, s{sT2}, v26")
    a("v_mul_u32_u24 v27, 1280, v25")
    a("v_lshl_add_u32 v27, v26, 2, v27")
    a("v_add_u32 v28, 5120, v27")
    a("v_subrev_u32 v29, 3840, v27")
    a(f"v_mov_b32 v30, {OOB}")
    a("v_cmp_eq_u32 vcc, 0, v25")
    a(f"v_lshlrev_b32 v{vKVT}, 13, v26")
    a(f"v_lshl_add_u32 v{vKVT}, v25, 1, v{vKVT}")
    a("v_cndmask_b32 v29, v29, v30, vcc")
    a("v_cmp_gt_u32 vcc, 320, v31")
    a("v_cndmask_b32 v27, v30, v27, vcc")
    a("v_cndmask_b32 v28, v30, v28, vcc")
    a("v_cndmask_b32 v29, v30, v29, vcc")
    a(f"v_cndmask_b32 v{vKVT}, v30, v{vKVT}, vcc")
    a("v_lshlrev_b32 v26, 4, v26")
    a("v_mul_u32_u24 v24, 20, v0")
    a("s_waitcnt lgkmcnt(0)")
    srd(a, S_WS, 50, 51, 64 * MB)
    srd(a, S_V, 50, 51, 16 * MB, WS_VF)
    srd(a, S_X, 44, 45, 2621440)
    srd(a, S_WQ, 46, 47, 5242880)
    srd(a, S_DBG, 48, 49, 256)
    a(f"s_sub_u32 s{sT}, 15, s{sP}")
    a(f"s_lshl_b32 s{sT2}, s{sRB}, 5")
    a(f"s_lshl_b32 s{sCT2}, s{sT}, 7")
    a(f"s_add_u32 s{sCT2}, s{sCT2}, s{sT2}")
    a(f"s_lshl_b32 s{sCT1}, s{sP}, 7")
    a(f"s_add_u32 s{sCT1}, s{sCT1}, s{sT2}")
    a(f"s_cmp_eq_u32 s{sG}, 0")
    a(f"s_cselect_b32 s{sROW}, s{sCT1}, s{sCT2}")
    a(f"s_mul_i32 s{sXO}, s{sROW}, 1280")
    a(f"s_lshl_b32 s{sQWO}, s{sW}, 16")
    a(f"s_lshl_b32 s{sT}, s{sH}, 8")
    a(f"s_add_u32 s{sQWO}, s{sQWO}, s{sT}")
    a(f"s_lshl_b32 s{sT}, s{sH}, 12")
    a(f"s_add_u32 s{sT}, s{sT}, {WS_CTX}")
    for c in (sCT1, sCT2):
        a(f"s_mul_i32 s{c}, s{c}, {CS // 16}")
        a(f"s_add_u32 s{c}, s{c}, s{sT}")
    a(f"s_lshl_b32 s{sOB}, s{sH}, 6")
    a(f"s_lshl_b32 s{sT}, s{sP}, 3")
    a(f"s_add_u32 s{sOB}, s{sOB}, s{sT}")
    a(f"s_and_b32 s{sT}, s{sW}, 1")
    a(f"s_lshl_b32 s{sT}, s{sT}, 2")
    a(f"s_add_u32 s{sOB}, s{sOB}, s{sT}")
    a(f"s_lshl_b32 s{sOB}, s{sOB}, 13")
    a(f"s_bfe_u32 s{sT}, s{sW}, 0x10001")
    a(f"s_add_u32 s{sT2}, s{sG}, 11")
    a(f"s_lshl_b32 s{sT}, s{sT}, s{sT2}")
    a(f"s_add_u32 s{sOB}, s{sOB}, s{sT}")
    a(f"s_lshl_b32 s{sT}, s{sG}, 24")
    a(f"s_add_u32 s{sOB}, s{sOB}, s{sT}")
    a(f"s_lshl_b32 s{sN1}, s{sP}, 2")
    a(f"s_add_u32 s{sN1}, s{sN1}, 4")
    a(f"s_mov_b32 s{sNB}, s{sN1}")
    a(f"s_lshl_b32 s{sHIST[0]}, s{sH}, 19")
    a(f"s_lshl_b32 s{sT}, s{sRB}, 11")
    a(f"s_add_u32 s{sHIST[0]}, s{sHIST[0]}, s{sT}")
    a(f"s_lshl_b32 s{sM0K}, s{sW}, 11")
    a(f"s_add_u32 s{sM0V}, s{sM0K}, 65536")
    a(f"s_sub_u32 s{sT2}, s{sN1}, 4")
    a(f"s_sub_u32 s{sWRAP}, s{sN1}, 2")
    a(f"s_sub_u32 s{sWRAP}, s{sWRAP}, s{sG}")
    a(f"s_mov_b32 s{sBASE}, 8192")
    a(f"s_cmp_eq_u32 s{sG}, 0")
    a(f"s_cselect_b32 s{sMST}, s{sT2}, 99")
    a(f"s_cselect_b32 s{sN1}, s{sN1}, 100")
    a(f"s_add_u32 s{sHIST[1]}, s{sHIST[0]}, 8192")
    a(f"s_add_u32 s{sHIST[2]}, s{sHIST[0]}, 16384")
    a(f"s_mov_b64 s[{sEV}:{sEV+1}], {(127 if FUSE else 63) if 'noev' not in OPT else 64}")
    a(f"s_add_u32 s{sT}, s{sMST}, 1")
    a(f"s_lshl_b64 s[{sEV}:{sEV+1}], s[{sEV}:{sEV+1}], s{sT}")
    if SHARE:
        a(f"s_mul_i32 s{S_T}, s{sG}, 45")
        a(f"s_mov_b32 s{S_T+1}, 0")
        a(f"s_sub_u32 s{sT}, s{sNB}, 3")
        a(f"s_lshl_b64 s[{S_T}:{S_T+1}], s[{S_T}:{S_T+1}], s{sT}")
        a(f"s_or_b64 s[{sEV}:{sEV+1}], s[{sEV}:{sEV+1}], s[{S_T}:{S_T+1}]")
        a(f"s_cmp_eq_u32 s{sG}, 0")
        a(f"s_cselect_b32 s{S_V+2}, s{S_V+2}, 0")
    a(f"s_bitset1_b64 s[{sEV}:{sEV+1}], s{sWRAP}")
    a(f"s_or_b32 s{sEV}, s{sEV}, 0x80000002")
    a(f"s_or_b32 s{sEV+1}, s{sEV+1}, 6")
    a(f"s_mov_b32 s{sTHR}, 0x40004000")
    a(f"s_mov_b32 s{S_T+3}, 0x00020000")
    if 'tlb' in OPT:
        a(f"s_lshl_b32 s{sT}, s{sW}, 2")
        a(f"s_lshr_b32 s3, 0xdba84210, s{sT}")
        a("s_and_b32 s3, s3, 15")
        a("s_lshl_b32 s3, s3, 3")
        a(f"s_load_dwordx2 s[{S_T}:{S_T+1}], s[0:1], s3")
        a(f"s_lshr_b32 s3, 0x5a8a5555, s{sT}")
        a("s_and_b32 s3, s3, 15")
        a(f"s_lshl_b32 s{S_T+2}, s3, 19")
        a("v_lshlrev_b32 v118, 20, v0")
        a("s_lshl_b32 s3, s2, 10")
        a(f"s_lshr_b32 s{sT}, s2, 3")
        a(f"s_lshl_b32 s{sT}, s{sT}, 21")
        a(f"s_lshl_b32 s{sT2}, s{sW}, 12")
        a(f"s_add_u32 s{sT}, s{sT}, s{sT2}")
        a("s_waitcnt lgkmcnt(0)")
        a("s_mov_b64 exec, 0x3f")
        emit([[(f"buffer_load_dword v{vSC}, v118, {S4(S_T)}, s3 offen sc1", "pf")]])
        a("s_mov_b64 exec, 3")
        emit([[(f"buffer_load_dword v{vSC}, v118, {S4(S_WS)}, s{sT} offen sc1", "pf")]])
        a("s_mov_b64 exec, -1")

    XB = [0, 32768, 131072]
    def q_dma_x(k):
        tg = ("q", k)
        out = [[f"s_add_u32 m0, s{sM0C}, {XB[(k+2)%3]}", f"s_add_u32 s{sT}, s{sXO}, {k*128}",
                (f"buffer_load_dwordx4 v{vXD}, {S4(S_X)}, s{sT} offen lds", tg)]]
        for i in range(1, 4): out.append([(f"buffer_load_dwordx4 v{vXD+i}, {S4(S_X)}, s{sT} offen offset:{i*1024} lds", tg)])
        return out
    def q_dma_w(k):
        tg = ("q", k)
        return [[f"s_add_u32 m0, s{sM0V}, {(k%3)*16384}", f"s_add_u32 s{sT}, s{sQWO}, {k*64*8192}",
                 (f"buffer_load_dwordx4 v{vQW}, {S4(S_WQ)}, s{sT} offen lds", tg)],
                [(f"buffer_load_dwordx4 v{vQW+1}, {S4(S_WQ)}, s{sT} offen offset:1024 lds", tg)]]
    GX, GXT, GWT, GW, KR, VR, SH = 80, 84, 85, 86, 90, 101, 110
    def tsrd(lo, size): return [f"s_mov_b32 s{S_T}, s{lo}", f"s_mov_b32 s{S_T+1}, s{lo+1}", f"s_mov_b32 s{S_T+2}, {size}"]
    def side_loads():
        L = []
        it = tsrd(PT + 8, 5242880) + [f"s_lshr_b32 s3, s2, 1", "s_lshl_b32 s3, s3, 5", f"s_lshl_b32 s{sT2}, s{sW}, 2",
              f"s_add_u32 s3, s3, s{sT2}", "s_mul_i32 s3, s3, 1280", f"s_and_b32 s{sS}, s2, 1", f"s_mul_i32 s{sS}, s{sS}, 640",
              f"s_add_u32 s3, s3, s{sS}", f"s_mul_i32 s{sT2}, s{sT2}, 672", "s_mov_b32 exec_hi, 0xff"]
        for i in range(4):
            it += [f"s_add_u32 m0, s{sT2}, {WOB+672*i}", f"s_add_u32 s{sS}, s3, {1280*i}",
                   (f"buffer_load_dwordx4 v{vL16}, {S4(S_T)}, s{sS} offen lds", "prA")]
        it += ["s_mov_b32 exec_hi, -1"]
        L.append(it)
        L.append(["s_lshl_b32 s3, s2, 3", f"s_add_u32 s3, s3, s{sW}", "s_mul_i32 s3, s3, 1280",
                  (f"buffer_load_dwordx4 {vr(GX,4)}, v24, {S4(S_X)}, s3 offen", "prA"),
                  (f"buffer_load_dword v{GXT}, v24, {S4(S_X)}, s3 offen offset:16", "prA")])
        L.append(tsrd(PT + 10, 1280) + [(f"buffer_load_dwordx4 {vr(GW,4)}, v24, {S4(S_T)}, 0 offen", "prA"),
                  (f"buffer_load_dword v{GWT}, v24, {S4(S_T)}, 0 offen offset:16", "prA")])
        L.append(tsrd(PT + 4, 5120) + [(f"buffer_load_dwordx4 {vr(SH,4)}, v26, {S4(S_T)}, 0 offen", "pr")])
        for j in range(11):
            o = f"v29, {S4(S_T)}, 0 offen offset:{1280*j}" if j < 3 else f"v{27 if j < 7 else 28}, {S4(S_T)}, 0 offen offset:{1280*((j-3)%4)}"
            L.append((tsrd(PT, 2621440) if j == 0 else []) + [(f"buffer_load_dword v{KR+j}, {o}", "pr")])
        for j in range(8):
            L.append((tsrd(PT + 2, 2621440) if j == 0 else []) +
                     [(f"buffer_load_dword v{VR+j}, v{27 if j < 4 else 28}, {S4(S_T)}, 0 offen offset:{1280*(j%4)}", "pr")])
        if 'nohpf' not in OPT:
            L.append(tsrd(PT + 6, 2621440) + ["s_lshr_b32 s3, s2, 1", "s_mul_i32 s3, s3, 5", f"s_and_b32 s{sT2}, s2, 1", f"s_mul_i32 s{sT2}, s{sT2}, 3",
                      f"s_add_u32 s3, s3, s{sT2}", f"s_add_u32 s3, s3, s{sW}", "s_lshl_b32 s3, s3, 12", f"s_cmp_ge_u32 s{sW}, 3",
                      f"s_cselect_b32 s3, {OOB}, s3", "s_mov_b32 exec_hi, 0",
                      (f"buffer_load_dword v109, v{vPF}, {S4(S_T)}, s3 offen sc1", "pr"), "s_mov_b32 exec_hi, -1"])
        if 'nopf' not in OPT:
            L.insert(0, [f"s_lshl_b32 s3, s{sP}, 3", f"s_add_u32 s3, s3, s{sW}", f"s_mul_i32 s3, s3, {10*8192}", f"s_lshl_b32 s{sT2}, s{sH}, 8",
                      f"s_add_u32 s3, s3, s{sT2}", "s_mov_b64 exec, 0xfffff",
                      (f"buffer_load_dword v{vPFW}, v{vPFW}, {S4(S_WQ)}, s3 offen sc1", "pfq"), "s_mov_b64 exec, -1"])
        return L

    def side_jobs():
        L = []
        t0, t1, t2, t3, t4, t5 = 24, 25, 26, 27, 28, 29
        for i in range(3):
            L.append([f"ds_read_b64_tr_b16 v[{116+4*i}:{117+4*i}], v{vWOT} offset:{256*i}"])
            L.append([f"ds_read_b64_tr_b16 v[{118+4*i}:{119+4*i}], v{vWOT} offset:{256*i+16*672}"])
        L.append([f"v_mov_b32 v{t0}, 0"])
        for x, w in [(GX + i, GW + i) for i in range(4)] + [(GXT, GWT)]:
            L += [[s] for s in [f"v_lshlrev_b32 v{t1}, 16, v{x}", f"v_and_b32 v{t2}, 0xffff0000, v{x}",
                                f"v_lshlrev_b32 v{t3}, 16, v{w}", f"v_and_b32 v{t4}, 0xffff0000, v{w}",
                                f"v_mul_f32 v{t1}, v{t1}, v{t3}", f"v_mul_f32 v{t2}, v{t2}, v{t4}"] + rnd_pair(t3, t1, t2, t1, t2) +
                               [f"v_add_f32 v{t0}, v{t0}, v{t1}", f"v_add_f32 v{t0}, v{t0}, v{t2}"]]
        for m in ("row_shr:1", "row_shr:2", "row_shr:4", "row_shr:8"):
            L.append([f"v_add_f32_dpp v{t0}, v{t0}, v{t0} {m} row_mask:0xf bank_mask:0xf bound_ctrl:0"])
        L.append([f"v_add_f32_dpp v{t0}, v{t0}, v{t0} row_bcast:15 row_mask:0xa bank_mask:0xf"])
        L.append([f"v_add_f32_dpp v{t0}, v{t0}, v{t0} row_bcast:31 row_mask:0xc bank_mask:0xf"])
        L += [[s] for s in rnd_pair(t1, t0, t0, t0, t2)[:2] +
              [f"v_mul_f32 v{t0}, 0xbfb8aa3b, v{t0}", f"v_exp_f32 v{t0}, v{t0}", f"v_cmp_eq_u32 vcc, 63, v0",
               f"v_add_f32 v{t0}, 1.0, v{t0}", f"v_rcp_f32 v{t0}, v{t0}", f"v_cndmask_b32 v{t2}, v30, 0, vcc"] +
              rnd_pair(t1, t0, t0, t0, t3)[:2]]
        L.append(["s_lshl_b32 s3, s2, 3", f"s_add_u32 s3, s3, s{sW}", "s_lshl_b32 s3, s3, 2", f"s_add_u32 s3, s3, {WS_G}",
                  (f"buffer_store_dword v{t0}, v{t2}, {S4(S_WS)}, s3 offen{' sc1' if FUSE else ''}", "pr2")])
        if not FUSE: L.append(["s_lshr_b32 s3, s2, 5", "s_lshl_b32 s3, s3, 12", f"s_and_b32 s{sT2}, s2, 31", f"s_lshl_b32 s{sT2}, s{sT2}, 2",
                  f"s_add_u32 s3, s3, s{sT2}", f"s_add_u32 s3, s3, {WS_FLG}", f"v_mov_b32 v{t1}, 0",
                  (f"buffer_store_dword v{t1}, v{t2}, {S4(S_WS)}, s3 offen{' sc1' if FUSE else ''}", "pr2")])
        L.append(["s_and_b32 s3, s2, 1", "s_mul_i32 s3, s3, 20", f"s_add_u32 s3, s3, s{sW}", f"s_mul_i32 s3, s3, {CS}",
                  f"s_lshr_b32 s{sT2}, s2, 1", f"s_lshl_b32 s{sT2}, s{sT2}, 10", f"s_add_u32 s3, s3, s{sT2}",
                  f"s_add_u32 s3, s3, {WS_WOT}", (f"buffer_store_dwordx4 v[116:119], v{vL16}, {S4(S_WS)}, s3 offen{' sc1' if FUSE else ''}", "pr2")])
        L.append([f"s_add_u32 s3, s3, {8*CS}", (f"buffer_store_dwordx4 v[120:123], v{vL16}, {S4(S_WS)}, s3 offen{' sc1' if FUSE else ''}", "pr2")])
        L.append([f"s_add_u32 s3, s3, {8*CS}", f"s_cmp_ge_u32 s{sW}, 4", f"s_cselect_b32 s3, {OOB}, s3",
                  (f"buffer_store_dwordx4 v[124:127], v{vL16}, {S4(S_WS)}, s3 offen{' sc1' if FUSE else ''}", "pr2")])
        W = 80
        for c in range(2):
            for q in range(2):
                L.append([f"v_lshlrev_b32 v{W+4*c+2*q}, 16, v{SH+2*c+q}"])
                L.append([f"v_and_b32 v{W+4*c+2*q+1}, 0xffff0000, v{SH+2*c+q}"])
        KL, KH = [110, 111, 112, 113], [88, 89, 109, 114]
        def unp(j): return [f"v_lshlrev_b32 v{KL[j%4]}, 16, v{KR+j}", f"v_and_b32 v{KH[j%4]}, 0xffff0000, v{KR+j}"]
        for j in range(3): L += [[s] for s in unp(j)]
        for s in range(8):
            ops = unp(s + 3)
            ops += [f"v_mul_f32 v{t0}, v{KL[s%4]}, v{W+3}", f"v_mul_f32 v{t1}, v{KH[s%4]}, v{W+7}"]
            for j in (2, 1, 0):
                ops += [f"v_fmac_f32 v{t0}, v{KL[(s+3-j)%4]}, v{W+j}", f"v_fmac_f32 v{t1}, v{KH[(s+3-j)%4]}, v{W+4+j}"]
            ops += [f"v_lshlrev_b32 v{t3}, 16, v{VR+s}", f"v_and_b32 v{t4}, 0xffff0000, v{VR+s}"]
            if s % 2 == 0:
                ops += [f"v_mul_f32 v118, v{t0}, v{t3}", f"v_mul_f32 v119, v{t1}, v{t4}"]
            else:
                ops += [f"v_mul_f32 v{t0}, v{t0}, v{t3}", f"v_mul_f32 v{t1}, v{t1}, v{t4}",
                        f"v_cvt_pk_bf16_f32 v{120+s//2}, v118, v{t0}", f"v_cvt_pk_bf16_f32 v{124+s//2}, v119, v{t1}"]
            L += [[x] for x in ops]
        L.append([f"s_mov_b32 s3, {WS_KVT}", (f"buffer_store_dwordx4 v[120:123], v{vKVT}, {S4(S_WS)}, s3 offen{' sc1' if FUSE else ''}", "pr2")])
        L.append([f"s_mov_b32 s3, {WS_KVT+4096}", (f"buffer_store_dwordx4 v[124:127], v{vKVT}, {S4(S_WS)}, s3 offen{' sc1' if FUSE else ''}", "pr2")])
        return L

    def kdma(e, tg):
        return [[f"s_add_u32 m0, s{sM0K}, {(e & 3) * 16384}", "s_nop 0",
                 (f"buffer_load_dwordx4 v{vL16}, {S4(S_K)}, s{sHIST[e&3]} offen sc1 lds", tg)],
                [(f"buffer_load_dwordx4 v{vL16}, {S4(S_K)}, s{sHIST[e&3]} offen offset:1024 sc1 lds", tg)]]
    vPOLL, vZERO, vFL = 24, 25, 26
    vCL = 31
    def only(wave, body, extra=None):
        lab = a.uid("ONLY")
        a(f"s_cmp_lg_u32 s{sW}, {wave}")
        a(f"s_cbranch_scc1 {lab}")
        if extra:
            a(extra); a(f"s_cbranch_scc1 {lab}")
        for x in body: a(x)
        a.label(lab)
    def clear_line():
        body = [f"s_lshl_b32 s3, s{sH}, 12", f"s_add_u32 s3, s3, {WS_FL2 - WS_FLG}", "v_lshl_add_u32 v116, v0, 2, s3",
                f"s_lshl_b32 s3, s{sH}, 2", f"s_add_u32 s3, s3, {WS_FL3 - WS_FLG - 16 * 4096}", "v_lshl_add_u32 v118, v0, 12, s3",
                "v_cmp_le_u32 vcc, 16, v0", "v_and_b32 v119, 7, v0", "v_lshl_add_u32 v119, v119, 3, s2", "v_cndmask_b32 v116, v116, v118, vcc",
                "v_lshrrev_b32 v118, 5, v119", "v_and_b32 v119, 31, v119", "v_lshlrev_b32 v119, 2, v119", "v_lshl_add_u32 v118, v118, 12, v119",
                "v_cmp_le_u32 vcc, 32, v0", f"v_mov_b32 v{vCL}, 0", f"s_mov_b32 s3, {WS_FLG}", "v_cndmask_b32 v116, v116, v118, vcc",
                f"buffer_store_dword v{vCL}, v116, {S4(S_WS)}, s3 offen sc1"]
        only(3, body, f"s_cmp_lg_u32 s{sP}, 0")
    def clean_set():
        only(3, ["s_mov_b64 exec, 1", "v_mov_b32 v117, 1", f"s_lshl_b32 s3, s{sH}, 2",
                 f"buffer_store_dword v117, v{vCL}, {S4(S_DBG)}, s3 offen offset:128 sc1", "s_mov_b64 exec, -1"], f"s_cmp_lg_u32 s{sP}, 0")
    def clean_issue(site):
        a(f"s_bfe_u32 s{sT2}, s2, 0x10003")
        only(2, [f"v_and_b32 v{vCL}, 31, v0", f"v_lshlrev_b32 v{vCL}, 2, v{vCL}",
                 f"buffer_load_dword v{vCL}, v{vCL}, {S4(S_DBG)}, 0 offen offset:128 sc1"], f"s_cmp_lg_u32 s{sT2}, {site}")
    def clean_check():
        lab = a.uid("CLN")
        a(f"s_cmp_lg_u32 s{sW}, 2")
        a(f"s_cbranch_scc1 {lab}D")
        a(f"s_mov_b32 s{sT2}, 0")
        a(f"s_branch {lab}C")
        a.label(lab)
        a("s_sleep 32")
        a(f"buffer_load_dword v{vCL}, v{vFL}, {S4(S_DBG)}, 0 offen offset:128 sc1")
        a("s_waitcnt vmcnt(0)")
        a.label(lab + "C")
        a(f"v_cmp_eq_u32 vcc, 0, v{vCL}")
        a(f"s_add_u32 s{sT2}, s{sT2}, 1")
        a(f"s_cbranch_vccz {lab}D")
        a(f"s_cmp_lt_u32 s{sT2}, 100000")
        a(f"s_cbranch_scc1 {lab}")
        a.label(lab + "D")
    def publish(wave, which):
        only(wave, ["s_mov_b64 exec, 1", f"v_mov_b32 v{vPOLL}, 1", f"s_lshl_b32 s3, s{sH}, 10", f"s_add_u32 s3, s3, s{sP}",
                    "s_lshl_b32 s3, s3, 2", f"s_add_u32 s3, s3, {WS_FL2 + 32 * which}",
                    f"buffer_store_dword v{vPOLL}, v{vZERO}, {S4(S_WS)}, s3 offen sc1", "s_mov_b64 exec, -1"])
    def line_addr(ctx0): return [f"s_mov_b32 s3, {WS_FL3}"] if ctx0 else [f"s_lshl_b32 s3, s{sH}, 12", f"s_add_u32 s3, s3, {WS_FL2}"]
    def poll_issue(wave, ctx0=False):
        only(wave, line_addr(ctx0) + [
                    f"buffer_load_dword v{vPOLL}, v{vFL}, {S4(S_WS)}, s3 offen sc1"])
    def poll(wave, need, vmw, ctx0=False):
        if 'nopoll' in OPT: return
        lab = a.uid("POLL")
        a(f"s_cmp_lg_u32 s{sW}, {wave}")
        a(f"s_cbranch_scc1 {lab}D")
        for x in line_addr(ctx0): a(x)
        a(f"s_mov_b32 s{sT2}, 0")
        a(f"s_waitcnt vmcnt({vmw})")
        a(f"s_branch {lab}C")
        a.label(lab)
        a(f"s_sleep {OPT.get('sleep', 8)}")
        a(f"buffer_load_dword v{vPOLL}, v{vFL}, {S4(S_WS)}, s3 offen sc1")
        a("s_waitcnt vmcnt(0)")
        a.label(lab + "C")
        a(f"v_cmp_eq_u32 vcc, 0, v{vPOLL}")
        a(f"s_add_u32 s{sT2}, s{sT2}, 1")
        a(f"s_and_b32 s{S_T}, vcc_lo, {need}")
        a(f"s_cbranch_scc0 {lab}D")
        a(f"s_cmp_lt_u32 s{sT2}, 100000")
        a(f"s_cbranch_scc1 {lab}")
        a.label(lab + "D")

    if 'noipf' not in OPT:
        only(6, ["s_getpc_b64 s[80:81]" if not STAMP else "s_getpc_b64 s[100:101]",
                 "s_lshr_b32 s3, s2, 3", "s_mul_i32 s3, s3, 3072", "v_lshl_add_u32 v118, v0, 7, s3",
                 "v_min_u32 v118, CODE_SPAN, v118",
                 f"v_mov_b32 v119, s{81 if not STAMP else 101}", f"v_add_co_u32 v118, vcc, s{80 if not STAMP else 100}, v118", "v_addc_co_u32 v119, vcc, 0, v119, vcc",
                 "s_mov_b64 exec, 0xffffff", "global_load_dword v120, v[118:119], off sc1", "s_mov_b64 exec, -1"])
        a.label("M_IPF")
    a(f"s_waitcnt vmcnt({vm.wait(('kv', 0))})")
    a("s_barrier")
    sp.mark("kv0")
    a(f"s_cmp_lg_u32 s{sG}, 0")
    a("s_cbranch_scc1 M_KVV")
    vm0 = list(vm.tags)
    spn = sp.n
    vAX, vAQ, vST = 2, 6, 10
    QA = 128
    PK = lambda z: (240 + 4 * z) if z < 4 else (80 + 4 * (z - 4))
    endwait = []
    for part in range(2):
        if part: a.label("M_KVV")
        vm.tags = list(vm0)
        sp.n = spn
        S = Stream(a, vm, dist=int(OPT.get('kd', 12)), per_gap=int(OPT.get('kpg', 2)), bar_delay=int(OPT.get('kbd', 3)))
        S.fill_rate = float(OPT.get('fr', 1.0))
        rl = []
        sl = side_loads()
        SH0 = int(OPT.get('sh0', 0))
        for st in range(8):
            buf = (st & 1) * 32768
            for u in range(2):
                x = 2 * st + u
                for nt in range(4):
                    for hf in range(2):
                        rg = WFR[x & 1] + 4 * nt + 2 * hf
                        rl.append((32 * x + nt - 6, ("w", x, nt, hf),
                                   f"ds_read_b64_tr_b16 {vr(rg,2)}, v{vAW+nt} offset:{buf+u*8192+hf*1024}", rg, st))
                for kt in range(8):
                    rg = CFR + 4 * (kt % int(OPT.get('kring', 4)))
                    rl.append((32 * x + 4 * kt, ("c", x, kt), f"ds_read_b128 {vr(rg,4)}, v{vAC+u} offset:{buf+kt*2048}", rg, st))
                    for nt in range(4):
                        idx = kt * 4 + nt if part == 0 else ((kt >> 1) * 4 + nt) * 2 + (kt & 1)
                        acc = vr(ACC + 4 * idx, 4)
                        w, c = vr(WFR[x & 1] + 4 * nt, 4), vr(rg, 4)
                        cin = "0" if x == 0 else acc
                        S.op(f"{MFMA16} {acc}, {w}, {c}, {cin}" if part == 0 else f"{MFMA16} {acc}, {c}, {w}, {cin}",
                             [("w", x, nt, 0), ("w", x, nt, 1), ("c", x, kt)])
            after = kv_dma(st + 2) if st < 6 else []
            if st == 5: after = after + q_dma_x(0)
            if st == 6: after = q_dma_w(0) + q_dma_x(1) + q_dma_w(1)
            if st == 7: after = q_dma_x(2) + q_dma_w(2)
            if part == 1: after = [[] for _ in range(int(OPT.get('stag', 14)))] + after
            if 'noside' not in OPT:
                if st == SH0: after = after + sl[1:5]
                if st == SH0 + 1: after = after + sl[5:16]
                if st == SH0 + 2: after = after + sl[16:] + sl[0:1]
            if part == 0:
                if st == 0: after = after + [clear_line]
                if st == 2: after = [clean_set] + after
                if st in (4, 5): after = after + [lambda st=st: clean_issue(st - 4)]
            tags = [("kv", st + 1)] if st < 7 else [("q", 0)]
            if st == 2: tags += ["pf"]
            if st == SH0 + 2: tags += ["prA"]
            if st == SH0 + 4: tags += ["pr", "pfq"]
            after = [lambda st=st: sp.mark(f"k{st}")] + after
            S.barrier_after_stage(st, tags, after)
        rl.sort(key=lambda r: (r[4], r[0]))
        for r in rl: S.read(r[1], r[2], r[3], r[4], r[0])
        sj = side_jobs()
        nk = [i for i, it in enumerate(sj) if f"v_lshlrev_b32 v80, 16, v{SH}" in it][0]
        if 'noside' in OPT: sj = []
        for it in sj[:nk]: S.filler((SH0 + 3) * 64 + 24, 1, it)
        for it in sj[nk:]: S.filler((SH0 + 5) * 64, 1, it)
        S.run([0])
        sp.mark("kv")
        a(f"s_lshr_b32 s{sT}, s{sW}, 1")
        a(f"s_lshl_b32 s{sT}, s{sT}, 13")
        a(f"s_and_b32 s{sT2}, s{sW}, 1")
        a(f"s_lshl_b32 s{sT2}, s{sT2}, 2")
        a("s_mov_b32 s3, 65536")
        frag_addrs(vAX, sT, vAQ, sT2, 3)
        a(f"v_add_u32 v{vAX+2}, 131072, v{vAX}")
        a(f"v_add_u32 v{vAX+3}, 131072, v{vAX+1}")
        S = Stream(a, vm, dist=10, per_gap=2, bar_delay=3)
        S.fill_rate = 1.0
        rl = []
        EARLYV = 'latev' not in OPT
        KPUB, VPUB = int(OPT.get('kpub', 4)), int(OPT.get('vpub', 8 if EARLYV else 9))
        for k in range(10):
            xb = XB[(k + 2) % 3]
            for u in range(2):
                x = 2 * k + u
                for nt in range(4):
                    for hf in range(2):
                        rg = WFR[x & 1] + 4 * nt + 2 * hf
                        rl.append((16 * x + nt - 5, ("w", x, nt, hf),
                                   f"ds_read_b64_tr_b16 {vr(rg,2)}, v{vAQ+nt} offset:{(k%3)*16384+u*8192+hf*1024}", rg, k))
                for qi in range(4):
                    rg = CFR + 4 * qi
                    av = vAX + u + (2 if xb == 131072 else 0)
                    rl.append((16 * x + 4 * qi, ("c", x, qi), f"ds_read_b128 {vr(rg,4)}, v{av} offset:{(xb%131072)+qi*2048}", rg, k))
                    for nt in range(4):
                        acc = vr(QA + 4 * (qi * 4 + nt), 4)
                        S.op(f"{MFMA16} {acc}, {vr(WFR[x&1]+4*nt,4)}, {vr(rg,4)}, {'0' if x == 0 else acc}",
                             [("w", x, nt, 0), ("w", x, nt, 1), ("c", x, qi)])
            tags, after, pre = [("q", k + 1)], [], None
            if k + 3 <= 9: after = q_dma_x(k + 3) + q_dma_w(k + 3)
            if k == 0 and part == 0: pre = clean_check
            if k == KPUB: tags.append("pr2")
            if k == KPUB and part == 0: tags.append("st"); after = [lambda: publish(0, 0)] + after
            KP = int(OPT.get('kpoll', 7))
            if k == KP - 1 and part == 0: after = [lambda: (poll_issue(1), vm.add("mark"), vm.ghost.add("mark"))] + after
            if k == KP:
                if part == 0: pre = lambda: poll(1, 1, vm.wait("mark"))
                after = [[f"s_mov_b32 s{S_K}, s{S_WS}", f"s_mov_b32 s{S_K+1}, s{S_WS+1}", f"s_mov_b32 s{S_K+2}, s{S_V+2}"]] + kdma(0, "k0") + kdma(1, "k0")
            if k == 8: after = after + kdma(2, "k2")
            if k == 9: tags = []
            if k == VPUB and part == 1: tags.append("st"); after = [lambda: publish(4, 1)] + after
            if k == 9 and part == 1 and EARLYV: after = after + [lambda: poll_issue(5)]
            after = [lambda k=k: sp.mark(f"q{k}")] + after
            S.barrier_after_stage(k, tags, after, pre)
        rl.sort(key=lambda r: (r[4], r[0]))
        for r in rl: S.read(r[1], r[2], r[3], r[4], r[0])
        npre = 10
        for r in rl[:npre]: a(r[2])
        a(f"v_add_u32 v{vST}, {4096 >> part}, v{vL16}")
        a(f"v_mov_b32 v{vZERO}, 0")
        a(f"v_and_b32 v{vFL}, 31, v0")
        a(f"v_lshlrev_b32 v{vFL}, 2, v{vFL}")
        for z in list(range(4, 16)) + list(range(4)):
            for e in range(4):
                a(f"v_cvt_pk_bf16_f32 v{PK(z)+e}, v{ACC+8*z+2*e}, v{ACC+8*z+2*e+1}")
        SC = " " + OPT.get('stsc', 'sc1').replace('_', ' ')
        st0, stp = (2, int(OPT.get('stp', 5))) if part == 0 else (int(OPT.get('vst', 84)), int(OPT.get('stpv', 8)))
        for z in range(16 if 'nost' not in OPT else 1):
            j, c = z >> 2, z & 3
            S.filler(st0 + stp * z, 1, [f"s_add_u32 s3, s{sOB}, {j*8192}",
                     (f"buffer_store_dwordx4 {vr(PK(z),4)}, v{vST if c >> 1 else vL16}, {S4(S_WS)}, s3 offen offset:{(c&1)*1024}{SC}", "st")])
        S.run([0], preissued=npre)
        endwait.append(vm.wait("k0"))
        if part == 0: a("s_branch M_KVD")
    a.label("M_KVD")
    sp.mark("q")
    vKA, vVA, vD0, vQ2, vKN = 2, 3, 4, 5, 9
    FR, T, P, SS, O, Q, NEGM = 32, 64, [80, 88], [96, 112], 128, 192, 224
    LS, ONES, vTA, vX0, vNINF = 248, 232, 236, 238, 246
    BIAS = 12.0
    D = int(OPT.get('D', 7))
    a(f"s_mov_b32 s{sT}, {f32hex(1.4426950408889634 * 128 ** -0.5)}")
    a(f"s_lshr_b32 s{sT2}, s{sW}, 1")
    a(f"s_lshl_b32 s{sT2}, s{sT2}, 14")
    a(f"s_and_b32 s3, s{sW}, 1")
    a("s_lshl_b32 s3, s3, 11")
    a(f"s_add_u32 s{sT2}, s{sT2}, s3")
    a(f"s_add_u32 s{sT2}, s{sT2}, 98304")
    a(f"v_add_u32 v6, s{sT2}, v{vL16}")
    a(f"s_lshl_b32 s{sT2}, s{sW}, 13")
    a(f"s_add_u32 s{sT2}, s{sT2}, 98304")
    a(f"v_add_u32 v{vQ2}, s{sT2}, v{vL16}")
    if SHARE: a(f"v_mov_b32 v{vKA}, v{vL16}")
    else:
        a(f"s_lshl_b32 s{sT2}, s{sG}, 13")
        a(f"v_add_u32 v{vKA}, s{sT2}, v{vL16}")
    a(f"v_mov_b32 v{vKN}, v{vKA}")
    a(f"v_add_u32 v{vVA}, 65536, v{vKA}")
    for f in range(8):
        for e in range(4):
            r = QA + 8 * f + 2 * e
            a(f"v_mul_f32 v{r}, s{sT}, v{r}")
            a(f"v_mul_f32 v{r+1}, s{sT}, v{r+1}")
            a(f"v_cvt_pk_bf16_f32 v{Q+4*f+e}, v{r}, v{r+1}")
        a(f"ds_write_b128 v6, {vr(Q+4*f,4)} offset:{(f>>1)*4096+(f&1)*1024}")
    a("v_and_b32 v7, 15, v0")
    a("v_lshrrev_b32 v8, 4, v0")
    a(f"s_lshl_b32 s{sT}, s{sRB}, 5")
    a(f"v_add_u32 v{vD0}, s{sT}, v7")
    a("v_lshlrev_b32 v8, 2, v8")
    a(f"v_sub_u32 v{vD0}, v{vD0}, v8")
    a(f"v_mov_b32 v{vNINF}, 0xff800000")
    a(f"s_mul_i32 s{sT}, s{sW}, {8192+512}")
    a(f"s_xor_b32 s{sT2}, s{sW}, 4")
    a(f"s_mul_i32 s{sT2}, s{sT2}, {8192+512}")
    a(f"v_add_u32 v14, s{sT}, v{vL16}")
    a(f"v_add_u32 v15, s{sT2}, v{vL16}")
    a("v_lshlrev_b32 v16, 3, v0")
    a(f"v_add_u32 v17, s{sT2}, v16")
    a(f"v_add_u32 v16, s{sT}, v16")
    for r in range(8): a(f"v_mov_b32 v{NEGM+r}, 0")
    for r in range(4): a(f"v_mov_b32 v{ONES+r}, 0x3f803f80")
    if EARLYV: poll(5, 0x101, 0)
    a(f"s_waitcnt vmcnt({min(endwait)}) lgkmcnt(0)")
    a("s_barrier")
    if not EARLYV: poll_issue(5)
    sp.mark("qx")
    def kread(e, t): return f"ds_read_b128 {vr(FR+4*t,4)}, v{vKN if t < D else vKA} offset:{(e&3)*16384+t*1024}"
    def vread(e, i): return f"ds_read_b128 {vr(FR+4*i,4)}, v{vVA} offset:{(e&3)*16384+i*1024}"
    for f in range(8): a(f"ds_read_b128 {vr(Q+4*f,4)}, v{vQ2} offset:{f*1024}")
    for i in range(D): a(kread(0, i))
    a(f"s_mov_b32 s{sS}, 0")

    handlers = []
    def xreduce(op, x, tmp):
        a(f"v_mov_b32 v{tmp}, v{x}")
        a(f"v_permlane16_swap_b32 v{x}, v{tmp}")
        a(f"{op} v{x}, v{x}, v{tmp}")
        a(f"v_mov_b32 v{tmp}, v{x}")
        a(f"v_permlane32_swap_b32 v{x}, v{tmp}")
        a(f"{op} v{x}, v{x}, v{tmp}")
    def rowmax(dst, tmp, src):
        a(f"v_max3_f32 v{dst}, v{src}, v{src+1}, v{src+2}")
        a(f"v_max3_f32 v{dst}, v{dst}, v{src+3}, v{src+4}")
        a(f"v_max3_f32 v{dst}, v{dst}, v{src+5}, v{src+6}")
        a(f"v_max_f32 v{dst}, v{dst}, v{src+7}")
        xreduce("v_max_f32", dst, tmp)
    def sm_ops(Sc, Pw):
        f = []
        def post(q):
            f.append((1, [f"v_cvt_pk_bf16_f32 v{Pw+q//2}, v{T+q%8}, v{T+(q+1)%8}"]))
            k = q // 2
            if k == 3: f.append((1, [f"v_or3_b32 v{vTA}, v{Pw}, v{Pw+1}, v{Pw+2}"]))
            if k == 5: f.append((1, [f"v_or3_b32 v{vTA}, v{vTA}, v{Pw+3}, v{Pw+4}"]))
            if k == 7:
                f.append((1, [f"v_or3_b32 v{vTA}, v{vTA}, v{Pw+5}, v{Pw+6}"]))
                f.append((1, [f"v_bitop3_b32 v{vTA}, v{vTA}, v{Pw+7}, s{sTHR} bitop3:0xa8"]))
        for r in range(16):
            f.append((2, [f"v_exp_f32 v{T+r%8}, v{Sc+r}"]))
            if r % 2 == 1 and r >= 3: post(r - 3)
        post(14)
        return f
    def store_ctx(qis, sct, obase):
        n = 0
        for qi in qis:
            for u in range(4):
                d = T + (n % 4) * 4
                n += 1
                src = obase(qi) + 8 * u
                for e in range(4): a(f"v_cvt_pk_bf16_f32 v{d+e}, v{src+2*e}, v{src+2*e+1}")
                if u == 0 and qi == 1 and len(qis) == 2: a(f"s_add_u32 s{sct}, s{sct}, {CS}")
                a(f"buffer_store_dwordx4 {vr(d,4)}, v{vL16}, {S4(S_WS)}, s{sct} offen offset:{u*1024}{' sc1' if FUSE else ''}")

    sX = sROW
    def slot(j, name, qk=True, sm=True, pv=True, nxt="k", dma=True, last=False, vlist=None, prefetched=True, prebar=None, vmw=4,
             fresh=False, fast=None):
        par = j & 1
        if vlist is None: vlist = [j]
        Sc, Sn, Pw, Pr = SS[1 - par], SS[par], P[1 - par], P[par]
        if fast:
            a.label(name + "_GO")
            handlers.append(("entry", name))
            handlers.append(("ev", name, Sc))
        else:
            a.label(name)
            if sm or pv:
                a(f"s_bitcmp1_b64 s[{sEV}:{sEV+1}], s{sS}")
                a(f"s_cbranch_scc1 {name}_EV")
                a.label(name + "_GO")
                handlers.append(("ev", name, Sc))
        ms = []
        if qk:
            for t in range(8):
                kt, u = t >> 2, t & 3
                mm = []
                for qi in range(2):
                    d = vr(Sn + 8 * qi + 4 * kt, 4)
                    mm.append(f"{MFMA16} {d}, {vr(FR+4*t,4)}, {vr(Q+16*qi+4*u,4)}, {vr(NEGM+4*qi,4) if u == 0 else d}")
                ms.append((mm, kread(j, t)))
        if pv:
            for i in range(8):
                mm = []
                for qi in range(2):
                    o = vr(O + 32 * qi + 4 * i, 4)
                    mm.append(f"{MFMA16} {o}, {vr(FR+4*i,4)}, {vr(Pr+4*qi,4)}, {'0' if fresh else o}")
                ms.append((mm, vread(j - 2, i)))
        rd = [m[1] for m in ms]
        if nxt == "k": rd += [kread(j + 1, i) for i in range(D)]
        elif nxt == "v": rd += [vread(j - 1, i) for i in range(D)]
        dm = []
        if dma and not ('nodma' in OPT and name.startswith('AT_L')):
            for e in vlist:
                dm.append(([f"s_add_u32 m0, s{sM0V}, {(e & 3) * 16384}"], [f"buffer_load_dwordx4 v{vL16}, {S4(S_V)}, s{sHIST[e&3]} offen sc1 lds"]))
                dm.append(([], [f"buffer_load_dwordx4 v{vL16}, {S4(S_V)}, s{sHIST[e&3]} offen offset:1024 sc1 lds"]))
            h0, h1 = sHIST[(j + 3) & 3], sHIST[(j + 2) & 3]
            dm.append(([f"s_add_u32 m0, s{sM0K}, {((j + 3) & 3) * 16384}", f"s_add_u32 s{h0}, s{h1}, s{sBASE}"],
                       [f"buffer_load_dwordx4 v{vL16}, {S4(S_K)}, s{h0} offen sc1 lds"]))
            dm.append(([], [f"buffer_load_dwordx4 v{vL16}, {S4(S_K)}, s{h0} offen offset:1024 sc1 lds"]))
        groups = []
        n = len(ms)
        if not prefetched:
            for x in rd[:D]: a(x)
        dstep = int(OPT.get('dstep', 2))
        dpos = list(range(1, n, dstep if n == 16 else 2)) if len(dm) <= n // 2 else list(range(n))
        WS = int(OPT.get('wstep', 4))
        for m in range(n):
            pre = []
            if m % WS == 0:
                out = min(len(rd), m + D) - (m + WS)
                pre.append(f"s_waitcnt lgkmcnt({max(out, 0)})")
            post = [rd[m + D]] if m + D < len(rd) else []
            if 'halfread' in OPT and (m + D) % 2 == 1: post = []
            if m in dpos and dpos.index(m) < len(dm):
                pre = dm[dpos.index(m)][0] + pre
                post += dm[dpos.index(m)][1]
            if fast and m == 12: post += [f"s_add_u32 s{sS}, s{sS}, 1", f"s_bitcmp1_b64 s[{sEV}:{sEV+1}], s{sS}", f"s_cselect_b32 s{sX}, 1, 0"]
            groups.append((pre, ms[m][0][0], []))
            groups.append(([], ms[m][0][1], post))
            if pv and m == n - 5:
                for qi in range(2): groups.append(([], f"{MFMA16} {vr(LS+4*qi,4)}, {vr(ONES,4)}, {vr(Pr+4*qi,4)}, {'0' if fresh else vr(LS+4*qi,4)}", []))
        fl = sm_ops(Sc, Pw) if (sm and 'nosm' not in OPT) else []
        if fast: fl.append((1, [f"v_cmp_ne_u32 vcc, s{sX}, v{vTA}"]))
        elif sm: fl.append((1, [f"v_cmp_ne_u32 vcc, 0, v{vTA}"]))
        interleave(a, groups, fl, max(2 * n - 1, 1))
        if fast:
            if fast == "AT_L2":
                a("s_cbranch_vccz AT_TOP")
                a(f"s_branch {name}_SP")
            else:
                a(f"s_cbranch_vccnz {name}_SP")
                a("s_waitcnt vmcnt(4)")
                if 'nobar' not in OPT: a("s_barrier")
            handlers.append(("special", name, fast))
            handlers.append(("slow", name, Sc, Sn, Pw))
            return
        if sm:
            a(f"s_cbranch_vccnz {name}_SLOW")
            a.label(name + "_RET")
            handlers.append(("slow", name, Sc, Sn, Pw))
        if not last:
            a(f"s_add_u32 s{sS}, s{sS}, 1")
            if prebar: prebar()
            a(f"s_waitcnt vmcnt({vmw if dma else 0})")
            a("s_barrier")

    slot(0, "AT_S0", sm=False, pv=False)
    sp.mark("s0")
    slot(1, "AT_S1", pv=False)
    sp.mark("s1")
    poll_issue(2)
    slot(2, "AT_S2", prebar=lambda: poll(2, 0xffff, 4), fresh=True)
    sp.mark("s2")
    a("s_branch AT_L3")
    a(".p2align 6")
    a.label("AT_TOP")
    a("s_waitcnt vmcnt(4)")
    if 'nobar' not in OPT: a("s_barrier")
    slot(2, "AT_L2", fast="AT_L3"); slot(3, "AT_L3", fast="AT_L0"); slot(0, "AT_L0", fast="AT_L1"); slot(1, "AT_L1", fast="AT_L2")
    a.label("AT_P33")
    sp.mark("s32")
    if FUSE: poll_issue(6, True)
    slot(1, "AT_S33", nxt=None, prebar=(lambda: poll(6, -1, 4, True)) if FUSE else None)
    slot(2, "AT_S34", qk=False, nxt=None, dma=False, prefetched=False)
    if FUSE and 'lateconv' not in OPT:
        for x in tsrd(PT + 6, 2621440): a(x)
        gen_tail.conv_dma(a, {k: v for k, v in globals().items() if not k.startswith("__") and k != "gen_tail"}, sW, S_WS, S_T, sT, sT2, 3, sCO, vL16, 18, 19,
                          98304, "AT_S35", " sc1")
    slot(3, "AT_S35", qk=False, sm=False, nxt=None, dma=False, last=True, prefetched=False)
    sp.mark("s35")
    X0, X1, X2, X3, X4, X5 = range(vX0, vX0 + 6)
    a(f"s_cmp_eq_u32 s{sG}, 0")
    a("s_cbranch_scc1 AT_MA")
    for gsel in (1, 0):
        if gsel == 0: a.label("AT_MA")
        own, snd = O + 32 * gsel, O + 32 * (1 - gsel)
        a(f"v_mov_b32 v{X4}, v{NEGM+4*(1-gsel)}")
        a(f"v_mov_b32 v{X5}, v{LS+4*(1-gsel)}")
        a(f"ds_write_b64 v16, v[{X4}:{X5}] offset:8192")
        for q in range(8): a(f"ds_write_b128 v14, {vr(snd+4*q,4)} offset:{1024*q}")
        if gsel: a(f"s_add_u32 s{sCT2}, s{sCT2}, {CS}")
        a("s_waitcnt lgkmcnt(0)")
        a("s_barrier")
        a(f"ds_read_b64 v[{X2}:{X3}], v17 offset:8192")
        for q in range(8): a(f"ds_read_b128 {vr(snd+4*q,4)}, v15 offset:{1024*q}")
        a("s_waitcnt lgkmcnt(8)")
        a(f"v_min_f32 v{vTA}, v{NEGM+4*gsel}, v{X2}")
        a(f"v_sub_f32 v{X0}, v{vTA}, v{NEGM+4*gsel}")
        a(f"v_sub_f32 v{X2}, v{vTA}, v{X2}")
        a(f"v_exp_f32 v{X0}, v{X0}")
        a(f"v_exp_f32 v{X2}, v{X2}")
        a(f"v_mul_f32 v{vTA}, v{LS+4*gsel}, v{X0}")
        a(f"v_fmac_f32 v{vTA}, v{X3}, v{X2}")
        a(f"v_rcp_f32 v{vTA}, v{vTA}")
        a(f"v_mul_f32 v{X0}, v{X0}, v{vTA}")
        a(f"v_mul_f32 v{X2}, v{X2}, v{vTA}")
        for u in range(4):
            for r in range(8 * u, 8 * u + 8): a(f"v_mul_f32 v{own+r}, v{own+r}, v{X0}")
            a(f"s_waitcnt lgkmcnt({6-2*u})")
            for r in range(8 * u, 8 * u + 8): a(f"v_fmac_f32 v{own+r}, v{snd+r}, v{X2}")
            for e in range(4): a(f"v_cvt_pk_bf16_f32 v{T+4*u+e}, v{own+8*u+2*e}, v{own+8*u+2*e+1}")
            a(f"buffer_store_dwordx4 {vr(T+4*u,4)}, v{vL16}, {S4(S_WS)}, s{sCT2} offen offset:{u*1024}{' sc1' if FUSE else ''}")
        if gsel: a("s_branch AT_MB")
    a.label("AT_MB")
    if FUSE:
        sp.mark("att")
        gen_tail.gen_tail(a, {k: v for k, v in globals().items() if not k.startswith("__") and k != "gen_tail"}, dict(sW=sW, sH=sH, sP=sP, sp=sp))
    elif STAMP:
        a("s_waitcnt vmcnt(0)")
        sp.mark("end")
        a("s_waitcnt lgkmcnt(0)")
        sp.flush(100, sW, 0, slot=0); sp.flush(100, sW, 4, slot=1)
    a.label("M_END")
    a("s_endpgm")
    for hd in handlers:
        if hd[0] == "entry":
            name = hd[1]
            a.label(name)
            a(f"s_bitcmp1_b64 s[{sEV}:{sEV+1}], s{sS}")
            a(f"s_cbranch_scc0 {name}_GO")
        elif hd[0] == "special":
            _, name, nx = hd
            a.label(name + "_SP")
            a(f"v_cmp_ne_u32 vcc, 0, v{vTA}")
            a(f"s_cbranch_vccnz {name}_SLOW")
            a.label(name + "_RET")
            a("s_waitcnt vmcnt(4)")
            if 'nobar' not in OPT: a("s_barrier")
            if nx == "AT_L1":
                a(f"s_cmp_eq_u32 s{sS}, 33")
                a("s_cbranch_scc1 AT_P33")
            a(f"s_branch {nx}")
        elif hd[0] == "ev":
            _, name, Sc = hd
            a.label(name + "_EV")
            a(f"s_cmp_eq_u32 s{sS}, s{sWRAP}")
            a(f"s_cselect_b32 s{sBASE}, 16384, s{sBASE}")
            a(f"s_cmp_eq_u32 s{sS}, 31")
            a(f"s_cselect_b32 s{S_K+2}, 0, s{S_K+2}")
            if SHARE:
                a(f"s_cmp_eq_u32 s{sG}, 0")
                a(f"s_cbranch_scc1 {name}_E0")
                a(f"s_sub_u32 s{sT}, s{sS}, s{sNB}")
                a(f"s_cmp_eq_u32 s{sT}, -3")
                a(f"s_cselect_b32 s{S_K+2}, {16*MB}, s{S_K+2}")
                a(f"s_cmp_eq_u32 s{sT}, 0")
                a(f"s_cselect_b32 s{S_V+2}, {16*MB}, s{S_V+2}")
                a(f"s_cselect_b32 s{sT2}, 8192, 0")
                a(f"v_add_u32 v{vKA}, s{sT2}, v{vKA}")
                a(f"s_cmp_eq_u32 s{sT}, -1")
                a(f"s_cselect_b32 s{sT2}, 8192, 0")
                a(f"v_add_u32 v{vKN}, s{sT2}, v{vKN}")
                a(f"s_cmp_eq_u32 s{sT}, 2")
                a(f"s_cselect_b32 s{sT2}, 8192, 0")
                a(f"v_add_u32 v{vVA}, s{sT2}, v{vVA}")
                a.label(name + "_E0")
            a(f"s_sub_u32 s{sT}, s{sS}, s{sN1}")
            a(f"s_cmp_lg_u32 s{sT}, 2")
            a(f"s_cbranch_scc1 {name}_E1")
            a(f"v_rcp_f32 v{vX0}, v{LS}")
            a(f"v_rcp_f32 v{vX0+1}, v{LS+4}")
            for r in range(8): a(f"v_mov_b32 v{LS+r}, 0")
            for r in range(64): a(f"v_mul_f32 v{O+r}, v{O+r}, v{vX0+(r>>5)}")
            store_ctx((0, 1), sCT1, lambda qi: O + 32 * qi)
            for r in range(64): a(f"v_mov_b32 v{O+r}, 0")
            a.label(name + "_E1")
            if FUSE:
                only(0, ["s_mov_b64 exec, 1", f"v_mov_b32 v{vX0}, 1", f"s_lshl_b32 s3, s{sP}, 10", f"s_add_u32 s3, s3, s{sH}", "s_lshl_b32 s3, s3, 2",
                         f"s_add_u32 s3, s3, {WS_FL3}", f"buffer_store_dword v{vX0}, v{vZERO}, {S4(S_WS)}, s3 offen sc1", "s_mov_b64 exec, -1"],
                     f"s_cmp_lg_u32 s{sT}, 3")
            a(f"s_cmp_lg_u32 s{sT}, 0")
            a(f"s_cbranch_scc1 {name}_E2")
            for t in range(8): a(f"ds_read_b128 {vr(Q+4*t,4)}, v{vQ2} offset:{32768+1024*t}")
            for r in range(8): a(f"v_mov_b32 v{NEGM+r}, 0")
            a("s_waitcnt lgkmcnt(0)")
            a.label(name + "_E2")
            a(f"s_sub_u32 s{sT2}, s{sS}, s{sMST}")
            a(f"s_sub_u32 s{sT2}, s{sT2}, 1")
            a(f"s_cmp_lt_u32 s{sT2}, 4")
            a(f"s_cbranch_scc1 {name}_EM")
            a(f"s_cmp_lt_u32 s{sS}, 33")
            a(f"s_cbranch_scc1 {name}_E3")
            a(f"s_sub_u32 s{sT2}, s{sS}, 33")
            a(f"s_lshl_b32 s{sT2}, s{sT2}, 1")
            a(f"s_add_u32 s{sT2}, s{sT2}, s{sG}")
            a.label(name + "_EM")
            a(f"s_lshl_b32 s{sT2}, s{sT2}, 5")
            a(f"v_subrev_u32 v{vX0}, s{sT2}, v{vD0}")
            for qi in range(2):
                for kt in range(2):
                    for e in range(4):
                        a(f"v_cmp_le_i32 s[{sMK+2*e}:{sMK+2*e+1}], {16*kt+e-16*qi}, v{vX0}")
                    for e in range(4):
                        r = Sc + 8 * qi + 4 * kt + e
                        a(f"v_cndmask_b32 v{r}, v{vNINF}, v{r}, s[{sMK+2*e}:{sMK+2*e+1}]")
            a.label(name + "_E3")
            a(f"s_cmp_eq_u32 s{sT}, 1")
            a(f"s_cbranch_scc1 {name}_E4")
            a(f"s_cmp_lg_u32 s{sS}, 1")
            a(f"s_cbranch_scc1 {name}_GO")
            a.label(name + "_E4")
            for qi in range(2):
                rowmax(vX0 + qi, vX0 + 2 + qi, Sc + 8 * qi)
                a(f"v_add_f32 v{vX0+qi}, {f32hex(BIAS)}, v{vX0+qi}")
            for r in range(8): a(f"v_sub_f32 v{NEGM+r}, v{NEGM+r}, v{vX0+(r>>2)}")
            for r in range(16): a(f"v_sub_f32 v{Sc+r}, v{Sc+r}, v{vX0+(r>>3)}")
            a(f"s_branch {name}_GO")
        else:
            _, name, Sc, Sn, Pw = hd
            a.label(name + "_SLOW")
            for qi in range(2):
                rowmax(vX0 + qi, vX0 + 2 + qi, Sc + 8 * qi)
                a(f"v_add_f32 v{vX0+qi}, {f32hex(BIAS)}, v{vX0+qi}")
                a(f"v_max_f32 v{vX0+qi}, 0, v{vX0+qi}")
                a(f"v_exp_f32 v{vX0+2+qi}, -v{vX0+qi}")
            for r in range(8): a(f"v_sub_f32 v{NEGM+r}, v{NEGM+r}, v{vX0+(r>>2)}")
            for r in range(16): a(f"v_sub_f32 v{Sn+r}, v{Sn+r}, v{vX0+(r>>3)}")
            for r in range(16): a(f"v_sub_f32 v{Sc+r}, v{Sc+r}, v{vX0+(r>>3)}")
            for r in range(64): a(f"v_mul_f32 v{O+r}, v{O+r}, v{vX0+2+(r>>5)}")
            for r in range(8): a(f"v_mul_f32 v{LS+r}, v{LS+r}, v{vX0+2+(r>>2)}")
            for c, ops in sm_ops(Sc, Pw):
                for x in ops: a(x)
            a(f"s_branch {name}_RET")
    a.label("M_LAST")
    a("s_endpgm")
    return dict(name="gated_mix__ssm_conv_h3__compressed_kv_cla__prompt_kernel" if FUSE else "main_kernel", grid=256, block=512, lds=163840, vgpr=256)

import gen as G1
G1.STAMP = False
KERNELS = {"main": gen_main, "conv": G1.gen_conv, "oproj": G1.gen_oproj, "tail": lambda a: gen_tail.gen_tail(a, {k: v for k, v in globals().items() if not k.startswith("__") and k != "gen_tail"})}

def build(names, path, verbose=False):
    hdr = open("gated_mix__ssm_conv_h3__compressed_kv_cla__prompt.s.ref").read().split("\n")
    hdr = [l for l in hdr if l.startswith(";") and "@launch" not in l and "Override" not in l and "grid=ceil" not in l]
    codes, descs, launches = [], [], []
    for n in names:
        a = Asm()
        info = KERNELS[n](a)
        k = fix_hazards(a.lines, verbose)
        print(f"{n}: {len(a.lines)} lines, {k} nops inserted")
        c, d = kernel_text(info["name"], a.lines, info["vgpr"], extra="  .amdhsa_float_denorm_mode_32 3\n")
        codes.append(c); descs.append(d)
        kn = "" if "plain" in OPT else f"kernel={info['name']} "
        launches.append(f"; @launch {kn}grid=({info['grid']},1,1) block=({info['block']},1,1) lds={info['lds']}")
    txt = "\n".join(hdr + launches) + '\n.amdgcn_target "amdgcn-amd-amdhsa--gfx950"\n.text\n' + "\n".join(codes) + \
          '\n.section .rodata,"a"\n' + "\n".join(descs)
    if "CODE_SPAN" in txt: txt = txt.replace("CODE_SPAN", str(int(OPT.get("ipf", 77000))))
    open(path, "w").write(txt)

if __name__ == "__main__":
    names = sys.argv[2].split(",") if len(sys.argv) > 2 else list(KERNELS)
    build(names, sys.argv[1] if len(sys.argv) > 1 else "k2.s", verbose="-v" in sys.argv)
```

```python
class VM:
    def __init__(self): self.tags = []; self.ghost = set()
    def add(self, tag): self.tags.append(tag)
    def wait(self, *tags):
        idx = [i for i, t in enumerate(self.tags) if t in tags]
        if not idx: return None
        return len([t for t in self.tags[max(idx) + 1:] if t not in self.ghost])

class Stream:
    def __init__(self, a, vm, dist=8, per_gap=2, bar_delay=3):
        self.a, self.vm = a, vm
        self.dist, self.per_gap, self.bar_delay = dist, per_gap, bar_delay
        self.ops = []
        self.reads = []
        self.bars = {}
        self.fill = []
        self.fill_rate = 2.0
        self.la = 1
        self.ustep = 1
        self.timed = []
    def op(self, text, uses): self.ops.append((text, uses))
    def read(self, fid, text, reg, stage, key=None): self.reads.append(dict(id=fid, text=text, reg=reg, stage=stage, key=key))
    def barrier_after_stage(self, stage, vm_tags, after=(), pre=None):
        self.bars[stage] = dict(tags=vm_tags, after=list(after), pre=pre)
    def filler(self, earliest, cost, item): self.fill.append((earliest, cost, item))
    def _emit_item(self, item):
        if callable(item): item(); return
        for x in item:
            if isinstance(x, tuple):
                self.a(x[0]); self.vm.add(x[1])
            else: self.a(x)
    def run(self, open_stages, preissued=0):
        a = self.a
        n = len(self.ops)
        first, last = {}, {}
        for m, (_, uses) in enumerate(self.ops):
            for f in uses:
                first.setdefault(f, m); last[f] = m
        prev = {}
        for r in self.reads:
            r["first"] = first.get(r["id"], n + self.dist)
            if r["key"] is None: r["key"] = r["first"]
            p = prev.get(r["reg"])
            r["free"] = last.get(p["id"], -1) if p else -1
            prev[r["reg"]] = r
        stage_last = {}
        for i, r in enumerate(self.reads): stage_last[r["stage"]] = i
        opened = set(open_stages)
        ri = preissued
        done = 0
        pend_bar = {}
        urgent = []
        fi, facc = 0, 0.0
        def wait_reads(upto):
            nonlocal done
            if upto > done:
                a(f"s_waitcnt lgkmcnt({min(15, ri - upto)})")
                done = upto if ri - upto <= 15 else max(done, ri - 15)
        def do_barrier(st):
            b = self.bars[st]
            wait_reads(stage_last[st] + 1)
            if b["pre"]: b["pre"]()
            w = self.vm.wait(*b["tags"]) if b["tags"] else None
            if w is not None: a(f"s_waitcnt vmcnt({min(w, 63)})")
            a("s_barrier")
            opened.add(st + 1)
            urgent.extend(b["after"])
        def issue(m, force_upto=-1):
            nonlocal ri
            k = 0
            fidx = max([i for i in range(ri, min(len(self.reads), ri + 64)) if self.reads[i]["first"] <= force_upto], default=-1)
            while ri < len(self.reads):
                r = self.reads[ri]
                forced = ri <= fidx
                if force_upto >= 0 and not forced: break
                if r["stage"] not in opened:
                    if forced:
                        st = r["stage"] - 1
                        pend_bar.pop(st, None); do_barrier(st)
                    else: break
                if not forced and (k >= self.per_gap or r["key"] - self.dist > m or r["free"] > m): break
                assert r["free"] <= m, ("register ring too small", r)
                a(r["text"]); ri += 1; k += 1
                if ri - 1 == stage_last[r["stage"]] and r["stage"] in self.bars:
                    pend_bar[r["stage"]] = m + self.bar_delay
        for m, (text, uses) in enumerate(self.ops):
            issue(m - 1, force_upto=m)
            need = 0
            for i in range(done, ri):
                if self.reads[i]["first"] <= m + self.la: need = i + 1
            must = any(self.reads[i]["first"] <= m for i in range(done, ri))
            if must: wait_reads(need)
            a(text)
            for st in [s for s, p in pend_bar.items() if p <= m]:
                del pend_bar[st]; do_barrier(st)
            issue(m)
            while self.timed and self.timed[0][0] <= m and not urgent:
                assert m <= self.timed[0][2], "timed item past its deadline"
                self._emit_item(self.timed.pop(0)[1])
            if urgent:
                if m % self.ustep == 0: self._emit_item(urgent.pop(0))
            else:
                facc = min(facc + self.fill_rate, 2 * self.fill_rate + 2)
                while fi < len(self.fill) and self.fill[fi][0] <= m and self.fill[fi][1] <= facc:
                    facc -= self.fill[fi][1]
                    self._emit_item(self.fill[fi][2]); fi += 1
        for st in sorted(pend_bar): do_barrier(st)
        issue(n + 10 * self.dist)
        while ri < len(self.reads) and self.reads[ri]["stage"] in opened:
            issue(n + 10 * self.dist)
        for it in urgent: self._emit_item(it)
        assert not self.timed
        while fi < len(self.fill):
            self._emit_item(self.fill[fi][2]); fi += 1
        return ri
```

```python
import sys, struct
from asmlib import *
from sched import *
import gen_tail

MB = 1 << 20
WS_KF, WS_VF, WS_CTX, WS_WOT, WS_KVT, WS_Y2T, WS_G = 0, 16 * MB, 32 * MB, 49 * MB, 56 * MB, 60 * MB, 63 * MB
KA = dict(A_q=0, A_k=8, A_v=16, shift=24, ssm_k=32, ssm_D=40, B_x=48, c_kv=56, w_q=64, w_uk=72, w_uv=80, w_o=88,
          gate=96, out=104, dbg=112, ws=120)
MFMA32 = "v_mfma_f32_32x32x16_bf16"
MFMA16 = "v_mfma_f32_16x16x32_bf16"
STAMP = "-stamp" in sys.argv
OPT = {x[2:].split("=")[0]: (x.split("=")[1] if "=" in x else "1") for x in sys.argv if x.startswith("--")}
WS_FLG = 63 * MB + 524288
WS_FL2 = 63 * MB + 655360
WS_FL3 = WS_FL2 + 131072
FUSE = 'nofuse' not in OPT
CS = 131072 + int(OPT.get('cspad', 1024))
OOB = "0x80000000"
def f32hex(x): return "0x%08x" % struct.unpack("<I", struct.pack("<f", x))[0]

def srd(a, d, lo, hi, size, add=0):
    if add:
        a(f"s_add_u32 s{d}, s{lo}, {add}")
        a(f"s_addc_u32 s{d+1}, s{hi}, 0")
    else:
        a(f"s_mov_b32 s{d}, s{lo}")
        a(f"s_mov_b32 s{d+1}, s{hi}")
    a(f"s_mov_b32 s{d+2}, {size}")
    a(f"s_mov_b32 s{d+3}, 0x00020000")
def S4(d): return f"s[{d}:{d+3}]"

class Stamps:
    def __init__(self, a, base=70, region=0):
        self.a, self.base, self.n, self.region = a, base, 0, region
    off = False
    def mark(self, name=""):
        if not STAMP or self.off: return
        if name not in OPT.get("marks", "start,kv,q,s1,end,t0,t1,t2").split(","): return
        assert self.base + 2 * self.n + 3 <= 101
        self.a(f"s_memtime s[{self.base+2*self.n}:{self.base+2*self.n+1}]")
        self.a(f"s_memrealtime s[{self.base+2*self.n+2}:{self.base+2*self.n+3}]")
        self.n += 2
    def flush(self, wg, sW, wave, slot=0):
        if not STAMP: return
        a = self.a
        lab = a.uid("STK")
        a(f"s_cmp_lg_u32 s{sW}, {wave}")
        a(f"s_cbranch_scc1 {lab}")
        if 'dbgstamp' in OPT:
            if slot:
                a.label(lab); return
            a(f"s_cmp_lg_u32 s2, {OPT['dbgstamp']}")
            a(f"s_cbranch_scc1 {lab}")
            a(f"s_load_dwordx2 s[60:61], s[0:1], {KA['dbg']}")
            a("s_waitcnt lgkmcnt(0)")
            a("s_mov_b32 s62, 64")
            a("s_mov_b32 s63, 0x00020000")
            a("v_mov_b32 v1, 0")
            for i in range(self.n - 1, 1, -1): a(f"s_sub_u32 s{self.base+2*i}, s{self.base+2*i}, s{self.base+2*i-4}")
        else:
            a(f"s_load_dwordx2 s[60:61], s[0:1], {KA['ws']}")
            a("s_waitcnt lgkmcnt(0)")
            a(f"s_add_u32 s60, s60, {128*MB + self.region*65536 + slot*64}")
            a("s_addc_u32 s61, s61, 0")
            a("s_mov_b32 s62, 65536")
            a("s_mov_b32 s63, 0x00020000")
            a("s_lshl_b32 s3, s2, 7")
            a("v_mov_b32 v1, s3")
        for i in range(self.n):
            a(f"v_mov_b32 v2, s{self.base+2*i}")
            a(f"buffer_store_dword v2, v1, s[60:63], 0 offen offset:{4*i}")
        a("s_getreg_b32 s3, hwreg(HW_REG_XCC_ID)")
        a("v_mov_b32 v2, s3")
        a(f"buffer_store_dword v2, v1, s[60:63], 0 offen offset:60")
        a("s_waitcnt vmcnt(0)")
        a.label(lab)

def rnd_pair(d, lo, hi, olo, ohi):
    return [f"v_cvt_pk_bf16_f32 v{d}, v{lo}, v{hi}", f"v_lshlrev_b32 v{olo}, 16, v{d}", f"v_and_b32 v{ohi}, 0xffff0000, v{d}"]

def interleave(a, mfmas, fillers, ngaps):
    tot = sum(c for c, _ in fillers)
    fi, acc = 0, 0.0
    for g, (pre, m, post) in enumerate(mfmas):
        for x in pre: a(x)
        a(m)
        for x in post: a(x)
        lim = tot * min(1.0, (g + 1) / ngaps) if ngaps else tot
        while fi < len(fillers) and acc + fillers[fi][0] * 0.5 <= lim:
            acc += fillers[fi][0]
            for x in fillers[fi][1]: a(x)
            fi += 1
    while fi < len(fillers):
        for x in fillers[fi][1]: a(x)
        fi += 1

def gen_main(a):
    S_C, S_W, S_WS, S_V, S_X, S_WQ, S_DBG = 4, 8, 12, 16, 20, 24, 28
    (sW, sH, sP, sG, sRB, sT, sT2, sCO, sWO, sM0C, sM0W, sOB, sROW, sXO, sQWO, sN1, sS, sMST, sTHR, sM0K, sM0V,
     sBASE, sCT1, sCT2, sWRAP) = range(32, 57)
    sHIST = [57, 58, 59, 60]
    sEV = 62
    PT = 64
    S_T = 76
    sMK = 4
    S_K = S_X
    sNB = 61
    SHARE = 'share' in OPT
    vL16, vCD, vWD, vAC, vAW, vXD, vQW, vWOT, vKVT = 1, 2, 6, 10, 12, 16, 20, 22, 23
    WFR, CFR, ACC = [32, 48], 64, 128
    sp = Stamps(a, base=80)
    vm = VM()
    a("s_cmp_ge_u32 s2, 256")
    a("s_cbranch_scc1 M_END")
    sp.mark("start")
    a(f"s_load_dwordx2 s[44:45], s[0:1], {KA['c_kv']}")
    a(f"s_load_dwordx4 s[48:51], s[0:1], {KA['w_uk']}")
    a("v_lshrrev_b32 v1, 6, v0")
    a("v_mov_b32 v31, v0")
    a("v_and_b32 v0, 63, v0")
    a(f"v_readfirstlane_b32 s{sW}, v1")
    a(f"s_and_b32 s{sH}, s2, 7")
    a("s_lshr_b32 s3, s2, 6")
    a("s_lshl_b32 s3, s3, 3")
    a(f"s_add_u32 s{sH}, s{sH}, s3")
    a(f"s_bfe_u32 s{sP}, s2, 0x30003")
    a(f"s_lshr_b32 s{sG}, s{sW}, 2")
    a("v_lshrrev_b32 v24, 3, v0")
    a("v_and_b32 v25, 7, v0")
    a("v_lshrrev_b32 v26, 4, v0")
    a("v_xor_b32 v25, v25, v26")
    a("v_lshlrev_b32 v25, 4, v25")
    a("v_xor_b32 v27, 64, v25")
    a(f"v_lshl_add_u32 v{vCD}, v24, 10, v25")
    a(f"v_lshl_add_u32 v{vCD+1}, v24, 10, v27")
    a(f"v_add_u32 v{vCD+1}, {8192-1024}, v{vCD+1}")
    a(f"v_add_u32 v{vCD+2}, {2*(8192-1024)}, v{vCD}")
    a(f"v_add_u32 v{vCD+3}, {2*(8192-1024)}, v{vCD+1}")
    a("v_and_b32 v28, 15, v0")
    a("v_lshlrev_b32 v29, 1, v26")
    a("v_xor_b32 v28, v28, v29")
    a("v_lshlrev_b32 v28, 4, v28")
    a(f"v_lshl_add_u32 v{vWD}, v26, 13, v28")
    a(f"v_add_u32 v{vWD+1}, {4*8192-1024}, v{vWD}")
    a(f"v_xor_b32 v{vWD+2}, 128, v{vWD}")
    a(f"v_add_u32 v{vWD+2}, {2*(4*8192-1024)}, v{vWD+2}")
    a(f"v_add_u32 v{vWD+3}, {4*8192-1024}, v{vWD+2}")
    a(f"s_and_b32 s{sRB}, s{sW}, 3")
    a(f"s_lshl_b32 s{sCO}, s{sP}, 18")
    a(f"s_lshl_b32 s{sT}, s{sW}, 15")
    a(f"s_add_u32 s{sCO}, s{sCO}, s{sT}")
    a(f"s_lshl_b32 s{sWO}, s{sRB}, 17")
    a(f"s_lshl_b32 s{sT}, s{sH}, 8")
    a(f"s_add_u32 s{sWO}, s{sWO}, s{sT}")
    a(f"s_lshl_b32 s{sM0C}, s{sW}, 12")
    a(f"s_add_u32 s{sM0W}, s{sM0C}, 65536")
    a("s_waitcnt lgkmcnt(0)")
    srd(a, S_C, 44, 45, 2 * MB)
    a(f"s_cmp_eq_u32 s{sG}, 0")
    a(f"s_cselect_b32 s{S_W}, s48, s50")
    a(f"s_cselect_b32 s{S_W+1}, s49, s51")
    a(f"s_mov_b32 s{S_W+2}, {4*MB}")
    a(f"s_mov_b32 s{S_W+3}, 0x00020000")
    def kv_dma(st):
        buf = (st & 1) * 32768
        tg = ("kv", st)
        out = [[f"s_add_u32 m0, s{sM0C}, {buf}", f"s_add_u32 s{sT}, s{sCO}, {st*128}",
                (f"buffer_load_dwordx4 v{vCD}, {S4(S_C)}, s{sT} offen lds", tg)]]
        for i in range(1, 4): out.append([(f"buffer_load_dwordx4 v{vCD+i}, {S4(S_C)}, s{sT} offen offset:{i*1024} lds", tg)])
        out.append([f"s_add_u32 m0, s{sM0W}, {buf}", f"s_add_u32 s{sT}, s{sWO}, {st*64*8192}",
                    (f"buffer_load_dwordx4 v{vWD}, {S4(S_W)}, s{sT} offen lds", tg)])
        for i in range(1, 4): out.append([(f"buffer_load_dwordx4 v{vWD+i}, {S4(S_W)}, s{sT} offen offset:{i*1024} lds", tg)])
        return out
    def emit(items):
        for it in items:
            for x in it:
                if isinstance(x, tuple): a(x[0]); vm.add(x[1])
                else: a(x)
    emit(kv_dma(0))
    a(f"s_load_dwordx2 s[44:45], s[0:1], {KA['A_q']}")
    a(f"s_load_dwordx2 s[46:47], s[0:1], {KA['w_q']}")
    a(f"s_load_dwordx4 s[48:51], s[0:1], {KA['dbg']}")
    a(f"s_load_dwordx4 s[{PT}:{PT+3}], s[0:1], {KA['A_k']}")
    a(f"s_load_dwordx4 s[{PT+4}:{PT+7}], s[0:1], {KA['shift']}")
    a(f"s_load_dwordx4 s[{PT+8}:{PT+11}], s[0:1], {KA['w_o']}")
    a(f"v_lshlrev_b32 v{vL16}, 4, v0")
    a("v_mul_u32_u24 v28, 1280, v24")
    a(f"v_add_u32 v{vXD}, v28, v25")
    a(f"v_add_u32 v{vXD+1}, v28, v27")
    a(f"v_add_u32 v{vXD+1}, {8*1280-1024}, v{vXD+1}")
    a(f"v_add_u32 v{vXD+2}, {2*(8*1280-1024)}, v{vXD}")
    a(f"v_add_u32 v{vXD+3}, {2*(8*1280-1024)}, v{vXD+1}")
    a(f"s_and_b32 s3, s{sW}, 1")
    a("s_lshl_b32 s3, s3, 7")
    a(f"v_xor_b32 v{vQW}, s3, v{vWD}")
    a(f"v_add_u32 v{vQW+1}, {4*8192-1024}, v{vQW}")
    emit(kv_dma(1))
    vPF, vPFW, vSC = 116, 115, 117
    if 'nopf' not in OPT:
        a(f"v_lshlrev_b32 v{vPF}, 7, v0")
        a("v_lshrrev_b32 v24, 1, v0")
        a("v_and_b32 v25, 1, v0")
        a("v_lshlrev_b32 v25, 7, v25")
        a(f"v_lshl_add_u32 v{vPFW}, v24, 13, v25")
        a("s_lshl_b32 s3, s2, 13")
        a(f"s_lshl_b32 s{sT}, s{sW}, 10")
        a(f"s_add_u32 s3, s3, s{sT}")
        a("s_mov_b64 exec, 0xff")
        emit([[(f"buffer_load_dword v{vSC}, v{vPF}, {S4(S_C)}, s3 offen sc1", "pf")]])
        a(f"s_lshl_b32 s3, s{sP}, 19")
        a(f"s_add_u32 s3, s3, s{sWO}")
        a("s_mov_b32 exec_lo, -1")
        emit([[(f"buffer_load_dword v{vSC}, v{vPFW}, {S4(S_W)}, s3 offen sc1", "pf")]])
        a("s_mov_b64 exec, -1")
    def frag_addrs(vR, rowoff_sgpr, vWa, nt_sgpr, wbase_sgpr):
        a("v_and_b32 v24, 15, v0")
        a("v_lshrrev_b32 v25, 4, v0")
        a("v_bfe_u32 v26, v0, 1, 3")
        a("v_xor_b32 v26, v26, v25")
        a("v_lshlrev_b32 v26, 4, v26")
        a("v_lshl_add_u32 v26, v24, 7, v26")
        a(f"v_add_u32 v{vR}, s{rowoff_sgpr}, v26")
        a(f"v_xor_b32 v{vR+1}, 64, v{vR}")
        a("v_bfe_u32 v24, v0, 2, 2")
        a("v_lshl_add_u32 v26, v25, 3, v24")
        a("v_lshlrev_b32 v26, 8, v26")
        a("v_and_b32 v27, 3, v0")
        a("v_lshl_add_u32 v26, v27, 3, v26")
        a(f"v_add_u32 v26, s{wbase_sgpr}, v26")
        a("v_and_b32 v25, 1, v25")
        a("v_lshl_add_u32 v24, v25, 2, v24")
        a(f"v_xor_b32 v24, s{nt_sgpr}, v24")
        for nt in range(4):
            a(f"v_xor_b32 v25, {nt}, v24")
            a(f"v_lshl_add_u32 v{vWa+nt}, v25, 5, v26")
    a(f"s_and_b32 s{sT}, s{sW}, 1")
    a(f"s_lshl_b32 s{sT}, s{sT}, 14")
    a(f"s_and_b32 s{sT2}, s{sW}, 2")
    a(f"s_lshl_b32 s{sT2}, s{sT2}, 1")
    a(f"s_lshl_b32 s3, s{sG}, 14")
    a("s_add_u32 s3, s3, 65536")
    frag_addrs(vAC, sT, vAW, sT2, 3)
    WOB = 131072
    a("v_lshrrev_b32 v24, 2, v0")
    a("v_mul_u32_u24 v24, 672, v24")
    a("v_and_b32 v25, 3, v0")
    a("v_lshl_add_u32 v24, v25, 3, v24")
    a(f"s_lshl_b32 s{sT}, s{sW}, 5")
    a(f"s_add_u32 s{sT}, s{sT}, {WOB}")
    a(f"v_add_u32 v{vWOT}, s{sT}, v24")
    KVS, TRB = 131072, 153600
    a("v_mul_u32_u24 v25, 1639, v31")
    a("v_lshrrev_b32 v25, 16, v25")
    a("v_mul_u32_u24 v26, 40, v25")
    a("v_sub_u32 v26, v31, v26")
    a("v_mul_u32_u24 v29, 1280, v25")
    a("v_lshl_add_u32 v29, v26, 2, v29")
    a(f"v_add_u32 v29, {KVS}, v29")
    a("v_and_b32 v27, 7, v26")
    a("v_xor_b32 v27, v27, v25")
    a("v_lshlrev_b32 v27, 4, v27")
    a(f"v_lshl_add_u32 v{vKVT}, v26, 8, v27")
    a(f"v_add_u32 v{vKVT}, {TRB}, v{vKVT}")
    a(f"s_and_b32 s{sT2}, s2, 7")
    a(f"s_mul_i32 s{sT}, s{sT2}, 40")
    a(f"v_add_lshl_u32 v26, v26, s{sT}, 4")
    a("v_mul_u32_u24 v25, 205, v0")
    a("v_lshrrev_b32 v25, 11, v25")
    a("v_mul_u32_u24 v27, 1120, v25")
    a("v_lshl_add_u32 v27, v0, 4, v27")
    a(f"s_lshr_b32 s{sT}, s2, 3")
    a(f"s_mul_i32 s{sT}, s{sT}, {64*1280}")
    a(f"s_mul_i32 s{sT2}, s{sT2}, 160")
    a(f"s_add_u32 s{sT}, s{sT}, s{sT2}")
    a(f"s_sub_u32 s{sT}, s{sT}, 3840")
    a(f"v_add_u32 v27, s{sT}, v27")
    a(f"v_mov_b32 v30, {OOB}")
    a("v_mul_u32_u24 v24, 20, v0")
    a("s_waitcnt lgkmcnt(0)")
    srd(a, S_WS, 50, 51, 64 * MB)
    srd(a, S_V, 50, 51, 16 * MB, WS_VF)
    srd(a, S_X, 44, 45, 2621440)
    srd(a, S_WQ, 46, 47, 5242880)
    srd(a, S_DBG, 48, 49, 256)
    a(f"s_sub_u32 s{sT}, 15, s{sP}")
    a(f"s_lshl_b32 s{sT2}, s{sRB}, 5")
    a(f"s_lshl_b32 s{sCT2}, s{sT}, 7")
    a(f"s_add_u32 s{sCT2}, s{sCT2}, s{sT2}")
    a(f"s_lshl_b32 s{sCT1}, s{sP}, 7")
    a(f"s_add_u32 s{sCT1}, s{sCT1}, s{sT2}")
    a(f"s_cmp_eq_u32 s{sG}, 0")
    a(f"s_cselect_b32 s{sROW}, s{sCT1}, s{sCT2}")
    a(f"s_mul_i32 s{sXO}, s{sROW}, 1280")
    a(f"s_lshl_b32 s{sQWO}, s{sW}, 16")
    a(f"s_lshl_b32 s{sT}, s{sH}, 8")
    a(f"s_add_u32 s{sQWO}, s{sQWO}, s{sT}")
    a(f"s_lshl_b32 s{sT}, s{sH}, 12")
    a(f"s_add_u32 s{sT}, s{sT}, {WS_CTX}")
    for c in (sCT1, sCT2):
        a(f"s_mul_i32 s{c}, s{c}, {CS // 16}")
        a(f"s_add_u32 s{c}, s{c}, s{sT}")
    a(f"s_lshl_b32 s{sOB}, s{sH}, 6")
    a(f"s_lshl_b32 s{sT}, s{sP}, 3")
    a(f"s_add_u32 s{sOB}, s{sOB}, s{sT}")
    a(f"s_and_b32 s{sT}, s{sW}, 1")
    a(f"s_lshl_b32 s{sT}, s{sT}, 2")
    a(f"s_add_u32 s{sOB}, s{sOB}, s{sT}")
    a(f"s_lshl_b32 s{sOB}, s{sOB}, 13")
    a(f"s_bfe_u32 s{sT}, s{sW}, 0x10001")
    a(f"s_add_u32 s{sT2}, s{sG}, 11")
    a(f"s_lshl_b32 s{sT}, s{sT}, s{sT2}")
    a(f"s_add_u32 s{sOB}, s{sOB}, s{sT}")
    a(f"s_lshl_b32 s{sT}, s{sG}, 24")
    a(f"s_add_u32 s{sOB}, s{sOB}, s{sT}")
    a(f"s_lshl_b32 s{sN1}, s{sP}, 2")
    a(f"s_add_u32 s{sN1}, s{sN1}, 4")
    a(f"s_mov_b32 s{sNB}, s{sN1}")
    a(f"s_lshl_b32 s{sHIST[0]}, s{sH}, 19")
    a(f"s_lshl_b32 s{sT}, s{sRB}, 11")
    a(f"s_add_u32 s{sHIST[0]}, s{sHIST[0]}, s{sT}")
    a(f"s_lshl_b32 s{sM0K}, s{sW}, 11")
    a(f"s_add_u32 s{sM0V}, s{sM0K}, 65536")
    a(f"s_sub_u32 s{sT2}, s{sN1}, 4")
    a(f"s_sub_u32 s{sWRAP}, s{sN1}, 2")
    a(f"s_sub_u32 s{sWRAP}, s{sWRAP}, s{sG}")
    a(f"s_mov_b32 s{sBASE}, 8192")
    a(f"s_cmp_eq_u32 s{sG}, 0")
    a(f"s_cselect_b32 s{sMST}, s{sT2}, 99")
    a(f"s_cselect_b32 s{sN1}, s{sN1}, 100")
    a(f"s_add_u32 s{sHIST[1]}, s{sHIST[0]}, 8192")
    a(f"s_add_u32 s{sHIST[2]}, s{sHIST[0]}, 16384")
    a(f"s_mov_b64 s[{sEV}:{sEV+1}], {(127 if FUSE else 63) if 'noev' not in OPT else 64}")
    a(f"s_add_u32 s{sT}, s{sMST}, 1")
    a(f"s_lshl_b64 s[{sEV}:{sEV+1}], s[{sEV}:{sEV+1}], s{sT}")
    if SHARE:
        a(f"s_mul_i32 s{S_T}, s{sG}, 45")
        a(f"s_mov_b32 s{S_T+1}, 0")
        a(f"s_sub_u32 s{sT}, s{sNB}, 3")
        a(f"s_lshl_b64 s[{S_T}:{S_T+1}], s[{S_T}:{S_T+1}], s{sT}")
        a(f"s_or_b64 s[{sEV}:{sEV+1}], s[{sEV}:{sEV+1}], s[{S_T}:{S_T+1}]")
        a(f"s_cmp_eq_u32 s{sG}, 0")
        a(f"s_cselect_b32 s{S_V+2}, s{S_V+2}, 0")
    a(f"s_bitset1_b64 s[{sEV}:{sEV+1}], s{sWRAP}")
    a(f"s_or_b32 s{sEV}, s{sEV}, 0x80000002")
    a(f"s_or_b32 s{sEV+1}, s{sEV+1}, 6")
    a(f"s_mov_b32 s{sTHR}, 0x40004000")
    a(f"s_mov_b32 s{S_T+3}, 0x00020000")
    if 'tlb' in OPT:
        a(f"s_lshl_b32 s{sT}, s{sW}, 2")
        a(f"s_lshr_b32 s3, 0xdba84210, s{sT}")
        a("s_and_b32 s3, s3, 15")
        a("s_lshl_b32 s3, s3, 3")
        a(f"s_load_dwordx2 s[{S_T}:{S_T+1}], s[0:1], s3")
        a(f"s_lshr_b32 s3, 0x5a8a5555, s{sT}")
        a("s_and_b32 s3, s3, 15")
        a(f"s_lshl_b32 s{S_T+2}, s3, 19")
        a("v_lshlrev_b32 v118, 20, v0")
        a("s_lshl_b32 s3, s2, 10")
        a(f"s_lshr_b32 s{sT}, s2, 3")
        a(f"s_lshl_b32 s{sT}, s{sT}, 21")
        a(f"s_lshl_b32 s{sT2}, s{sW}, 12")
        a(f"s_add_u32 s{sT}, s{sT}, s{sT2}")
        a("s_waitcnt lgkmcnt(0)")
        a("s_mov_b64 exec, 0x3f")
        emit([[(f"buffer_load_dword v{vSC}, v118, {S4(S_T)}, s3 offen sc1", "pf")]])
        a("s_mov_b64 exec, 3")
        emit([[(f"buffer_load_dword v{vSC}, v118, {S4(S_WS)}, s{sT} offen sc1", "pf")]])
        a("s_mov_b64 exec, -1")

    XB = [0, 32768, 131072]
    def q_dma_x(k):
        tg = ("q", k)
        out = [[f"s_add_u32 m0, s{sM0C}, {XB[(k+2)%3]}", f"s_add_u32 s{sT}, s{sXO}, {k*128}",
                (f"buffer_load_dwordx4 v{vXD}, {S4(S_X)}, s{sT} offen lds", tg)]]
        for i in range(1, 4): out.append([(f"buffer_load_dwordx4 v{vXD+i}, {S4(S_X)}, s{sT} offen offset:{i*1024} lds", tg)])
        return out
    def q_dma_w(k):
        tg = ("q", k)
        return [[f"s_add_u32 m0, s{sM0V}, {(k%3)*16384}", f"s_add_u32 s{sT}, s{sQWO}, {k*64*8192}",
                 (f"buffer_load_dwordx4 v{vQW}, {S4(S_WQ)}, s{sT} offen lds", tg)],
                [(f"buffer_load_dwordx4 v{vQW+1}, {S4(S_WQ)}, s{sT} offen offset:1024 lds", tg)]]
    GX, GXT, GWT, GW, KR, VR, SH = 80, 84, 85, 86, 90, 101, 110
    def tsrd(lo, size): return [f"s_mov_b32 s{S_T}, s{lo}", f"s_mov_b32 s{S_T+1}, s{lo+1}", f"s_mov_b32 s{S_T+2}, {size}"]
    def ld_wo():
        it = tsrd(PT + 8, 5242880) + [f"s_lshr_b32 s3, s2, 1", "s_lshl_b32 s3, s3, 5", f"s_lshl_b32 s{sT2}, s{sW}, 2",
              f"s_add_u32 s3, s3, s{sT2}", "s_mul_i32 s3, s3, 1280", f"s_and_b32 s{sS}, s2, 1", f"s_mul_i32 s{sS}, s{sS}, 640",
              f"s_add_u32 s3, s3, s{sS}", f"s_mul_i32 s{sT2}, s{sT2}, 672", "s_mov_b32 exec_hi, 0xff"]
        for i in range(4):
            it += [f"s_add_u32 m0, s{sT2}, {WOB+672*i}", f"s_add_u32 s{sS}, s3, {1280*i}",
                   (f"buffer_load_dwordx4 v{vL16}, {S4(S_T)}, s{sS} offen lds", "wo")]
        return [it + ["s_mov_b32 exec_hi, -1"]]
    def ld_gate():
        return [["s_lshl_b32 s3, s2, 3", f"s_add_u32 s3, s3, s{sW}", "s_mul_i32 s3, s3, 1280",
                 (f"buffer_load_dwordx4 {vr(GX,4)}, v24, {S4(S_X)}, s3 offen", "gt"),
                 (f"buffer_load_dword v{GXT}, v24, {S4(S_X)}, s3 offen offset:16", "gt")],
                tsrd(PT + 10, 1280) + [(f"buffer_load_dwordx4 {vr(GW,4)}, v24, {S4(S_T)}, 0 offen", "gt"),
                 (f"buffer_load_dword v{GWT}, v24, {S4(S_T)}, 0 offen offset:16", "gt")]]
    def ld_kv(part):
        L = []
        for i in range(3):
            isv = i == 2 or (i == 1 and part == 1)
            rows0 = 6 * 8 * i - (72 - 3 if isv else 0)
            L.append(tsrd(PT + (2 if isv else 0), 2621440) +
                     [f"s_mul_i32 s3, s{sW}, {6*1280}", f"s_add_u32 s3, s3, {rows0*1280}", "v_add_u32 v28, s3, v27",
                      f"s_mul_i32 s3, s{sW}, 960", f"s_add_u32 m0, s3, {KVS + 8*960*i}", "s_mov_b32 exec_hi, 0xfffffff",
                      (f"buffer_load_dwordx4 v28, {S4(S_T)}, 0 offen lds", "kvs"), "s_mov_b32 exec_hi, -1"])
        L.append(tsrd(PT + 4, 5120) + [(f"buffer_load_dwordx4 {vr(SH,4)}, v26, {S4(S_T)}, 0 offen", "kvs")])
        return L
    def rd_kv():
        return [[f"ds_read_b32 v{KR+j}, v29 offset:{160*j}"] for j in range(11)] + \
               [[f"ds_read_b32 v{VR+j}, v29 offset:{11520+160*j}"] for j in range(8)]
    def ld_pf():
        L = [[f"s_lshl_b32 s3, s{sP}, 3", f"s_add_u32 s3, s3, s{sW}", f"s_mul_i32 s3, s3, {10*8192}", f"s_lshl_b32 s{sT2}, s{sH}, 8",
              f"s_add_u32 s3, s3, s{sT2}", "s_mov_b64 exec, 0xfffff",
              (f"buffer_load_dword v{vPFW}, v{vPFW}, {S4(S_WQ)}, s3 offen sc1", "pfq"), "s_mov_b64 exec, -1"]]
        L.append(tsrd(PT + 6, 2621440) + ["s_lshr_b32 s3, s2, 1", "s_mul_i32 s3, s3, 5", f"s_and_b32 s{sT2}, s2, 1", f"s_mul_i32 s{sT2}, s{sT2}, 3",
                  f"s_add_u32 s3, s3, s{sT2}", f"s_add_u32 s3, s3, s{sW}", "s_lshl_b32 s3, s3, 12", f"s_cmp_ge_u32 s{sW}, 3",
                  f"s_cselect_b32 s3, {OOB}, s3", "s_mov_b32 exec_hi, 0",
                  (f"buffer_load_dword v{vPFW}, v{vPF}, {S4(S_T)}, s3 offen sc1", "pfq"), "s_mov_b32 exec_hi, -1"])
        return L

    t0, t1, t2, t3, t4 = 24, 25, 26, 27, 28
    SCF = ' sc1' if FUSE else ''
    def job_gate():
        L = [[f"v_mov_b32 v{t0}, 0"]]
        for x, w in [(GX + i, GW + i) for i in range(4)] + [(GXT, GWT)]:
            L += [[s] for s in [f"v_lshlrev_b32 v{t1}, 16, v{x}", f"v_and_b32 v{t2}, 0xffff0000, v{x}",
                                f"v_lshlrev_b32 v{t3}, 16, v{w}", f"v_and_b32 v{t4}, 0xffff0000, v{w}",
                                f"v_mul_f32 v{t1}, v{t1}, v{t3}", f"v_mul_f32 v{t2}, v{t2}, v{t4}"] + rnd_pair(t3, t1, t2, t1, t2) +
                               [f"v_add_f32 v{t0}, v{t0}, v{t1}", f"v_add_f32 v{t0}, v{t0}, v{t2}"]]
        for m in ("row_shr:1", "row_shr:2", "row_shr:4", "row_shr:8"):
            L.append([f"v_add_f32_dpp v{t0}, v{t0}, v{t0} {m} row_mask:0xf bank_mask:0xf bound_ctrl:0"])
        L.append([f"v_add_f32_dpp v{t0}, v{t0}, v{t0} row_bcast:15 row_mask:0xa bank_mask:0xf"])
        L.append([f"v_add_f32_dpp v{t0}, v{t0}, v{t0} row_bcast:31 row_mask:0xc bank_mask:0xf"])
        L += [[s] for s in rnd_pair(t1, t0, t0, t0, t2)[:2] +
              [f"v_mul_f32 v{t0}, 0xbfb8aa3b, v{t0}", f"v_exp_f32 v{t0}, v{t0}", f"v_cmp_eq_u32 vcc, 63, v0",
               f"v_add_f32 v{t0}, 1.0, v{t0}", f"v_rcp_f32 v{t0}, v{t0}", f"v_cndmask_b32 v{t2}, v30, 0, vcc"] +
              rnd_pair(t1, t0, t0, t0, t3)[:2]]
        L.append(["s_lshl_b32 s3, s2, 3", f"s_add_u32 s3, s3, s{sW}", "s_lshl_b32 s3, s3, 2", f"s_add_u32 s3, s3, {WS_G}",
                  (f"buffer_store_dword v{t0}, v{t2}, {S4(S_WS)}, s3 offen{SCF}", "pr2")])
        return L
    def job_kvt():
        L = []
        W = 80
        for c in range(2):
            for q in range(2):
                L.append([f"v_lshlrev_b32 v{W+4*c+2*q}, 16, v{SH+2*c+q}"])
                L.append([f"v_and_b32 v{W+4*c+2*q+1}, 0xffff0000, v{SH+2*c+q}"])
        KL, KH = [110, 111, 112, 113], [88, 89, 109, 114]
        def unp(j): return [f"v_lshlrev_b32 v{KL[j%4]}, 16, v{KR+j}", f"v_and_b32 v{KH[j%4]}, 0xffff0000, v{KR+j}"]
        for j in range(3): L += [[s] for s in unp(j)]
        for s in range(8):
            ops = unp(s + 3)
            ops += [f"v_mul_f32 v{t0}, v{KL[s%4]}, v{W+3}", f"v_mul_f32 v{t1}, v{KH[s%4]}, v{W+7}"]
            for j in (2, 1, 0):
                ops += [f"v_fmac_f32 v{t0}, v{KL[(s+3-j)%4]}, v{W+j}", f"v_fmac_f32 v{t1}, v{KH[(s+3-j)%4]}, v{W+4+j}"]
            ops += [f"v_lshlrev_b32 v{t3}, 16, v{VR+s}", f"v_and_b32 v{t4}, 0xffff0000, v{VR+s}"]
            if s % 2 == 0:
                ops += [f"v_mul_f32 v118, v{t0}, v{t3}", f"v_mul_f32 v119, v{t1}, v{t4}"]
            else:
                ops += [f"v_mul_f32 v{t0}, v{t0}, v{t3}", f"v_mul_f32 v{t1}, v{t1}, v{t4}",
                        f"v_cvt_pk_bf16_f32 v{120+s//2}, v118, v{t0}", f"v_cvt_pk_bf16_f32 v{124+s//2}, v119, v{t1}"]
            L += [[x] for x in ops]
        L.append([f"s_cmp_lt_u32 s{sW}, 5", "s_cselect_b64 exec, -1, 0", f"ds_write_b128 v{vKVT}, v[120:123]",
                  f"ds_write_b128 v{vKVT}, v[124:127] offset:128", "s_mov_b64 exec, -1"])
        L += [[x] for x in [f"v_lshrrev_b32 v{t2}, 3, v0", f"v_and_b32 v{t3}, 7, v0", f"v_lshrrev_b32 v{t4}, 4, v0", f"v_xor_b32 v{t4}, v{t4}, v{t3}",
                            f"v_lshlrev_b32 v{t4}, 4, v{t4}", f"v_lshl_add_u32 v{t0}, v{t2}, 7, v{t4}", f"v_lshlrev_b32 v{t3}, 4, v{t3}",
                            f"v_lshl_add_u32 v{t1}, v{t2}, 12, v{t3}"]]
        L.append([f"s_and_b32 s3, s{sW}, 1", "s_lshl_b32 s3, s3, 6", f"v_xor_b32 v{t0}, s3, v{t0}", f"s_lshl_b32 s3, s{sW}, 10",
                  f"s_add_u32 s3, s3, {TRB}", f"v_add_u32 v{t0}, s3, v{t0}"])
        return L
    def rd_post():
        L = []
        for i in range(3):
            L.append([f"ds_read_b64_tr_b16 v[{116+4*i}:{117+4*i}], v{vWOT} offset:{256*i}"])
            L.append([f"ds_read_b64_tr_b16 v[{118+4*i}:{119+4*i}], v{vWOT} offset:{256*i+16*672}"])
        return L + [[f"ds_read_b128 v[90:93], v{t0}"], [f"ds_read_b128 v[94:97], v{t0} offset:8192"]]
    def job_post():
        L = [["s_and_b32 s3, s2, 1", "s_mul_i32 s3, s3, 20", f"s_add_u32 s3, s3, s{sW}", f"s_mul_i32 s3, s3, {CS}",
              f"s_lshr_b32 s{sT2}, s2, 1", f"s_lshl_b32 s{sT2}, s{sT2}, 10", f"s_add_u32 s3, s3, s{sT2}",
              f"s_add_u32 s{sS}, s3, {WS_WOT}", (f"buffer_store_dwordx4 v[116:119], v{vL16}, {S4(S_WS)}, s{sS} offen{SCF}", "pr2")]]
        L.append([f"s_add_u32 s{sS}, s{sS}, {8*CS}", (f"buffer_store_dwordx4 v[120:123], v{vL16}, {S4(S_WS)}, s{sS} offen{SCF}", "pr2")])
        L.append([f"s_add_u32 s{sS}, s{sS}, {8*CS}", f"s_cmp_ge_u32 s{sW}, 4", f"s_cselect_b32 s{sS}, {OOB}, s{sS}",
                  (f"buffer_store_dwordx4 v[124:127], v{vL16}, {S4(S_WS)}, s{sS} offen{SCF}", "pr2")])
        L.append(["s_and_b32 s3, s2, 7", f"s_mul_i32 s3, s3, {80*4096}", f"s_lshr_b32 s{sT2}, s2, 3", f"s_lshl_b32 s{sT2}, s{sT2}, 7",
                  f"s_add_u32 s3, s3, s{sT2}", f"s_lshl_b32 s{sT2}, s{sW}, 15", f"s_add_u32 s3, s3, s{sT2}", f"s_add_u32 s{sS}, s3, {WS_KVT}",
                  (f"buffer_store_dwordx4 v[90:93], v{t1}, {S4(S_WS)}, s{sS} offen{SCF}", "pr2")])
        L.append([f"s_add_u32 s{sS}, s{sS}, {8*32768}", f"s_cmp_ge_u32 s{sW}, 2", f"s_cselect_b32 s{sS}, {OOB}, s{sS}",
                  (f"buffer_store_dwordx4 v[94:97], v{t1}, {S4(S_WS)}, s{sS} offen{SCF}", "pr2")])
        return L

    def kdma(e, tg):
        return [[f"s_add_u32 m0, s{sM0K}, {(e & 3) * 16384}", "s_nop 0",
                 (f"buffer_load_dwordx4 v{vL16}, {S4(S_K)}, s{sHIST[e&3]} offen sc1 lds", tg)],
                [(f"buffer_load_dwordx4 v{vL16}, {S4(S_K)}, s{sHIST[e&3]} offen offset:1024 sc1 lds", tg)]]
    vPOLL, vZERO, vFL = 24, 25, 26
    vCL = 31
    def only(wave, body, extra=None):
        lab = a.uid("ONLY")
        a(f"s_cmp_lg_u32 s{sW}, {wave}")
        a(f"s_cbranch_scc1 {lab}")
        if extra:
            a(extra); a(f"s_cbranch_scc1 {lab}")
        for x in body: a(x)
        a.label(lab)
    def clear_line():
        body = [f"s_lshl_b32 s3, s{sH}, 12", f"s_add_u32 s3, s3, {WS_FL2 - WS_FLG}", "v_lshl_add_u32 v116, v0, 2, s3",
                f"s_lshl_b32 s3, s{sH}, 2", f"s_add_u32 s3, s3, {WS_FL3 - WS_FLG - 16 * 4096}", "v_lshl_add_u32 v118, v0, 12, s3",
                "v_cmp_le_u32 vcc, 16, v0", "v_and_b32 v119, 7, v0", "v_lshl_add_u32 v119, v119, 3, s2", "v_cndmask_b32 v116, v116, v118, vcc",
                "v_lshrrev_b32 v118, 5, v119", "v_and_b32 v119, 31, v119", "v_lshlrev_b32 v119, 2, v119", "v_lshl_add_u32 v118, v118, 12, v119",
                "v_cmp_le_u32 vcc, 32, v0", f"v_mov_b32 v{vCL}, 0", f"s_mov_b32 s3, {WS_FLG}", "v_cndmask_b32 v116, v116, v118, vcc",
                f"buffer_store_dword v{vCL}, v116, {S4(S_WS)}, s3 offen sc1"]
        only(3, body, f"s_cmp_lg_u32 s{sP}, 0")
    def clean_set():
        only(3, ["s_mov_b64 exec, 1", "v_mov_b32 v117, 1", f"s_lshl_b32 s3, s{sH}, 2",
                 f"buffer_store_dword v117, v{vCL}, {S4(S_DBG)}, s3 offen offset:128 sc1", "s_mov_b64 exec, -1"], f"s_cmp_lg_u32 s{sP}, 0")
    def clean_issue(site):
        a(f"s_bfe_u32 s{sT2}, s2, 0x10003")
        only(2, [f"v_and_b32 v{vCL}, 31, v0", f"v_lshlrev_b32 v{vCL}, 2, v{vCL}",
                 f"buffer_load_dword v{vCL}, v{vCL}, {S4(S_DBG)}, 0 offen offset:128 sc1"], f"s_cmp_lg_u32 s{sT2}, {site}")
    def clean_check():
        lab = a.uid("CLN")
        a(f"s_cmp_lg_u32 s{sW}, 2")
        a(f"s_cbranch_scc1 {lab}D")
        a(f"s_mov_b32 s{sT2}, 0")
        a(f"s_branch {lab}C")
        a.label(lab)
        a("s_sleep 32")
        a(f"buffer_load_dword v{vCL}, v{vFL}, {S4(S_DBG)}, 0 offen offset:128 sc1")
        a("s_waitcnt vmcnt(0)")
        a.label(lab + "C")
        a(f"v_cmp_eq_u32 vcc, 0, v{vCL}")
        a(f"s_add_u32 s{sT2}, s{sT2}, 1")
        a(f"s_cbranch_vccz {lab}D")
        a(f"s_cmp_lt_u32 s{sT2}, 100000")
        a(f"s_cbranch_scc1 {lab}")
        a.label(lab + "D")
    def publish(wave, which):
        only(wave, ["s_mov_b64 exec, 1", f"v_mov_b32 v{vPOLL}, 1", f"s_lshl_b32 s3, s{sH}, 10", f"s_add_u32 s3, s3, s{sP}",
                    "s_lshl_b32 s3, s3, 2", f"s_add_u32 s3, s3, {WS_FL2 + 32 * which}",
                    f"buffer_store_dword v{vPOLL}, v{vZERO}, {S4(S_WS)}, s3 offen sc1", "s_mov_b64 exec, -1"])
    def line_addr(ctx0): return [f"s_mov_b32 s3, {WS_FL3}"] if ctx0 else [f"s_lshl_b32 s3, s{sH}, 12", f"s_add_u32 s3, s3, {WS_FL2}"]
    def poll_issue(wave, ctx0=False):
        only(wave, line_addr(ctx0) + [
                    f"buffer_load_dword v{vPOLL}, v{vFL}, {S4(S_WS)}, s3 offen sc1"])
    def poll(wave, need, vmw, ctx0=False):
        if 'nopoll' in OPT: return
        lab = a.uid("POLL")
        a(f"s_cmp_lg_u32 s{sW}, {wave}")
        a(f"s_cbranch_scc1 {lab}D")
        for x in line_addr(ctx0): a(x)
        a(f"s_mov_b32 s{sT2}, 0")
        a(f"s_waitcnt vmcnt({vmw})")
        a(f"s_branch {lab}C")
        a.label(lab)
        a(f"s_sleep {OPT.get('sleep', 8)}")
        a(f"buffer_load_dword v{vPOLL}, v{vFL}, {S4(S_WS)}, s3 offen sc1")
        a("s_waitcnt vmcnt(0)")
        a.label(lab + "C")
        a(f"v_cmp_eq_u32 vcc, 0, v{vPOLL}")
        a(f"s_add_u32 s{sT2}, s{sT2}, 1")
        a(f"s_and_b32 s{S_T}, vcc_lo, {need}")
        a(f"s_cbranch_scc0 {lab}D")
        a(f"s_cmp_lt_u32 s{sT2}, 100000")
        a(f"s_cbranch_scc1 {lab}")
        a.label(lab + "D")

    emit(ld_gate())
    if 'noipf' not in OPT:
        only(6, ["s_getpc_b64 s[80:81]" if not STAMP else "s_getpc_b64 s[100:101]",
                 "s_lshr_b32 s3, s2, 3", "s_mul_i32 s3, s3, 3072", "v_lshl_add_u32 v118, v0, 7, s3",
                 "v_min_u32 v118, CODE_SPAN, v118",
                 f"v_mov_b32 v119, s{81 if not STAMP else 101}", f"v_add_co_u32 v118, vcc, s{80 if not STAMP else 100}, v118", "v_addc_co_u32 v119, vcc, 0, v119, vcc",
                 "s_mov_b64 exec, 0xffffff", "global_load_dword v120, v[118:119], off sc1", "s_mov_b64 exec, -1"])
        a.label("M_IPF")
    a(f"s_waitcnt vmcnt({vm.wait(('kv', 0))})")
    a("s_barrier")
    sp.mark("kv0")
    a(f"s_cmp_lg_u32 s{sG}, 0")
    a("s_cbranch_scc1 M_KVV")
    vm0 = list(vm.tags)
    spn = sp.n
    vAX, vAQ, vST = 2, 6, 10
    QA = 128
    PK = lambda z: (240 + 4 * z) if z < 4 else (80 + 4 * (z - 4))
    endwait = []
    for part in range(2):
        if part: a.label("M_KVV")
        vm.tags = list(vm0)
        sp.n = spn
        S = Stream(a, vm, dist=int(OPT.get('kd', 12)), per_gap=int(OPT.get('kpg', 2)), bar_delay=int(OPT.get('kbd', 3)))
        S.fill_rate = float(OPT.get('fr', 2.0))
        S.la = int(OPT.get('kla', 1)); S.ustep = int(OPT.get('kus', 1))
        rl = []
        for st in range(8):
            buf = (st & 1) * 32768
            for u in range(2):
                x = 2 * st + u
                for nt in range(4):
                    for hf in range(2):
                        rg = WFR[x & 1] + 4 * nt + 2 * hf
                        rl.append((32 * x + nt - 6, ("w", x, nt, hf),
                                   f"ds_read_b64_tr_b16 {vr(rg,2)}, v{vAW+nt} offset:{buf+u*8192+hf*1024}", rg, st))
                for kt in range(8):
                    rg = CFR + 4 * (kt % int(OPT.get('kring', 4)))
                    rl.append((32 * x + 4 * kt, ("c", x, kt), f"ds_read_b128 {vr(rg,4)}, v{vAC+u} offset:{buf+kt*2048}", rg, st))
                    for nt in range(4):
                        idx = kt * 4 + nt if part == 0 else ((kt >> 1) * 4 + nt) * 2 + (kt & 1)
                        acc = vr(ACC + 4 * idx, 4)
                        w, c = vr(WFR[x & 1] + 4 * nt, 4), vr(rg, 4)
                        cin = "0" if x == 0 else acc
                        S.op(f"{MFMA16} {acc}, {w}, {c}, {cin}" if part == 0 else f"{MFMA16} {acc}, {c}, {w}, {cin}",
                             [("w", x, nt, 0), ("w", x, nt, 1), ("c", x, kt)])
            after = kv_dma(st + 2) if st < 6 else []
            if st == 5: after = after + q_dma_x(0)
            if st == 6: after = q_dma_w(0) + q_dma_x(1) + q_dma_w(1)
            if st == 7: after = q_dma_x(2) + q_dma_w(2)
            pad = [[] for _ in range(int(OPT.get('stag', 14)) if part == 1 else 0)]
            tags = [("kv", st + 1)] if st < 7 else [("q", 0)]
            pre = None
            if st == 1:
                tags += ["gt", "kvs"]
                if part: pad = rd_kv()
                else: after = after + rd_kv()
            if st == 2: tags += ["pf"]; after = after + ld_wo()
            if st == int(OPT.get('pfst', 3)): after = after + ld_pf()
            if st == 6: tags += ["pfq"]
            if st == 4:
                tags += ["wo"]
                pre = lambda: (chk.append(1), a("s_waitcnt lgkmcnt(0)"))
                if part: pad = rd_post() + pad[8:]
                else: after = after + rd_post()
            after = pad + after
            if part == 0:
                if st == 0: after = after + [clear_line]
                if st == 2: after = [clean_set] + after
                if st in (4, 5): after = after + [lambda st=st: clean_issue(st - 4)]
            after = [lambda st=st: sp.mark(f"k{st}")] + after
            S.barrier_after_stage(st, tags, after, pre)
        rl.sort(key=lambda r: (r[4], r[0]))
        for r in rl: S.read(r[1], r[2], r[3], r[4], r[0])
        chk = []
        def before_b4(): assert not chk, "kvT job too late"
        for i, it in enumerate(ld_kv(part)): S.timed.append((2 + 3 * i, it, 40))
        for it in job_gate(): S.filler(2 * 64 - 8, 1, it)
        for it in job_kvt(): S.filler(3 * 64 - 10, 1, it)
        S.filler(0, 0, before_b4)
        for i, it in enumerate(job_post()): S.filler(int(OPT.get('post', 5 * 64 + 16)) + 7 * part + int(OPT.get('pstep', 30)) * i, 1, it)
        S.run([0])
        sp.mark("kv")
        a(f"s_lshr_b32 s{sT}, s{sW}, 1")
        a(f"s_lshl_b32 s{sT}, s{sT}, 13")
        a(f"s_and_b32 s{sT2}, s{sW}, 1")
        a(f"s_lshl_b32 s{sT2}, s{sT2}, 2")
        a("s_mov_b32 s3, 65536")
        frag_addrs(vAX, sT, vAQ, sT2, 3)
        a(f"v_add_u32 v{vAX+2}, 131072, v{vAX}")
        a(f"v_add_u32 v{vAX+3}, 131072, v{vAX+1}")
        S = Stream(a, vm, dist=int(OPT.get('qd', 10)), per_gap=2, bar_delay=int(OPT.get('qbd', 3)))
        S.fill_rate = 1.0
        S.la = int(OPT.get('qla', 1)); S.ustep = int(OPT.get('qus', 1))
        rl = []
        EARLYV = 'latev' not in OPT
        KPUB, VPUB = int(OPT.get('kpub', 4)), int(OPT.get('vpub', 8 if EARLYV else 9))
        for k in range(10):
            xb = XB[(k + 2) % 3]
            for u in range(2):
                x = 2 * k + u
                for nt in range(4):
                    for hf in range(2):
                        rg = WFR[x & 1] + 4 * nt + 2 * hf
                        rl.append((16 * x + nt - 5, ("w", x, nt, hf),
                                   f"ds_read_b64_tr_b16 {vr(rg,2)}, v{vAQ+nt} offset:{(k%3)*16384+u*8192+hf*1024}", rg, k))
                for qi in range(4):
                    rg = CFR + 4 * qi
                    av = vAX + u + (2 if xb == 131072 else 0)
                    rl.append((16 * x + 4 * qi, ("c", x, qi), f"ds_read_b128 {vr(rg,4)}, v{av} offset:{(xb%131072)+qi*2048}", rg, k))
                    for nt in range(4):
                        acc = vr(QA + 4 * (qi * 4 + nt), 4)
                        S.op(f"{MFMA16} {acc}, {vr(WFR[x&1]+4*nt,4)}, {vr(rg,4)}, {'0' if x == 0 else acc}",
                             [("w", x, nt, 0), ("w", x, nt, 1), ("c", x, qi)])
            tags, after, pre = [("q", k + 1)], [], None
            if k + 3 <= 9: after = q_dma_x(k + 3) + q_dma_w(k + 3)
            if k == 0 and part == 0: pre = clean_check
            if k == KPUB: tags.append("pr2")
            if k == KPUB and part == 0: tags.append("st"); after = [lambda: publish(0, 0)] + after
            KP = int(OPT.get('kpoll', 7))
            if k == KP - 1 and part == 0: after = [lambda: (poll_issue(1), vm.add("mark"), vm.ghost.add("mark"))] + after
            if k == KP:
                if part == 0: pre = lambda: poll(1, 1, vm.wait("mark"))
                after = [[f"s_mov_b32 s{S_K}, s{S_WS}", f"s_mov_b32 s{S_K+1}, s{S_WS+1}", f"s_mov_b32 s{S_K+2}, s{S_V+2}"]] + kdma(0, "k0") + kdma(1, "k0")
            if k == 8: after = after + kdma(2, "k2")
            if k == 9: tags = []
            if k == VPUB and part == 1: tags.append("st"); after = [lambda: publish(4, 1)] + after
            if k == 9 and part == 1 and EARLYV: after = after + [lambda: poll_issue(5)]
            if part == 1: after = [[] for _ in range(int(OPT.get('qstag', 0)))] + after
            after = [lambda k=k: sp.mark(f"q{k}")] + after
            S.barrier_after_stage(k, tags, after, pre)
        rl.sort(key=lambda r: (r[4], r[0]))
        for r in rl: S.read(r[1], r[2], r[3], r[4], r[0])
        npre = 10
        for r in rl[:npre]: a(r[2])
        a(f"v_add_u32 v{vST}, {4096 >> part}, v{vL16}")
        a(f"v_mov_b32 v{vZERO}, 0")
        a(f"v_and_b32 v{vFL}, 31, v0")
        a(f"v_lshlrev_b32 v{vFL}, 2, v{vFL}")
        for z in list(range(4, 16)) + list(range(4)):
            for e in range(4):
                a(f"v_cvt_pk_bf16_f32 v{PK(z)+e}, v{ACC+8*z+2*e}, v{ACC+8*z+2*e+1}")
        SC = " " + OPT.get('stsc', 'sc1').replace('_', ' ')
        st0, stp = (2, int(OPT.get('stp', 5))) if part == 0 else (int(OPT.get('vst', 84)), int(OPT.get('stpv', 8)))
        for z in range(16 if 'nost' not in OPT else 1):
            j, c = z >> 2, z & 3
            S.filler(st0 + stp * z, 1, [f"s_add_u32 s3, s{sOB}, {j*8192}",
                     (f"buffer_store_dwordx4 {vr(PK(z),4)}, v{vST if c >> 1 else vL16}, {S4(S_WS)}, s3 offen offset:{(c&1)*1024}{SC}", "st")])
        S.run([0], preissued=npre)
        endwait.append(vm.wait("k0"))
        if part == 0: a("s_branch M_KVD")
    a.label("M_KVD")
    sp.mark("q")
    vKA, vVA, vD0, vQ2, vKN = 2, 3, 4, 5, 9
    FR, T, P, SS, O, Q, NEGM = 32, 64, [80, 88], [96, 112], 128, 192, 224
    LS, ONES, vTA, vX0, vNINF = 248, 232, 236, 238, 246
    BIAS = 12.0
    D = int(OPT.get('D', 7))
    a(f"s_mov_b32 s{sT}, {f32hex(1.4426950408889634 * 128 ** -0.5)}")
    a(f"s_lshr_b32 s{sT2}, s{sW}, 1")
    a(f"s_lshl_b32 s{sT2}, s{sT2}, 14")
    a(f"s_and_b32 s3, s{sW}, 1")
    a("s_lshl_b32 s3, s3, 11")
    a(f"s_add_u32 s{sT2}, s{sT2}, s3")
    a(f"s_add_u32 s{sT2}, s{sT2}, 98304")
    a(f"v_add_u32 v6, s{sT2}, v{vL16}")
    a(f"s_lshl_b32 s{sT2}, s{sW}, 13")
    a(f"s_add_u32 s{sT2}, s{sT2}, 98304")
    a(f"v_add_u32 v{vQ2}, s{sT2}, v{vL16}")
    if SHARE: a(f"v_mov_b32 v{vKA}, v{vL16}")
    else:
        a(f"s_lshl_b32 s{sT2}, s{sG}, 13")
        a(f"v_add_u32 v{vKA}, s{sT2}, v{vL16}")
    a(f"v_mov_b32 v{vKN}, v{vKA}")
    a(f"v_add_u32 v{vVA}, 65536, v{vKA}")
    for f in range(8):
        for e in range(4):
            r = QA + 8 * f + 2 * e
            a(f"v_mul_f32 v{r}, s{sT}, v{r}")
            a(f"v_mul_f32 v{r+1}, s{sT}, v{r+1}")
            a(f"v_cvt_pk_bf16_f32 v{Q+4*f+e}, v{r}, v{r+1}")
        a(f"ds_write_b128 v6, {vr(Q+4*f,4)} offset:{(f>>1)*4096+(f&1)*1024}")
    a("v_and_b32 v7, 15, v0")
    a("v_lshrrev_b32 v8, 4, v0")
    a(f"s_lshl_b32 s{sT}, s{sRB}, 5")
    a(f"v_add_u32 v{vD0}, s{sT}, v7")
    a("v_lshlrev_b32 v8, 2, v8")
    a(f"v_sub_u32 v{vD0}, v{vD0}, v8")
    a(f"v_mov_b32 v{vNINF}, 0xff800000")
    a(f"s_mul_i32 s{sT}, s{sW}, {8192+512}")
    a(f"s_xor_b32 s{sT2}, s{sW}, 4")
    a(f"s_mul_i32 s{sT2}, s{sT2}, {8192+512}")
    a(f"v_add_u32 v14, s{sT}, v{vL16}")
    a(f"v_add_u32 v15, s{sT2}, v{vL16}")
    a("v_lshlrev_b32 v16, 3, v0")
    a(f"v_add_u32 v17, s{sT2}, v16")
    a(f"v_add_u32 v16, s{sT}, v16")
    for r in range(8): a(f"v_mov_b32 v{NEGM+r}, 0")
    for r in range(4): a(f"v_mov_b32 v{ONES+r}, 0x3f803f80")
    if EARLYV: poll(5, 0x101, 0)
    a(f"s_waitcnt vmcnt({min(endwait)}) lgkmcnt(0)")
    a("s_barrier")
    if not EARLYV: poll_issue(5)
    sp.mark("qx")
    def kread(e, t): return f"ds_read_b128 {vr(FR+4*t,4)}, v{vKN if t < D else vKA} offset:{(e&3)*16384+t*1024}"
    def vread(e, i): return f"ds_read_b128 {vr(FR+4*i,4)}, v{vVA} offset:{(e&3)*16384+i*1024}"
    for f in range(8): a(f"ds_read_b128 {vr(Q+4*f,4)}, v{vQ2} offset:{f*1024}")
    for i in range(D): a(kread(0, i))
    a(f"s_mov_b32 s{sS}, 0")

    handlers = []
    def xreduce(op, x, tmp):
        a(f"v_mov_b32 v{tmp}, v{x}")
        a(f"v_permlane16_swap_b32 v{x}, v{tmp}")
        a(f"{op} v{x}, v{x}, v{tmp}")
        a(f"v_mov_b32 v{tmp}, v{x}")
        a(f"v_permlane32_swap_b32 v{x}, v{tmp}")
        a(f"{op} v{x}, v{x}, v{tmp}")
    def rowmax(dst, tmp, src):
        a(f"v_max3_f32 v{dst}, v{src}, v{src+1}, v{src+2}")
        a(f"v_max3_f32 v{dst}, v{dst}, v{src+3}, v{src+4}")
        a(f"v_max3_f32 v{dst}, v{dst}, v{src+5}, v{src+6}")
        a(f"v_max_f32 v{dst}, v{dst}, v{src+7}")
        xreduce("v_max_f32", dst, tmp)
    def sm_ops(Sc, Pw):
        f = []
        def post(q):
            f.append((1, [f"v_cvt_pk_bf16_f32 v{Pw+q//2}, v{T+q%8}, v{T+(q+1)%8}"]))
            k = q // 2
            if k == 3: f.append((1, [f"v_or3_b32 v{vTA}, v{Pw}, v{Pw+1}, v{Pw+2}"]))
            if k == 5: f.append((1, [f"v_or3_b32 v{vTA}, v{vTA}, v{Pw+3}, v{Pw+4}"]))
            if k == 7:
                f.append((1, [f"v_or3_b32 v{vTA}, v{vTA}, v{Pw+5}, v{Pw+6}"]))
                f.append((1, [f"v_bitop3_b32 v{vTA}, v{vTA}, v{Pw+7}, s{sTHR} bitop3:0xa8"]))
        for r in range(16):
            f.append((2, [f"v_exp_f32 v{T+r%8}, v{Sc+r}"]))
            if r % 2 == 1 and r >= 3: post(r - 3)
        post(14)
        return f
    def store_ctx(qis, sct, obase):
        n = 0
        for qi in qis:
            for u in range(4):
                d = T + (n % 4) * 4
                n += 1
                src = obase(qi) + 8 * u
                for e in range(4): a(f"v_cvt_pk_bf16_f32 v{d+e}, v{src+2*e}, v{src+2*e+1}")
                if u == 0 and qi == 1 and len(qis) == 2: a(f"s_add_u32 s{sct}, s{sct}, {CS}")
                a(f"buffer_store_dwordx4 {vr(d,4)}, v{vL16}, {S4(S_WS)}, s{sct} offen offset:{u*1024}{' sc1' if FUSE else ''}")

    sX = sROW
    def slot(j, name, qk=True, sm=True, pv=True, nxt="k", dma=True, last=False, vlist=None, prefetched=True, prebar=None, vmw=4,
             fresh=False, fast=None):
        par = j & 1
        if vlist is None: vlist = [j]
        Sc, Sn, Pw, Pr = SS[1 - par], SS[par], P[1 - par], P[par]
        if fast:
            a.label(name + "_GO")
            handlers.append(("entry", name))
            handlers.append(("ev", name, Sc))
        else:
            a.label(name)
            if sm or pv:
                a(f"s_bitcmp1_b64 s[{sEV}:{sEV+1}], s{sS}")
                a(f"s_cbranch_scc1 {name}_EV")
                a.label(name + "_GO")
                handlers.append(("ev", name, Sc))
        ms = []
        if qk:
            for t in range(8):
                kt, u = t >> 2, t & 3
                mm = []
                for qi in range(2):
                    d = vr(Sn + 8 * qi + 4 * kt, 4)
                    mm.append(f"{MFMA16} {d}, {vr(FR+4*t,4)}, {vr(Q+16*qi+4*u,4)}, {vr(NEGM+4*qi,4) if u == 0 else d}")
                ms.append((mm, kread(j, t)))
        if pv:
            for i in range(8):
                mm = []
                for qi in range(2):
                    o = vr(O + 32 * qi + 4 * i, 4)
                    mm.append(f"{MFMA16} {o}, {vr(FR+4*i,4)}, {vr(Pr+4*qi,4)}, {'0' if fresh else o}")
                ms.append((mm, vread(j - 2, i)))
        rd = [m[1] for m in ms]
        if nxt == "k": rd += [kread(j + 1, i) for i in range(D)]
        elif nxt == "v": rd += [vread(j - 1, i) for i in range(D)]
        dm = []
        if dma and not ('nodma' in OPT and name.startswith('AT_L')):
            for e in vlist:
                dm.append(([f"s_add_u32 m0, s{sM0V}, {(e & 3) * 16384}"], [f"buffer_load_dwordx4 v{vL16}, {S4(S_V)}, s{sHIST[e&3]} offen sc1 lds"]))
                dm.append(([], [f"buffer_load_dwordx4 v{vL16}, {S4(S_V)}, s{sHIST[e&3]} offen offset:1024 sc1 lds"]))
            h0, h1 = sHIST[(j + 3) & 3], sHIST[(j + 2) & 3]
            dm.append(([f"s_add_u32 m0, s{sM0K}, {((j + 3) & 3) * 16384}", f"s_add_u32 s{h0}, s{h1}, s{sBASE}"],
                       [f"buffer_load_dwordx4 v{vL16}, {S4(S_K)}, s{h0} offen sc1 lds"]))
            dm.append(([], [f"buffer_load_dwordx4 v{vL16}, {S4(S_K)}, s{h0} offen offset:1024 sc1 lds"]))
        groups = []
        n = len(ms)
        if not prefetched:
            for x in rd[:D]: a(x)
        dstep = int(OPT.get('dstep', 2))
        dpos = list(range(1, n, dstep if n == 16 else 2)) if len(dm) <= n // 2 else list(range(n))
        WS = int(OPT.get('wstep', 4))
        for m in range(n):
            pre = []
            if m % WS == 0:
                out = min(len(rd), m + D) - (m + WS)
                pre.append(f"s_waitcnt lgkmcnt({max(out, 0)})")
            post = [rd[m + D]] if m + D < len(rd) else []
            if 'halfread' in OPT and (m + D) % 2 == 1: post = []
            if m in dpos and dpos.index(m) < len(dm):
                pre = dm[dpos.index(m)][0] + pre
                post += dm[dpos.index(m)][1]
            if fast and m == 12: post += [f"s_add_u32 s{sS}, s{sS}, 1", f"s_bitcmp1_b64 s[{sEV}:{sEV+1}], s{sS}", f"s_cselect_b32 s{sX}, 1, 0"]
            groups.append((pre, ms[m][0][0], []))
            groups.append(([], ms[m][0][1], post))
            if pv and m == n - 5:
                for qi in range(2): groups.append(([], f"{MFMA16} {vr(LS+4*qi,4)}, {vr(ONES,4)}, {vr(Pr+4*qi,4)}, {'0' if fresh else vr(LS+4*qi,4)}", []))
        fl = sm_ops(Sc, Pw) if (sm and 'nosm' not in OPT) else []
        if fast: fl.append((1, [f"v_cmp_ne_u32 vcc, s{sX}, v{vTA}"]))
        elif sm: fl.append((1, [f"v_cmp_ne_u32 vcc, 0, v{vTA}"]))
        interleave(a, groups, fl, max(2 * n - 1, 1))
        if fast:
            if fast == "AT_L2":
                a("s_cbranch_vccz AT_TOP")
                a(f"s_branch {name}_SP")
            else:
                a(f"s_cbranch_vccnz {name}_SP")
                a("s_waitcnt vmcnt(4)")
                if 'nobar' not in OPT: a("s_barrier")
            handlers.append(("special", name, fast))
            handlers.append(("slow", name, Sc, Sn, Pw))
            return
        if sm:
            a(f"s_cbranch_vccnz {name}_SLOW")
            a.label(name + "_RET")
            handlers.append(("slow", name, Sc, Sn, Pw))
        if not last:
            a(f"s_add_u32 s{sS}, s{sS}, 1")
            if prebar: prebar()
            a(f"s_waitcnt vmcnt({vmw if dma else 0})")
            a("s_barrier")

    slot(0, "AT_S0", sm=False, pv=False)
    sp.mark("s0")
    slot(1, "AT_S1", pv=False)
    sp.mark("s1")
    poll_issue(2)
    slot(2, "AT_S2", prebar=lambda: poll(2, 0xffff, 4), fresh=True)
    sp.mark("s2")
    a("s_branch AT_L3")
    a(".p2align 6")
    a.label("AT_TOP")
    a("s_waitcnt vmcnt(4)")
    if 'nobar' not in OPT: a("s_barrier")
    slot(2, "AT_L2", fast="AT_L3"); slot(3, "AT_L3", fast="AT_L0"); slot(0, "AT_L0", fast="AT_L1"); slot(1, "AT_L1", fast="AT_L2")
    a.label("AT_P33")
    sp.mark("s32")
    if FUSE: poll_issue(6, True)
    slot(1, "AT_S33", nxt=None, prebar=(lambda: poll(6, -1, 4, True)) if FUSE else None)
    slot(2, "AT_S34", qk=False, nxt=None, dma=False, prefetched=False)
    if FUSE and 'lateconv' not in OPT:
        for x in tsrd(PT + 6, 2621440): a(x)
        gen_tail.conv_dma(a, {k: v for k, v in globals().items() if not k.startswith("__") and k != "gen_tail"}, sW, S_WS, S_T, sT, sT2, 3, sCO, vL16, 18, 19,
                          98304, "AT_S35", " sc1")
    slot(3, "AT_S35", qk=False, sm=False, nxt=None, dma=False, last=True, prefetched=False)
    sp.mark("s35")
    X0, X1, X2, X3, X4, X5 = range(vX0, vX0 + 6)
    a(f"s_cmp_eq_u32 s{sG}, 0")
    a("s_cbranch_scc1 AT_MA")
    for gsel in (1, 0):
        if gsel == 0: a.label("AT_MA")
        own, snd = O + 32 * gsel, O + 32 * (1 - gsel)
        a(f"v_mov_b32 v{X4}, v{NEGM+4*(1-gsel)}")
        a(f"v_mov_b32 v{X5}, v{LS+4*(1-gsel)}")
        a(f"ds_write_b64 v16, v[{X4}:{X5}] offset:8192")
        for q in range(8): a(f"ds_write_b128 v14, {vr(snd+4*q,4)} offset:{1024*q}")
        if gsel: a(f"s_add_u32 s{sCT2}, s{sCT2}, {CS}")
        a("s_waitcnt lgkmcnt(0)")
        a("s_barrier")
        a(f"ds_read_b64 v[{X2}:{X3}], v17 offset:8192")
        for q in range(8): a(f"ds_read_b128 {vr(snd+4*q,4)}, v15 offset:{1024*q}")
        a("s_waitcnt lgkmcnt(8)")
        a(f"v_min_f32 v{vTA}, v{NEGM+4*gsel}, v{X2}")
        a(f"v_sub_f32 v{X0}, v{vTA}, v{NEGM+4*gsel}")
        a(f"v_sub_f32 v{X2}, v{vTA}, v{X2}")
        a(f"v_exp_f32 v{X0}, v{X0}")
        a(f"v_exp_f32 v{X2}, v{X2}")
        a(f"v_mul_f32 v{vTA}, v{LS+4*gsel}, v{X0}")
        a(f"v_fmac_f32 v{vTA}, v{X3}, v{X2}")
        a(f"v_rcp_f32 v{vTA}, v{vTA}")
        a(f"v_mul_f32 v{X0}, v{X0}, v{vTA}")
        a(f"v_mul_f32 v{X2}, v{X2}, v{vTA}")
        for u in range(4):
            for r in range(8 * u, 8 * u + 8): a(f"v_mul_f32 v{own+r}, v{own+r}, v{X0}")
            a(f"s_waitcnt lgkmcnt({6-2*u})")
            for r in range(8 * u, 8 * u + 8): a(f"v_fmac_f32 v{own+r}, v{snd+r}, v{X2}")
            for e in range(4): a(f"v_cvt_pk_bf16_f32 v{T+4*u+e}, v{own+8*u+2*e}, v{own+8*u+2*e+1}")
            a(f"buffer_store_dwordx4 {vr(T+4*u,4)}, v{vL16}, {S4(S_WS)}, s{sCT2} offen offset:{u*1024}{' sc1' if FUSE else ''}")
        if gsel: a("s_branch AT_MB")
    a.label("AT_MB")
    if FUSE:
        sp.mark("att")
        gen_tail.gen_tail(a, {k: v for k, v in globals().items() if not k.startswith("__") and k != "gen_tail"}, dict(sW=sW, sH=sH, sP=sP, sp=sp))
    elif STAMP:
        a("s_waitcnt vmcnt(0)")
        sp.mark("end")
        a("s_waitcnt lgkmcnt(0)")
        sp.flush(100, sW, 0, slot=0); sp.flush(100, sW, 4, slot=1)
    a.label("M_END")
    a("s_endpgm")
    for hd in handlers:
        if hd[0] == "entry":
            name = hd[1]
            a.label(name)
            a(f"s_bitcmp1_b64 s[{sEV}:{sEV+1}], s{sS}")
            a(f"s_cbranch_scc0 {name}_GO")
        elif hd[0] == "special":
            _, name, nx = hd
            a.label(name + "_SP")
            a(f"v_cmp_ne_u32 vcc, 0, v{vTA}")
            a(f"s_cbranch_vccnz {name}_SLOW")
            a.label(name + "_RET")
            a("s_waitcnt vmcnt(4)")
            if 'nobar' not in OPT: a("s_barrier")
            if nx == "AT_L1":
                a(f"s_cmp_eq_u32 s{sS}, 33")
                a("s_cbranch_scc1 AT_P33")
            a(f"s_branch {nx}")
        elif hd[0] == "ev":
            _, name, Sc = hd
            a.label(name + "_EV")
            a(f"s_cmp_eq_u32 s{sS}, s{sWRAP}")
            a(f"s_cselect_b32 s{sBASE}, 16384, s{sBASE}")
            a(f"s_cmp_eq_u32 s{sS}, 31")
            a(f"s_cselect_b32 s{S_K+2}, 0, s{S_K+2}")
            if SHARE:
                a(f"s_cmp_eq_u32 s{sG}, 0")
                a(f"s_cbranch_scc1 {name}_E0")
                a(f"s_sub_u32 s{sT}, s{sS}, s{sNB}")
                a(f"s_cmp_eq_u32 s{sT}, -3")
                a(f"s_cselect_b32 s{S_K+2}, {16*MB}, s{S_K+2}")
                a(f"s_cmp_eq_u32 s{sT}, 0")
                a(f"s_cselect_b32 s{S_V+2}, {16*MB}, s{S_V+2}")
                a(f"s_cselect_b32 s{sT2}, 8192, 0")
                a(f"v_add_u32 v{vKA}, s{sT2}, v{vKA}")
                a(f"s_cmp_eq_u32 s{sT}, -1")
                a(f"s_cselect_b32 s{sT2}, 8192, 0")
                a(f"v_add_u32 v{vKN}, s{sT2}, v{vKN}")
                a(f"s_cmp_eq_u32 s{sT}, 2")
                a(f"s_cselect_b32 s{sT2}, 8192, 0")
                a(f"v_add_u32 v{vVA}, s{sT2}, v{vVA}")
                a.label(name + "_E0")
            a(f"s_sub_u32 s{sT}, s{sS}, s{sN1}")
            a(f"s_cmp_lg_u32 s{sT}, 2")
            a(f"s_cbranch_scc1 {name}_E1")
            a(f"v_rcp_f32 v{vX0}, v{LS}")
            a(f"v_rcp_f32 v{vX0+1}, v{LS+4}")
            for r in range(8): a(f"v_mov_b32 v{LS+r}, 0")
            for r in range(64): a(f"v_mul_f32 v{O+r}, v{O+r}, v{vX0+(r>>5)}")
            store_ctx((0, 1), sCT1, lambda qi: O + 32 * qi)
            for r in range(64): a(f"v_mov_b32 v{O+r}, 0")
            a.label(name + "_E1")
            if FUSE:
                only(0, ["s_mov_b64 exec, 1", f"v_mov_b32 v{vX0}, 1", f"s_lshl_b32 s3, s{sP}, 10", f"s_add_u32 s3, s3, s{sH}", "s_lshl_b32 s3, s3, 2",
                         f"s_add_u32 s3, s3, {WS_FL3}", f"buffer_store_dword v{vX0}, v{vZERO}, {S4(S_WS)}, s3 offen sc1", "s_mov_b64 exec, -1"],
                     f"s_cmp_lg_u32 s{sT}, 3")
            a(f"s_cmp_lg_u32 s{sT}, 0")
            a(f"s_cbranch_scc1 {name}_E2")
            for t in range(8): a(f"ds_read_b128 {vr(Q+4*t,4)}, v{vQ2} offset:{32768+1024*t}")
            for r in range(8): a(f"v_mov_b32 v{NEGM+r}, 0")
            a("s_waitcnt lgkmcnt(0)")
            a.label(name + "_E2")
            a(f"s_sub_u32 s{sT2}, s{sS}, s{sMST}")
            a(f"s_sub_u32 s{sT2}, s{sT2}, 1")
            a(f"s_cmp_lt_u32 s{sT2}, 4")
            a(f"s_cbranch_scc1 {name}_EM")
            a(f"s_cmp_lt_u32 s{sS}, 33")
            a(f"s_cbranch_scc1 {name}_E3")
            a(f"s_sub_u32 s{sT2}, s{sS}, 33")
            a(f"s_lshl_b32 s{sT2}, s{sT2}, 1")
            a(f"s_add_u32 s{sT2}, s{sT2}, s{sG}")
            a.label(name + "_EM")
            a(f"s_lshl_b32 s{sT2}, s{sT2}, 5")
            a(f"v_subrev_u32 v{vX0}, s{sT2}, v{vD0}")
            for qi in range(2):
                for kt in range(2):
                    for e in range(4):
                        a(f"v_cmp_le_i32 s[{sMK+2*e}:{sMK+2*e+1}], {16*kt+e-16*qi}, v{vX0}")
                    for e in range(4):
                        r = Sc + 8 * qi + 4 * kt + e
                        a(f"v_cndmask_b32 v{r}, v{vNINF}, v{r}, s[{sMK+2*e}:{sMK+2*e+1}]")
            a.label(name + "_E3")
            a(f"s_cmp_eq_u32 s{sT}, 1")
            a(f"s_cbranch_scc1 {name}_E4")
            a(f"s_cmp_lg_u32 s{sS}, 1")
            a(f"s_cbranch_scc1 {name}_GO")
            a.label(name + "_E4")
            for qi in range(2):
                rowmax(vX0 + qi, vX0 + 2 + qi, Sc + 8 * qi)
                a(f"v_add_f32 v{vX0+qi}, {f32hex(BIAS)}, v{vX0+qi}")
            for r in range(8): a(f"v_sub_f32 v{NEGM+r}, v{NEGM+r}, v{vX0+(r>>2)}")
            for r in range(16): a(f"v_sub_f32 v{Sc+r}, v{Sc+r}, v{vX0+(r>>3)}")
            a(f"s_branch {name}_GO")
        else:
            _, name, Sc, Sn, Pw = hd
            a.label(name + "_SLOW")
            for qi in range(2):
                rowmax(vX0 + qi, vX0 + 2 + qi, Sc + 8 * qi)
                a(f"v_add_f32 v{vX0+qi}, {f32hex(BIAS)}, v{vX0+qi}")
                a(f"v_max_f32 v{vX0+qi}, 0, v{vX0+qi}")
                a(f"v_exp_f32 v{vX0+2+qi}, -v{vX0+qi}")
            for r in range(8): a(f"v_sub_f32 v{NEGM+r}, v{NEGM+r}, v{vX0+(r>>2)}")
            for r in range(16): a(f"v_sub_f32 v{Sn+r}, v{Sn+r}, v{vX0+(r>>3)}")
            for r in range(16): a(f"v_sub_f32 v{Sc+r}, v{Sc+r}, v{vX0+(r>>3)}")
            for r in range(64): a(f"v_mul_f32 v{O+r}, v{O+r}, v{vX0+2+(r>>5)}")
            for r in range(8): a(f"v_mul_f32 v{LS+r}, v{LS+r}, v{vX0+2+(r>>2)}")
            for c, ops in sm_ops(Sc, Pw):
                for x in ops: a(x)
            a(f"s_branch {name}_RET")
    a.label("M_LAST")
    a("s_endpgm")
    return dict(name="gated_mix__ssm_conv_h3__compressed_kv_cla__prompt_kernel" if FUSE else "main_kernel", grid=256, block=512, lds=163840, vgpr=256)

import gen as G1
G1.STAMP = False
KERNELS = {"main": gen_main, "conv": G1.gen_conv, "oproj": G1.gen_oproj, "tail": lambda a: gen_tail.gen_tail(a, {k: v for k, v in globals().items() if not k.startswith("__") and k != "gen_tail"})}

def build(names, path, verbose=False):
    hdr = open("gated_mix__ssm_conv_h3__compressed_kv_cla__prompt.s.ref").read().split("\n")
    hdr = [l for l in hdr if l.startswith(";") and "@launch" not in l and "Override" not in l and "grid=ceil" not in l]
    codes, descs, launches = [], [], []
    for n in names:
        a = Asm()
        info = KERNELS[n](a)
        k = fix_hazards(a.lines, verbose)
        print(f"{n}: {len(a.lines)} lines, {k} nops inserted")
        c, d = kernel_text(info["name"], a.lines, info["vgpr"], extra="  .amdhsa_float_denorm_mode_32 3\n")
        codes.append(c); descs.append(d)
        kn = "" if "plain" in OPT else f"kernel={info['name']} "
        launches.append(f"; @launch {kn}grid=({info['grid']},1,1) block=({info['block']},1,1) lds={info['lds']}")
    txt = "\n".join(hdr + launches) + '\n.amdgcn_target "amdgcn-amd-amdhsa--gfx950"\n.text\n' + "\n".join(codes) + \
          '\n.section .rodata,"a"\n' + "\n".join(descs)
    if "CODE_SPAN" in txt: txt = txt.replace("CODE_SPAN", str(int(OPT.get("ipf", 77000))))
    open(path, "w").write(txt)

if __name__ == "__main__":
    names = sys.argv[2].split(",") if len(sys.argv) > 2 else list(KERNELS)
    build(names, sys.argv[1] if len(sys.argv) > 1 else "k2.s", verbose="-v" in sys.argv)
```

```python
import sys, struct
from asmlib import *
from sched import *
import gen_tail

MB = 1 << 20
WS_KF, WS_VF, WS_CTX, WS_WOT, WS_KVT, WS_Y2T, WS_G = 0, 16 * MB, 32 * MB, 49 * MB, 56 * MB, 60 * MB, 63 * MB
KA = dict(A_q=0, A_k=8, A_v=16, shift=24, ssm_k=32, ssm_D=40, B_x=48, c_kv=56, w_q=64, w_uk=72, w_uv=80, w_o=88,
          gate=96, out=104, dbg=112, ws=120)
MFMA32 = "v_mfma_f32_32x32x16_bf16"
MFMA16 = "v_mfma_f32_16x16x32_bf16"
STAMP = "-stamp" in sys.argv
OPT = {x[2:].split("=")[0]: (x.split("=")[1] if "=" in x else "1") for x in sys.argv if x.startswith("--")}
WS_FLG = 63 * MB + 524288
WS_FL2 = 63 * MB + 655360
WS_FL3 = WS_FL2 + 131072
FUSE = 'nofuse' not in OPT
CS = 131072 + int(OPT.get('cspad', 1024))
OOB = "0x80000000"
def f32hex(x): return "0x%08x" % struct.unpack("<I", struct.pack("<f", x))[0]

def srd(a, d, lo, hi, size, add=0):
    if add:
        a(f"s_add_u32 s{d}, s{lo}, {add}")
        a(f"s_addc_u32 s{d+1}, s{hi}, 0")
    else:
        a(f"s_mov_b32 s{d}, s{lo}")
        a(f"s_mov_b32 s{d+1}, s{hi}")
    a(f"s_mov_b32 s{d+2}, {size}")
    a(f"s_mov_b32 s{d+3}, 0x00020000")
def S4(d): return f"s[{d}:{d+3}]"

class Stamps:
    def __init__(self, a, base=70, region=0):
        self.a, self.base, self.n, self.region = a, base, 0, region
    off = False
    def mark(self, name=""):
        if not STAMP or self.off: return
        if name not in OPT.get("marks", "start,kv,q,s1,end,t0,t1,t2").split(","): return
        assert self.base + 2 * self.n + 3 <= 101
        self.a(f"s_memtime s[{self.base+2*self.n}:{self.base+2*self.n+1}]")
        self.a(f"s_memrealtime s[{self.base+2*self.n+2}:{self.base+2*self.n+3}]")
        self.n += 2
    def flush(self, wg, sW, wave, slot=0):
        if not STAMP: return
        a = self.a
        lab = a.uid("STK")
        a(f"s_cmp_lg_u32 s{sW}, {wave}")
        a(f"s_cbranch_scc1 {lab}")
        if 'dbgstamp' in OPT:
            if slot:
                a.label(lab); return
            a(f"s_cmp_lg_u32 s2, {OPT['dbgstamp']}")
            a(f"s_cbranch_scc1 {lab}")
            a(f"s_load_dwordx2 s[60:61], s[0:1], {KA['dbg']}")
            a("s_waitcnt lgkmcnt(0)")
            a("s_mov_b32 s62, 64")
            a("s_mov_b32 s63, 0x00020000")
            a("v_mov_b32 v1, 0")
            for i in range(self.n - 1, 1, -1): a(f"s_sub_u32 s{self.base+2*i}, s{self.base+2*i}, s{self.base+2*i-4}")
        else:
            a(f"s_load_dwordx2 s[60:61], s[0:1], {KA['ws']}")
            a("s_waitcnt lgkmcnt(0)")
            a(f"s_add_u32 s60, s60, {128*MB + self.region*65536 + slot*64}")
            a("s_addc_u32 s61, s61, 0")
            a("s_mov_b32 s62, 65536")
            a("s_mov_b32 s63, 0x00020000")
            a("s_lshl_b32 s3, s2, 7")
            a("v_mov_b32 v1, s3")
        for i in range(self.n):
            a(f"v_mov_b32 v2, s{self.base+2*i}")
            a(f"buffer_store_dword v2, v1, s[60:63], 0 offen offset:{4*i}")
        a("s_getreg_b32 s3, hwreg(HW_REG_XCC_ID)")
        a("v_mov_b32 v2, s3")
        a(f"buffer_store_dword v2, v1, s[60:63], 0 offen offset:60")
        a("s_waitcnt vmcnt(0)")
        a.label(lab)

def rnd_pair(d, lo, hi, olo, ohi):
    return [f"v_cvt_pk_bf16_f32 v{d}, v{lo}, v{hi}", f"v_lshlrev_b32 v{olo}, 16, v{d}", f"v_and_b32 v{ohi}, 0xffff0000, v{d}"]

def interleave(a, mfmas, fillers, ngaps):
    tot = sum(c for c, _ in fillers)
    fi, acc = 0, 0.0
    for g, (pre, m, post) in enumerate(mfmas):
        for x in pre: a(x)
        a(m)
        for x in post: a(x)
        lim = tot * min(1.0, (g + 1) / ngaps) if ngaps else tot
        while fi < len(fillers) and acc + fillers[fi][0] * 0.5 <= lim:
            acc += fillers[fi][0]
            for x in fillers[fi][1]: a(x)
            fi += 1
    while fi < len(fillers):
        for x in fillers[fi][1]: a(x)
        fi += 1

def gen_main(a):
    S_C, S_W, S_WS, S_V, S_X, S_WQ, S_DBG = 4, 8, 12, 16, 20, 24, 28
    (sW, sH, sP, sG, sRB, sT, sT2, sCO, sWO, sM0C, sM0W, sOB, sROW, sXO, sQWO, sN1, sS, sMST, sTHR, sM0K, sM0V,
     sBASE, sCT1, sCT2, sWRAP) = range(32, 57)
    sHIST = [57, 58, 59, 60]
    sEV = 62
    PT = 64
    S_T = 76
    sMK = 4
    S_K = S_X
    sNB = 61
    SHARE = 'share' in OPT
    vL16, vCD, vWD, vAC, vAW, vXD, vQW, vWOT, vKVT = 1, 2, 6, 10, 12, 16, 20, 22, 23
    WFR, CFR, ACC = [32, 48], 64, 128
    sp = Stamps(a, base=80)
    vm = VM()
    a("s_cmp_ge_u32 s2, 256")
    a("s_cbranch_scc1 M_END")
    sp.mark("start")
    a(f"s_load_dwordx2 s[44:45], s[0:1], {KA['c_kv']}")
    a(f"s_load_dwordx4 s[48:51], s[0:1], {KA['w_uk']}")
    a("v_lshrrev_b32 v1, 6, v0")
    a("v_mov_b32 v31, v0")
    a("v_and_b32 v0, 63, v0")
    a(f"v_readfirstlane_b32 s{sW}, v1")
    a(f"s_and_b32 s{sH}, s2, 7")
    a("s_lshr_b32 s3, s2, 6")
    a("s_lshl_b32 s3, s3, 3")
    a(f"s_add_u32 s{sH}, s{sH}, s3")
    a(f"s_bfe_u32 s{sP}, s2, 0x30003")
    a(f"s_lshr_b32 s{sG}, s{sW}, 2")
    a("v_lshrrev_b32 v24, 3, v0")
    a("v_and_b32 v25, 7, v0")
    a("v_lshrrev_b32 v26, 4, v0")
    a("v_xor_b32 v25, v25, v26")
    a("v_lshlrev_b32 v25, 4, v25")
    a("v_xor_b32 v27, 64, v25")
    a(f"v_lshl_add_u32 v{vCD}, v24, 10, v25")
    a(f"v_lshl_add_u32 v{vCD+1}, v24, 10, v27")
    a(f"v_add_u32 v{vCD+1}, {8192-1024}, v{vCD+1}")
    a(f"v_add_u32 v{vCD+2}, {2*(8192-1024)}, v{vCD}")
    a(f"v_add_u32 v{vCD+3}, {2*(8192-1024)}, v{vCD+1}")
    a("v_and_b32 v28, 15, v0")
    a("v_lshlrev_b32 v29, 1, v26")
    a("v_xor_b32 v28, v28, v29")
    a("v_lshlrev_b32 v28, 4, v28")
    a(f"v_lshl_add_u32 v{vWD}, v26, 13, v28")
    a(f"v_add_u32 v{vWD+1}, {4*8192-1024}, v{vWD}")
    a(f"v_xor_b32 v{vWD+2}, 128, v{vWD}")
    a(f"v_add_u32 v{vWD+2}, {2*(4*8192-1024)}, v{vWD+2}")
    a(f"v_add_u32 v{vWD+3}, {4*8192-1024}, v{vWD+2}")
    a(f"s_and_b32 s{sRB}, s{sW}, 3")
    a(f"s_lshl_b32 s{sCO}, s{sP}, 18")
    a(f"s_lshl_b32 s{sT}, s{sW}, 15")
    a(f"s_add_u32 s{sCO}, s{sCO}, s{sT}")
    a(f"s_lshl_b32 s{sWO}, s{sRB}, 17")
    a(f"s_lshl_b32 s{sT}, s{sH}, 8")
    a(f"s_add_u32 s{sWO}, s{sWO}, s{sT}")
    a(f"s_lshl_b32 s{sM0C}, s{sW}, 12")
    a(f"s_add_u32 s{sM0W}, s{sM0C}, 65536")
    a("s_waitcnt lgkmcnt(0)")
    srd(a, S_C, 44, 45, 2 * MB)
    a(f"s_cmp_eq_u32 s{sG}, 0")
    a(f"s_cselect_b32 s{S_W}, s48, s50")
    a(f"s_cselect_b32 s{S_W+1}, s49, s51")
    a(f"s_mov_b32 s{S_W+2}, {4*MB}")
    a(f"s_mov_b32 s{S_W+3}, 0x00020000")
    def kv_dma(st):
        buf = (st & 1) * 32768
        tg = ("kv", st)
        out = [[f"s_add_u32 m0, s{sM0C}, {buf}", f"s_add_u32 s{sT}, s{sCO}, {st*128}",
                (f"buffer_load_dwordx4 v{vCD}, {S4(S_C)}, s{sT} offen lds", tg)]]
        for i in range(1, 4): out.append([(f"buffer_load_dwordx4 v{vCD+i}, {S4(S_C)}, s{sT} offen offset:{i*1024} lds", tg)])
        out.append([f"s_add_u32 m0, s{sM0W}, {buf}", f"s_add_u32 s{sT}, s{sWO}, {st*64*8192}",
                    (f"buffer_load_dwordx4 v{vWD}, {S4(S_W)}, s{sT} offen lds", tg)])
        for i in range(1, 4): out.append([(f"buffer_load_dwordx4 v{vWD+i}, {S4(S_W)}, s{sT} offen offset:{i*1024} lds", tg)])
        return out
    def emit(items):
        for it in items:
            for x in it:
                if isinstance(x, tuple): a(x[0]); vm.add(x[1])
                else: a(x)
    emit(kv_dma(0))
    a(f"s_load_dwordx2 s[44:45], s[0:1], {KA['A_q']}")
    a(f"s_load_dwordx2 s[46:47], s[0:1], {KA['w_q']}")
    a(f"s_load_dwordx4 s[48:51], s[0:1], {KA['dbg']}")
    a(f"s_load_dwordx4 s[{PT}:{PT+3}], s[0:1], {KA['A_k']}")
    a(f"s_load_dwordx4 s[{PT+4}:{PT+7}], s[0:1], {KA['shift']}")
    a(f"s_load_dwordx4 s[{PT+8}:{PT+11}], s[0:1], {KA['w_o']}")
    a(f"v_lshlrev_b32 v{vL16}, 4, v0")
    a("v_mul_u32_u24 v28, 1280, v24")
    a(f"v_add_u32 v{vXD}, v28, v25")
    a(f"v_add_u32 v{vXD+1}, v28, v27")
    a(f"v_add_u32 v{vXD+1}, {8*1280-1024}, v{vXD+1}")
    a(f"v_add_u32 v{vXD+2}, {2*(8*1280-1024)}, v{vXD}")
    a(f"v_add_u32 v{vXD+3}, {2*(8*1280-1024)}, v{vXD+1}")
    a(f"s_and_b32 s3, s{sW}, 1")
    a("s_lshl_b32 s3, s3, 7")
    a(f"v_xor_b32 v{vQW}, s3, v{vWD}")
    a(f"v_add_u32 v{vQW+1}, {4*8192-1024}, v{vQW}")
    emit(kv_dma(1))
    vPF, vPFW, vSC = 116, 115, 117
    if 'nopf' not in OPT:
        a(f"v_lshlrev_b32 v{vPF}, 7, v0")
        a("v_lshrrev_b32 v24, 1, v0")
        a("v_and_b32 v25, 1, v0")
        a("v_lshlrev_b32 v25, 7, v25")
        a(f"v_lshl_add_u32 v{vPFW}, v24, 13, v25")
        a("s_lshl_b32 s3, s2, 13")
        a(f"s_lshl_b32 s{sT}, s{sW}, 10")
        a(f"s_add_u32 s3, s3, s{sT}")
        a("s_mov_b64 exec, 0xff")
        emit([[(f"buffer_load_dword v{vSC}, v{vPF}, {S4(S_C)}, s3 offen sc1", "pf")]])
        a(f"s_lshl_b32 s3, s{sP}, 19")
        a(f"s_add_u32 s3, s3, s{sWO}")
        a("s_mov_b32 exec_lo, -1")
        emit([[(f"buffer_load_dword v{vSC}, v{vPFW}, {S4(S_W)}, s3 offen sc1", "pf")]])
        a("s_mov_b64 exec, -1")
    def frag_addrs(vR, rowoff_sgpr, vWa, nt_sgpr, wbase_sgpr):
        a("v_and_b32 v24, 15, v0")
        a("v_lshrrev_b32 v25, 4, v0")
        a("v_bfe_u32 v26, v0, 1, 3")
        a("v_xor_b32 v26, v26, v25")
        a("v_lshlrev_b32 v26, 4, v26")
        a("v_lshl_add_u32 v26, v24, 7, v26")
        a(f"v_add_u32 v{vR}, s{rowoff_sgpr}, v26")
        a(f"v_xor_b32 v{vR+1}, 64, v{vR}")
        a("v_bfe_u32 v24, v0, 2, 2")
        a("v_lshl_add_u32 v26, v25, 3, v24")
        a("v_lshlrev_b32 v26, 8, v26")
        a("v_and_b32 v27, 3, v0")
        a("v_lshl_add_u32 v26, v27, 3, v26")
        a(f"v_add_u32 v26, s{wbase_sgpr}, v26")
        a("v_and_b32 v25, 1, v25")
        a("v_lshl_add_u32 v24, v25, 2, v24")
        a(f"v_xor_b32 v24, s{nt_sgpr}, v24")
        for nt in range(4):
            a(f"v_xor_b32 v25, {nt}, v24")
            a(f"v_lshl_add_u32 v{vWa+nt}, v25, 5, v26")
    a(f"s_and_b32 s{sT}, s{sW}, 1")
    a(f"s_lshl_b32 s{sT}, s{sT}, 14")
    a(f"s_and_b32 s{sT2}, s{sW}, 2")
    a(f"s_lshl_b32 s{sT2}, s{sT2}, 1")
    a(f"s_lshl_b32 s3, s{sG}, 14")
    a("s_add_u32 s3, s3, 65536")
    frag_addrs(vAC, sT, vAW, sT2, 3)
    WOB = 131072
    a("v_lshrrev_b32 v24, 2, v0")
    a("v_mul_u32_u24 v24, 672, v24")
    a("v_and_b32 v25, 3, v0")
    a("v_lshl_add_u32 v24, v25, 3, v24")
    a(f"s_lshl_b32 s{sT}, s{sW}, 5")
    a(f"s_add_u32 s{sT}, s{sT}, {WOB}")
    a(f"v_add_u32 v{vWOT}, s{sT}, v24")
    KVS, TRB = 131072, 153600
    a("v_mul_u32_u24 v25, 1639, v31")
    a("v_lshrrev_b32 v25, 16, v25")
    a("v_mul_u32_u24 v26, 40, v25")
    a("v_sub_u32 v26, v31, v26")
    a("v_mul_u32_u24 v29, 1280, v25")
    a("v_lshl_add_u32 v29, v26, 2, v29")
    a(f"v_add_u32 v29, {KVS}, v29")
    a("v_and_b32 v27, 7, v26")
    a("v_xor_b32 v27, v27, v25")
    a("v_lshlrev_b32 v27, 4, v27")
    a(f"v_lshl_add_u32 v{vKVT}, v26, 8, v27")
    a(f"v_add_u32 v{vKVT}, {TRB}, v{vKVT}")
    a(f"s_and_b32 s{sT2}, s2, 7")
    a(f"s_mul_i32 s{sT}, s{sT2}, 40")
    a(f"v_add_lshl_u32 v26, v26, s{sT}, 4")
    a("v_mul_u32_u24 v25, 205, v0")
    a("v_lshrrev_b32 v25, 11, v25")
    a("v_mul_u32_u24 v27, 1120, v25")
    a("v_lshl_add_u32 v27, v0, 4, v27")
    a(f"s_lshr_b32 s{sT}, s2, 3")
    a(f"s_mul_i32 s{sT}, s{sT}, {64*1280}")
    a(f"s_mul_i32 s{sT2}, s{sT2}, 160")
    a(f"s_add_u32 s{sT}, s{sT}, s{sT2}")
    a(f"s_sub_u32 s{sT}, s{sT}, 3840")
    a(f"v_add_u32 v27, s{sT}, v27")
    a(f"v_mov_b32 v30, {OOB}")
    a("v_mul_u32_u24 v24, 20, v0")
    a("s_waitcnt lgkmcnt(0)")
    srd(a, S_WS, 50, 51, 64 * MB)
    srd(a, S_V, 50, 51, 16 * MB, WS_VF)
    srd(a, S_X, 44, 45, 2621440)
    srd(a, S_WQ, 46, 47, 5242880)
    srd(a, S_DBG, 48, 49, 256)
    a(f"s_sub_u32 s{sT}, 15, s{sP}")
    a(f"s_lshl_b32 s{sT2}, s{sRB}, 5")
    a(f"s_lshl_b32 s{sCT2}, s{sT}, 7")
    a(f"s_add_u32 s{sCT2}, s{sCT2}, s{sT2}")
    a(f"s_lshl_b32 s{sCT1}, s{sP}, 7")
    a(f"s_add_u32 s{sCT1}, s{sCT1}, s{sT2}")
    a(f"s_cmp_eq_u32 s{sG}, 0")
    a(f"s_cselect_b32 s{sROW}, s{sCT1}, s{sCT2}")
    a(f"s_mul_i32 s{sXO}, s{sROW}, 1280")
    a(f"s_lshl_b32 s{sQWO}, s{sW}, 16")
    a(f"s_lshl_b32 s{sT}, s{sH}, 8")
    a(f"s_add_u32 s{sQWO}, s{sQWO}, s{sT}")
    a(f"s_lshl_b32 s{sT}, s{sH}, 12")
    a(f"s_add_u32 s{sT}, s{sT}, {WS_CTX}")
    for c in (sCT1, sCT2):
        a(f"s_mul_i32 s{c}, s{c}, {CS // 16}")
        a(f"s_add_u32 s{c}, s{c}, s{sT}")
    a(f"s_lshl_b32 s{sOB}, s{sH}, 6")
    a(f"s_lshl_b32 s{sT}, s{sP}, 3")
    a(f"s_add_u32 s{sOB}, s{sOB}, s{sT}")
    a(f"s_and_b32 s{sT}, s{sW}, 1")
    a(f"s_lshl_b32 s{sT}, s{sT}, 2")
    a(f"s_add_u32 s{sOB}, s{sOB}, s{sT}")
    a(f"s_lshl_b32 s{sOB}, s{sOB}, 13")
    a(f"s_bfe_u32 s{sT}, s{sW}, 0x10001")
    a(f"s_add_u32 s{sT2}, s{sG}, 11")
    a(f"s_lshl_b32 s{sT}, s{sT}, s{sT2}")
    a(f"s_add_u32 s{sOB}, s{sOB}, s{sT}")
    a(f"s_lshl_b32 s{sT}, s{sG}, 24")
    a(f"s_add_u32 s{sOB}, s{sOB}, s{sT}")
    a(f"s_lshl_b32 s{sN1}, s{sP}, 2")
    a(f"s_add_u32 s{sN1}, s{sN1}, 4")
    a(f"s_mov_b32 s{sNB}, s{sN1}")
    a(f"s_lshl_b32 s{sHIST[0]}, s{sH}, 19")
    a(f"s_lshl_b32 s{sT}, s{sRB}, 11")
    a(f"s_add_u32 s{sHIST[0]}, s{sHIST[0]}, s{sT}")
    a(f"s_lshl_b32 s{sM0K}, s{sW}, 11")
    a(f"s_add_u32 s{sM0V}, s{sM0K}, 65536")
    a(f"s_sub_u32 s{sT2}, s{sN1}, 4")
    a(f"s_sub_u32 s{sWRAP}, s{sN1}, 2")
    a(f"s_sub_u32 s{sWRAP}, s{sWRAP}, s{sG}")
    a(f"s_mov_b32 s{sBASE}, 8192")
    a(f"s_cmp_eq_u32 s{sG}, 0")
    a(f"s_cselect_b32 s{sMST}, s{sT2}, 99")
    a(f"s_cselect_b32 s{sN1}, s{sN1}, 100")
    a(f"s_add_u32 s{sHIST[1]}, s{sHIST[0]}, 8192")
    a(f"s_add_u32 s{sHIST[2]}, s{sHIST[0]}, 16384")
    a(f"s_mov_b64 s[{sEV}:{sEV+1}], {(127 if FUSE else 63) if 'noev' not in OPT else 64}")
    a(f"s_add_u32 s{sT}, s{sMST}, 1")
    a(f"s_lshl_b64 s[{sEV}:{sEV+1}], s[{sEV}:{sEV+1}], s{sT}")
    if SHARE:
        a(f"s_mul_i32 s{S_T}, s{sG}, 45")
        a(f"s_mov_b32 s{S_T+1}, 0")
        a(f"s_sub_u32 s{sT}, s{sNB}, 3")
        a(f"s_lshl_b64 s[{S_T}:{S_T+1}], s[{S_T}:{S_T+1}], s{sT}")
        a(f"s_or_b64 s[{sEV}:{sEV+1}], s[{sEV}:{sEV+1}], s[{S_T}:{S_T+1}]")
        a(f"s_cmp_eq_u32 s{sG}, 0")
        a(f"s_cselect_b32 s{S_V+2}, s{S_V+2}, 0")
    a(f"s_bitset1_b64 s[{sEV}:{sEV+1}], s{sWRAP}")
    a(f"s_or_b32 s{sEV}, s{sEV}, 0x80000002")
    a(f"s_or_b32 s{sEV+1}, s{sEV+1}, 6")
    a(f"s_mov_b32 s{sTHR}, 0x40004000")
    a(f"s_mov_b32 s{S_T+3}, 0x00020000")
    if 'tlb' in OPT:
        a(f"s_lshl_b32 s{sT}, s{sW}, 2")
        a(f"s_lshr_b32 s3, 0xdba84210, s{sT}")
        a("s_and_b32 s3, s3, 15")
        a("s_lshl_b32 s3, s3, 3")
        a(f"s_load_dwordx2 s[{S_T}:{S_T+1}], s[0:1], s3")
        a(f"s_lshr_b32 s3, 0x5a8a5555, s{sT}")
        a("s_and_b32 s3, s3, 15")
        a(f"s_lshl_b32 s{S_T+2}, s3, 19")
        a("v_lshlrev_b32 v118, 20, v0")
        a("s_lshl_b32 s3, s2, 10")
        a(f"s_lshr_b32 s{sT}, s2, 3")
        a(f"s_lshl_b32 s{sT}, s{sT}, 21")
        a(f"s_lshl_b32 s{sT2}, s{sW}, 12")
        a(f"s_add_u32 s{sT}, s{sT}, s{sT2}")
        a("s_waitcnt lgkmcnt(0)")
        a("s_mov_b64 exec, 0x3f")
        emit([[(f"buffer_load_dword v{vSC}, v118, {S4(S_T)}, s3 offen sc1", "pf")]])
        a("s_mov_b64 exec, 3")
        emit([[(f"buffer_load_dword v{vSC}, v118, {S4(S_WS)}, s{sT} offen sc1", "pf")]])
        a("s_mov_b64 exec, -1")

    XB = [0, 32768, 131072]
    def q_dma_x(k):
        tg = ("q", k)
        out = [[f"s_add_u32 m0, s{sM0C}, {XB[(k+2)%3]}", f"s_add_u32 s{sT}, s{sXO}, {k*128}",
                (f"buffer_load_dwordx4 v{vXD}, {S4(S_X)}, s{sT} offen lds", tg)]]
        for i in range(1, 4): out.append([(f"buffer_load_dwordx4 v{vXD+i}, {S4(S_X)}, s{sT} offen offset:{i*1024} lds", tg)])
        return out
    def q_dma_w(k):
        tg = ("q", k)
        return [[f"s_add_u32 m0, s{sM0V}, {(k%3)*16384}", f"s_add_u32 s{sT}, s{sQWO}, {k*64*8192}",
                 (f"buffer_load_dwordx4 v{vQW}, {S4(S_WQ)}, s{sT} offen lds", tg)],
                [(f"buffer_load_dwordx4 v{vQW+1}, {S4(S_WQ)}, s{sT} offen offset:1024 lds", tg)]]
    GX, GXT, GWT, GW, KR, VR, SH = 80, 84, 85, 86, 90, 101, 110
    def tsrd(lo, size): return [f"s_mov_b32 s{S_T}, s{lo}", f"s_mov_b32 s{S_T+1}, s{lo+1}", f"s_mov_b32 s{S_T+2}, {size}"]
    def ld_wo():
        it = tsrd(PT + 8, 5242880) + [f"s_lshr_b32 s3, s2, 1", "s_lshl_b32 s3, s3, 5", f"s_lshl_b32 s{sT2}, s{sW}, 2",
              f"s_add_u32 s3, s3, s{sT2}", "s_mul_i32 s3, s3, 1280", f"s_and_b32 s{sS}, s2, 1", f"s_mul_i32 s{sS}, s{sS}, 640",
              f"s_add_u32 s3, s3, s{sS}", f"s_mul_i32 s{sT2}, s{sT2}, 672", "s_mov_b32 exec_hi, 0xff"]
        for i in range(4):
            it += [f"s_add_u32 m0, s{sT2}, {WOB+672*i}", f"s_add_u32 s{sS}, s3, {1280*i}",
                   (f"buffer_load_dwordx4 v{vL16}, {S4(S_T)}, s{sS} offen lds", "wo")]
        return [it + ["s_mov_b32 exec_hi, -1"]]
    def ld_gate():
        return [["s_lshl_b32 s3, s2, 3", f"s_add_u32 s3, s3, s{sW}", "s_mul_i32 s3, s3, 1280",
                 (f"buffer_load_dwordx4 {vr(GX,4)}, v24, {S4(S_X)}, s3 offen", "gt"),
                 (f"buffer_load_dword v{GXT}, v24, {S4(S_X)}, s3 offen offset:16", "gt")],
                tsrd(PT + 10, 1280) + [(f"buffer_load_dwordx4 {vr(GW,4)}, v24, {S4(S_T)}, 0 offen", "gt"),
                 (f"buffer_load_dword v{GWT}, v24, {S4(S_T)}, 0 offen offset:16", "gt")]]
    def ld_kv(part):
        L = []
        for i in range(3):
            isv = i == 2 or (i == 1 and part == 1)
            rows0 = 6 * 8 * i - (72 - 3 if isv else 0)
            L.append(tsrd(PT + (2 if isv else 0), 2621440) +
                     [f"s_mul_i32 s3, s{sW}, {6*1280}", f"s_add_u32 s3, s3, {rows0*1280}", "v_add_u32 v28, s3, v27",
                      f"s_mul_i32 s3, s{sW}, 960", f"s_add_u32 m0, s3, {KVS + 8*960*i}", "s_mov_b32 exec_hi, 0xfffffff",
                      (f"buffer_load_dwordx4 v28, {S4(S_T)}, 0 offen lds", "kvs"), "s_mov_b32 exec_hi, -1"])
        L.append(tsrd(PT + 4, 5120) + [(f"buffer_load_dwordx4 {vr(SH,4)}, v26, {S4(S_T)}, 0 offen", "kvs")])
        return L
    def rd_kv():
        return [[f"ds_read_b32 v{KR+j}, v29 offset:{160*j}"] for j in range(11)] + \
               [[f"ds_read_b32 v{VR+j}, v29 offset:{11520+160*j}"] for j in range(8)]
    def ld_pf():
        L = [[f"s_lshl_b32 s3, s{sP}, 3", f"s_add_u32 s3, s3, s{sW}", f"s_mul_i32 s3, s3, {10*8192}", f"s_lshl_b32 s{sT2}, s{sH}, 8",
              f"s_add_u32 s3, s3, s{sT2}", "s_mov_b64 exec, 0xfffff",
              (f"buffer_load_dword v{vPFW}, v{vPFW}, {S4(S_WQ)}, s3 offen sc1", "pfq"), "s_mov_b64 exec, -1"]]
        L.append(tsrd(PT + 6, 2621440) + ["s_lshr_b32 s3, s2, 1", "s_mul_i32 s3, s3, 5", f"s_and_b32 s{sT2}, s2, 1", f"s_mul_i32 s{sT2}, s{sT2}, 3",
                  f"s_add_u32 s3, s3, s{sT2}", f"s_add_u32 s3, s3, s{sW}", "s_lshl_b32 s3, s3, 12", f"s_cmp_ge_u32 s{sW}, 3",
                  f"s_cselect_b32 s3, {OOB}, s3", "v_lshlrev_b32 v29, 7, v0", "s_mov_b32 exec_hi, 0",
                  (f"buffer_load_dword v29, v29, {S4(S_T)}, s3 offen sc1", "pfh"), "s_mov_b32 exec_hi, -1"])
        return L

    t0, t1, t2, t3, t4 = 24, 25, 26, 27, 28
    SCF = ' sc1' if FUSE else ''
    def job_gate():
        L = [[f"v_mov_b32 v{t0}, 0"]]
        for x, w in [(GX + i, GW + i) for i in range(4)] + [(GXT, GWT)]:
            L += [[s] for s in [f"v_lshlrev_b32 v{t1}, 16, v{x}", f"v_and_b32 v{t2}, 0xffff0000, v{x}",
                                f"v_lshlrev_b32 v{t3}, 16, v{w}", f"v_and_b32 v{t4}, 0xffff0000, v{w}",
                                f"v_mul_f32 v{t1}, v{t1}, v{t3}", f"v_mul_f32 v{t2}, v{t2}, v{t4}"] + rnd_pair(t3, t1, t2, t1, t2) +
                               [f"v_add_f32 v{t0}, v{t0}, v{t1}", f"v_add_f32 v{t0}, v{t0}, v{t2}"]]
        for m in ("row_shr:1", "row_shr:2", "row_shr:4", "row_shr:8"):
            L.append([f"v_add_f32_dpp v{t0}, v{t0}, v{t0} {m} row_mask:0xf bank_mask:0xf bound_ctrl:0"])
        L.append([f"v_add_f32_dpp v{t0}, v{t0}, v{t0} row_bcast:15 row_mask:0xa bank_mask:0xf"])
        L.append([f"v_add_f32_dpp v{t0}, v{t0}, v{t0} row_bcast:31 row_mask:0xc bank_mask:0xf"])
        L += [[s] for s in rnd_pair(t1, t0, t0, t0, t2)[:2] +
              [f"v_mul_f32 v{t0}, 0xbfb8aa3b, v{t0}", f"v_exp_f32 v{t0}, v{t0}", f"v_cmp_eq_u32 vcc, 63, v0",
               f"v_add_f32 v{t0}, 1.0, v{t0}", f"v_rcp_f32 v{t0}, v{t0}", f"v_cndmask_b32 v{t2}, v30, 0, vcc"] +
              rnd_pair(t1, t0, t0, t0, t3)[:2]]
        L.append(["s_lshl_b32 s3, s2, 3", f"s_add_u32 s3, s3, s{sW}", "s_lshl_b32 s3, s3, 2", f"s_add_u32 s3, s3, {WS_G}",
                  (f"buffer_store_dword v{t0}, v{t2}, {S4(S_WS)}, s3 offen{SCF}", "pr2")])
        return L
    def job_kvt():
        L = []
        W = 80
        for c in range(2):
            for q in range(2):
                L.append([f"v_lshlrev_b32 v{W+4*c+2*q}, 16, v{SH+2*c+q}"])
                L.append([f"v_and_b32 v{W+4*c+2*q+1}, 0xffff0000, v{SH+2*c+q}"])
        KL, KH = [110, 111, 112, 113], [88, 89, 109, 114]
        def unp(j): return [f"v_lshlrev_b32 v{KL[j%4]}, 16, v{KR+j}", f"v_and_b32 v{KH[j%4]}, 0xffff0000, v{KR+j}"]
        for j in range(3): L += [[s] for s in unp(j)]
        for s in range(8):
            ops = unp(s + 3)
            ops += [f"v_mul_f32 v{t0}, v{KL[s%4]}, v{W+3}", f"v_mul_f32 v{t1}, v{KH[s%4]}, v{W+7}"]
            for j in (2, 1, 0):
                ops += [f"v_fmac_f32 v{t0}, v{KL[(s+3-j)%4]}, v{W+j}", f"v_fmac_f32 v{t1}, v{KH[(s+3-j)%4]}, v{W+4+j}"]
            ops += [f"v_lshlrev_b32 v{t3}, 16, v{VR+s}", f"v_and_b32 v{t4}, 0xffff0000, v{VR+s}"]
            if s % 2 == 0:
                ops += [f"v_mul_f32 v118, v{t0}, v{t3}", f"v_mul_f32 v119, v{t1}, v{t4}"]
            else:
                ops += [f"v_mul_f32 v{t0}, v{t0}, v{t3}", f"v_mul_f32 v{t1}, v{t1}, v{t4}",
                        f"v_cvt_pk_bf16_f32 v{120+s//2}, v118, v{t0}", f"v_cvt_pk_bf16_f32 v{124+s//2}, v119, v{t1}"]
            L += [[x] for x in ops]
        L.append([f"s_cmp_lt_u32 s{sW}, 5", "s_cselect_b64 exec, -1, 0", f"ds_write_b128 v{vKVT}, v[120:123]",
                  f"ds_write_b128 v{vKVT}, v[124:127] offset:128", "s_mov_b64 exec, -1"])
        L += [[x] for x in [f"v_lshrrev_b32 v{t2}, 3, v0", f"v_and_b32 v{t3}, 7, v0", f"v_lshrrev_b32 v{t4}, 4, v0", f"v_xor_b32 v{t4}, v{t4}, v{t3}",
                            f"v_lshlrev_b32 v{t4}, 4, v{t4}", f"v_lshl_add_u32 v{t0}, v{t2}, 7, v{t4}", f"v_lshlrev_b32 v{t3}, 4, v{t3}",
                            f"v_lshl_add_u32 v{t1}, v{t2}, 12, v{t3}"]]
        L.append([f"s_and_b32 s3, s{sW}, 1", "s_lshl_b32 s3, s3, 6", f"v_xor_b32 v{t0}, s3, v{t0}", f"s_lshl_b32 s3, s{sW}, 10",
                  f"s_add_u32 s3, s3, {TRB}", f"v_add_u32 v{t0}, s3, v{t0}"])
        return L
    def rd_post():
        L = []
        for i in range(3):
            L.append([f"ds_read_b64_tr_b16 v[{116+4*i}:{117+4*i}], v{vWOT} offset:{256*i}"])
            L.append([f"ds_read_b64_tr_b16 v[{118+4*i}:{119+4*i}], v{vWOT} offset:{256*i+16*672}"])
        return L + [[f"ds_read_b128 v[90:93], v{t0}"], [f"ds_read_b128 v[94:97], v{t0} offset:8192"]]
    def job_post():
        L = [["s_and_b32 s3, s2, 1", "s_mul_i32 s3, s3, 20", f"s_add_u32 s3, s3, s{sW}", f"s_mul_i32 s3, s3, {CS}",
              f"s_lshr_b32 s{sT2}, s2, 1", f"s_lshl_b32 s{sT2}, s{sT2}, 10", f"s_add_u32 s3, s3, s{sT2}",
              f"s_add_u32 s{sS}, s3, {WS_WOT}", (f"buffer_store_dwordx4 v[116:119], v{vL16}, {S4(S_WS)}, s{sS} offen{SCF}", "pr2")]]
        L.append([f"s_add_u32 s{sS}, s{sS}, {8*CS}", (f"buffer_store_dwordx4 v[120:123], v{vL16}, {S4(S_WS)}, s{sS} offen{SCF}", "pr2")])
        L.append([f"s_add_u32 s{sS}, s{sS}, {8*CS}", f"s_cmp_ge_u32 s{sW}, 4", f"s_cselect_b32 s{sS}, {OOB}, s{sS}",
                  (f"buffer_store_dwordx4 v[124:127], v{vL16}, {S4(S_WS)}, s{sS} offen{SCF}", "pr2")])
        L.append(["s_and_b32 s3, s2, 7", f"s_mul_i32 s3, s3, {80*4096}", f"s_lshr_b32 s{sT2}, s2, 3", f"s_lshl_b32 s{sT2}, s{sT2}, 7",
                  f"s_add_u32 s3, s3, s{sT2}", f"s_lshl_b32 s{sT2}, s{sW}, 15", f"s_add_u32 s3, s3, s{sT2}", f"s_add_u32 s{sS}, s3, {WS_KVT}",
                  (f"buffer_store_dwordx4 v[90:93], v{t1}, {S4(S_WS)}, s{sS} offen{SCF}", "pr2")])
        L.append([f"s_add_u32 s{sS}, s{sS}, {8*32768}", f"s_cmp_ge_u32 s{sW}, 2", f"s_cselect_b32 s{sS}, {OOB}, s{sS}",
                  (f"buffer_store_dwordx4 v[94:97], v{t1}, {S4(S_WS)}, s{sS} offen{SCF}", "pr2")])
        return L

    def kdma(e, tg):
        return [[f"s_add_u32 m0, s{sM0K}, {(e & 3) * 16384}", "s_nop 0",
                 (f"buffer_load_dwordx4 v{vL16}, {S4(S_K)}, s{sHIST[e&3]} offen sc1 lds", tg)],
                [(f"buffer_load_dwordx4 v{vL16}, {S4(S_K)}, s{sHIST[e&3]} offen offset:1024 sc1 lds", tg)]]
    vPOLL, vZERO, vFL = 24, 25, 26
    vCL = 31
    def only(wave, body, extra=None):
        lab = a.uid("ONLY")
        a(f"s_cmp_lg_u32 s{sW}, {wave}")
        a(f"s_cbranch_scc1 {lab}")
        if extra:
            a(extra); a(f"s_cbranch_scc1 {lab}")
        for x in body: a(x)
        a.label(lab)
    def clear_line():
        body = [f"s_lshl_b32 s3, s{sH}, 12", f"s_add_u32 s3, s3, {WS_FL2 - WS_FLG}", "v_lshl_add_u32 v116, v0, 2, s3",
                f"s_lshl_b32 s3, s{sH}, 2", f"s_add_u32 s3, s3, {WS_FL3 - WS_FLG - 16 * 4096}", "v_lshl_add_u32 v118, v0, 12, s3",
                "v_cmp_le_u32 vcc, 16, v0", "v_and_b32 v119, 7, v0", "v_lshl_add_u32 v119, v119, 3, s2", "v_cndmask_b32 v116, v116, v118, vcc",
                "v_lshrrev_b32 v118, 5, v119", "v_and_b32 v119, 31, v119", "v_lshlrev_b32 v119, 2, v119", "v_lshl_add_u32 v118, v118, 12, v119",
                "v_cmp_le_u32 vcc, 32, v0", f"v_mov_b32 v{vCL}, 0", f"s_mov_b32 s3, {WS_FLG}", "v_cndmask_b32 v116, v116, v118, vcc",
                f"buffer_store_dword v{vCL}, v116, {S4(S_WS)}, s3 offen sc1"]
        only(3, body, f"s_cmp_lg_u32 s{sP}, 0")
    def clean_set():
        only(3, ["s_mov_b64 exec, 1", "v_mov_b32 v117, 1", f"s_lshl_b32 s3, s{sH}, 2",
                 f"buffer_store_dword v117, v{vCL}, {S4(S_DBG)}, s3 offen offset:128 sc1", "s_mov_b64 exec, -1"], f"s_cmp_lg_u32 s{sP}, 0")
    def clean_issue(site):
        a(f"s_bfe_u32 s{sT2}, s2, 0x10003")
        only(2, [f"v_and_b32 v{vCL}, 31, v0", f"v_lshlrev_b32 v{vCL}, 2, v{vCL}",
                 f"buffer_load_dword v{vCL}, v{vCL}, {S4(S_DBG)}, 0 offen offset:128 sc1"], f"s_cmp_lg_u32 s{sT2}, {site}")
    def clean_check():
        lab = a.uid("CLN")
        a(f"s_cmp_lg_u32 s{sW}, 2")
        a(f"s_cbranch_scc1 {lab}D")
        a(f"s_mov_b32 s{sT2}, 0")
        a(f"s_branch {lab}C")
        a.label(lab)
        a("s_sleep 32")
        a(f"buffer_load_dword v{vCL}, v{vFL}, {S4(S_DBG)}, 0 offen offset:128 sc1")
        a("s_waitcnt vmcnt(0)")
        a.label(lab + "C")
        a(f"v_cmp_eq_u32 vcc, 0, v{vCL}")
        a(f"s_add_u32 s{sT2}, s{sT2}, 1")
        a(f"s_cbranch_vccz {lab}D")
        a(f"s_cmp_lt_u32 s{sT2}, 100000")
        a(f"s_cbranch_scc1 {lab}")
        a.label(lab + "D")
    def publish(wave, which):
        only(wave, ["s_mov_b64 exec, 1", f"v_mov_b32 v{vPOLL}, 1", f"s_lshl_b32 s3, s{sH}, 10", f"s_add_u32 s3, s3, s{sP}",
                    "s_lshl_b32 s3, s3, 2", f"s_add_u32 s3, s3, {WS_FL2 + 32 * which}",
                    f"buffer_store_dword v{vPOLL}, v{vZERO}, {S4(S_WS)}, s3 offen sc1", "s_mov_b64 exec, -1"])
    def line_addr(ctx0): return [f"s_mov_b32 s3, {WS_FL3}"] if ctx0 else [f"s_lshl_b32 s3, s{sH}, 12", f"s_add_u32 s3, s3, {WS_FL2}"]
    def poll_issue(wave, ctx0=False):
        only(wave, line_addr(ctx0) + [
                    f"buffer_load_dword v{vPOLL}, v{vFL}, {S4(S_WS)}, s3 offen sc1"])
    def poll(wave, need, vmw, ctx0=False):
        if 'nopoll' in OPT: return
        lab = a.uid("POLL")
        a(f"s_cmp_lg_u32 s{sW}, {wave}")
        a(f"s_cbranch_scc1 {lab}D")
        for x in line_addr(ctx0): a(x)
        a(f"s_mov_b32 s{sT2}, 0")
        a(f"s_waitcnt vmcnt({vmw})")
        a(f"s_branch {lab}C")
        a.label(lab)
        a(f"s_sleep {OPT.get('sleep', 8)}")
        a(f"buffer_load_dword v{vPOLL}, v{vFL}, {S4(S_WS)}, s3 offen sc1")
        a("s_waitcnt vmcnt(0)")
        a.label(lab + "C")
        a(f"v_cmp_eq_u32 vcc, 0, v{vPOLL}")
        a(f"s_add_u32 s{sT2}, s{sT2}, 1")
        a(f"s_and_b32 s{S_T}, vcc_lo, {need}")
        a(f"s_cbranch_scc0 {lab}D")
        a(f"s_cmp_lt_u32 s{sT2}, 100000")
        a(f"s_cbranch_scc1 {lab}")
        a.label(lab + "D")

    emit(ld_gate())
    if 'noipf' not in OPT:
        only(6, ["s_getpc_b64 s[80:81]" if not STAMP else "s_getpc_b64 s[100:101]",
                 "s_lshr_b32 s3, s2, 3", "s_mul_i32 s3, s3, 3072", "v_lshl_add_u32 v118, v0, 7, s3",
                 "v_min_u32 v118, CODE_SPAN, v118",
                 f"v_mov_b32 v119, s{81 if not STAMP else 101}", f"v_add_co_u32 v118, vcc, s{80 if not STAMP else 100}, v118", "v_addc_co_u32 v119, vcc, 0, v119, vcc",
                 "s_mov_b64 exec, 0xffffff", "global_load_dword v120, v[118:119], off sc1", "s_mov_b64 exec, -1"])
        a.label("M_IPF")
    a(f"s_waitcnt vmcnt({vm.wait(('kv', 0))})")
    a("s_barrier")
    sp.mark("kv0")
    a(f"s_cmp_lg_u32 s{sG}, 0")
    a("s_cbranch_scc1 M_KVV")
    vm0 = list(vm.tags)
    spn = sp.n
    vAX, vAQ, vST = 2, 6, 10
    QA = 128
    PK = lambda z: (240 + 4 * z) if z < 4 else (80 + 4 * (z - 4))
    endwait = []
    for part in range(2):
        if part: a.label("M_KVV")
        vm.tags = list(vm0)
        sp.n = spn
        S = Stream(a, vm, dist=int(OPT.get('kd', 12)), per_gap=int(OPT.get('kpg', 2)), bar_delay=int(OPT.get('kbd', 3)))
        S.fill_rate = float(OPT.get('fr', 2.0))
        S.la = int(OPT.get('kla', 1)); S.ustep = int(OPT.get('kus', 1))
        rl = []
        for st in range(8):
            buf = (st & 1) * 32768
            for u in range(2):
                x = 2 * st + u
                for nt in range(4):
                    for hf in range(2):
                        rg = WFR[x & 1] + 4 * nt + 2 * hf
                        rl.append((32 * x + nt - 6, ("w", x, nt, hf),
                                   f"ds_read_b64_tr_b16 {vr(rg,2)}, v{vAW+nt} offset:{buf+u*8192+hf*1024}", rg, st))
                for kt in range(8):
                    rg = CFR + 4 * (kt % int(OPT.get('kring', 4)))
                    rl.append((32 * x + 4 * kt, ("c", x, kt), f"ds_read_b128 {vr(rg,4)}, v{vAC+u} offset:{buf+kt*2048}", rg, st))
                    for nt in range(4):
                        idx = kt * 4 + nt if part == 0 else ((kt >> 1) * 4 + nt) * 2 + (kt & 1)
                        acc = vr(ACC + 4 * idx, 4)
                        w, c = vr(WFR[x & 1] + 4 * nt, 4), vr(rg, 4)
                        cin = "0" if x == 0 else acc
                        S.op(f"{MFMA16} {acc}, {w}, {c}, {cin}" if part == 0 else f"{MFMA16} {acc}, {c}, {w}, {cin}",
                             [("w", x, nt, 0), ("w", x, nt, 1), ("c", x, kt)])
            after = kv_dma(st + 2) if st < 6 else []
            if st == 5: after = after + q_dma_x(0)
            if st == 6: after = q_dma_w(0) + q_dma_x(1) + q_dma_w(1)
            if st == 7: after = q_dma_x(2) + q_dma_w(2)
            pad = [[] for _ in range(int(OPT.get('stag', 14)) if part == 1 else 0)]
            tags = [("kv", st + 1)] if st < 7 else [("q", 0)]
            pre = None
            if st == 1:
                tags += ["gt", "kvs"]
                if part: pad = rd_kv()
                else: after = after + rd_kv()
            if st == 2: tags += ["pf"]; after = after + ld_wo()
            if st == int(OPT.get('pfst', 3)): after = after + ld_pf()[:1]
            if st == int(OPT.get('hst', 3)): after = after + ld_pf()[1:]
            if st == 7: tags += ["pfq"]
            if st == 4:
                tags += ["wo"]
                pre = lambda: (chk.append(1), a("s_waitcnt lgkmcnt(0)"))
                if part: pad = rd_post() + pad[8:]
                else: after = after + rd_post()
            after = pad + after
            if part == 0:
                if st == 0: after = after + [clear_line]
                if st == 2: after = [clean_set] + after
                if st in (4, 5): after = after + [lambda st=st: clean_issue(st - 4)]
            after = [lambda st=st: sp.mark(f"k{st}")] + after
            S.barrier_after_stage(st, tags, after, pre)
        rl.sort(key=lambda r: (r[4], r[0]))
        for r in rl: S.read(r[1], r[2], r[3], r[4], r[0])
        chk = []
        def before_b4(): assert not chk, "kvT job too late"
        for i, it in enumerate(ld_kv(part)): S.timed.append((2 + 3 * i, it, 40))
        for it in job_gate(): S.filler(2 * 64 - 8, 1, it)
        for it in job_kvt(): S.filler(3 * 64 - 10, 1, it)
        S.filler(0, 0, before_b4)
        for i, it in enumerate(job_post()): S.filler(int(OPT.get('post', 5 * 64 + 16)) + 7 * part + int(OPT.get('pstep', 30)) * i, 1, it)
        S.run([0])
        sp.mark("kv")
        a(f"s_lshr_b32 s{sT}, s{sW}, 1")
        a(f"s_lshl_b32 s{sT}, s{sT}, 13")
        a(f"s_and_b32 s{sT2}, s{sW}, 1")
        a(f"s_lshl_b32 s{sT2}, s{sT2}, 2")
        a("s_mov_b32 s3, 65536")
        frag_addrs(vAX, sT, vAQ, sT2, 3)
        a(f"v_add_u32 v{vAX+2}, 131072, v{vAX}")
        a(f"v_add_u32 v{vAX+3}, 131072, v{vAX+1}")
        S = Stream(a, vm, dist=int(OPT.get('qd', 10)), per_gap=2, bar_delay=int(OPT.get('qbd', 3)))
        S.fill_rate = 1.0
        S.la = int(OPT.get('qla', 1)); S.ustep = int(OPT.get('qus', 1))
        rl = []
        EARLYV = 'latev' not in OPT
        KPUB, VPUB = int(OPT.get('kpub', 4)), int(OPT.get('vpub', 8 if EARLYV else 9))
        for k in range(10):
            xb = XB[(k + 2) % 3]
            for u in range(2):
                x = 2 * k + u
                for nt in range(4):
                    for hf in range(2):
                        rg = WFR[x & 1] + 4 * nt + 2 * hf
                        rl.append((16 * x + nt - 5, ("w", x, nt, hf),
                                   f"ds_read_b64_tr_b16 {vr(rg,2)}, v{vAQ+nt} offset:{(k%3)*16384+u*8192+hf*1024}", rg, k))
                for qi in range(4):
                    rg = CFR + 4 * qi
                    av = vAX + u + (2 if xb == 131072 else 0)
                    rl.append((16 * x + 4 * qi, ("c", x, qi), f"ds_read_b128 {vr(rg,4)}, v{av} offset:{(xb%131072)+qi*2048}", rg, k))
                    for nt in range(4):
                        acc = vr(QA + 4 * (qi * 4 + nt), 4)
                        S.op(f"{MFMA16} {acc}, {vr(WFR[x&1]+4*nt,4)}, {vr(rg,4)}, {'0' if x == 0 else acc}",
                             [("w", x, nt, 0), ("w", x, nt, 1), ("c", x, qi)])
            tags, after, pre = [("q", k + 1)], [], None
            if k + 3 <= 9: after = q_dma_x(k + 3) + q_dma_w(k + 3)
            if k == 0 and part == 0: pre = clean_check
            if k == KPUB: tags.append("pr2")
            if k == KPUB and part == 0: tags.append("st"); after = [lambda: publish(0, 0)] + after
            KP = int(OPT.get('kpoll', 7))
            if k == KP - 1 and part == 0: after = [lambda: (poll_issue(1), vm.add("mark"), vm.ghost.add("mark"))] + after
            if k == KP:
                if part == 0: pre = lambda: poll(1, 1, vm.wait("mark"))
                after = [[f"s_mov_b32 s{S_K}, s{S_WS}", f"s_mov_b32 s{S_K+1}, s{S_WS+1}", f"s_mov_b32 s{S_K+2}, s{S_V+2}"]] + kdma(0, "k0") + kdma(1, "k0")
            if k == 8: after = after + kdma(2, "k2")
            if k == 9: tags = []
            if k == VPUB and part == 1: tags.append("st"); after = [lambda: publish(4, 1)] + after
            if k == 9 and part == 1 and EARLYV: after = after + [lambda: poll_issue(5)]
            if part == 1: after = [[] for _ in range(int(OPT.get('qstag', 0)))] + after
            after = [lambda k=k: sp.mark(f"q{k}")] + after
            S.barrier_after_stage(k, tags, after, pre)
        rl.sort(key=lambda r: (r[4], r[0]))
        for r in rl: S.read(r[1], r[2], r[3], r[4], r[0])
        npre = 10
        for r in rl[:npre]: a(r[2])
        a(f"v_add_u32 v{vST}, {4096 >> part}, v{vL16}")
        a(f"v_mov_b32 v{vZERO}, 0")
        a(f"v_and_b32 v{vFL}, 31, v0")
        a(f"v_lshlrev_b32 v{vFL}, 2, v{vFL}")
        for z in list(range(4, 16)) + list(range(4)):
            for e in range(4):
                a(f"v_cvt_pk_bf16_f32 v{PK(z)+e}, v{ACC+8*z+2*e}, v{ACC+8*z+2*e+1}")
        SC = " " + OPT.get('stsc', 'sc1').replace('_', ' ')
        st0, stp = (2, int(OPT.get('stp', 5))) if part == 0 else (int(OPT.get('vst', 84)), int(OPT.get('stpv', 8)))
        for z in range(16 if 'nost' not in OPT else 1):
            j, c = z >> 2, z & 3
            S.filler(st0 + stp * z, 1, [f"s_add_u32 s3, s{sOB}, {j*8192}",
                     (f"buffer_store_dwordx4 {vr(PK(z),4)}, v{vST if c >> 1 else vL16}, {S4(S_WS)}, s3 offen offset:{(c&1)*1024}{SC}", "st")])
        S.run([0], preissued=npre)
        endwait.append(vm.wait("k0"))
        if part == 0: a("s_branch M_KVD")
    a.label("M_KVD")
    sp.mark("q")
    vKA, vVA, vD0, vQ2, vKN = 2, 3, 4, 5, 9
    FR, T, P, SS, O, Q, NEGM = 32, 64, [80, 88], [96, 112], 128, 192, 224
    LS, ONES, vTA, vX0, vNINF = 248, 232, 236, 238, 246
    BIAS = 12.0
    D = int(OPT.get('D', 7))
    a(f"s_mov_b32 s{sT}, {f32hex(1.4426950408889634 * 128 ** -0.5)}")
    a(f"s_lshr_b32 s{sT2}, s{sW}, 1")
    a(f"s_lshl_b32 s{sT2}, s{sT2}, 14")
    a(f"s_and_b32 s3, s{sW}, 1")
    a("s_lshl_b32 s3, s3, 11")
    a(f"s_add_u32 s{sT2}, s{sT2}, s3")
    a(f"s_add_u32 s{sT2}, s{sT2}, 98304")
    a(f"v_add_u32 v6, s{sT2}, v{vL16}")
    a(f"s_lshl_b32 s{sT2}, s{sW}, 13")
    a(f"s_add_u32 s{sT2}, s{sT2}, 98304")
    a(f"v_add_u32 v{vQ2}, s{sT2}, v{vL16}")
    if SHARE: a(f"v_mov_b32 v{vKA}, v{vL16}")
    else:
        a(f"s_lshl_b32 s{sT2}, s{sG}, 13")
        a(f"v_add_u32 v{vKA}, s{sT2}, v{vL16}")
    a(f"v_mov_b32 v{vKN}, v{vKA}")
    a(f"v_add_u32 v{vVA}, 65536, v{vKA}")
    for f in range(8):
        for e in range(4):
            r = QA + 8 * f + 2 * e
            a(f"v_mul_f32 v{r}, s{sT}, v{r}")
            a(f"v_mul_f32 v{r+1}, s{sT}, v{r+1}")
            a(f"v_cvt_pk_bf16_f32 v{Q+4*f+e}, v{r}, v{r+1}")
        a(f"ds_write_b128 v6, {vr(Q+4*f,4)} offset:{(f>>1)*4096+(f&1)*1024}")
    a("v_and_b32 v7, 15, v0")
    a("v_lshrrev_b32 v8, 4, v0")
    a(f"s_lshl_b32 s{sT}, s{sRB}, 5")
    a(f"v_add_u32 v{vD0}, s{sT}, v7")
    a("v_lshlrev_b32 v8, 2, v8")
    a(f"v_sub_u32 v{vD0}, v{vD0}, v8")
    a(f"v_mov_b32 v{vNINF}, 0xff800000")
    a(f"s_mul_i32 s{sT}, s{sW}, {8192+512}")
    a(f"s_xor_b32 s{sT2}, s{sW}, 4")
    a(f"s_mul_i32 s{sT2}, s{sT2}, {8192+512}")
    a(f"v_add_u32 v14, s{sT}, v{vL16}")
    a(f"v_add_u32 v15, s{sT2}, v{vL16}")
    a("v_lshlrev_b32 v16, 3, v0")
    a(f"v_add_u32 v17, s{sT2}, v16")
    a(f"v_add_u32 v16, s{sT}, v16")
    for r in range(8): a(f"v_mov_b32 v{NEGM+r}, 0")
    for r in range(4): a(f"v_mov_b32 v{ONES+r}, 0x3f803f80")
    if EARLYV: poll(5, 0x101, 0)
    a(f"s_waitcnt vmcnt({min(endwait)}) lgkmcnt(0)")
    a("s_barrier")
    if not EARLYV: poll_issue(5)
    sp.mark("qx")
    def kread(e, t): return f"ds_read_b128 {vr(FR+4*t,4)}, v{vKN if t < D else vKA} offset:{(e&3)*16384+t*1024}"
    def vread(e, i): return f"ds_read_b128 {vr(FR+4*i,4)}, v{vVA} offset:{(e&3)*16384+i*1024}"
    for f in range(8): a(f"ds_read_b128 {vr(Q+4*f,4)}, v{vQ2} offset:{f*1024}")
    for i in range(D): a(kread(0, i))
    a(f"s_mov_b32 s{sS}, 0")

    handlers = []
    def xreduce(op, x, tmp):
        a(f"v_mov_b32 v{tmp}, v{x}")
        a(f"v_permlane16_swap_b32 v{x}, v{tmp}")
        a(f"{op} v{x}, v{x}, v{tmp}")
        a(f"v_mov_b32 v{tmp}, v{x}")
        a(f"v_permlane32_swap_b32 v{x}, v{tmp}")
        a(f"{op} v{x}, v{x}, v{tmp}")
    def rowmax(dst, tmp, src):
        a(f"v_max3_f32 v{dst}, v{src}, v{src+1}, v{src+2}")
        a(f"v_max3_f32 v{dst}, v{dst}, v{src+3}, v{src+4}")
        a(f"v_max3_f32 v{dst}, v{dst}, v{src+5}, v{src+6}")
        a(f"v_max_f32 v{dst}, v{dst}, v{src+7}")
        xreduce("v_max_f32", dst, tmp)
    def sm_ops(Sc, Pw):
        f = []
        def post(q):
            f.append((1, [f"v_cvt_pk_bf16_f32 v{Pw+q//2}, v{T+q%8}, v{T+(q+1)%8}"]))
            k = q // 2
            if k == 3: f.append((1, [f"v_or3_b32 v{vTA}, v{Pw}, v{Pw+1}, v{Pw+2}"]))
            if k == 5: f.append((1, [f"v_or3_b32 v{vTA}, v{vTA}, v{Pw+3}, v{Pw+4}"]))
            if k == 7:
                f.append((1, [f"v_or3_b32 v{vTA}, v{vTA}, v{Pw+5}, v{Pw+6}"]))
                f.append((1, [f"v_bitop3_b32 v{vTA}, v{vTA}, v{Pw+7}, s{sTHR} bitop3:0xa8"]))
        for r in range(16):
            f.append((2, [f"v_exp_f32 v{T+r%8}, v{Sc+r}"]))
            if r % 2 == 1 and r >= 3: post(r - 3)
        post(14)
        return f
    def store_ctx(qis, sct, obase):
        n = 0
        for qi in qis:
            for u in range(4):
                d = T + (n % 4) * 4
                n += 1
                src = obase(qi) + 8 * u
                for e in range(4): a(f"v_cvt_pk_bf16_f32 v{d+e}, v{src+2*e}, v{src+2*e+1}")
                if u == 0 and qi == 1 and len(qis) == 2: a(f"s_add_u32 s{sct}, s{sct}, {CS}")
                a(f"buffer_store_dwordx4 {vr(d,4)}, v{vL16}, {S4(S_WS)}, s{sct} offen offset:{u*1024}{' sc1' if FUSE else ''}")

    sX = sROW
    def slot(j, name, qk=True, sm=True, pv=True, nxt="k", dma=True, last=False, vlist=None, prefetched=True, prebar=None, vmw=4,
             fresh=False, fast=None):
        par = j & 1
        if vlist is None: vlist = [j]
        Sc, Sn, Pw, Pr = SS[1 - par], SS[par], P[1 - par], P[par]
        if fast:
            a.label(name + "_GO")
            handlers.append(("entry", name))
            handlers.append(("ev", name, Sc))
        else:
            a.label(name)
            if sm or pv:
                a(f"s_bitcmp1_b64 s[{sEV}:{sEV+1}], s{sS}")
                a(f"s_cbranch_scc1 {name}_EV")
                a.label(name + "_GO")
                handlers.append(("ev", name, Sc))
        ms = []
        if qk:
            for t in range(8):
                kt, u = t >> 2, t & 3
                mm = []
                for qi in range(2):
                    d = vr(Sn + 8 * qi + 4 * kt, 4)
                    mm.append(f"{MFMA16} {d}, {vr(FR+4*t,4)}, {vr(Q+16*qi+4*u,4)}, {vr(NEGM+4*qi,4) if u == 0 else d}")
                ms.append((mm, kread(j, t)))
        if pv:
            for i in range(8):
                mm = []
                for qi in range(2):
                    o = vr(O + 32 * qi + 4 * i, 4)
                    mm.append(f"{MFMA16} {o}, {vr(FR+4*i,4)}, {vr(Pr+4*qi,4)}, {'0' if fresh else o}")
                ms.append((mm, vread(j - 2, i)))
        rd = [m[1] for m in ms]
        if nxt == "k": rd += [kread(j + 1, i) for i in range(D)]
        elif nxt == "v": rd += [vread(j - 1, i) for i in range(D)]
        dm = []
        if dma and not ('nodma' in OPT and name.startswith('AT_L')):
            for e in vlist:
                dm.append(([f"s_add_u32 m0, s{sM0V}, {(e & 3) * 16384}"], [f"buffer_load_dwordx4 v{vL16}, {S4(S_V)}, s{sHIST[e&3]} offen sc1 lds"]))
                dm.append(([], [f"buffer_load_dwordx4 v{vL16}, {S4(S_V)}, s{sHIST[e&3]} offen offset:1024 sc1 lds"]))
            h0, h1 = sHIST[(j + 3) & 3], sHIST[(j + 2) & 3]
            dm.append(([f"s_add_u32 m0, s{sM0K}, {((j + 3) & 3) * 16384}", f"s_add_u32 s{h0}, s{h1}, s{sBASE}"],
                       [f"buffer_load_dwordx4 v{vL16}, {S4(S_K)}, s{h0} offen sc1 lds"]))
            dm.append(([], [f"buffer_load_dwordx4 v{vL16}, {S4(S_K)}, s{h0} offen offset:1024 sc1 lds"]))
        groups = []
        n = len(ms)
        if not prefetched:
            for x in rd[:D]: a(x)
        dstep = int(OPT.get('dstep', 2))
        dpos = list(range(1, n, dstep if n == 16 else 2)) if len(dm) <= n // 2 else list(range(n))
        WS = int(OPT.get('wstep', 4))
        for m in range(n):
            pre = []
            if m % WS == 0:
                out = min(len(rd), m + D) - (m + WS)
                pre.append(f"s_waitcnt lgkmcnt({max(out, 0)})")
            post = [rd[m + D]] if m + D < len(rd) else []
            if 'halfread' in OPT and (m + D) % 2 == 1: post = []
            if m in dpos and dpos.index(m) < len(dm):
                pre = dm[dpos.index(m)][0] + pre
                post += dm[dpos.index(m)][1]
            if fast and m == 12: post += [f"s_add_u32 s{sS}, s{sS}, 1", f"s_bitcmp1_b64 s[{sEV}:{sEV+1}], s{sS}", f"s_cselect_b32 s{sX}, 1, 0"]
            groups.append((pre, ms[m][0][0], []))
            groups.append(([], ms[m][0][1], post))
            if pv and m == n - 5:
                for qi in range(2): groups.append(([], f"{MFMA16} {vr(LS+4*qi,4)}, {vr(ONES,4)}, {vr(Pr+4*qi,4)}, {'0' if fresh else vr(LS+4*qi,4)}", []))
        fl = sm_ops(Sc, Pw) if (sm and 'nosm' not in OPT) else []
        if fast: fl.append((1, [f"v_cmp_ne_u32 vcc, s{sX}, v{vTA}"]))
        elif sm: fl.append((1, [f"v_cmp_ne_u32 vcc, 0, v{vTA}"]))
        interleave(a, groups, fl, max(2 * n - 1, 1))
        if fast:
            if fast == "AT_L2":
                a("s_cbranch_vccz AT_TOP")
                a(f"s_branch {name}_SP")
            else:
                a(f"s_cbranch_vccnz {name}_SP")
                a("s_waitcnt vmcnt(4)")
                if 'nobar' not in OPT: a("s_barrier")
            handlers.append(("special", name, fast))
            handlers.append(("slow", name, Sc, Sn, Pw))
            return
        if sm:
            a(f"s_cbranch_vccnz {name}_SLOW")
            a.label(name + "_RET")
            handlers.append(("slow", name, Sc, Sn, Pw))
        if not last:
            a(f"s_add_u32 s{sS}, s{sS}, 1")
            if prebar: prebar()
            a(f"s_waitcnt vmcnt({vmw if dma else 0})")
            a("s_barrier")

    slot(0, "AT_S0", sm=False, pv=False)
    sp.mark("s0")
    slot(1, "AT_S1", pv=False)
    sp.mark("s1")
    poll_issue(2)
    slot(2, "AT_S2", prebar=lambda: poll(2, 0xffff, 4), fresh=True)
    sp.mark("s2")
    a("s_branch AT_L3")
    a(".p2align 6")
    a.label("AT_TOP")
    a("s_waitcnt vmcnt(4)")
    if 'nobar' not in OPT: a("s_barrier")
    slot(2, "AT_L2", fast="AT_L3"); slot(3, "AT_L3", fast="AT_L0"); slot(0, "AT_L0", fast="AT_L1"); slot(1, "AT_L1", fast="AT_L2")
    a.label("AT_P33")
    sp.mark("s32")
    if FUSE: poll_issue(6, True)
    slot(1, "AT_S33", nxt=None, prebar=(lambda: poll(6, -1, 4, True)) if FUSE else None)
    slot(2, "AT_S34", qk=False, nxt=None, dma=False, prefetched=False)
    if FUSE and 'lateconv' not in OPT:
        for x in tsrd(PT + 6, 2621440): a(x)
        gen_tail.conv_dma(a, {k: v for k, v in globals().items() if not k.startswith("__") and k != "gen_tail"}, sW, S_WS, S_T, sT, sT2, 3, sCO, vL16, 18, 19,
                          98304, "AT_S35", " sc1")
    slot(3, "AT_S35", qk=False, sm=False, nxt=None, dma=False, last=True, prefetched=False)
    sp.mark("s35")
    X0, X1, X2, X3, X4, X5 = range(vX0, vX0 + 6)
    a(f"s_cmp_eq_u32 s{sG}, 0")
    a("s_cbranch_scc1 AT_MA")
    for gsel in (1, 0):
        if gsel == 0: a.label("AT_MA")
        own, snd = O + 32 * gsel, O + 32 * (1 - gsel)
        a(f"v_mov_b32 v{X4}, v{NEGM+4*(1-gsel)}")
        a(f"v_mov_b32 v{X5}, v{LS+4*(1-gsel)}")
        a(f"ds_write_b64 v16, v[{X4}:{X5}] offset:8192")
        for q in range(8): a(f"ds_write_b128 v14, {vr(snd+4*q,4)} offset:{1024*q}")
        if gsel: a(f"s_add_u32 s{sCT2}, s{sCT2}, {CS}")
        a("s_waitcnt lgkmcnt(0)")
        a("s_barrier")
        a(f"ds_read_b64 v[{X2}:{X3}], v17 offset:8192")
        for q in range(8): a(f"ds_read_b128 {vr(snd+4*q,4)}, v15 offset:{1024*q}")
        a("s_waitcnt lgkmcnt(8)")
        a(f"v_min_f32 v{vTA}, v{NEGM+4*gsel}, v{X2}")
        a(f"v_sub_f32 v{X0}, v{vTA}, v{NEGM+4*gsel}")
        a(f"v_sub_f32 v{X2}, v{vTA}, v{X2}")
        a(f"v_exp_f32 v{X0}, v{X0}")
        a(f"v_exp_f32 v{X2}, v{X2}")
        a(f"v_mul_f32 v{vTA}, v{LS+4*gsel}, v{X0}")
        a(f"v_fmac_f32 v{vTA}, v{X3}, v{X2}")
        a(f"v_rcp_f32 v{vTA}, v{vTA}")
        a(f"v_mul_f32 v{X0}, v{X0}, v{vTA}")
        a(f"v_mul_f32 v{X2}, v{X2}, v{vTA}")
        for u in range(4):
            for r in range(8 * u, 8 * u + 8): a(f"v_mul_f32 v{own+r}, v{own+r}, v{X0}")
            a(f"s_waitcnt lgkmcnt({6-2*u})")
            for r in range(8 * u, 8 * u + 8): a(f"v_fmac_f32 v{own+r}, v{snd+r}, v{X2}")
            for e in range(4): a(f"v_cvt_pk_bf16_f32 v{T+4*u+e}, v{own+8*u+2*e}, v{own+8*u+2*e+1}")
            a(f"buffer_store_dwordx4 {vr(T+4*u,4)}, v{vL16}, {S4(S_WS)}, s{sCT2} offen offset:{u*1024}{' sc1' if FUSE else ''}")
        if gsel: a("s_branch AT_MB")
    a.label("AT_MB")
    if FUSE:
        sp.mark("att")
        gen_tail.gen_tail(a, {k: v for k, v in globals().items() if not k.startswith("__") and k != "gen_tail"}, dict(sW=sW, sH=sH, sP=sP, sp=sp))
    elif STAMP:
        a("s_waitcnt vmcnt(0)")
        sp.mark("end")
        a("s_waitcnt lgkmcnt(0)")
        sp.flush(100, sW, 0, slot=0); sp.flush(100, sW, 4, slot=1)
    a.label("M_END")
    a("s_endpgm")
    for hd in handlers:
        if hd[0] == "entry":
            name = hd[1]
            a.label(name)
            a(f"s_bitcmp1_b64 s[{sEV}:{sEV+1}], s{sS}")
            a(f"s_cbranch_scc0 {name}_GO")
        elif hd[0] == "special":
            _, name, nx = hd
            a.label(name + "_SP")
            a(f"v_cmp_ne_u32 vcc, 0, v{vTA}")
            a(f"s_cbranch_vccnz {name}_SLOW")
            a.label(name + "_RET")
            a("s_waitcnt vmcnt(4)")
            if 'nobar' not in OPT: a("s_barrier")
            if nx == "AT_L1":
                a(f"s_cmp_eq_u32 s{sS}, 33")
                a("s_cbranch_scc1 AT_P33")
            a(f"s_branch {nx}")
        elif hd[0] == "ev":
            _, name, Sc = hd
            a.label(name + "_EV")
            a(f"s_cmp_eq_u32 s{sS}, s{sWRAP}")
            a(f"s_cselect_b32 s{sBASE}, 16384, s{sBASE}")
            a(f"s_cmp_eq_u32 s{sS}, 31")
            a(f"s_cselect_b32 s{S_K+2}, 0, s{S_K+2}")
            if SHARE:
                a(f"s_cmp_eq_u32 s{sG}, 0")
                a(f"s_cbranch_scc1 {name}_E0")
                a(f"s_sub_u32 s{sT}, s{sS}, s{sNB}")
                a(f"s_cmp_eq_u32 s{sT}, -3")
                a(f"s_cselect_b32 s{S_K+2}, {16*MB}, s{S_K+2}")
                a(f"s_cmp_eq_u32 s{sT}, 0")
                a(f"s_cselect_b32 s{S_V+2}, {16*MB}, s{S_V+2}")
                a(f"s_cselect_b32 s{sT2}, 8192, 0")
                a(f"v_add_u32 v{vKA}, s{sT2}, v{vKA}")
                a(f"s_cmp_eq_u32 s{sT}, -1")
                a(f"s_cselect_b32 s{sT2}, 8192, 0")
                a(f"v_add_u32 v{vKN}, s{sT2}, v{vKN}")
                a(f"s_cmp_eq_u32 s{sT}, 2")
                a(f"s_cselect_b32 s{sT2}, 8192, 0")
                a(f"v_add_u32 v{vVA}, s{sT2}, v{vVA}")
                a.label(name + "_E0")
            a(f"s_sub_u32 s{sT}, s{sS}, s{sN1}")
            a(f"s_cmp_lg_u32 s{sT}, 2")
            a(f"s_cbranch_scc1 {name}_E1")
            a(f"v_rcp_f32 v{vX0}, v{LS}")
            a(f"v_rcp_f32 v{vX0+1}, v{LS+4}")
            for r in range(8): a(f"v_mov_b32 v{LS+r}, 0")
            for r in range(64): a(f"v_mul_f32 v{O+r}, v{O+r}, v{vX0+(r>>5)}")
            store_ctx((0, 1), sCT1, lambda qi: O + 32 * qi)
            for r in range(64): a(f"v_mov_b32 v{O+r}, 0")
            a.label(name + "_E1")
            if FUSE:
                only(0, ["s_mov_b64 exec, 1", f"v_mov_b32 v{vX0}, 1", f"s_lshl_b32 s3, s{sP}, 10", f"s_add_u32 s3, s3, s{sH}", "s_lshl_b32 s3, s3, 2",
                         f"s_add_u32 s3, s3, {WS_FL3}", f"buffer_store_dword v{vX0}, v{vZERO}, {S4(S_WS)}, s3 offen sc1", "s_mov_b64 exec, -1"],
                     f"s_cmp_lg_u32 s{sT}, 3")
            a(f"s_cmp_lg_u32 s{sT}, 0")
            a(f"s_cbranch_scc1 {name}_E2")
            for t in range(8): a(f"ds_read_b128 {vr(Q+4*t,4)}, v{vQ2} offset:{32768+1024*t}")
            for r in range(8): a(f"v_mov_b32 v{NEGM+r}, 0")
            a("s_waitcnt lgkmcnt(0)")
            a.label(name + "_E2")
            a(f"s_sub_u32 s{sT2}, s{sS}, s{sMST}")
            a(f"s_sub_u32 s{sT2}, s{sT2}, 1")
            a(f"s_cmp_lt_u32 s{sT2}, 4")
            a(f"s_cbranch_scc1 {name}_EM")
            a(f"s_cmp_lt_u32 s{sS}, 33")
            a(f"s_cbranch_scc1 {name}_E3")
            a(f"s_sub_u32 s{sT2}, s{sS}, 33")
            a(f"s_lshl_b32 s{sT2}, s{sT2}, 1")
            a(f"s_add_u32 s{sT2}, s{sT2}, s{sG}")
            a.label(name + "_EM")
            a(f"s_lshl_b32 s{sT2}, s{sT2}, 5")
            a(f"v_subrev_u32 v{vX0}, s{sT2}, v{vD0}")
            for qi in range(2):
                for kt in range(2):
                    for e in range(4):
                        a(f"v_cmp_le_i32 s[{sMK+2*e}:{sMK+2*e+1}], {16*kt+e-16*qi}, v{vX0}")
                    for e in range(4):
                        r = Sc + 8 * qi + 4 * kt + e
                        a(f"v_cndmask_b32 v{r}, v{vNINF}, v{r}, s[{sMK+2*e}:{sMK+2*e+1}]")
            a.label(name + "_E3")
            a(f"s_cmp_eq_u32 s{sT}, 1")
            a(f"s_cbranch_scc1 {name}_E4")
            a(f"s_cmp_lg_u32 s{sS}, 1")
            a(f"s_cbranch_scc1 {name}_GO")
            a.label(name + "_E4")
            for qi in range(2):
                rowmax(vX0 + qi, vX0 + 2 + qi, Sc + 8 * qi)
                a(f"v_add_f32 v{vX0+qi}, {f32hex(BIAS)}, v{vX0+qi}")
            for r in range(8): a(f"v_sub_f32 v{NEGM+r}, v{NEGM+r}, v{vX0+(r>>2)}")
            for r in range(16): a(f"v_sub_f32 v{Sc+r}, v{Sc+r}, v{vX0+(r>>3)}")
            a(f"s_branch {name}_GO")
        else:
            _, name, Sc, Sn, Pw = hd
            a.label(name + "_SLOW")
            for qi in range(2):
                rowmax(vX0 + qi, vX0 + 2 + qi, Sc + 8 * qi)
                a(f"v_add_f32 v{vX0+qi}, {f32hex(BIAS)}, v{vX0+qi}")
                a(f"v_max_f32 v{vX0+qi}, 0, v{vX0+qi}")
                a(f"v_exp_f32 v{vX0+2+qi}, -v{vX0+qi}")
            for r in range(8): a(f"v_sub_f32 v{NEGM+r}, v{NEGM+r}, v{vX0+(r>>2)}")
            for r in range(16): a(f"v_sub_f32 v{Sn+r}, v{Sn+r}, v{vX0+(r>>3)}")
            for r in range(16): a(f"v_sub_f32 v{Sc+r}, v{Sc+r}, v{vX0+(r>>3)}")
            for r in range(64): a(f"v_mul_f32 v{O+r}, v{O+r}, v{vX0+2+(r>>5)}")
            for r in range(8): a(f"v_mul_f32 v{LS+r}, v{LS+r}, v{vX0+2+(r>>2)}")
            for c, ops in sm_ops(Sc, Pw):
                for x in ops: a(x)
            a(f"s_branch {name}_RET")
    a.label("M_LAST")
    a("s_endpgm")
    return dict(name="gated_mix__ssm_conv_h3__compressed_kv_cla__prompt_kernel" if FUSE else "main_kernel", grid=256, block=512, lds=163840, vgpr=256)

import gen as G1
G1.STAMP = False
KERNELS = {"main": gen_main, "conv": G1.gen_conv, "oproj": G1.gen_oproj, "tail": lambda a: gen_tail.gen_tail(a, {k: v for k, v in globals().items() if not k.startswith("__") and k != "gen_tail"})}

def build(names, path, verbose=False):
    hdr = open("gated_mix__ssm_conv_h3__compressed_kv_cla__prompt.s.ref").read().split("\n")
    hdr = [l for l in hdr if l.startswith(";") and "@launch" not in l and "Override" not in l and "grid=ceil" not in l]
    codes, descs, launches = [], [], []
    for n in names:
        a = Asm()
        info = KERNELS[n](a)
        k = fix_hazards(a.lines, verbose)
        print(f"{n}: {len(a.lines)} lines, {k} nops inserted")
        c, d = kernel_text(info["name"], a.lines, info["vgpr"], extra="  .amdhsa_float_denorm_mode_32 3\n")
        codes.append(c); descs.append(d)
        kn = "" if "plain" in OPT else f"kernel={info['name']} "
        launches.append(f"; @launch {kn}grid=({info['grid']},1,1) block=({info['block']},1,1) lds={info['lds']}")
    txt = "\n".join(hdr + launches) + '\n.amdgcn_target "amdgcn-amd-amdhsa--gfx950"\n.text\n' + "\n".join(codes) + \
          '\n.section .rodata,"a"\n' + "\n".join(descs)
    if "CODE_SPAN" in txt: txt = txt.replace("CODE_SPAN", str(int(OPT.get("ipf", 77000))))
    open(path, "w").write(txt)

if __name__ == "__main__":
    names = sys.argv[2].split(",") if len(sys.argv) > 2 else list(KERNELS)
    build(names, sys.argv[1] if len(sys.argv) > 1 else "k2.s", verbose="-v" in sys.argv)
```

```python
import sys, struct
from asmlib import *
from sched import *
import gen_tail

MB = 1 << 20
WS_KF, WS_VF, WS_CTX, WS_WOT, WS_KVT, WS_Y2T, WS_G = 0, 16 * MB, 32 * MB, 49 * MB, 56 * MB, 60 * MB, 63 * MB
KA = dict(A_q=0, A_k=8, A_v=16, shift=24, ssm_k=32, ssm_D=40, B_x=48, c_kv=56, w_q=64, w_uk=72, w_uv=80, w_o=88,
          gate=96, out=104, dbg=112, ws=120)
MFMA32 = "v_mfma_f32_32x32x16_bf16"
MFMA16 = "v_mfma_f32_16x16x32_bf16"
STAMP = "-stamp" in sys.argv
OPT = {x[2:].split("=")[0]: (x.split("=")[1] if "=" in x else "1") for x in sys.argv if x.startswith("--")}
WS_FLG = 63 * MB + 524288
WS_FL2 = 63 * MB + 655360
WS_FL3 = WS_FL2 + 131072
FUSE = 'nofuse' not in OPT
CS = 131072 + int(OPT.get('cspad', 1024))
OOB = "0x80000000"
def f32hex(x): return "0x%08x" % struct.unpack("<I", struct.pack("<f", x))[0]

def srd(a, d, lo, hi, size, add=0):
    if add:
        a(f"s_add_u32 s{d}, s{lo}, {add}")
        a(f"s_addc_u32 s{d+1}, s{hi}, 0")
    else:
        a(f"s_mov_b32 s{d}, s{lo}")
        a(f"s_mov_b32 s{d+1}, s{hi}")
    a(f"s_mov_b32 s{d+2}, {size}")
    a(f"s_mov_b32 s{d+3}, 0x00020000")
def S4(d): return f"s[{d}:{d+3}]"

class Stamps:
    def __init__(self, a, base=70, region=0):
        self.a, self.base, self.n, self.region = a, base, 0, region
    off = False
    def mark(self, name=""):
        if not STAMP or self.off: return
        if name not in OPT.get("marks", "start,kv,q,s1,end,t0,t1,t2").split(","): return
        assert self.base + 2 * self.n + 3 <= 101
        self.a(f"s_memtime s[{self.base+2*self.n}:{self.base+2*self.n+1}]")
        self.a(f"s_memrealtime s[{self.base+2*self.n+2}:{self.base+2*self.n+3}]")
        self.n += 2
    def flush(self, wg, sW, wave, slot=0):
        if not STAMP: return
        a = self.a
        lab = a.uid("STK")
        a(f"s_cmp_lg_u32 s{sW}, {wave}")
        a(f"s_cbranch_scc1 {lab}")
        if 'dbgstamp' in OPT:
            if slot:
                a.label(lab); return
            a(f"s_cmp_lg_u32 s2, {OPT['dbgstamp']}")
            a(f"s_cbranch_scc1 {lab}")
            a(f"s_load_dwordx2 s[60:61], s[0:1], {KA['dbg']}")
            a("s_waitcnt lgkmcnt(0)")
            a("s_mov_b32 s62, 64")
            a("s_mov_b32 s63, 0x00020000")
            a("v_mov_b32 v1, 0")
            for i in range(self.n - 1, 1, -1): a(f"s_sub_u32 s{self.base+2*i}, s{self.base+2*i}, s{self.base+2*i-4}")
        else:
            a(f"s_load_dwordx2 s[60:61], s[0:1], {KA['ws']}")
            a("s_waitcnt lgkmcnt(0)")
            a(f"s_add_u32 s60, s60, {128*MB + self.region*65536 + slot*64}")
            a("s_addc_u32 s61, s61, 0")
            a("s_mov_b32 s62, 65536")
            a("s_mov_b32 s63, 0x00020000")
            a("s_lshl_b32 s3, s2, 7")
            a("v_mov_b32 v1, s3")
        for i in range(self.n):
            a(f"v_mov_b32 v2, s{self.base+2*i}")
            a(f"buffer_store_dword v2, v1, s[60:63], 0 offen offset:{4*i}")
        a("s_getreg_b32 s3, hwreg(HW_REG_XCC_ID)")
        a("v_mov_b32 v2, s3")
        a(f"buffer_store_dword v2, v1, s[60:63], 0 offen offset:60")
        a("s_waitcnt vmcnt(0)")
        a.label(lab)

def rnd_pair(d, lo, hi, olo, ohi):
    return [f"v_cvt_pk_bf16_f32 v{d}, v{lo}, v{hi}", f"v_lshlrev_b32 v{olo}, 16, v{d}", f"v_and_b32 v{ohi}, 0xffff0000, v{d}"]

def interleave(a, mfmas, fillers, ngaps):
    tot = sum(c for c, _ in fillers)
    fi, acc = 0, 0.0
    for g, (pre, m, post) in enumerate(mfmas):
        for x in pre: a(x)
        a(m)
        for x in post: a(x)
        lim = tot * min(1.0, (g + 1) / ngaps) if ngaps else tot
        while fi < len(fillers) and acc + fillers[fi][0] * 0.5 <= lim:
            acc += fillers[fi][0]
            for x in fillers[fi][1]: a(x)
            fi += 1
    while fi < len(fillers):
        for x in fillers[fi][1]: a(x)
        fi += 1

def gen_main(a):
    S_C, S_W, S_WS, S_V, S_X, S_WQ, S_DBG = 4, 8, 12, 16, 20, 24, 28
    (sW, sH, sP, sG, sRB, sT, sT2, sCO, sWO, sM0C, sM0W, sOB, sROW, sXO, sQWO, sN1, sS, sMST, sTHR, sM0K, sM0V,
     sBASE, sCT1, sCT2, sWRAP) = range(32, 57)
    sHIST = [57, 58, 59, 60]
    sEV = 62
    PT = 64
    S_T = 76
    sMK = 4
    S_K = S_X
    sNB = 61
    SHARE = 'share' in OPT
    vL16, vCD, vWD, vAC, vAW, vXD, vQW, vWOT, vKVT = 1, 2, 6, 10, 12, 16, 20, 22, 23
    WFR, CFR, ACC = [32, 48], 64, 128
    sp = Stamps(a, base=80)
    vm = VM()
    a("s_cmp_ge_u32 s2, 256")
    a("s_cbranch_scc1 M_END")
    sp.mark("start")
    a(f"s_load_dwordx2 s[44:45], s[0:1], {KA['c_kv']}")
    a(f"s_load_dwordx4 s[48:51], s[0:1], {KA['w_uk']}")
    a("v_lshrrev_b32 v1, 6, v0")
    a("v_mov_b32 v31, v0")
    a("v_and_b32 v0, 63, v0")
    a(f"v_readfirstlane_b32 s{sW}, v1")
    a(f"s_and_b32 s{sH}, s2, 7")
    a("s_lshr_b32 s3, s2, 6")
    a("s_lshl_b32 s3, s3, 3")
    a(f"s_add_u32 s{sH}, s{sH}, s3")
    a(f"s_bfe_u32 s{sP}, s2, 0x30003")
    a(f"s_lshr_b32 s{sG}, s{sW}, 2")
    a("v_lshrrev_b32 v24, 3, v0")
    a("v_and_b32 v25, 7, v0")
    a("v_lshrrev_b32 v26, 4, v0")
    a("v_xor_b32 v25, v25, v26")
    a("v_lshlrev_b32 v25, 4, v25")
    a("v_xor_b32 v27, 64, v25")
    a(f"v_lshl_add_u32 v{vCD}, v24, 10, v25")
    a(f"v_lshl_add_u32 v{vCD+1}, v24, 10, v27")
    a(f"v_add_u32 v{vCD+1}, {8192-1024}, v{vCD+1}")
    a(f"v_add_u32 v{vCD+2}, {2*(8192-1024)}, v{vCD}")
    a(f"v_add_u32 v{vCD+3}, {2*(8192-1024)}, v{vCD+1}")
    a("v_and_b32 v28, 15, v0")
    a("v_lshlrev_b32 v29, 1, v26")
    a("v_xor_b32 v28, v28, v29")
    a("v_lshlrev_b32 v28, 4, v28")
    a(f"v_lshl_add_u32 v{vWD}, v26, 13, v28")
    a(f"v_add_u32 v{vWD+1}, {4*8192-1024}, v{vWD}")
    a(f"v_xor_b32 v{vWD+2}, 128, v{vWD}")
    a(f"v_add_u32 v{vWD+2}, {2*(4*8192-1024)}, v{vWD+2}")
    a(f"v_add_u32 v{vWD+3}, {4*8192-1024}, v{vWD+2}")
    a(f"s_and_b32 s{sRB}, s{sW}, 3")
    a(f"s_lshl_b32 s{sCO}, s{sP}, 18")
    a(f"s_lshl_b32 s{sT}, s{sW}, 15")
    a(f"s_add_u32 s{sCO}, s{sCO}, s{sT}")
    a(f"s_lshl_b32 s{sWO}, s{sRB}, 17")
    a(f"s_lshl_b32 s{sT}, s{sH}, 8")
    a(f"s_add_u32 s{sWO}, s{sWO}, s{sT}")
    a(f"s_lshl_b32 s{sM0C}, s{sW}, 12")
    a(f"s_add_u32 s{sM0W}, s{sM0C}, 65536")
    a("s_waitcnt lgkmcnt(0)")
    srd(a, S_C, 44, 45, 2 * MB)
    a(f"s_cmp_eq_u32 s{sG}, 0")
    a(f"s_cselect_b32 s{S_W}, s48, s50")
    a(f"s_cselect_b32 s{S_W+1}, s49, s51")
    a(f"s_mov_b32 s{S_W+2}, {4*MB}")
    a(f"s_mov_b32 s{S_W+3}, 0x00020000")
    def kv_dma(st):
        buf = (st & 1) * 32768
        tg = ("kv", st)
        out = [[f"s_add_u32 m0, s{sM0C}, {buf}", f"s_add_u32 s{sT}, s{sCO}, {st*128}",
                (f"buffer_load_dwordx4 v{vCD}, {S4(S_C)}, s{sT} offen lds", tg)]]
        for i in range(1, 4): out.append([(f"buffer_load_dwordx4 v{vCD+i}, {S4(S_C)}, s{sT} offen offset:{i*1024} lds", tg)])
        out.append([f"s_add_u32 m0, s{sM0W}, {buf}", f"s_add_u32 s{sT}, s{sWO}, {st*64*8192}",
                    (f"buffer_load_dwordx4 v{vWD}, {S4(S_W)}, s{sT} offen lds", tg)])
        for i in range(1, 4): out.append([(f"buffer_load_dwordx4 v{vWD+i}, {S4(S_W)}, s{sT} offen offset:{i*1024} lds", tg)])
        return out
    def emit(items):
        for it in items:
            for x in it:
                if isinstance(x, tuple): a(x[0]); vm.add(x[1])
                else: a(x)
    emit(kv_dma(0))
    a(f"s_load_dwordx2 s[44:45], s[0:1], {KA['A_q']}")
    a(f"s_load_dwordx2 s[46:47], s[0:1], {KA['w_q']}")
    a(f"s_load_dwordx4 s[48:51], s[0:1], {KA['dbg']}")
    a(f"s_load_dwordx4 s[{PT}:{PT+3}], s[0:1], {KA['A_k']}")
    a(f"s_load_dwordx4 s[{PT+4}:{PT+7}], s[0:1], {KA['shift']}")
    a(f"s_load_dwordx4 s[{PT+8}:{PT+11}], s[0:1], {KA['w_o']}")
    a(f"v_lshlrev_b32 v{vL16}, 4, v0")
    a("v_mul_u32_u24 v28, 1280, v24")
    a(f"v_add_u32 v{vXD}, v28, v25")
    a(f"v_add_u32 v{vXD+1}, v28, v27")
    a(f"v_add_u32 v{vXD+1}, {8*1280-1024}, v{vXD+1}")
    a(f"v_add_u32 v{vXD+2}, {2*(8*1280-1024)}, v{vXD}")
    a(f"v_add_u32 v{vXD+3}, {2*(8*1280-1024)}, v{vXD+1}")
    a(f"s_and_b32 s3, s{sW}, 1")
    a("s_lshl_b32 s3, s3, 7")
    a(f"v_xor_b32 v{vQW}, s3, v{vWD}")
    a(f"v_add_u32 v{vQW+1}, {4*8192-1024}, v{vQW}")
    emit(kv_dma(1))
    vPF, vPFW, vSC = 116, 115, 117
    if 'nopf' not in OPT:
        a(f"v_lshlrev_b32 v{vPF}, 7, v0")
        a("v_lshrrev_b32 v24, 1, v0")
        a("v_and_b32 v25, 1, v0")
        a("v_lshlrev_b32 v25, 7, v25")
        a(f"v_lshl_add_u32 v{vPFW}, v24, 13, v25")
        a("s_lshl_b32 s3, s2, 13")
        a(f"s_lshl_b32 s{sT}, s{sW}, 10")
        a(f"s_add_u32 s3, s3, s{sT}")
        a("s_mov_b64 exec, 0xff")
        emit([[(f"buffer_load_dword v{vSC}, v{vPF}, {S4(S_C)}, s3 offen sc1", "pf")]])
        if 'pf2' in OPT:
            a(f"s_lshl_b32 s3, s{sP}, 2")
            a(f"s_add_u32 s3, s3, s{sRB}")
            a(f"s_mul_i32 s3, s3, {6*8192}")
            a(f"s_lshl_b32 s{sT}, s{sH}, 8")
            a(f"s_add_u32 s3, s3, s{sT}")
            a(f"s_add_u32 s3, s3, {128*8192}")
            a(f"s_add_u32 s{sNB}, s3, {192*8192}")
            a("s_mov_b32 exec_lo, 0xfff")
            pf2 = [["s_mov_b64 exec, 0xfff", (f"buffer_load_dword v{vSC}, v{vPFW}, {S4(S_W)}, s{sNB} offen sc1", "pf"), "s_mov_b64 exec, -1"]]
        else:
            a(f"s_lshl_b32 s3, s{sP}, 19")
            a(f"s_add_u32 s3, s3, s{sWO}")
            a("s_mov_b32 exec_lo, -1")
        emit([[(f"buffer_load_dword v{vSC}, v{vPFW}, {S4(S_W)}, s3 offen sc1", "pf")]])
        a("s_mov_b64 exec, -1")
    def frag_addrs(vR, rowoff_sgpr, vWa, nt_sgpr, wbase_sgpr):
        a("v_and_b32 v24, 15, v0")
        a("v_lshrrev_b32 v25, 4, v0")
        a("v_bfe_u32 v26, v0, 1, 3")
        a("v_xor_b32 v26, v26, v25")
        a("v_lshlrev_b32 v26, 4, v26")
        a("v_lshl_add_u32 v26, v24, 7, v26")
        a(f"v_add_u32 v{vR}, s{rowoff_sgpr}, v26")
        a(f"v_xor_b32 v{vR+1}, 64, v{vR}")
        a("v_bfe_u32 v24, v0, 2, 2")
        a("v_lshl_add_u32 v26, v25, 3, v24")
        a("v_lshlrev_b32 v26, 8, v26")
        a("v_and_b32 v27, 3, v0")
        a("v_lshl_add_u32 v26, v27, 3, v26")
        a(f"v_add_u32 v26, s{wbase_sgpr}, v26")
        a("v_and_b32 v25, 1, v25")
        a("v_lshl_add_u32 v24, v25, 2, v24")
        a(f"v_xor_b32 v24, s{nt_sgpr}, v24")
        for nt in range(4):
            a(f"v_xor_b32 v25, {nt}, v24")
            a(f"v_lshl_add_u32 v{vWa+nt}, v25, 5, v26")
    a(f"s_and_b32 s{sT}, s{sW}, 1")
    a(f"s_lshl_b32 s{sT}, s{sT}, 14")
    a(f"s_and_b32 s{sT2}, s{sW}, 2")
    a(f"s_lshl_b32 s{sT2}, s{sT2}, 1")
    a(f"s_lshl_b32 s3, s{sG}, 14")
    a("s_add_u32 s3, s3, 65536")
    frag_addrs(vAC, sT, vAW, sT2, 3)
    WOB = 131072
    a("v_lshrrev_b32 v24, 2, v0")
    a("v_mul_u32_u24 v24, 672, v24")
    a("v_and_b32 v25, 3, v0")
    a("v_lshl_add_u32 v24, v25, 3, v24")
    a(f"s_lshl_b32 s{sT}, s{sW}, 5")
    a(f"s_add_u32 s{sT}, s{sT}, {WOB}")
    a(f"v_add_u32 v{vWOT}, s{sT}, v24")
    KVS, TRB = 131072, 153600
    a("v_mul_u32_u24 v25, 1639, v31")
    a("v_lshrrev_b32 v25, 16, v25")
    a("v_mul_u32_u24 v26, 40, v25")
    a("v_sub_u32 v26, v31, v26")
    a("v_mul_u32_u24 v29, 1280, v25")
    a("v_lshl_add_u32 v29, v26, 2, v29")
    a(f"v_add_u32 v29, {KVS}, v29")
    a("v_and_b32 v27, 7, v26")
    a("v_xor_b32 v27, v27, v25")
    a("v_lshlrev_b32 v27, 4, v27")
    a(f"v_lshl_add_u32 v{vKVT}, v26, 8, v27")
    a(f"v_add_u32 v{vKVT}, {TRB}, v{vKVT}")
    a(f"s_and_b32 s{sT2}, s2, 7")
    a(f"s_mul_i32 s{sT}, s{sT2}, 40")
    a(f"v_add_lshl_u32 v26, v26, s{sT}, 4")
    a("v_mul_u32_u24 v25, 205, v0")
    a("v_lshrrev_b32 v25, 11, v25")
    a("v_mul_u32_u24 v27, 1120, v25")
    a("v_lshl_add_u32 v27, v0, 4, v27")
    a(f"s_lshr_b32 s{sT}, s2, 3")
    a(f"s_mul_i32 s{sT}, s{sT}, {64*1280}")
    a(f"s_mul_i32 s{sT2}, s{sT2}, 160")
    a(f"s_add_u32 s{sT}, s{sT}, s{sT2}")
    a(f"s_sub_u32 s{sT}, s{sT}, 3840")
    a(f"v_add_u32 v27, s{sT}, v27")
    a(f"v_mov_b32 v30, {OOB}")
    a("v_mul_u32_u24 v24, 20, v0")
    a("s_waitcnt lgkmcnt(0)")
    srd(a, S_WS, 50, 51, 64 * MB)
    srd(a, S_V, 50, 51, 16 * MB, WS_VF)
    srd(a, S_X, 44, 45, 2621440)
    srd(a, S_WQ, 46, 47, 5242880)
    srd(a, S_DBG, 48, 49, 256)
    a(f"s_sub_u32 s{sT}, 15, s{sP}")
    a(f"s_lshl_b32 s{sT2}, s{sRB}, 5")
    a(f"s_lshl_b32 s{sCT2}, s{sT}, 7")
    a(f"s_add_u32 s{sCT2}, s{sCT2}, s{sT2}")
    a(f"s_lshl_b32 s{sCT1}, s{sP}, 7")
    a(f"s_add_u32 s{sCT1}, s{sCT1}, s{sT2}")
    a(f"s_cmp_eq_u32 s{sG}, 0")
    a(f"s_cselect_b32 s{sROW}, s{sCT1}, s{sCT2}")
    a(f"s_mul_i32 s{sXO}, s{sROW}, 1280")
    a(f"s_lshl_b32 s{sQWO}, s{sW}, 16")
    a(f"s_lshl_b32 s{sT}, s{sH}, 8")
    a(f"s_add_u32 s{sQWO}, s{sQWO}, s{sT}")
    a(f"s_lshl_b32 s{sT}, s{sH}, 12")
    a(f"s_add_u32 s{sT}, s{sT}, {WS_CTX}")
    for c in (sCT1, sCT2):
        a(f"s_mul_i32 s{c}, s{c}, {CS // 16}")
        a(f"s_add_u32 s{c}, s{c}, s{sT}")
    a(f"s_lshl_b32 s{sOB}, s{sH}, 6")
    a(f"s_lshl_b32 s{sT}, s{sP}, 3")
    a(f"s_add_u32 s{sOB}, s{sOB}, s{sT}")
    a(f"s_and_b32 s{sT}, s{sW}, 1")
    a(f"s_lshl_b32 s{sT}, s{sT}, 2")
    a(f"s_add_u32 s{sOB}, s{sOB}, s{sT}")
    a(f"s_lshl_b32 s{sOB}, s{sOB}, 13")
    a(f"s_bfe_u32 s{sT}, s{sW}, 0x10001")
    a(f"s_add_u32 s{sT2}, s{sG}, 11")
    a(f"s_lshl_b32 s{sT}, s{sT}, s{sT2}")
    a(f"s_add_u32 s{sOB}, s{sOB}, s{sT}")
    a(f"s_lshl_b32 s{sT}, s{sG}, 24")
    a(f"s_add_u32 s{sOB}, s{sOB}, s{sT}")
    a(f"s_lshl_b32 s{sN1}, s{sP}, 2")
    a(f"s_add_u32 s{sN1}, s{sN1}, 4")
    if SHARE: a(f"s_mov_b32 s{sNB}, s{sN1}")
    a(f"s_lshl_b32 s{sHIST[0]}, s{sH}, 19")
    a(f"s_lshl_b32 s{sT}, s{sRB}, 11")
    a(f"s_add_u32 s{sHIST[0]}, s{sHIST[0]}, s{sT}")
    a(f"s_lshl_b32 s{sM0K}, s{sW}, 11")
    a(f"s_add_u32 s{sM0V}, s{sM0K}, 65536")
    a(f"s_sub_u32 s{sT2}, s{sN1}, 4")
    a(f"s_sub_u32 s{sWRAP}, s{sN1}, 2")
    a(f"s_sub_u32 s{sWRAP}, s{sWRAP}, s{sG}")
    a(f"s_mov_b32 s{sBASE}, 8192")
    a(f"s_cmp_eq_u32 s{sG}, 0")
    a(f"s_cselect_b32 s{sMST}, s{sT2}, 99")
    a(f"s_cselect_b32 s{sN1}, s{sN1}, 100")
    a(f"s_add_u32 s{sHIST[1]}, s{sHIST[0]}, 8192")
    a(f"s_add_u32 s{sHIST[2]}, s{sHIST[0]}, 16384")
    a(f"s_mov_b64 s[{sEV}:{sEV+1}], {(127 if FUSE else 63) if 'noev' not in OPT else 64}")
    a(f"s_add_u32 s{sT}, s{sMST}, 1")
    a(f"s_lshl_b64 s[{sEV}:{sEV+1}], s[{sEV}:{sEV+1}], s{sT}")
    if SHARE:
        a(f"s_mul_i32 s{S_T}, s{sG}, 45")
        a(f"s_mov_b32 s{S_T+1}, 0")
        a(f"s_sub_u32 s{sT}, s{sNB}, 3")
        a(f"s_lshl_b64 s[{S_T}:{S_T+1}], s[{S_T}:{S_T+1}], s{sT}")
        a(f"s_or_b64 s[{sEV}:{sEV+1}], s[{sEV}:{sEV+1}], s[{S_T}:{S_T+1}]")
        a(f"s_cmp_eq_u32 s{sG}, 0")
        a(f"s_cselect_b32 s{S_V+2}, s{S_V+2}, 0")
    a(f"s_bitset1_b64 s[{sEV}:{sEV+1}], s{sWRAP}")
    a(f"s_or_b32 s{sEV}, s{sEV}, 0x80000002")
    a(f"s_or_b32 s{sEV+1}, s{sEV+1}, 6")
    a(f"s_mov_b32 s{sTHR}, 0x40004000")
    a(f"s_mov_b32 s{S_T+3}, 0x00020000")
    if 'tlb' in OPT:
        a(f"s_lshl_b32 s{sT}, s{sW}, 2")
        a(f"s_lshr_b32 s3, 0xdba84210, s{sT}")
        a("s_and_b32 s3, s3, 15")
        a("s_lshl_b32 s3, s3, 3")
        a(f"s_load_dwordx2 s[{S_T}:{S_T+1}], s[0:1], s3")
        a(f"s_lshr_b32 s3, 0x5a8a5555, s{sT}")
        a("s_and_b32 s3, s3, 15")
        a(f"s_lshl_b32 s{S_T+2}, s3, 19")
        a("v_lshlrev_b32 v118, 20, v0")
        a("s_lshl_b32 s3, s2, 10")
        a(f"s_lshr_b32 s{sT}, s2, 3")
        a(f"s_lshl_b32 s{sT}, s{sT}, 21")
        a(f"s_lshl_b32 s{sT2}, s{sW}, 12")
        a(f"s_add_u32 s{sT}, s{sT}, s{sT2}")
        a("s_waitcnt lgkmcnt(0)")
        a("s_mov_b64 exec, 0x3f")
        emit([[(f"buffer_load_dword v{vSC}, v118, {S4(S_T)}, s3 offen sc1", "pf")]])
        a("s_mov_b64 exec, 3")
        emit([[(f"buffer_load_dword v{vSC}, v118, {S4(S_WS)}, s{sT} offen sc1", "pf")]])
        a("s_mov_b64 exec, -1")

    XB = [0, 32768, 131072]
    def q_dma_x(k):
        tg = ("q", k)
        out = [[f"s_add_u32 m0, s{sM0C}, {XB[(k+2)%3]}", f"s_add_u32 s{sT}, s{sXO}, {k*128}",
                (f"buffer_load_dwordx4 v{vXD}, {S4(S_X)}, s{sT} offen lds", tg)]]
        for i in range(1, 4): out.append([(f"buffer_load_dwordx4 v{vXD+i}, {S4(S_X)}, s{sT} offen offset:{i*1024} lds", tg)])
        return out
    def q_dma_w(k):
        tg = ("q", k)
        return [[f"s_add_u32 m0, s{sM0V}, {(k%3)*16384}", f"s_add_u32 s{sT}, s{sQWO}, {k*64*8192}",
                 (f"buffer_load_dwordx4 v{vQW}, {S4(S_WQ)}, s{sT} offen lds", tg)],
                [(f"buffer_load_dwordx4 v{vQW+1}, {S4(S_WQ)}, s{sT} offen offset:1024 lds", tg)]]
    GX, GXT, GWT, GW, KR, VR, SH = 80, 84, 85, 86, 90, 101, 110
    def tsrd(lo, size): return [f"s_mov_b32 s{S_T}, s{lo}", f"s_mov_b32 s{S_T+1}, s{lo+1}", f"s_mov_b32 s{S_T+2}, {size}"]
    def ld_wo():
        it = tsrd(PT + 8, 5242880) + [f"s_lshr_b32 s3, s2, 1", "s_lshl_b32 s3, s3, 5", f"s_lshl_b32 s{sT2}, s{sW}, 2",
              f"s_add_u32 s3, s3, s{sT2}", "s_mul_i32 s3, s3, 1280", f"s_and_b32 s{sS}, s2, 1", f"s_mul_i32 s{sS}, s{sS}, 640",
              f"s_add_u32 s3, s3, s{sS}", f"s_mul_i32 s{sT2}, s{sT2}, 672", "s_mov_b32 exec_hi, 0xff"]
        for i in range(4):
            it += [f"s_add_u32 m0, s{sT2}, {WOB+672*i}", f"s_add_u32 s{sS}, s3, {1280*i}",
                   (f"buffer_load_dwordx4 v{vL16}, {S4(S_T)}, s{sS} offen lds", "wo")]
        return [it + ["s_mov_b32 exec_hi, -1"]]
    def ld_gate():
        return [["s_lshl_b32 s3, s2, 3", f"s_add_u32 s3, s3, s{sW}", "s_mul_i32 s3, s3, 1280",
                 (f"buffer_load_dwordx4 {vr(GX,4)}, v24, {S4(S_X)}, s3 offen", "gt"),
                 (f"buffer_load_dword v{GXT}, v24, {S4(S_X)}, s3 offen offset:16", "gt")],
                tsrd(PT + 10, 1280) + [(f"buffer_load_dwordx4 {vr(GW,4)}, v24, {S4(S_T)}, 0 offen", "gt"),
                 (f"buffer_load_dword v{GWT}, v24, {S4(S_T)}, 0 offen offset:16", "gt")]]
    def ld_kv(part):
        L = []
        for i in range(3):
            isv = i == 2 or (i == 1 and part == 1)
            rows0 = 6 * 8 * i - (72 - 3 if isv else 0)
            L.append(tsrd(PT + (2 if isv else 0), 2621440) +
                     [f"s_mul_i32 s3, s{sW}, {6*1280}", f"s_add_u32 s3, s3, {rows0*1280}", "v_add_u32 v28, s3, v27",
                      f"s_mul_i32 s3, s{sW}, 960", f"s_add_u32 m0, s3, {KVS + 8*960*i}", "s_mov_b32 exec_hi, 0xfffffff",
                      (f"buffer_load_dwordx4 v28, {S4(S_T)}, 0 offen lds", "kvs"), "s_mov_b32 exec_hi, -1"])
        L.append(tsrd(PT + 4, 5120) + [(f"buffer_load_dwordx4 {vr(SH,4)}, v26, {S4(S_T)}, 0 offen", "kvs")])
        return L
    def rd_kv():
        return [[f"ds_read_b32 v{KR+j}, v29 offset:{160*j}"] for j in range(11)] + \
               [[f"ds_read_b32 v{VR+j}, v29 offset:{11520+160*j}"] for j in range(8)]
    def ld_pf():
        L = [[f"s_lshl_b32 s3, s{sP}, 3", f"s_add_u32 s3, s3, s{sW}", f"s_mul_i32 s3, s3, {10*8192}", f"s_lshl_b32 s{sT2}, s{sH}, 8",
              f"s_add_u32 s3, s3, s{sT2}", "s_mov_b64 exec, 0xfffff",
              (f"buffer_load_dword v{vPFW}, v{vPFW}, {S4(S_WQ)}, s3 offen sc1", "pfq"), "s_mov_b64 exec, -1"]]
        L.append(tsrd(PT + 6, 2621440) + ["s_lshr_b32 s3, s2, 1", "s_mul_i32 s3, s3, 5", f"s_and_b32 s{sT2}, s2, 1", f"s_mul_i32 s{sT2}, s{sT2}, 3",
                  f"s_add_u32 s3, s3, s{sT2}", f"s_add_u32 s3, s3, s{sW}", "s_lshl_b32 s3, s3, 12", f"s_cmp_ge_u32 s{sW}, 3",
                  f"s_cselect_b32 s3, {OOB}, s3", "v_lshlrev_b32 v29, 7, v0", "s_mov_b32 exec_hi, 0",
                  (f"buffer_load_dword v29, v29, {S4(S_T)}, s3 offen sc1", "pfh"), "s_mov_b32 exec_hi, -1"])
        return L

    t0, t1, t2, t3, t4 = 24, 25, 26, 27, 28
    SCF = ' sc1' if FUSE else ''
    def job_gate():
        L = [[f"v_mov_b32 v{t0}, 0"]]
        for x, w in [(GX + i, GW + i) for i in range(4)] + [(GXT, GWT)]:
            L += [[s] for s in [f"v_lshlrev_b32 v{t1}, 16, v{x}", f"v_and_b32 v{t2}, 0xffff0000, v{x}",
                                f"v_lshlrev_b32 v{t3}, 16, v{w}", f"v_and_b32 v{t4}, 0xffff0000, v{w}",
                                f"v_mul_f32 v{t1}, v{t1}, v{t3}", f"v_mul_f32 v{t2}, v{t2}, v{t4}"] + rnd_pair(t3, t1, t2, t1, t2) +
                               [f"v_add_f32 v{t0}, v{t0}, v{t1}", f"v_add_f32 v{t0}, v{t0}, v{t2}"]]
        for m in ("row_shr:1", "row_shr:2", "row_shr:4", "row_shr:8"):
            L.append([f"v_add_f32_dpp v{t0}, v{t0}, v{t0} {m} row_mask:0xf bank_mask:0xf bound_ctrl:0"])
        L.append([f"v_add_f32_dpp v{t0}, v{t0}, v{t0} row_bcast:15 row_mask:0xa bank_mask:0xf"])
        L.append([f"v_add_f32_dpp v{t0}, v{t0}, v{t0} row_bcast:31 row_mask:0xc bank_mask:0xf"])
        L += [[s] for s in rnd_pair(t1, t0, t0, t0, t2)[:2] +
              [f"v_mul_f32 v{t0}, 0xbfb8aa3b, v{t0}", f"v_exp_f32 v{t0}, v{t0}", f"v_cmp_eq_u32 vcc, 63, v0",
               f"v_add_f32 v{t0}, 1.0, v{t0}", f"v_rcp_f32 v{t0}, v{t0}", f"v_cndmask_b32 v{t2}, v30, 0, vcc"] +
              rnd_pair(t1, t0, t0, t0, t3)[:2]]
        L.append(["s_lshl_b32 s3, s2, 3", f"s_add_u32 s3, s3, s{sW}", "s_lshl_b32 s3, s3, 2", f"s_add_u32 s3, s3, {WS_G}",
                  (f"buffer_store_dword v{t0}, v{t2}, {S4(S_WS)}, s3 offen{SCF}", "pr2")])
        return L
    def job_kvt():
        L = []
        W = 80
        for c in range(2):
            for q in range(2):
                L.append([f"v_lshlrev_b32 v{W+4*c+2*q}, 16, v{SH+2*c+q}"])
                L.append([f"v_and_b32 v{W+4*c+2*q+1}, 0xffff0000, v{SH+2*c+q}"])
        KL, KH = [110, 111, 112, 113], [88, 89, 109, 114]
        def unp(j): return [f"v_lshlrev_b32 v{KL[j%4]}, 16, v{KR+j}", f"v_and_b32 v{KH[j%4]}, 0xffff0000, v{KR+j}"]
        for j in range(3): L += [[s] for s in unp(j)]
        for s in range(8):
            ops = unp(s + 3)
            ops += [f"v_mul_f32 v{t0}, v{KL[s%4]}, v{W+3}", f"v_mul_f32 v{t1}, v{KH[s%4]}, v{W+7}"]
            for j in (2, 1, 0):
                ops += [f"v_fmac_f32 v{t0}, v{KL[(s+3-j)%4]}, v{W+j}", f"v_fmac_f32 v{t1}, v{KH[(s+3-j)%4]}, v{W+4+j}"]
            ops += [f"v_lshlrev_b32 v{t3}, 16, v{VR+s}", f"v_and_b32 v{t4}, 0xffff0000, v{VR+s}"]
            if s % 2 == 0:
                ops += [f"v_mul_f32 v118, v{t0}, v{t3}", f"v_mul_f32 v119, v{t1}, v{t4}"]
            else:
                ops += [f"v_mul_f32 v{t0}, v{t0}, v{t3}", f"v_mul_f32 v{t1}, v{t1}, v{t4}",
                        f"v_cvt_pk_bf16_f32 v{120+s//2}, v118, v{t0}", f"v_cvt_pk_bf16_f32 v{124+s//2}, v119, v{t1}"]
            L += [[x] for x in ops]
        L.append([f"s_cmp_lt_u32 s{sW}, 5", "s_cselect_b64 exec, -1, 0", f"ds_write_b128 v{vKVT}, v[120:123]",
                  f"ds_write_b128 v{vKVT}, v[124:127] offset:128", "s_mov_b64 exec, -1"])
        L += [[x] for x in [f"v_lshrrev_b32 v{t2}, 3, v0", f"v_and_b32 v{t3}, 7, v0", f"v_lshrrev_b32 v{t4}, 4, v0", f"v_xor_b32 v{t4}, v{t4}, v{t3}",
                            f"v_lshlrev_b32 v{t4}, 4, v{t4}", f"v_lshl_add_u32 v{t0}, v{t2}, 7, v{t4}", f"v_lshlrev_b32 v{t3}, 4, v{t3}",
                            f"v_lshl_add_u32 v{t1}, v{t2}, 12, v{t3}"]]
        L.append([f"s_and_b32 s3, s{sW}, 1", "s_lshl_b32 s3, s3, 6", f"v_xor_b32 v{t0}, s3, v{t0}", f"s_lshl_b32 s3, s{sW}, 10",
                  f"s_add_u32 s3, s3, {TRB}", f"v_add_u32 v{t0}, s3, v{t0}"])
        return L
    def rd_post():
        L = []
        for i in range(3):
            L.append([f"ds_read_b64_tr_b16 v[{116+4*i}:{117+4*i}], v{vWOT} offset:{256*i}"])
            L.append([f"ds_read_b64_tr_b16 v[{118+4*i}:{119+4*i}], v{vWOT} offset:{256*i+16*672}"])
        return L + [[f"ds_read_b128 v[90:93], v{t0}"], [f"ds_read_b128 v[94:97], v{t0} offset:8192"]]
    def job_post():
        L = [["s_and_b32 s3, s2, 1", "s_mul_i32 s3, s3, 20", f"s_add_u32 s3, s3, s{sW}", f"s_mul_i32 s3, s3, {CS}",
              f"s_lshr_b32 s{sT2}, s2, 1", f"s_lshl_b32 s{sT2}, s{sT2}, 10", f"s_add_u32 s3, s3, s{sT2}",
              f"s_add_u32 s{sS}, s3, {WS_WOT}", (f"buffer_store_dwordx4 v[116:119], v{vL16}, {S4(S_WS)}, s{sS} offen{SCF}", "pr2")]]
        L.append([f"s_add_u32 s{sS}, s{sS}, {8*CS}", (f"buffer_store_dwordx4 v[120:123], v{vL16}, {S4(S_WS)}, s{sS} offen{SCF}", "pr2")])
        L.append([f"s_add_u32 s{sS}, s{sS}, {8*CS}", f"s_cmp_ge_u32 s{sW}, 4", f"s_cselect_b32 s{sS}, {OOB}, s{sS}",
                  (f"buffer_store_dwordx4 v[124:127], v{vL16}, {S4(S_WS)}, s{sS} offen{SCF}", "pr2")])
        L.append(["s_and_b32 s3, s2, 7", f"s_mul_i32 s3, s3, {80*4096}", f"s_lshr_b32 s{sT2}, s2, 3", f"s_lshl_b32 s{sT2}, s{sT2}, 7",
                  f"s_add_u32 s3, s3, s{sT2}", f"s_lshl_b32 s{sT2}, s{sW}, 15", f"s_add_u32 s3, s3, s{sT2}", f"s_add_u32 s{sS}, s3, {WS_KVT}",
                  (f"buffer_store_dwordx4 v[90:93], v{t1}, {S4(S_WS)}, s{sS} offen{SCF}", "pr2")])
        L.append([f"s_add_u32 s{sS}, s{sS}, {8*32768}", f"s_cmp_ge_u32 s{sW}, 2", f"s_cselect_b32 s{sS}, {OOB}, s{sS}",
                  (f"buffer_store_dwordx4 v[94:97], v{t1}, {S4(S_WS)}, s{sS} offen{SCF}", "pr2")])
        return L

    def kdma(e, tg):
        return [[f"s_add_u32 m0, s{sM0K}, {(e & 3) * 16384}", "s_nop 0",
                 (f"buffer_load_dwordx4 v{vL16}, {S4(S_K)}, s{sHIST[e&3]} offen sc1 lds", tg)],
                [(f"buffer_load_dwordx4 v{vL16}, {S4(S_K)}, s{sHIST[e&3]} offen offset:1024 sc1 lds", tg)]]
    vPOLL, vZERO, vFL = 24, 25, 26
    vCL = 31
    def only(wave, body, extra=None):
        lab = a.uid("ONLY")
        a(f"s_cmp_lg_u32 s{sW}, {wave}")
        a(f"s_cbranch_scc1 {lab}")
        if extra:
            a(extra); a(f"s_cbranch_scc1 {lab}")
        for x in body: a(x)
        a.label(lab)
    def clear_line():
        body = [f"s_lshl_b32 s3, s{sH}, 12", f"s_add_u32 s3, s3, {WS_FL2 - WS_FLG}", "v_lshl_add_u32 v116, v0, 2, s3",
                f"s_lshl_b32 s3, s{sH}, 2", f"s_add_u32 s3, s3, {WS_FL3 - WS_FLG - 16 * 4096}", "v_lshl_add_u32 v118, v0, 12, s3",
                "v_cmp_le_u32 vcc, 16, v0", "v_and_b32 v119, 7, v0", "v_lshl_add_u32 v119, v119, 3, s2", "v_cndmask_b32 v116, v116, v118, vcc",
                "v_lshrrev_b32 v118, 5, v119", "v_and_b32 v119, 31, v119", "v_lshlrev_b32 v119, 2, v119", "v_lshl_add_u32 v118, v118, 12, v119",
                "v_cmp_le_u32 vcc, 32, v0", f"v_mov_b32 v{vCL}, 0", f"s_mov_b32 s3, {WS_FLG}", "v_cndmask_b32 v116, v116, v118, vcc",
                f"buffer_store_dword v{vCL}, v116, {S4(S_WS)}, s3 offen sc1"]
        only(3, body, f"s_cmp_lg_u32 s{sP}, 0")
    def clean_set():
        only(3, ["s_mov_b64 exec, 1", "v_mov_b32 v117, 1", f"s_lshl_b32 s3, s{sH}, 2",
                 f"buffer_store_dword v117, v{vCL}, {S4(S_DBG)}, s3 offen offset:128 sc1", "s_mov_b64 exec, -1"], f"s_cmp_lg_u32 s{sP}, 0")
    def clean_issue(site):
        a(f"s_bfe_u32 s{sT2}, s2, 0x10003")
        only(2, [f"v_and_b32 v{vCL}, 31, v0", f"v_lshlrev_b32 v{vCL}, 2, v{vCL}",
                 f"buffer_load_dword v{vCL}, v{vCL}, {S4(S_DBG)}, 0 offen offset:128 sc1"], f"s_cmp_lg_u32 s{sT2}, {site}")
    def clean_check():
        lab = a.uid("CLN")
        a(f"s_cmp_lg_u32 s{sW}, 2")
        a(f"s_cbranch_scc1 {lab}D")
        a(f"s_mov_b32 s{sT2}, 0")
        a(f"s_branch {lab}C")
        a.label(lab)
        a("s_sleep 32")
        a(f"buffer_load_dword v{vCL}, v{vFL}, {S4(S_DBG)}, 0 offen offset:128 sc1")
        a("s_waitcnt vmcnt(0)")
        a.label(lab + "C")
        a(f"v_cmp_eq_u32 vcc, 0, v{vCL}")
        a(f"s_add_u32 s{sT2}, s{sT2}, 1")
        a(f"s_cbranch_vccz {lab}D")
        a(f"s_cmp_lt_u32 s{sT2}, 100000")
        a(f"s_cbranch_scc1 {lab}")
        a.label(lab + "D")
    def publish(wave, which):
        only(wave, ["s_mov_b64 exec, 1", f"v_mov_b32 v{vPOLL}, 1", f"s_lshl_b32 s3, s{sH}, 10", f"s_add_u32 s3, s3, s{sP}",
                    "s_lshl_b32 s3, s3, 2", f"s_add_u32 s3, s3, {WS_FL2 + 32 * which}",
                    f"buffer_store_dword v{vPOLL}, v{vZERO}, {S4(S_WS)}, s3 offen sc1", "s_mov_b64 exec, -1"])
    def line_addr(ctx0): return [f"s_mov_b32 s3, {WS_FL3}"] if ctx0 else [f"s_lshl_b32 s3, s{sH}, 12", f"s_add_u32 s3, s3, {WS_FL2}"]
    def poll_issue(wave, ctx0=False):
        only(wave, line_addr(ctx0) + [
                    f"buffer_load_dword v{vPOLL}, v{vFL}, {S4(S_WS)}, s3 offen sc1"])
    def poll(wave, need, vmw, ctx0=False):
        if 'nopoll' in OPT: return
        lab = a.uid("POLL")
        a(f"s_cmp_lg_u32 s{sW}, {wave}")
        a(f"s_cbranch_scc1 {lab}D")
        for x in line_addr(ctx0): a(x)
        a(f"s_mov_b32 s{sT2}, 0")
        a(f"s_waitcnt vmcnt({vmw})")
        a(f"s_branch {lab}C")
        a.label(lab)
        a(f"s_sleep {OPT.get('sleep', 8)}")
        a(f"buffer_load_dword v{vPOLL}, v{vFL}, {S4(S_WS)}, s3 offen sc1")
        a("s_waitcnt vmcnt(0)")
        a.label(lab + "C")
        a(f"v_cmp_eq_u32 vcc, 0, v{vPOLL}")
        a(f"s_add_u32 s{sT2}, s{sT2}, 1")
        a(f"s_and_b32 s{S_T}, vcc_lo, {need}")
        a(f"s_cbranch_scc0 {lab}D")
        a(f"s_cmp_lt_u32 s{sT2}, 100000")
        a(f"s_cbranch_scc1 {lab}")
        a.label(lab + "D")

    emit(ld_gate())
    if 'noipf' not in OPT:
        only(6, ["s_getpc_b64 s[80:81]" if not STAMP else "s_getpc_b64 s[100:101]",
                 "s_lshr_b32 s3, s2, 3", "s_mul_i32 s3, s3, 3072", "v_lshl_add_u32 v118, v0, 7, s3",
                 "v_min_u32 v118, CODE_SPAN, v118",
                 f"v_mov_b32 v119, s{81 if not STAMP else 101}", f"v_add_co_u32 v118, vcc, s{80 if not STAMP else 100}, v118", "v_addc_co_u32 v119, vcc, 0, v119, vcc",
                 "s_mov_b64 exec, 0xffffff", "global_load_dword v120, v[118:119], off sc1", "s_mov_b64 exec, -1"])
        a.label("M_IPF")
    a(f"s_waitcnt vmcnt({vm.wait(('kv', 0))})")
    a("s_barrier")
    sp.mark("kv0")
    a(f"s_cmp_lg_u32 s{sG}, 0")
    a("s_cbranch_scc1 M_KVV")
    vm0 = list(vm.tags)
    spn = sp.n
    vAX, vAQ, vST = 2, 6, 10
    QA = 128
    PK = lambda z: (240 + 4 * z) if z < 4 else (80 + 4 * (z - 4))
    endwait = []
    for part in range(2):
        if part: a.label("M_KVV")
        vm.tags = list(vm0)
        sp.n = spn
        S = Stream(a, vm, dist=int(OPT.get('kd', 12)), per_gap=int(OPT.get('kpg', 2)), bar_delay=int(OPT.get('kbd', 3)))
        S.fill_rate = float(OPT.get('fr', 2.0))
        S.la = int(OPT.get('kla', 1)); S.ustep = int(OPT.get('kus', 1))
        rl = []
        for st in range(8):
            buf = (st & 1) * 32768
            for u in range(2):
                x = 2 * st + u
                for nt in range(4):
                    for hf in range(2):
                        rg = WFR[x & 1] + 4 * nt + 2 * hf
                        rl.append((32 * x + nt - 6, ("w", x, nt, hf),
                                   f"ds_read_b64_tr_b16 {vr(rg,2)}, v{vAW+nt} offset:{buf+u*8192+hf*1024}", rg, st))
                for kt in range(8):
                    rg = CFR + 4 * (kt % int(OPT.get('kring', 4)))
                    rl.append((32 * x + 4 * kt, ("c", x, kt), f"ds_read_b128 {vr(rg,4)}, v{vAC+u} offset:{buf+kt*2048}", rg, st))
                    for nt in range(4):
                        idx = kt * 4 + nt if part == 0 else ((kt >> 1) * 4 + nt) * 2 + (kt & 1)
                        acc = vr(ACC + 4 * idx, 4)
                        w, c = vr(WFR[x & 1] + 4 * nt, 4), vr(rg, 4)
                        cin = "0" if x == 0 else acc
                        S.op(f"{MFMA16} {acc}, {w}, {c}, {cin}" if part == 0 else f"{MFMA16} {acc}, {c}, {w}, {cin}",
                             [("w", x, nt, 0), ("w", x, nt, 1), ("c", x, kt)])
            sh = int(OPT.get('sh', 0))
            after = kv_dma(st + 2) if st < 6 else []
            if st == 5 and sh == 0: after = after + q_dma_x(0)
            if st == 6: after = (q_dma_x(0) if sh else []) + q_dma_w(0) + q_dma_x(1) + q_dma_w(1)
            if st == 7: after = q_dma_x(2) + q_dma_w(2)
            pad = [[] for _ in range(int(OPT.get('stag', 14)) if part == 1 else 0)]
            tags = [("kv", st + 1)] if st < 7 else [("q", 0)]
            pre = None
            if st == 0 and 'pf2' in OPT: after = after + pf2
            if st == sh - 1: after = after + ld_kv(part)
            if st == 1: tags += ["gt"]
            if st == 1 + sh:
                tags += ["kvs"]
                if part: pad = rd_kv()
                else: after = after + rd_kv()
            if st == 2: tags += ["pf"]
            if st == 2 + sh: after = after + ld_wo()
            if st == int(OPT.get('pfst', 4)): after = after + ld_pf()[:1]
            if st == int(OPT.get('hst', 6)): after = after + ld_pf()[1:]
            if st == 7: tags += ["pfq"]
            if st == 4 + sh:
                tags += ["wo"]
                pre = lambda: (chk.append(1), a("s_waitcnt lgkmcnt(0)"))
                if part: pad = rd_post() + pad[8:]
                else: after = after + rd_post()
            after = pad + after
            if part == 0:
                if st == 0: after = after + [clear_line]
                if st == 2: after = [clean_set] + after
                if st in (4, 5): after = after + [lambda st=st: clean_issue(st - 4)]
            after = [lambda st=st: sp.mark(f"k{st}")] + after
            S.barrier_after_stage(st, tags, after, pre)
        rl.sort(key=lambda r: (r[4], r[0]))
        for r in rl: S.read(r[1], r[2], r[3], r[4], r[0])
        chk = []
        def before_b4(): assert not chk, "kvT job too late"
        if sh == 0:
            for i, it in enumerate(ld_kv(part)): S.timed.append((int(OPT.get('kvp', 2)) + 3 * i, it, 48))
        for it in job_gate(): S.filler(2 * 64 - 8, 1, it)
        for it in job_kvt(): S.filler((3 + sh) * 64 - 10 - 30 * sh, 1, it)
        S.filler(0, 0, before_b4)
        for i, it in enumerate(job_post()):
            S.filler((5 + sh) * 64 + 16 + 7 * part + int(OPT.get('pstep', 30 - 10 * sh)) * i, 1, it)
        S.run([0])
        sp.mark("kv")
        a(f"s_lshr_b32 s{sT}, s{sW}, 1")
        a(f"s_lshl_b32 s{sT}, s{sT}, 13")
        a(f"s_and_b32 s{sT2}, s{sW}, 1")
        a(f"s_lshl_b32 s{sT2}, s{sT2}, 2")
        a("s_mov_b32 s3, 65536")
        frag_addrs(vAX, sT, vAQ, sT2, 3)
        a(f"v_add_u32 v{vAX+2}, 131072, v{vAX}")
        a(f"v_add_u32 v{vAX+3}, 131072, v{vAX+1}")
        S = Stream(a, vm, dist=int(OPT.get('qd', 10)), per_gap=2, bar_delay=int(OPT.get('qbd', 3)))
        S.fill_rate = 1.0
        S.la = int(OPT.get('qla', 1)); S.ustep = int(OPT.get('qus', 1))
        rl = []
        EARLYV = 'latev' not in OPT
        KPUB, VPUB = int(OPT.get('kpub', 4)), int(OPT.get('vpub', 8 if EARLYV else 9))
        for k in range(10):
            xb = XB[(k + 2) % 3]
            for u in range(2):
                x = 2 * k + u
                for nt in range(4):
                    for hf in range(2):
                        rg = WFR[x & 1] + 4 * nt + 2 * hf
                        rl.append((16 * x + nt - 5, ("w", x, nt, hf),
                                   f"ds_read_b64_tr_b16 {vr(rg,2)}, v{vAQ+nt} offset:{(k%3)*16384+u*8192+hf*1024}", rg, k))
                for qi in range(4):
                    rg = CFR + 4 * qi
                    av = vAX + u + (2 if xb == 131072 else 0)
                    rl.append((16 * x + 4 * qi, ("c", x, qi), f"ds_read_b128 {vr(rg,4)}, v{av} offset:{(xb%131072)+qi*2048}", rg, k))
                    for nt in range(4):
                        acc = vr(QA + 4 * (qi * 4 + nt), 4)
                        S.op(f"{MFMA16} {acc}, {vr(WFR[x&1]+4*nt,4)}, {vr(rg,4)}, {'0' if x == 0 else acc}",
                             [("w", x, nt, 0), ("w", x, nt, 1), ("c", x, qi)])
            tags, after, pre = [("q", k + 1)], [], None
            if k + 3 <= 9: after = q_dma_x(k + 3) + q_dma_w(k + 3)
            if k == 0 and part == 0: pre = clean_check
            if k == KPUB: tags.append("pr2")
            if k == KPUB and part == 0: tags.append("st"); after = [lambda: publish(0, 0)] + after
            KP = int(OPT.get('kpoll', 7))
            if k == KP - 1 and part == 0: after = [lambda: (poll_issue(1), vm.add("mark"), vm.ghost.add("mark"))] + after
            if k == KP:
                if part == 0: pre = lambda: poll(1, 1, vm.wait("mark"))
                after = [[f"s_mov_b32 s{S_K}, s{S_WS}", f"s_mov_b32 s{S_K+1}, s{S_WS+1}", f"s_mov_b32 s{S_K+2}, s{S_V+2}"]] + kdma(0, "k0") + kdma(1, "k0")
            if k == 8: after = after + kdma(2, "k2")
            if k == 9: tags = []
            if k == VPUB and part == 1: tags.append("st"); after = [lambda: publish(4, 1)] + after
            if k == 9 and part == 1 and EARLYV: after = after + [lambda: poll_issue(5)]
            if part == 1: after = [[] for _ in range(int(OPT.get('qstag', 0)))] + after
            after = [lambda k=k: sp.mark(f"q{k}")] + after
            S.barrier_after_stage(k, tags, after, pre)
        rl.sort(key=lambda r: (r[4], r[0]))
        for r in rl: S.read(r[1], r[2], r[3], r[4], r[0])
        npre = 10
        for r in rl[:npre]: a(r[2])
        a(f"v_add_u32 v{vST}, {4096 >> part}, v{vL16}")
        a(f"v_mov_b32 v{vZERO}, 0")
        a(f"v_and_b32 v{vFL}, 31, v0")
        a(f"v_lshlrev_b32 v{vFL}, 2, v{vFL}")
        for z in list(range(4, 16)) + list(range(4)):
            for e in range(4):
                a(f"v_cvt_pk_bf16_f32 v{PK(z)+e}, v{ACC+8*z+2*e}, v{ACC+8*z+2*e+1}")
        SC = " " + OPT.get('stsc', 'sc1').replace('_', ' ')
        st0, stp = (2, int(OPT.get('stp', 5))) if part == 0 else (int(OPT.get('vst', 84)), int(OPT.get('stpv', 8)))
        for z in range(16 if 'nost' not in OPT else 1):
            j, c = z >> 2, z & 3
            S.filler(st0 + stp * z, 1, [f"s_add_u32 s3, s{sOB}, {j*8192}",
                     (f"buffer_store_dwordx4 {vr(PK(z),4)}, v{vST if c >> 1 else vL16}, {S4(S_WS)}, s3 offen offset:{(c&1)*1024}{SC}", "st")])
        S.run([0], preissued=npre)
        endwait.append(vm.wait("k0"))
        if part == 0: a("s_branch M_KVD")
    a.label("M_KVD")
    sp.mark("q")
    vKA, vVA, vD0, vQ2, vKN = 2, 3, 4, 5, 9
    FR, T, P, SS, O, Q, NEGM = 32, 64, [80, 88], [96, 112], 128, 192, 224
    LS, ONES, vTA, vX0, vNINF = 248, 232, 236, 238, 246
    BIAS = 12.0
    D = int(OPT.get('D', 7))
    a(f"s_mov_b32 s{sT}, {f32hex(1.4426950408889634 * 128 ** -0.5)}")
    a(f"s_lshr_b32 s{sT2}, s{sW}, 1")
    a(f"s_lshl_b32 s{sT2}, s{sT2}, 14")
    a(f"s_and_b32 s3, s{sW}, 1")
    a("s_lshl_b32 s3, s3, 11")
    a(f"s_add_u32 s{sT2}, s{sT2}, s3")
    a(f"s_add_u32 s{sT2}, s{sT2}, 98304")
    a(f"v_add_u32 v6, s{sT2}, v{vL16}")
    a(f"s_lshl_b32 s{sT2}, s{sW}, 13")
    a(f"s_add_u32 s{sT2}, s{sT2}, 98304")
    a(f"v_add_u32 v{vQ2}, s{sT2}, v{vL16}")
    if SHARE: a(f"v_mov_b32 v{vKA}, v{vL16}")
    else:
        a(f"s_lshl_b32 s{sT2}, s{sG}, 13")
        a(f"v_add_u32 v{vKA}, s{sT2}, v{vL16}")
    a(f"v_mov_b32 v{vKN}, v{vKA}")
    a(f"v_add_u32 v{vVA}, 65536, v{vKA}")
    for f in range(8):
        for e in range(4):
            r = QA + 8 * f + 2 * e
            a(f"v_mul_f32 v{r}, s{sT}, v{r}")
            a(f"v_mul_f32 v{r+1}, s{sT}, v{r+1}")
            a(f"v_cvt_pk_bf16_f32 v{Q+4*f+e}, v{r}, v{r+1}")
        a(f"ds_write_b128 v6, {vr(Q+4*f,4)} offset:{(f>>1)*4096+(f&1)*1024}")
    a("v_and_b32 v7, 15, v0")
    a("v_lshrrev_b32 v8, 4, v0")
    a(f"s_lshl_b32 s{sT}, s{sRB}, 5")
    a(f"v_add_u32 v{vD0}, s{sT}, v7")
    a("v_lshlrev_b32 v8, 2, v8")
    a(f"v_sub_u32 v{vD0}, v{vD0}, v8")
    a(f"v_mov_b32 v{vNINF}, 0xff800000")
    a(f"s_mul_i32 s{sT}, s{sW}, {8192+512}")
    a(f"s_xor_b32 s{sT2}, s{sW}, 4")
    a(f"s_mul_i32 s{sT2}, s{sT2}, {8192+512}")
    a(f"v_add_u32 v14, s{sT}, v{vL16}")
    a(f"v_add_u32 v15, s{sT2}, v{vL16}")
    a("v_lshlrev_b32 v16, 3, v0")
    a(f"v_add_u32 v17, s{sT2}, v16")
    a(f"v_add_u32 v16, s{sT}, v16")
    for r in range(8): a(f"v_mov_b32 v{NEGM+r}, 0")
    for r in range(4): a(f"v_mov_b32 v{ONES+r}, 0x3f803f80")
    if EARLYV: poll(5, 0x101, 0)
    a(f"s_waitcnt vmcnt({min(endwait)}) lgkmcnt(0)")
    a("s_barrier")
    if not EARLYV: poll_issue(5)
    sp.mark("qx")
    def kread(e, t): return f"ds_read_b128 {vr(FR+4*t,4)}, v{vKN if t < D else vKA} offset:{(e&3)*16384+t*1024}"
    def vread(e, i): return f"ds_read_b128 {vr(FR+4*i,4)}, v{vVA} offset:{(e&3)*16384+i*1024}"
    for f in range(8): a(f"ds_read_b128 {vr(Q+4*f,4)}, v{vQ2} offset:{f*1024}")
    for i in range(D): a(kread(0, i))
    a(f"s_mov_b32 s{sS}, 0")

    handlers = []
    def xreduce(op, x, tmp):
        a(f"v_mov_b32 v{tmp}, v{x}")
        a(f"v_permlane16_swap_b32 v{x}, v{tmp}")
        a(f"{op} v{x}, v{x}, v{tmp}")
        a(f"v_mov_b32 v{tmp}, v{x}")
        a(f"v_permlane32_swap_b32 v{x}, v{tmp}")
        a(f"{op} v{x}, v{x}, v{tmp}")
    def rowmax(dst, tmp, src):
        a(f"v_max3_f32 v{dst}, v{src}, v{src+1}, v{src+2}")
        a(f"v_max3_f32 v{dst}, v{dst}, v{src+3}, v{src+4}")
        a(f"v_max3_f32 v{dst}, v{dst}, v{src+5}, v{src+6}")
        a(f"v_max_f32 v{dst}, v{dst}, v{src+7}")
        xreduce("v_max_f32", dst, tmp)
    def sm_ops(Sc, Pw):
        f = []
        def post(q):
            f.append((1, [f"v_cvt_pk_bf16_f32 v{Pw+q//2}, v{T+q%8}, v{T+(q+1)%8}"]))
            k = q // 2
            if k == 3: f.append((1, [f"v_or3_b32 v{vTA}, v{Pw}, v{Pw+1}, v{Pw+2}"]))
            if k == 5: f.append((1, [f"v_or3_b32 v{vTA}, v{vTA}, v{Pw+3}, v{Pw+4}"]))
            if k == 7:
                f.append((1, [f"v_or3_b32 v{vTA}, v{vTA}, v{Pw+5}, v{Pw+6}"]))
                f.append((1, [f"v_bitop3_b32 v{vTA}, v{vTA}, v{Pw+7}, s{sTHR} bitop3:0xa8"]))
        for r in range(16):
            f.append((2, [f"v_exp_f32 v{T+r%8}, v{Sc+r}"]))
            if r % 2 == 1 and r >= 3: post(r - 3)
        post(14)
        return f
    def store_ctx(qis, sct, obase):
        n = 0
        for qi in qis:
            for u in range(4):
                d = T + (n % 4) * 4
                n += 1
                src = obase(qi) + 8 * u
                for e in range(4): a(f"v_cvt_pk_bf16_f32 v{d+e}, v{src+2*e}, v{src+2*e+1}")
                if u == 0 and qi == 1 and len(qis) == 2: a(f"s_add_u32 s{sct}, s{sct}, {CS}")
                a(f"buffer_store_dwordx4 {vr(d,4)}, v{vL16}, {S4(S_WS)}, s{sct} offen offset:{u*1024}{' sc1' if FUSE else ''}")

    sX = sROW
    def slot(j, name, qk=True, sm=True, pv=True, nxt="k", dma=True, last=False, vlist=None, prefetched=True, prebar=None, vmw=4,
             fresh=False, fast=None):
        par = j & 1
        if vlist is None: vlist = [j]
        Sc, Sn, Pw, Pr = SS[1 - par], SS[par], P[1 - par], P[par]
        if fast:
            a.label(name + "_GO")
            handlers.append(("entry", name))
            handlers.append(("ev", name, Sc))
        else:
            a.label(name)
            if sm or pv:
                a(f"s_bitcmp1_b64 s[{sEV}:{sEV+1}], s{sS}")
                a(f"s_cbranch_scc1 {name}_EV")
                a.label(name + "_GO")
                handlers.append(("ev", name, Sc))
        ms = []
        if qk:
            for t in range(8):
                kt, u = t >> 2, t & 3
                mm = []
                for qi in range(2):
                    d = vr(Sn + 8 * qi + 4 * kt, 4)
                    mm.append(f"{MFMA16} {d}, {vr(FR+4*t,4)}, {vr(Q+16*qi+4*u,4)}, {vr(NEGM+4*qi,4) if u == 0 else d}")
                ms.append((mm, kread(j, t)))
        if pv:
            for i in range(8):
                mm = []
                for qi in range(2):
                    o = vr(O + 32 * qi + 4 * i, 4)
                    mm.append(f"{MFMA16} {o}, {vr(FR+4*i,4)}, {vr(Pr+4*qi,4)}, {'0' if fresh else o}")
                ms.append((mm, vread(j - 2, i)))
        rd = [m[1] for m in ms]
        if nxt == "k": rd += [kread(j + 1, i) for i in range(D)]
        elif nxt == "v": rd += [vread(j - 1, i) for i in range(D)]
        dm = []
        if dma and not ('nodma' in OPT and name.startswith('AT_L')):
            for e in vlist:
                dm.append(([f"s_add_u32 m0, s{sM0V}, {(e & 3) * 16384}"], [f"buffer_load_dwordx4 v{vL16}, {S4(S_V)}, s{sHIST[e&3]} offen sc1 lds"]))
                dm.append(([], [f"buffer_load_dwordx4 v{vL16}, {S4(S_V)}, s{sHIST[e&3]} offen offset:1024 sc1 lds"]))
            h0, h1 = sHIST[(j + 3) & 3], sHIST[(j + 2) & 3]
            dm.append(([f"s_add_u32 m0, s{sM0K}, {((j + 3) & 3) * 16384}", f"s_add_u32 s{h0}, s{h1}, s{sBASE}"],
                       [f"buffer_load_dwordx4 v{vL16}, {S4(S_K)}, s{h0} offen sc1 lds"]))
            dm.append(([], [f"buffer_load_dwordx4 v{vL16}, {S4(S_K)}, s{h0} offen offset:1024 sc1 lds"]))
        groups = []
        n = len(ms)
        if not prefetched:
            for x in rd[:D]: a(x)
        dstep = int(OPT.get('dstep', 2))
        dpos = list(range(1, n, dstep if n == 16 else 2)) if len(dm) <= n // 2 else list(range(n))
        WS = int(OPT.get('wstep', 4))
        for m in range(n):
            pre = []
            if m % WS == 0:
                out = min(len(rd), m + D) - (m + WS)
                pre.append(f"s_waitcnt lgkmcnt({max(out, 0)})")
            post = [rd[m + D]] if m + D < len(rd) else []
            if 'halfread' in OPT and (m + D) % 2 == 1: post = []
            if m in dpos and dpos.index(m) < len(dm):
                pre = dm[dpos.index(m)][0] + pre
                post += dm[dpos.index(m)][1]
            if fast and m == 12: post += [f"s_add_u32 s{sS}, s{sS}, 1", f"s_bitcmp1_b64 s[{sEV}:{sEV+1}], s{sS}", f"s_cselect_b32 s{sX}, 1, 0"]
            groups.append((pre, ms[m][0][0], []))
            groups.append(([], ms[m][0][1], post))
            if pv and m == n - 5:
                for qi in range(2): groups.append(([], f"{MFMA16} {vr(LS+4*qi,4)}, {vr(ONES,4)}, {vr(Pr+4*qi,4)}, {'0' if fresh else vr(LS+4*qi,4)}", []))
        fl = sm_ops(Sc, Pw) if (sm and 'nosm' not in OPT) else []
        if fast: fl.append((1, [f"v_cmp_ne_u32 vcc, s{sX}, v{vTA}"]))
        elif sm: fl.append((1, [f"v_cmp_ne_u32 vcc, 0, v{vTA}"]))
        interleave(a, groups, fl, max(2 * n - 1, 1))
        if fast:
            if fast == "AT_L2":
                a("s_cbranch_vccz AT_TOP")
                a(f"s_branch {name}_SP")
            else:
                a(f"s_cbranch_vccnz {name}_SP")
                a("s_waitcnt vmcnt(4)")
                if 'nobar' not in OPT: a("s_barrier")
            handlers.append(("special", name, fast))
            handlers.append(("slow", name, Sc, Sn, Pw))
            return
        if sm:
            a(f"s_cbranch_vccnz {name}_SLOW")
            a.label(name + "_RET")
            handlers.append(("slow", name, Sc, Sn, Pw))
        if not last:
            a(f"s_add_u32 s{sS}, s{sS}, 1")
            if prebar: prebar()
            a(f"s_waitcnt vmcnt({vmw if dma else 0})")
            a("s_barrier")

    slot(0, "AT_S0", sm=False, pv=False)
    sp.mark("s0")
    slot(1, "AT_S1", pv=False)
    sp.mark("s1")
    poll_issue(2)
    slot(2, "AT_S2", prebar=lambda: poll(2, 0xffff, 4), fresh=True)
    sp.mark("s2")
    a("s_branch AT_L3")
    a(".p2align 6")
    a.label("AT_TOP")
    a("s_waitcnt vmcnt(4)")
    if 'nobar' not in OPT: a("s_barrier")
    slot(2, "AT_L2", fast="AT_L3"); slot(3, "AT_L3", fast="AT_L0"); slot(0, "AT_L0", fast="AT_L1"); slot(1, "AT_L1", fast="AT_L2")
    a.label("AT_P33")
    sp.mark("s32")
    if FUSE: poll_issue(6, True)
    slot(1, "AT_S33", nxt=None, prebar=(lambda: poll(6, -1, 4, True)) if FUSE else None)
    slot(2, "AT_S34", qk=False, nxt=None, dma=False, prefetched=False)
    if FUSE and 'lateconv' not in OPT:
        for x in tsrd(PT + 6, 2621440): a(x)
        gen_tail.conv_dma(a, {k: v for k, v in globals().items() if not k.startswith("__") and k != "gen_tail"}, sW, S_WS, S_T, sT, sT2, 3, sCO, vL16, 18, 19,
                          98304, "AT_S35", " sc1")
    slot(3, "AT_S35", qk=False, sm=False, nxt=None, dma=False, last=True, prefetched=False)
    sp.mark("s35")
    X0, X1, X2, X3, X4, X5 = range(vX0, vX0 + 6)
    a(f"s_cmp_eq_u32 s{sG}, 0")
    a("s_cbranch_scc1 AT_MA")
    for gsel in (1, 0):
        if gsel == 0: a.label("AT_MA")
        own, snd = O + 32 * gsel, O + 32 * (1 - gsel)
        a(f"v_mov_b32 v{X4}, v{NEGM+4*(1-gsel)}")
        a(f"v_mov_b32 v{X5}, v{LS+4*(1-gsel)}")
        a(f"ds_write_b64 v16, v[{X4}:{X5}] offset:8192")
        for q in range(8): a(f"ds_write_b128 v14, {vr(snd+4*q,4)} offset:{1024*q}")
        if gsel: a(f"s_add_u32 s{sCT2}, s{sCT2}, {CS}")
        a("s_waitcnt lgkmcnt(0)")
        a("s_barrier")
        a(f"ds_read_b64 v[{X2}:{X3}], v17 offset:8192")
        for q in range(8): a(f"ds_read_b128 {vr(snd+4*q,4)}, v15 offset:{1024*q}")
        a("s_waitcnt lgkmcnt(8)")
        a(f"v_min_f32 v{vTA}, v{NEGM+4*gsel}, v{X2}")
        a(f"v_sub_f32 v{X0}, v{vTA}, v{NEGM+4*gsel}")
        a(f"v_sub_f32 v{X2}, v{vTA}, v{X2}")
        a(f"v_exp_f32 v{X0}, v{X0}")
        a(f"v_exp_f32 v{X2}, v{X2}")
        a(f"v_mul_f32 v{vTA}, v{LS+4*gsel}, v{X0}")
        a(f"v_fmac_f32 v{vTA}, v{X3}, v{X2}")
        a(f"v_rcp_f32 v{vTA}, v{vTA}")
        a(f"v_mul_f32 v{X0}, v{X0}, v{vTA}")
        a(f"v_mul_f32 v{X2}, v{X2}, v{vTA}")
        for u in range(4):
            for r in range(8 * u, 8 * u + 8): a(f"v_mul_f32 v{own+r}, v{own+r}, v{X0}")
            a(f"s_waitcnt lgkmcnt({6-2*u})")
            for r in range(8 * u, 8 * u + 8): a(f"v_fmac_f32 v{own+r}, v{snd+r}, v{X2}")
            for e in range(4): a(f"v_cvt_pk_bf16_f32 v{T+4*u+e}, v{own+8*u+2*e}, v{own+8*u+2*e+1}")
            a(f"buffer_store_dwordx4 {vr(T+4*u,4)}, v{vL16}, {S4(S_WS)}, s{sCT2} offen offset:{u*1024}{' sc1' if FUSE else ''}")
        if gsel: a("s_branch AT_MB")
    a.label("AT_MB")
    if FUSE:
        sp.mark("att")
        gen_tail.gen_tail(a, {k: v for k, v in globals().items() if not k.startswith("__") and k != "gen_tail"}, dict(sW=sW, sH=sH, sP=sP, sp=sp))
    elif STAMP:
        a("s_waitcnt vmcnt(0)")
        sp.mark("end")
        a("s_waitcnt lgkmcnt(0)")
        sp.flush(100, sW, 0, slot=0); sp.flush(100, sW, 4, slot=1)
    a.label("M_END")
    a("s_endpgm")
    for hd in handlers:
        if hd[0] == "entry":
            name = hd[1]
            a.label(name)
            a(f"s_bitcmp1_b64 s[{sEV}:{sEV+1}], s{sS}")
            a(f"s_cbranch_scc0 {name}_GO")
        elif hd[0] == "special":
            _, name, nx = hd
            a.label(name + "_SP")
            a(f"v_cmp_ne_u32 vcc, 0, v{vTA}")
            a(f"s_cbranch_vccnz {name}_SLOW")
            a.label(name + "_RET")
            a("s_waitcnt vmcnt(4)")
            if 'nobar' not in OPT: a("s_barrier")
            if nx == "AT_L1":
                a(f"s_cmp_eq_u32 s{sS}, 33")
                a("s_cbranch_scc1 AT_P33")
            a(f"s_branch {nx}")
        elif hd[0] == "ev":
            _, name, Sc = hd
            a.label(name + "_EV")
            a(f"s_cmp_eq_u32 s{sS}, s{sWRAP}")
            a(f"s_cselect_b32 s{sBASE}, 16384, s{sBASE}")
            a(f"s_cmp_eq_u32 s{sS}, 31")
            a(f"s_cselect_b32 s{S_K+2}, 0, s{S_K+2}")
            if SHARE:
                a(f"s_cmp_eq_u32 s{sG}, 0")
                a(f"s_cbranch_scc1 {name}_E0")
                a(f"s_sub_u32 s{sT}, s{sS}, s{sNB}")
                a(f"s_cmp_eq_u32 s{sT}, -3")
                a(f"s_cselect_b32 s{S_K+2}, {16*MB}, s{S_K+2}")
                a(f"s_cmp_eq_u32 s{sT}, 0")
                a(f"s_cselect_b32 s{S_V+2}, {16*MB}, s{S_V+2}")
                a(f"s_cselect_b32 s{sT2}, 8192, 0")
                a(f"v_add_u32 v{vKA}, s{sT2}, v{vKA}")
                a(f"s_cmp_eq_u32 s{sT}, -1")
                a(f"s_cselect_b32 s{sT2}, 8192, 0")
                a(f"v_add_u32 v{vKN}, s{sT2}, v{vKN}")
                a(f"s_cmp_eq_u32 s{sT}, 2")
                a(f"s_cselect_b32 s{sT2}, 8192, 0")
                a(f"v_add_u32 v{vVA}, s{sT2}, v{vVA}")
                a.label(name + "_E0")
            a(f"s_sub_u32 s{sT}, s{sS}, s{sN1}")
            a(f"s_cmp_lg_u32 s{sT}, 2")
            a(f"s_cbranch_scc1 {name}_E1")
            a(f"v_rcp_f32 v{vX0}, v{LS}")
            a(f"v_rcp_f32 v{vX0+1}, v{LS+4}")
            for r in range(8): a(f"v_mov_b32 v{LS+r}, 0")
            for r in range(64): a(f"v_mul_f32 v{O+r}, v{O+r}, v{vX0+(r>>5)}")
            store_ctx((0, 1), sCT1, lambda qi: O + 32 * qi)
            for r in range(64): a(f"v_mov_b32 v{O+r}, 0")
            a.label(name + "_E1")
            if FUSE:
                only(0, ["s_mov_b64 exec, 1", f"v_mov_b32 v{vX0}, 1", f"s_lshl_b32 s3, s{sP}, 10", f"s_add_u32 s3, s3, s{sH}", "s_lshl_b32 s3, s3, 2",
                         f"s_add_u32 s3, s3, {WS_FL3}", f"buffer_store_dword v{vX0}, v{vZERO}, {S4(S_WS)}, s3 offen sc1", "s_mov_b64 exec, -1"],
                     f"s_cmp_lg_u32 s{sT}, 3")
            a(f"s_cmp_lg_u32 s{sT}, 0")
            a(f"s_cbranch_scc1 {name}_E2")
            for t in range(8): a(f"ds_read_b128 {vr(Q+4*t,4)}, v{vQ2} offset:{32768+1024*t}")
            for r in range(8): a(f"v_mov_b32 v{NEGM+r}, 0")
            a("s_waitcnt lgkmcnt(0)")
            a.label(name + "_E2")
            a(f"s_sub_u32 s{sT2}, s{sS}, s{sMST}")
            a(f"s_sub_u32 s{sT2}, s{sT2}, 1")
            a(f"s_cmp_lt_u32 s{sT2}, 4")
            a(f"s_cbranch_scc1 {name}_EM")
            a(f"s_cmp_lt_u32 s{sS}, 33")
            a(f"s_cbranch_scc1 {name}_E3")
            a(f"s_sub_u32 s{sT2}, s{sS}, 33")
            a(f"s_lshl_b32 s{sT2}, s{sT2}, 1")
            a(f"s_add_u32 s{sT2}, s{sT2}, s{sG}")
            a.label(name + "_EM")
            a(f"s_lshl_b32 s{sT2}, s{sT2}, 5")
            a(f"v_subrev_u32 v{vX0}, s{sT2}, v{vD0}")
            for qi in range(2):
                for kt in range(2):
                    for e in range(4):
                        a(f"v_cmp_le_i32 s[{sMK+2*e}:{sMK+2*e+1}], {16*kt+e-16*qi}, v{vX0}")
                    for e in range(4):
                        r = Sc + 8 * qi + 4 * kt + e
                        a(f"v_cndmask_b32 v{r}, v{vNINF}, v{r}, s[{sMK+2*e}:{sMK+2*e+1}]")
            a.label(name + "_E3")
            a(f"s_cmp_eq_u32 s{sT}, 1")
            a(f"s_cbranch_scc1 {name}_E4")
            a(f"s_cmp_lg_u32 s{sS}, 1")
            a(f"s_cbranch_scc1 {name}_GO")
            a.label(name + "_E4")
            for qi in range(2):
                rowmax(vX0 + qi, vX0 + 2 + qi, Sc + 8 * qi)
                a(f"v_add_f32 v{vX0+qi}, {f32hex(BIAS)}, v{vX0+qi}")
            for r in range(8): a(f"v_sub_f32 v{NEGM+r}, v{NEGM+r}, v{vX0+(r>>2)}")
            for r in range(16): a(f"v_sub_f32 v{Sc+r}, v{Sc+r}, v{vX0+(r>>3)}")
            a(f"s_branch {name}_GO")
        else:
            _, name, Sc, Sn, Pw = hd
            a.label(name + "_SLOW")
            for qi in range(2):
                rowmax(vX0 + qi, vX0 + 2 + qi, Sc + 8 * qi)
                a(f"v_add_f32 v{vX0+qi}, {f32hex(BIAS)}, v{vX0+qi}")
                a(f"v_max_f32 v{vX0+qi}, 0, v{vX0+qi}")
                a(f"v_exp_f32 v{vX0+2+qi}, -v{vX0+qi}")
            for r in range(8): a(f"v_sub_f32 v{NEGM+r}, v{NEGM+r}, v{vX0+(r>>2)}")
            for r in range(16): a(f"v_sub_f32 v{Sn+r}, v{Sn+r}, v{vX0+(r>>3)}")
            for r in range(16): a(f"v_sub_f32 v{Sc+r}, v{Sc+r}, v{vX0+(r>>3)}")
            for r in range(64): a(f"v_mul_f32 v{O+r}, v{O+r}, v{vX0+2+(r>>5)}")
            for r in range(8): a(f"v_mul_f32 v{LS+r}, v{LS+r}, v{vX0+2+(r>>2)}")
            for c, ops in sm_ops(Sc, Pw):
                for x in ops: a(x)
            a(f"s_branch {name}_RET")
    a.label("M_LAST")
    a("s_endpgm")
    return dict(name="gated_mix__ssm_conv_h3__compressed_kv_cla__prompt_kernel" if FUSE else "main_kernel", grid=256, block=512, lds=163840, vgpr=256)

import gen as G1
G1.STAMP = False
KERNELS = {"main": gen_main, "conv": G1.gen_conv, "oproj": G1.gen_oproj, "tail": lambda a: gen_tail.gen_tail(a, {k: v for k, v in globals().items() if not k.startswith("__") and k != "gen_tail"})}

def build(names, path, verbose=False):
    hdr = open("gated_mix__ssm_conv_h3__compressed_kv_cla__prompt.s.ref").read().split("\n")
    hdr = [l for l in hdr if l.startswith(";") and "@launch" not in l and "Override" not in l and "grid=ceil" not in l]
    codes, descs, launches = [], [], []
    for n in names:
        a = Asm()
        info = KERNELS[n](a)
        k = fix_hazards(a.lines, verbose)
        print(f"{n}: {len(a.lines)} lines, {k} nops inserted")
        c, d = kernel_text(info["name"], a.lines, info["vgpr"], extra="  .amdhsa_float_denorm_mode_32 3\n")
        codes.append(c); descs.append(d)
        kn = "" if "plain" in OPT else f"kernel={info['name']} "
        launches.append(f"; @launch {kn}grid=({info['grid']},1,1) block=({info['block']},1,1) lds={info['lds']}")
    txt = "\n".join(hdr + launches) + '\n.amdgcn_target "amdgcn-amd-amdhsa--gfx950"\n.text\n' + "\n".join(codes) + \
          '\n.section .rodata,"a"\n' + "\n".join(descs)
    if "CODE_SPAN" in txt: txt = txt.replace("CODE_SPAN", str(int(OPT.get("ipf", 77000))))
    open(path, "w").write(txt)

if __name__ == "__main__":
    names = sys.argv[2].split(",") if len(sys.argv) > 2 else list(KERNELS)
    build(names, sys.argv[1] if len(sys.argv) > 1 else "k2.s", verbose="-v" in sys.argv)
```

```python
import sys, struct
from asmlib import *
from sched import *
import gen_tail

MB = 1 << 20
WS_KF, WS_VF, WS_CTX, WS_WOT, WS_KVT, WS_Y2T, WS_G = 0, 16 * MB, 32 * MB, 49 * MB, 56 * MB, 60 * MB, 63 * MB
KA = dict(A_q=0, A_k=8, A_v=16, shift=24, ssm_k=32, ssm_D=40, B_x=48, c_kv=56, w_q=64, w_uk=72, w_uv=80, w_o=88,
          gate=96, out=104, dbg=112, ws=120)
MFMA32 = "v_mfma_f32_32x32x16_bf16"
MFMA16 = "v_mfma_f32_16x16x32_bf16"
STAMP = "-stamp" in sys.argv
OPT = {x[2:].split("=")[0]: (x.split("=")[1] if "=" in x else "1") for x in sys.argv if x.startswith("--")}
WS_FLG = 63 * MB + 524288
WS_FL2 = 63 * MB + 655360
WS_FL3 = WS_FL2 + 131072
FUSE = 'nofuse' not in OPT
CS = 131072 + int(OPT.get('cspad', 1024))
OOB = "0x80000000"
def f32hex(x): return "0x%08x" % struct.unpack("<I", struct.pack("<f", x))[0]

def srd(a, d, lo, hi, size, add=0):
    if add:
        a(f"s_add_u32 s{d}, s{lo}, {add}")
        a(f"s_addc_u32 s{d+1}, s{hi}, 0")
    else:
        a(f"s_mov_b32 s{d}, s{lo}")
        a(f"s_mov_b32 s{d+1}, s{hi}")
    a(f"s_mov_b32 s{d+2}, {size}")
    a(f"s_mov_b32 s{d+3}, 0x00020000")
def S4(d): return f"s[{d}:{d+3}]"

class Stamps:
    def __init__(self, a, base=70, region=0):
        self.a, self.base, self.n, self.region = a, base, 0, region
    off = False
    def mark(self, name=""):
        if not STAMP or self.off: return
        if name not in OPT.get("marks", "start,kv,q,s1,end,t0,t1,t2").split(","): return
        assert self.base + 2 * self.n + 3 <= 101
        self.a(f"s_memtime s[{self.base+2*self.n}:{self.base+2*self.n+1}]")
        self.a(f"s_memrealtime s[{self.base+2*self.n+2}:{self.base+2*self.n+3}]")
        self.n += 2
    def flush(self, wg, sW, wave, slot=0):
        if not STAMP: return
        a = self.a
        lab = a.uid("STK")
        a(f"s_cmp_lg_u32 s{sW}, {wave}")
        a(f"s_cbranch_scc1 {lab}")
        if 'dbgstamp' in OPT:
            if slot:
                a.label(lab); return
            a(f"s_cmp_lg_u32 s2, {OPT['dbgstamp']}")
            a(f"s_cbranch_scc1 {lab}")
            a(f"s_load_dwordx2 s[60:61], s[0:1], {KA['dbg']}")
            a("s_waitcnt lgkmcnt(0)")
            a("s_mov_b32 s62, 64")
            a("s_mov_b32 s63, 0x00020000")
            a("v_mov_b32 v1, 0")
            for i in range(self.n - 1, 1, -1): a(f"s_sub_u32 s{self.base+2*i}, s{self.base+2*i}, s{self.base+2*i-4}")
        else:
            a(f"s_load_dwordx2 s[60:61], s[0:1], {KA['ws']}")
            a("s_waitcnt lgkmcnt(0)")
            a(f"s_add_u32 s60, s60, {128*MB + self.region*65536 + slot*64}")
            a("s_addc_u32 s61, s61, 0")
            a("s_mov_b32 s62, 65536")
            a("s_mov_b32 s63, 0x00020000")
            a("s_lshl_b32 s3, s2, 7")
            a("v_mov_b32 v1, s3")
        for i in range(self.n):
            a(f"v_mov_b32 v2, s{self.base+2*i}")
            a(f"buffer_store_dword v2, v1, s[60:63], 0 offen offset:{4*i}")
        a("s_getreg_b32 s3, hwreg(HW_REG_XCC_ID)")
        a("v_mov_b32 v2, s3")
        a(f"buffer_store_dword v2, v1, s[60:63], 0 offen offset:60")
        a("s_waitcnt vmcnt(0)")
        a.label(lab)

def rnd_pair(d, lo, hi, olo, ohi):
    return [f"v_cvt_pk_bf16_f32 v{d}, v{lo}, v{hi}", f"v_lshlrev_b32 v{olo}, 16, v{d}", f"v_and_b32 v{ohi}, 0xffff0000, v{d}"]

def interleave(a, mfmas, fillers, ngaps):
    tot = sum(c for c, _ in fillers)
    fi, acc = 0, 0.0
    for g, (pre, m, post) in enumerate(mfmas):
        for x in pre: a(x)
        a(m)
        for x in post: a(x)
        lim = tot * min(1.0, (g + 1) / ngaps) if ngaps else tot
        while fi < len(fillers) and acc + fillers[fi][0] * 0.5 <= lim:
            acc += fillers[fi][0]
            for x in fillers[fi][1]: a(x)
            fi += 1
    while fi < len(fillers):
        for x in fillers[fi][1]: a(x)
        fi += 1

def gen_main(a):
    S_C, S_W, S_WS, S_V, S_X, S_WQ, S_DBG = 4, 8, 12, 16, 20, 24, 28
    (sW, sH, sP, sG, sRB, sT, sT2, sCO, sWO, sM0C, sM0W, sOB, sROW, sXO, sQWO, sN1, sS, sMST, sTHR, sM0K, sM0V,
     sBASE, sCT1, sCT2, sWRAP) = range(32, 57)
    sHIST = [57, 58, 59, 60]
    sEV = 62
    PT = 64
    S_T = 76
    sMK = 4
    S_K = S_X
    sNB = 61
    SHARE = 'noshare' not in OPT
    vL16, vCD, vWD, vAC, vAW, vXD, vQW, vWOT, vKVT = 1, 2, 6, 10, 12, 16, 20, 22, 23
    WFR, CFR, ACC = [32, 48], 64, 128
    sp = Stamps(a, base=80)
    vm = VM()
    a("s_cmp_ge_u32 s2, 256")
    a("s_cbranch_scc1 M_END")
    sp.mark("start")
    a(f"s_load_dwordx2 s[44:45], s[0:1], {KA['c_kv']}")
    a(f"s_load_dwordx4 s[48:51], s[0:1], {KA['w_uk']}")
    a("v_lshrrev_b32 v1, 6, v0")
    a("v_mov_b32 v31, v0")
    a("v_and_b32 v0, 63, v0")
    a(f"v_readfirstlane_b32 s{sW}, v1")
    a(f"s_and_b32 s{sH}, s2, 7")
    a("s_lshr_b32 s3, s2, 6")
    a("s_lshl_b32 s3, s3, 3")
    a(f"s_add_u32 s{sH}, s{sH}, s3")
    a(f"s_bfe_u32 s{sP}, s2, 0x30003")
    a(f"s_lshr_b32 s{sG}, s{sW}, 2")
    a("v_lshrrev_b32 v24, 3, v0")
    a("v_and_b32 v25, 7, v0")
    a("v_lshrrev_b32 v26, 4, v0")
    a("v_xor_b32 v25, v25, v26")
    a("v_lshlrev_b32 v25, 4, v25")
    a("v_xor_b32 v27, 64, v25")
    a(f"v_lshl_add_u32 v{vCD}, v24, 10, v25")
    a(f"v_lshl_add_u32 v{vCD+1}, v24, 10, v27")
    a(f"v_add_u32 v{vCD+1}, {8192-1024}, v{vCD+1}")
    a(f"v_add_u32 v{vCD+2}, {2*(8192-1024)}, v{vCD}")
    a(f"v_add_u32 v{vCD+3}, {2*(8192-1024)}, v{vCD+1}")
    a("v_and_b32 v28, 15, v0")
    a("v_lshlrev_b32 v29, 1, v26")
    a("v_xor_b32 v28, v28, v29")
    a("v_lshlrev_b32 v28, 4, v28")
    a(f"v_lshl_add_u32 v{vWD}, v26, 13, v28")
    a(f"v_add_u32 v{vWD+1}, {4*8192-1024}, v{vWD}")
    a(f"v_xor_b32 v{vWD+2}, 128, v{vWD}")
    a(f"v_add_u32 v{vWD+2}, {2*(4*8192-1024)}, v{vWD+2}")
    a(f"v_add_u32 v{vWD+3}, {4*8192-1024}, v{vWD+2}")
    a(f"s_and_b32 s{sRB}, s{sW}, 3")
    a(f"s_lshl_b32 s{sCO}, s{sP}, 18")
    a(f"s_lshl_b32 s{sT}, s{sW}, 15")
    a(f"s_add_u32 s{sCO}, s{sCO}, s{sT}")
    a(f"s_lshl_b32 s{sWO}, s{sRB}, 17")
    a(f"s_lshl_b32 s{sT}, s{sH}, 8")
    a(f"s_add_u32 s{sWO}, s{sWO}, s{sT}")
    a(f"s_lshl_b32 s{sM0C}, s{sW}, 12")
    a(f"s_add_u32 s{sM0W}, s{sM0C}, 65536")
    a("s_waitcnt lgkmcnt(0)")
    srd(a, S_C, 44, 45, 2 * MB)
    a(f"s_cmp_eq_u32 s{sG}, 0")
    a(f"s_cselect_b32 s{S_W}, s48, s50")
    a(f"s_cselect_b32 s{S_W+1}, s49, s51")
    a(f"s_mov_b32 s{S_W+2}, {4*MB}")
    a(f"s_mov_b32 s{S_W+3}, 0x00020000")
    def kv_dma(st):
        buf = (st & 1) * 32768
        tg = ("kv", st)
        out = [[f"s_add_u32 m0, s{sM0C}, {buf}", f"s_add_u32 s{sT}, s{sCO}, {st*128}",
                (f"buffer_load_dwordx4 v{vCD}, {S4(S_C)}, s{sT} offen lds", tg)]]
        for i in range(1, 4): out.append([(f"buffer_load_dwordx4 v{vCD+i}, {S4(S_C)}, s{sT} offen offset:{i*1024} lds", tg)])
        out.append([f"s_add_u32 m0, s{sM0W}, {buf}", f"s_add_u32 s{sT}, s{sWO}, {st*64*8192}",
                    (f"buffer_load_dwordx4 v{vWD}, {S4(S_W)}, s{sT} offen lds", tg)])
        for i in range(1, 4): out.append([(f"buffer_load_dwordx4 v{vWD+i}, {S4(S_W)}, s{sT} offen offset:{i*1024} lds", tg)])
        return out
    def emit(items):
        for it in items:
            for x in it:
                if isinstance(x, tuple): a(x[0]); vm.add(x[1])
                else: a(x)
    emit(kv_dma(0))
    a(f"s_load_dwordx2 s[44:45], s[0:1], {KA['A_q']}")
    a(f"s_load_dwordx2 s[46:47], s[0:1], {KA['w_q']}")
    a(f"s_load_dwordx4 s[48:51], s[0:1], {KA['dbg']}")
    a(f"s_load_dwordx4 s[{PT}:{PT+3}], s[0:1], {KA['A_k']}")
    a(f"s_load_dwordx4 s[{PT+4}:{PT+7}], s[0:1], {KA['shift']}")
    a(f"s_load_dwordx4 s[{PT+8}:{PT+11}], s[0:1], {KA['w_o']}")
    a(f"v_lshlrev_b32 v{vL16}, 4, v0")
    a("v_mul_u32_u24 v28, 1280, v24")
    a(f"v_add_u32 v{vXD}, v28, v25")
    a(f"v_add_u32 v{vXD+1}, v28, v27")
    a(f"v_add_u32 v{vXD+1}, {8*1280-1024}, v{vXD+1}")
    a(f"v_add_u32 v{vXD+2}, {2*(8*1280-1024)}, v{vXD}")
    a(f"v_add_u32 v{vXD+3}, {2*(8*1280-1024)}, v{vXD+1}")
    a(f"s_and_b32 s3, s{sW}, 1")
    a("s_lshl_b32 s3, s3, 7")
    a(f"v_xor_b32 v{vQW}, s3, v{vWD}")
    a(f"v_add_u32 v{vQW+1}, {4*8192-1024}, v{vQW}")
    emit(kv_dma(1))
    vPF, vPFW, vSC = 116, 115, 117
    if 'nopf' not in OPT:
        a(f"v_lshlrev_b32 v{vPF}, 7, v0")
        a("v_lshrrev_b32 v24, 1, v0")
        a("v_and_b32 v25, 1, v0")
        a("v_lshlrev_b32 v25, 7, v25")
        a(f"v_lshl_add_u32 v{vPFW}, v24, 13, v25")
        a("s_lshl_b32 s3, s2, 13")
        a(f"s_lshl_b32 s{sT}, s{sW}, 10")
        a(f"s_add_u32 s3, s3, s{sT}")
        a("s_mov_b64 exec, 0xff")
        emit([[(f"buffer_load_dword v{vSC}, v{vPF}, {S4(S_C)}, s3 offen sc1", "pf")]])
        if 'nopf2' not in OPT:
            a(f"s_lshl_b32 s3, s{sP}, 2")
            a(f"s_add_u32 s3, s3, s{sRB}")
            a(f"s_mul_i32 s3, s3, {6*8192}")
            a(f"s_lshl_b32 s{sT}, s{sH}, 8")
            a(f"s_add_u32 s3, s3, s{sT}")
            a(f"s_add_u32 s3, s3, {128*8192}")
            a(f"s_add_u32 s{sNB}, s3, {192*8192}")
            a("s_mov_b32 exec_lo, 0xfff")
            pf2 = [["s_mov_b64 exec, 0xfff", (f"buffer_load_dword v{vSC}, v{vPFW}, {S4(S_W)}, s{sNB} offen sc1", "pf"), "s_mov_b64 exec, -1"]]
        else:
            a(f"s_lshl_b32 s3, s{sP}, 19")
            a(f"s_add_u32 s3, s3, s{sWO}")
            a("s_mov_b32 exec_lo, -1")
        emit([[(f"buffer_load_dword v{vSC}, v{vPFW}, {S4(S_W)}, s3 offen sc1", "pf")]])
        a("s_mov_b64 exec, -1")
    def frag_addrs(vR, rowoff_sgpr, vWa, nt_sgpr, wbase_sgpr):
        a("v_and_b32 v24, 15, v0")
        a("v_lshrrev_b32 v25, 4, v0")
        a("v_bfe_u32 v26, v0, 1, 3")
        a("v_xor_b32 v26, v26, v25")
        a("v_lshlrev_b32 v26, 4, v26")
        a("v_lshl_add_u32 v26, v24, 7, v26")
        a(f"v_add_u32 v{vR}, s{rowoff_sgpr}, v26")
        a(f"v_xor_b32 v{vR+1}, 64, v{vR}")
        a("v_bfe_u32 v24, v0, 2, 2")
        a("v_lshl_add_u32 v26, v25, 3, v24")
        a("v_lshlrev_b32 v26, 8, v26")
        a("v_and_b32 v27, 3, v0")
        a("v_lshl_add_u32 v26, v27, 3, v26")
        a(f"v_add_u32 v26, s{wbase_sgpr}, v26")
        a("v_and_b32 v25, 1, v25")
        a("v_lshl_add_u32 v24, v25, 2, v24")
        a(f"v_xor_b32 v24, s{nt_sgpr}, v24")
        for nt in range(4):
            a(f"v_xor_b32 v25, {nt}, v24")
            a(f"v_lshl_add_u32 v{vWa+nt}, v25, 5, v26")
    a(f"s_and_b32 s{sT}, s{sW}, 1")
    a(f"s_lshl_b32 s{sT}, s{sT}, 14")
    a(f"s_and_b32 s{sT2}, s{sW}, 2")
    a(f"s_lshl_b32 s{sT2}, s{sT2}, 1")
    a(f"s_lshl_b32 s3, s{sG}, 14")
    a("s_add_u32 s3, s3, 65536")
    frag_addrs(vAC, sT, vAW, sT2, 3)
    WOB = 131072
    a("v_lshrrev_b32 v24, 2, v0")
    a("v_mul_u32_u24 v24, 672, v24")
    a("v_and_b32 v25, 3, v0")
    a("v_lshl_add_u32 v24, v25, 3, v24")
    a(f"s_lshl_b32 s{sT}, s{sW}, 5")
    a(f"s_add_u32 s{sT}, s{sT}, {WOB}")
    a(f"v_add_u32 v{vWOT}, s{sT}, v24")
    KVS, TRB = 131072, 153600
    a("v_mul_u32_u24 v25, 1639, v31")
    a("v_lshrrev_b32 v25, 16, v25")
    a("v_mul_u32_u24 v26, 40, v25")
    a("v_sub_u32 v26, v31, v26")
    a("v_mul_u32_u24 v29, 1280, v25")
    a("v_lshl_add_u32 v29, v26, 2, v29")
    a(f"v_add_u32 v29, {KVS}, v29")
    a("v_and_b32 v27, 7, v26")
    a("v_xor_b32 v27, v27, v25")
    a("v_lshlrev_b32 v27, 4, v27")
    a(f"v_lshl_add_u32 v{vKVT}, v26, 8, v27")
    a(f"v_add_u32 v{vKVT}, {TRB}, v{vKVT}")
    a(f"s_and_b32 s{sT2}, s2, 7")
    a(f"s_mul_i32 s{sT}, s{sT2}, 40")
    a(f"v_add_lshl_u32 v26, v26, s{sT}, 4")
    a("v_mul_u32_u24 v25, 205, v0")
    a("v_lshrrev_b32 v25, 11, v25")
    a("v_mul_u32_u24 v27, 1120, v25")
    a("v_lshl_add_u32 v27, v0, 4, v27")
    a(f"s_lshr_b32 s{sT}, s2, 3")
    a(f"s_mul_i32 s{sT}, s{sT}, {64*1280}")
    a(f"s_mul_i32 s{sT2}, s{sT2}, 160")
    a(f"s_add_u32 s{sT}, s{sT}, s{sT2}")
    a(f"s_sub_u32 s{sT}, s{sT}, 3840")
    a(f"v_add_u32 v27, s{sT}, v27")
    a(f"v_mov_b32 v30, {OOB}")
    a("v_mul_u32_u24 v24, 20, v0")
    a("s_waitcnt lgkmcnt(0)")
    srd(a, S_WS, 50, 51, 64 * MB)
    srd(a, S_V, 50, 51, 16 * MB, WS_VF)
    srd(a, S_X, 44, 45, 2621440)
    srd(a, S_WQ, 46, 47, 5242880)
    srd(a, S_DBG, 48, 49, 256)
    a(f"s_sub_u32 s{sT}, 15, s{sP}")
    a(f"s_lshl_b32 s{sT2}, s{sRB}, 5")
    a(f"s_lshl_b32 s{sCT2}, s{sT}, 7")
    a(f"s_add_u32 s{sCT2}, s{sCT2}, s{sT2}")
    a(f"s_lshl_b32 s{sCT1}, s{sP}, 7")
    a(f"s_add_u32 s{sCT1}, s{sCT1}, s{sT2}")
    a(f"s_cmp_eq_u32 s{sG}, 0")
    a(f"s_cselect_b32 s{sROW}, s{sCT1}, s{sCT2}")
    a(f"s_mul_i32 s{sXO}, s{sROW}, 1280")
    a(f"s_lshl_b32 s{sQWO}, s{sW}, 16")
    a(f"s_lshl_b32 s{sT}, s{sH}, 8")
    a(f"s_add_u32 s{sQWO}, s{sQWO}, s{sT}")
    a(f"s_lshl_b32 s{sT}, s{sH}, 12")
    a(f"s_add_u32 s{sT}, s{sT}, {WS_CTX}")
    a(f"s_lshl_b32 s{sT2}, s{sRB}, 4")
    for c in (sCT1, sCT2):
        a(f"s_sub_u32 s{c}, s{c}, s{sT2}")
        a(f"s_mul_i32 s{c}, s{c}, {CS // 16}")
        a(f"s_add_u32 s{c}, s{c}, s{sT}")
    a(f"s_lshl_b32 s{sOB}, s{sH}, 6")
    a(f"s_lshl_b32 s{sT}, s{sP}, 3")
    a(f"s_add_u32 s{sOB}, s{sOB}, s{sT}")
    a(f"s_and_b32 s{sT}, s{sW}, 1")
    a(f"s_lshl_b32 s{sT}, s{sT}, 2")
    a(f"s_add_u32 s{sOB}, s{sOB}, s{sT}")
    a(f"s_lshl_b32 s{sOB}, s{sOB}, 13")
    a(f"s_bfe_u32 s{sT}, s{sW}, 0x10001")
    a(f"s_add_u32 s{sT2}, s{sG}, 11")
    a(f"s_lshl_b32 s{sT}, s{sT}, s{sT2}")
    a(f"s_add_u32 s{sOB}, s{sOB}, s{sT}")
    a(f"s_lshl_b32 s{sT}, s{sG}, 24")
    a(f"s_add_u32 s{sOB}, s{sOB}, s{sT}")
    a(f"s_lshl_b32 s{sN1}, s{sP}, 2")
    a(f"s_add_u32 s{sN1}, s{sN1}, 4")
    a(f"s_lshl_b32 s{sHIST[0]}, s{sH}, 19")
    a(f"s_lshl_b32 s{sT}, s{sRB}, 11")
    a(f"s_add_u32 s{sHIST[0]}, s{sHIST[0]}, s{sT}")
    a(f"s_lshl_b32 s{sM0K}, s{sW}, 11")
    a(f"s_add_u32 s{sM0V}, s{sM0K}, 65536")
    a(f"s_sub_u32 s{sT2}, s{sN1}, 4")
    a(f"s_sub_u32 s{sWRAP}, s{sN1}, 2")
    a(f"s_sub_u32 s{sWRAP}, s{sWRAP}, s{sG}")
    a(f"s_mov_b32 s{sBASE}, 8192")
    a(f"s_cmp_eq_u32 s{sG}, 0")
    a(f"s_cselect_b32 s{sMST}, s{sT2}, 99")
    a(f"s_cselect_b32 s{sN1}, s{sN1}, 100")
    a(f"s_add_u32 s{sHIST[1]}, s{sHIST[0]}, 8192")
    a(f"s_add_u32 s{sHIST[2]}, s{sHIST[0]}, 16384")
    a(f"s_mov_b64 s[{sEV}:{sEV+1}], {(127 if FUSE else 63) if 'noev' not in OPT else 64}")
    a(f"s_add_u32 s{sT}, s{sMST}, 1")
    a(f"s_lshl_b64 s[{sEV}:{sEV+1}], s[{sEV}:{sEV+1}], s{sT}")
    if SHARE:
        a(f"s_mul_i32 s{S_T}, s{sG}, 45")
        a(f"s_mov_b32 s{S_T+1}, 0")
        a(f"s_lshl_b64 s[{S_T}:{S_T+1}], s[{S_T}:{S_T+1}], s{sWRAP}")
        a(f"s_or_b64 s[{sEV}:{sEV+1}], s[{sEV}:{sEV+1}], s[{S_T}:{S_T+1}]")
        a(f"s_cmp_eq_u32 s{sG}, 0")
        a(f"s_cselect_b32 s{S_V+2}, s{S_V+2}, 0")
    a(f"s_bitset1_b64 s[{sEV}:{sEV+1}], s{sWRAP}")
    a(f"s_or_b32 s{sEV}, s{sEV}, 0x80000002")
    a(f"s_or_b32 s{sEV+1}, s{sEV+1}, 6")
    a(f"s_mov_b32 s{sTHR}, 0x40004000")
    a(f"s_mov_b32 s{S_T+3}, 0x00020000")
    if 'tlb' in OPT:
        a(f"s_lshl_b32 s{sT}, s{sW}, 2")
        a(f"s_lshr_b32 s3, 0xdba84210, s{sT}")
        a("s_and_b32 s3, s3, 15")
        a("s_lshl_b32 s3, s3, 3")
        a(f"s_load_dwordx2 s[{S_T}:{S_T+1}], s[0:1], s3")
        a(f"s_lshr_b32 s3, 0x5a8a5555, s{sT}")
        a("s_and_b32 s3, s3, 15")
        a(f"s_lshl_b32 s{S_T+2}, s3, 19")
        a("v_lshlrev_b32 v118, 20, v0")
        a("s_lshl_b32 s3, s2, 10")
        a(f"s_lshr_b32 s{sT}, s2, 3")
        a(f"s_lshl_b32 s{sT}, s{sT}, 21")
        a(f"s_lshl_b32 s{sT2}, s{sW}, 12")
        a(f"s_add_u32 s{sT}, s{sT}, s{sT2}")
        a("s_waitcnt lgkmcnt(0)")
        a("s_mov_b64 exec, 0x3f")
        emit([[(f"buffer_load_dword v{vSC}, v118, {S4(S_T)}, s3 offen sc1", "pf")]])
        a("s_mov_b64 exec, 3")
        emit([[(f"buffer_load_dword v{vSC}, v118, {S4(S_WS)}, s{sT} offen sc1", "pf")]])
        a("s_mov_b64 exec, -1")

    XB = [0, 32768, 131072]
    def q_dma_x(k):
        tg = ("q", k)
        out = [[f"s_add_u32 m0, s{sM0C}, {XB[(k+2)%3]}", f"s_add_u32 s{sT}, s{sXO}, {k*128}",
                (f"buffer_load_dwordx4 v{vXD}, {S4(S_X)}, s{sT} offen lds", tg)]]
        for i in range(1, 4): out.append([(f"buffer_load_dwordx4 v{vXD+i}, {S4(S_X)}, s{sT} offen offset:{i*1024} lds", tg)])
        return out
    def q_dma_w(k):
        tg = ("q", k)
        return [[f"s_add_u32 m0, s{sM0V}, {(k%3)*16384}", f"s_add_u32 s{sT}, s{sQWO}, {k*64*8192}",
                 (f"buffer_load_dwordx4 v{vQW}, {S4(S_WQ)}, s{sT} offen lds", tg)],
                [(f"buffer_load_dwordx4 v{vQW+1}, {S4(S_WQ)}, s{sT} offen offset:1024 lds", tg)]]
    GX, GXT, GWT, GW, KR, VR, SH = 80, 84, 85, 86, 90, 101, 110
    def tsrd(lo, size): return [f"s_mov_b32 s{S_T}, s{lo}", f"s_mov_b32 s{S_T+1}, s{lo+1}", f"s_mov_b32 s{S_T+2}, {size}"]
    def ld_wo():
        it = tsrd(PT + 8, 5242880) + [f"s_lshr_b32 s3, s2, 1", "s_lshl_b32 s3, s3, 5", f"s_lshl_b32 s{sT2}, s{sW}, 2",
              f"s_add_u32 s3, s3, s{sT2}", "s_mul_i32 s3, s3, 1280", f"s_and_b32 s{sS}, s2, 1", f"s_mul_i32 s{sS}, s{sS}, 640",
              f"s_add_u32 s3, s3, s{sS}", f"s_mul_i32 s{sT2}, s{sT2}, 672", "s_mov_b32 exec_hi, 0xff"]
        for i in range(4):
            it += [f"s_add_u32 m0, s{sT2}, {WOB+672*i}", f"s_add_u32 s{sS}, s3, {1280*i}",
                   (f"buffer_load_dwordx4 v{vL16}, {S4(S_T)}, s{sS} offen lds", "wo")]
        return [it + ["s_mov_b32 exec_hi, -1"]]
    def ld_gate():
        return [["s_lshl_b32 s3, s2, 3", f"s_add_u32 s3, s3, s{sW}", "s_mul_i32 s3, s3, 1280",
                 (f"buffer_load_dwordx4 {vr(GX,4)}, v24, {S4(S_X)}, s3 offen", "gt"),
                 (f"buffer_load_dword v{GXT}, v24, {S4(S_X)}, s3 offen offset:16", "gt")],
                tsrd(PT + 10, 1280) + [(f"buffer_load_dwordx4 {vr(GW,4)}, v24, {S4(S_T)}, 0 offen", "gt"),
                 (f"buffer_load_dword v{GWT}, v24, {S4(S_T)}, 0 offen offset:16", "gt")]]
    def ld_kv(part):
        L = []
        for i in range(3):
            isv = i == 2 or (i == 1 and part == 1)
            rows0 = 6 * 8 * i - (72 - 3 if isv else 0)
            L.append(tsrd(PT + (2 if isv else 0), 2621440) +
                     [f"s_mul_i32 s3, s{sW}, {6*1280}", f"s_add_u32 s3, s3, {rows0*1280}", "v_add_u32 v28, s3, v27",
                      f"s_mul_i32 s3, s{sW}, 960", f"s_add_u32 m0, s3, {KVS + 8*960*i}", "s_mov_b32 exec_hi, 0xfffffff",
                      (f"buffer_load_dwordx4 v28, {S4(S_T)}, 0 offen lds", "kvs"), "s_mov_b32 exec_hi, -1"])
        L.append(tsrd(PT + 4, 5120) + [(f"buffer_load_dwordx4 {vr(SH,4)}, v26, {S4(S_T)}, 0 offen", "kvs")])
        return L
    def rd_kv():
        return [[f"ds_read_b32 v{KR+j}, v29 offset:{160*j}"] for j in range(11)] + \
               [[f"ds_read_b32 v{VR+j}, v29 offset:{11520+160*j}"] for j in range(8)]
    def ld_pf():
        L = [[f"s_lshl_b32 s3, s{sP}, 3", f"s_add_u32 s3, s3, s{sW}", f"s_mul_i32 s3, s3, {10*8192}", f"s_lshl_b32 s{sT2}, s{sH}, 8",
              f"s_add_u32 s3, s3, s{sT2}", "s_mov_b64 exec, 0xfffff",
              (f"buffer_load_dword v{vPFW}, v{vPFW}, {S4(S_WQ)}, s3 offen sc1", "pfq"), "s_mov_b64 exec, -1"]]
        L.append(tsrd(PT + 6, 2621440) + ["s_lshr_b32 s3, s2, 1", "s_mul_i32 s3, s3, 5", f"s_and_b32 s{sT2}, s2, 1", f"s_mul_i32 s{sT2}, s{sT2}, 3",
                  f"s_add_u32 s3, s3, s{sT2}", f"s_add_u32 s3, s3, s{sW}", "s_lshl_b32 s3, s3, 12", f"s_cmp_ge_u32 s{sW}, 3",
                  f"s_cselect_b32 s3, {OOB}, s3", "v_lshlrev_b32 v29, 7, v0", "s_mov_b32 exec_hi, 0",
                  (f"buffer_load_dword v29, v29, {S4(S_T)}, s3 offen sc1", "pfh"), "s_mov_b32 exec_hi, -1"])
        return L

    t0, t1, t2, t3, t4 = 24, 25, 26, 27, 28
    SCF = ' sc1' if FUSE else ''
    def job_gate():
        L = [[f"v_mov_b32 v{t0}, 0"]]
        for x, w in [(GX + i, GW + i) for i in range(4)] + [(GXT, GWT)]:
            L += [[s] for s in [f"v_lshlrev_b32 v{t1}, 16, v{x}", f"v_and_b32 v{t2}, 0xffff0000, v{x}",
                                f"v_lshlrev_b32 v{t3}, 16, v{w}", f"v_and_b32 v{t4}, 0xffff0000, v{w}",
                                f"v_mul_f32 v{t1}, v{t1}, v{t3}", f"v_mul_f32 v{t2}, v{t2}, v{t4}"] + rnd_pair(t3, t1, t2, t1, t2) +
                               [f"v_add_f32 v{t0}, v{t0}, v{t1}", f"v_add_f32 v{t0}, v{t0}, v{t2}"]]
        for m in ("row_shr:1", "row_shr:2", "row_shr:4", "row_shr:8"):
            L.append([f"v_add_f32_dpp v{t0}, v{t0}, v{t0} {m} row_mask:0xf bank_mask:0xf bound_ctrl:0"])
        L.append([f"v_add_f32_dpp v{t0}, v{t0}, v{t0} row_bcast:15 row_mask:0xa bank_mask:0xf"])
        L.append([f"v_add_f32_dpp v{t0}, v{t0}, v{t0} row_bcast:31 row_mask:0xc bank_mask:0xf"])
        L += [[s] for s in rnd_pair(t1, t0, t0, t0, t2)[:2] +
              [f"v_mul_f32 v{t0}, 0xbfb8aa3b, v{t0}", f"v_exp_f32 v{t0}, v{t0}", f"v_cmp_eq_u32 vcc, 63, v0",
               f"v_add_f32 v{t0}, 1.0, v{t0}", f"v_rcp_f32 v{t0}, v{t0}", f"v_cndmask_b32 v{t2}, v30, 0, vcc"] +
              rnd_pair(t1, t0, t0, t0, t3)[:2]]
        L.append(["s_lshl_b32 s3, s2, 3", f"s_add_u32 s3, s3, s{sW}", "s_lshl_b32 s3, s3, 2", f"s_add_u32 s3, s3, {WS_G}",
                  (f"buffer_store_dword v{t0}, v{t2}, {S4(S_WS)}, s3 offen{SCF}", "pr2")])
        return L
    def job_kvt():
        L = []
        W = 80
        for c in range(2):
            for q in range(2):
                L.append([f"v_lshlrev_b32 v{W+4*c+2*q}, 16, v{SH+2*c+q}"])
                L.append([f"v_and_b32 v{W+4*c+2*q+1}, 0xffff0000, v{SH+2*c+q}"])
        KL, KH = [110, 111, 112, 113], [88, 89, 109, 114]
        def unp(j): return [f"v_lshlrev_b32 v{KL[j%4]}, 16, v{KR+j}", f"v_and_b32 v{KH[j%4]}, 0xffff0000, v{KR+j}"]
        for j in range(3): L += [[s] for s in unp(j)]
        for s in range(8):
            ops = unp(s + 3)
            ops += [f"v_mul_f32 v{t0}, v{KL[s%4]}, v{W+3}", f"v_mul_f32 v{t1}, v{KH[s%4]}, v{W+7}"]
            for j in (2, 1, 0):
                ops += [f"v_fmac_f32 v{t0}, v{KL[(s+3-j)%4]}, v{W+j}", f"v_fmac_f32 v{t1}, v{KH[(s+3-j)%4]}, v{W+4+j}"]
            ops += [f"v_lshlrev_b32 v{t3}, 16, v{VR+s}", f"v_and_b32 v{t4}, 0xffff0000, v{VR+s}"]
            if s % 2 == 0:
                ops += [f"v_mul_f32 v118, v{t0}, v{t3}", f"v_mul_f32 v119, v{t1}, v{t4}"]
            else:
                ops += [f"v_mul_f32 v{t0}, v{t0}, v{t3}", f"v_mul_f32 v{t1}, v{t1}, v{t4}",
                        f"v_cvt_pk_bf16_f32 v{120+s//2}, v118, v{t0}", f"v_cvt_pk_bf16_f32 v{124+s//2}, v119, v{t1}"]
            L += [[x] for x in ops]
        L.append([f"s_cmp_lt_u32 s{sW}, 5", "s_cselect_b64 exec, -1, 0", f"ds_write_b128 v{vKVT}, v[120:123]",
                  f"ds_write_b128 v{vKVT}, v[124:127] offset:128", "s_mov_b64 exec, -1"])
        L += [[x] for x in [f"v_lshrrev_b32 v{t2}, 3, v0", f"v_and_b32 v{t3}, 7, v0", f"v_lshrrev_b32 v{t4}, 4, v0", f"v_xor_b32 v{t4}, v{t4}, v{t3}",
                            f"v_lshlrev_b32 v{t4}, 4, v{t4}", f"v_lshl_add_u32 v{t0}, v{t2}, 7, v{t4}", f"v_lshlrev_b32 v{t3}, 4, v{t3}",
                            f"v_lshl_add_u32 v{t1}, v{t2}, 12, v{t3}"]]
        L.append([f"s_and_b32 s3, s{sW}, 1", "s_lshl_b32 s3, s3, 6", f"v_xor_b32 v{t0}, s3, v{t0}", f"s_lshl_b32 s3, s{sW}, 10",
                  f"s_add_u32 s3, s3, {TRB}", f"v_add_u32 v{t0}, s3, v{t0}"])
        return L
    def rd_post():
        L = []
        for i in range(3):
            L.append([f"ds_read_b64_tr_b16 v[{116+4*i}:{117+4*i}], v{vWOT} offset:{256*i}"])
            L.append([f"ds_read_b64_tr_b16 v[{118+4*i}:{119+4*i}], v{vWOT} offset:{256*i+16*672}"])
        return L + [[f"ds_read_b128 v[90:93], v{t0}"], [f"ds_read_b128 v[94:97], v{t0} offset:8192"]]
    def job_post():
        L = [["s_and_b32 s3, s2, 1", "s_mul_i32 s3, s3, 20", f"s_add_u32 s3, s3, s{sW}", f"s_mul_i32 s3, s3, {CS}",
              f"s_lshr_b32 s{sT2}, s2, 1", f"s_lshl_b32 s{sT2}, s{sT2}, 10", f"s_add_u32 s3, s3, s{sT2}",
              f"s_add_u32 s{sS}, s3, {WS_WOT}", (f"buffer_store_dwordx4 v[116:119], v{vL16}, {S4(S_WS)}, s{sS} offen{SCF}", "pr2")]]
        L.append([f"s_add_u32 s{sS}, s{sS}, {8*CS}", (f"buffer_store_dwordx4 v[120:123], v{vL16}, {S4(S_WS)}, s{sS} offen{SCF}", "pr2")])
        L.append([f"s_add_u32 s{sS}, s{sS}, {8*CS}", f"s_cmp_ge_u32 s{sW}, 4", f"s_cselect_b32 s{sS}, {OOB}, s{sS}",
                  (f"buffer_store_dwordx4 v[124:127], v{vL16}, {S4(S_WS)}, s{sS} offen{SCF}", "pr2")])
        L.append(["s_and_b32 s3, s2, 7", f"s_mul_i32 s3, s3, {80*4096}", f"s_lshr_b32 s{sT2}, s2, 3", f"s_lshl_b32 s{sT2}, s{sT2}, 7",
                  f"s_add_u32 s3, s3, s{sT2}", f"s_lshl_b32 s{sT2}, s{sW}, 15", f"s_add_u32 s3, s3, s{sT2}", f"s_add_u32 s{sS}, s3, {WS_KVT}",
                  (f"buffer_store_dwordx4 v[90:93], v{t1}, {S4(S_WS)}, s{sS} offen{SCF}", "pr2")])
        L.append([f"s_add_u32 s{sS}, s{sS}, {8*32768}", f"s_cmp_ge_u32 s{sW}, 2", f"s_cselect_b32 s{sS}, {OOB}, s{sS}",
                  (f"buffer_store_dwordx4 v[94:97], v{t1}, {S4(S_WS)}, s{sS} offen{SCF}", "pr2")])
        return L

    def kdma(e, tg):
        return [[f"s_add_u32 m0, s{sM0K}, {(e & 3) * 16384}", "s_nop 0",
                 (f"buffer_load_dwordx4 v{vL16}, {S4(S_K)}, s{sHIST[e&3]} offen sc1 lds", tg)],
                [(f"buffer_load_dwordx4 v{vL16}, {S4(S_K)}, s{sHIST[e&3]} offen offset:1024 sc1 lds", tg)]]
    vPOLL, vZERO, vFL = 24, 25, 26
    vCL = 31
    def only(wave, body, extra=None):
        lab = a.uid("ONLY")
        a(f"s_cmp_lg_u32 s{sW}, {wave}")
        a(f"s_cbranch_scc1 {lab}")
        if extra:
            a(extra); a(f"s_cbranch_scc1 {lab}")
        for x in body: a(x)
        a.label(lab)
    def clear_line():
        body = [f"s_lshl_b32 s3, s{sH}, 12", f"s_add_u32 s3, s3, {WS_FL2 - WS_FLG}", "v_lshl_add_u32 v116, v0, 2, s3",
                f"s_lshl_b32 s3, s{sH}, 2", f"s_add_u32 s3, s3, {WS_FL3 - WS_FLG - 16 * 4096}", "v_lshl_add_u32 v118, v0, 12, s3",
                "v_cmp_le_u32 vcc, 16, v0", "v_and_b32 v119, 7, v0", "v_lshl_add_u32 v119, v119, 3, s2", "v_cndmask_b32 v116, v116, v118, vcc",
                "v_lshrrev_b32 v118, 5, v119", "v_and_b32 v119, 31, v119", "v_lshlrev_b32 v119, 2, v119", "v_lshl_add_u32 v118, v118, 12, v119",
                "v_cmp_le_u32 vcc, 32, v0", f"v_mov_b32 v{vCL}, 0", f"s_mov_b32 s3, {WS_FLG}", "v_cndmask_b32 v116, v116, v118, vcc",
                f"buffer_store_dword v{vCL}, v116, {S4(S_WS)}, s3 offen sc1"]
        only(3, body, f"s_cmp_lg_u32 s{sP}, 0")
    def clean_set():
        only(3, ["s_mov_b64 exec, 1", "v_mov_b32 v117, 1", f"s_lshl_b32 s3, s{sH}, 2",
                 f"buffer_store_dword v117, v{vCL}, {S4(S_DBG)}, s3 offen offset:128 sc1", "s_mov_b64 exec, -1"], f"s_cmp_lg_u32 s{sP}, 0")
    def clean_issue(site):
        a(f"s_bfe_u32 s{sT2}, s2, 0x10003")
        only(2, [f"v_and_b32 v{vCL}, 31, v0", f"v_lshlrev_b32 v{vCL}, 2, v{vCL}",
                 f"buffer_load_dword v{vCL}, v{vCL}, {S4(S_DBG)}, 0 offen offset:128 sc1"], f"s_cmp_lg_u32 s{sT2}, {site}")
    def clean_check():
        lab = a.uid("CLN")
        a(f"s_cmp_lg_u32 s{sW}, 2")
        a(f"s_cbranch_scc1 {lab}D")
        a(f"s_mov_b32 s{sT2}, 0")
        a(f"s_branch {lab}C")
        a.label(lab)
        a("s_sleep 32")
        a(f"buffer_load_dword v{vCL}, v{vFL}, {S4(S_DBG)}, 0 offen offset:128 sc1")
        a("s_waitcnt vmcnt(0)")
        a.label(lab + "C")
        a(f"v_cmp_eq_u32 vcc, 0, v{vCL}")
        a(f"s_add_u32 s{sT2}, s{sT2}, 1")
        a(f"s_cbranch_vccz {lab}D")
        a(f"s_cmp_lt_u32 s{sT2}, 100000")
        a(f"s_cbranch_scc1 {lab}")
        a.label(lab + "D")
    def publish(wave, which):
        only(wave, ["s_mov_b64 exec, 1", f"v_mov_b32 v{vPOLL}, 1", f"s_lshl_b32 s3, s{sH}, 10", f"s_add_u32 s3, s3, s{sP}",
                    "s_lshl_b32 s3, s3, 2", f"s_add_u32 s3, s3, {WS_FL2 + 32 * which}",
                    f"buffer_store_dword v{vPOLL}, v{vZERO}, {S4(S_WS)}, s3 offen sc1", "s_mov_b64 exec, -1"])
    def line_addr(ctx0): return [f"s_mov_b32 s3, {WS_FL3}"] if ctx0 else [f"s_lshl_b32 s3, s{sH}, 12", f"s_add_u32 s3, s3, {WS_FL2}"]
    def poll_issue(wave, ctx0=False):
        only(wave, line_addr(ctx0) + [
                    f"buffer_load_dword v{vPOLL}, v{vFL}, {S4(S_WS)}, s3 offen sc1"])
    def poll(wave, need, vmw, ctx0=False):
        if 'nopoll' in OPT: return
        lab = a.uid("POLL")
        a(f"s_cmp_lg_u32 s{sW}, {wave}")
        a(f"s_cbranch_scc1 {lab}D")
        for x in line_addr(ctx0): a(x)
        a(f"s_mov_b32 s{sT2}, 0")
        a(f"s_waitcnt vmcnt({vmw})")
        a(f"s_branch {lab}C")
        a.label(lab)
        a(f"s_sleep {OPT.get('sleep', 8)}")
        a(f"buffer_load_dword v{vPOLL}, v{vFL}, {S4(S_WS)}, s3 offen sc1")
        a("s_waitcnt vmcnt(0)")
        a.label(lab + "C")
        a(f"v_cmp_eq_u32 vcc, 0, v{vPOLL}")
        a(f"s_add_u32 s{sT2}, s{sT2}, 1")
        a(f"s_and_b32 s{S_T}, vcc_lo, {need}")
        a(f"s_cbranch_scc0 {lab}D")
        a(f"s_cmp_lt_u32 s{sT2}, 100000")
        a(f"s_cbranch_scc1 {lab}")
        a.label(lab + "D")

    emit(ld_gate())
    if 'noipf' not in OPT:
        only(6, ["s_getpc_b64 s[80:81]" if not STAMP else "s_getpc_b64 s[100:101]",
                 "s_lshr_b32 s3, s2, 3", "s_mul_i32 s3, s3, 3072", "v_lshl_add_u32 v118, v0, 7, s3",
                 "v_min_u32 v118, CODE_SPAN, v118",
                 f"v_mov_b32 v119, s{81 if not STAMP else 101}", f"v_add_co_u32 v118, vcc, s{80 if not STAMP else 100}, v118", "v_addc_co_u32 v119, vcc, 0, v119, vcc",
                 "s_mov_b64 exec, 0xffffff", "global_load_dword v120, v[118:119], off sc1", "s_mov_b64 exec, -1"])
        a.label("M_IPF")
    a(f"s_waitcnt vmcnt({vm.wait(('kv', 0))})")
    a("s_barrier")
    sp.mark("kv0")
    a(f"s_cmp_lg_u32 s{sG}, 0")
    a("s_cbranch_scc1 M_KVV")
    vm0 = list(vm.tags)
    spn = sp.n
    vAX, vAQ, vST = 2, 6, 10
    QA = 128
    PK = lambda z: (240 + 4 * z) if z < 4 else (80 + 4 * (z - 4))
    endwait = []
    for part in range(2):
        if part: a.label("M_KVV")
        vm.tags = list(vm0)
        sp.n = spn
        S = Stream(a, vm, dist=int(OPT.get('kd', 12)), per_gap=int(OPT.get('kpg', 2)), bar_delay=int(OPT.get('kbd', 3)))
        S.fill_rate = float(OPT.get('fr', 2.0))
        S.la = int(OPT.get('kla', 1)); S.ustep = int(OPT.get('kus', 1))
        rl = []
        for st in range(8):
            buf = (st & 1) * 32768
            for u in range(2):
                x = 2 * st + u
                for nt in range(4):
                    for hf in range(2):
                        rg = WFR[x & 1] + 4 * nt + 2 * hf
                        rl.append((32 * x + nt - 6, ("w", x, nt, hf),
                                   f"ds_read_b64_tr_b16 {vr(rg,2)}, v{vAW+nt} offset:{buf+u*8192+hf*1024}", rg, st))
                for kt in range(8):
                    rg = CFR + 4 * (kt % int(OPT.get('kring', 4)))
                    rl.append((32 * x + 4 * kt, ("c", x, kt), f"ds_read_b128 {vr(rg,4)}, v{vAC+u} offset:{buf+kt*2048}", rg, st))
                    for nt in range(4):
                        idx = kt * 4 + nt if part == 0 else ((kt >> 1) * 4 + nt) * 2 + (kt & 1)
                        acc = vr(ACC + 4 * idx, 4)
                        w, c = vr(WFR[x & 1] + 4 * nt, 4), vr(rg, 4)
                        cin = "0" if x == 0 else acc
                        S.op(f"{MFMA16} {acc}, {w}, {c}, {cin}" if part == 0 else f"{MFMA16} {acc}, {c}, {w}, {cin}",
                             [("w", x, nt, 0), ("w", x, nt, 1), ("c", x, kt)])
            sh = int(OPT.get('sh', 0))
            after = kv_dma(st + 2) if st < 6 else []
            if st == 5 and sh == 0: after = after + q_dma_x(0)
            if st == 6: after = (q_dma_x(0) if sh else []) + q_dma_w(0) + q_dma_x(1) + q_dma_w(1)
            if st == 7: after = q_dma_x(2) + q_dma_w(2)
            pad = [[] for _ in range(int(OPT.get('stag', 14)) if part == 1 else 0)]
            tags = [("kv", st + 1)] if st < 7 else [("q", 0)]
            pre = None
            if st == 0 and 'nopf2' not in OPT: after = after + pf2
            if st == sh - 1: after = after + ld_kv(part)
            if st == 1: tags += ["gt"]
            if st == 1 + sh:
                tags += ["kvs"]
                if part: pad = rd_kv()
                else: after = after + rd_kv()
            if st == 2: tags += ["pf"]
            if st == 2 + sh: after = after + ld_wo()
            if st == int(OPT.get('pfst', 4)): after = after + ld_pf()[:1]
            if st == int(OPT.get('hst', 6)): after = after + ld_pf()[1:]
            if st == 7: tags += ["pfq"]
            if st == 4 + sh:
                tags += ["wo"]
                pre = lambda: (chk.append(1), a("s_waitcnt lgkmcnt(0)"))
                if part: pad = rd_post() + pad[8:]
                else: after = after + rd_post()
            after = pad + after
            if part == 0:
                if st == 0: after = after + [clear_line]
                if st == 2: after = [clean_set] + after
                if st in (4, 5): after = after + [lambda st=st: clean_issue(st - 4)]
            after = [lambda st=st: sp.mark(f"k{st}")] + after
            S.barrier_after_stage(st, tags, after, pre)
        rl.sort(key=lambda r: (r[4], r[0]))
        for r in rl: S.read(r[1], r[2], r[3], r[4], r[0])
        chk = []
        def before_b4(): assert not chk, "kvT job too late"
        if sh == 0:
            for i, it in enumerate(ld_kv(part)): S.timed.append((int(OPT.get('kvp', 2)) + 3 * i, it, 48))
        for it in job_gate(): S.filler(2 * 64 - 8, 1, it)
        for it in job_kvt(): S.filler((3 + sh) * 64 - 10 - 30 * sh, 1, it)
        S.filler(0, 0, before_b4)
        for i, it in enumerate(job_post()):
            S.filler((5 + sh) * 64 + 16 + 7 * part + int(OPT.get('pstep', 30 - 10 * sh)) * i, 1, it)
        S.run([0])
        sp.mark("kv")
        a(f"s_lshr_b32 s{sT}, s{sW}, 1")
        a(f"s_lshl_b32 s{sT}, s{sT}, 13")
        a(f"s_and_b32 s{sT2}, s{sW}, 1")
        a(f"s_lshl_b32 s{sT2}, s{sT2}, 2")
        a("s_mov_b32 s3, 65536")
        frag_addrs(vAX, sT, vAQ, sT2, 3)
        a(f"v_add_u32 v{vAX+2}, 131072, v{vAX}")
        a(f"v_add_u32 v{vAX+3}, 131072, v{vAX+1}")
        S = Stream(a, vm, dist=int(OPT.get('qd', 10)), per_gap=2, bar_delay=int(OPT.get('qbd', 3)))
        S.fill_rate = 1.0
        S.la = int(OPT.get('qla', 1)); S.ustep = int(OPT.get('qus', 1))
        rl = []
        EARLYV = 'latev' not in OPT
        KPUB, VPUB = int(OPT.get('kpub', 4)), int(OPT.get('vpub', 8 if EARLYV else 9))
        for k in range(10):
            xb = XB[(k + 2) % 3]
            for u in range(2):
                x = 2 * k + u
                for nt in range(4):
                    for hf in range(2):
                        rg = WFR[x & 1] + 4 * nt + 2 * hf
                        rl.append((16 * x + nt - 5, ("w", x, nt, hf),
                                   f"ds_read_b64_tr_b16 {vr(rg,2)}, v{vAQ+nt} offset:{(k%3)*16384+u*8192+hf*1024}", rg, k))
                for qi in range(4):
                    rg = CFR + 4 * qi
                    av = vAX + u + (2 if xb == 131072 else 0)
                    rl.append((16 * x + 4 * qi, ("c", x, qi), f"ds_read_b128 {vr(rg,4)}, v{av} offset:{(xb%131072)+qi*2048}", rg, k))
                    for nt in range(4):
                        acc = vr(QA + 4 * (qi * 4 + nt), 4)
                        S.op(f"{MFMA16} {acc}, {vr(WFR[x&1]+4*nt,4)}, {vr(rg,4)}, {'0' if x == 0 else acc}",
                             [("w", x, nt, 0), ("w", x, nt, 1), ("c", x, qi)])
            tags, after, pre = [("q", k + 1)], [], None
            if k + 3 <= 9: after = q_dma_x(k + 3) + q_dma_w(k + 3)
            if k == 0 and part == 0: pre = clean_check
            if k == KPUB: tags.append("pr2")
            if k == KPUB and part == 0: tags.append("st"); after = [lambda: publish(0, 0)] + after
            KP = int(OPT.get('kpoll', 7))
            if k == KP - 1 and part == 0: after = [lambda: (poll_issue(1), vm.add("mark"), vm.ghost.add("mark"))] + after
            if k == KP:
                if part == 0: pre = lambda: poll(1, 1, vm.wait("mark"))
                after = [[f"s_mov_b32 s{S_K}, s{S_WS}", f"s_mov_b32 s{S_K+1}, s{S_WS+1}", f"s_mov_b32 s{S_K+2}, s{S_V+2}"]] + kdma(0, "k0") + kdma(1, "k0")
            if k == 8: after = after + kdma(2, "k2")
            if k == 9: tags = []
            if k == VPUB and part == 1: tags.append("st"); after = [lambda: publish(4, 1)] + after
            if k == 9 and part == 1 and EARLYV: after = after + [lambda: poll_issue(5)]
            if part == 1: after = [[] for _ in range(int(OPT.get('qstag', 0)))] + after
            after = [lambda k=k: sp.mark(f"q{k}")] + after
            S.barrier_after_stage(k, tags, after, pre)
        rl.sort(key=lambda r: (r[4], r[0]))
        for r in rl: S.read(r[1], r[2], r[3], r[4], r[0])
        npre = 10
        for r in rl[:npre]: a(r[2])
        a(f"v_add_u32 v{vST}, {4096 >> part}, v{vL16}")
        a(f"v_mov_b32 v{vZERO}, 0")
        a(f"v_and_b32 v{vFL}, 31, v0")
        a(f"v_lshlrev_b32 v{vFL}, 2, v{vFL}")
        for z in list(range(4, 16)) + list(range(4)):
            for e in range(4):
                a(f"v_cvt_pk_bf16_f32 v{PK(z)+e}, v{ACC+8*z+2*e}, v{ACC+8*z+2*e+1}")
        SC = " " + OPT.get('stsc', 'sc1').replace('_', ' ')
        st0, stp = (2, int(OPT.get('stp', 5))) if part == 0 else (int(OPT.get('vst', 84)), int(OPT.get('stpv', 8)))
        for z in range(16 if 'nost' not in OPT else 1):
            j, c = z >> 2, z & 3
            S.filler(st0 + stp * z, 1, [f"s_add_u32 s3, s{sOB}, {j*8192}",
                     (f"buffer_store_dwordx4 {vr(PK(z),4)}, v{vST if c >> 1 else vL16}, {S4(S_WS)}, s3 offen offset:{(c&1)*1024}{SC}", "st")])
        S.run([0], preissued=npre)
        endwait.append(vm.wait("k0"))
        if part == 0: a("s_branch M_KVD")
    a.label("M_KVD")
    sp.mark("q")
    vKA, vVA, vD0, vQ2, vNINF, vTA, vX0, T = 2, 3, 4, 5, 8, 9, 10, 16
    FK, FV, P, SS, O, Q, NEGM, ONES, LS = 28, 60, [92, 100], [108, 124], 140, 204, 236, 244, 248
    BIAS = 12.0
    a(f"s_mov_b32 s{sT}, {f32hex(1.4426950408889634 * 128 ** -0.5)}")
    a(f"s_lshr_b32 s{sT2}, s{sW}, 1")
    a(f"s_lshl_b32 s{sT2}, s{sT2}, 14")
    a(f"s_and_b32 s3, s{sW}, 1")
    a("s_lshl_b32 s3, s3, 11")
    a(f"s_add_u32 s{sT2}, s{sT2}, s3")
    a(f"s_add_u32 s{sT2}, s{sT2}, 98304")
    a(f"v_add_u32 v6, s{sT2}, v{vL16}")
    a(f"s_lshl_b32 s{sT2}, s{sG}, 15")
    a(f"s_lshl_b32 s3, s{sRB}, 12")
    a(f"s_add_u32 s{sT2}, s{sT2}, s3")
    a(f"s_add_u32 s{sT2}, s{sT2}, 98304")
    a(f"v_add_u32 v{vQ2}, s{sT2}, v{vL16}")
    a(f"s_lshl_b32 s{sWO}, s{sG}, 13")
    if SHARE: a(f"v_mov_b32 v{vKA}, v{vL16}")
    else: a(f"v_add_u32 v{vKA}, s{sWO}, v{vL16}")
    a(f"v_add_u32 v{vVA}, 65536, v{vKA}")
    for f in range(8):
        for e in range(4):
            r = QA + 8 * f + 2 * e
            a(f"v_mul_f32 v{r}, s{sT}, v{r}")
            a(f"v_mul_f32 v{r+1}, s{sT}, v{r+1}")
            a(f"v_cvt_pk_bf16_f32 v{Q+4*f+e}, v{r}, v{r+1}")
        a(f"ds_write_b128 v6, {vr(Q+4*f,4)} offset:{(f>>1)*4096+(f&1)*1024}")
    a("v_and_b32 v7, 15, v0")
    a("v_lshrrev_b32 v8, 4, v0")
    a(f"s_lshl_b32 s{sT}, s{sRB}, 4")
    a(f"v_add_u32 v{vD0}, s{sT}, v7")
    a("v_lshlrev_b32 v8, 2, v8")
    a(f"v_sub_u32 v{vD0}, v{vD0}, v8")
    a(f"v_mov_b32 v{vNINF}, 0xff800000")
    for r in range(8): a(f"v_mov_b32 v{NEGM+r}, 0")
    for r in range(4): a(f"v_mov_b32 v{ONES+r}, 0x3f803f80")
    poll(5, 0x101, 0)
    a(f"s_waitcnt vmcnt({min(endwait)}) lgkmcnt(0)")
    a("s_barrier")
    sp.mark("qx")
    def kread(e, t): return f"ds_read_b128 {vr(FK+4*t,4)}, v{vKA} offset:{(e&3)*16384+t*1024}"
    def vread(e, i): return f"ds_read_b128 {vr(FV+4*i,4)}, v{vVA} offset:{(e&3)*16384+i*1024}"
    def qread(extra): return [f"ds_read_b128 {vr(Q+4*f,4)}, v{vQ2} offset:{extra+(f>>2)*16384+(f&3)*1024}" for f in range(8)]
    for x in qread(0): a(x)
    for i in range(8): a(kread(0, i))
    a(f"s_mov_b32 s{sS}, 0")
    a("s_waitcnt lgkmcnt(0)")

    handlers = []
    def xreduce(op, x, tmp):
        a(f"v_mov_b32 v{tmp}, v{x}")
        a(f"v_permlane16_swap_b32 v{x}, v{tmp}")
        a(f"{op} v{x}, v{x}, v{tmp}")
        a(f"v_mov_b32 v{tmp}, v{x}")
        a(f"v_permlane32_swap_b32 v{x}, v{tmp}")
        a(f"{op} v{x}, v{x}, v{tmp}")
    def rowmax(dst, tmp, src):
        a(f"v_max3_f32 v{dst}, v{src}, v{src+1}, v{src+2}")
        a(f"v_max3_f32 v{dst}, v{dst}, v{src+3}, v{src+4}")
        a(f"v_max3_f32 v{dst}, v{dst}, v{src+5}, v{src+6}")
        a(f"v_max_f32 v{dst}, v{dst}, v{src+7}")
        xreduce("v_max_f32", dst, tmp)
    def sm_ops(Sc, Pw, hi_only=False):
        f = []
        def post(q):
            f.append((1, [f"v_cvt_pk_bf16_f32 v{Pw+q//2}, v{T+q%8}, v{T+(q+1)%8}"]))
            k = q // 2
            if hi_only:
                if k == 7:
                    f.append((1, [f"v_or3_b32 v{vTA}, v{Pw+4}, v{Pw+5}, v{Pw+6}"]))
                    f.append((1, [f"v_bitop3_b32 v{vTA}, v{vTA}, v{Pw+7}, s{sTHR} bitop3:0xa8"]))
                return
            if k == 3: f.append((1, [f"v_or3_b32 v{vTA}, v{Pw}, v{Pw+1}, v{Pw+2}"]))
            if k == 5: f.append((1, [f"v_or3_b32 v{vTA}, v{vTA}, v{Pw+3}, v{Pw+4}"]))
            if k == 7:
                f.append((1, [f"v_or3_b32 v{vTA}, v{vTA}, v{Pw+5}, v{Pw+6}"]))
                f.append((1, [f"v_bitop3_b32 v{vTA}, v{vTA}, v{Pw+7}, s{sTHR} bitop3:0xa8"]))
        r0 = 8 if hi_only else 0
        for r in range(r0, 16):
            f.append((2, [f"v_exp_f32 v{T+r%8}, v{Sc+r}"]))
            if r % 2 == 1 and r >= r0 + 3: post(r - 3)
        post(14)
        return f
    def store_ctx(qis, sct, obase):
        n = 0
        for qi in qis:
            for u in range(4):
                d = T + (n % 2) * 4
                n += 1
                src = obase(qi) + 8 * u
                for e in range(4): a(f"v_cvt_pk_bf16_f32 v{d+e}, v{src+2*e}, v{src+2*e+1}")
                if u == 0 and qi == 1 and len(qis) == 2: a(f"s_add_u32 s{sct}, s{sct}, {4*CS}")
                a(f"buffer_store_dwordx4 {vr(d,4)}, v{vL16}, {S4(S_WS)}, s{sct} offen offset:{u*1024}{' sc1' if FUSE else ''}")

    sX = sROW
    def slot(j, name, qk=True, sm=True, pv=True, nxt=True, dma=True, last=False, prebar=None, fresh=False, fast=None, hi=""):
        par = j & 1
        Sc, Sn, Pw, Pr = SS[1 - par], SS[par], P[1 - par], P[par]
        if fast:
            a.label(name + "_GO")
            handlers.append(("entry", name))
            handlers.append(("ev", name, Sc))
        else:
            a.label(name)
            if sm or pv:
                a(f"s_bitcmp1_b64 s[{sEV}:{sEV+1}], s{sS}")
                a(f"s_cbranch_scc1 {name}_EV")
                a.label(name + "_GO")
                handlers.append(("ev", name, Sc))
        ms = []
        if qk:
            for t in range(8):
                kt, u = t >> 2, t & 3
                mm = []
                for qi in range(1 if "q" in hi else 0, 2):
                    d = vr(Sn + 8 * qi + 4 * kt, 4)
                    mm.append(f"{MFMA16} {d}, {vr(FK+4*t,4)}, {vr(Q+16*qi+4*u,4)}, {vr(NEGM+4*qi,4) if u == 0 else d}")
                ms.append(mm)
        if pv:
            for i in range(8):
                mm = []
                for qi in range(1 if "p" in hi else 0, 2):
                    o = vr(O + 32 * qi + 4 * i, 4)
                    mm.append(f"{MFMA16} {o}, {vr(FV+4*i,4)}, {vr(Pr+4*qi,4)}, {'0' if fresh else o}")
                if i == 3:
                    for qi in range(1 if "p" in hi else 0, 2):
                        mm.append(f"{MFMA16} {vr(LS+4*qi,4)}, {vr(ONES,4)}, {vr(Pr+4*qi,4)}, {'0' if fresh else vr(LS+4*qi,4)}")
                ms.append(mm)
        n = len(ms)
        pre = [[] for _ in range(n)]; post = [[] for _ in range(n)]
        if qk and pv:
            for i in range(8): post[i // 2].append(vread(j - 2, i))
            K0 = int(OPT.get('k0', 4))
            if nxt:
                for t in range(8): post[K0 + t].append(kread(j + 1, t))
            pre[8].append(f"s_waitcnt lgkmcnt({(8 - K0) if nxt else 0})")
        elif qk:
            if nxt:
                for t in range(8): post[t].append(kread(j + 1, t))
        else:
            for i in range(8): a(vread(j - 2, i))
            for i in range(0, 8, 2): pre[i].append(f"s_waitcnt lgkmcnt({6 - i})")
        if dma and not ('nodma' in OPT and fast):
            h0, h1 = sHIST[(j + 3) & 3], sHIST[(j + 2) & 3]
            dp = [int(x) for x in OPT.get('dp', '4,6,9,11').split(',')] if n == 16 else [1, 3, 5, 7]
            pre[dp[0]].insert(0, f"s_add_u32 m0, s{sM0V}, {(j & 3) * 16384}")
            post[dp[0]].append(f"buffer_load_dwordx4 v{vL16}, {S4(S_V)}, s{sHIST[j&3]} offen sc1 lds")
            post[dp[1]].append(f"buffer_load_dwordx4 v{vL16}, {S4(S_V)}, s{sHIST[j&3]} offen offset:1024 sc1 lds")
            pre[dp[2]] = [f"s_add_u32 m0, s{sM0K}, {((j + 3) & 3) * 16384}", f"s_add_u32 s{h0}, s{h1}, s{sBASE}"] + pre[dp[2]]
            post[dp[2]].append(f"buffer_load_dwordx4 v{vL16}, {S4(S_K)}, s{h0} offen sc1 lds")
            post[dp[3]].append(f"buffer_load_dwordx4 v{vL16}, {S4(S_K)}, s{h0} offen offset:1024 sc1 lds")
        if fast: post[12] += [f"s_add_u32 s{sS}, s{sS}, 1", f"s_bitcmp1_b64 s[{sEV}:{sEV+1}], s{sS}", f"s_cselect_b32 s{sX}, 1, 0"]
        groups = []
        for m in range(n):
            for k, x in enumerate(ms[m]):
                groups.append((pre[m] if k == 0 else [], x, post[m] if k == len(ms[m]) - 1 else []))
        fl = sm_ops(Sc, Pw, "s" in hi) if (sm and 'nosm' not in OPT) else []
        if fast: fl.append((1, [f"v_cmp_ne_u32 vcc, s{sX}, v{vTA}"]))
        elif sm: fl.append((1, [f"v_cmp_ne_u32 vcc, 0, v{vTA}"]))
        interleave(a, groups, fl, max(len(groups) - 3, 1))
        if fast:
            if fast == "AT_L2":
                a("s_cbranch_vccz AT_TOP")
                a(f"s_branch {name}_SP")
            else:
                a(f"s_cbranch_vccnz {name}_SP")
                a("s_waitcnt vmcnt(4) lgkmcnt(0)")
                if 'nobar' not in OPT: a("s_barrier")
            handlers.append(("special", name, fast))
            handlers.append(("slow", name, Sc, Sn, Pw))
            return
        if sm:
            a(f"s_cbranch_vccnz {name}_SLOW")
            a.label(name + "_RET")
            handlers.append(("slow", name, Sc, Sn, Pw))
        if not last:
            a(f"s_add_u32 s{sS}, s{sS}, 1")
            if prebar: prebar()
            a(f"s_waitcnt vmcnt({4 if dma else 0}) lgkmcnt(0)")
            a("s_barrier")

    slot(0, "AT_S0", sm=False, pv=False)
    sp.mark("s0")
    slot(1, "AT_S1", pv=False)
    sp.mark("s1")
    poll_issue(2)
    slot(2, "AT_S2", prebar=lambda: poll(2, 0xffff, 4), fresh=True)
    sp.mark("s2")
    a("s_branch AT_L3")
    a(".p2align 6")
    a.label("AT_TOP")
    a("s_waitcnt vmcnt(4) lgkmcnt(0)")
    if 'nobar' not in OPT: a("s_barrier")
    slot(2, "AT_L2", fast="AT_L3"); slot(3, "AT_L3", fast="AT_L0"); slot(0, "AT_L0", fast="AT_L1"); slot(1, "AT_L1", fast="AT_L2")
    a.label("AT_P33")
    sp.mark("s32")
    if FUSE: poll_issue(6, True)
    HI = 'nohi' not in OPT
    slot(1, "AT_S33", nxt=False, prebar=(lambda: poll(6, -1, 4, True)) if FUSE else None, hi="q" if HI else "")
    slot(2, "AT_S34", qk=False, nxt=False, dma=False, hi="s" if HI else "")
    if FUSE and 'lateconv' not in OPT:
        for x in tsrd(PT + 6, 2621440): a(x)
        gen_tail.conv_dma(a, {k: v for k, v in globals().items() if not k.startswith("__") and k != "gen_tail"}, sW, S_WS, S_T, sT, sT2, 3, sCO, vL16, 6, 7,
                          98304, "AT_S35", " sc1")
    slot(3, "AT_S35", qk=False, sm=False, nxt=False, dma=False, last=True, hi="p" if HI else "")
    sp.mark("s35")
    X0, X1, X2, X3, X4, X5 = range(vX0, vX0 + 6)
    MA0, MA1, MA2, MA3, MT = FK, FK + 1, FK + 2, FK + 3, FK + 4
    a(f"s_mul_i32 s{sT}, s{sW}, {8192+512}")
    a(f"s_xor_b32 s{sT2}, s{sW}, 4")
    a(f"s_mul_i32 s{sT2}, s{sT2}, {8192+512}")
    a(f"v_add_u32 v{MA0}, s{sT}, v{vL16}")
    a(f"v_add_u32 v{MA1}, s{sT2}, v{vL16}")
    a(f"v_lshlrev_b32 v{MA2}, 3, v0")
    a(f"v_add_u32 v{MA3}, s{sT2}, v{MA2}")
    a(f"v_add_u32 v{MA2}, s{sT}, v{MA2}")
    a(f"s_cmp_eq_u32 s{sG}, 0")
    a("s_cbranch_scc1 AT_MA")
    for gsel in (1, 0):
        if gsel == 0: a.label("AT_MA")
        own, snd = O + 32 * gsel, O + 32 * (1 - gsel)
        a(f"v_mov_b32 v{X4}, v{NEGM+4*(1-gsel)}")
        a(f"v_mov_b32 v{X5}, v{LS+4*(1-gsel)}")
        a(f"ds_write_b64 v{MA2}, v[{X4}:{X5}] offset:8192")
        for q in range(8): a(f"ds_write_b128 v{MA0}, {vr(snd+4*q,4)} offset:{1024*q}")
        if gsel: a(f"s_add_u32 s{sCT2}, s{sCT2}, {4*CS}")
        a("s_waitcnt lgkmcnt(0)")
        a("s_barrier")
        a(f"ds_read_b64 v[{X2}:{X3}], v{MA3} offset:8192")
        for q in range(8): a(f"ds_read_b128 {vr(snd+4*q,4)}, v{MA1} offset:{1024*q}")
        a("s_waitcnt lgkmcnt(8)")
        a(f"v_min_f32 v{vTA}, v{NEGM+4*gsel}, v{X2}")
        a(f"v_sub_f32 v{X0}, v{vTA}, v{NEGM+4*gsel}")
        a(f"v_sub_f32 v{X2}, v{vTA}, v{X2}")
        a(f"v_exp_f32 v{X0}, v{X0}")
        a(f"v_exp_f32 v{X2}, v{X2}")
        a(f"v_mul_f32 v{vTA}, v{LS+4*gsel}, v{X0}")
        a(f"v_fmac_f32 v{vTA}, v{X3}, v{X2}")
        a(f"v_rcp_f32 v{vTA}, v{vTA}")
        a(f"v_mul_f32 v{X0}, v{X0}, v{vTA}")
        a(f"v_mul_f32 v{X2}, v{X2}, v{vTA}")
        for u in range(4):
            for r in range(8 * u, 8 * u + 8): a(f"v_mul_f32 v{own+r}, v{own+r}, v{X0}")
            a(f"s_waitcnt lgkmcnt({6-2*u})")
            for r in range(8 * u, 8 * u + 8): a(f"v_fmac_f32 v{own+r}, v{snd+r}, v{X2}")
            for e in range(4): a(f"v_cvt_pk_bf16_f32 v{MT+4*u+e}, v{own+8*u+2*e}, v{own+8*u+2*e+1}")
            a(f"buffer_store_dwordx4 {vr(MT+4*u,4)}, v{vL16}, {S4(S_WS)}, s{sCT2} offen offset:{u*1024}{' sc1' if FUSE else ''}")
        if gsel: a("s_branch AT_MB")
    a.label("AT_MB")
    if FUSE:
        sp.mark("att")
        gen_tail.gen_tail(a, {k: v for k, v in globals().items() if not k.startswith("__") and k != "gen_tail"}, dict(sW=sW, sH=sH, sP=sP, sp=sp))
    elif STAMP:
        a("s_waitcnt vmcnt(0)")
        sp.mark("end")
        a("s_waitcnt lgkmcnt(0)")
        sp.flush(100, sW, 0, slot=0); sp.flush(100, sW, 4, slot=1)
    a.label("M_END")
    a("s_endpgm")
    for hd in handlers:
        if hd[0] == "entry":
            name = hd[1]
            a.label(name)
            a(f"s_bitcmp1_b64 s[{sEV}:{sEV+1}], s{sS}")
            a(f"s_cbranch_scc0 {name}_GO")
        elif hd[0] == "special":
            _, name, nx = hd
            a.label(name + "_SP")
            a(f"v_cmp_ne_u32 vcc, 0, v{vTA}")
            a(f"s_cbranch_vccnz {name}_SLOW")
            a.label(name + "_RET")
            a("s_waitcnt vmcnt(4) lgkmcnt(0)")
            if 'nobar' not in OPT: a("s_barrier")
            if nx == "AT_L1":
                a(f"s_cmp_eq_u32 s{sS}, 33")
                a("s_cbranch_scc1 AT_P33")
            a(f"s_branch {nx}")
        elif hd[0] == "ev":
            _, name, Sc = hd
            a.label(name + "_EV")
            a(f"s_cmp_eq_u32 s{sS}, s{sWRAP}")
            a(f"s_cselect_b32 s{sBASE}, 16384, s{sBASE}")
            if SHARE:
                a(f"s_cselect_b32 s{S_K+2}, {16*MB}, s{S_K+2}")
                a(f"s_sub_u32 s{sT}, s{sS}, s{sWRAP}")
                a(f"s_cmp_eq_u32 s{sT}, 3")
                a(f"s_cselect_b32 s{S_V+2}, {16*MB}, s{S_V+2}")
                a(f"s_cmp_eq_u32 s{sT}, 2")
                a(f"s_cselect_b32 s{sT2}, s{sWO}, 0")
                a(f"v_add_u32 v{vKA}, s{sT2}, v{vKA}")
                a(f"s_cmp_eq_u32 s{sT}, 5")
                a(f"s_cselect_b32 s{sT2}, s{sWO}, 0")
                a(f"v_add_u32 v{vVA}, s{sT2}, v{vVA}")
            a(f"s_cmp_eq_u32 s{sS}, 31")
            a(f"s_cselect_b32 s{S_K+2}, 0, s{S_K+2}")
            a(f"s_sub_u32 s{sT}, s{sS}, s{sN1}")
            a(f"s_cmp_lg_u32 s{sT}, 2")
            a(f"s_cbranch_scc1 {name}_E1")
            a(f"v_rcp_f32 v{vX0}, v{LS}")
            a(f"v_rcp_f32 v{vX0+1}, v{LS+4}")
            for r in range(8): a(f"v_mov_b32 v{LS+r}, 0")
            for r in range(64): a(f"v_mul_f32 v{O+r}, v{O+r}, v{vX0+(r>>5)}")
            store_ctx((0, 1), sCT1, lambda qi: O + 32 * qi)
            for r in range(64): a(f"v_mov_b32 v{O+r}, 0")
            a.label(name + "_E1")
            if FUSE:
                only(0, ["s_mov_b64 exec, 1", f"v_mov_b32 v{vX0}, 1", f"s_lshl_b32 s3, s{sP}, 10", f"s_add_u32 s3, s3, s{sH}", "s_lshl_b32 s3, s3, 2",
                         f"s_add_u32 s3, s3, {WS_FL3}", f"buffer_store_dword v{vX0}, v{vZERO}, {S4(S_WS)}, s3 offen sc1", "s_mov_b64 exec, -1"],
                     f"s_cmp_lg_u32 s{sT}, 3")
            a(f"s_cmp_lg_u32 s{sT}, 0")
            a(f"s_cbranch_scc1 {name}_E2")
            for x in qread(32768): a(x)
            for r in range(8): a(f"v_mov_b32 v{NEGM+r}, 0")
            a("s_waitcnt lgkmcnt(0)")
            a.label(name + "_E2")
            a(f"s_sub_u32 s{sT2}, s{sS}, s{sMST}")
            a(f"s_sub_u32 s{sT2}, s{sT2}, 1")
            a(f"s_cmp_lt_u32 s{sT2}, 4")
            a(f"s_cbranch_scc1 {name}_EM")
            a(f"s_cmp_lt_u32 s{sS}, 33")
            a(f"s_cbranch_scc1 {name}_E3")
            a(f"s_sub_u32 s{sT2}, s{sS}, 33")
            a(f"s_lshl_b32 s{sT2}, s{sT2}, 1")
            a(f"s_add_u32 s{sT2}, s{sT2}, s{sG}")
            a.label(name + "_EM")
            a(f"s_lshl_b32 s{sT2}, s{sT2}, 5")
            a(f"v_subrev_u32 v{vX0}, s{sT2}, v{vD0}")
            a(f"v_add_u32 v{vX0+1}, 64, v{vX0}")
            for qi in range(2):
                for kt in range(2):
                    for e in range(4):
                        a(f"v_cmp_le_i32 s[{sMK+2*e}:{sMK+2*e+1}], {16*kt+e}, v{vX0+qi}")
                    for e in range(4):
                        r = Sc + 8 * qi + 4 * kt + e
                        a(f"v_cndmask_b32 v{r}, v{vNINF}, v{r}, s[{sMK+2*e}:{sMK+2*e+1}]")
            a.label(name + "_E3")
            a(f"s_cmp_eq_u32 s{sT}, 1")
            a(f"s_cbranch_scc1 {name}_E4")
            a(f"s_cmp_lg_u32 s{sS}, 1")
            a(f"s_cbranch_scc1 {name}_GO")
            a.label(name + "_E4")
            for qi in range(2):
                rowmax(vX0 + qi, vX0 + 2 + qi, Sc + 8 * qi)
                a(f"v_add_f32 v{vX0+qi}, {f32hex(BIAS)}, v{vX0+qi}")
            for r in range(8): a(f"v_sub_f32 v{NEGM+r}, v{NEGM+r}, v{vX0+(r>>2)}")
            for r in range(16): a(f"v_sub_f32 v{Sc+r}, v{Sc+r}, v{vX0+(r>>3)}")
            a(f"s_branch {name}_GO")
        else:
            _, name, Sc, Sn, Pw = hd
            a.label(name + "_SLOW")
            for qi in range(2):
                rowmax(vX0 + qi, vX0 + 2 + qi, Sc + 8 * qi)
                a(f"v_add_f32 v{vX0+qi}, {f32hex(BIAS)}, v{vX0+qi}")
                a(f"v_max_f32 v{vX0+qi}, 0, v{vX0+qi}")
                a(f"v_exp_f32 v{vX0+2+qi}, -v{vX0+qi}")
            for r in range(8): a(f"v_sub_f32 v{NEGM+r}, v{NEGM+r}, v{vX0+(r>>2)}")
            for r in range(16): a(f"v_sub_f32 v{Sn+r}, v{Sn+r}, v{vX0+(r>>3)}")
            for r in range(16): a(f"v_sub_f32 v{Sc+r}, v{Sc+r}, v{vX0+(r>>3)}")
            for r in range(64): a(f"v_mul_f32 v{O+r}, v{O+r}, v{vX0+2+(r>>5)}")
            for r in range(8): a(f"v_mul_f32 v{LS+r}, v{LS+r}, v{vX0+2+(r>>2)}")
            for c, ops in sm_ops(Sc, Pw):
                for x in ops: a(x)
            a(f"s_branch {name}_RET")
    a.label("M_LAST")
    a("s_endpgm")
    return dict(name="gated_mix__ssm_conv_h3__compressed_kv_cla__prompt_kernel" if FUSE else "main_kernel", grid=256, block=512, lds=163840, vgpr=256)

import gen as G1
G1.STAMP = False
KERNELS = {"main": gen_main, "conv": G1.gen_conv, "oproj": G1.gen_oproj, "tail": lambda a: gen_tail.gen_tail(a, {k: v for k, v in globals().items() if not k.startswith("__") and k != "gen_tail"})}

def build(names, path, verbose=False):
    hdr = open("gated_mix__ssm_conv_h3__compressed_kv_cla__prompt.s.ref").read().split("\n")
    hdr = [l for l in hdr if l.startswith(";") and "@launch" not in l and "Override" not in l and "grid=ceil" not in l]
    codes, descs, launches = [], [], []
    for n in names:
        a = Asm()
        info = KERNELS[n](a)
        k = fix_hazards(a.lines, verbose)
        print(f"{n}: {len(a.lines)} lines, {k} nops inserted")
        c, d = kernel_text(info["name"], a.lines, info["vgpr"], extra="  .amdhsa_float_denorm_mode_32 3\n")
        codes.append(c); descs.append(d)
        kn = "" if "plain" in OPT else f"kernel={info['name']} "
        launches.append(f"; @launch {kn}grid=({info['grid']},1,1) block=({info['block']},1,1) lds={info['lds']}")
    txt = "\n".join(hdr + launches) + '\n.amdgcn_target "amdgcn-amd-amdhsa--gfx950"\n.text\n' + "\n".join(codes) + \
          '\n.section .rodata,"a"\n' + "\n".join(descs)
    if "CODE_SPAN" in txt: txt = txt.replace("CODE_SPAN", str(int(OPT.get("ipf", 77000))))
    open(path, "w").write(txt)

if __name__ == "__main__":
    names = sys.argv[2].split(",") if len(sys.argv) > 2 else list(KERNELS)
    build(names, sys.argv[1] if len(sys.argv) > 1 else "k2.s", verbose="-v" in sys.argv)
```

```python
CHB_ = 4 * 4160 + 512 + 4096
KVB_ = 4 * 4160 + 512
def conv_dma(a, E, sW, S_WS, S_H, s1, s2_, s3_, s4_, vL16, va, vb, CB, skip, SC):
    globals().update(E)
    a(f"s_sub_u32 s{s1}, s{sW}, 4")
    a(f"s_and_b32 s{s2_}, s2, 1")
    a(f"s_sub_u32 s{s3_}, 3, s{s2_}")
    a(f"s_cmp_ge_u32 s{s1}, s{s3_}")
    a(f"s_cbranch_scc1 {skip}")
    a(f"s_lshr_b32 s{s3_}, s2, 1")
    a(f"s_mul_i32 s{s3_}, s{s3_}, 5")
    a(f"s_mul_i32 s{s2_}, s{s2_}, 3")
    a(f"s_add_u32 s{s3_}, s{s3_}, s{s2_}")
    a(f"s_add_u32 s{s3_}, s{s3_}, s{s1}")
    a(f"s_mul_i32 s{s4_}, s{s1}, {CHB_}")
    a(f"s_add_u32 s{s4_}, s{s4_}, {CB}")
    a(f"s_lshl_b32 s{s1}, s{s3_}, 12")
    a(f"s_mul_i32 s{s2_}, s{s3_}, {RS}")
    a(f"s_add_u32 s{s2_}, s{s2_}, {WS_KVT}")
    a(f"s_add_u32 m0, s{s4_}, {KVB_}")
    a(f"v_add_u32 v{va}, s{s1}, v{vL16}")
    for i in range(4): a(f"buffer_load_dwordx4 v{vL16}, {S4(S_WS)}, s{s2_} offen offset:{1024*i}{SC} lds")
    for rr in range(4):
        if rr: a(f"v_subrev_u32 v{va}, 2, v{va}")
        a(f"v_add_u32 v{vb}, 1024, v{va}")
        a(f"s_add_u32 m0, s{s4_}, {rr*4160+64}")
        a(f"buffer_load_dwordx4 v{va}, {S4(S_H)}, 0 offen lds")
        a(f"s_add_u32 m0, s{s4_}, {rr*4160+64+1024}")
        for i in range(3): a(f"buffer_load_dwordx4 v{vb}, {S4(S_H)}, 0 offen offset:{1024*i} lds")

def gen_tail(a, E, fused=None):
    globals().update(E)
    SC = ' sc1' if fused else ''
    S_WS, S_X, S_OUT, S_H, S_D, S_DBG = 4, 8, 12, 16, 20, 24
    sW, sT, sT2, sMT, sNT, sKO, sCH, sLB, sNC = range(28, 37)
    NS = int(OPT.get('ns', 4))
    vB, ST, ACC = 4, 32, 176
    RB = 0
    YB = 61440
    CNT = YB + 10240
    CB = 98304
    CHB = 4 * 4160 + 512 + 4096
    RDY = CNT + 64
    sPUB = 37
    if fused:
        sp = fused["sp"]
        a(f"s_sub_u32 s{sPUB+1}, 15, s{fused['sP']}")
        a(f"s_lshl_b32 s{sPUB+1}, s{sPUB+1}, 12")
        a(f"s_lshl_b32 s{sPUB}, s{fused['sH']}, 2")
        a(f"s_add_u32 s{sPUB}, s{sPUB}, s{sPUB+1}")
        a(f"s_add_u32 s{sPUB}, s{sPUB}, {WS_FL3}")
        a(f"s_mov_b32 s{sW}, s{fused['sW']}")
    else:
        sp = Stamps(a, base=70, region=1)
        a("s_cmp_ge_u32 s2, 256")
        a("s_cbranch_scc1 T_END")
        sp.mark("start")
    for d, k in ((S_WS, 'ws'), (S_X, 'A_q'), (S_OUT, 'out'), (S_H, 'ssm_k'), (S_D, 'ssm_D'), (S_DBG, 'dbg')):
        a(f"s_load_dwordx2 s[{d}:{d+1}], s[0:1], {KA[k]}")
    if not fused:
        a("v_lshrrev_b32 v1, 6, v0")
        a("v_and_b32 v0, 63, v0")
        a(f"v_readfirstlane_b32 s{sW}, v1")
    omap = int(OPT.get('omap', 1))
    if omap == 0:
        a(f"s_and_b32 s{sMT}, s2, 7")
        a(f"s_lshl_b32 s{sMT}, s{sMT}, 2")
        a(f"s_bfe_u32 s{sT}, s2, 0x20003")
        a(f"s_add_u32 s{sMT}, s{sMT}, s{sT}")
        a(f"s_lshr_b32 s{sNT}, s2, 5")
    elif omap == 1:
        a(f"s_and_b32 s{sMT}, s2, 3")
        a(f"s_lshl_b32 s{sMT}, s{sMT}, 3")
        a(f"s_bfe_u32 s{sT}, s2, 0x30003")
        a(f"s_add_u32 s{sMT}, s{sMT}, s{sT}")
        a(f"s_and_b32 s{sNT}, s2, 4")
        a(f"s_lshr_b32 s{sT}, s2, 6")
        a(f"s_add_u32 s{sNT}, s{sNT}, s{sT}")
    else:
        a(f"s_and_b32 s{sMT}, s2, 1")
        a(f"s_lshl_b32 s{sMT}, s{sMT}, 4")
        a(f"s_bfe_u32 s{sT}, s2, 0x40003")
        a(f"s_add_u32 s{sMT}, s{sMT}, s{sT}")
        a(f"s_and_b32 s{sNT}, s2, 6")
        a(f"s_lshr_b32 s{sT}, s2, 7")
        a(f"s_add_u32 s{sNT}, s{sNT}, s{sT}")
    a("v_lshlrev_b32 v1, 4, v0")
    for d, sz in ((S_WS, 64 * MB), (S_X, 2621440), (S_OUT, 2621440), (S_H, 2621440), (S_D, 1280), (S_DBG, 256)):
        a(f"s_mov_b32 s{d+2}, {sz}")
        a(f"s_mov_b32 s{d+3}, 0x00020000")
    a(f"s_cmp_ge_u32 s{sW}, 4")
    a("s_cbranch_scc1 T_SIDE")
    a(f"s_mul_i32 s{sT}, s{sMT}, {4*CS}")
    a(f"s_add_u32 s{sT}, s{sT}, {WS_CTX}")
    a(f"v_add_u32 v{vB}, s{sT}, v1")
    for i in range(1, 4): a(f"v_add_u32 v{vB+i}, {i*CS}, v{vB}")
    a(f"s_mul_i32 s{sT}, s{sNT}, {5*CS}")
    a(f"s_add_u32 s{sT}, s{sT}, {WS_WOT}")
    a(f"v_add_u32 v{vB+4}, s{sT}, v1")
    for j in range(1, 5): a(f"v_add_u32 v{vB+4+j}, {j*CS}, v{vB+4}")
    a(f"s_lshl_b32 s{sKO}, s{sW}, 15")
    a("s_waitcnt lgkmcnt(0)")
    vm = VM()
    KO = [sKO, 38]
    a(f"s_add_u32 s{KO[1]}, s{KO[0]}, 4096")
    def load(ks, n):
        base = ST + (ks % NS) * 36
        return f"buffer_load_dwordx4 {vr(base+4*n,4)}, v{vB+n}, {S4(S_WS)}, s{KO[(ks//4)&1]} offen offset:{(ks%4)*1024}{SC}"
    def emit(x, tag):
        a(x); vm.add(tag)
    if fused:
        NW = int(OPT.get('nw', 4))
        a("s_waitcnt vmcnt(0)")
        a("s_barrier")
        sp.mark("tb")
        a(f"v_mov_b32 v2, {RDY}")
        a("ds_read_b32 v3, v2")
        for ks in range(NW):
            for n in range(4, 9): emit(load(ks, n), ks)
        if 'wpf' in OPT:
            assert omap == 1
            a("v_lshrrev_b32 v2, 3, v0")
            a(f"v_mul_u32_u24 v2, {CS}, v2")
            a("v_and_b32 v3, 7, v0")
            a("v_lshl_add_u32 v2, v3, 7, v2")
            a(f"s_lshr_b32 s{sT}, s2, 3")
            a(f"s_lshl_b32 s{sT}, s{sT}, 2")
            a(f"s_add_u32 s{sT}, s{sT}, s{sW}")
            a(f"s_lshl_b32 s{sT}, s{sT}, 10")
            a(f"s_and_b32 s{sT2}, s2, 4")
            a(f"s_mul_i32 s{sT2}, s{sT2}, {5*CS}")
            a(f"s_add_u32 s{sT}, s{sT}, s{sT2}")
            a(f"s_add_u32 s{sT}, s{sT}, {WS_WOT}")
            for i in range(3):
                if i == 2: a("s_mov_b32 exec_hi, 0")
                emit(f"buffer_load_dword v15, v2, {S4(S_WS)}, s{sT} offen sc1", "wpf")
                if i < 2: a(f"s_add_u32 s{sT}, s{sT}, {8*CS}")
            a("s_mov_b32 exec_hi, -1")
        a(f"s_mov_b32 s{sT2}, 0")
        a("s_branch T_RDY1")
        a.label("T_RDY")
        a("s_sleep 2")
        a("ds_read_b32 v3, v2")
        a.label("T_RDY1")
        a("s_waitcnt lgkmcnt(0)")
        a(f"v_readfirstlane_b32 s{sT}, v3")
        a(f"s_add_u32 s{sT2}, s{sT2}, 1")
        a(f"s_cmp_lg_u32 s{sT}, 0")
        a("s_cbranch_scc1 T_RDY2")
        a(f"s_cmp_lt_u32 s{sT2}, 4000000")
        a("s_cbranch_scc1 T_RDY")
        a.label("T_RDY2")
        for ks in range(NS):
            if ks >= NW:
                for n in range(4, 9): emit(load(ks, n), ks)
            for n in range(4): emit(load(ks, n), ks)
    else:
        for ks in range(NS):
            for n in range(9): emit(load(ks, n), ks)
        a("s_barrier")
    a("v_and_b32 v2, 15, v0")
    a("v_lshrrev_b32 v3, 4, v0")
    a(f"s_lshl_b32 s{sT}, s{sMT}, 6")
    a(f"s_lshl_b32 s{sT2}, s{sW}, 4")
    a(f"s_add_u32 s{sT}, s{sT}, s{sT2}")
    a(f"v_add_u32 v2, s{sT}, v2")
    a("v_mul_u32_u24 v13, 1280, v2")
    a("v_lshl_add_u32 v13, v3, 3, v13")
    a(f"s_mul_i32 s{sT}, s{sNT}, 160")
    a(f"v_add_u32 v13, s{sT}, v13")
    a("v_lshlrev_b32 v2, 2, v2")
    AC = lambda i, j: ACC + (i * 5 + j) * 4
    assert NS == 4
    for ks in range(32):
        base = ST + (ks % NS) * 36
        a(f"s_waitcnt vmcnt({vm.wait(ks)})")
        if ks == 0: sp.mark("t0")
        sp.mark(f"o{ks}")
        if ks % 4 == 0 and ks: a(f"s_add_u32 s{KO[(ks//4+1)&1]}, s{KO[(ks//4+1)&1]}, 8192")
        if ks == int(OPT.get('ksig', 27)):
            a(f"v_mov_b32 v26, {CNT}")
            a("v_mov_b32 v27, 4")
            a("s_mov_b64 exec, 1")
            a("ds_add_u32 v26, v27")
            a("s_mov_b64 exec, -1")
        for j in range(5):
            for i in range(4):
                acc = vr(AC(i, j), 4)
                a(f"{MFMA16} {acc}, {vr(base+16+4*j,4)}, {vr(base+4*i,4)}, {'0' if ks == 0 else acc}")
                if ks + NS < 32:
                    if i == 3: emit(load(ks + NS, 4 + j), ks + NS)
                    if j == 4: emit(load(ks + NS, i), ks + NS)
                elif ks + NS == 32 and i == 3:
                    emit(f"buffer_load_dwordx2 {vr(16+2*j,2)}, v13, {S4(S_X)}, 0 offen offset:{32*j}", "x")
                    if j == 0:
                        a(f"s_mov_b32 s{sT}, {WS_G}")
                        emit(f"buffer_load_dword v14, v2, {S4(S_WS)}, s{sT} offen{SC}", "x")
    sp.mark("t1")
    for i in range(4):
        lab = a.uid("TSK")
        a(f"s_cmp_eq_u32 s{sW}, {i}")
        a(f"s_cbranch_scc1 {lab}")
        a(f"s_sub_u32 s{sT}, s{sW}, {i+1}")
        a(f"s_and_b32 s{sT}, s{sT}, 3")
        a(f"s_mul_i32 s{sT}, s{sT}, 5120")
        a(f"v_add_u32 v4, s{sT}, v1")
        for j in range(5): a(f"ds_write_b128 v4, {vr(AC(i,j),4)} offset:{RB+i*15360+j*1024}")
        a(f"s_branch {lab}N")
        a.label(lab)
        for r in range(20): a(f"v_mov_b32 v{32+(r>>2)*16+12+(r&3)}, v{AC(i,0)+r}")
        a.label(lab + "N")
    a(f"s_mul_i32 s{sT}, s{sW}, 15360")
    a(f"v_add_u32 v5, s{sT}, v1")
    a("v_lshrrev_b32 v7, 2, v0")
    a("v_lshlrev_b32 v7, 7, v7")
    a("v_and_b32 v8, 3, v0")
    a("v_lshl_add_u32 v7, v8, 3, v7")
    a(f"s_lshl_b32 s{sT}, s{sW}, 5")
    a(f"s_add_u32 s{sT}, s{sT}, {YB}")
    a(f"v_add_u32 v7, s{sT}, v7")
    a("s_waitcnt vmcnt(0) lgkmcnt(0)")
    a("s_barrier")
    sp.mark("t2")
    for j in range(5):
        for src in range(3):
            a(f"ds_read_b128 {vr(32+(j*4+src)*4,4)}, v5 offset:{RB+src*5120+j*1024}")
        a(f"ds_read_b64_tr_b16 {vr(112+2*j,2)}, v7 offset:{j*2048}")
    a("v_sub_f32 v15, 1.0, v14")
    for x in rnd_pair(26, 15, 15, 15, 27): a(x)
    for j in range(5):
        a(f"s_waitcnt lgkmcnt({min(15, 4*(4-j))})")
        b = 32 + j * 16
        for r in range(4):
            a(f"v_add_f32 v{b+r}, v{b+r}, v{b+4+r}")
            a(f"v_add_f32 v{b+8+r}, v{b+8+r}, v{b+12+r}")
        for r in range(4): a(f"v_add_f32 v{b+r}, v{b+r}, v{b+8+r}")
        for hf in range(2):
            L = rnd_pair(26, b + 2 * hf, b + 2 * hf + 1, b + 4, b + 5)
            L += [f"v_mul_f32 v{b+4}, v15, v{b+4}", f"v_mul_f32 v{b+5}, v15, v{b+5}"] + rnd_pair(26, b + 4, b + 5, b + 4, b + 5)
            L += [f"v_lshlrev_b32 v{b+6}, 16, v{16+2*j+hf}", f"v_and_b32 v{b+7}, 0xffff0000, v{16+2*j+hf}",
                  f"v_lshlrev_b32 v{b+8}, 16, v{112+2*j+hf}", f"v_and_b32 v{b+9}, 0xffff0000, v{112+2*j+hf}",
                  f"v_mul_f32 v{b+6}, v{b+6}, v{b+8}", f"v_mul_f32 v{b+7}, v{b+7}, v{b+9}"] + rnd_pair(26, b + 6, b + 7, b + 6, b + 7)
            L += [f"v_mul_f32 v{b+6}, v14, v{b+6}", f"v_mul_f32 v{b+7}, v14, v{b+7}"] + rnd_pair(26, b + 6, b + 7, b + 6, b + 7)
            L += [f"v_add_f32 v{b+6}, v{b+6}, v{b+4}", f"v_add_f32 v{b+7}, v{b+7}, v{b+5}",
                  f"v_cvt_pk_bf16_f32 v{b+12+hf}, v{b+6}, v{b+7}"]
            for x in L: a(x)
        a(f"buffer_store_dwordx2 {vr(b+12,2)}, v13, {S4(S_OUT)}, 0 offen offset:{32*j} {OPT.get('outsc', '').replace('_', ' ')}")
    if STAMP:
        a("s_waitcnt vmcnt(0)"); sp.mark("end"); a("s_waitcnt lgkmcnt(0)")
        sp.flush(100, sW, 0, slot=0); sp.flush(100, sW, 3, slot=1) if fused else None
    a("s_endpgm")
    a.label("T_SIDE")
    a("s_setprio 3")
    a("s_waitcnt lgkmcnt(0)")
    a(f"s_and_b32 s{sNC}, s2, 1")
    a(f"s_sub_u32 s{sNC}, 3, s{sNC}")
    a(f"s_cmp_lg_u32 s{sW}, 7")
    a("s_cbranch_scc1 T_CONV")
    a(f"v_mov_b32 v2, {CNT}")
    a("v_mov_b32 v3, 0")
    a("ds_write_b32 v2, v3")
    if fused:
        a("v_and_b32 v6, 31, v0")
        a("v_lshlrev_b32 v6, 2, v6")
        a(f"s_lshr_b32 s3, s{sMT}, 1")
        a("s_lshl_b32 s3, s3, 12")
        a(f"s_add_u32 s3, s3, {WS_FL3}")
        a("v_mov_b32 v4, 1")
        if 'epoll' in OPT:
            a(f"buffer_load_dword v5, v6, {S4(S_WS)}, s3 offen sc1")
            a("s_waitcnt vmcnt(0)")
            a("v_cmp_eq_u32 vcc, 0, v5")
            a("s_cmp_eq_u64 vcc, 0")
            a(f"s_cselect_b32 s{sT2}, 1, 0")
        else: a(f"s_mov_b32 s{sT2}, 0")
        a(f"v_mov_b32 v7, s{sT2}")
        a("ds_write_b32 v2, v7 offset:64")
    a("s_waitcnt vmcnt(0) lgkmcnt(0)")
    a("s_barrier")
    if fused:
        a("s_mov_b64 exec, 1")
        a(f"buffer_store_dword v4, v3, {S4(S_WS)}, s{sPUB} offen sc1")
        a("s_mov_b64 exec, -1")
        a("v_mov_b32 v3, v6")
        a(f"s_cmp_eq_u32 s{sT2}, 1")
        a("s_cbranch_scc1 T_CP3")
        a("s_branch T_CP1")
        a.label("T_CP")
        a(f"s_sleep {OPT.get('csleep', 8)}")
        a.label("T_CP1")
        a(f"buffer_load_dword v5, v3, {S4(S_WS)}, s3 offen sc1")
        a("s_waitcnt vmcnt(0)")
        a("v_cmp_eq_u32 vcc, 0, v5")
        a(f"s_add_u32 s{sT2}, s{sT2}, 1")
        a("s_cbranch_vccz T_CP2")
        a(f"s_cmp_lt_u32 s{sT2}, 100000")
        a("s_cbranch_scc1 T_CP")
        a.label("T_CP2")
        a("ds_write_b32 v2, v4 offset:64")
        a.label("T_CP3")
    a("v_lshrrev_b32 v2, 3, v0")
    a("v_and_b32 v4, 7, v0")
    a("v_lshlrev_b32 v4, 4, v4")
    a(f"v_mul_u32_u24 v2, {RS}, v2")
    a("v_add_u32 v2, v2, v4")
    a(f"s_lshl_b32 s3, s{sNT}, 12")
    a(f"s_add_u32 s3, s3, {WS_FLG}")
    a("v_and_b32 v3, 31, v0")
    a("v_lshlrev_b32 v3, 2, v3")
    a(f"s_mov_b32 s{sT2}, 0")
    a(f"v_mov_b32 v6, {CNT}")
    a.label("T_LPOLL")
    a("s_sleep 8")
    a("ds_read_b32 v5, v6")
    a("s_waitcnt lgkmcnt(0)")
    a(f"v_readfirstlane_b32 s{sT}, v5")
    a(f"s_add_u32 s{sT2}, s{sT2}, 1")
    a(f"s_cmp_ge_u32 s{sT}, {OPT.get('nsig', 16)}")
    a("s_cbranch_scc1 T_POLL1")
    a(f"s_cmp_lt_u32 s{sT2}, 100000")
    a("s_cbranch_scc1 T_LPOLL")
    a.label("T_POLL")
    a(f"s_sleep {OPT.get('tsleep', 24)}")
    a.label("T_POLL1")
    a(f"buffer_load_dword v5, v3, {S4(S_WS)}, s3 offen sc1")
    a("s_waitcnt vmcnt(0)")
    a("v_cmp_eq_u32 vcc, 0, v5")
    a(f"s_add_u32 s{sT2}, s{sT2}, 1")
    a("s_cbranch_vccz T_POK")
    a(f"s_cmp_lt_u32 s{sT2}, 100000")
    a("s_cbranch_scc1 T_POLL")
    a.label("T_POK")
    a(f"s_mul_i32 s{sT}, s{sNT}, {80*RS}")
    a(f"s_lshl_b32 s{sT2}, s{sMT}, 7")
    a(f"s_add_u32 s{sT}, s{sT}, s{sT2}")
    a(f"s_add_u32 s{sT}, s{sT}, {WS_Y2T}")
    for i in range(10):
        a(f"s_mov_b32 m0, {YB + 1024*i}")
        if i: a(f"s_add_u32 s{sT}, s{sT}, {8*RS}")
        a(f"buffer_load_dwordx4 v2, {S4(S_WS)}, s{sT} offen sc1 lds")
    a("s_waitcnt vmcnt(0)")
    a("s_barrier")
    a("s_endpgm")
    a.label("T_CONV")
    a(f"s_sub_u32 s{sT}, s{sW}, 4")
    a(f"s_cmp_ge_u32 s{sT}, s{sNC}")
    a("s_cbranch_scc1 T_WEND")
    a(f"s_lshr_b32 s{sCH}, s2, 1")
    a(f"s_mul_i32 s{sCH}, s{sCH}, 5")
    a(f"s_and_b32 s{sT2}, s2, 1")
    a(f"s_mul_i32 s{sT2}, s{sT2}, 3")
    a(f"s_add_u32 s{sCH}, s{sCH}, s{sT2}")
    a(f"s_add_u32 s{sCH}, s{sCH}, s{sT}")
    a(f"s_mul_i32 s{sLB}, s{sT}, {CHB}")
    a(f"s_add_u32 s{sLB}, s{sLB}, {CB}")
    KVB = KVB_
    early = fused and 'lateconv' not in OPT
    if fused and not early:
        a("s_waitcnt vmcnt(0)")
        a("s_barrier")
    if not early: conv_dma(a, E, sW, S_WS, S_H, sT, sT2, sCH, sLB, 1, 3, 4, CB, "T_WEND", SC)
    a(f"s_lshl_b32 s{sT}, s{sCH}, 12")
    a("v_mov_b32 v8, 0")
    a("v_mov_b32 v9, 0")
    a("v_lshlrev_b32 v5, 3, v0")
    a(f"v_add_u32 v6, s{sLB}, v5")
    a(f"ds_write_b64 v6, v[8:9] offset:{4*4160}")
    a("v_and_b32 v6, 7, v0")
    a("v_bfe_u32 v7, v0, 3, 2")
    a("v_lshlrev_b32 v12, 1, v6")
    a(f"buffer_load_ushort v13, v12, {S4(S_H)}, s{sT} offen")
    a(f"s_lshl_b32 s{sT}, s{sCH}, 1")
    a(f"buffer_load_ushort v14, v8, {S4(S_D)}, s{sT} offen")
    a("v_add_u32 v6, v6, v7")
    a("v_mul_u32_u24 v12, 4160, v7")
    a("v_lshl_add_u32 v12, v6, 1, v12")
    a(f"v_add_u32 v12, s{sLB}, v12")
    vA, vBq, vO = 16, 17, 15
    a("v_bfe_u32 v18, v0, 2, 2")
    a("v_mul_u32_u24 v18, 4160, v18")
    a("v_and_b32 v19, 3, v0")
    a("v_lshl_add_u32 v18, v19, 3, v18")
    a("v_lshrrev_b32 v19, 4, v0")
    a("v_lshlrev_b32 v20, 4, v19")
    a("v_sub_u32 v18, v18, v20")
    a(f"s_add_u32 s{sT}, s{sLB}, {64+32-8}")
    a(f"v_add_u32 v{vA}, s{sT}, v18")
    a("v_and_b32 v21, 15, v0")
    a("v_lshl_add_u32 v18, v21, 5, v20")
    a(f"s_add_u32 s{sT}, s{sLB}, {KVB-32-7*64}")
    a(f"v_add_u32 v{vBq}, s{sT}, v18")
    a(f"v_lshlrev_b32 v{vO}, 5, v21")
    a(f"v_lshl_add_u32 v{vO}, v19, 3, v{vO}")
    a("v_lshlrev_b32 v20, 3, v19")
    a("v_sub_u32 v20, v21, v20")
    a("v_mov_b32 v22, 0xffff")
    MK = 24
    for q in range(4):
        a(f"v_cmp_le_i32 vcc, {2*q-16}, v20")
        a(f"v_cmp_le_i32 s[40:41], {2*q+1-16}, v20")
        a(f"v_cndmask_b32 v{MK+q}, 0, v22, vcc")
        a(f"v_cndmask_b32 v{MK+q}, v{MK+q}, -1, s[40:41]")
    if early: a("s_waitcnt vmcnt(2)")
    if early or not fused: a("s_barrier")
    a("s_waitcnt vmcnt(0)")
    if fused: sp.off = True
    sp.n = 2; sp.mark("t0")
    a("v_cmp_gt_u32 vcc, 8, v6")
    a("s_and_b32 exec_lo, vcc_lo, exec_lo")
    a("s_mov_b32 exec_hi, 0")
    a("ds_write_b16 v12, v13 offset:64")
    a("s_mov_b64 exec, -1")
    a("s_setprio 0")
    FA, FB, Y = [32, 96], [64, 128], 160
    S = Stream(a, VM(), dist=14, per_gap=2)
    rl = []
    for d0 in range(8):
        s = d0 & 1
        base = 36 * d0
        n = 0
        for m in range(8):
            o = 64 * (d0 + 8 * m)
            rl.append((base + n, ("a", d0, m, 0), f"ds_read_b64_tr_b16 {vr(FA[s]+4*m,2)}, v{vA} offset:{o+8}", FA[s] + 4 * m))
            rl.append((base + n, ("a", d0, m, 1), f"ds_read_b64_tr_b16 {vr(FA[s]+4*m+2,2)}, v{vA} offset:{o}", FA[s] + 4 * m + 2))
            for c in range(8 - m):
                if m == 0: rl.append((base + n - 4, ("b", d0, c), f"ds_read_b128 {vr(FB[s]+4*c,4)}, v{vBq} offset:{512*c+64*(7-d0)}", FB[s] + 4 * c))
                acc = vr(Y + 4 * (c + m), 4)
                txt = f"{MFMA16} {acc}, {vr(FA[s]+4*m,4)}, {vr(FB[s]+4*c,4)}, {'0' if (d0 == 0 and m == 0) else acc}"
                if d0 == 0 and m == 0 and c == 0:
                    txt = "\n".join(f"v_and_b32 v{FA[0]+q}, v{FA[0]+q}, v{MK+q}" for q in range(4)) + "\n" + txt
                S.op(txt, [("a", d0, m, 0), ("a", d0, m, 1), ("b", d0, c)])
                n += 1
    rl.sort(key=lambda r: r[0])
    for r in rl: S.read(r[1], r[2], r[3], 0, r[0])
    S.run([0])
    sp.mark("t1")
    a("s_setprio 3")
    a(f"s_add_u32 s{sT}, s{sLB}, {KVB}")
    a(f"v_add_u32 v5, s{sT}, v{vO}")
    for t in range(8): a(f"ds_read_b64 {vr(32+2*t,2)}, v5 offset:{512*t}")
    a("v_lshlrev_b32 v14, 16, v14")
    a(f"s_mul_i32 s{sT}, s{sCH}, {RS}")
    a(f"s_add_u32 s{sT}, s{sT}, {WS_Y2T}")
    a("s_waitcnt lgkmcnt(0)")
    for t in range(8):
        for hf in range(2):
            r = Y + 4 * t + 2 * hf
            kvr = 32 + 2 * t + hf
            L = rnd_pair(52, r, r + 1, 50, 51)
            L += [f"v_lshlrev_b32 v53, 16, v{kvr}", f"v_and_b32 v54, 0xffff0000, v{kvr}",
                  "v_mul_f32 v53, v53, v14", "v_mul_f32 v54, v54, v14"] + rnd_pair(52, 53, 54, 53, 54)
            L += ["v_add_f32 v50, v50, v53", "v_add_f32 v51, v51, v54", f"v_cvt_pk_bf16_f32 v{64+2*t+hf}, v50, v51"]
            for x in L: a(x)
        a(f"buffer_store_dwordx2 {vr(64+2*t,2)}, v{vO}, {S4(S_WS)}, s{sT} offen offset:{512*t} sc1")
    sp.mark("t2")
    a("s_waitcnt vmcnt(0)")
    if STAMP and not fused:
        sp.mark("end"); a("s_waitcnt lgkmcnt(0)"); sp.flush(100, sW, 4, slot=1)
    a("s_mov_b64 exec, 1")
    a(f"v_mov_b32 v2, {CNT}")
    a("v_mov_b32 v3, 1")
    a("ds_add_rtn_u32 v4, v2, v3")
    a("s_waitcnt lgkmcnt(0)")
    a(f"v_readfirstlane_b32 s{sT}, v4")
    a(f"s_add_u32 s{sT}, s{sT}, 1")
    a(f"s_and_b32 s{sT}, s{sT}, 3")
    a(f"s_cmp_lg_u32 s{sT}, s{sNC}")
    a("s_cbranch_scc1 T_END")
    a("s_lshr_b32 s3, s2, 5")
    a("s_lshl_b32 s3, s3, 12")
    a(f"s_and_b32 s{sT}, s2, 31")
    a(f"s_lshl_b32 s{sT}, s{sT}, 2")
    a(f"s_add_u32 s3, s3, s{sT}")
    a(f"s_add_u32 s3, s3, {WS_FLG}")
    a(f"buffer_store_dword v3, v8, {S4(S_WS)}, s3 offen sc1")
    a.label("T_WEND")
    a("s_waitcnt vmcnt(0)")
    a.label("T_END")
    a("s_endpgm")
    return dict(name="tail_kernel", grid=256, block=512, lds=CB + 3 * CHB, vgpr=256)
```

```python
import sys, struct
from asmlib import *
from sched import *
import gen_tail

MB = 1 << 20
WS_KF, WS_VF, WS_CTX, WS_WOT, WS_KVT, WS_Y2T, WS_G = 0, 16 * MB, 32 * MB, 49 * MB, 56 * MB, 60 * MB, 63 * MB
KA = dict(A_q=0, A_k=8, A_v=16, shift=24, ssm_k=32, ssm_D=40, B_x=48, c_kv=56, w_q=64, w_uk=72, w_uv=80, w_o=88,
          gate=96, out=104, dbg=112, ws=120)
MFMA32 = "v_mfma_f32_32x32x16_bf16"
MFMA16 = "v_mfma_f32_16x16x32_bf16"
STAMP = "-stamp" in sys.argv
OPT = {x[2:].split("=")[0]: (x.split("=")[1] if "=" in x else "1") for x in sys.argv if x.startswith("--")}
WS_FLG = 63 * MB + 524288
WS_FL2 = 63 * MB + 655360
WS_FL3 = WS_FL2 + 131072
FUSE = 'nofuse' not in OPT
CS = 131072 + int(OPT.get('cspad', 1024))
RS = 4096 + int(OPT.get('rspad', 128))
OOB = "0x80000000"
def f32hex(x): return "0x%08x" % struct.unpack("<I", struct.pack("<f", x))[0]

def srd(a, d, lo, hi, size, add=0):
    if add:
        a(f"s_add_u32 s{d}, s{lo}, {add}")
        a(f"s_addc_u32 s{d+1}, s{hi}, 0")
    else:
        a(f"s_mov_b32 s{d}, s{lo}")
        a(f"s_mov_b32 s{d+1}, s{hi}")
    a(f"s_mov_b32 s{d+2}, {size}")
    a(f"s_mov_b32 s{d+3}, 0x00020000")
def S4(d): return f"s[{d}:{d+3}]"

class Stamps:
    def __init__(self, a, base=70, region=0):
        self.a, self.base, self.n, self.region = a, base, 0, region
    off = False
    def mark(self, name=""):
        if not STAMP or self.off: return
        if name not in OPT.get("marks", "start,kv,q,s1,end,t0,t1,t2").split(","): return
        assert self.base + 2 * self.n + 3 <= 101
        self.a(f"s_memtime s[{self.base+2*self.n}:{self.base+2*self.n+1}]")
        self.a(f"s_memrealtime s[{self.base+2*self.n+2}:{self.base+2*self.n+3}]")
        self.n += 2
    def flush(self, wg, sW, wave, slot=0):
        if not STAMP: return
        a = self.a
        lab = a.uid("STK")
        a(f"s_cmp_lg_u32 s{sW}, {wave}")
        a(f"s_cbranch_scc1 {lab}")
        if 'dbgstamp' in OPT:
            if slot:
                a.label(lab); return
            a(f"s_cmp_lg_u32 s2, {OPT['dbgstamp']}")
            a(f"s_cbranch_scc1 {lab}")
            a(f"s_load_dwordx2 s[60:61], s[0:1], {KA['dbg']}")
            a("s_waitcnt lgkmcnt(0)")
            a("s_mov_b32 s62, 64")
            a("s_mov_b32 s63, 0x00020000")
            a("v_mov_b32 v1, 0")
            for i in range(self.n - 1, 1, -1): a(f"s_sub_u32 s{self.base+2*i}, s{self.base+2*i}, s{self.base+2*i-4}")
        else:
            a(f"s_load_dwordx2 s[60:61], s[0:1], {KA['ws']}")
            a("s_waitcnt lgkmcnt(0)")
            a(f"s_add_u32 s60, s60, {128*MB + self.region*65536 + slot*64}")
            a("s_addc_u32 s61, s61, 0")
            a("s_mov_b32 s62, 65536")
            a("s_mov_b32 s63, 0x00020000")
            a("s_lshl_b32 s3, s2, 7")
            a("v_mov_b32 v1, s3")
        for i in range(self.n):
            a(f"v_mov_b32 v2, s{self.base+2*i}")
            a(f"buffer_store_dword v2, v1, s[60:63], 0 offen offset:{4*i}")
        a("s_getreg_b32 s3, hwreg(HW_REG_XCC_ID)")
        a("v_mov_b32 v2, s3")
        a(f"buffer_store_dword v2, v1, s[60:63], 0 offen offset:60")
        a("s_waitcnt vmcnt(0)")
        a.label(lab)

def rnd_pair(d, lo, hi, olo, ohi):
    return [f"v_cvt_pk_bf16_f32 v{d}, v{lo}, v{hi}", f"v_lshlrev_b32 v{olo}, 16, v{d}", f"v_and_b32 v{ohi}, 0xffff0000, v{d}"]

def interleave(a, mfmas, fillers, ngaps):
    tot = sum(c for c, _ in fillers)
    fi, acc = 0, 0.0
    for g, (pre, m, post) in enumerate(mfmas):
        for x in pre: a(x)
        a(m)
        for x in post: a(x)
        lim = tot * min(1.0, (g + 1) / ngaps) if ngaps else tot
        while fi < len(fillers) and acc + fillers[fi][0] * 0.5 <= lim:
            acc += fillers[fi][0]
            for x in fillers[fi][1]: a(x)
            fi += 1
    while fi < len(fillers):
        for x in fillers[fi][1]: a(x)
        fi += 1

def gen_main(a):
    S_C, S_W, S_WS, S_V, S_X, S_WQ, S_DBG = 4, 8, 12, 16, 20, 24, 28
    (sW, sH, sP, sG, sRB, sT, sT2, sCO, sWO, sM0C, sM0W, sOB, sROW, sXO, sQWO, sN1, sS, sMST, sTHR, sM0K, sM0V,
     sBASE, sCT1, sCT2, sWRAP) = range(32, 57)
    sHIST = [57, 58, 59, 60]
    sEV = 62
    PT = 64
    S_T = 76
    sMK = 4
    S_K = S_X
    sNB = 61
    SHARE = 'noshare' not in OPT
    vL16, vCD, vWD, vAC, vAW, vXD, vQW, vWOT, vKVT = 1, 2, 6, 10, 12, 16, 20, 22, 23
    WFR, CFR, ACC = [32, 48], 64, 128
    sp = Stamps(a, base=80)
    vm = VM()
    a("s_cmp_ge_u32 s2, 256")
    a("s_cbranch_scc1 M_END")
    sp.mark("start")
    a(f"s_load_dwordx2 s[44:45], s[0:1], {KA['c_kv']}")
    a(f"s_load_dwordx4 s[48:51], s[0:1], {KA['w_uk']}")
    a("v_lshrrev_b32 v1, 6, v0")
    a("v_mov_b32 v31, v0")
    a("v_and_b32 v0, 63, v0")
    a(f"v_readfirstlane_b32 s{sW}, v1")
    a(f"s_and_b32 s{sH}, s2, 7")
    a("s_lshr_b32 s3, s2, 6")
    a("s_lshl_b32 s3, s3, 3")
    a(f"s_add_u32 s{sH}, s{sH}, s3")
    a(f"s_bfe_u32 s{sP}, s2, 0x30003")
    a(f"s_lshr_b32 s{sG}, s{sW}, 2")
    a("v_lshrrev_b32 v24, 3, v0")
    a("v_and_b32 v25, 7, v0")
    a("v_lshrrev_b32 v26, 4, v0")
    a("v_xor_b32 v25, v25, v26")
    a("v_lshlrev_b32 v25, 4, v25")
    a("v_xor_b32 v27, 64, v25")
    a(f"v_lshl_add_u32 v{vCD}, v24, 10, v25")
    a(f"v_lshl_add_u32 v{vCD+1}, v24, 10, v27")
    a(f"v_add_u32 v{vCD+1}, {8192-1024}, v{vCD+1}")
    a(f"v_add_u32 v{vCD+2}, {2*(8192-1024)}, v{vCD}")
    a(f"v_add_u32 v{vCD+3}, {2*(8192-1024)}, v{vCD+1}")
    a("v_and_b32 v28, 15, v0")
    a("v_lshlrev_b32 v29, 1, v26")
    a("v_xor_b32 v28, v28, v29")
    a("v_lshlrev_b32 v28, 4, v28")
    a(f"v_lshl_add_u32 v{vWD}, v26, 13, v28")
    a(f"v_add_u32 v{vWD+1}, {4*8192-1024}, v{vWD}")
    a(f"v_xor_b32 v{vWD+2}, 128, v{vWD}")
    a(f"v_add_u32 v{vWD+2}, {2*(4*8192-1024)}, v{vWD+2}")
    a(f"v_add_u32 v{vWD+3}, {4*8192-1024}, v{vWD+2}")
    a(f"s_and_b32 s{sRB}, s{sW}, 3")
    a(f"s_lshl_b32 s{sCO}, s{sP}, 18")
    a(f"s_lshl_b32 s{sT}, s{sW}, 15")
    a(f"s_add_u32 s{sCO}, s{sCO}, s{sT}")
    a(f"s_lshl_b32 s{sWO}, s{sRB}, 17")
    a(f"s_lshl_b32 s{sT}, s{sH}, 8")
    a(f"s_add_u32 s{sWO}, s{sWO}, s{sT}")
    a(f"s_lshl_b32 s{sM0C}, s{sW}, 12")
    a(f"s_add_u32 s{sM0W}, s{sM0C}, 65536")
    a("s_waitcnt lgkmcnt(0)")
    srd(a, S_C, 44, 45, 2 * MB)
    a(f"s_cmp_eq_u32 s{sG}, 0")
    a(f"s_cselect_b32 s{S_W}, s48, s50")
    a(f"s_cselect_b32 s{S_W+1}, s49, s51")
    a(f"s_mov_b32 s{S_W+2}, {4*MB}")
    a(f"s_mov_b32 s{S_W+3}, 0x00020000")
    def kv_dma(st):
        buf = (st & 1) * 32768
        tg = ("kv", st)
        out = [[f"s_add_u32 m0, s{sM0C}, {buf}", f"s_add_u32 s{sT}, s{sCO}, {st*128}",
                (f"buffer_load_dwordx4 v{vCD}, {S4(S_C)}, s{sT} offen lds", tg)]]
        for i in range(1, 4): out.append([(f"buffer_load_dwordx4 v{vCD+i}, {S4(S_C)}, s{sT} offen offset:{i*1024} lds", tg)])
        out.append([f"s_add_u32 m0, s{sM0W}, {buf}", f"s_add_u32 s{sT}, s{sWO}, {st*64*8192}",
                    (f"buffer_load_dwordx4 v{vWD}, {S4(S_W)}, s{sT} offen lds", tg)])
        for i in range(1, 4): out.append([(f"buffer_load_dwordx4 v{vWD+i}, {S4(S_W)}, s{sT} offen offset:{i*1024} lds", tg)])
        return out
    def emit(items):
        for it in items:
            for x in it:
                if isinstance(x, tuple): a(x[0]); vm.add(x[1])
                else: a(x)
    emit(kv_dma(0))
    a(f"s_load_dwordx2 s[44:45], s[0:1], {KA['A_q']}")
    a(f"s_load_dwordx2 s[46:47], s[0:1], {KA['w_q']}")
    a(f"s_load_dwordx4 s[48:51], s[0:1], {KA['dbg']}")
    a(f"s_load_dwordx4 s[{PT}:{PT+3}], s[0:1], {KA['A_k']}")
    a(f"s_load_dwordx4 s[{PT+4}:{PT+7}], s[0:1], {KA['shift']}")
    a(f"s_load_dwordx4 s[{PT+8}:{PT+11}], s[0:1], {KA['w_o']}")
    a(f"v_lshlrev_b32 v{vL16}, 4, v0")
    a("v_mul_u32_u24 v28, 1280, v24")
    a(f"v_add_u32 v{vXD}, v28, v25")
    a(f"v_add_u32 v{vXD+1}, v28, v27")
    a(f"v_add_u32 v{vXD+1}, {8*1280-1024}, v{vXD+1}")
    a(f"v_add_u32 v{vXD+2}, {2*(8*1280-1024)}, v{vXD}")
    a(f"v_add_u32 v{vXD+3}, {2*(8*1280-1024)}, v{vXD+1}")
    a(f"s_and_b32 s3, s{sW}, 1")
    a("s_lshl_b32 s3, s3, 7")
    a(f"v_xor_b32 v{vQW}, s3, v{vWD}")
    a(f"v_add_u32 v{vQW+1}, {4*8192-1024}, v{vQW}")
    emit(kv_dma(1))
    vPF, vPFW, vSC = 116, 115, 117
    if 'nopf' not in OPT:
        a(f"v_lshlrev_b32 v{vPF}, 7, v0")
        a("v_lshrrev_b32 v24, 1, v0")
        a("v_and_b32 v25, 1, v0")
        a("v_lshlrev_b32 v25, 7, v25")
        a(f"v_lshl_add_u32 v{vPFW}, v24, 13, v25")
        a("s_lshl_b32 s3, s2, 13")
        a(f"s_lshl_b32 s{sT}, s{sW}, 10")
        a(f"s_add_u32 s3, s3, s{sT}")
        a("s_mov_b64 exec, 0xff")
        emit([[(f"buffer_load_dword v{vSC}, v{vPF}, {S4(S_C)}, s3 offen sc1", "pf")]])
        if 'nopf2' not in OPT:
            a(f"s_lshl_b32 s3, s{sP}, 2")
            a(f"s_add_u32 s3, s3, s{sRB}")
            a(f"s_mul_i32 s3, s3, {6*8192}")
            a(f"s_lshl_b32 s{sT}, s{sH}, 8")
            a(f"s_add_u32 s3, s3, s{sT}")
            a(f"s_add_u32 s3, s3, {128*8192}")
            a(f"s_add_u32 s{sNB}, s3, {192*8192}")
            a("s_mov_b32 exec_lo, 0xfff")
            pf2 = [["s_mov_b64 exec, 0xfff", (f"buffer_load_dword v{vSC}, v{vPFW}, {S4(S_W)}, s{sNB} offen sc1", "pf"), "s_mov_b64 exec, -1"]]
        else:
            a(f"s_lshl_b32 s3, s{sP}, 19")
            a(f"s_add_u32 s3, s3, s{sWO}")
            a("s_mov_b32 exec_lo, -1")
        emit([[(f"buffer_load_dword v{vSC}, v{vPFW}, {S4(S_W)}, s3 offen sc1", "pf")]])
        a("s_mov_b64 exec, -1")
    def frag_addrs(vR, rowoff_sgpr, vWa, nt_sgpr, wbase_sgpr):
        a("v_and_b32 v24, 15, v0")
        a("v_lshrrev_b32 v25, 4, v0")
        a("v_bfe_u32 v26, v0, 1, 3")
        a("v_xor_b32 v26, v26, v25")
        a("v_lshlrev_b32 v26, 4, v26")
        a("v_lshl_add_u32 v26, v24, 7, v26")
        a(f"v_add_u32 v{vR}, s{rowoff_sgpr}, v26")
        a(f"v_xor_b32 v{vR+1}, 64, v{vR}")
        a("v_bfe_u32 v24, v0, 2, 2")
        a("v_lshl_add_u32 v26, v25, 3, v24")
        a("v_lshlrev_b32 v26, 8, v26")
        a("v_and_b32 v27, 3, v0")
        a("v_lshl_add_u32 v26, v27, 3, v26")
        a(f"v_add_u32 v26, s{wbase_sgpr}, v26")
        a("v_and_b32 v25, 1, v25")
        a("v_lshl_add_u32 v24, v25, 2, v24")
        a(f"v_xor_b32 v24, s{nt_sgpr}, v24")
        for nt in range(4):
            a(f"v_xor_b32 v25, {nt}, v24")
            a(f"v_lshl_add_u32 v{vWa+nt}, v25, 5, v26")
    a(f"s_and_b32 s{sT}, s{sW}, 1")
    a(f"s_lshl_b32 s{sT}, s{sT}, 14")
    a(f"s_and_b32 s{sT2}, s{sW}, 2")
    a(f"s_lshl_b32 s{sT2}, s{sT2}, 1")
    a(f"s_lshl_b32 s3, s{sG}, 14")
    a("s_add_u32 s3, s3, 65536")
    frag_addrs(vAC, sT, vAW, sT2, 3)
    WOB = 131072
    a("v_lshrrev_b32 v24, 2, v0")
    a("v_mul_u32_u24 v24, 672, v24")
    a("v_and_b32 v25, 3, v0")
    a("v_lshl_add_u32 v24, v25, 3, v24")
    a(f"s_lshl_b32 s{sT}, s{sW}, 5")
    a(f"s_add_u32 s{sT}, s{sT}, {WOB}")
    a(f"v_add_u32 v{vWOT}, s{sT}, v24")
    KVS, TRB = 131072, 153600
    a("v_mul_u32_u24 v25, 1639, v31")
    a("v_lshrrev_b32 v25, 16, v25")
    a("v_mul_u32_u24 v26, 40, v25")
    a("v_sub_u32 v26, v31, v26")
    a("v_mul_u32_u24 v29, 1280, v25")
    a("v_lshl_add_u32 v29, v26, 2, v29")
    a(f"v_add_u32 v29, {KVS}, v29")
    a("v_and_b32 v27, 7, v26")
    a("v_xor_b32 v27, v27, v25")
    a("v_lshlrev_b32 v27, 4, v27")
    a(f"v_lshl_add_u32 v{vKVT}, v26, 8, v27")
    a(f"v_add_u32 v{vKVT}, {TRB}, v{vKVT}")
    a(f"s_and_b32 s{sT2}, s2, 7")
    a(f"s_mul_i32 s{sT}, s{sT2}, 40")
    a(f"v_add_lshl_u32 v26, v26, s{sT}, 4")
    a("v_mul_u32_u24 v25, 205, v0")
    a("v_lshrrev_b32 v25, 11, v25")
    a("v_mul_u32_u24 v27, 1120, v25")
    a("v_lshl_add_u32 v27, v0, 4, v27")
    a(f"s_lshr_b32 s{sT}, s2, 3")
    a(f"s_mul_i32 s{sT}, s{sT}, {64*1280}")
    a(f"s_mul_i32 s{sT2}, s{sT2}, 160")
    a(f"s_add_u32 s{sT}, s{sT}, s{sT2}")
    a(f"s_sub_u32 s{sT}, s{sT}, 3840")
    a(f"v_add_u32 v27, s{sT}, v27")
    a(f"v_mov_b32 v30, {OOB}")
    a("v_mul_u32_u24 v24, 20, v0")
    a("s_waitcnt lgkmcnt(0)")
    srd(a, S_WS, 50, 51, 64 * MB)
    srd(a, S_V, 50, 51, 16 * MB, WS_VF)
    srd(a, S_X, 44, 45, 2621440)
    srd(a, S_WQ, 46, 47, 5242880)
    srd(a, S_DBG, 48, 49, 256)
    a(f"s_sub_u32 s{sT}, 15, s{sP}")
    a(f"s_lshl_b32 s{sT2}, s{sRB}, 5")
    a(f"s_lshl_b32 s{sCT2}, s{sT}, 7")
    a(f"s_add_u32 s{sCT2}, s{sCT2}, s{sT2}")
    a(f"s_lshl_b32 s{sCT1}, s{sP}, 7")
    a(f"s_add_u32 s{sCT1}, s{sCT1}, s{sT2}")
    a(f"s_cmp_eq_u32 s{sG}, 0")
    a(f"s_cselect_b32 s{sROW}, s{sCT1}, s{sCT2}")
    a(f"s_mul_i32 s{sXO}, s{sROW}, 1280")
    a(f"s_lshl_b32 s{sQWO}, s{sW}, 16")
    a(f"s_lshl_b32 s{sT}, s{sH}, 8")
    a(f"s_add_u32 s{sQWO}, s{sQWO}, s{sT}")
    a(f"s_lshl_b32 s{sT}, s{sH}, 12")
    a(f"s_add_u32 s{sT}, s{sT}, {WS_CTX}")
    a(f"s_lshl_b32 s{sT2}, s{sRB}, 4")
    for c in (sCT1, sCT2):
        a(f"s_sub_u32 s{c}, s{c}, s{sT2}")
        a(f"s_mul_i32 s{c}, s{c}, {CS // 16}")
        a(f"s_add_u32 s{c}, s{c}, s{sT}")
    a(f"s_lshl_b32 s{sOB}, s{sH}, 6")
    a(f"s_lshl_b32 s{sT}, s{sP}, 3")
    a(f"s_add_u32 s{sOB}, s{sOB}, s{sT}")
    a(f"s_and_b32 s{sT}, s{sW}, 1")
    a(f"s_lshl_b32 s{sT}, s{sT}, 2")
    a(f"s_add_u32 s{sOB}, s{sOB}, s{sT}")
    a(f"s_lshl_b32 s{sOB}, s{sOB}, 13")
    a(f"s_bfe_u32 s{sT}, s{sW}, 0x10001")
    a(f"s_add_u32 s{sT2}, s{sG}, 11")
    a(f"s_lshl_b32 s{sT}, s{sT}, s{sT2}")
    a(f"s_add_u32 s{sOB}, s{sOB}, s{sT}")
    a(f"s_lshl_b32 s{sT}, s{sG}, 24")
    a(f"s_add_u32 s{sOB}, s{sOB}, s{sT}")
    a(f"s_lshl_b32 s{sN1}, s{sP}, 2")
    a(f"s_add_u32 s{sN1}, s{sN1}, 4")
    a(f"s_lshl_b32 s{sHIST[0]}, s{sH}, 19")
    a(f"s_lshl_b32 s{sT}, s{sRB}, 11")
    a(f"s_add_u32 s{sHIST[0]}, s{sHIST[0]}, s{sT}")
    a(f"s_lshl_b32 s{sM0K}, s{sW}, 11")
    a(f"s_add_u32 s{sM0V}, s{sM0K}, 65536")
    a(f"s_sub_u32 s{sT2}, s{sN1}, 4")
    a(f"s_sub_u32 s{sWRAP}, s{sN1}, 2")
    a(f"s_sub_u32 s{sWRAP}, s{sWRAP}, s{sG}")
    a(f"s_mov_b32 s{sBASE}, 8192")
    a(f"s_cmp_eq_u32 s{sG}, 0")
    a(f"s_cselect_b32 s{sMST}, s{sT2}, 99")
    a(f"s_cselect_b32 s{sN1}, s{sN1}, 100")
    a(f"s_add_u32 s{sHIST[1]}, s{sHIST[0]}, 8192")
    a(f"s_add_u32 s{sHIST[2]}, s{sHIST[0]}, 16384")
    a(f"s_mov_b64 s[{sEV}:{sEV+1}], {(127 if FUSE else 63) if 'noev' not in OPT else 64}")
    a(f"s_add_u32 s{sT}, s{sMST}, 1")
    a(f"s_lshl_b64 s[{sEV}:{sEV+1}], s[{sEV}:{sEV+1}], s{sT}")
    if SHARE:
        a(f"s_mul_i32 s{S_T}, s{sG}, 45")
        a(f"s_mov_b32 s{S_T+1}, 0")
        a(f"s_lshl_b64 s[{S_T}:{S_T+1}], s[{S_T}:{S_T+1}], s{sWRAP}")
        a(f"s_or_b64 s[{sEV}:{sEV+1}], s[{sEV}:{sEV+1}], s[{S_T}:{S_T+1}]")
        a(f"s_cmp_eq_u32 s{sG}, 0")
        a(f"s_cselect_b32 s{S_V+2}, s{S_V+2}, 0")
    a(f"s_bitset1_b64 s[{sEV}:{sEV+1}], s{sWRAP}")
    a(f"s_or_b32 s{sEV}, s{sEV}, 0x80000002")
    a(f"s_or_b32 s{sEV+1}, s{sEV+1}, 6")
    a(f"s_mov_b32 s{sTHR}, 0x40004000")
    a(f"s_mov_b32 s{S_T+3}, 0x00020000")
    if 'tlb' in OPT:
        a(f"s_lshl_b32 s{sT}, s{sW}, 2")
        a(f"s_lshr_b32 s3, 0xdba84210, s{sT}")
        a("s_and_b32 s3, s3, 15")
        a("s_lshl_b32 s3, s3, 3")
        a(f"s_load_dwordx2 s[{S_T}:{S_T+1}], s[0:1], s3")
        a(f"s_lshr_b32 s3, 0x5a8a5555, s{sT}")
        a("s_and_b32 s3, s3, 15")
        a(f"s_lshl_b32 s{S_T+2}, s3, 19")
        a("v_lshlrev_b32 v118, 20, v0")
        a("s_lshl_b32 s3, s2, 10")
        a(f"s_lshr_b32 s{sT}, s2, 3")
        a(f"s_lshl_b32 s{sT}, s{sT}, 21")
        a(f"s_lshl_b32 s{sT2}, s{sW}, 12")
        a(f"s_add_u32 s{sT}, s{sT}, s{sT2}")
        a("s_waitcnt lgkmcnt(0)")
        a("s_mov_b64 exec, 0x3f")
        emit([[(f"buffer_load_dword v{vSC}, v118, {S4(S_T)}, s3 offen sc1", "pf")]])
        a("s_mov_b64 exec, 3")
        emit([[(f"buffer_load_dword v{vSC}, v118, {S4(S_WS)}, s{sT} offen sc1", "pf")]])
        a("s_mov_b64 exec, -1")

    XB = [0, 32768, 131072]
    def q_dma_x(k):
        tg = ("q", k)
        out = [[f"s_add_u32 m0, s{sM0C}, {XB[(k+2)%3]}", f"s_add_u32 s{sT}, s{sXO}, {k*128}",
                (f"buffer_load_dwordx4 v{vXD}, {S4(S_X)}, s{sT} offen lds", tg)]]
        for i in range(1, 4): out.append([(f"buffer_load_dwordx4 v{vXD+i}, {S4(S_X)}, s{sT} offen offset:{i*1024} lds", tg)])
        return out
    def q_dma_w(k):
        tg = ("q", k)
        return [[f"s_add_u32 m0, s{sM0V}, {(k%3)*16384}", f"s_add_u32 s{sT}, s{sQWO}, {k*64*8192}",
                 (f"buffer_load_dwordx4 v{vQW}, {S4(S_WQ)}, s{sT} offen lds", tg)],
                [(f"buffer_load_dwordx4 v{vQW+1}, {S4(S_WQ)}, s{sT} offen offset:1024 lds", tg)]]
    GX, GXT, GWT, GW, KR, VR, SH = 80, 84, 85, 86, 90, 101, 110
    def tsrd(lo, size): return [f"s_mov_b32 s{S_T}, s{lo}", f"s_mov_b32 s{S_T+1}, s{lo+1}", f"s_mov_b32 s{S_T+2}, {size}"]
    def ld_wo():
        it = tsrd(PT + 8, 5242880) + [f"s_lshr_b32 s3, s2, 1", "s_lshl_b32 s3, s3, 5", f"s_lshl_b32 s{sT2}, s{sW}, 2",
              f"s_add_u32 s3, s3, s{sT2}", "s_mul_i32 s3, s3, 1280", f"s_and_b32 s{sS}, s2, 1", f"s_mul_i32 s{sS}, s{sS}, 640",
              f"s_add_u32 s3, s3, s{sS}", f"s_mul_i32 s{sT2}, s{sT2}, 672", "s_mov_b32 exec_hi, 0xff"]
        for i in range(4):
            it += [f"s_add_u32 m0, s{sT2}, {WOB+672*i}", f"s_add_u32 s{sS}, s3, {1280*i}",
                   (f"buffer_load_dwordx4 v{vL16}, {S4(S_T)}, s{sS} offen lds", "wo")]
        return [it + ["s_mov_b32 exec_hi, -1"]]
    def ld_gate():
        return [["s_lshl_b32 s3, s2, 3", f"s_add_u32 s3, s3, s{sW}", "s_mul_i32 s3, s3, 1280",
                 (f"buffer_load_dwordx4 {vr(GX,4)}, v24, {S4(S_X)}, s3 offen", "gt"),
                 (f"buffer_load_dword v{GXT}, v24, {S4(S_X)}, s3 offen offset:16", "gt")],
                tsrd(PT + 10, 1280) + [(f"buffer_load_dwordx4 {vr(GW,4)}, v24, {S4(S_T)}, 0 offen", "gt"),
                 (f"buffer_load_dword v{GWT}, v24, {S4(S_T)}, 0 offen offset:16", "gt")]]
    def ld_kv(part):
        L = []
        for i in range(3):
            isv = i == 2 or (i == 1 and part == 1)
            rows0 = 6 * 8 * i - (72 - 3 if isv else 0)
            L.append(tsrd(PT + (2 if isv else 0), 2621440) +
                     [f"s_mul_i32 s3, s{sW}, {6*1280}", f"s_add_u32 s3, s3, {rows0*1280}", "v_add_u32 v28, s3, v27",
                      f"s_mul_i32 s3, s{sW}, 960", f"s_add_u32 m0, s3, {KVS + 8*960*i}", "s_mov_b32 exec_hi, 0xfffffff",
                      (f"buffer_load_dwordx4 v28, {S4(S_T)}, 0 offen lds", "kvs"), "s_mov_b32 exec_hi, -1"])
        L.append(tsrd(PT + 4, 5120) + [(f"buffer_load_dwordx4 {vr(SH,4)}, v26, {S4(S_T)}, 0 offen", "kvs")])
        return L
    def rd_kv():
        return [[f"ds_read_b32 v{KR+j}, v29 offset:{160*j}"] for j in range(11)] + \
               [[f"ds_read_b32 v{VR+j}, v29 offset:{11520+160*j}"] for j in range(8)]
    def ld_pf():
        L = [[f"s_lshl_b32 s3, s{sP}, 3", f"s_add_u32 s3, s3, s{sW}", f"s_mul_i32 s3, s3, {10*8192}", f"s_lshl_b32 s{sT2}, s{sH}, 8",
              f"s_add_u32 s3, s3, s{sT2}", "s_mov_b64 exec, 0xfffff",
              (f"buffer_load_dword v{vPFW}, v{vPFW}, {S4(S_WQ)}, s3 offen sc1", "pfq"), "s_mov_b64 exec, -1"]]
        L.append(tsrd(PT + 6, 2621440) + ["s_lshr_b32 s3, s2, 1", "s_mul_i32 s3, s3, 5", f"s_and_b32 s{sT2}, s2, 1", f"s_mul_i32 s{sT2}, s{sT2}, 3",
                  f"s_add_u32 s3, s3, s{sT2}", f"s_add_u32 s3, s3, s{sW}", "s_lshl_b32 s3, s3, 12", f"s_cmp_ge_u32 s{sW}, 3",
                  f"s_cselect_b32 s3, {OOB}, s3", "v_lshlrev_b32 v29, 7, v0", "s_mov_b32 exec_hi, 0",
                  (f"buffer_load_dword v29, v29, {S4(S_T)}, s3 offen sc1", "pfh"), "s_mov_b32 exec_hi, -1"])
        return L

    t0, t1, t2, t3, t4 = 24, 25, 26, 27, 28
    SCF = ' sc1' if FUSE else ''
    def job_gate():
        L = [[f"v_mov_b32 v{t0}, 0"]]
        for x, w in [(GX + i, GW + i) for i in range(4)] + [(GXT, GWT)]:
            L += [[s] for s in [f"v_lshlrev_b32 v{t1}, 16, v{x}", f"v_and_b32 v{t2}, 0xffff0000, v{x}",
                                f"v_lshlrev_b32 v{t3}, 16, v{w}", f"v_and_b32 v{t4}, 0xffff0000, v{w}",
                                f"v_mul_f32 v{t1}, v{t1}, v{t3}", f"v_mul_f32 v{t2}, v{t2}, v{t4}"] + rnd_pair(t3, t1, t2, t1, t2) +
                               [f"v_add_f32 v{t0}, v{t0}, v{t1}", f"v_add_f32 v{t0}, v{t0}, v{t2}"]]
        for m in ("row_shr:1", "row_shr:2", "row_shr:4", "row_shr:8"):
            L.append([f"v_add_f32_dpp v{t0}, v{t0}, v{t0} {m} row_mask:0xf bank_mask:0xf bound_ctrl:0"])
        L.append([f"v_add_f32_dpp v{t0}, v{t0}, v{t0} row_bcast:15 row_mask:0xa bank_mask:0xf"])
        L.append([f"v_add_f32_dpp v{t0}, v{t0}, v{t0} row_bcast:31 row_mask:0xc bank_mask:0xf"])
        L += [[s] for s in rnd_pair(t1, t0, t0, t0, t2)[:2] +
              [f"v_mul_f32 v{t0}, 0xbfb8aa3b, v{t0}", f"v_exp_f32 v{t0}, v{t0}", f"v_cmp_eq_u32 vcc, 63, v0",
               f"v_add_f32 v{t0}, 1.0, v{t0}", f"v_rcp_f32 v{t0}, v{t0}", f"v_cndmask_b32 v{t2}, v30, 0, vcc"] +
              rnd_pair(t1, t0, t0, t0, t3)[:2]]
        L.append(["s_lshl_b32 s3, s2, 3", f"s_add_u32 s3, s3, s{sW}", "s_lshl_b32 s3, s3, 2", f"s_add_u32 s3, s3, {WS_G}",
                  (f"buffer_store_dword v{t0}, v{t2}, {S4(S_WS)}, s3 offen{SCF}", "pr2")])
        return L
    def job_kvt():
        L = []
        W = 80
        for c in range(2):
            for q in range(2):
                L.append([f"v_lshlrev_b32 v{W+4*c+2*q}, 16, v{SH+2*c+q}"])
                L.append([f"v_and_b32 v{W+4*c+2*q+1}, 0xffff0000, v{SH+2*c+q}"])
        KL, KH = [110, 111, 112, 113], [88, 89, 109, 114]
        def unp(j): return [f"v_lshlrev_b32 v{KL[j%4]}, 16, v{KR+j}", f"v_and_b32 v{KH[j%4]}, 0xffff0000, v{KR+j}"]
        for j in range(3): L += [[s] for s in unp(j)]
        for s in range(8):
            ops = unp(s + 3)
            ops += [f"v_mul_f32 v{t0}, v{KL[s%4]}, v{W+3}", f"v_mul_f32 v{t1}, v{KH[s%4]}, v{W+7}"]
            for j in (2, 1, 0):
                ops += [f"v_fmac_f32 v{t0}, v{KL[(s+3-j)%4]}, v{W+j}", f"v_fmac_f32 v{t1}, v{KH[(s+3-j)%4]}, v{W+4+j}"]
            ops += [f"v_lshlrev_b32 v{t3}, 16, v{VR+s}", f"v_and_b32 v{t4}, 0xffff0000, v{VR+s}"]
            if s % 2 == 0:
                ops += [f"v_mul_f32 v118, v{t0}, v{t3}", f"v_mul_f32 v119, v{t1}, v{t4}"]
            else:
                ops += [f"v_mul_f32 v{t0}, v{t0}, v{t3}", f"v_mul_f32 v{t1}, v{t1}, v{t4}",
                        f"v_cvt_pk_bf16_f32 v{120+s//2}, v118, v{t0}", f"v_cvt_pk_bf16_f32 v{124+s//2}, v119, v{t1}"]
            L += [[x] for x in ops]
        L.append([f"s_cmp_lt_u32 s{sW}, 5", "s_cselect_b64 exec, -1, 0", f"ds_write_b128 v{vKVT}, v[120:123]",
                  f"ds_write_b128 v{vKVT}, v[124:127] offset:128", "s_mov_b64 exec, -1"])
        L += [[x] for x in [f"v_lshrrev_b32 v{t2}, 3, v0", f"v_and_b32 v{t3}, 7, v0", f"v_lshrrev_b32 v{t4}, 4, v0", f"v_xor_b32 v{t4}, v{t4}, v{t3}",
                            f"v_lshlrev_b32 v{t4}, 4, v{t4}", f"v_lshl_add_u32 v{t0}, v{t2}, 7, v{t4}", f"v_lshlrev_b32 v{t3}, 4, v{t3}",
                            f"v_mul_u32_u24 v{t1}, {RS}, v{t2}", f"v_add_u32 v{t1}, v{t1}, v{t3}"]]
        L.append([f"s_and_b32 s3, s{sW}, 1", "s_lshl_b32 s3, s3, 6", f"v_xor_b32 v{t0}, s3, v{t0}", f"s_lshl_b32 s3, s{sW}, 10",
                  f"s_add_u32 s3, s3, {TRB}", f"v_add_u32 v{t0}, s3, v{t0}"])
        return L
    def rd_post():
        L = []
        for i in range(3):
            L.append([f"ds_read_b64_tr_b16 v[{116+4*i}:{117+4*i}], v{vWOT} offset:{256*i}"])
            L.append([f"ds_read_b64_tr_b16 v[{118+4*i}:{119+4*i}], v{vWOT} offset:{256*i+16*672}"])
        return L + [[f"ds_read_b128 v[90:93], v{t0}"], [f"ds_read_b128 v[94:97], v{t0} offset:8192"]]
    def job_post():
        L = [["s_and_b32 s3, s2, 1", "s_mul_i32 s3, s3, 20", f"s_add_u32 s3, s3, s{sW}", f"s_mul_i32 s3, s3, {CS}",
              f"s_lshr_b32 s{sT2}, s2, 1", f"s_lshl_b32 s{sT2}, s{sT2}, 10", f"s_add_u32 s3, s3, s{sT2}",
              f"s_add_u32 s{sS}, s3, {WS_WOT}", (f"buffer_store_dwordx4 v[116:119], v{vL16}, {S4(S_WS)}, s{sS} offen{SCF}", "pr2")]]
        L.append([f"s_add_u32 s{sS}, s{sS}, {8*CS}", (f"buffer_store_dwordx4 v[120:123], v{vL16}, {S4(S_WS)}, s{sS} offen{SCF}", "pr2")])
        L.append([f"s_add_u32 s{sS}, s{sS}, {8*CS}", f"s_cmp_ge_u32 s{sW}, 4", f"s_cselect_b32 s{sS}, {OOB}, s{sS}",
                  (f"buffer_store_dwordx4 v[124:127], v{vL16}, {S4(S_WS)}, s{sS} offen{SCF}", "pr2")])
        L.append(["s_and_b32 s3, s2, 7", f"s_mul_i32 s3, s3, {80*RS}", f"s_lshr_b32 s{sT2}, s2, 3", f"s_lshl_b32 s{sT2}, s{sT2}, 7",
                  f"s_add_u32 s3, s3, s{sT2}", f"s_mul_i32 s{sT2}, s{sW}, {8*RS}", f"s_add_u32 s3, s3, s{sT2}", f"s_add_u32 s{sS}, s3, {WS_KVT}",
                  (f"buffer_store_dwordx4 v[90:93], v{t1}, {S4(S_WS)}, s{sS} offen{SCF}", "pr2")])
        L.append([f"s_add_u32 s{sS}, s{sS}, {64*RS}", f"s_cmp_ge_u32 s{sW}, 2", f"s_cselect_b32 s{sS}, {OOB}, s{sS}",
                  (f"buffer_store_dwordx4 v[94:97], v{t1}, {S4(S_WS)}, s{sS} offen{SCF}", "pr2")])
        return L

    def kdma(e, tg):
        return [[f"s_add_u32 m0, s{sM0K}, {(e & 3) * 16384}", "s_nop 0",
                 (f"buffer_load_dwordx4 v{vL16}, {S4(S_K)}, s{sHIST[e&3]} offen sc1 lds", tg)],
                [(f"buffer_load_dwordx4 v{vL16}, {S4(S_K)}, s{sHIST[e&3]} offen offset:1024 sc1 lds", tg)]]
    vPOLL, vZERO, vFL = 24, 25, 26
    vCL = 31
    def only(wave, body, extra=None):
        lab = a.uid("ONLY")
        a(f"s_cmp_lg_u32 s{sW}, {wave}")
        a(f"s_cbranch_scc1 {lab}")
        if extra:
            a(extra); a(f"s_cbranch_scc1 {lab}")
        for x in body: a(x)
        a.label(lab)
    def clear_line():
        body = [f"s_lshl_b32 s3, s{sH}, 12", f"s_add_u32 s3, s3, {WS_FL2 - WS_FLG}", "v_lshl_add_u32 v116, v0, 2, s3",
                f"s_lshl_b32 s3, s{sH}, 2", f"s_add_u32 s3, s3, {WS_FL3 - WS_FLG - 16 * 4096}", "v_lshl_add_u32 v118, v0, 12, s3",
                "v_cmp_le_u32 vcc, 16, v0", "v_and_b32 v119, 7, v0", "v_lshl_add_u32 v119, v119, 3, s2", "v_cndmask_b32 v116, v116, v118, vcc",
                "v_lshrrev_b32 v118, 5, v119", "v_and_b32 v119, 31, v119", "v_lshlrev_b32 v119, 2, v119", "v_lshl_add_u32 v118, v118, 12, v119",
                "v_cmp_le_u32 vcc, 32, v0", f"v_mov_b32 v{vCL}, 0", f"s_mov_b32 s3, {WS_FLG}", "v_cndmask_b32 v116, v116, v118, vcc",
                f"buffer_store_dword v{vCL}, v116, {S4(S_WS)}, s3 offen sc1"]
        only(3, body, f"s_cmp_lg_u32 s{sP}, 0")
    def clean_set():
        only(3, ["s_mov_b64 exec, 1", "v_mov_b32 v119, 1", f"s_lshl_b32 s3, s{sH}, 2",
                 f"buffer_store_dword v119, v{vCL}, {S4(S_DBG)}, s3 offen offset:128 sc1", "s_mov_b64 exec, -1"], f"s_cmp_lg_u32 s{sP}, 0")
    def clean_issue(site):
        a(f"s_bfe_u32 s{sT2}, s2, 0x10003")
        only(2, [f"v_and_b32 v{vCL}, 31, v0", f"v_lshlrev_b32 v{vCL}, 2, v{vCL}",
                 f"buffer_load_dword v{vCL}, v{vCL}, {S4(S_DBG)}, 0 offen offset:128 sc1"], f"s_cmp_lg_u32 s{sT2}, {site}")
    def clean_check():
        lab = a.uid("CLN")
        a(f"s_cmp_lg_u32 s{sW}, 2")
        a(f"s_cbranch_scc1 {lab}D")
        a(f"s_mov_b32 s{sT2}, 0")
        a(f"s_branch {lab}C")
        a.label(lab)
        a("s_sleep 32")
        a(f"buffer_load_dword v{vCL}, v{vFL}, {S4(S_DBG)}, 0 offen offset:128 sc1")
        a("s_waitcnt vmcnt(0)")
        a.label(lab + "C")
        a(f"v_cmp_eq_u32 vcc, 0, v{vCL}")
        a(f"s_add_u32 s{sT2}, s{sT2}, 1")
        a(f"s_cbranch_vccz {lab}D")
        a(f"s_cmp_lt_u32 s{sT2}, 100000")
        a(f"s_cbranch_scc1 {lab}")
        a.label(lab + "D")
    def publish(wave, which):
        only(wave, ["s_mov_b64 exec, 1", f"v_mov_b32 v{vPOLL}, 1", f"s_lshl_b32 s3, s{sH}, 10", f"s_add_u32 s3, s3, s{sP}",
                    "s_lshl_b32 s3, s3, 2", f"s_add_u32 s3, s3, {WS_FL2 + 32 * which}",
                    f"buffer_store_dword v{vPOLL}, v{vZERO}, {S4(S_WS)}, s3 offen sc1", "s_mov_b64 exec, -1"])
    def line_addr(ctx0): return [f"s_mov_b32 s3, {WS_FL3}"] if ctx0 else [f"s_lshl_b32 s3, s{sH}, 12", f"s_add_u32 s3, s3, {WS_FL2}"]
    def poll_issue(wave, ctx0=False):
        only(wave, line_addr(ctx0) + [
                    f"buffer_load_dword v{vPOLL}, v{vFL}, {S4(S_WS)}, s3 offen sc1"])
    def poll(wave, need, vmw, ctx0=False):
        if 'nopoll' in OPT: return
        lab = a.uid("POLL")
        a(f"s_cmp_lg_u32 s{sW}, {wave}")
        a(f"s_cbranch_scc1 {lab}D")
        for x in line_addr(ctx0): a(x)
        a(f"s_mov_b32 s{sT2}, 0")
        a(f"s_waitcnt vmcnt({vmw})")
        a(f"s_branch {lab}C")
        a.label(lab)
        a(f"s_sleep {OPT.get('sleep', 8)}")
        a(f"buffer_load_dword v{vPOLL}, v{vFL}, {S4(S_WS)}, s3 offen sc1")
        a("s_waitcnt vmcnt(0)")
        a.label(lab + "C")
        a(f"v_cmp_eq_u32 vcc, 0, v{vPOLL}")
        a(f"s_add_u32 s{sT2}, s{sT2}, 1")
        a(f"s_and_b32 s{S_T}, vcc_lo, {need}")
        a(f"s_cbranch_scc0 {lab}D")
        a(f"s_cmp_lt_u32 s{sT2}, 100000")
        a(f"s_cbranch_scc1 {lab}")
        a.label(lab + "D")

    emit(ld_gate())
    if 'noipf' not in OPT:
        only(6, ["s_getpc_b64 s[80:81]" if not STAMP else "s_getpc_b64 s[100:101]",
                 "s_lshr_b32 s3, s2, 3", "s_mul_i32 s3, s3, 3072", "v_lshl_add_u32 v118, v0, 7, s3",
                 "v_min_u32 v118, CODE_SPAN, v118",
                 f"v_mov_b32 v119, s{81 if not STAMP else 101}", f"v_add_co_u32 v118, vcc, s{80 if not STAMP else 100}, v118", "v_addc_co_u32 v119, vcc, 0, v119, vcc",
                 "s_mov_b64 exec, 0xffffff", "global_load_dword v120, v[118:119], off sc1", "s_mov_b64 exec, -1"])
        a.label("M_IPF")
    a(f"s_waitcnt vmcnt({vm.wait(('kv', 0))})")
    a("s_barrier")
    sp.mark("kv0")
    a(f"s_cmp_lg_u32 s{sG}, 0")
    a("s_cbranch_scc1 M_KVV")
    vm0 = list(vm.tags)
    spn = sp.n
    vAX, vAQ, vST = 2, 6, 10
    QA = 128
    PK = lambda z: (240 + 4 * z) if z < 4 else (80 + 4 * (z - 4))
    endwait = []
    for part in range(2):
        if part: a.label("M_KVV")
        vm.tags = list(vm0)
        sp.n = spn
        S = Stream(a, vm, dist=int(OPT.get('kd', 12)), per_gap=int(OPT.get('kpg', 2)), bar_delay=int(OPT.get('kbd', 3)))
        S.fill_rate = float(OPT.get('fr', 2.0))
        S.la = int(OPT.get('kla', 1)); S.ustep = int(OPT.get('kus', 1))
        rl = []
        for st in range(8):
            buf = (st & 1) * 32768
            for u in range(2):
                x = 2 * st + u
                for nt in range(4):
                    for hf in range(2):
                        rg = WFR[x & 1] + 4 * nt + 2 * hf
                        rl.append((32 * x + nt - 6, ("w", x, nt, hf),
                                   f"ds_read_b64_tr_b16 {vr(rg,2)}, v{vAW+nt} offset:{buf+u*8192+hf*1024}", rg, st))
                for kt in range(8):
                    rg = CFR + 4 * (kt % int(OPT.get('kring', 4)))
                    rl.append((32 * x + 4 * kt, ("c", x, kt), f"ds_read_b128 {vr(rg,4)}, v{vAC+u} offset:{buf+kt*2048}", rg, st))
                    for nt in range(4):
                        idx = kt * 4 + nt if part == 0 else ((kt >> 1) * 4 + nt) * 2 + (kt & 1)
                        acc = vr(ACC + 4 * idx, 4)
                        w, c = vr(WFR[x & 1] + 4 * nt, 4), vr(rg, 4)
                        cin = "0" if x == 0 else acc
                        S.op(f"{MFMA16} {acc}, {w}, {c}, {cin}" if part == 0 else f"{MFMA16} {acc}, {c}, {w}, {cin}",
                             [("w", x, nt, 0), ("w", x, nt, 1), ("c", x, kt)])
            sh = int(OPT.get('sh', 0))
            after = kv_dma(st + 2) if st < 6 else []
            if st == 5 and sh == 0: after = after + q_dma_x(0)
            if st == 6: after = (q_dma_x(0) if sh else []) + q_dma_w(0) + q_dma_x(1) + q_dma_w(1)
            if st == 7: after = q_dma_x(2) + q_dma_w(2)
            pad = [[] for _ in range(int(OPT.get('stag', 14)) if part == 1 else 0)]
            tags = [("kv", st + 1)] if st < 7 else [("q", 0)]
            pre = None
            if st == 0 and 'nopf2' not in OPT: after = after + pf2
            if st == sh - 1: after = after + ld_kv(part)
            if st == 1: tags += ["gt"]
            if st == 1 + sh:
                tags += ["kvs"]
                if part: pad = rd_kv()
                else: after = after + rd_kv()
            if st == 2: tags += ["pf"]
            if st == 2 + sh: after = after + ld_wo()
            if st == int(OPT.get('pfst', 4)): after = after + ld_pf()[:1]
            if st == int(OPT.get('hst', 6)): after = after + ld_pf()[1:]
            if st == 7: tags += ["pfq"]
            if st == 4 + sh:
                tags += ["wo"]
                pre = lambda: (chk.append(1), a("s_waitcnt lgkmcnt(0)"))
                if part: pad = rd_post() + pad[8:]
                else: after = after + rd_post()
            after = pad + after
            if part == 0:
                if st == 1: after = [clean_set] + after
                if st in (6, 7): after = after + [lambda st=st: clean_issue(st - 6)]
            after = [lambda st=st: sp.mark(f"k{st}")] + after
            S.barrier_after_stage(st, tags, after, pre)
        rl.sort(key=lambda r: (r[4], r[0]))
        for r in rl: S.read(r[1], r[2], r[3], r[4], r[0])
        chk = []
        def before_b4(): assert not chk, "kvT job too late"
        if sh == 0:
            for i, it in enumerate(ld_kv(part)): S.timed.append((int(OPT.get('kvp', 2)) + 3 * i, it, 48))
        if part == 0: S.timed.append((20, clear_line, 48))
        for it in job_gate(): S.filler(2 * 64 - 8, 1, it)
        for it in job_kvt(): S.filler((3 + sh) * 64 - 10 - 30 * sh, 1, it)
        S.filler(0, 0, before_b4)
        jp = job_post()
        if 'nowost' in OPT: jp = jp[3:]
        if 'nokvst' in OPT: jp = jp[:3]
        for i, it in enumerate(jp):
            S.filler((5 + sh) * 64 + 16 + 7 * part + int(OPT.get('pstep', 30 - 10 * sh)) * i, 1, it)
        S.run([0])
        sp.mark("kv")
        a(f"s_lshr_b32 s{sT}, s{sW}, 1")
        a(f"s_lshl_b32 s{sT}, s{sT}, 13")
        a(f"s_and_b32 s{sT2}, s{sW}, 1")
        a(f"s_lshl_b32 s{sT2}, s{sT2}, 2")
        a("s_mov_b32 s3, 65536")
        frag_addrs(vAX, sT, vAQ, sT2, 3)
        a(f"v_add_u32 v{vAX+2}, 131072, v{vAX}")
        a(f"v_add_u32 v{vAX+3}, 131072, v{vAX+1}")
        S = Stream(a, vm, dist=int(OPT.get('qd', 10)), per_gap=2, bar_delay=int(OPT.get('qbd', 3)))
        S.fill_rate = 1.0
        S.la = int(OPT.get('qla', 1)); S.ustep = int(OPT.get('qus', 1))
        rl = []
        EARLYV = 'latev' not in OPT
        KPUB, VPUB = int(OPT.get('kpub', 4)), int(OPT.get('vpub', 8 if EARLYV else 9))
        for k in range(10):
            xb = XB[(k + 2) % 3]
            for u in range(2):
                x = 2 * k + u
                for nt in range(4):
                    for hf in range(2):
                        rg = WFR[x & 1] + 4 * nt + 2 * hf
                        rl.append((16 * x + nt - 5, ("w", x, nt, hf),
                                   f"ds_read_b64_tr_b16 {vr(rg,2)}, v{vAQ+nt} offset:{(k%3)*16384+u*8192+hf*1024}", rg, k))
                for qi in range(4):
                    rg = CFR + 4 * qi
                    av = vAX + u + (2 if xb == 131072 else 0)
                    rl.append((16 * x + 4 * qi, ("c", x, qi), f"ds_read_b128 {vr(rg,4)}, v{av} offset:{(xb%131072)+qi*2048}", rg, k))
                    for nt in range(4):
                        acc = vr(QA + 4 * (qi * 4 + nt), 4)
                        S.op(f"{MFMA16} {acc}, {vr(WFR[x&1]+4*nt,4)}, {vr(rg,4)}, {'0' if x == 0 else acc}",
                             [("w", x, nt, 0), ("w", x, nt, 1), ("c", x, qi)])
            tags, after, pre = [("q", k + 1)], [], None
            if k + 3 <= 9: after = q_dma_x(k + 3) + q_dma_w(k + 3)
            if k == KPUB - 1 and part == 0: pre = clean_check
            if k == KPUB: tags.append("pr2")
            if k == KPUB and part == 0: tags.append("st"); after = [lambda: publish(0, 0)] + after
            KP = int(OPT.get('kpoll', 7))
            if k == KP - 1 and part == 0: after = [lambda: (poll_issue(1), vm.add("mark"), vm.ghost.add("mark"))] + after
            if k == KP:
                if part == 0: pre = lambda: poll(1, 1, vm.wait("mark"))
                after = [[f"s_mov_b32 s{S_K}, s{S_WS}", f"s_mov_b32 s{S_K+1}, s{S_WS+1}", f"s_mov_b32 s{S_K+2}, s{S_V+2}"]] + kdma(0, "k0") + kdma(1, "k0")
            if k == 8: after = after + kdma(2, "k2")
            if k == 9: tags = []
            if k == VPUB and part == 1: tags.append("st"); after = [lambda: publish(4, 1)] + after
            if k == 9 and part == 1 and EARLYV: after = after + [lambda: poll_issue(5)]
            if part == 1: after = [[] for _ in range(int(OPT.get('qstag', 0)))] + after
            after = [lambda k=k: sp.mark(f"q{k}")] + after
            S.barrier_after_stage(k, tags, after, pre)
        rl.sort(key=lambda r: (r[4], r[0]))
        for r in rl: S.read(r[1], r[2], r[3], r[4], r[0])
        npre = 10
        for r in rl[:npre]: a(r[2])
        a(f"v_add_u32 v{vST}, {4096 >> part}, v{vL16}")
        a(f"v_mov_b32 v{vZERO}, 0")
        a(f"v_and_b32 v{vFL}, 31, v0")
        a(f"v_lshlrev_b32 v{vFL}, 2, v{vFL}")
        for z in list(range(4, 16)) + list(range(4)):
            for e in range(4):
                a(f"v_cvt_pk_bf16_f32 v{PK(z)+e}, v{ACC+8*z+2*e}, v{ACC+8*z+2*e+1}")
        SC = " " + OPT.get('stsc', 'sc1').replace('_', ' ')
        st0, stp = (2, int(OPT.get('stp', 5))) if part == 0 else (int(OPT.get('vst', 84)), int(OPT.get('stpv', 8)))
        for z in range(16 if 'nost' not in OPT else 1):
            j, c = z >> 2, z & 3
            S.filler(st0 + stp * z, 1, [f"s_add_u32 s3, s{sOB}, {j*8192}",
                     (f"buffer_store_dwordx4 {vr(PK(z),4)}, v{vST if c >> 1 else vL16}, {S4(S_WS)}, s3 offen offset:{(c&1)*1024}{SC}", "st")])
        S.run([0], preissued=npre)
        endwait.append(vm.wait("k0"))
        if part == 0: a("s_branch M_KVD")
    a.label("M_KVD")
    sp.mark("q")
    vKA, vVA, vD0, vQ2, vNINF, vTA, vX0, T = 2, 3, 4, 5, 8, 9, 10, 16
    FK, FV, P, SS, O, Q, NEGM, ONES, LS = 28, 60, [92, 100], [108, 124], 140, 204, 236, 244, 248
    BIAS = 12.0
    a(f"s_mov_b32 s{sT}, {f32hex(1.4426950408889634 * 128 ** -0.5)}")
    a(f"s_lshr_b32 s{sT2}, s{sW}, 1")
    a(f"s_lshl_b32 s{sT2}, s{sT2}, 14")
    a(f"s_and_b32 s3, s{sW}, 1")
    a("s_lshl_b32 s3, s3, 11")
    a(f"s_add_u32 s{sT2}, s{sT2}, s3")
    a(f"s_add_u32 s{sT2}, s{sT2}, 98304")
    a(f"v_add_u32 v6, s{sT2}, v{vL16}")
    a(f"s_lshl_b32 s{sT2}, s{sG}, 15")
    a(f"s_lshl_b32 s3, s{sRB}, 12")
    a(f"s_add_u32 s{sT2}, s{sT2}, s3")
    a(f"s_add_u32 s{sT2}, s{sT2}, 98304")
    a(f"v_add_u32 v{vQ2}, s{sT2}, v{vL16}")
    a(f"s_lshl_b32 s{sWO}, s{sG}, 13")
    if SHARE: a(f"v_mov_b32 v{vKA}, v{vL16}")
    else: a(f"v_add_u32 v{vKA}, s{sWO}, v{vL16}")
    a(f"v_add_u32 v{vVA}, 65536, v{vKA}")
    for f in range(8):
        for e in range(4):
            r = QA + 8 * f + 2 * e
            a(f"v_mul_f32 v{r}, s{sT}, v{r}")
            a(f"v_mul_f32 v{r+1}, s{sT}, v{r+1}")
            a(f"v_cvt_pk_bf16_f32 v{Q+4*f+e}, v{r}, v{r+1}")
        a(f"ds_write_b128 v6, {vr(Q+4*f,4)} offset:{(f>>1)*4096+(f&1)*1024}")
    a("v_and_b32 v7, 15, v0")
    a("v_lshrrev_b32 v8, 4, v0")
    a(f"s_lshl_b32 s{sT}, s{sRB}, 4")
    a(f"v_add_u32 v{vD0}, s{sT}, v7")
    a("v_lshlrev_b32 v8, 2, v8")
    a(f"v_sub_u32 v{vD0}, v{vD0}, v8")
    a(f"v_mov_b32 v{vNINF}, 0xff800000")
    for r in range(8): a(f"v_mov_b32 v{NEGM+r}, 0")
    for r in range(4): a(f"v_mov_b32 v{ONES+r}, 0x3f803f80")
    poll(5, 0x101, 0)
    a(f"s_waitcnt vmcnt({min(endwait)}) lgkmcnt(0)")
    a("s_barrier")
    sp.mark("qx")
    def kread(e, t): return f"ds_read_b128 {vr(FK+4*t,4)}, v{vKA} offset:{(e&3)*16384+t*1024}"
    def vread(e, i): return f"ds_read_b128 {vr(FV+4*i,4)}, v{vVA} offset:{(e&3)*16384+i*1024}"
    def qread(extra): return [f"ds_read_b128 {vr(Q+4*f,4)}, v{vQ2} offset:{extra+(f>>2)*16384+(f&3)*1024}" for f in range(8)]
    for x in qread(0): a(x)
    for i in range(8): a(kread(0, i))
    a(f"s_mov_b32 s{sS}, 0")
    a("s_waitcnt lgkmcnt(0)")

    handlers = []
    def xreduce(op, x, tmp):
        a(f"v_mov_b32 v{tmp}, v{x}")
        a(f"v_permlane16_swap_b32 v{x}, v{tmp}")
        a(f"{op} v{x}, v{x}, v{tmp}")
        a(f"v_mov_b32 v{tmp}, v{x}")
        a(f"v_permlane32_swap_b32 v{x}, v{tmp}")
        a(f"{op} v{x}, v{x}, v{tmp}")
    def rowmax(dst, tmp, src):
        a(f"v_max3_f32 v{dst}, v{src}, v{src+1}, v{src+2}")
        a(f"v_max3_f32 v{dst}, v{dst}, v{src+3}, v{src+4}")
        a(f"v_max3_f32 v{dst}, v{dst}, v{src+5}, v{src+6}")
        a(f"v_max_f32 v{dst}, v{dst}, v{src+7}")
        xreduce("v_max_f32", dst, tmp)
    def sm_ops(Sc, Pw, hi_only=False):
        f = []
        def post(q):
            f.append((1, [f"v_cvt_pk_bf16_f32 v{Pw+q//2}, v{T+q%8}, v{T+(q+1)%8}"]))
            k = q // 2
            if hi_only:
                if k == 7:
                    f.append((1, [f"v_or3_b32 v{vTA}, v{Pw+4}, v{Pw+5}, v{Pw+6}"]))
                    f.append((1, [f"v_bitop3_b32 v{vTA}, v{vTA}, v{Pw+7}, s{sTHR} bitop3:0xa8"]))
                return
            if k == 3: f.append((1, [f"v_or3_b32 v{vTA}, v{Pw}, v{Pw+1}, v{Pw+2}"]))
            if k == 5: f.append((1, [f"v_or3_b32 v{vTA}, v{vTA}, v{Pw+3}, v{Pw+4}"]))
            if k == 7:
                f.append((1, [f"v_or3_b32 v{vTA}, v{vTA}, v{Pw+5}, v{Pw+6}"]))
                f.append((1, [f"v_bitop3_b32 v{vTA}, v{vTA}, v{Pw+7}, s{sTHR} bitop3:0xa8"]))
        r0 = 8 if hi_only else 0
        for r in range(r0, 16):
            f.append((2, [f"v_exp_f32 v{T+r%8}, v{Sc+r}"]))
            if r % 2 == 1 and r >= r0 + 3: post(r - 3)
        post(14)
        return f
    def store_ctx(qis, sct, obase):
        n = 0
        for qi in qis:
            for u in range(4):
                d = T + (n % 2) * 4
                n += 1
                src = obase(qi) + 8 * u
                for e in range(4): a(f"v_cvt_pk_bf16_f32 v{d+e}, v{src+2*e}, v{src+2*e+1}")
                if u == 0 and qi == 1 and len(qis) == 2: a(f"s_add_u32 s{sct}, s{sct}, {4*CS}")
                a(f"buffer_store_dwordx4 {vr(d,4)}, v{vL16}, {S4(S_WS)}, s{sct} offen offset:{u*1024}{' sc1' if FUSE else ''}")

    sX = sROW
    def slot(j, name, qk=True, sm=True, pv=True, nxt=True, dma=True, last=False, prebar=None, fresh=False, fast=None, hi=""):
        par = j & 1
        Sc, Sn, Pw, Pr = SS[1 - par], SS[par], P[1 - par], P[par]
        if fast:
            a.label(name + "_GO")
            handlers.append(("entry", name))
            handlers.append(("ev", name, Sc))
        else:
            a.label(name)
            if sm or pv:
                a(f"s_bitcmp1_b64 s[{sEV}:{sEV+1}], s{sS}")
                a(f"s_cbranch_scc1 {name}_EV")
                a.label(name + "_GO")
                handlers.append(("ev", name, Sc))
        ms = []
        if qk:
            for t in range(8):
                kt, u = t >> 2, t & 3
                mm = []
                for qi in range(1 if "q" in hi else 0, 2):
                    d = vr(Sn + 8 * qi + 4 * kt, 4)
                    mm.append(f"{MFMA16} {d}, {vr(FK+4*t,4)}, {vr(Q+16*qi+4*u,4)}, {vr(NEGM+4*qi,4) if u == 0 else d}")
                ms.append(mm)
        if pv:
            for i in range(8):
                mm = []
                for qi in range(1 if "p" in hi else 0, 2):
                    o = vr(O + 32 * qi + 4 * i, 4)
                    mm.append(f"{MFMA16} {o}, {vr(FV+4*i,4)}, {vr(Pr+4*qi,4)}, {'0' if fresh else o}")
                if i == 3:
                    for qi in range(1 if "p" in hi else 0, 2):
                        mm.append(f"{MFMA16} {vr(LS+4*qi,4)}, {vr(ONES,4)}, {vr(Pr+4*qi,4)}, {'0' if fresh else vr(LS+4*qi,4)}")
                ms.append(mm)
        n = len(ms)
        pre = [[] for _ in range(n)]; post = [[] for _ in range(n)]
        if qk and pv:
            for i in range(8): post[i // 2].append(vread(j - 2, i))
            K0 = int(OPT.get('k0', 4))
            if nxt:
                for t in range(8): post[K0 + t].append(kread(j + 1, t))
            pre[8].append(f"s_waitcnt lgkmcnt({(8 - K0) if nxt else 0})")
        elif qk:
            if nxt:
                for t in range(8): post[t].append(kread(j + 1, t))
        else:
            for i in range(8): a(vread(j - 2, i))
            for i in range(0, 8, 2): pre[i].append(f"s_waitcnt lgkmcnt({6 - i})")
        if dma and not ('nodma' in OPT and fast):
            h0, h1 = sHIST[(j + 3) & 3], sHIST[(j + 2) & 3]
            dp = [int(x) for x in OPT.get('dp', '4,6,9,11').split(',')] if n == 16 else [1, 3, 5, 7]
            pre[dp[0]].insert(0, f"s_add_u32 m0, s{sM0V}, {(j & 3) * 16384}")
            post[dp[0]].append(f"buffer_load_dwordx4 v{vL16}, {S4(S_V)}, s{sHIST[j&3]} offen sc1 lds")
            post[dp[1]].append(f"buffer_load_dwordx4 v{vL16}, {S4(S_V)}, s{sHIST[j&3]} offen offset:1024 sc1 lds")
            pre[dp[2]] = [f"s_add_u32 m0, s{sM0K}, {((j + 3) & 3) * 16384}", f"s_add_u32 s{h0}, s{h1}, s{sBASE}"] + pre[dp[2]]
            post[dp[2]].append(f"buffer_load_dwordx4 v{vL16}, {S4(S_K)}, s{h0} offen sc1 lds")
            post[dp[3]].append(f"buffer_load_dwordx4 v{vL16}, {S4(S_K)}, s{h0} offen offset:1024 sc1 lds")
        if fast: post[12] += [f"s_add_u32 s{sS}, s{sS}, 1", f"s_bitcmp1_b64 s[{sEV}:{sEV+1}], s{sS}", f"s_cselect_b32 s{sX}, 1, 0"]
        groups = []
        for m in range(n):
            for k, x in enumerate(ms[m]):
                groups.append((pre[m] if k == 0 else [], x, post[m] if k == len(ms[m]) - 1 else []))
        fl = sm_ops(Sc, Pw, "s" in hi) if (sm and 'nosm' not in OPT) else []
        if fast: fl.append((1, [f"v_cmp_ne_u32 vcc, s{sX}, v{vTA}"]))
        elif sm: fl.append((1, [f"v_cmp_ne_u32 vcc, 0, v{vTA}"]))
        interleave(a, groups, fl, max(len(groups) - 3, 1))
        if fast:
            if fast == "AT_L2":
                a("s_cbranch_vccz AT_TOP")
                a(f"s_branch {name}_SP")
            else:
                a(f"s_cbranch_vccnz {name}_SP")
                a("s_waitcnt vmcnt(4) lgkmcnt(0)")
                if 'nobar' not in OPT: a("s_barrier")
            handlers.append(("special", name, fast))
            handlers.append(("slow", name, Sc, Sn, Pw))
            return
        if sm:
            a(f"s_cbranch_vccnz {name}_SLOW")
            a.label(name + "_RET")
            handlers.append(("slow", name, Sc, Sn, Pw))
        if not last:
            a(f"s_add_u32 s{sS}, s{sS}, 1")
            if prebar: prebar()
            a(f"s_waitcnt vmcnt({4 if dma else 0}) lgkmcnt(0)")
            a("s_barrier")

    slot(0, "AT_S0", sm=False, pv=False)
    sp.mark("s0")
    slot(1, "AT_S1", pv=False)
    sp.mark("s1")
    poll_issue(2)
    slot(2, "AT_S2", prebar=lambda: poll(2, 0xffff, 4), fresh=True)
    sp.mark("s2")
    a("s_branch AT_L3")
    a(".p2align 6")
    a.label("AT_TOP")
    a("s_waitcnt vmcnt(4) lgkmcnt(0)")
    if 'nobar' not in OPT: a("s_barrier")
    slot(2, "AT_L2", fast="AT_L3"); slot(3, "AT_L3", fast="AT_L0"); slot(0, "AT_L0", fast="AT_L1"); slot(1, "AT_L1", fast="AT_L2")
    a.label("AT_P33")
    sp.mark("s32")
    if FUSE: poll_issue(6, True)
    HI = 'nohi' not in OPT
    slot(1, "AT_S33", nxt=False, prebar=(lambda: poll(6, -1, 4, True)) if FUSE else None, hi="q" if HI else "")
    slot(2, "AT_S34", qk=False, nxt=False, dma=False, hi="s" if HI else "")
    if FUSE and 'lateconv' not in OPT:
        for x in tsrd(PT + 6, 2621440): a(x)
        gen_tail.conv_dma(a, {k: v for k, v in globals().items() if not k.startswith("__") and k != "gen_tail"}, sW, S_WS, S_T, sT, sT2, 3, sCO, vL16, 6, 7,
                          98304, "AT_S35", " sc1")
    slot(3, "AT_S35", qk=False, sm=False, nxt=False, dma=False, last=True, hi="p" if HI else "")
    sp.mark("s35")
    X0, X1, X2, X3, X4, X5 = range(vX0, vX0 + 6)
    MA0, MA1, MA2, MA3, MT = FK, FK + 1, FK + 2, FK + 3, FK + 4
    a(f"s_mul_i32 s{sT}, s{sW}, {8192+512}")
    a(f"s_xor_b32 s{sT2}, s{sW}, 4")
    a(f"s_mul_i32 s{sT2}, s{sT2}, {8192+512}")
    a(f"v_add_u32 v{MA0}, s{sT}, v{vL16}")
    a(f"v_add_u32 v{MA1}, s{sT2}, v{vL16}")
    a(f"v_lshlrev_b32 v{MA2}, 3, v0")
    a(f"v_add_u32 v{MA3}, s{sT2}, v{MA2}")
    a(f"v_add_u32 v{MA2}, s{sT}, v{MA2}")
    a(f"s_cmp_eq_u32 s{sG}, 0")
    a("s_cbranch_scc1 AT_MA")
    for gsel in (1, 0):
        if gsel == 0: a.label("AT_MA")
        own, snd = O + 32 * gsel, O + 32 * (1 - gsel)
        a(f"v_mov_b32 v{X4}, v{NEGM+4*(1-gsel)}")
        a(f"v_mov_b32 v{X5}, v{LS+4*(1-gsel)}")
        a(f"ds_write_b64 v{MA2}, v[{X4}:{X5}] offset:8192")
        for q in range(8): a(f"ds_write_b128 v{MA0}, {vr(snd+4*q,4)} offset:{1024*q}")
        if gsel: a(f"s_add_u32 s{sCT2}, s{sCT2}, {4*CS}")
        a("s_waitcnt lgkmcnt(0)")
        a("s_barrier")
        a(f"ds_read_b64 v[{X2}:{X3}], v{MA3} offset:8192")
        for q in range(8): a(f"ds_read_b128 {vr(snd+4*q,4)}, v{MA1} offset:{1024*q}")
        a("s_waitcnt lgkmcnt(8)")
        a(f"v_min_f32 v{vTA}, v{NEGM+4*gsel}, v{X2}")
        a(f"v_sub_f32 v{X0}, v{vTA}, v{NEGM+4*gsel}")
        a(f"v_sub_f32 v{X2}, v{vTA}, v{X2}")
        a(f"v_exp_f32 v{X0}, v{X0}")
        a(f"v_exp_f32 v{X2}, v{X2}")
        a(f"v_mul_f32 v{vTA}, v{LS+4*gsel}, v{X0}")
        a(f"v_fmac_f32 v{vTA}, v{X3}, v{X2}")
        a(f"v_rcp_f32 v{vTA}, v{vTA}")
        a(f"v_mul_f32 v{X0}, v{X0}, v{vTA}")
        a(f"v_mul_f32 v{X2}, v{X2}, v{vTA}")
        for u in range(4):
            for r in range(8 * u, 8 * u + 8): a(f"v_mul_f32 v{own+r}, v{own+r}, v{X0}")
            a(f"s_waitcnt lgkmcnt({6-2*u})")
            for r in range(8 * u, 8 * u + 8): a(f"v_fmac_f32 v{own+r}, v{snd+r}, v{X2}")
            for e in range(4): a(f"v_cvt_pk_bf16_f32 v{MT+4*u+e}, v{own+8*u+2*e}, v{own+8*u+2*e+1}")
            a(f"buffer_store_dwordx4 {vr(MT+4*u,4)}, v{vL16}, {S4(S_WS)}, s{sCT2} offen offset:{u*1024}{' sc1' if FUSE else ''}")
        if gsel: a("s_branch AT_MB")
    a.label("AT_MB")
    if FUSE:
        sp.mark("att")
        gen_tail.gen_tail(a, {k: v for k, v in globals().items() if not k.startswith("__") and k != "gen_tail"}, dict(sW=sW, sH=sH, sP=sP, sp=sp))
    elif STAMP:
        a("s_waitcnt vmcnt(0)")
        sp.mark("end")
        a("s_waitcnt lgkmcnt(0)")
        sp.flush(100, sW, 0, slot=0); sp.flush(100, sW, 4, slot=1)
    a.label("M_END")
    a("s_endpgm")
    for hd in handlers:
        if hd[0] == "entry":
            name = hd[1]
            a.label(name)
            a(f"s_bitcmp1_b64 s[{sEV}:{sEV+1}], s{sS}")
            a(f"s_cbranch_scc0 {name}_GO")
        elif hd[0] == "special":
            _, name, nx = hd
            a.label(name + "_SP")
            a(f"v_cmp_ne_u32 vcc, 0, v{vTA}")
            a(f"s_cbranch_vccnz {name}_SLOW")
            a.label(name + "_RET")
            a("s_waitcnt vmcnt(4) lgkmcnt(0)")
            if 'nobar' not in OPT: a("s_barrier")
            if nx == "AT_L1":
                a(f"s_cmp_eq_u32 s{sS}, 33")
                a("s_cbranch_scc1 AT_P33")
            a(f"s_branch {nx}")
        elif hd[0] == "ev":
            _, name, Sc = hd
            a.label(name + "_EV")
            a(f"s_cmp_eq_u32 s{sS}, s{sWRAP}")
            a(f"s_cselect_b32 s{sBASE}, 16384, s{sBASE}")
            if SHARE:
                a(f"s_cselect_b32 s{S_K+2}, {16*MB}, s{S_K+2}")
                a(f"s_sub_u32 s{sT}, s{sS}, s{sWRAP}")
                a(f"s_cmp_eq_u32 s{sT}, 3")
                a(f"s_cselect_b32 s{S_V+2}, {16*MB}, s{S_V+2}")
                a(f"s_cmp_eq_u32 s{sT}, 2")
                a(f"s_cselect_b32 s{sT2}, s{sWO}, 0")
                a(f"v_add_u32 v{vKA}, s{sT2}, v{vKA}")
                a(f"s_cmp_eq_u32 s{sT}, 5")
                a(f"s_cselect_b32 s{sT2}, s{sWO}, 0")
                a(f"v_add_u32 v{vVA}, s{sT2}, v{vVA}")
            a(f"s_cmp_eq_u32 s{sS}, 31")
            a(f"s_cselect_b32 s{S_K+2}, 0, s{S_K+2}")
            a(f"s_sub_u32 s{sT}, s{sS}, s{sN1}")
            a(f"s_cmp_lg_u32 s{sT}, 2")
            a(f"s_cbranch_scc1 {name}_E1")
            a(f"v_rcp_f32 v{vX0}, v{LS}")
            a(f"v_rcp_f32 v{vX0+1}, v{LS+4}")
            for r in range(8): a(f"v_mov_b32 v{LS+r}, 0")
            for r in range(64): a(f"v_mul_f32 v{O+r}, v{O+r}, v{vX0+(r>>5)}")
            store_ctx((0, 1), sCT1, lambda qi: O + 32 * qi)
            for r in range(64): a(f"v_mov_b32 v{O+r}, 0")
            a.label(name + "_E1")
            if FUSE:
                only(0, ["s_mov_b64 exec, 1", f"v_mov_b32 v{vX0}, 1", f"s_lshl_b32 s3, s{sP}, 10", f"s_add_u32 s3, s3, s{sH}", "s_lshl_b32 s3, s3, 2",
                         f"s_add_u32 s3, s3, {WS_FL3}", f"buffer_store_dword v{vX0}, v{vZERO}, {S4(S_WS)}, s3 offen sc1", "s_mov_b64 exec, -1"],
                     f"s_cmp_lg_u32 s{sT}, 3")
            a(f"s_cmp_lg_u32 s{sT}, 0")
            a(f"s_cbranch_scc1 {name}_E2")
            for x in qread(32768): a(x)
            for r in range(8): a(f"v_mov_b32 v{NEGM+r}, 0")
            a("s_waitcnt lgkmcnt(0)")
            a.label(name + "_E2")
            a(f"s_sub_u32 s{sT2}, s{sS}, s{sMST}")
            a(f"s_sub_u32 s{sT2}, s{sT2}, 1")
            a(f"s_cmp_lt_u32 s{sT2}, 4")
            a(f"s_cbranch_scc1 {name}_EM")
            a(f"s_cmp_lt_u32 s{sS}, 33")
            a(f"s_cbranch_scc1 {name}_E3")
            a(f"s_sub_u32 s{sT2}, s{sS}, 33")
            a(f"s_lshl_b32 s{sT2}, s{sT2}, 1")
            a(f"s_add_u32 s{sT2}, s{sT2}, s{sG}")
            a.label(name + "_EM")
            a(f"s_lshl_b32 s{sT2}, s{sT2}, 5")
            a(f"v_subrev_u32 v{vX0}, s{sT2}, v{vD0}")
            a(f"v_add_u32 v{vX0+1}, 64, v{vX0}")
            for qi in range(2):
                for kt in range(2):
                    for e in range(4):
                        a(f"v_cmp_le_i32 s[{sMK+2*e}:{sMK+2*e+1}], {16*kt+e}, v{vX0+qi}")
                    for e in range(4):
                        r = Sc + 8 * qi + 4 * kt + e
                        a(f"v_cndmask_b32 v{r}, v{vNINF}, v{r}, s[{sMK+2*e}:{sMK+2*e+1}]")
            a.label(name + "_E3")
            a(f"s_cmp_eq_u32 s{sT}, 1")
            a(f"s_cbranch_scc1 {name}_E4")
            a(f"s_cmp_lg_u32 s{sS}, 1")
            a(f"s_cbranch_scc1 {name}_GO")
            a.label(name + "_E4")
            for qi in range(2):
                rowmax(vX0 + qi, vX0 + 2 + qi, Sc + 8 * qi)
                a(f"v_add_f32 v{vX0+qi}, {f32hex(BIAS)}, v{vX0+qi}")
            for r in range(8): a(f"v_sub_f32 v{NEGM+r}, v{NEGM+r}, v{vX0+(r>>2)}")
            for r in range(16): a(f"v_sub_f32 v{Sc+r}, v{Sc+r}, v{vX0+(r>>3)}")
            a(f"s_branch {name}_GO")
        else:
            _, name, Sc, Sn, Pw = hd
            a.label(name + "_SLOW")
            for qi in range(2):
                rowmax(vX0 + qi, vX0 + 2 + qi, Sc + 8 * qi)
                a(f"v_add_f32 v{vX0+qi}, {f32hex(BIAS)}, v{vX0+qi}")
                a(f"v_max_f32 v{vX0+qi}, 0, v{vX0+qi}")
                a(f"v_exp_f32 v{vX0+2+qi}, -v{vX0+qi}")
            for r in range(8): a(f"v_sub_f32 v{NEGM+r}, v{NEGM+r}, v{vX0+(r>>2)}")
            for r in range(16): a(f"v_sub_f32 v{Sn+r}, v{Sn+r}, v{vX0+(r>>3)}")
            for r in range(16): a(f"v_sub_f32 v{Sc+r}, v{Sc+r}, v{vX0+(r>>3)}")
            for r in range(64): a(f"v_mul_f32 v{O+r}, v{O+r}, v{vX0+2+(r>>5)}")
            for r in range(8): a(f"v_mul_f32 v{LS+r}, v{LS+r}, v{vX0+2+(r>>2)}")
            for c, ops in sm_ops(Sc, Pw):
                for x in ops: a(x)
            a(f"s_branch {name}_RET")
    a.label("M_LAST")
    a("s_endpgm")
    return dict(name="gated_mix__ssm_conv_h3__compressed_kv_cla__prompt_kernel" if FUSE else "main_kernel", grid=256, block=512, lds=163840, vgpr=256)

import gen as G1
G1.STAMP = False
KERNELS = {"main": gen_main, "conv": G1.gen_conv, "oproj": G1.gen_oproj, "tail": lambda a: gen_tail.gen_tail(a, {k: v for k, v in globals().items() if not k.startswith("__") and k != "gen_tail"})}

def build(names, path, verbose=False):
    hdr = open("gated_mix__ssm_conv_h3__compressed_kv_cla__prompt.s.ref").read().split("\n")
    hdr = [l for l in hdr if l.startswith(";") and "@launch" not in l and "Override" not in l and "grid=ceil" not in l]
    codes, descs, launches = [], [], []
    for n in names:
        a = Asm()
        info = KERNELS[n](a)
        k = fix_hazards(a.lines, verbose)
        print(f"{n}: {len(a.lines)} lines, {k} nops inserted")
        c, d = kernel_text(info["name"], a.lines, info["vgpr"], extra="  .amdhsa_float_denorm_mode_32 3\n")
        codes.append(c); descs.append(d)
        kn = "" if "plain" in OPT else f"kernel={info['name']} "
        launches.append(f"; @launch {kn}grid=({info['grid']},1,1) block=({info['block']},1,1) lds={info['lds']}")
    txt = "\n".join(hdr + launches) + '\n.amdgcn_target "amdgcn-amd-amdhsa--gfx950"\n.text\n' + "\n".join(codes) + \
          '\n.section .rodata,"a"\n' + "\n".join(descs)
    if "CODE_SPAN" in txt: txt = txt.replace("CODE_SPAN", str(int(OPT.get("ipf", 77000))))
    open(path, "w").write(txt)

if __name__ == "__main__":
    names = sys.argv[2].split(",") if len(sys.argv) > 2 else list(KERNELS)
    build(names, sys.argv[1] if len(sys.argv) > 1 else "k2.s", verbose="-v" in sys.argv)
```

```python
import sys, struct
from asmlib import *
from sched import *
import gen_tail

MB = 1 << 20
WS_KF, WS_VF, WS_CTX, WS_WOT, WS_KVT, WS_Y2T, WS_G = 0, 16 * MB, 32 * MB, 49 * MB, 56 * MB, 60 * MB, 63 * MB
KA = dict(A_q=0, A_k=8, A_v=16, shift=24, ssm_k=32, ssm_D=40, B_x=48, c_kv=56, w_q=64, w_uk=72, w_uv=80, w_o=88,
          gate=96, out=104, dbg=112, ws=120)
MFMA32 = "v_mfma_f32_32x32x16_bf16"
MFMA16 = "v_mfma_f32_16x16x32_bf16"
STAMP = "-stamp" in sys.argv
OPT = {x[2:].split("=")[0]: (x.split("=")[1] if "=" in x else "1") for x in sys.argv if x.startswith("--")}
WS_FLG = 63 * MB + 524288
WS_FL2 = 63 * MB + 655360
WS_FL3 = WS_FL2 + 131072
FUSE = 'nofuse' not in OPT
CS = 131072 + int(OPT.get('cspad', 1024))
RS = 4096 + int(OPT.get('rspad', 128))
OOB = "0x80000000"
def f32hex(x): return "0x%08x" % struct.unpack("<I", struct.pack("<f", x))[0]

def srd(a, d, lo, hi, size, add=0):
    if add:
        a(f"s_add_u32 s{d}, s{lo}, {add}")
        a(f"s_addc_u32 s{d+1}, s{hi}, 0")
    else:
        a(f"s_mov_b32 s{d}, s{lo}")
        a(f"s_mov_b32 s{d+1}, s{hi}")
    a(f"s_mov_b32 s{d+2}, {size}")
    a(f"s_mov_b32 s{d+3}, 0x00020000")
def S4(d): return f"s[{d}:{d+3}]"

class Stamps:
    def __init__(self, a, base=70, region=0):
        self.a, self.base, self.n, self.region = a, base, 0, region
    off = False
    def mark(self, name=""):
        if not STAMP or self.off: return
        if name not in OPT.get("marks", "start,kv,q,s1,end,t0,t1,t2").split(","): return
        assert self.base + 2 * self.n + 3 <= 101
        self.a(f"s_memtime s[{self.base+2*self.n}:{self.base+2*self.n+1}]")
        self.a(f"s_memrealtime s[{self.base+2*self.n+2}:{self.base+2*self.n+3}]")
        self.n += 2
    def flush(self, wg, sW, wave, slot=0):
        if not STAMP: return
        a = self.a
        lab = a.uid("STK")
        a(f"s_cmp_lg_u32 s{sW}, {wave}")
        a(f"s_cbranch_scc1 {lab}")
        if 'dbgstamp' in OPT:
            if slot:
                a.label(lab); return
            a(f"s_cmp_lg_u32 s2, {OPT['dbgstamp']}")
            a(f"s_cbranch_scc1 {lab}")
            a(f"s_load_dwordx2 s[60:61], s[0:1], {KA['dbg']}")
            a("s_waitcnt lgkmcnt(0)")
            a("s_mov_b32 s62, 64")
            a("s_mov_b32 s63, 0x00020000")
            a("v_mov_b32 v1, 0")
            for i in range(self.n - 1, 1, -1): a(f"s_sub_u32 s{self.base+2*i}, s{self.base+2*i}, s{self.base+2*i-4}")
        else:
            a(f"s_load_dwordx2 s[60:61], s[0:1], {KA['ws']}")
            a("s_waitcnt lgkmcnt(0)")
            a(f"s_add_u32 s60, s60, {128*MB + self.region*65536 + slot*64}")
            a("s_addc_u32 s61, s61, 0")
            a("s_mov_b32 s62, 65536")
            a("s_mov_b32 s63, 0x00020000")
            a("s_lshl_b32 s3, s2, 7")
            a("v_mov_b32 v1, s3")
        for i in range(self.n):
            a(f"v_mov_b32 v2, s{self.base+2*i}")
            a(f"buffer_store_dword v2, v1, s[60:63], 0 offen offset:{4*i}")
        a("s_getreg_b32 s3, hwreg(HW_REG_XCC_ID)")
        a("v_mov_b32 v2, s3")
        a(f"buffer_store_dword v2, v1, s[60:63], 0 offen offset:60")
        a("s_waitcnt vmcnt(0)")
        a.label(lab)

def rnd_pair(d, lo, hi, olo, ohi):
    return [f"v_cvt_pk_bf16_f32 v{d}, v{lo}, v{hi}", f"v_lshlrev_b32 v{olo}, 16, v{d}", f"v_and_b32 v{ohi}, 0xffff0000, v{d}"]

def interleave(a, mfmas, fillers, ngaps):
    tot = sum(c for c, _ in fillers)
    fi, acc = 0, 0.0
    for g, (pre, m, post) in enumerate(mfmas):
        for x in pre: a(x)
        a(m)
        for x in post: a(x)
        lim = tot * min(1.0, (g + 1) / ngaps) if ngaps else tot
        while fi < len(fillers) and acc + fillers[fi][0] * 0.5 <= lim:
            acc += fillers[fi][0]
            for x in fillers[fi][1]: a(x)
            fi += 1
    while fi < len(fillers):
        for x in fillers[fi][1]: a(x)
        fi += 1

def gen_main(a):
    S_C, S_W, S_WS, S_V, S_X, S_WQ, S_DBG = 4, 8, 12, 16, 20, 24, 28
    (sW, sH, sP, sG, sRB, sT, sT2, sCO, sWO, sM0C, sM0W, sOB, sROW, sXO, sQWO, sN1, sS, sMST, sTHR, sM0K, sM0V,
     sBASE, sCT1, sCT2, sWRAP) = range(32, 57)
    sHIST = [57, 58, 59, 60]
    sEV = 62
    PT = 64
    S_T = 76
    sMK = 4
    S_K = S_X
    sNB = 61
    SHARE = 'noshare' not in OPT
    vL16, vCD, vWD, vAC, vAW, vXD, vQW, vWOT, vKVT = 1, 2, 6, 10, 12, 16, 20, 22, 23
    WFR, CFR, ACC = [32, 48], 64, 128
    sp = Stamps(a, base=80)
    vm = VM()
    a("s_cmp_ge_u32 s2, 256")
    a("s_cbranch_scc1 M_END")
    sp.mark("start")
    a(f"s_load_dwordx2 s[44:45], s[0:1], {KA['c_kv']}")
    a(f"s_load_dwordx4 s[48:51], s[0:1], {KA['w_uk']}")
    a("v_lshrrev_b32 v1, 6, v0")
    a("v_mov_b32 v31, v0")
    a("v_and_b32 v0, 63, v0")
    a(f"v_readfirstlane_b32 s{sW}, v1")
    a(f"s_and_b32 s{sH}, s2, 7")
    a("s_lshr_b32 s3, s2, 6")
    a("s_lshl_b32 s3, s3, 3")
    a(f"s_add_u32 s{sH}, s{sH}, s3")
    a(f"s_bfe_u32 s{sP}, s2, 0x30003")
    a(f"s_lshr_b32 s{sG}, s{sW}, 2")
    a("v_lshrrev_b32 v24, 3, v0")
    a("v_and_b32 v25, 7, v0")
    a("v_lshrrev_b32 v26, 4, v0")
    a("v_xor_b32 v25, v25, v26")
    a("v_lshlrev_b32 v25, 4, v25")
    a("v_xor_b32 v27, 64, v25")
    a(f"v_lshl_add_u32 v{vCD}, v24, 10, v25")
    a(f"v_lshl_add_u32 v{vCD+1}, v24, 10, v27")
    a(f"v_add_u32 v{vCD+1}, {8192-1024}, v{vCD+1}")
    a(f"v_add_u32 v{vCD+2}, {2*(8192-1024)}, v{vCD}")
    a(f"v_add_u32 v{vCD+3}, {2*(8192-1024)}, v{vCD+1}")
    a("v_and_b32 v28, 15, v0")
    a("v_lshlrev_b32 v29, 1, v26")
    a("v_xor_b32 v28, v28, v29")
    a("v_lshlrev_b32 v28, 4, v28")
    a(f"v_lshl_add_u32 v{vWD}, v26, 13, v28")
    a(f"v_add_u32 v{vWD+1}, {4*8192-1024}, v{vWD}")
    a(f"v_xor_b32 v{vWD+2}, 128, v{vWD}")
    a(f"v_add_u32 v{vWD+2}, {2*(4*8192-1024)}, v{vWD+2}")
    a(f"v_add_u32 v{vWD+3}, {4*8192-1024}, v{vWD+2}")
    a(f"s_and_b32 s{sRB}, s{sW}, 3")
    a(f"s_lshl_b32 s{sCO}, s{sP}, 18")
    a(f"s_lshl_b32 s{sT}, s{sW}, 15")
    a(f"s_add_u32 s{sCO}, s{sCO}, s{sT}")
    a(f"s_lshl_b32 s{sWO}, s{sRB}, 17")
    a(f"s_lshl_b32 s{sT}, s{sH}, 8")
    a(f"s_add_u32 s{sWO}, s{sWO}, s{sT}")
    a(f"s_lshl_b32 s{sM0C}, s{sW}, 12")
    a(f"s_add_u32 s{sM0W}, s{sM0C}, 65536")
    a("s_waitcnt lgkmcnt(0)")
    srd(a, S_C, 44, 45, 2 * MB)
    a(f"s_cmp_eq_u32 s{sG}, 0")
    a(f"s_cselect_b32 s{S_W}, s48, s50")
    a(f"s_cselect_b32 s{S_W+1}, s49, s51")
    a(f"s_mov_b32 s{S_W+2}, {4*MB}")
    a(f"s_mov_b32 s{S_W+3}, 0x00020000")
    def kv_dma(st):
        buf = (st & 1) * 32768
        tg = ("kv", st)
        out = [[f"s_add_u32 m0, s{sM0C}, {buf}", f"s_add_u32 s{sT}, s{sCO}, {st*128}",
                (f"buffer_load_dwordx4 v{vCD}, {S4(S_C)}, s{sT} offen lds", tg)]]
        for i in range(1, 4): out.append([(f"buffer_load_dwordx4 v{vCD+i}, {S4(S_C)}, s{sT} offen offset:{i*1024} lds", tg)])
        out.append([f"s_add_u32 m0, s{sM0W}, {buf}", f"s_add_u32 s{sT}, s{sWO}, {st*64*8192}",
                    (f"buffer_load_dwordx4 v{vWD}, {S4(S_W)}, s{sT} offen lds", tg)])
        for i in range(1, 4): out.append([(f"buffer_load_dwordx4 v{vWD+i}, {S4(S_W)}, s{sT} offen offset:{i*1024} lds", tg)])
        return out
    def emit(items):
        for it in items:
            for x in it:
                if isinstance(x, tuple): a(x[0]); vm.add(x[1])
                else: a(x)
    emit(kv_dma(0))
    a(f"s_load_dwordx2 s[44:45], s[0:1], {KA['A_q']}")
    a(f"s_load_dwordx2 s[46:47], s[0:1], {KA['w_q']}")
    a(f"s_load_dwordx4 s[48:51], s[0:1], {KA['dbg']}")
    a(f"s_load_dwordx4 s[{PT}:{PT+3}], s[0:1], {KA['A_k']}")
    a(f"s_load_dwordx4 s[{PT+4}:{PT+7}], s[0:1], {KA['shift']}")
    a(f"s_load_dwordx4 s[{PT+8}:{PT+11}], s[0:1], {KA['w_o']}")
    a(f"v_lshlrev_b32 v{vL16}, 4, v0")
    a("v_mul_u32_u24 v28, 1280, v24")
    a(f"v_add_u32 v{vXD}, v28, v25")
    a(f"v_add_u32 v{vXD+1}, v28, v27")
    a(f"v_add_u32 v{vXD+1}, {8*1280-1024}, v{vXD+1}")
    a(f"v_add_u32 v{vXD+2}, {2*(8*1280-1024)}, v{vXD}")
    a(f"v_add_u32 v{vXD+3}, {2*(8*1280-1024)}, v{vXD+1}")
    a(f"s_and_b32 s3, s{sW}, 1")
    a("s_lshl_b32 s3, s3, 7")
    a(f"v_xor_b32 v{vQW}, s3, v{vWD}")
    a(f"v_add_u32 v{vQW+1}, {4*8192-1024}, v{vQW}")
    emit(kv_dma(1))
    vPF, vPFW, vSC = 116, 115, 117
    if 'nopf' not in OPT:
        a(f"v_lshlrev_b32 v{vPF}, 7, v0")
        a("v_lshrrev_b32 v24, 1, v0")
        a("v_and_b32 v25, 1, v0")
        a("v_lshlrev_b32 v25, 7, v25")
        a(f"v_lshl_add_u32 v{vPFW}, v24, 13, v25")
        a("s_lshl_b32 s3, s2, 13")
        a(f"s_lshl_b32 s{sT}, s{sW}, 10")
        a(f"s_add_u32 s3, s3, s{sT}")
        a("s_mov_b64 exec, 0xff")
        emit([[(f"buffer_load_dword v{vSC}, v{vPF}, {S4(S_C)}, s3 offen sc1", "pf")]])
        if 'nopf2' not in OPT:
            a(f"s_lshl_b32 s3, s{sP}, 2")
            a(f"s_add_u32 s3, s3, s{sRB}")
            a(f"s_mul_i32 s3, s3, {6*8192}")
            a(f"s_lshl_b32 s{sT}, s{sH}, 8")
            a(f"s_add_u32 s3, s3, s{sT}")
            a(f"s_add_u32 s3, s3, {128*8192}")
            a(f"s_add_u32 s{sNB}, s3, {192*8192}")
            a("s_mov_b32 exec_lo, 0xfff")
            pf2 = [["s_mov_b64 exec, 0xfff", (f"buffer_load_dword v{vSC}, v{vPFW}, {S4(S_W)}, s{sNB} offen sc1", "pf"), "s_mov_b64 exec, -1"]]
        else:
            a(f"s_lshl_b32 s3, s{sP}, 19")
            a(f"s_add_u32 s3, s3, s{sWO}")
            a("s_mov_b32 exec_lo, -1")
        emit([[(f"buffer_load_dword v{vSC}, v{vPFW}, {S4(S_W)}, s3 offen sc1", "pf")]])
        a("s_mov_b64 exec, -1")
    def frag_addrs(vR, rowoff_sgpr, vWa, nt_sgpr, wbase_sgpr):
        a("v_and_b32 v24, 15, v0")
        a("v_lshrrev_b32 v25, 4, v0")
        a("v_bfe_u32 v26, v0, 1, 3")
        a("v_xor_b32 v26, v26, v25")
        a("v_lshlrev_b32 v26, 4, v26")
        a("v_lshl_add_u32 v26, v24, 7, v26")
        a(f"v_add_u32 v{vR}, s{rowoff_sgpr}, v26")
        a(f"v_xor_b32 v{vR+1}, 64, v{vR}")
        a("v_bfe_u32 v24, v0, 2, 2")
        a("v_lshl_add_u32 v26, v25, 3, v24")
        a("v_lshlrev_b32 v26, 8, v26")
        a("v_and_b32 v27, 3, v0")
        a("v_lshl_add_u32 v26, v27, 3, v26")
        a(f"v_add_u32 v26, s{wbase_sgpr}, v26")
        a("v_and_b32 v25, 1, v25")
        a("v_lshl_add_u32 v24, v25, 2, v24")
        a(f"v_xor_b32 v24, s{nt_sgpr}, v24")
        for nt in range(4):
            a(f"v_xor_b32 v25, {nt}, v24")
            a(f"v_lshl_add_u32 v{vWa+nt}, v25, 5, v26")
    a(f"s_and_b32 s{sT}, s{sW}, 1")
    a(f"s_lshl_b32 s{sT}, s{sT}, 14")
    a(f"s_and_b32 s{sT2}, s{sW}, 2")
    a(f"s_lshl_b32 s{sT2}, s{sT2}, 1")
    a(f"s_lshl_b32 s3, s{sG}, 14")
    a("s_add_u32 s3, s3, 65536")
    frag_addrs(vAC, sT, vAW, sT2, 3)
    WOB = 131072
    a("v_lshrrev_b32 v24, 2, v0")
    a("v_mul_u32_u24 v24, 672, v24")
    a("v_and_b32 v25, 3, v0")
    a("v_lshl_add_u32 v24, v25, 3, v24")
    a(f"s_lshl_b32 s{sT}, s{sW}, 5")
    a(f"s_add_u32 s{sT}, s{sT}, {WOB}")
    a(f"v_add_u32 v{vWOT}, s{sT}, v24")
    KVS, TRB = 131072, 153600
    a("v_mul_u32_u24 v25, 1639, v31")
    a("v_lshrrev_b32 v25, 16, v25")
    a("v_mul_u32_u24 v26, 40, v25")
    a("v_sub_u32 v26, v31, v26")
    a("v_mul_u32_u24 v29, 1280, v25")
    a("v_lshl_add_u32 v29, v26, 2, v29")
    a(f"v_add_u32 v29, {KVS}, v29")
    a("v_and_b32 v27, 7, v26")
    a("v_xor_b32 v27, v27, v25")
    a("v_lshlrev_b32 v27, 4, v27")
    a(f"v_lshl_add_u32 v{vKVT}, v26, 8, v27")
    a(f"v_add_u32 v{vKVT}, {TRB}, v{vKVT}")
    a(f"s_and_b32 s{sT2}, s2, 7")
    a(f"s_mul_i32 s{sT}, s{sT2}, 40")
    a(f"v_add_lshl_u32 v26, v26, s{sT}, 4")
    a("v_mul_u32_u24 v25, 205, v0")
    a("v_lshrrev_b32 v25, 11, v25")
    a("v_mul_u32_u24 v27, 1120, v25")
    a("v_lshl_add_u32 v27, v0, 4, v27")
    a(f"s_lshr_b32 s{sT}, s2, 3")
    a(f"s_mul_i32 s{sT}, s{sT}, {64*1280}")
    a(f"s_mul_i32 s{sT2}, s{sT2}, 160")
    a(f"s_add_u32 s{sT}, s{sT}, s{sT2}")
    a(f"s_sub_u32 s{sT}, s{sT}, 3840")
    a(f"v_add_u32 v27, s{sT}, v27")
    a(f"v_mov_b32 v30, {OOB}")
    a("v_mul_u32_u24 v24, 20, v0")
    a("s_waitcnt lgkmcnt(0)")
    srd(a, S_WS, 50, 51, 64 * MB)
    srd(a, S_V, 50, 51, 16 * MB, WS_VF)
    srd(a, S_X, 44, 45, 2621440)
    srd(a, S_WQ, 46, 47, 5242880)
    srd(a, S_DBG, 48, 49, 256)
    a(f"s_sub_u32 s{sT}, 15, s{sP}")
    a(f"s_lshl_b32 s{sT2}, s{sRB}, 5")
    a(f"s_lshl_b32 s{sCT2}, s{sT}, 7")
    a(f"s_add_u32 s{sCT2}, s{sCT2}, s{sT2}")
    a(f"s_lshl_b32 s{sCT1}, s{sP}, 7")
    a(f"s_add_u32 s{sCT1}, s{sCT1}, s{sT2}")
    a(f"s_cmp_eq_u32 s{sG}, 0")
    a(f"s_cselect_b32 s{sROW}, s{sCT1}, s{sCT2}")
    a(f"s_mul_i32 s{sXO}, s{sROW}, 1280")
    a(f"s_lshl_b32 s{sQWO}, s{sW}, 16")
    a(f"s_lshl_b32 s{sT}, s{sH}, 8")
    a(f"s_add_u32 s{sQWO}, s{sQWO}, s{sT}")
    a(f"s_lshl_b32 s{sT}, s{sH}, 12")
    a(f"s_add_u32 s{sT}, s{sT}, {WS_CTX}")
    a(f"s_lshl_b32 s{sT2}, s{sRB}, 4")
    for c in (sCT1, sCT2):
        a(f"s_sub_u32 s{c}, s{c}, s{sT2}")
        a(f"s_mul_i32 s{c}, s{c}, {CS // 16}")
        a(f"s_add_u32 s{c}, s{c}, s{sT}")
    a(f"s_lshl_b32 s{sOB}, s{sH}, 6")
    a(f"s_lshl_b32 s{sT}, s{sP}, 3")
    a(f"s_add_u32 s{sOB}, s{sOB}, s{sT}")
    a(f"s_and_b32 s{sT}, s{sW}, 1")
    a(f"s_lshl_b32 s{sT}, s{sT}, 2")
    a(f"s_add_u32 s{sOB}, s{sOB}, s{sT}")
    a(f"s_lshl_b32 s{sOB}, s{sOB}, 13")
    a(f"s_bfe_u32 s{sT}, s{sW}, 0x10001")
    a(f"s_add_u32 s{sT2}, s{sG}, 11")
    a(f"s_lshl_b32 s{sT}, s{sT}, s{sT2}")
    a(f"s_add_u32 s{sOB}, s{sOB}, s{sT}")
    a(f"s_lshl_b32 s{sT}, s{sG}, 24")
    a(f"s_add_u32 s{sOB}, s{sOB}, s{sT}")
    a(f"s_lshl_b32 s{sN1}, s{sP}, 2")
    a(f"s_add_u32 s{sN1}, s{sN1}, 4")
    a(f"s_lshl_b32 s{sHIST[0]}, s{sH}, 19")
    a(f"s_lshl_b32 s{sT}, s{sRB}, 11")
    a(f"s_add_u32 s{sHIST[0]}, s{sHIST[0]}, s{sT}")
    a(f"s_lshl_b32 s{sM0K}, s{sW}, 11")
    a(f"s_add_u32 s{sM0V}, s{sM0K}, 65536")
    a(f"s_sub_u32 s{sT2}, s{sN1}, 4")
    a(f"s_sub_u32 s{sWRAP}, s{sN1}, 2")
    a(f"s_sub_u32 s{sWRAP}, s{sWRAP}, s{sG}")
    a(f"s_mov_b32 s{sBASE}, 8192")
    a(f"s_cmp_eq_u32 s{sG}, 0")
    a(f"s_cselect_b32 s{sMST}, s{sT2}, 99")
    a(f"s_cselect_b32 s{sN1}, s{sN1}, 100")
    a(f"s_add_u32 s{sHIST[1]}, s{sHIST[0]}, 8192")
    a(f"s_add_u32 s{sHIST[2]}, s{sHIST[0]}, 16384")
    a(f"s_mov_b64 s[{sEV}:{sEV+1}], {(127 if FUSE else 63) if 'noev' not in OPT else 64}")
    a(f"s_add_u32 s{sT}, s{sMST}, 1")
    a(f"s_lshl_b64 s[{sEV}:{sEV+1}], s[{sEV}:{sEV+1}], s{sT}")
    if SHARE:
        a(f"s_mul_i32 s{S_T}, s{sG}, 45")
        a(f"s_mov_b32 s{S_T+1}, 0")
        a(f"s_lshl_b64 s[{S_T}:{S_T+1}], s[{S_T}:{S_T+1}], s{sWRAP}")
        a(f"s_or_b64 s[{sEV}:{sEV+1}], s[{sEV}:{sEV+1}], s[{S_T}:{S_T+1}]")
        a(f"s_cmp_eq_u32 s{sG}, 0")
        a(f"s_cselect_b32 s{S_V+2}, s{S_V+2}, 0")
    a(f"s_bitset1_b64 s[{sEV}:{sEV+1}], s{sWRAP}")
    a(f"s_or_b32 s{sEV}, s{sEV}, 0x80000002")
    a(f"s_or_b32 s{sEV+1}, s{sEV+1}, 6")
    a(f"s_mov_b32 s{sTHR}, 0x40004000")
    a(f"s_mov_b32 s{S_T+3}, 0x00020000")
    if 'tlb' in OPT:
        a(f"s_lshl_b32 s{sT}, s{sW}, 2")
        a(f"s_lshr_b32 s3, 0xdba84210, s{sT}")
        a("s_and_b32 s3, s3, 15")
        a("s_lshl_b32 s3, s3, 3")
        a(f"s_load_dwordx2 s[{S_T}:{S_T+1}], s[0:1], s3")
        a(f"s_lshr_b32 s3, 0x5a8a5555, s{sT}")
        a("s_and_b32 s3, s3, 15")
        a(f"s_lshl_b32 s{S_T+2}, s3, 19")
        a("v_lshlrev_b32 v118, 20, v0")
        a("s_lshl_b32 s3, s2, 10")
        a(f"s_lshr_b32 s{sT}, s2, 3")
        a(f"s_lshl_b32 s{sT}, s{sT}, 21")
        a(f"s_lshl_b32 s{sT2}, s{sW}, 12")
        a(f"s_add_u32 s{sT}, s{sT}, s{sT2}")
        a("s_waitcnt lgkmcnt(0)")
        a("s_mov_b64 exec, 0x3f")
        emit([[(f"buffer_load_dword v{vSC}, v118, {S4(S_T)}, s3 offen sc1", "pf")]])
        a("s_mov_b64 exec, 3")
        emit([[(f"buffer_load_dword v{vSC}, v118, {S4(S_WS)}, s{sT} offen sc1", "pf")]])
        a("s_mov_b64 exec, -1")

    XB = [0, 32768, 131072]
    def q_dma_x(k):
        tg = ("q", k)
        out = [[f"s_add_u32 m0, s{sM0C}, {XB[(k+2)%3]}", f"s_add_u32 s{sT}, s{sXO}, {k*128}",
                (f"buffer_load_dwordx4 v{vXD}, {S4(S_X)}, s{sT} offen lds", tg)]]
        for i in range(1, 4): out.append([(f"buffer_load_dwordx4 v{vXD+i}, {S4(S_X)}, s{sT} offen offset:{i*1024} lds", tg)])
        return out
    def q_dma_w(k):
        tg = ("q", k)
        return [[f"s_add_u32 m0, s{sM0V}, {(k%3)*16384}", f"s_add_u32 s{sT}, s{sQWO}, {k*64*8192}",
                 (f"buffer_load_dwordx4 v{vQW}, {S4(S_WQ)}, s{sT} offen lds", tg)],
                [(f"buffer_load_dwordx4 v{vQW+1}, {S4(S_WQ)}, s{sT} offen offset:1024 lds", tg)]]
    GX, GXT, GWT, GW, KR, VR, SH = 80, 84, 85, 86, 90, 101, 110
    def tsrd(lo, size): return [f"s_mov_b32 s{S_T}, s{lo}", f"s_mov_b32 s{S_T+1}, s{lo+1}", f"s_mov_b32 s{S_T+2}, {size}"]
    def ld_wo():
        it = tsrd(PT + 8, 5242880) + [f"s_lshr_b32 s3, s2, 1", "s_lshl_b32 s3, s3, 5", f"s_lshl_b32 s{sT2}, s{sW}, 2",
              f"s_add_u32 s3, s3, s{sT2}", "s_mul_i32 s3, s3, 1280", f"s_and_b32 s{sS}, s2, 1", f"s_mul_i32 s{sS}, s{sS}, 640",
              f"s_add_u32 s3, s3, s{sS}", f"s_mul_i32 s{sT2}, s{sT2}, 672", "s_mov_b32 exec_hi, 0xff"]
        for i in range(4):
            it += [f"s_add_u32 m0, s{sT2}, {WOB+672*i}", f"s_add_u32 s{sS}, s3, {1280*i}",
                   (f"buffer_load_dwordx4 v{vL16}, {S4(S_T)}, s{sS} offen lds", "wo")]
        return [it + ["s_mov_b32 exec_hi, -1"]]
    def ld_gate():
        return [["s_lshl_b32 s3, s2, 3", f"s_add_u32 s3, s3, s{sW}", "s_mul_i32 s3, s3, 1280",
                 (f"buffer_load_dwordx4 {vr(GX,4)}, v24, {S4(S_X)}, s3 offen", "gt"),
                 (f"buffer_load_dword v{GXT}, v24, {S4(S_X)}, s3 offen offset:16", "gt")],
                tsrd(PT + 10, 1280) + [(f"buffer_load_dwordx4 {vr(GW,4)}, v24, {S4(S_T)}, 0 offen", "gt"),
                 (f"buffer_load_dword v{GWT}, v24, {S4(S_T)}, 0 offen offset:16", "gt")]]
    def ld_kv(part):
        L = []
        for i in range(3):
            isv = i == 2 or (i == 1 and part == 1)
            rows0 = 6 * 8 * i - (72 - 3 if isv else 0)
            L.append(tsrd(PT + (2 if isv else 0), 2621440) +
                     [f"s_mul_i32 s3, s{sW}, {6*1280}", f"s_add_u32 s3, s3, {rows0*1280}", "v_add_u32 v28, s3, v27",
                      f"s_mul_i32 s3, s{sW}, 960", f"s_add_u32 m0, s3, {KVS + 8*960*i}", "s_mov_b32 exec_hi, 0xfffffff",
                      (f"buffer_load_dwordx4 v28, {S4(S_T)}, 0 offen lds", "kvs"), "s_mov_b32 exec_hi, -1"])
        L.append(tsrd(PT + 4, 5120) + [(f"buffer_load_dwordx4 {vr(SH,4)}, v26, {S4(S_T)}, 0 offen", "kvs")])
        return L
    def rd_kv():
        return [[f"ds_read_b32 v{KR+j}, v29 offset:{160*j}"] for j in range(11)] + \
               [[f"ds_read_b32 v{VR+j}, v29 offset:{11520+160*j}"] for j in range(8)]
    def ld_pf():
        L = [[f"s_lshl_b32 s3, s{sP}, 3", f"s_add_u32 s3, s3, s{sW}", f"s_mul_i32 s3, s3, {10*8192}", f"s_lshl_b32 s{sT2}, s{sH}, 8",
              f"s_add_u32 s3, s3, s{sT2}", "s_mov_b64 exec, 0xfffff",
              (f"buffer_load_dword v{vPFW}, v{vPFW}, {S4(S_WQ)}, s3 offen sc1", "pfq"), "s_mov_b64 exec, -1"]]
        L.append(tsrd(PT + 6, 2621440) + ["s_lshr_b32 s3, s2, 1", "s_mul_i32 s3, s3, 5", f"s_and_b32 s{sT2}, s2, 1", f"s_mul_i32 s{sT2}, s{sT2}, 3",
                  f"s_add_u32 s3, s3, s{sT2}", f"s_add_u32 s3, s3, s{sW}", "s_lshl_b32 s3, s3, 12", f"s_cmp_ge_u32 s{sW}, 3",
                  f"s_cselect_b32 s3, {OOB}, s3", "v_lshlrev_b32 v29, 7, v0", "s_mov_b32 exec_hi, 0",
                  (f"buffer_load_dword v29, v29, {S4(S_T)}, s3 offen sc1", "pfh"), "s_mov_b32 exec_hi, -1"])
        return L

    t0, t1, t2, t3, t4 = 24, 25, 26, 27, 28
    SCF = ' sc1' if FUSE else ''
    def job_gate():
        L = [[f"v_mov_b32 v{t0}, 0"]]
        for x, w in [(GX + i, GW + i) for i in range(4)] + [(GXT, GWT)]:
            L += [[s] for s in [f"v_lshlrev_b32 v{t1}, 16, v{x}", f"v_and_b32 v{t2}, 0xffff0000, v{x}",
                                f"v_lshlrev_b32 v{t3}, 16, v{w}", f"v_and_b32 v{t4}, 0xffff0000, v{w}",
                                f"v_mul_f32 v{t1}, v{t1}, v{t3}", f"v_mul_f32 v{t2}, v{t2}, v{t4}"] + rnd_pair(t3, t1, t2, t1, t2) +
                               [f"v_add_f32 v{t0}, v{t0}, v{t1}", f"v_add_f32 v{t0}, v{t0}, v{t2}"]]
        for m in ("row_shr:1", "row_shr:2", "row_shr:4", "row_shr:8"):
            L.append([f"v_add_f32_dpp v{t0}, v{t0}, v{t0} {m} row_mask:0xf bank_mask:0xf bound_ctrl:0"])
        L.append([f"v_add_f32_dpp v{t0}, v{t0}, v{t0} row_bcast:15 row_mask:0xa bank_mask:0xf"])
        L.append([f"v_add_f32_dpp v{t0}, v{t0}, v{t0} row_bcast:31 row_mask:0xc bank_mask:0xf"])
        L += [[s] for s in rnd_pair(t1, t0, t0, t0, t2)[:2] +
              [f"v_mul_f32 v{t0}, 0xbfb8aa3b, v{t0}", f"v_exp_f32 v{t0}, v{t0}", f"v_cmp_eq_u32 vcc, 63, v0",
               f"v_add_f32 v{t0}, 1.0, v{t0}", f"v_rcp_f32 v{t0}, v{t0}", f"v_cndmask_b32 v{t2}, v30, 0, vcc"] +
              rnd_pair(t1, t0, t0, t0, t3)[:2]]
        L.append(["s_lshl_b32 s3, s2, 3", f"s_add_u32 s3, s3, s{sW}", "s_lshl_b32 s3, s3, 2", f"s_add_u32 s3, s3, {WS_G}",
                  (f"buffer_store_dword v{t0}, v{t2}, {S4(S_WS)}, s3 offen{SCF}", "pr2")])
        return L
    def job_kvt():
        L = []
        W = 80
        for c in range(2):
            for q in range(2):
                L.append([f"v_lshlrev_b32 v{W+4*c+2*q}, 16, v{SH+2*c+q}"])
                L.append([f"v_and_b32 v{W+4*c+2*q+1}, 0xffff0000, v{SH+2*c+q}"])
        KL, KH = [110, 111, 112, 113], [88, 89, 109, 114]
        def unp(j): return [f"v_lshlrev_b32 v{KL[j%4]}, 16, v{KR+j}", f"v_and_b32 v{KH[j%4]}, 0xffff0000, v{KR+j}"]
        for j in range(3): L += [[s] for s in unp(j)]
        for s in range(8):
            ops = unp(s + 3)
            ops += [f"v_mul_f32 v{t0}, v{KL[s%4]}, v{W+3}", f"v_mul_f32 v{t1}, v{KH[s%4]}, v{W+7}"]
            for j in (2, 1, 0):
                ops += [f"v_fmac_f32 v{t0}, v{KL[(s+3-j)%4]}, v{W+j}", f"v_fmac_f32 v{t1}, v{KH[(s+3-j)%4]}, v{W+4+j}"]
            ops += [f"v_lshlrev_b32 v{t3}, 16, v{VR+s}", f"v_and_b32 v{t4}, 0xffff0000, v{VR+s}"]
            if s % 2 == 0:
                ops += [f"v_mul_f32 v118, v{t0}, v{t3}", f"v_mul_f32 v119, v{t1}, v{t4}"]
            else:
                ops += [f"v_mul_f32 v{t0}, v{t0}, v{t3}", f"v_mul_f32 v{t1}, v{t1}, v{t4}",
                        f"v_cvt_pk_bf16_f32 v{120+s//2}, v118, v{t0}", f"v_cvt_pk_bf16_f32 v{124+s//2}, v119, v{t1}"]
            L += [[x] for x in ops]
        L.append([f"s_cmp_lt_u32 s{sW}, 5", "s_cselect_b64 exec, -1, 0", f"ds_write_b128 v{vKVT}, v[120:123]",
                  f"ds_write_b128 v{vKVT}, v[124:127] offset:128", "s_mov_b64 exec, -1"])
        L += [[x] for x in [f"v_lshrrev_b32 v{t2}, 3, v0", f"v_and_b32 v{t3}, 7, v0", f"v_lshrrev_b32 v{t4}, 4, v0", f"v_xor_b32 v{t4}, v{t4}, v{t3}",
                            f"v_lshlrev_b32 v{t4}, 4, v{t4}", f"v_lshl_add_u32 v{t0}, v{t2}, 7, v{t4}", f"v_lshlrev_b32 v{t3}, 4, v{t3}",
                            f"v_mul_u32_u24 v{t1}, {RS}, v{t2}", f"v_add_u32 v{t1}, v{t1}, v{t3}"]]
        L.append([f"s_and_b32 s3, s{sW}, 1", "s_lshl_b32 s3, s3, 6", f"v_xor_b32 v{t0}, s3, v{t0}", f"s_lshl_b32 s3, s{sW}, 10",
                  f"s_add_u32 s3, s3, {TRB}", f"v_add_u32 v{t0}, s3, v{t0}"])
        return L
    def rd_post():
        L = []
        for i in range(3):
            L.append([f"ds_read_b64_tr_b16 v[{116+4*i}:{117+4*i}], v{vWOT} offset:{256*i}"])
            L.append([f"ds_read_b64_tr_b16 v[{118+4*i}:{119+4*i}], v{vWOT} offset:{256*i+16*672}"])
        return L + [[f"ds_read_b128 v[90:93], v{t0}"], [f"ds_read_b128 v[94:97], v{t0} offset:8192"]]
    def job_post():
        L = [["s_and_b32 s3, s2, 1", "s_mul_i32 s3, s3, 20", f"s_add_u32 s3, s3, s{sW}", f"s_mul_i32 s3, s3, {CS}",
              f"s_lshr_b32 s{sT2}, s2, 1", f"s_lshl_b32 s{sT2}, s{sT2}, 10", f"s_add_u32 s3, s3, s{sT2}",
              f"s_add_u32 s{sS}, s3, {WS_WOT}", (f"buffer_store_dwordx4 v[116:119], v{vL16}, {S4(S_WS)}, s{sS} offen{SCF}", "pr2")]]
        L.append([f"s_add_u32 s{sS}, s{sS}, {8*CS}", (f"buffer_store_dwordx4 v[120:123], v{vL16}, {S4(S_WS)}, s{sS} offen{SCF}", "pr2")])
        L.append([f"s_add_u32 s{sS}, s{sS}, {8*CS}", f"s_cmp_ge_u32 s{sW}, 4", f"s_cselect_b32 s{sS}, {OOB}, s{sS}",
                  (f"buffer_store_dwordx4 v[124:127], v{vL16}, {S4(S_WS)}, s{sS} offen{SCF}", "pr2")])
        L.append(["s_and_b32 s3, s2, 7", f"s_mul_i32 s3, s3, {80*RS}", f"s_lshr_b32 s{sT2}, s2, 3", f"s_lshl_b32 s{sT2}, s{sT2}, 7",
                  f"s_add_u32 s3, s3, s{sT2}", f"s_mul_i32 s{sT2}, s{sW}, {8*RS}", f"s_add_u32 s3, s3, s{sT2}", f"s_add_u32 s{sS}, s3, {WS_KVT}",
                  (f"buffer_store_dwordx4 v[90:93], v{t1}, {S4(S_WS)}, s{sS} offen{SCF}", "pr2")])
        L.append([f"s_add_u32 s{sS}, s{sS}, {64*RS}", f"s_cmp_ge_u32 s{sW}, 2", f"s_cselect_b32 s{sS}, {OOB}, s{sS}",
                  (f"buffer_store_dwordx4 v[94:97], v{t1}, {S4(S_WS)}, s{sS} offen{SCF}", "pr2")])
        return L

    def kdma(e, tg):
        return [[f"s_add_u32 m0, s{sM0K}, {(e & 3) * 16384}", "s_nop 0",
                 (f"buffer_load_dwordx4 v{vL16}, {S4(S_K)}, s{sHIST[e&3]} offen sc1 lds", tg)],
                [(f"buffer_load_dwordx4 v{vL16}, {S4(S_K)}, s{sHIST[e&3]} offen offset:1024 sc1 lds", tg)]]
    vPOLL, vZERO, vFL = 24, 25, 26
    vCL = 31
    def only(wave, body, extra=None):
        lab = a.uid("ONLY")
        a(f"s_cmp_lg_u32 s{sW}, {wave}")
        a(f"s_cbranch_scc1 {lab}")
        if extra:
            a(extra); a(f"s_cbranch_scc1 {lab}")
        for x in body: a(x)
        a.label(lab)
    def clear_line():
        body = [f"s_lshl_b32 s3, s{sH}, 12", f"s_add_u32 s3, s3, {WS_FL2 - WS_FLG}", "v_lshl_add_u32 v116, v0, 2, s3",
                f"s_lshl_b32 s3, s{sH}, 2", f"s_add_u32 s3, s3, {WS_FL3 - WS_FLG - 16 * 4096}", "v_lshl_add_u32 v118, v0, 12, s3",
                "v_cmp_le_u32 vcc, 16, v0", "v_and_b32 v119, 7, v0", "v_lshl_add_u32 v119, v119, 3, s2", "v_cndmask_b32 v116, v116, v118, vcc",
                "v_lshrrev_b32 v118, 5, v119", "v_and_b32 v119, 31, v119", "v_lshlrev_b32 v119, 2, v119", "v_lshl_add_u32 v118, v118, 12, v119",
                "v_cmp_le_u32 vcc, 32, v0", f"v_mov_b32 v{vCL}, 0", f"s_mov_b32 s3, {WS_FLG}", "v_cndmask_b32 v116, v116, v118, vcc",
                f"buffer_store_dword v{vCL}, v116, {S4(S_WS)}, s3 offen sc1"]
        only(3, body, f"s_cmp_lg_u32 s{sP}, 0")
    def clean_set():
        only(3, ["s_mov_b64 exec, 1", "v_mov_b32 v119, 1", f"s_lshl_b32 s3, s{sH}, 2",
                 f"buffer_store_dword v119, v{vCL}, {S4(S_DBG)}, s3 offen offset:128 sc1", "s_mov_b64 exec, -1"], f"s_cmp_lg_u32 s{sP}, 0")
    def clean_issue(site):
        a(f"s_bfe_u32 s{sT2}, s2, 0x10003")
        only(2, [f"v_and_b32 v{vCL}, 31, v0", f"v_lshlrev_b32 v{vCL}, 2, v{vCL}",
                 f"buffer_load_dword v{vCL}, v{vCL}, {S4(S_DBG)}, 0 offen offset:128 sc1"], f"s_cmp_lg_u32 s{sT2}, {site}")
    def clean_check():
        lab = a.uid("CLN")
        a(f"s_cmp_lg_u32 s{sW}, 2")
        a(f"s_cbranch_scc1 {lab}D")
        a(f"s_mov_b32 s{sT2}, 0")
        a(f"s_branch {lab}C")
        a.label(lab)
        a("s_sleep 32")
        a(f"buffer_load_dword v{vCL}, v{vFL}, {S4(S_DBG)}, 0 offen offset:128 sc1")
        a("s_waitcnt vmcnt(0)")
        a.label(lab + "C")
        a(f"v_cmp_eq_u32 vcc, 0, v{vCL}")
        a(f"s_add_u32 s{sT2}, s{sT2}, 1")
        a(f"s_cbranch_vccz {lab}D")
        a(f"s_cmp_lt_u32 s{sT2}, 100000")
        a(f"s_cbranch_scc1 {lab}")
        a.label(lab + "D")
    def publish(wave, which):
        only(wave, ["s_mov_b64 exec, 1", f"v_mov_b32 v{vPOLL}, 1", f"s_lshl_b32 s3, s{sH}, 10", f"s_add_u32 s3, s3, s{sP}",
                    "s_lshl_b32 s3, s3, 2", f"s_add_u32 s3, s3, {WS_FL2 + 32 * which}",
                    f"buffer_store_dword v{vPOLL}, v{vZERO}, {S4(S_WS)}, s3 offen sc1", "s_mov_b64 exec, -1"])
    def line_addr(ctx0): return [f"s_mov_b32 s3, {WS_FL3}"] if ctx0 else [f"s_lshl_b32 s3, s{sH}, 12", f"s_add_u32 s3, s3, {WS_FL2}"]
    def poll_issue(wave, ctx0=False):
        only(wave, line_addr(ctx0) + [
                    f"buffer_load_dword v{vPOLL}, v{vFL}, {S4(S_WS)}, s3 offen sc1"])
    def poll(wave, need, vmw, ctx0=False):
        if 'nopoll' in OPT: return
        lab = a.uid("POLL")
        a(f"s_cmp_lg_u32 s{sW}, {wave}")
        a(f"s_cbranch_scc1 {lab}D")
        for x in line_addr(ctx0): a(x)
        a(f"s_mov_b32 s{sT2}, 0")
        a(f"s_waitcnt vmcnt({vmw})")
        a(f"s_branch {lab}C")
        a.label(lab)
        a(f"s_sleep {OPT.get('sleep', 8)}")
        a(f"buffer_load_dword v{vPOLL}, v{vFL}, {S4(S_WS)}, s3 offen sc1")
        a("s_waitcnt vmcnt(0)")
        a.label(lab + "C")
        a(f"v_cmp_eq_u32 vcc, 0, v{vPOLL}")
        a(f"s_add_u32 s{sT2}, s{sT2}, 1")
        a(f"s_and_b32 s{S_T}, vcc_lo, {need}")
        a(f"s_cbranch_scc0 {lab}D")
        a(f"s_cmp_lt_u32 s{sT2}, 100000")
        a(f"s_cbranch_scc1 {lab}")
        a.label(lab + "D")

    emit(ld_gate())
    if 'noipf' not in OPT:
        only(6, ["s_getpc_b64 s[80:81]" if not STAMP else "s_getpc_b64 s[100:101]",
                 "s_lshr_b32 s3, s2, 3", "s_mul_i32 s3, s3, 3072", "v_lshl_add_u32 v118, v0, 7, s3",
                 "v_min_u32 v118, CODE_SPAN, v118",
                 f"v_mov_b32 v119, s{81 if not STAMP else 101}", f"v_add_co_u32 v118, vcc, s{80 if not STAMP else 100}, v118", "v_addc_co_u32 v119, vcc, 0, v119, vcc",
                 "s_mov_b64 exec, 0xffffff", "global_load_dword v120, v[118:119], off sc1", "s_mov_b64 exec, -1"])
        a.label("M_IPF")
    a(f"s_waitcnt vmcnt({vm.wait(('kv', 0))})")
    a("s_barrier")
    sp.mark("kv0")
    a(f"s_cmp_lg_u32 s{sG}, 0")
    a("s_cbranch_scc1 M_KVV")
    vm0 = list(vm.tags)
    spn = sp.n
    vAX, vAQ, vST = 2, 6, 10
    QA = 128
    PK = lambda z: (240 + 4 * z) if z < 4 else (80 + 4 * (z - 4))
    endwait = []
    for part in range(2):
        if part: a.label("M_KVV")
        vm.tags = list(vm0)
        sp.n = spn
        S = Stream(a, vm, dist=int(OPT.get('kd', 12)), per_gap=int(OPT.get('kpg', 2)), bar_delay=int(OPT.get('kbd', 3)))
        S.fill_rate = float(OPT.get('fr', 2.0))
        S.la = int(OPT.get('kla', 1)); S.ustep = int(OPT.get('kus', 1))
        rl = []
        for st in range(8):
            buf = (st & 1) * 32768
            for u in range(2):
                x = 2 * st + u
                for nt in range(4):
                    for hf in range(2):
                        rg = WFR[x & 1] + 4 * nt + 2 * hf
                        rl.append((32 * x + nt - 6, ("w", x, nt, hf),
                                   f"ds_read_b64_tr_b16 {vr(rg,2)}, v{vAW+nt} offset:{buf+u*8192+hf*1024}", rg, st))
                for kt in range(8):
                    rg = CFR + 4 * (kt % int(OPT.get('kring', 4)))
                    rl.append((32 * x + 4 * kt, ("c", x, kt), f"ds_read_b128 {vr(rg,4)}, v{vAC+u} offset:{buf+kt*2048}", rg, st))
                    for nt in range(4):
                        idx = kt * 4 + nt if part == 0 else ((kt >> 1) * 4 + nt) * 2 + (kt & 1)
                        acc = vr(ACC + 4 * idx, 4)
                        w, c = vr(WFR[x & 1] + 4 * nt, 4), vr(rg, 4)
                        cin = "0" if x == 0 else acc
                        S.op(f"{MFMA16} {acc}, {w}, {c}, {cin}" if part == 0 else f"{MFMA16} {acc}, {c}, {w}, {cin}",
                             [("w", x, nt, 0), ("w", x, nt, 1), ("c", x, kt)])
            sh = int(OPT.get('sh', 0))
            after = kv_dma(st + 2) if st < 6 else []
            q0l = sh or 'q0late' in OPT
            if st == 5 and not q0l: after = after + q_dma_x(0)
            if st == 6: after = (q_dma_x(0) if q0l else []) + q_dma_w(0) + q_dma_x(1) + q_dma_w(1)
            if st == 7: after = q_dma_x(2) + q_dma_w(2)
            pad = [[] for _ in range(int(OPT.get('stag', 14)) if part == 1 else 0)]
            tags = [("kv", st + 1)] if st < 7 else [("q", 0)]
            pre = None
            if st == 0 and 'nopf2' not in OPT: after = after + pf2
            if st == sh - 1: after = after + ld_kv(part)
            if st == 1: tags += ["gt"]
            if st == 1 + sh:
                tags += ["kvs"]
                if part: pad = rd_kv()
                else: after = after + rd_kv()
            if st == 2: tags += ["pf"]
            if st == 2 + sh: after = after + ld_wo()
            if st == int(OPT.get('pfst', 4)): after = after + ld_pf()[:1]
            if st == int(OPT.get('hst', 6)): after = after + ld_pf()[1:]
            if st == 7: tags += ["pfq"]
            if st == 4 + sh:
                tags += ["wo"]
                pre = lambda: (chk.append(1), a("s_waitcnt lgkmcnt(0)"))
                if part: pad = rd_post() + pad[8:]
                else: after = after + rd_post()
            after = pad + after
            if part == 0:
                if st == 1: after = [clean_set] + after
                if st in (6, 7): after = after + [lambda st=st: clean_issue(st - 6)]
            after = [lambda st=st: sp.mark(f"k{st}")] + after
            S.barrier_after_stage(st, tags, after, pre)
        rl.sort(key=lambda r: (r[4], r[0]))
        for r in rl: S.read(r[1], r[2], r[3], r[4], r[0])
        chk = []
        def before_b4(): assert not chk, "kvT job too late"
        if sh == 0:
            for i, it in enumerate(ld_kv(part)): S.timed.append((int(OPT.get('kvp', 2)) + 3 * i, it, 48))
        if part == 0: S.timed.append((20, clear_line, 48))
        if 'trk' in OPT:
            nl = int(OPT['trk'])
            for i in range(2, 16):
                S.timed.append((32 * i + 12, [f"s_lshl_b32 s3, s2, 3", f"s_add_u32 s3, s3, s{sW}", f"s_mul_i32 s3, s3, {128*nl}",
                    f"s_add_u32 s3, s3, {64*MB + i*2048*128*nl}", f"s_mov_b32 s{S_WS+2}, {200*MB}", f"s_mov_b64 exec, {hex(sum(1 << (8*k) for k in range(nl)))}",
                    (f"buffer_load_dword v{vSC}, v{vL16}, {S4(S_WS)}, s3 offen sc1", "trk"), "s_mov_b64 exec, -1"], 600))
            S.timed.sort(key=lambda x: x[0])
        for it in job_gate(): S.filler(2 * 64 - 8, 1, it)
        for it in job_kvt(): S.filler((3 + sh) * 64 - 10 - 30 * sh, 1, it)
        S.filler(0, 0, before_b4)
        jp = job_post()
        if 'nowost' in OPT: jp = jp[3:]
        if 'nokvst' in OPT: jp = jp[:3]
        for i, it in enumerate(jp):
            S.filler((5 + sh) * 64 + 16 + int(OPT.get('postoff', 0)) + 7 * part + int(OPT.get('pstep', 30 - 10 * sh)) * i, 1, it)
        S.run([0])
        sp.mark("kv")
        a(f"s_lshr_b32 s{sT}, s{sW}, 1")
        a(f"s_lshl_b32 s{sT}, s{sT}, 13")
        a(f"s_and_b32 s{sT2}, s{sW}, 1")
        a(f"s_lshl_b32 s{sT2}, s{sT2}, 2")
        a("s_mov_b32 s3, 65536")
        frag_addrs(vAX, sT, vAQ, sT2, 3)
        a(f"v_add_u32 v{vAX+2}, 131072, v{vAX}")
        a(f"v_add_u32 v{vAX+3}, 131072, v{vAX+1}")
        S = Stream(a, vm, dist=int(OPT.get('qd', 10)), per_gap=2, bar_delay=int(OPT.get('qbd', 3)))
        S.fill_rate = 1.0
        S.la = int(OPT.get('qla', 1)); S.ustep = int(OPT.get('qus', 1))
        rl = []
        EARLYV = 'latev' not in OPT
        KPUB, VPUB = int(OPT.get('kpub', 4)), int(OPT.get('vpub', 8 if EARLYV else 9))
        for k in range(10):
            xb = XB[(k + 2) % 3]
            for u in range(2):
                x = 2 * k + u
                for nt in range(4):
                    for hf in range(2):
                        rg = WFR[x & 1] + 4 * nt + 2 * hf
                        rl.append((16 * x + nt - 5, ("w", x, nt, hf),
                                   f"ds_read_b64_tr_b16 {vr(rg,2)}, v{vAQ+nt} offset:{(k%3)*16384+u*8192+hf*1024}", rg, k))
                for qi in range(4):
                    rg = CFR + 4 * qi
                    av = vAX + u + (2 if xb == 131072 else 0)
                    rl.append((16 * x + 4 * qi, ("c", x, qi), f"ds_read_b128 {vr(rg,4)}, v{av} offset:{(xb%131072)+qi*2048}", rg, k))
                    for nt in range(4):
                        acc = vr(QA + 4 * (qi * 4 + nt), 4)
                        S.op(f"{MFMA16} {acc}, {vr(WFR[x&1]+4*nt,4)}, {vr(rg,4)}, {'0' if x == 0 else acc}",
                             [("w", x, nt, 0), ("w", x, nt, 1), ("c", x, qi)])
            tags, after, pre = [("q", k + 1)], [], None
            if k + 3 <= 9: after = q_dma_x(k + 3) + q_dma_w(k + 3)
            if k == KPUB - 1 and part == 0: pre = clean_check
            if k == KPUB: tags.append("pr2")
            if k == KPUB and part == 0: tags.append("st"); after = [lambda: publish(0, 0)] + after
            KP = int(OPT.get('kpoll', 7))
            if k == KP - 1 and part == 0: after = [lambda: (poll_issue(1), vm.add("mark"), vm.ghost.add("mark"))] + after
            if k == KP:
                if part == 0: pre = lambda: poll(1, 1, vm.wait("mark"))
                after = [[f"s_mov_b32 s{S_K}, s{S_WS}", f"s_mov_b32 s{S_K+1}, s{S_WS+1}", f"s_mov_b32 s{S_K+2}, s{S_V+2}"]] + kdma(0, "k0") + kdma(1, "k0")
            if k == 8: after = after + kdma(2, "k2")
            if k == 9: tags = []
            if k == VPUB and part == 1: tags.append("st"); after = [lambda: publish(4, 1)] + after
            if k == 9 and part == 1 and EARLYV: after = after + [lambda: poll_issue(5)]
            if part == 1: after = [[] for _ in range(int(OPT.get('qstag', 0)))] + after
            after = [lambda k=k: sp.mark(f"q{k}")] + after
            S.barrier_after_stage(k, tags, after, pre)
        rl.sort(key=lambda r: (r[4], r[0]))
        for r in rl: S.read(r[1], r[2], r[3], r[4], r[0])
        npre = 10
        for r in rl[:npre]: a(r[2])
        a(f"v_add_u32 v{vST}, {4096 >> part}, v{vL16}")
        a(f"v_mov_b32 v{vZERO}, 0")
        a(f"v_and_b32 v{vFL}, 31, v0")
        a(f"v_lshlrev_b32 v{vFL}, 2, v{vFL}")
        for z in list(range(4, 16)) + list(range(4)):
            for e in range(4):
                a(f"v_cvt_pk_bf16_f32 v{PK(z)+e}, v{ACC+8*z+2*e}, v{ACC+8*z+2*e+1}")
        SC = " " + OPT.get('stsc', 'sc1').replace('_', ' ')
        st0, stp = (2, int(OPT.get('stp', 5))) if part == 0 else (int(OPT.get('vst', 84)), int(OPT.get('stpv', 8)))
        for z in range(16 if 'nost' not in OPT else 1):
            j, c = z >> 2, z & 3
            S.filler(st0 + stp * z, 1, [f"s_add_u32 s3, s{sOB}, {j*8192}",
                     (f"buffer_store_dwordx4 {vr(PK(z),4)}, v{vST if c >> 1 else vL16}, {S4(S_WS)}, s3 offen offset:{(c&1)*1024}{SC}", "st")])
        S.run([0], preissued=npre)
        endwait.append(vm.wait("k0"))
        if part == 0: a("s_branch M_KVD")
    a.label("M_KVD")
    sp.mark("q")
    vKA, vVA, vD0, vQ2, vNINF, vTA, vX0, T = 2, 3, 4, 5, 8, 9, 10, 16
    FK, FV, P, SS, O, Q, NEGM, ONES, LS = 28, 60, [92, 100], [108, 124], 140, 204, 236, 244, 248
    BIAS = 12.0
    a(f"s_mov_b32 s{sT}, {f32hex(1.4426950408889634 * 128 ** -0.5)}")
    a(f"s_lshr_b32 s{sT2}, s{sW}, 1")
    a(f"s_lshl_b32 s{sT2}, s{sT2}, 14")
    a(f"s_and_b32 s3, s{sW}, 1")
    a("s_lshl_b32 s3, s3, 11")
    a(f"s_add_u32 s{sT2}, s{sT2}, s3")
    a(f"s_add_u32 s{sT2}, s{sT2}, 98304")
    a(f"v_add_u32 v6, s{sT2}, v{vL16}")
    a(f"s_lshl_b32 s{sT2}, s{sG}, 15")
    a(f"s_lshl_b32 s3, s{sRB}, 12")
    a(f"s_add_u32 s{sT2}, s{sT2}, s3")
    a(f"s_add_u32 s{sT2}, s{sT2}, 98304")
    a(f"v_add_u32 v{vQ2}, s{sT2}, v{vL16}")
    a(f"s_lshl_b32 s{sWO}, s{sG}, 13")
    if SHARE: a(f"v_mov_b32 v{vKA}, v{vL16}")
    else: a(f"v_add_u32 v{vKA}, s{sWO}, v{vL16}")
    a(f"v_add_u32 v{vVA}, 65536, v{vKA}")
    for f in range(8):
        for e in range(4):
            r = QA + 8 * f + 2 * e
            a(f"v_mul_f32 v{r}, s{sT}, v{r}")
            a(f"v_mul_f32 v{r+1}, s{sT}, v{r+1}")
            a(f"v_cvt_pk_bf16_f32 v{Q+4*f+e}, v{r}, v{r+1}")
        a(f"ds_write_b128 v6, {vr(Q+4*f,4)} offset:{(f>>1)*4096+(f&1)*1024}")
    a("v_and_b32 v7, 15, v0")
    a("v_lshrrev_b32 v8, 4, v0")
    a(f"s_lshl_b32 s{sT}, s{sRB}, 4")
    a(f"v_add_u32 v{vD0}, s{sT}, v7")
    a("v_lshlrev_b32 v8, 2, v8")
    a(f"v_sub_u32 v{vD0}, v{vD0}, v8")
    a(f"v_mov_b32 v{vNINF}, 0xff800000")
    for r in range(8): a(f"v_mov_b32 v{NEGM+r}, 0")
    for r in range(4): a(f"v_mov_b32 v{ONES+r}, 0x3f803f80")
    poll(5, 0x101, 0)
    a(f"s_waitcnt vmcnt({min(endwait)}) lgkmcnt(0)")
    a("s_barrier")
    sp.mark("qx")
    def kread(e, t): return f"ds_read_b128 {vr(FK+4*t,4)}, v{vKA} offset:{(e&3)*16384+t*1024}"
    def vread(e, i): return f"ds_read_b128 {vr(FV+4*i,4)}, v{vVA} offset:{(e&3)*16384+i*1024}"
    def qread(extra): return [f"ds_read_b128 {vr(Q+4*f,4)}, v{vQ2} offset:{extra+(f>>2)*16384+(f&3)*1024}" for f in range(8)]
    for x in qread(0): a(x)
    for i in range(8): a(kread(0, i))
    a(f"s_mov_b32 s{sS}, 0")
    a("s_waitcnt lgkmcnt(0)")

    handlers = []
    def xreduce(op, x, tmp):
        a(f"v_mov_b32 v{tmp}, v{x}")
        a(f"v_permlane16_swap_b32 v{x}, v{tmp}")
        a(f"{op} v{x}, v{x}, v{tmp}")
        a(f"v_mov_b32 v{tmp}, v{x}")
        a(f"v_permlane32_swap_b32 v{x}, v{tmp}")
        a(f"{op} v{x}, v{x}, v{tmp}")
    def rowmax(dst, tmp, src):
        a(f"v_max3_f32 v{dst}, v{src}, v{src+1}, v{src+2}")
        a(f"v_max3_f32 v{dst}, v{dst}, v{src+3}, v{src+4}")
        a(f"v_max3_f32 v{dst}, v{dst}, v{src+5}, v{src+6}")
        a(f"v_max_f32 v{dst}, v{dst}, v{src+7}")
        xreduce("v_max_f32", dst, tmp)
    def sm_ops(Sc, Pw, hi_only=False):
        f = []
        def post(q):
            f.append((1, [f"v_cvt_pk_bf16_f32 v{Pw+q//2}, v{T+q%8}, v{T+(q+1)%8}"]))
            k = q // 2
            if hi_only:
                if k == 7:
                    f.append((1, [f"v_or3_b32 v{vTA}, v{Pw+4}, v{Pw+5}, v{Pw+6}"]))
                    f.append((1, [f"v_bitop3_b32 v{vTA}, v{vTA}, v{Pw+7}, s{sTHR} bitop3:0xa8"]))
                return
            if k == 3: f.append((1, [f"v_or3_b32 v{vTA}, v{Pw}, v{Pw+1}, v{Pw+2}"]))
            if k == 5: f.append((1, [f"v_or3_b32 v{vTA}, v{vTA}, v{Pw+3}, v{Pw+4}"]))
            if k == 7:
                f.append((1, [f"v_or3_b32 v{vTA}, v{vTA}, v{Pw+5}, v{Pw+6}"]))
                f.append((1, [f"v_bitop3_b32 v{vTA}, v{vTA}, v{Pw+7}, s{sTHR} bitop3:0xa8"]))
        r0 = 8 if hi_only else 0
        for r in range(r0, 16):
            f.append((2, [f"v_exp_f32 v{T+r%8}, v{Sc+r}"]))
            if r % 2 == 1 and r >= r0 + 3: post(r - 3)
        post(14)
        return f
    def store_ctx(qis, sct, obase):
        n = 0
        for qi in qis:
            for u in range(4):
                d = T + (n % 2) * 4
                n += 1
                src = obase(qi) + 8 * u
                for e in range(4): a(f"v_cvt_pk_bf16_f32 v{d+e}, v{src+2*e}, v{src+2*e+1}")
                if u == 0 and qi == 1 and len(qis) == 2: a(f"s_add_u32 s{sct}, s{sct}, {4*CS}")
                a(f"buffer_store_dwordx4 {vr(d,4)}, v{vL16}, {S4(S_WS)}, s{sct} offen offset:{u*1024}{' sc1' if FUSE else ''}")

    sX = sROW
    def slot(j, name, qk=True, sm=True, pv=True, nxt=True, dma=True, last=False, prebar=None, fresh=False, fast=None, hi=""):
        par = j & 1
        Sc, Sn, Pw, Pr = SS[1 - par], SS[par], P[1 - par], P[par]
        if fast:
            a.label(name + "_GO")
            handlers.append(("entry", name))
            handlers.append(("ev", name, Sc))
        else:
            a.label(name)
            if sm or pv:
                a(f"s_bitcmp1_b64 s[{sEV}:{sEV+1}], s{sS}")
                a(f"s_cbranch_scc1 {name}_EV")
                a.label(name + "_GO")
                handlers.append(("ev", name, Sc))
        ms = []
        if qk:
            for t in range(8):
                kt, u = t >> 2, t & 3
                mm = []
                for qi in range(1 if "q" in hi else 0, 2):
                    d = vr(Sn + 8 * qi + 4 * kt, 4)
                    mm.append(f"{MFMA16} {d}, {vr(FK+4*t,4)}, {vr(Q+16*qi+4*u,4)}, {vr(NEGM+4*qi,4) if u == 0 else d}")
                ms.append(mm)
        if pv:
            for i in range(8):
                mm = []
                for qi in range(1 if "p" in hi else 0, 2):
                    o = vr(O + 32 * qi + 4 * i, 4)
                    mm.append(f"{MFMA16} {o}, {vr(FV+4*i,4)}, {vr(Pr+4*qi,4)}, {'0' if fresh else o}")
                if i == 3:
                    for qi in range(1 if "p" in hi else 0, 2):
                        mm.append(f"{MFMA16} {vr(LS+4*qi,4)}, {vr(ONES,4)}, {vr(Pr+4*qi,4)}, {'0' if fresh else vr(LS+4*qi,4)}")
                ms.append(mm)
        n = len(ms)
        pre = [[] for _ in range(n)]; post = [[] for _ in range(n)]
        if qk and pv:
            for i in range(8): post[i // 2].append(vread(j - 2, i))
            K0 = int(OPT.get('k0', 4))
            if nxt:
                for t in range(8): post[K0 + t].append(kread(j + 1, t))
            pre[8].append(f"s_waitcnt lgkmcnt({(8 - K0) if nxt else 0})")
        elif qk:
            if nxt:
                for t in range(8): post[t].append(kread(j + 1, t))
        else:
            for i in range(8): a(vread(j - 2, i))
            for i in range(0, 8, 2): pre[i].append(f"s_waitcnt lgkmcnt({6 - i})")
        if dma and not ('nodma' in OPT and fast):
            h0, h1 = sHIST[(j + 3) & 3], sHIST[(j + 2) & 3]
            dp = [int(x) for x in OPT.get('dp', '4,6,9,11').split(',')] if n == 16 else [1, 3, 5, 7]
            pre[dp[0]].insert(0, f"s_add_u32 m0, s{sM0V}, {(j & 3) * 16384}")
            post[dp[0]].append(f"buffer_load_dwordx4 v{vL16}, {S4(S_V)}, s{sHIST[j&3]} offen sc1 lds")
            post[dp[1]].append(f"buffer_load_dwordx4 v{vL16}, {S4(S_V)}, s{sHIST[j&3]} offen offset:1024 sc1 lds")
            pre[dp[2]] = [f"s_add_u32 m0, s{sM0K}, {((j + 3) & 3) * 16384}", f"s_add_u32 s{h0}, s{h1}, s{sBASE}"] + pre[dp[2]]
            post[dp[2]].append(f"buffer_load_dwordx4 v{vL16}, {S4(S_K)}, s{h0} offen sc1 lds")
            post[dp[3]].append(f"buffer_load_dwordx4 v{vL16}, {S4(S_K)}, s{h0} offen offset:1024 sc1 lds")
        if fast: post[12] += [f"s_add_u32 s{sS}, s{sS}, 1", f"s_bitcmp1_b64 s[{sEV}:{sEV+1}], s{sS}", f"s_cselect_b32 s{sX}, 1, 0"]
        groups = []
        for m in range(n):
            for k, x in enumerate(ms[m]):
                groups.append((pre[m] if k == 0 else [], x, post[m] if k == len(ms[m]) - 1 else []))
        fl = sm_ops(Sc, Pw, "s" in hi) if (sm and 'nosm' not in OPT) else []
        if fast: fl.append((1, [f"v_cmp_ne_u32 vcc, s{sX}, v{vTA}"]))
        elif sm: fl.append((1, [f"v_cmp_ne_u32 vcc, 0, v{vTA}"]))
        interleave(a, groups, fl, max(len(groups) - 3, 1))
        if fast:
            if fast == "AT_L2":
                a("s_cbranch_vccz AT_TOP")
                a(f"s_branch {name}_SP")
            else:
                a(f"s_cbranch_vccnz {name}_SP")
                a("s_waitcnt vmcnt(4) lgkmcnt(0)")
                if 'nobar' not in OPT: a("s_barrier")
            handlers.append(("special", name, fast))
            handlers.append(("slow", name, Sc, Sn, Pw))
            return
        if sm:
            a(f"s_cbranch_vccnz {name}_SLOW")
            a.label(name + "_RET")
            handlers.append(("slow", name, Sc, Sn, Pw))
        if not last:
            a(f"s_add_u32 s{sS}, s{sS}, 1")
            if prebar: prebar()
            a(f"s_waitcnt vmcnt({4 if dma else 0}) lgkmcnt(0)")
            a("s_barrier")

    slot(0, "AT_S0", sm=False, pv=False)
    sp.mark("s0")
    slot(1, "AT_S1", pv=False)
    sp.mark("s1")
    poll_issue(2)
    slot(2, "AT_S2", prebar=lambda: poll(2, 0xffff, 4), fresh=True)
    sp.mark("s2")
    a("s_branch AT_L3")
    a(".p2align 6")
    a.label("AT_TOP")
    a("s_waitcnt vmcnt(4) lgkmcnt(0)")
    if 'nobar' not in OPT: a("s_barrier")
    slot(2, "AT_L2", fast="AT_L3"); slot(3, "AT_L3", fast="AT_L0"); slot(0, "AT_L0", fast="AT_L1"); slot(1, "AT_L1", fast="AT_L2")
    a.label("AT_P33")
    sp.mark("s32")
    if FUSE: poll_issue(6, True)
    HI = 'nohi' not in OPT
    slot(1, "AT_S33", nxt=False, prebar=(lambda: poll(6, -1, 4, True)) if FUSE else None, hi="q" if HI else "")
    slot(2, "AT_S34", qk=False, nxt=False, dma=False, hi="s" if HI else "")
    if FUSE and 'lateconv' not in OPT:
        for x in tsrd(PT + 6, 2621440): a(x)
        gen_tail.conv_dma(a, {k: v for k, v in globals().items() if not k.startswith("__") and k != "gen_tail"}, sW, S_WS, S_T, sT, sT2, 3, sCO, vL16, 6, 7,
                          98304, "AT_S35", " sc1")
    slot(3, "AT_S35", qk=False, sm=False, nxt=False, dma=False, last=True, hi="p" if HI else "")
    sp.mark("s35")
    X0, X1, X2, X3, X4, X5 = range(vX0, vX0 + 6)
    MA0, MA1, MA2, MA3, MT = FK, FK + 1, FK + 2, FK + 3, FK + 4
    a(f"s_mul_i32 s{sT}, s{sW}, {8192+512}")
    a(f"s_xor_b32 s{sT2}, s{sW}, 4")
    a(f"s_mul_i32 s{sT2}, s{sT2}, {8192+512}")
    a(f"v_add_u32 v{MA0}, s{sT}, v{vL16}")
    a(f"v_add_u32 v{MA1}, s{sT2}, v{vL16}")
    a(f"v_lshlrev_b32 v{MA2}, 3, v0")
    a(f"v_add_u32 v{MA3}, s{sT2}, v{MA2}")
    a(f"v_add_u32 v{MA2}, s{sT}, v{MA2}")
    a(f"s_cmp_eq_u32 s{sG}, 0")
    a("s_cbranch_scc1 AT_MA")
    for gsel in (1, 0):
        if gsel == 0: a.label("AT_MA")
        own, snd = O + 32 * gsel, O + 32 * (1 - gsel)
        a(f"v_mov_b32 v{X4}, v{NEGM+4*(1-gsel)}")
        a(f"v_mov_b32 v{X5}, v{LS+4*(1-gsel)}")
        a(f"ds_write_b64 v{MA2}, v[{X4}:{X5}] offset:8192")
        for q in range(8): a(f"ds_write_b128 v{MA0}, {vr(snd+4*q,4)} offset:{1024*q}")
        if gsel: a(f"s_add_u32 s{sCT2}, s{sCT2}, {4*CS}")
        a("s_waitcnt lgkmcnt(0)")
        a("s_barrier")
        a(f"ds_read_b64 v[{X2}:{X3}], v{MA3} offset:8192")
        for q in range(8): a(f"ds_read_b128 {vr(snd+4*q,4)}, v{MA1} offset:{1024*q}")
        a("s_waitcnt lgkmcnt(8)")
        a(f"v_min_f32 v{vTA}, v{NEGM+4*gsel}, v{X2}")
        a(f"v_sub_f32 v{X0}, v{vTA}, v{NEGM+4*gsel}")
        a(f"v_sub_f32 v{X2}, v{vTA}, v{X2}")
        a(f"v_exp_f32 v{X0}, v{X0}")
        a(f"v_exp_f32 v{X2}, v{X2}")
        a(f"v_mul_f32 v{vTA}, v{LS+4*gsel}, v{X0}")
        a(f"v_fmac_f32 v{vTA}, v{X3}, v{X2}")
        a(f"v_rcp_f32 v{vTA}, v{vTA}")
        a(f"v_mul_f32 v{X0}, v{X0}, v{vTA}")
        a(f"v_mul_f32 v{X2}, v{X2}, v{vTA}")
        for u in range(4):
            for r in range(8 * u, 8 * u + 8): a(f"v_mul_f32 v{own+r}, v{own+r}, v{X0}")
            a(f"s_waitcnt lgkmcnt({6-2*u})")
            for r in range(8 * u, 8 * u + 8): a(f"v_fmac_f32 v{own+r}, v{snd+r}, v{X2}")
            for e in range(4): a(f"v_cvt_pk_bf16_f32 v{MT+4*u+e}, v{own+8*u+2*e}, v{own+8*u+2*e+1}")
            a(f"buffer_store_dwordx4 {vr(MT+4*u,4)}, v{vL16}, {S4(S_WS)}, s{sCT2} offen offset:{u*1024}{' sc1' if FUSE else ''}")
        if gsel: a("s_branch AT_MB")
    a.label("AT_MB")
    if FUSE:
        sp.mark("att")
        gen_tail.gen_tail(a, {k: v for k, v in globals().items() if not k.startswith("__") and k != "gen_tail"}, dict(sW=sW, sH=sH, sP=sP, sp=sp))
    elif STAMP:
        a("s_waitcnt vmcnt(0)")
        sp.mark("end")
        a("s_waitcnt lgkmcnt(0)")
        sp.flush(100, sW, 0, slot=0); sp.flush(100, sW, 4, slot=1)
    a.label("M_END")
    a("s_endpgm")
    for hd in handlers:
        if hd[0] == "entry":
            name = hd[1]
            a.label(name)
            a(f"s_bitcmp1_b64 s[{sEV}:{sEV+1}], s{sS}")
            a(f"s_cbranch_scc0 {name}_GO")
        elif hd[0] == "special":
            _, name, nx = hd
            a.label(name + "_SP")
            a(f"v_cmp_ne_u32 vcc, 0, v{vTA}")
            a(f"s_cbranch_vccnz {name}_SLOW")
            a.label(name + "_RET")
            a("s_waitcnt vmcnt(4) lgkmcnt(0)")
            if 'nobar' not in OPT: a("s_barrier")
            if nx == "AT_L1":
                a(f"s_cmp_eq_u32 s{sS}, 33")
                a("s_cbranch_scc1 AT_P33")
            a(f"s_branch {nx}")
        elif hd[0] == "ev":
            _, name, Sc = hd
            a.label(name + "_EV")
            a(f"s_cmp_eq_u32 s{sS}, s{sWRAP}")
            a(f"s_cselect_b32 s{sBASE}, 16384, s{sBASE}")
            if SHARE:
                a(f"s_cselect_b32 s{S_K+2}, {16*MB}, s{S_K+2}")
                a(f"s_sub_u32 s{sT}, s{sS}, s{sWRAP}")
                a(f"s_cmp_eq_u32 s{sT}, 3")
                a(f"s_cselect_b32 s{S_V+2}, {16*MB}, s{S_V+2}")
                a(f"s_cmp_eq_u32 s{sT}, 2")
                a(f"s_cselect_b32 s{sT2}, s{sWO}, 0")
                a(f"v_add_u32 v{vKA}, s{sT2}, v{vKA}")
                a(f"s_cmp_eq_u32 s{sT}, 5")
                a(f"s_cselect_b32 s{sT2}, s{sWO}, 0")
                a(f"v_add_u32 v{vVA}, s{sT2}, v{vVA}")
            a(f"s_cmp_eq_u32 s{sS}, 31")
            a(f"s_cselect_b32 s{S_K+2}, 0, s{S_K+2}")
            a(f"s_sub_u32 s{sT}, s{sS}, s{sN1}")
            a(f"s_cmp_lg_u32 s{sT}, 2")
            a(f"s_cbranch_scc1 {name}_E1")
            a(f"v_rcp_f32 v{vX0}, v{LS}")
            a(f"v_rcp_f32 v{vX0+1}, v{LS+4}")
            for r in range(8): a(f"v_mov_b32 v{LS+r}, 0")
            for r in range(64): a(f"v_mul_f32 v{O+r}, v{O+r}, v{vX0+(r>>5)}")
            store_ctx((0, 1), sCT1, lambda qi: O + 32 * qi)
            for r in range(64): a(f"v_mov_b32 v{O+r}, 0")
            a.label(name + "_E1")
            if FUSE:
                only(0, ["s_mov_b64 exec, 1", f"v_mov_b32 v{vX0}, 1", f"s_lshl_b32 s3, s{sP}, 10", f"s_add_u32 s3, s3, s{sH}", "s_lshl_b32 s3, s3, 2",
                         f"s_add_u32 s3, s3, {WS_FL3}", f"buffer_store_dword v{vX0}, v{vZERO}, {S4(S_WS)}, s3 offen sc1", "s_mov_b64 exec, -1"],
                     f"s_cmp_lg_u32 s{sT}, 3")
            a(f"s_cmp_lg_u32 s{sT}, 0")
            a(f"s_cbranch_scc1 {name}_E2")
            for x in qread(32768): a(x)
            for r in range(8): a(f"v_mov_b32 v{NEGM+r}, 0")
            a("s_waitcnt lgkmcnt(0)")
            a.label(name + "_E2")
            a(f"s_sub_u32 s{sT2}, s{sS}, s{sMST}")
            a(f"s_sub_u32 s{sT2}, s{sT2}, 1")
            a(f"s_cmp_lt_u32 s{sT2}, 4")
            a(f"s_cbranch_scc1 {name}_EM")
            a(f"s_cmp_lt_u32 s{sS}, 33")
            a(f"s_cbranch_scc1 {name}_E3")
            a(f"s_sub_u32 s{sT2}, s{sS}, 33")
            a(f"s_lshl_b32 s{sT2}, s{sT2}, 1")
            a(f"s_add_u32 s{sT2}, s{sT2}, s{sG}")
            a.label(name + "_EM")
            a(f"s_lshl_b32 s{sT2}, s{sT2}, 5")
            a(f"v_subrev_u32 v{vX0}, s{sT2}, v{vD0}")
            a(f"v_add_u32 v{vX0+1}, 64, v{vX0}")
            for qi in range(2):
                for kt in range(2):
                    for e in range(4):
                        a(f"v_cmp_le_i32 s[{sMK+2*e}:{sMK+2*e+1}], {16*kt+e}, v{vX0+qi}")
                    for e in range(4):
                        r = Sc + 8 * qi + 4 * kt + e
                        a(f"v_cndmask_b32 v{r}, v{vNINF}, v{r}, s[{sMK+2*e}:{sMK+2*e+1}]")
            a.label(name + "_E3")
            a(f"s_cmp_eq_u32 s{sT}, 1")
            a(f"s_cbranch_scc1 {name}_E4")
            a(f"s_cmp_lg_u32 s{sS}, 1")
            a(f"s_cbranch_scc1 {name}_GO")
            a.label(name + "_E4")
            for qi in range(2):
                rowmax(vX0 + qi, vX0 + 2 + qi, Sc + 8 * qi)
                a(f"v_add_f32 v{vX0+qi}, {f32hex(BIAS)}, v{vX0+qi}")
            for r in range(8): a(f"v_sub_f32 v{NEGM+r}, v{NEGM+r}, v{vX0+(r>>2)}")
            for r in range(16): a(f"v_sub_f32 v{Sc+r}, v{Sc+r}, v{vX0+(r>>3)}")
            a(f"s_branch {name}_GO")
        else:
            _, name, Sc, Sn, Pw = hd
            a.label(name + "_SLOW")
            for qi in range(2):
                rowmax(vX0 + qi, vX0 + 2 + qi, Sc + 8 * qi)
                a(f"v_add_f32 v{vX0+qi}, {f32hex(BIAS)}, v{vX0+qi}")
                a(f"v_max_f32 v{vX0+qi}, 0, v{vX0+qi}")
                a(f"v_exp_f32 v{vX0+2+qi}, -v{vX0+qi}")
            for r in range(8): a(f"v_sub_f32 v{NEGM+r}, v{NEGM+r}, v{vX0+(r>>2)}")
            for r in range(16): a(f"v_sub_f32 v{Sn+r}, v{Sn+r}, v{vX0+(r>>3)}")
            for r in range(16): a(f"v_sub_f32 v{Sc+r}, v{Sc+r}, v{vX0+(r>>3)}")
            for r in range(64): a(f"v_mul_f32 v{O+r}, v{O+r}, v{vX0+2+(r>>5)}")
            for r in range(8): a(f"v_mul_f32 v{LS+r}, v{LS+r}, v{vX0+2+(r>>2)}")
            for c, ops in sm_ops(Sc, Pw):
                for x in ops: a(x)
            a(f"s_branch {name}_RET")
    a.label("M_LAST")
    a("s_endpgm")
    return dict(name="gated_mix__ssm_conv_h3__compressed_kv_cla__prompt_kernel" if FUSE else "main_kernel", grid=256, block=512, lds=163840, vgpr=256)

import gen as G1
G1.STAMP = False
KERNELS = {"main": gen_main, "conv": G1.gen_conv, "oproj": G1.gen_oproj, "tail": lambda a: gen_tail.gen_tail(a, {k: v for k, v in globals().items() if not k.startswith("__") and k != "gen_tail"})}

def build(names, path, verbose=False):
    hdr = open("gated_mix__ssm_conv_h3__compressed_kv_cla__prompt.s.ref").read().split("\n")
    hdr = [l for l in hdr if l.startswith(";") and "@launch" not in l and "Override" not in l and "grid=ceil" not in l]
    codes, descs, launches = [], [], []
    for n in names:
        a = Asm()
        info = KERNELS[n](a)
        k = fix_hazards(a.lines, verbose)
        print(f"{n}: {len(a.lines)} lines, {k} nops inserted")
        c, d = kernel_text(info["name"], a.lines, info["vgpr"], extra="  .amdhsa_float_denorm_mode_32 3\n")
        codes.append(c); descs.append(d)
        kn = "" if "plain" in OPT else f"kernel={info['name']} "
        launches.append(f"; @launch {kn}grid=({info['grid']},1,1) block=({info['block']},1,1) lds={info['lds']}")
    txt = "\n".join(hdr + launches) + '\n.amdgcn_target "amdgcn-amd-amdhsa--gfx950"\n.text\n' + "\n".join(codes) + \
          '\n.section .rodata,"a"\n' + "\n".join(descs)
    if "CODE_SPAN" in txt: txt = txt.replace("CODE_SPAN", str(int(OPT.get("ipf", 77000))))
    open(path, "w").write(txt)

if __name__ == "__main__":
    names = sys.argv[2].split(",") if len(sys.argv) > 2 else list(KERNELS)
    build(names, sys.argv[1] if len(sys.argv) > 1 else "k2.s", verbose="-v" in sys.argv)
```

```python
import sys, struct
from asmlib import *
from sched import *
import gen_tail

MB = 1 << 20
WS_KF, WS_VF, WS_CTX, WS_WOT, WS_KVT, WS_Y2T, WS_G = 0, 16 * MB, 32 * MB, 49 * MB, 56 * MB, 60 * MB, 63 * MB
KA = dict(A_q=0, A_k=8, A_v=16, shift=24, ssm_k=32, ssm_D=40, B_x=48, c_kv=56, w_q=64, w_uk=72, w_uv=80, w_o=88,
          gate=96, out=104, dbg=112, ws=120)
MFMA32 = "v_mfma_f32_32x32x16_bf16"
MFMA16 = "v_mfma_f32_16x16x32_bf16"
STAMP = "-stamp" in sys.argv
OPT = {x[2:].split("=")[0]: (x.split("=")[1] if "=" in x else "1") for x in sys.argv if x.startswith("--")}
WS_FLG = 63 * MB + 524288
WS_FL2 = 63 * MB + 655360
WS_FL3 = WS_FL2 + 131072
FUSE = 'nofuse' not in OPT
CS = 131072 + int(OPT.get('cspad', 1024))
RS = 4096 + int(OPT.get('rspad', 128))
NT1 = ' nt' if 'nt1' in OPT else ''
NT2 = ' nt' if 'nt2' in OPT else ''
OOB = "0x80000000"
def f32hex(x): return "0x%08x" % struct.unpack("<I", struct.pack("<f", x))[0]

def srd(a, d, lo, hi, size, add=0):
    if add:
        a(f"s_add_u32 s{d}, s{lo}, {add}")
        a(f"s_addc_u32 s{d+1}, s{hi}, 0")
    else:
        a(f"s_mov_b32 s{d}, s{lo}")
        a(f"s_mov_b32 s{d+1}, s{hi}")
    a(f"s_mov_b32 s{d+2}, {size}")
    a(f"s_mov_b32 s{d+3}, 0x00020000")
def S4(d): return f"s[{d}:{d+3}]"

class Stamps:
    def __init__(self, a, base=70, region=0):
        self.a, self.base, self.n, self.region = a, base, 0, region
    off = False
    def mark(self, name=""):
        if not STAMP or self.off: return
        if name not in OPT.get("marks", "start,kv,q,s1,end,t0,t1,t2").split(","): return
        assert self.base + 2 * self.n + 3 <= 101
        self.a(f"s_memtime s[{self.base+2*self.n}:{self.base+2*self.n+1}]")
        self.a(f"s_memrealtime s[{self.base+2*self.n+2}:{self.base+2*self.n+3}]")
        self.n += 2
    def flush(self, wg, sW, wave, slot=0):
        if not STAMP: return
        a = self.a
        lab = a.uid("STK")
        a(f"s_cmp_lg_u32 s{sW}, {wave}")
        a(f"s_cbranch_scc1 {lab}")
        if 'dbgstamp' in OPT:
            if slot:
                a.label(lab); return
            a(f"s_cmp_lg_u32 s2, {OPT['dbgstamp']}")
            a(f"s_cbranch_scc1 {lab}")
            a(f"s_load_dwordx2 s[60:61], s[0:1], {KA['dbg']}")
            a("s_waitcnt lgkmcnt(0)")
            a("s_mov_b32 s62, 64")
            a("s_mov_b32 s63, 0x00020000")
            a("v_mov_b32 v1, 0")
            for i in range(self.n - 1, 1, -1): a(f"s_sub_u32 s{self.base+2*i}, s{self.base+2*i}, s{self.base+2*i-4}")
        else:
            a(f"s_load_dwordx2 s[60:61], s[0:1], {KA['ws']}")
            a("s_waitcnt lgkmcnt(0)")
            a(f"s_add_u32 s60, s60, {128*MB + self.region*65536 + slot*64}")
            a("s_addc_u32 s61, s61, 0")
            a("s_mov_b32 s62, 65536")
            a("s_mov_b32 s63, 0x00020000")
            a("s_lshl_b32 s3, s2, 7")
            a("v_mov_b32 v1, s3")
        for i in range(self.n):
            a(f"v_mov_b32 v2, s{self.base+2*i}")
            a(f"buffer_store_dword v2, v1, s[60:63], 0 offen offset:{4*i}")
        a("s_getreg_b32 s3, hwreg(HW_REG_XCC_ID)")
        a("v_mov_b32 v2, s3")
        a(f"buffer_store_dword v2, v1, s[60:63], 0 offen offset:60")
        a("s_waitcnt vmcnt(0)")
        a.label(lab)

def rnd_pair(d, lo, hi, olo, ohi):
    return [f"v_cvt_pk_bf16_f32 v{d}, v{lo}, v{hi}", f"v_lshlrev_b32 v{olo}, 16, v{d}", f"v_and_b32 v{ohi}, 0xffff0000, v{d}"]

def interleave(a, mfmas, fillers, ngaps):
    tot = sum(c for c, _ in fillers)
    fi, acc = 0, 0.0
    for g, (pre, m, post) in enumerate(mfmas):
        for x in pre: a(x)
        a(m)
        for x in post: a(x)
        lim = tot * min(1.0, (g + 1) / ngaps) if ngaps else tot
        while fi < len(fillers) and acc + fillers[fi][0] * 0.5 <= lim:
            acc += fillers[fi][0]
            for x in fillers[fi][1]: a(x)
            fi += 1
    while fi < len(fillers):
        for x in fillers[fi][1]: a(x)
        fi += 1

def gen_main(a):
    S_C, S_W, S_WS, S_V, S_X, S_WQ, S_DBG = 4, 8, 12, 16, 20, 24, 28
    (sW, sH, sP, sG, sRB, sT, sT2, sCO, sWO, sM0C, sM0W, sOB, sROW, sXO, sQWO, sN1, sS, sMST, sTHR, sM0K, sM0V,
     sBASE, sCT1, sCT2, sWRAP) = range(32, 57)
    sHIST = [57, 58, 59, 60]
    sEV = 62
    PT = 64
    S_T = 76
    sMK = 4
    S_K = S_X
    sNB = 61
    SHARE = 'noshare' not in OPT
    vL16, vCD, vWD, vAC, vAW, vXD, vQW, vWOT, vKVT = 1, 2, 6, 10, 12, 16, 20, 22, 23
    WFR, CFR, ACC = [32, 48], 64, 128
    sp = Stamps(a, base=80)
    vm = VM()
    a("s_cmp_ge_u32 s2, 256")
    a("s_cbranch_scc1 M_END")
    sp.mark("start")
    a(f"s_load_dwordx2 s[44:45], s[0:1], {KA['c_kv']}")
    a(f"s_load_dwordx4 s[48:51], s[0:1], {KA['w_uk']}")
    a("v_lshrrev_b32 v1, 6, v0")
    a("v_mov_b32 v31, v0")
    a("v_and_b32 v0, 63, v0")
    a(f"v_readfirstlane_b32 s{sW}, v1")
    a(f"s_and_b32 s{sH}, s2, 7")
    a("s_lshr_b32 s3, s2, 6")
    a("s_lshl_b32 s3, s3, 3")
    a(f"s_add_u32 s{sH}, s{sH}, s3")
    a(f"s_bfe_u32 s{sP}, s2, 0x30003")
    a(f"s_lshr_b32 s{sG}, s{sW}, 2")
    a("v_lshrrev_b32 v24, 3, v0")
    a("v_and_b32 v25, 7, v0")
    a("v_lshrrev_b32 v26, 4, v0")
    a("v_xor_b32 v25, v25, v26")
    a("v_lshlrev_b32 v25, 4, v25")
    a("v_xor_b32 v27, 64, v25")
    a(f"v_lshl_add_u32 v{vCD}, v24, 10, v25")
    a(f"v_lshl_add_u32 v{vCD+1}, v24, 10, v27")
    a(f"v_add_u32 v{vCD+1}, {8192-1024}, v{vCD+1}")
    a(f"v_add_u32 v{vCD+2}, {2*(8192-1024)}, v{vCD}")
    a(f"v_add_u32 v{vCD+3}, {2*(8192-1024)}, v{vCD+1}")
    a("v_and_b32 v28, 15, v0")
    a("v_lshlrev_b32 v29, 1, v26")
    a("v_xor_b32 v28, v28, v29")
    a("v_lshlrev_b32 v28, 4, v28")
    a(f"v_lshl_add_u32 v{vWD}, v26, 13, v28")
    a(f"v_add_u32 v{vWD+1}, {4*8192-1024}, v{vWD}")
    a(f"v_xor_b32 v{vWD+2}, 128, v{vWD}")
    a(f"v_add_u32 v{vWD+2}, {2*(4*8192-1024)}, v{vWD+2}")
    a(f"v_add_u32 v{vWD+3}, {4*8192-1024}, v{vWD+2}")
    a(f"s_and_b32 s{sRB}, s{sW}, 3")
    a(f"s_lshl_b32 s{sCO}, s{sP}, 18")
    a(f"s_lshl_b32 s{sT}, s{sW}, 15")
    a(f"s_add_u32 s{sCO}, s{sCO}, s{sT}")
    a(f"s_lshl_b32 s{sWO}, s{sRB}, 17")
    a(f"s_lshl_b32 s{sT}, s{sH}, 8")
    a(f"s_add_u32 s{sWO}, s{sWO}, s{sT}")
    a(f"s_lshl_b32 s{sM0C}, s{sW}, 12")
    a(f"s_add_u32 s{sM0W}, s{sM0C}, 65536")
    a("s_waitcnt lgkmcnt(0)")
    srd(a, S_C, 44, 45, 2 * MB)
    a(f"s_cmp_eq_u32 s{sG}, 0")
    a(f"s_cselect_b32 s{S_W}, s48, s50")
    a(f"s_cselect_b32 s{S_W+1}, s49, s51")
    a(f"s_mov_b32 s{S_W+2}, {4*MB}")
    a(f"s_mov_b32 s{S_W+3}, 0x00020000")
    def kv_dma(st):
        buf = (st & 1) * 32768
        tg = ("kv", st)
        out = [[f"s_add_u32 m0, s{sM0C}, {buf}", f"s_add_u32 s{sT}, s{sCO}, {st*128}",
                (f"buffer_load_dwordx4 v{vCD}, {S4(S_C)}, s{sT} offen lds", tg)]]
        for i in range(1, 4): out.append([(f"buffer_load_dwordx4 v{vCD+i}, {S4(S_C)}, s{sT} offen offset:{i*1024} lds", tg)])
        out.append([f"s_add_u32 m0, s{sM0W}, {buf}", f"s_add_u32 s{sT}, s{sWO}, {st*64*8192}",
                    (f"buffer_load_dwordx4 v{vWD}, {S4(S_W)}, s{sT} offen lds", tg)])
        for i in range(1, 4): out.append([(f"buffer_load_dwordx4 v{vWD+i}, {S4(S_W)}, s{sT} offen offset:{i*1024} lds", tg)])
        return out
    def emit(items):
        for it in items:
            for x in it:
                if isinstance(x, tuple): a(x[0]); vm.add(x[1])
                else: a(x)
    emit(kv_dma(0))
    a(f"s_load_dwordx2 s[44:45], s[0:1], {KA['A_q']}")
    a(f"s_load_dwordx2 s[46:47], s[0:1], {KA['w_q']}")
    a(f"s_load_dwordx4 s[48:51], s[0:1], {KA['dbg']}")
    a(f"s_load_dwordx4 s[{PT}:{PT+3}], s[0:1], {KA['A_k']}")
    a(f"s_load_dwordx4 s[{PT+4}:{PT+7}], s[0:1], {KA['shift']}")
    a(f"s_load_dwordx4 s[{PT+8}:{PT+11}], s[0:1], {KA['w_o']}")
    a(f"v_lshlrev_b32 v{vL16}, 4, v0")
    a("v_mul_u32_u24 v28, 1280, v24")
    a(f"v_add_u32 v{vXD}, v28, v25")
    a(f"v_add_u32 v{vXD+1}, v28, v27")
    a(f"v_add_u32 v{vXD+1}, {8*1280-1024}, v{vXD+1}")
    a(f"v_add_u32 v{vXD+2}, {2*(8*1280-1024)}, v{vXD}")
    a(f"v_add_u32 v{vXD+3}, {2*(8*1280-1024)}, v{vXD+1}")
    a(f"s_and_b32 s3, s{sW}, 1")
    a("s_lshl_b32 s3, s3, 7")
    a(f"v_xor_b32 v{vQW}, s3, v{vWD}")
    a(f"v_add_u32 v{vQW+1}, {4*8192-1024}, v{vQW}")
    emit(kv_dma(1))
    vPF, vPFW, vSC = 116, 115, 117
    if 'nopf' not in OPT:
        a(f"v_lshlrev_b32 v{vPF}, 7, v0")
        a("v_lshrrev_b32 v24, 1, v0")
        a("v_and_b32 v25, 1, v0")
        a("v_lshlrev_b32 v25, 7, v25")
        a(f"v_lshl_add_u32 v{vPFW}, v24, 13, v25")
        a("s_lshl_b32 s3, s2, 13")
        a(f"s_lshl_b32 s{sT}, s{sW}, 10")
        a(f"s_add_u32 s3, s3, s{sT}")
        a("s_mov_b64 exec, 0xff")
        emit([[(f"buffer_load_dword v{vSC}, v{vPF}, {S4(S_C)}, s3 offen sc1", "pf")]])
        if 'nopf2' not in OPT:
            a(f"s_lshl_b32 s3, s{sP}, 2")
            a(f"s_add_u32 s3, s3, s{sRB}")
            a(f"s_mul_i32 s3, s3, {6*8192}")
            a(f"s_lshl_b32 s{sT}, s{sH}, 8")
            a(f"s_add_u32 s3, s3, s{sT}")
            a(f"s_add_u32 s3, s3, {128*8192}")
            a(f"s_add_u32 s{sNB}, s3, {192*8192}")
            a("s_mov_b32 exec_lo, 0xfff")
            pf2 = [["s_mov_b64 exec, 0xfff", (f"buffer_load_dword v{vSC}, v{vPFW}, {S4(S_W)}, s{sNB} offen sc1{NT2}", "pf"), "s_mov_b64 exec, -1"]]
        else:
            a(f"s_lshl_b32 s3, s{sP}, 19")
            a(f"s_add_u32 s3, s3, s{sWO}")
            a("s_mov_b32 exec_lo, -1")
        emit([[(f"buffer_load_dword v{vSC}, v{vPFW}, {S4(S_W)}, s3 offen sc1{NT2}", "pf")]])
        a("s_mov_b64 exec, -1")
    def frag_addrs(vR, rowoff_sgpr, vWa, nt_sgpr, wbase_sgpr):
        a("v_and_b32 v24, 15, v0")
        a("v_lshrrev_b32 v25, 4, v0")
        a("v_bfe_u32 v26, v0, 1, 3")
        a("v_xor_b32 v26, v26, v25")
        a("v_lshlrev_b32 v26, 4, v26")
        a("v_lshl_add_u32 v26, v24, 7, v26")
        a(f"v_add_u32 v{vR}, s{rowoff_sgpr}, v26")
        a(f"v_xor_b32 v{vR+1}, 64, v{vR}")
        a("v_bfe_u32 v24, v0, 2, 2")
        a("v_lshl_add_u32 v26, v25, 3, v24")
        a("v_lshlrev_b32 v26, 8, v26")
        a("v_and_b32 v27, 3, v0")
        a("v_lshl_add_u32 v26, v27, 3, v26")
        a(f"v_add_u32 v26, s{wbase_sgpr}, v26")
        a("v_and_b32 v25, 1, v25")
        a("v_lshl_add_u32 v24, v25, 2, v24")
        a(f"v_xor_b32 v24, s{nt_sgpr}, v24")
        for nt in range(4):
            a(f"v_xor_b32 v25, {nt}, v24")
            a(f"v_lshl_add_u32 v{vWa+nt}, v25, 5, v26")
    a(f"s_and_b32 s{sT}, s{sW}, 1")
    a(f"s_lshl_b32 s{sT}, s{sT}, 14")
    a(f"s_and_b32 s{sT2}, s{sW}, 2")
    a(f"s_lshl_b32 s{sT2}, s{sT2}, 1")
    a(f"s_lshl_b32 s3, s{sG}, 14")
    a("s_add_u32 s3, s3, 65536")
    frag_addrs(vAC, sT, vAW, sT2, 3)
    WOB = 131072
    a("v_lshrrev_b32 v24, 2, v0")
    a("v_mul_u32_u24 v24, 672, v24")
    a("v_and_b32 v25, 3, v0")
    a("v_lshl_add_u32 v24, v25, 3, v24")
    a(f"s_lshl_b32 s{sT}, s{sW}, 5")
    a(f"s_add_u32 s{sT}, s{sT}, {WOB}")
    a(f"v_add_u32 v{vWOT}, s{sT}, v24")
    KVS, TRB = 131072, 153600
    a("v_mul_u32_u24 v25, 1639, v31")
    a("v_lshrrev_b32 v25, 16, v25")
    a("v_mul_u32_u24 v26, 40, v25")
    a("v_sub_u32 v26, v31, v26")
    a("v_mul_u32_u24 v29, 1280, v25")
    a("v_lshl_add_u32 v29, v26, 2, v29")
    a(f"v_add_u32 v29, {KVS}, v29")
    a("v_and_b32 v27, 7, v26")
    a("v_xor_b32 v27, v27, v25")
    a("v_lshlrev_b32 v27, 4, v27")
    a(f"v_lshl_add_u32 v{vKVT}, v26, 8, v27")
    a(f"v_add_u32 v{vKVT}, {TRB}, v{vKVT}")
    a(f"s_and_b32 s{sT2}, s2, 7")
    a(f"s_mul_i32 s{sT}, s{sT2}, 40")
    a(f"v_add_lshl_u32 v26, v26, s{sT}, 4")
    a("v_mul_u32_u24 v25, 205, v0")
    a("v_lshrrev_b32 v25, 11, v25")
    a("v_mul_u32_u24 v27, 1120, v25")
    a("v_lshl_add_u32 v27, v0, 4, v27")
    a(f"s_lshr_b32 s{sT}, s2, 3")
    a(f"s_mul_i32 s{sT}, s{sT}, {64*1280}")
    a(f"s_mul_i32 s{sT2}, s{sT2}, 160")
    a(f"s_add_u32 s{sT}, s{sT}, s{sT2}")
    a(f"s_sub_u32 s{sT}, s{sT}, 3840")
    a(f"v_add_u32 v27, s{sT}, v27")
    a(f"v_mov_b32 v30, {OOB}")
    a("v_mul_u32_u24 v24, 20, v0")
    a("s_waitcnt lgkmcnt(0)")
    srd(a, S_WS, 50, 51, 64 * MB)
    srd(a, S_V, 50, 51, 16 * MB, WS_VF)
    srd(a, S_X, 44, 45, 2621440)
    srd(a, S_WQ, 46, 47, 5242880)
    srd(a, S_DBG, 48, 49, 256)
    a(f"s_sub_u32 s{sT}, 15, s{sP}")
    a(f"s_lshl_b32 s{sT2}, s{sRB}, 5")
    a(f"s_lshl_b32 s{sCT2}, s{sT}, 7")
    a(f"s_add_u32 s{sCT2}, s{sCT2}, s{sT2}")
    a(f"s_lshl_b32 s{sCT1}, s{sP}, 7")
    a(f"s_add_u32 s{sCT1}, s{sCT1}, s{sT2}")
    a(f"s_cmp_eq_u32 s{sG}, 0")
    a(f"s_cselect_b32 s{sROW}, s{sCT1}, s{sCT2}")
    a(f"s_mul_i32 s{sXO}, s{sROW}, 1280")
    a(f"s_lshl_b32 s{sQWO}, s{sW}, 16")
    a(f"s_lshl_b32 s{sT}, s{sH}, 8")
    a(f"s_add_u32 s{sQWO}, s{sQWO}, s{sT}")
    a(f"s_lshl_b32 s{sT}, s{sH}, 12")
    a(f"s_add_u32 s{sT}, s{sT}, {WS_CTX}")
    a(f"s_lshl_b32 s{sT2}, s{sRB}, 4")
    for c in (sCT1, sCT2):
        a(f"s_sub_u32 s{c}, s{c}, s{sT2}")
        a(f"s_mul_i32 s{c}, s{c}, {CS // 16}")
        a(f"s_add_u32 s{c}, s{c}, s{sT}")
    a(f"s_lshl_b32 s{sOB}, s{sH}, 6")
    a(f"s_lshl_b32 s{sT}, s{sP}, 3")
    a(f"s_add_u32 s{sOB}, s{sOB}, s{sT}")
    a(f"s_and_b32 s{sT}, s{sW}, 1")
    a(f"s_lshl_b32 s{sT}, s{sT}, 2")
    a(f"s_add_u32 s{sOB}, s{sOB}, s{sT}")
    a(f"s_lshl_b32 s{sOB}, s{sOB}, 13")
    a(f"s_bfe_u32 s{sT}, s{sW}, 0x10001")
    a(f"s_add_u32 s{sT2}, s{sG}, 11")
    a(f"s_lshl_b32 s{sT}, s{sT}, s{sT2}")
    a(f"s_add_u32 s{sOB}, s{sOB}, s{sT}")
    a(f"s_lshl_b32 s{sT}, s{sG}, 24")
    a(f"s_add_u32 s{sOB}, s{sOB}, s{sT}")
    a(f"s_lshl_b32 s{sN1}, s{sP}, 2")
    a(f"s_add_u32 s{sN1}, s{sN1}, 4")
    a(f"s_lshl_b32 s{sHIST[0]}, s{sH}, 19")
    a(f"s_lshl_b32 s{sT}, s{sRB}, 11")
    a(f"s_add_u32 s{sHIST[0]}, s{sHIST[0]}, s{sT}")
    a(f"s_lshl_b32 s{sM0K}, s{sW}, 11")
    a(f"s_add_u32 s{sM0V}, s{sM0K}, 65536")
    a(f"s_sub_u32 s{sT2}, s{sN1}, 4")
    a(f"s_sub_u32 s{sWRAP}, s{sN1}, 2")
    a(f"s_sub_u32 s{sWRAP}, s{sWRAP}, s{sG}")
    a(f"s_mov_b32 s{sBASE}, 8192")
    a(f"s_cmp_eq_u32 s{sG}, 0")
    a(f"s_cselect_b32 s{sMST}, s{sT2}, 99")
    a(f"s_cselect_b32 s{sN1}, s{sN1}, 100")
    a(f"s_add_u32 s{sHIST[1]}, s{sHIST[0]}, 8192")
    a(f"s_add_u32 s{sHIST[2]}, s{sHIST[0]}, 16384")
    a(f"s_mov_b64 s[{sEV}:{sEV+1}], {(127 if FUSE else 63) if 'noev' not in OPT else 64}")
    a(f"s_add_u32 s{sT}, s{sMST}, 1")
    a(f"s_lshl_b64 s[{sEV}:{sEV+1}], s[{sEV}:{sEV+1}], s{sT}")
    if SHARE:
        a(f"s_mul_i32 s{S_T}, s{sG}, 45")
        a(f"s_mov_b32 s{S_T+1}, 0")
        a(f"s_lshl_b64 s[{S_T}:{S_T+1}], s[{S_T}:{S_T+1}], s{sWRAP}")
        a(f"s_or_b64 s[{sEV}:{sEV+1}], s[{sEV}:{sEV+1}], s[{S_T}:{S_T+1}]")
        a(f"s_cmp_eq_u32 s{sG}, 0")
        a(f"s_cselect_b32 s{S_V+2}, s{S_V+2}, 0")
    a(f"s_bitset1_b64 s[{sEV}:{sEV+1}], s{sWRAP}")
    a(f"s_or_b32 s{sEV}, s{sEV}, 0x80000002")
    a(f"s_or_b32 s{sEV+1}, s{sEV+1}, 6")
    a(f"s_mov_b32 s{sTHR}, 0x40004000")
    a(f"s_mov_b32 s{S_T+3}, 0x00020000")
    if 'tlb' in OPT:
        a(f"s_lshl_b32 s{sT}, s{sW}, 2")
        a(f"s_lshr_b32 s3, 0xdba84210, s{sT}")
        a("s_and_b32 s3, s3, 15")
        a("s_lshl_b32 s3, s3, 3")
        a(f"s_load_dwordx2 s[{S_T}:{S_T+1}], s[0:1], s3")
        a(f"s_lshr_b32 s3, 0x5a8a5555, s{sT}")
        a("s_and_b32 s3, s3, 15")
        a(f"s_lshl_b32 s{S_T+2}, s3, 19")
        a("v_lshlrev_b32 v118, 20, v0")
        a("s_lshl_b32 s3, s2, 10")
        a(f"s_lshr_b32 s{sT}, s2, 3")
        a(f"s_lshl_b32 s{sT}, s{sT}, 21")
        a(f"s_lshl_b32 s{sT2}, s{sW}, 12")
        a(f"s_add_u32 s{sT}, s{sT}, s{sT2}")
        a("s_waitcnt lgkmcnt(0)")
        a("s_mov_b64 exec, 0x3f")
        emit([[(f"buffer_load_dword v{vSC}, v118, {S4(S_T)}, s3 offen sc1", "pf")]])
        a("s_mov_b64 exec, 3")
        emit([[(f"buffer_load_dword v{vSC}, v118, {S4(S_WS)}, s{sT} offen sc1", "pf")]])
        a("s_mov_b64 exec, -1")

    XB = [0, 32768, 131072]
    def q_dma_x(k):
        tg = ("q", k)
        out = [[f"s_add_u32 m0, s{sM0C}, {XB[(k+2)%3]}", f"s_add_u32 s{sT}, s{sXO}, {k*128}",
                (f"buffer_load_dwordx4 v{vXD}, {S4(S_X)}, s{sT} offen lds", tg)]]
        for i in range(1, 4): out.append([(f"buffer_load_dwordx4 v{vXD+i}, {S4(S_X)}, s{sT} offen offset:{i*1024} lds", tg)])
        return out
    def q_dma_w(k):
        tg = ("q", k)
        return [[f"s_add_u32 m0, s{sM0V}, {(k%3)*16384}", f"s_add_u32 s{sT}, s{sQWO}, {k*64*8192}",
                 (f"buffer_load_dwordx4 v{vQW}, {S4(S_WQ)}, s{sT} offen lds", tg)],
                [(f"buffer_load_dwordx4 v{vQW+1}, {S4(S_WQ)}, s{sT} offen offset:1024 lds", tg)]]
    GX, GXT, GWT, GW, KR, VR, SH = 80, 84, 85, 86, 90, 101, 110
    def tsrd(lo, size): return [f"s_mov_b32 s{S_T}, s{lo}", f"s_mov_b32 s{S_T+1}, s{lo+1}", f"s_mov_b32 s{S_T+2}, {size}"]
    def ld_wo():
        L = []
        for i in range(4):
            L.append(tsrd(PT + 8, 5242880) + [f"s_lshr_b32 s3, s2, 1", "s_lshl_b32 s3, s3, 5", f"s_lshl_b32 s{sT2}, s{sW}, 2",
                     f"s_add_u32 s3, s3, s{sT2}", "s_mul_i32 s3, s3, 1280", f"s_and_b32 s{sS}, s2, 1", f"s_mul_i32 s{sS}, s{sS}, 640",
                     f"s_add_u32 s3, s3, s{sS}", f"s_mul_i32 s{sT2}, s{sT2}, 672", "s_mov_b32 exec_hi, 0xff",
                     f"s_add_u32 m0, s{sT2}, {WOB+672*i}", f"s_add_u32 s{sS}, s3, {1280*i}",
                     (f"buffer_load_dwordx4 v{vL16}, {S4(S_T)}, s{sS} offen{NT1} lds", "wo"), "s_mov_b32 exec_hi, -1"])
        return L
    def ld_gate():
        return [["s_lshl_b32 s3, s2, 3", f"s_add_u32 s3, s3, s{sW}", "s_mul_i32 s3, s3, 1280",
                 (f"buffer_load_dwordx4 {vr(GX,4)}, v24, {S4(S_X)}, s3 offen", "gt"),
                 (f"buffer_load_dword v{GXT}, v24, {S4(S_X)}, s3 offen offset:16", "gt")],
                tsrd(PT + 10, 1280) + [(f"buffer_load_dwordx4 {vr(GW,4)}, v24, {S4(S_T)}, 0 offen", "gt"),
                 (f"buffer_load_dword v{GWT}, v24, {S4(S_T)}, 0 offen offset:16", "gt")]]
    def ld_kv(part):
        L = []
        for i in range(3):
            isv = i == 2 or (i == 1 and part == 1)
            rows0 = 6 * 8 * i - (72 - 3 if isv else 0)
            L.append(tsrd(PT + (2 if isv else 0), 2621440) +
                     [f"s_mul_i32 s3, s{sW}, {6*1280}", f"s_add_u32 s3, s3, {rows0*1280}", "v_add_u32 v28, s3, v27",
                      f"s_mul_i32 s3, s{sW}, 960", f"s_add_u32 m0, s3, {KVS + 8*960*i}", "s_mov_b32 exec_hi, 0xfffffff",
                      (f"buffer_load_dwordx4 v28, {S4(S_T)}, 0 offen{NT1} lds", "kvs"), "s_mov_b32 exec_hi, -1"])
        L.append(tsrd(PT + 4, 5120) + [(f"buffer_load_dwordx4 {vr(SH,4)}, v26, {S4(S_T)}, 0 offen", "kvs")])
        return L
    def rd_kv():
        return [[f"ds_read_b32 v{KR+j}, v29 offset:{160*j}"] for j in range(11)] + \
               [[f"ds_read_b32 v{VR+j}, v29 offset:{11520+160*j}"] for j in range(8)]
    def ld_pf():
        L = []
        for msk in (("0x3f", "0xfc0", "0xff000") if 'gap' in OPT else ("0xfffff",)):
            L.append([f"s_lshl_b32 s3, s{sP}, 3", f"s_add_u32 s3, s3, s{sW}", f"s_mul_i32 s3, s3, {10*8192}", f"s_lshl_b32 s{sT2}, s{sH}, 8",
                      f"s_add_u32 s3, s3, s{sT2}", f"s_mov_b64 exec, {msk}",
                      (f"buffer_load_dword v{vPFW}, v{vPFW}, {S4(S_WQ)}, s3 offen sc1{NT2}", "pfq"), "s_mov_b64 exec, -1"])
        L.append(tsrd(PT + 6, 2621440) + ["s_lshr_b32 s3, s2, 1", "s_mul_i32 s3, s3, 5", f"s_and_b32 s{sT2}, s2, 1", f"s_mul_i32 s{sT2}, s{sT2}, 3",
                  f"s_add_u32 s3, s3, s{sT2}", f"s_add_u32 s3, s3, s{sW}", "s_lshl_b32 s3, s3, 12", f"s_cmp_ge_u32 s{sW}, 3",
                  f"s_cselect_b32 s3, {OOB}, s3", "v_lshlrev_b32 v29, 7, v0", "s_mov_b32 exec_hi, 0",
                  (f"buffer_load_dword v29, v29, {S4(S_T)}, s3 offen sc1", "pfh"), "s_mov_b32 exec_hi, -1"])
        return L

    t0, t1, t2, t3, t4 = 24, 25, 26, 27, 28
    SCF = ' sc1' if FUSE else ''
    def job_gate():
        L = [[f"v_mov_b32 v{t0}, 0"]]
        for x, w in [(GX + i, GW + i) for i in range(4)] + [(GXT, GWT)]:
            L += [[s] for s in [f"v_lshlrev_b32 v{t1}, 16, v{x}", f"v_and_b32 v{t2}, 0xffff0000, v{x}",
                                f"v_lshlrev_b32 v{t3}, 16, v{w}", f"v_and_b32 v{t4}, 0xffff0000, v{w}",
                                f"v_mul_f32 v{t1}, v{t1}, v{t3}", f"v_mul_f32 v{t2}, v{t2}, v{t4}"] + rnd_pair(t3, t1, t2, t1, t2) +
                               [f"v_add_f32 v{t0}, v{t0}, v{t1}", f"v_add_f32 v{t0}, v{t0}, v{t2}"]]
        for m in ("row_shr:1", "row_shr:2", "row_shr:4", "row_shr:8"):
            L.append([f"v_add_f32_dpp v{t0}, v{t0}, v{t0} {m} row_mask:0xf bank_mask:0xf bound_ctrl:0"])
        L.append([f"v_add_f32_dpp v{t0}, v{t0}, v{t0} row_bcast:15 row_mask:0xa bank_mask:0xf"])
        L.append([f"v_add_f32_dpp v{t0}, v{t0}, v{t0} row_bcast:31 row_mask:0xc bank_mask:0xf"])
        L += [[s] for s in rnd_pair(t1, t0, t0, t0, t2)[:2] +
              [f"v_mul_f32 v{t0}, 0xbfb8aa3b, v{t0}", f"v_exp_f32 v{t0}, v{t0}", f"v_cmp_eq_u32 vcc, 63, v0",
               f"v_add_f32 v{t0}, 1.0, v{t0}", f"v_rcp_f32 v{t0}, v{t0}", f"v_cndmask_b32 v{t2}, v30, 0, vcc"] +
              rnd_pair(t1, t0, t0, t0, t3)[:2]]
        L.append(["s_lshl_b32 s3, s2, 3", f"s_add_u32 s3, s3, s{sW}", "s_lshl_b32 s3, s3, 2", f"s_add_u32 s3, s3, {WS_G}",
                  (f"buffer_store_dword v{t0}, v{t2}, {S4(S_WS)}, s3 offen{SCF}", "pr2")])
        return L
    def job_kvt():
        L = []
        W = 80
        for c in range(2):
            for q in range(2):
                L.append([f"v_lshlrev_b32 v{W+4*c+2*q}, 16, v{SH+2*c+q}"])
                L.append([f"v_and_b32 v{W+4*c+2*q+1}, 0xffff0000, v{SH+2*c+q}"])
        KL, KH = [110, 111, 112, 113], [88, 89, 109, 114]
        def unp(j): return [f"v_lshlrev_b32 v{KL[j%4]}, 16, v{KR+j}", f"v_and_b32 v{KH[j%4]}, 0xffff0000, v{KR+j}"]
        for j in range(3): L += [[s] for s in unp(j)]
        for s in range(8):
            ops = unp(s + 3)
            ops += [f"v_mul_f32 v{t0}, v{KL[s%4]}, v{W+3}", f"v_mul_f32 v{t1}, v{KH[s%4]}, v{W+7}"]
            for j in (2, 1, 0):
                ops += [f"v_fmac_f32 v{t0}, v{KL[(s+3-j)%4]}, v{W+j}", f"v_fmac_f32 v{t1}, v{KH[(s+3-j)%4]}, v{W+4+j}"]
            ops += [f"v_lshlrev_b32 v{t3}, 16, v{VR+s}", f"v_and_b32 v{t4}, 0xffff0000, v{VR+s}"]
            if s % 2 == 0:
                ops += [f"v_mul_f32 v118, v{t0}, v{t3}", f"v_mul_f32 v119, v{t1}, v{t4}"]
            else:
                ops += [f"v_mul_f32 v{t0}, v{t0}, v{t3}", f"v_mul_f32 v{t1}, v{t1}, v{t4}",
                        f"v_cvt_pk_bf16_f32 v{120+s//2}, v118, v{t0}", f"v_cvt_pk_bf16_f32 v{124+s//2}, v119, v{t1}"]
            L += [[x] for x in ops]
        L.append([f"s_cmp_lt_u32 s{sW}, 5", "s_cselect_b64 exec, -1, 0", f"ds_write_b128 v{vKVT}, v[120:123]",
                  f"ds_write_b128 v{vKVT}, v[124:127] offset:128", "s_mov_b64 exec, -1"])
        L += [[x] for x in [f"v_lshrrev_b32 v{t2}, 3, v0", f"v_and_b32 v{t3}, 7, v0", f"v_lshrrev_b32 v{t4}, 4, v0", f"v_xor_b32 v{t4}, v{t4}, v{t3}",
                            f"v_lshlrev_b32 v{t4}, 4, v{t4}", f"v_lshl_add_u32 v{t0}, v{t2}, 7, v{t4}", f"v_lshlrev_b32 v{t3}, 4, v{t3}",
                            f"v_mul_u32_u24 v{t1}, {RS}, v{t2}", f"v_add_u32 v{t1}, v{t1}, v{t3}"]]
        L.append([f"s_and_b32 s3, s{sW}, 1", "s_lshl_b32 s3, s3, 6", f"v_xor_b32 v{t0}, s3, v{t0}", f"s_lshl_b32 s3, s{sW}, 10",
                  f"s_add_u32 s3, s3, {TRB}", f"v_add_u32 v{t0}, s3, v{t0}"])
        return L
    def rd_post():
        L = []
        for i in range(3):
            L.append([f"ds_read_b64_tr_b16 v[{116+4*i}:{117+4*i}], v{vWOT} offset:{256*i}"])
            L.append([f"ds_read_b64_tr_b16 v[{118+4*i}:{119+4*i}], v{vWOT} offset:{256*i+16*672}"])
        return L + [[f"ds_read_b128 v[90:93], v{t0}"], [f"ds_read_b128 v[94:97], v{t0} offset:8192"]]
    def job_post():
        L = [["s_and_b32 s3, s2, 1", "s_mul_i32 s3, s3, 20", f"s_add_u32 s3, s3, s{sW}", f"s_mul_i32 s3, s3, {CS}",
              f"s_lshr_b32 s{sT2}, s2, 1", f"s_lshl_b32 s{sT2}, s{sT2}, 10", f"s_add_u32 s3, s3, s{sT2}",
              f"s_add_u32 s{sS}, s3, {WS_WOT}", (f"buffer_store_dwordx4 v[116:119], v{vL16}, {S4(S_WS)}, s{sS} offen{SCF}", "pr2")]]
        L.append([f"s_add_u32 s{sS}, s{sS}, {8*CS}", (f"buffer_store_dwordx4 v[120:123], v{vL16}, {S4(S_WS)}, s{sS} offen{SCF}", "pr2")])
        L.append([f"s_add_u32 s{sS}, s{sS}, {8*CS}", f"s_cmp_ge_u32 s{sW}, 4", f"s_cselect_b32 s{sS}, {OOB}, s{sS}",
                  (f"buffer_store_dwordx4 v[124:127], v{vL16}, {S4(S_WS)}, s{sS} offen{SCF}", "pr2")])
        L.append(["s_and_b32 s3, s2, 7", f"s_mul_i32 s3, s3, {80*RS}", f"s_lshr_b32 s{sT2}, s2, 3", f"s_lshl_b32 s{sT2}, s{sT2}, 7",
                  f"s_add_u32 s3, s3, s{sT2}", f"s_mul_i32 s{sT2}, s{sW}, {8*RS}", f"s_add_u32 s3, s3, s{sT2}", f"s_add_u32 s{sS}, s3, {WS_KVT}",
                  (f"buffer_store_dwordx4 v[90:93], v{t1}, {S4(S_WS)}, s{sS} offen{SCF}", "pr2")])
        L.append([f"s_add_u32 s{sS}, s{sS}, {64*RS}", f"s_cmp_ge_u32 s{sW}, 2", f"s_cselect_b32 s{sS}, {OOB}, s{sS}",
                  (f"buffer_store_dwordx4 v[94:97], v{t1}, {S4(S_WS)}, s{sS} offen{SCF}", "pr2")])
        return L

    def kdma(e, tg):
        return [[f"s_add_u32 m0, s{sM0K}, {(e & 3) * 16384}", "s_nop 0",
                 (f"buffer_load_dwordx4 v{vL16}, {S4(S_K)}, s{sHIST[e&3]} offen sc1 lds", tg)],
                [(f"buffer_load_dwordx4 v{vL16}, {S4(S_K)}, s{sHIST[e&3]} offen offset:1024 sc1 lds", tg)]]
    vPOLL, vZERO, vFL = 24, 25, 26
    vCL = 31
    def only(wave, body, extra=None):
        lab = a.uid("ONLY")
        a(f"s_cmp_lg_u32 s{sW}, {wave}")
        a(f"s_cbranch_scc1 {lab}")
        if extra:
            a(extra); a(f"s_cbranch_scc1 {lab}")
        for x in body: a(x)
        a.label(lab)
    def clear_line():
        body = [f"s_lshl_b32 s3, s{sH}, 12", f"s_add_u32 s3, s3, {WS_FL2 - WS_FLG}", "v_lshl_add_u32 v116, v0, 2, s3",
                f"s_lshl_b32 s3, s{sH}, 2", f"s_add_u32 s3, s3, {WS_FL3 - WS_FLG - 16 * 4096}", "v_lshl_add_u32 v118, v0, 12, s3",
                "v_cmp_le_u32 vcc, 16, v0", "v_and_b32 v119, 7, v0", "v_lshl_add_u32 v119, v119, 3, s2", "v_cndmask_b32 v116, v116, v118, vcc",
                "v_lshrrev_b32 v118, 5, v119", "v_and_b32 v119, 31, v119", "v_lshlrev_b32 v119, 2, v119", "v_lshl_add_u32 v118, v118, 12, v119",
                "v_cmp_le_u32 vcc, 32, v0", f"v_mov_b32 v{vCL}, 0", f"s_mov_b32 s3, {WS_FLG}", "v_cndmask_b32 v116, v116, v118, vcc",
                f"buffer_store_dword v{vCL}, v116, {S4(S_WS)}, s3 offen sc1"]
        only(3, body, f"s_cmp_lg_u32 s{sP}, 0")
    def clean_set():
        only(3, ["s_mov_b64 exec, 1", "v_mov_b32 v119, 1", f"s_lshl_b32 s3, s{sH}, 2",
                 f"buffer_store_dword v119, v{vCL}, {S4(S_DBG)}, s3 offen offset:128 sc1", "s_mov_b64 exec, -1"], f"s_cmp_lg_u32 s{sP}, 0")
    def clean_issue(site):
        a(f"s_bfe_u32 s{sT2}, s2, 0x10003")
        only(2, [f"v_and_b32 v{vCL}, 31, v0", f"v_lshlrev_b32 v{vCL}, 2, v{vCL}",
                 f"buffer_load_dword v{vCL}, v{vCL}, {S4(S_DBG)}, 0 offen offset:128 sc1"], f"s_cmp_lg_u32 s{sT2}, {site}")
    def clean_check():
        lab = a.uid("CLN")
        a(f"s_cmp_lg_u32 s{sW}, 2")
        a(f"s_cbranch_scc1 {lab}D")
        a(f"s_mov_b32 s{sT2}, 0")
        a(f"s_branch {lab}C")
        a.label(lab)
        a("s_sleep 32")
        a(f"buffer_load_dword v{vCL}, v{vFL}, {S4(S_DBG)}, 0 offen offset:128 sc1")
        a("s_waitcnt vmcnt(0)")
        a.label(lab + "C")
        a(f"v_cmp_eq_u32 vcc, 0, v{vCL}")
        a(f"s_add_u32 s{sT2}, s{sT2}, 1")
        a(f"s_cbranch_vccz {lab}D")
        a(f"s_cmp_lt_u32 s{sT2}, 100000")
        a(f"s_cbranch_scc1 {lab}")
        a.label(lab + "D")
    def publish(wave, which):
        only(wave, ["s_mov_b64 exec, 1", f"v_mov_b32 v{vPOLL}, 1", f"s_lshl_b32 s3, s{sH}, 10", f"s_add_u32 s3, s3, s{sP}",
                    "s_lshl_b32 s3, s3, 2", f"s_add_u32 s3, s3, {WS_FL2 + 32 * which}",
                    f"buffer_store_dword v{vPOLL}, v{vZERO}, {S4(S_WS)}, s3 offen sc1", "s_mov_b64 exec, -1"])
    def line_addr(ctx0): return [f"s_mov_b32 s3, {WS_FL3}"] if ctx0 else [f"s_lshl_b32 s3, s{sH}, 12", f"s_add_u32 s3, s3, {WS_FL2}"]
    def poll_issue(wave, ctx0=False):
        only(wave, line_addr(ctx0) + [
                    f"buffer_load_dword v{vPOLL}, v{vFL}, {S4(S_WS)}, s3 offen sc1"])
    def poll(wave, need, vmw, ctx0=False):
        if 'nopoll' in OPT: return
        lab = a.uid("POLL")
        a(f"s_cmp_lg_u32 s{sW}, {wave}")
        a(f"s_cbranch_scc1 {lab}D")
        for x in line_addr(ctx0): a(x)
        a(f"s_mov_b32 s{sT2}, 0")
        a(f"s_waitcnt vmcnt({vmw})")
        a(f"s_branch {lab}C")
        a.label(lab)
        a(f"s_sleep {OPT.get('sleep', 8)}")
        a(f"buffer_load_dword v{vPOLL}, v{vFL}, {S4(S_WS)}, s3 offen sc1")
        a("s_waitcnt vmcnt(0)")
        a.label(lab + "C")
        a(f"v_cmp_eq_u32 vcc, 0, v{vPOLL}")
        a(f"s_add_u32 s{sT2}, s{sT2}, 1")
        a(f"s_and_b32 s{S_T}, vcc_lo, {need}")
        a(f"s_cbranch_scc0 {lab}D")
        a(f"s_cmp_lt_u32 s{sT2}, 100000")
        a(f"s_cbranch_scc1 {lab}")
        a.label(lab + "D")

    emit(ld_gate())
    if 'noipf' not in OPT:
        only(6, ["s_getpc_b64 s[80:81]" if not STAMP else "s_getpc_b64 s[100:101]",
                 "s_lshr_b32 s3, s2, 3", "s_mul_i32 s3, s3, 3072", "v_lshl_add_u32 v118, v0, 7, s3",
                 "v_min_u32 v118, CODE_SPAN, v118",
                 f"v_mov_b32 v119, s{81 if not STAMP else 101}", f"v_add_co_u32 v118, vcc, s{80 if not STAMP else 100}, v118", "v_addc_co_u32 v119, vcc, 0, v119, vcc",
                 "s_mov_b64 exec, 0xffffff", "global_load_dword v120, v[118:119], off sc1", "s_mov_b64 exec, -1"])
        a.label("M_IPF")
    a(f"s_waitcnt vmcnt({vm.wait(('kv', 0))})")
    a("s_barrier")
    sp.mark("kv0")
    a(f"s_cmp_lg_u32 s{sG}, 0")
    a("s_cbranch_scc1 M_KVV")
    vm0 = list(vm.tags)
    spn = sp.n
    vAX, vAQ, vST = 2, 6, 10
    QA = 128
    PK = lambda z: (240 + 4 * z) if z < 4 else (80 + 4 * (z - 4))
    endwait = []
    for part in range(2):
        if part: a.label("M_KVV")
        vm.tags = list(vm0)
        sp.n = spn
        S = Stream(a, vm, dist=int(OPT.get('kd', 12)), per_gap=int(OPT.get('kpg', 2)), bar_delay=int(OPT.get('kbd', 3)))
        S.fill_rate = float(OPT.get('fr', 2.0))
        S.la = int(OPT.get('kla', 1)); S.ustep = int(OPT.get('kus', 1))
        rl = []
        tm = []
        for st in range(8):
            buf = (st & 1) * 32768
            for u in range(2):
                x = 2 * st + u
                for nt in range(4):
                    for hf in range(2):
                        rg = WFR[x & 1] + 4 * nt + 2 * hf
                        rl.append((32 * x + nt - 6, ("w", x, nt, hf),
                                   f"ds_read_b64_tr_b16 {vr(rg,2)}, v{vAW+nt} offset:{buf+u*8192+hf*1024}", rg, st))
                for kt in range(8):
                    rg = CFR + 4 * (kt % int(OPT.get('kring', 4)))
                    rl.append((32 * x + 4 * kt, ("c", x, kt), f"ds_read_b128 {vr(rg,4)}, v{vAC+u} offset:{buf+kt*2048}", rg, st))
                    for nt in range(4):
                        idx = kt * 4 + nt if part == 0 else ((kt >> 1) * 4 + nt) * 2 + (kt & 1)
                        acc = vr(ACC + 4 * idx, 4)
                        w, c = vr(WFR[x & 1] + 4 * nt, 4), vr(rg, 4)
                        cin = "0" if x == 0 else acc
                        S.op(f"{MFMA16} {acc}, {w}, {c}, {cin}" if part == 0 else f"{MFMA16} {acc}, {c}, {w}, {cin}",
                             [("w", x, nt, 0), ("w", x, nt, 1), ("c", x, kt)])
            sh = int(OPT.get('sh', 1))
            after = kv_dma(st + 2) if st < 6 else []
            q0l = sh or 'q0late' in OPT
            if st == 5 and not q0l: after = after + q_dma_x(0)
            if st == 6: after = (q_dma_x(0) if q0l else []) + q_dma_w(0) + q_dma_x(1) + q_dma_w(1)
            if st == 7: after = q_dma_x(2) + q_dma_w(2)
            pad = [[] for _ in range(int(OPT.get('stag', 14)) if (part == 1 and st < int(OPT.get('padend', 8))) else 0)]
            tags = [("kv", st + 1)] if st < 7 else [("q", 0)]
            pre = None
            if st == 0 and 'nopf2' not in OPT: after = after + pf2
            def place(items):
                if 'gap' not in OPT: return items
                for i, it in enumerate(items): tm.append((64 * st + 62 + 5 * part + int(OPT['gap']) * i, it, 64 * st + 64 + 50))
                return []
            if st == sh - 1: after = after + place(ld_kv(part))
            if st == 1: tags += ["gt"]
            if st == 1 + sh:
                tags += ["kvs"]
                if part: pad = rd_kv()
                else: after = after + rd_kv()
            if st == 2: tags += ["pf"]
            if st == 2 + sh: after = after + place(ld_wo())
            if st == int(OPT.get('pfst', 2)): after = after + place(ld_pf()[:-1])
            if st == int(OPT.get('hst', 4)): after = after + ld_pf()[-1:]
            if st == 7: tags += ["pfq"]
            if st == 4 + sh:
                tags += ["wo"]
                pre = lambda: (chk.append(1), a("s_waitcnt lgkmcnt(0)"))
                if part: pad = rd_post() + pad[8:]
                else: after = after + rd_post()
            after = pad + after
            if part == 0:
                if st == 1: after = [clean_set] + after
                if st in (6, 7): after = after + [lambda st=st: clean_issue(st - 6)]
            after = [lambda st=st: sp.mark(f"k{st}")] + after
            S.barrier_after_stage(st, tags, after, pre)
        rl.sort(key=lambda r: (r[4], r[0]))
        for r in rl: S.read(r[1], r[2], r[3], r[4], r[0])
        chk = []
        def before_b4(): assert not chk, "kvT job too late"
        if sh == 0:
            for i, it in enumerate(ld_kv(part)): S.timed.append((int(OPT.get('kvp', 2)) + 3 * i, it, 48))
        if part == 0: S.timed.append((20, clear_line, 48))
        S.timed += tm
        S.timed.sort(key=lambda x: x[0])
        if 'trk' in OPT:
            nl = int(OPT['trk'])
            for i in range(2, 16):
                S.timed.append((32 * i + 12, [f"s_lshl_b32 s3, s2, 3", f"s_add_u32 s3, s3, s{sW}", f"s_mul_i32 s3, s3, {128*nl}",
                    f"s_add_u32 s3, s3, {64*MB + i*2048*128*nl}", f"s_mov_b32 s{S_WS+2}, {200*MB}", f"s_mov_b64 exec, {hex(sum(1 << (8*k) for k in range(nl)))}",
                    (f"buffer_load_dword v{vSC}, v{vL16}, {S4(S_WS)}, s3 offen sc1", "trk"), "s_mov_b64 exec, -1"], 600))
            S.timed.sort(key=lambda x: x[0])
        for it in job_gate(): S.filler(2 * 64 - 8, 1, it)
        for it in job_kvt(): S.filler((3 + sh) * 64 - 10 - 30 * sh, 1, it)
        S.filler(0, 0, before_b4)
        jp = job_post()
        if 'nowost' in OPT: jp = jp[3:]
        if 'nokvst' in OPT: jp = jp[:3]
        for i, it in enumerate(jp):
            S.filler((5 + sh) * 64 + 16 + int(OPT.get('postoff', 0)) + 7 * part + int(OPT.get('pstep', 30 - 10 * sh)) * i, 1, it)
        S.run([0])
        sp.mark("kv")
        a(f"s_lshr_b32 s{sT}, s{sW}, 1")
        a(f"s_lshl_b32 s{sT}, s{sT}, 13")
        a(f"s_and_b32 s{sT2}, s{sW}, 1")
        a(f"s_lshl_b32 s{sT2}, s{sT2}, 2")
        a("s_mov_b32 s3, 65536")
        frag_addrs(vAX, sT, vAQ, sT2, 3)
        a(f"v_add_u32 v{vAX+2}, 131072, v{vAX}")
        a(f"v_add_u32 v{vAX+3}, 131072, v{vAX+1}")
        S = Stream(a, vm, dist=int(OPT.get('qd', 10)), per_gap=2, bar_delay=int(OPT.get('qbd', 3)))
        S.fill_rate = 1.0
        S.la = int(OPT.get('qla', 1)); S.ustep = int(OPT.get('qus', 1))
        rl = []
        EARLYV = 'latev' not in OPT
        KPUB, VPUB = int(OPT.get('kpub', 4)), int(OPT.get('vpub', 8 if EARLYV else 9))
        for k in range(10):
            xb = XB[(k + 2) % 3]
            for u in range(2):
                x = 2 * k + u
                for nt in range(4):
                    for hf in range(2):
                        rg = WFR[x & 1] + 4 * nt + 2 * hf
                        rl.append((16 * x + nt - 5, ("w", x, nt, hf),
                                   f"ds_read_b64_tr_b16 {vr(rg,2)}, v{vAQ+nt} offset:{(k%3)*16384+u*8192+hf*1024}", rg, k))
                for qi in range(4):
                    rg = CFR + 4 * qi
                    av = vAX + u + (2 if xb == 131072 else 0)
                    rl.append((16 * x + 4 * qi, ("c", x, qi), f"ds_read_b128 {vr(rg,4)}, v{av} offset:{(xb%131072)+qi*2048}", rg, k))
                    for nt in range(4):
                        acc = vr(QA + 4 * (qi * 4 + nt), 4)
                        S.op(f"{MFMA16} {acc}, {vr(WFR[x&1]+4*nt,4)}, {vr(rg,4)}, {'0' if x == 0 else acc}",
                             [("w", x, nt, 0), ("w", x, nt, 1), ("c", x, qi)])
            tags, after, pre = [("q", k + 1)], [], None
            if k + 3 <= 9: after = q_dma_x(k + 3) + q_dma_w(k + 3)
            if k == KPUB - 1 and part == 0: pre = clean_check
            if k == KPUB: tags.append("pr2")
            if k == KPUB and part == 0: tags.append("st"); after = [lambda: publish(0, 0)] + after
            KP = int(OPT.get('kpoll', 7))
            if k == KP - 1 and part == 0: after = [lambda: (poll_issue(1), vm.add("mark"), vm.ghost.add("mark"))] + after
            if k == KP:
                if part == 0: pre = lambda: poll(1, 1, vm.wait("mark"))
                after = [[f"s_mov_b32 s{S_K}, s{S_WS}", f"s_mov_b32 s{S_K+1}, s{S_WS+1}", f"s_mov_b32 s{S_K+2}, s{S_V+2}"]] + kdma(0, "k0") + kdma(1, "k0")
            if k == 8: after = after + kdma(2, "k2")
            if k == 9: tags = []
            if k == VPUB and part == 1: tags.append("st"); after = [lambda: publish(4, 1)] + after
            if k == 9 and part == 1 and EARLYV: after = after + [lambda: poll_issue(5)]
            if part == 1: after = [[] for _ in range(int(OPT.get('qstag', 0)))] + after
            after = [lambda k=k: sp.mark(f"q{k}")] + after
            S.barrier_after_stage(k, tags, after, pre)
        rl.sort(key=lambda r: (r[4], r[0]))
        for r in rl: S.read(r[1], r[2], r[3], r[4], r[0])
        npre = 10
        for r in rl[:npre]: a(r[2])
        a(f"v_add_u32 v{vST}, {4096 >> part}, v{vL16}")
        a(f"v_mov_b32 v{vZERO}, 0")
        a(f"v_and_b32 v{vFL}, 31, v0")
        a(f"v_lshlrev_b32 v{vFL}, 2, v{vFL}")
        for z in list(range(4, 16)) + list(range(4)):
            for e in range(4):
                a(f"v_cvt_pk_bf16_f32 v{PK(z)+e}, v{ACC+8*z+2*e}, v{ACC+8*z+2*e+1}")
        SC = " " + OPT.get('stsc', 'sc1').replace('_', ' ')
        st0, stp = (2, int(OPT.get('stp', 5))) if part == 0 else (int(OPT.get('vst', 84)), int(OPT.get('stpv', 8)))
        for z in range(16 if 'nost' not in OPT else 1):
            j, c = z >> 2, z & 3
            S.filler(st0 + stp * z, 1, [f"s_add_u32 s3, s{sOB}, {j*8192}",
                     (f"buffer_store_dwordx4 {vr(PK(z),4)}, v{vST if c >> 1 else vL16}, {S4(S_WS)}, s3 offen offset:{(c&1)*1024}{SC}", "st")])
        S.run([0], preissued=npre)
        endwait.append(vm.wait("k0"))
        if part == 0: a("s_branch M_KVD")
    a.label("M_KVD")
    sp.mark("q")
    vKA, vVA, vD0, vQ2, vNINF, vTA, vX0, T = 2, 3, 4, 5, 8, 9, 10, 16
    FK, FV, P, SS, O, Q, NEGM, ONES, LS = 28, 60, [92, 100], [108, 124], 140, 204, 236, 244, 248
    BIAS = 12.0
    a(f"s_mov_b32 s{sT}, {f32hex(1.4426950408889634 * 128 ** -0.5)}")
    a(f"s_lshr_b32 s{sT2}, s{sW}, 1")
    a(f"s_lshl_b32 s{sT2}, s{sT2}, 14")
    a(f"s_and_b32 s3, s{sW}, 1")
    a("s_lshl_b32 s3, s3, 11")
    a(f"s_add_u32 s{sT2}, s{sT2}, s3")
    a(f"s_add_u32 s{sT2}, s{sT2}, 98304")
    a(f"v_add_u32 v6, s{sT2}, v{vL16}")
    a(f"s_lshl_b32 s{sT2}, s{sG}, 15")
    a(f"s_lshl_b32 s3, s{sRB}, 12")
    a(f"s_add_u32 s{sT2}, s{sT2}, s3")
    a(f"s_add_u32 s{sT2}, s{sT2}, 98304")
    a(f"v_add_u32 v{vQ2}, s{sT2}, v{vL16}")
    a(f"s_lshl_b32 s{sWO}, s{sG}, 13")
    if SHARE: a(f"v_mov_b32 v{vKA}, v{vL16}")
    else: a(f"v_add_u32 v{vKA}, s{sWO}, v{vL16}")
    a(f"v_add_u32 v{vVA}, 65536, v{vKA}")
    for f in range(8):
        for e in range(4):
            r = QA + 8 * f + 2 * e
            a(f"v_mul_f32 v{r}, s{sT}, v{r}")
            a(f"v_mul_f32 v{r+1}, s{sT}, v{r+1}")
            a(f"v_cvt_pk_bf16_f32 v{Q+4*f+e}, v{r}, v{r+1}")
        a(f"ds_write_b128 v6, {vr(Q+4*f,4)} offset:{(f>>1)*4096+(f&1)*1024}")
    a("v_and_b32 v7, 15, v0")
    a("v_lshrrev_b32 v8, 4, v0")
    a(f"s_lshl_b32 s{sT}, s{sRB}, 4")
    a(f"v_add_u32 v{vD0}, s{sT}, v7")
    a("v_lshlrev_b32 v8, 2, v8")
    a(f"v_sub_u32 v{vD0}, v{vD0}, v8")
    a(f"v_mov_b32 v{vNINF}, 0xff800000")
    for r in range(8): a(f"v_mov_b32 v{NEGM+r}, 0")
    for r in range(4): a(f"v_mov_b32 v{ONES+r}, 0x3f803f80")
    poll(5, 0x101, 0)
    a(f"s_waitcnt vmcnt({min(endwait)}) lgkmcnt(0)")
    a("s_barrier")
    sp.mark("qx")
    def kread(e, t): return f"ds_read_b128 {vr(FK+4*t,4)}, v{vKA} offset:{(e&3)*16384+t*1024}"
    def vread(e, i): return f"ds_read_b128 {vr(FV+4*i,4)}, v{vVA} offset:{(e&3)*16384+i*1024}"
    def qread(extra): return [f"ds_read_b128 {vr(Q+4*f,4)}, v{vQ2} offset:{extra+(f>>2)*16384+(f&3)*1024}" for f in range(8)]
    for x in qread(0): a(x)
    for i in range(8): a(kread(0, i))
    a(f"s_mov_b32 s{sS}, 0")
    a("s_waitcnt lgkmcnt(0)")

    handlers = []
    def xreduce(op, x, tmp):
        a(f"v_mov_b32 v{tmp}, v{x}")
        a(f"v_permlane16_swap_b32 v{x}, v{tmp}")
        a(f"{op} v{x}, v{x}, v{tmp}")
        a(f"v_mov_b32 v{tmp}, v{x}")
        a(f"v_permlane32_swap_b32 v{x}, v{tmp}")
        a(f"{op} v{x}, v{x}, v{tmp}")
    def rowmax(dst, tmp, src):
        a(f"v_max3_f32 v{dst}, v{src}, v{src+1}, v{src+2}")
        a(f"v_max3_f32 v{dst}, v{dst}, v{src+3}, v{src+4}")
        a(f"v_max3_f32 v{dst}, v{dst}, v{src+5}, v{src+6}")
        a(f"v_max_f32 v{dst}, v{dst}, v{src+7}")
        xreduce("v_max_f32", dst, tmp)
    def sm_ops(Sc, Pw, hi_only=False):
        f = []
        def post(q):
            f.append((1, [f"v_cvt_pk_bf16_f32 v{Pw+q//2}, v{T+q%8}, v{T+(q+1)%8}"]))
            k = q // 2
            if hi_only:
                if k == 7:
                    f.append((1, [f"v_or3_b32 v{vTA}, v{Pw+4}, v{Pw+5}, v{Pw+6}"]))
                    f.append((1, [f"v_bitop3_b32 v{vTA}, v{vTA}, v{Pw+7}, s{sTHR} bitop3:0xa8"]))
                return
            if k == 3: f.append((1, [f"v_or3_b32 v{vTA}, v{Pw}, v{Pw+1}, v{Pw+2}"]))
            if k == 5: f.append((1, [f"v_or3_b32 v{vTA}, v{vTA}, v{Pw+3}, v{Pw+4}"]))
            if k == 7:
                f.append((1, [f"v_or3_b32 v{vTA}, v{vTA}, v{Pw+5}, v{Pw+6}"]))
                f.append((1, [f"v_bitop3_b32 v{vTA}, v{vTA}, v{Pw+7}, s{sTHR} bitop3:0xa8"]))
        r0 = 8 if hi_only else 0
        for r in range(r0, 16):
            f.append((2, [f"v_exp_f32 v{T+r%8}, v{Sc+r}"]))
            if r % 2 == 1 and r >= r0 + 3: post(r - 3)
        post(14)
        return f
    def store_ctx(qis, sct, obase):
        n = 0
        for qi in qis:
            for u in range(4):
                d = T + (n % 2) * 4
                n += 1
                src = obase(qi) + 8 * u
                for e in range(4): a(f"v_cvt_pk_bf16_f32 v{d+e}, v{src+2*e}, v{src+2*e+1}")
                if u == 0 and qi == 1 and len(qis) == 2: a(f"s_add_u32 s{sct}, s{sct}, {4*CS}")
                a(f"buffer_store_dwordx4 {vr(d,4)}, v{vL16}, {S4(S_WS)}, s{sct} offen offset:{u*1024}{' sc1' if FUSE else ''}")

    sX = sROW
    def slot(j, name, qk=True, sm=True, pv=True, nxt=True, dma=True, last=False, prebar=None, fresh=False, fast=None, hi=""):
        par = j & 1
        Sc, Sn, Pw, Pr = SS[1 - par], SS[par], P[1 - par], P[par]
        if fast:
            a.label(name + "_GO")
            handlers.append(("entry", name))
            handlers.append(("ev", name, Sc))
        else:
            a.label(name)
            if sm or pv:
                a(f"s_bitcmp1_b64 s[{sEV}:{sEV+1}], s{sS}")
                a(f"s_cbranch_scc1 {name}_EV")
                a.label(name + "_GO")
                handlers.append(("ev", name, Sc))
        ms = []
        if qk:
            for t in range(8):
                kt, u = t >> 2, t & 3
                mm = []
                for qi in range(1 if "q" in hi else 0, 2):
                    d = vr(Sn + 8 * qi + 4 * kt, 4)
                    mm.append(f"{MFMA16} {d}, {vr(FK+4*t,4)}, {vr(Q+16*qi+4*u,4)}, {vr(NEGM+4*qi,4) if u == 0 else d}")
                ms.append(mm)
        if pv:
            for i in range(8):
                mm = []
                for qi in range(1 if "p" in hi else 0, 2):
                    o = vr(O + 32 * qi + 4 * i, 4)
                    mm.append(f"{MFMA16} {o}, {vr(FV+4*i,4)}, {vr(Pr+4*qi,4)}, {'0' if fresh else o}")
                if i == 3:
                    for qi in range(1 if "p" in hi else 0, 2):
                        mm.append(f"{MFMA16} {vr(LS+4*qi,4)}, {vr(ONES,4)}, {vr(Pr+4*qi,4)}, {'0' if fresh else vr(LS+4*qi,4)}")
                ms.append(mm)
        n = len(ms)
        pre = [[] for _ in range(n)]; post = [[] for _ in range(n)]
        if qk and pv:
            for i in range(8): post[i // 2].append(vread(j - 2, i))
            K0 = int(OPT.get('k0', 4))
            if nxt:
                for t in range(8): post[K0 + t].append(kread(j + 1, t))
            pre[8].append(f"s_waitcnt lgkmcnt({(8 - K0) if nxt else 0})")
        elif qk:
            if nxt:
                for t in range(8): post[t].append(kread(j + 1, t))
        else:
            for i in range(8): a(vread(j - 2, i))
            for i in range(0, 8, 2): pre[i].append(f"s_waitcnt lgkmcnt({6 - i})")
        if dma and not ('nodma' in OPT and fast):
            h0, h1 = sHIST[(j + 3) & 3], sHIST[(j + 2) & 3]
            dp = [int(x) for x in OPT.get('dp', '4,6,9,11').split(',')] if n == 16 else [1, 3, 5, 7]
            pre[dp[0]].insert(0, f"s_add_u32 m0, s{sM0V}, {(j & 3) * 16384}")
            post[dp[0]].append(f"buffer_load_dwordx4 v{vL16}, {S4(S_V)}, s{sHIST[j&3]} offen sc1 lds")
            post[dp[1]].append(f"buffer_load_dwordx4 v{vL16}, {S4(S_V)}, s{sHIST[j&3]} offen offset:1024 sc1 lds")
            pre[dp[2]] = [f"s_add_u32 m0, s{sM0K}, {((j + 3) & 3) * 16384}", f"s_add_u32 s{h0}, s{h1}, s{sBASE}"] + pre[dp[2]]
            post[dp[2]].append(f"buffer_load_dwordx4 v{vL16}, {S4(S_K)}, s{h0} offen sc1 lds")
            post[dp[3]].append(f"buffer_load_dwordx4 v{vL16}, {S4(S_K)}, s{h0} offen offset:1024 sc1 lds")
        if fast: post[12] += [f"s_add_u32 s{sS}, s{sS}, 1", f"s_bitcmp1_b64 s[{sEV}:{sEV+1}], s{sS}", f"s_cselect_b32 s{sX}, 1, 0"]
        groups = []
        for m in range(n):
            for k, x in enumerate(ms[m]):
                groups.append((pre[m] if k == 0 else [], x, post[m] if k == len(ms[m]) - 1 else []))
        fl = sm_ops(Sc, Pw, "s" in hi) if (sm and 'nosm' not in OPT) else []
        if fast: fl.append((1, [f"v_cmp_ne_u32 vcc, s{sX}, v{vTA}"]))
        elif sm: fl.append((1, [f"v_cmp_ne_u32 vcc, 0, v{vTA}"]))
        interleave(a, groups, fl, max(len(groups) - 3, 1))
        if fast:
            if fast == "AT_L2":
                a("s_cbranch_vccz AT_TOP")
                a(f"s_branch {name}_SP")
            else:
                a(f"s_cbranch_vccnz {name}_SP")
                a("s_waitcnt vmcnt(4) lgkmcnt(0)")
                if 'nobar' not in OPT: a("s_barrier")
            handlers.append(("special", name, fast))
            handlers.append(("slow", name, Sc, Sn, Pw))
            return
        if sm:
            a(f"s_cbranch_vccnz {name}_SLOW")
            a.label(name + "_RET")
            handlers.append(("slow", name, Sc, Sn, Pw))
        if not last:
            a(f"s_add_u32 s{sS}, s{sS}, 1")
            if prebar: prebar()
            a(f"s_waitcnt vmcnt({4 if dma else 0}) lgkmcnt(0)")
            a("s_barrier")

    slot(0, "AT_S0", sm=False, pv=False)
    sp.mark("s0")
    slot(1, "AT_S1", pv=False)
    sp.mark("s1")
    poll_issue(2)
    slot(2, "AT_S2", prebar=lambda: poll(2, 0xffff, 4), fresh=True)
    sp.mark("s2")
    a("s_branch AT_L3")
    a(".p2align 6")
    a.label("AT_TOP")
    a("s_waitcnt vmcnt(4) lgkmcnt(0)")
    if 'nobar' not in OPT: a("s_barrier")
    slot(2, "AT_L2", fast="AT_L3"); slot(3, "AT_L3", fast="AT_L0"); slot(0, "AT_L0", fast="AT_L1"); slot(1, "AT_L1", fast="AT_L2")
    a.label("AT_P33")
    sp.mark("s32")
    if FUSE: poll_issue(6, True)
    HI = 'nohi' not in OPT
    slot(1, "AT_S33", nxt=False, prebar=(lambda: poll(6, -1, 4, True)) if FUSE else None, hi="q" if HI else "")
    slot(2, "AT_S34", qk=False, nxt=False, dma=False, hi="s" if HI else "")
    if FUSE and 'lateconv' not in OPT:
        for x in tsrd(PT + 6, 2621440): a(x)
        gen_tail.conv_dma(a, {k: v for k, v in globals().items() if not k.startswith("__") and k != "gen_tail"}, sW, S_WS, S_T, sT, sT2, 3, sCO, vL16, 6, 7,
                          98304, "AT_S35", " sc1")
    slot(3, "AT_S35", qk=False, sm=False, nxt=False, dma=False, last=True, hi="p" if HI else "")
    sp.mark("s35")
    X0, X1, X2, X3, X4, X5 = range(vX0, vX0 + 6)
    MA0, MA1, MA2, MA3, MT = FK, FK + 1, FK + 2, FK + 3, FK + 4
    a(f"s_mul_i32 s{sT}, s{sW}, {8192+512}")
    a(f"s_xor_b32 s{sT2}, s{sW}, 4")
    a(f"s_mul_i32 s{sT2}, s{sT2}, {8192+512}")
    a(f"v_add_u32 v{MA0}, s{sT}, v{vL16}")
    a(f"v_add_u32 v{MA1}, s{sT2}, v{vL16}")
    a(f"v_lshlrev_b32 v{MA2}, 3, v0")
    a(f"v_add_u32 v{MA3}, s{sT2}, v{MA2}")
    a(f"v_add_u32 v{MA2}, s{sT}, v{MA2}")
    a(f"s_cmp_eq_u32 s{sG}, 0")
    a("s_cbranch_scc1 AT_MA")
    for gsel in (1, 0):
        if gsel == 0: a.label("AT_MA")
        own, snd = O + 32 * gsel, O + 32 * (1 - gsel)
        a(f"v_mov_b32 v{X4}, v{NEGM+4*(1-gsel)}")
        a(f"v_mov_b32 v{X5}, v{LS+4*(1-gsel)}")
        a(f"ds_write_b64 v{MA2}, v[{X4}:{X5}] offset:8192")
        for q in range(8): a(f"ds_write_b128 v{MA0}, {vr(snd+4*q,4)} offset:{1024*q}")
        if gsel: a(f"s_add_u32 s{sCT2}, s{sCT2}, {4*CS}")
        a("s_waitcnt lgkmcnt(0)")
        a("s_barrier")
        a(f"ds_read_b64 v[{X2}:{X3}], v{MA3} offset:8192")
        for q in range(8): a(f"ds_read_b128 {vr(snd+4*q,4)}, v{MA1} offset:{1024*q}")
        a("s_waitcnt lgkmcnt(8)")
        a(f"v_min_f32 v{vTA}, v{NEGM+4*gsel}, v{X2}")
        a(f"v_sub_f32 v{X0}, v{vTA}, v{NEGM+4*gsel}")
        a(f"v_sub_f32 v{X2}, v{vTA}, v{X2}")
        a(f"v_exp_f32 v{X0}, v{X0}")
        a(f"v_exp_f32 v{X2}, v{X2}")
        a(f"v_mul_f32 v{vTA}, v{LS+4*gsel}, v{X0}")
        a(f"v_fmac_f32 v{vTA}, v{X3}, v{X2}")
        a(f"v_rcp_f32 v{vTA}, v{vTA}")
        a(f"v_mul_f32 v{X0}, v{X0}, v{vTA}")
        a(f"v_mul_f32 v{X2}, v{X2}, v{vTA}")
        for u in range(4):
            for r in range(8 * u, 8 * u + 8): a(f"v_mul_f32 v{own+r}, v{own+r}, v{X0}")
            a(f"s_waitcnt lgkmcnt({6-2*u})")
            for r in range(8 * u, 8 * u + 8): a(f"v_fmac_f32 v{own+r}, v{snd+r}, v{X2}")
            for e in range(4): a(f"v_cvt_pk_bf16_f32 v{MT+4*u+e}, v{own+8*u+2*e}, v{own+8*u+2*e+1}")
            a(f"buffer_store_dwordx4 {vr(MT+4*u,4)}, v{vL16}, {S4(S_WS)}, s{sCT2} offen offset:{u*1024}{' sc1' if FUSE else ''}")
        if gsel: a("s_branch AT_MB")
    a.label("AT_MB")
    if FUSE:
        sp.mark("att")
        gen_tail.gen_tail(a, {k: v for k, v in globals().items() if not k.startswith("__") and k != "gen_tail"}, dict(sW=sW, sH=sH, sP=sP, sp=sp))
    elif STAMP:
        a("s_waitcnt vmcnt(0)")
        sp.mark("end")
        a("s_waitcnt lgkmcnt(0)")
        sp.flush(100, sW, 0, slot=0); sp.flush(100, sW, 4, slot=1)
    a.label("M_END")
    a("s_endpgm")
    for hd in handlers:
        if hd[0] == "entry":
            name = hd[1]
            a.label(name)
            a(f"s_bitcmp1_b64 s[{sEV}:{sEV+1}], s{sS}")
            a(f"s_cbranch_scc0 {name}_GO")
        elif hd[0] == "special":
            _, name, nx = hd
            a.label(name + "_SP")
            a(f"v_cmp_ne_u32 vcc, 0, v{vTA}")
            a(f"s_cbranch_vccnz {name}_SLOW")
            a.label(name + "_RET")
            a("s_waitcnt vmcnt(4) lgkmcnt(0)")
            if 'nobar' not in OPT: a("s_barrier")
            if nx == "AT_L1":
                a(f"s_cmp_eq_u32 s{sS}, 33")
                a("s_cbranch_scc1 AT_P33")
            a(f"s_branch {nx}")
        elif hd[0] == "ev":
            _, name, Sc = hd
            a.label(name + "_EV")
            a(f"s_cmp_eq_u32 s{sS}, s{sWRAP}")
            a(f"s_cselect_b32 s{sBASE}, 16384, s{sBASE}")
            if SHARE:
                a(f"s_cselect_b32 s{S_K+2}, {16*MB}, s{S_K+2}")
                a(f"s_sub_u32 s{sT}, s{sS}, s{sWRAP}")
                a(f"s_cmp_eq_u32 s{sT}, 3")
                a(f"s_cselect_b32 s{S_V+2}, {16*MB}, s{S_V+2}")
                a(f"s_cmp_eq_u32 s{sT}, 2")
                a(f"s_cselect_b32 s{sT2}, s{sWO}, 0")
                a(f"v_add_u32 v{vKA}, s{sT2}, v{vKA}")
                a(f"s_cmp_eq_u32 s{sT}, 5")
                a(f"s_cselect_b32 s{sT2}, s{sWO}, 0")
                a(f"v_add_u32 v{vVA}, s{sT2}, v{vVA}")
            a(f"s_cmp_eq_u32 s{sS}, 31")
            a(f"s_cselect_b32 s{S_K+2}, 0, s{S_K+2}")
            a(f"s_sub_u32 s{sT}, s{sS}, s{sN1}")
            a(f"s_cmp_lg_u32 s{sT}, 2")
            a(f"s_cbranch_scc1 {name}_E1")
            a(f"v_rcp_f32 v{vX0}, v{LS}")
            a(f"v_rcp_f32 v{vX0+1}, v{LS+4}")
            for r in range(8): a(f"v_mov_b32 v{LS+r}, 0")
            for r in range(64): a(f"v_mul_f32 v{O+r}, v{O+r}, v{vX0+(r>>5)}")
            store_ctx((0, 1), sCT1, lambda qi: O + 32 * qi)
            for r in range(64): a(f"v_mov_b32 v{O+r}, 0")
            a.label(name + "_E1")
            if FUSE:
                only(0, ["s_mov_b64 exec, 1", f"v_mov_b32 v{vX0}, 1", f"s_lshl_b32 s3, s{sP}, 10", f"s_add_u32 s3, s3, s{sH}", "s_lshl_b32 s3, s3, 2",
                         f"s_add_u32 s3, s3, {WS_FL3}", f"buffer_store_dword v{vX0}, v{vZERO}, {S4(S_WS)}, s3 offen sc1", "s_mov_b64 exec, -1"],
                     f"s_cmp_lg_u32 s{sT}, 3")
            a(f"s_cmp_lg_u32 s{sT}, 0")
            a(f"s_cbranch_scc1 {name}_E2")
            for x in qread(32768): a(x)
            for r in range(8): a(f"v_mov_b32 v{NEGM+r}, 0")
            a("s_waitcnt lgkmcnt(0)")
            a.label(name + "_E2")
            a(f"s_sub_u32 s{sT2}, s{sS}, s{sMST}")
            a(f"s_sub_u32 s{sT2}, s{sT2}, 1")
            a(f"s_cmp_lt_u32 s{sT2}, 4")
            a(f"s_cbranch_scc1 {name}_EM")
            a(f"s_cmp_lt_u32 s{sS}, 33")
            a(f"s_cbranch_scc1 {name}_E3")
            a(f"s_sub_u32 s{sT2}, s{sS}, 33")
            a(f"s_lshl_b32 s{sT2}, s{sT2}, 1")
            a(f"s_add_u32 s{sT2}, s{sT2}, s{sG}")
            a.label(name + "_EM")
            a(f"s_lshl_b32 s{sT2}, s{sT2}, 5")
            a(f"v_subrev_u32 v{vX0}, s{sT2}, v{vD0}")
            a(f"v_add_u32 v{vX0+1}, 64, v{vX0}")
            for qi in range(2):
                for kt in range(2):
                    for e in range(4):
                        a(f"v_cmp_le_i32 s[{sMK+2*e}:{sMK+2*e+1}], {16*kt+e}, v{vX0+qi}")
                    for e in range(4):
                        r = Sc + 8 * qi + 4 * kt + e
                        a(f"v_cndmask_b32 v{r}, v{vNINF}, v{r}, s[{sMK+2*e}:{sMK+2*e+1}]")
            a.label(name + "_E3")
            a(f"s_cmp_eq_u32 s{sT}, 1")
            a(f"s_cbranch_scc1 {name}_E4")
            a(f"s_cmp_lg_u32 s{sS}, 1")
            a(f"s_cbranch_scc1 {name}_GO")
            a.label(name + "_E4")
            for qi in range(2):
                rowmax(vX0 + qi, vX0 + 2 + qi, Sc + 8 * qi)
                a(f"v_add_f32 v{vX0+qi}, {f32hex(BIAS)}, v{vX0+qi}")
            for r in range(8): a(f"v_sub_f32 v{NEGM+r}, v{NEGM+r}, v{vX0+(r>>2)}")
            for r in range(16): a(f"v_sub_f32 v{Sc+r}, v{Sc+r}, v{vX0+(r>>3)}")
            a(f"s_branch {name}_GO")
        else:
            _, name, Sc, Sn, Pw = hd
            a.label(name + "_SLOW")
            for qi in range(2):
                rowmax(vX0 + qi, vX0 + 2 + qi, Sc + 8 * qi)
                a(f"v_add_f32 v{vX0+qi}, {f32hex(BIAS)}, v{vX0+qi}")
                a(f"v_max_f32 v{vX0+qi}, 0, v{vX0+qi}")
                a(f"v_exp_f32 v{vX0+2+qi}, -v{vX0+qi}")
            for r in range(8): a(f"v_sub_f32 v{NEGM+r}, v{NEGM+r}, v{vX0+(r>>2)}")
            for r in range(16): a(f"v_sub_f32 v{Sn+r}, v{Sn+r}, v{vX0+(r>>3)}")
            for r in range(16): a(f"v_sub_f32 v{Sc+r}, v{Sc+r}, v{vX0+(r>>3)}")
            for r in range(64): a(f"v_mul_f32 v{O+r}, v{O+r}, v{vX0+2+(r>>5)}")
            for r in range(8): a(f"v_mul_f32 v{LS+r}, v{LS+r}, v{vX0+2+(r>>2)}")
            for c, ops in sm_ops(Sc, Pw):
                for x in ops: a(x)
            a(f"s_branch {name}_RET")
    a.label("M_LAST")
    a("s_endpgm")
    return dict(name="gated_mix__ssm_conv_h3__compressed_kv_cla__prompt_kernel" if FUSE else "main_kernel", grid=256, block=512, lds=163840, vgpr=256)

import gen as G1
G1.STAMP = False
KERNELS = {"main": gen_main, "conv": G1.gen_conv, "oproj": G1.gen_oproj, "tail": lambda a: gen_tail.gen_tail(a, {k: v for k, v in globals().items() if not k.startswith("__") and k != "gen_tail"})}

def build(names, path, verbose=False):
    hdr = open("gated_mix__ssm_conv_h3__compressed_kv_cla__prompt.s.ref").read().split("\n")
    hdr = [l for l in hdr if l.startswith(";") and "@launch" not in l and "Override" not in l and "grid=ceil" not in l]
    codes, descs, launches = [], [], []
    for n in names:
        a = Asm()
        info = KERNELS[n](a)
        k = fix_hazards(a.lines, verbose)
        print(f"{n}: {len(a.lines)} lines, {k} nops inserted")
        c, d = kernel_text(info["name"], a.lines, info["vgpr"], extra="  .amdhsa_float_denorm_mode_32 3\n")
        codes.append(c); descs.append(d)
        kn = "" if "plain" in OPT else f"kernel={info['name']} "
        launches.append(f"; @launch {kn}grid=({info['grid']},1,1) block=({info['block']},1,1) lds={info['lds']}")
    doc = """;
; One launch, 256 workgroups (one per CU) x 8 waves.  Workgroup b = (head h, pair p).  Phases:
;  1. K/V up-projection tile (256 keys x K,V of head h), MFMA 16x16x32, operands staged by LDS-DMA;
;     side jobs in its shadow: gate, kv = shift_conv(k) * v transposed, w_o in fragment order.
;  2. Q projection for q tiles p and 15-p while the K/V fragments are written (write-through) and published.
;  3. causal flash attention (two 4-wave groups, running max with a run-time overflow test that falls back
;     to the true tile max), row sums through an all-ones MFMA, merge of the two partial results.
;  4. output projection + gated mix (waves 0-3), long causal conv as Toeplitz MFMA (waves 4-6).
; Hand-offs between workgroups: sc1 stores, vmcnt wait + barrier, flag words in d_ws that the p == 0 workgroup
; of each head clears first (announced through d_debug); consumers poll and load with sc1.
; Generated by a hand-written Python generator.""".split("\n")
    txt = "\n".join(hdr + doc + launches) + '\n.amdgcn_target "amdgcn-amd-amdhsa--gfx950"\n.text\n' + "\n".join(codes) + \
          '\n.section .rodata,"a"\n' + "\n".join(descs)
    if "CODE_SPAN" in txt: txt = txt.replace("CODE_SPAN", str(int(OPT.get("ipf", 77000))))
    open(path, "w").write(txt)

if __name__ == "__main__":
    names = sys.argv[2].split(",") if len(sys.argv) > 2 else list(KERNELS)
    build(names, sys.argv[1] if len(sys.argv) > 1 else "k2.s", verbose="-v" in sys.argv)
```

```python
import sys, struct
from asmlib import *
from sched import *
import gen_tail

MB = 1 << 20
WS_KF, WS_VF, WS_CTX, WS_WOT, WS_KVT, WS_Y2T, WS_G = 0, 16 * MB, 32 * MB, 49 * MB, 56 * MB, 60 * MB, 63 * MB
KA = dict(A_q=0, A_k=8, A_v=16, shift=24, ssm_k=32, ssm_D=40, B_x=48, c_kv=56, w_q=64, w_uk=72, w_uv=80, w_o=88,
          gate=96, out=104, dbg=112, ws=120)
MFMA32 = "v_mfma_f32_32x32x16_bf16"
MFMA16 = "v_mfma_f32_16x16x32_bf16"
STAMP = "-stamp" in sys.argv
OPT = {x[2:].split("=")[0]: (x.split("=")[1] if "=" in x else "1") for x in sys.argv if x.startswith("--")}
WS_FLG = 63 * MB + 524288
WS_FL2 = 63 * MB + 655360
WS_FL3 = WS_FL2 + 131072
FUSE = 'nofuse' not in OPT
CS = 131072 + int(OPT.get('cspad', 1024))
RS = 4096 + int(OPT.get('rspad', 128))
NT1 = ' nt' if 'nt1' in OPT else ''
NT2 = ' nt' if 'nt2' in OPT else ''
OOB = "0x80000000"
def f32hex(x): return "0x%08x" % struct.unpack("<I", struct.pack("<f", x))[0]

def srd(a, d, lo, hi, size, add=0):
    if add:
        a(f"s_add_u32 s{d}, s{lo}, {add}")
        a(f"s_addc_u32 s{d+1}, s{hi}, 0")
    else:
        a(f"s_mov_b32 s{d}, s{lo}")
        a(f"s_mov_b32 s{d+1}, s{hi}")
    a(f"s_mov_b32 s{d+2}, {size}")
    a(f"s_mov_b32 s{d+3}, 0x00020000")
def S4(d): return f"s[{d}:{d+3}]"

class Stamps:
    def __init__(self, a, base=70, region=0):
        self.a, self.base, self.n, self.region = a, base, 0, region
    off = False
    def mark(self, name=""):
        if not STAMP or self.off: return
        if name not in OPT.get("marks", "start,kv,q,s1,end,t0,t1,t2").split(","): return
        assert self.base + 2 * self.n + 3 <= 101
        self.a(f"s_memtime s[{self.base+2*self.n}:{self.base+2*self.n+1}]")
        self.a(f"s_memrealtime s[{self.base+2*self.n+2}:{self.base+2*self.n+3}]")
        self.n += 2
    def flush(self, wg, sW, wave, slot=0):
        if not STAMP: return
        a = self.a
        lab = a.uid("STK")
        a(f"s_cmp_lg_u32 s{sW}, {wave}")
        a(f"s_cbranch_scc1 {lab}")
        if 'dbgstamp' in OPT:
            if slot:
                a.label(lab); return
            a(f"s_cmp_lg_u32 s2, {OPT['dbgstamp']}")
            a(f"s_cbranch_scc1 {lab}")
            a(f"s_load_dwordx2 s[60:61], s[0:1], {KA['dbg']}")
            a("s_waitcnt lgkmcnt(0)")
            a("s_mov_b32 s62, 64")
            a("s_mov_b32 s63, 0x00020000")
            a("v_mov_b32 v1, 0")
            for i in range(self.n - 1, 1, -1): a(f"s_sub_u32 s{self.base+2*i}, s{self.base+2*i}, s{self.base+2*i-4}")
        else:
            a(f"s_load_dwordx2 s[60:61], s[0:1], {KA['ws']}")
            a("s_waitcnt lgkmcnt(0)")
            a(f"s_add_u32 s60, s60, {128*MB + self.region*65536 + slot*64}")
            a("s_addc_u32 s61, s61, 0")
            a("s_mov_b32 s62, 65536")
            a("s_mov_b32 s63, 0x00020000")
            a("s_lshl_b32 s3, s2, 7")
            a("v_mov_b32 v1, s3")
        for i in range(self.n):
            a(f"v_mov_b32 v2, s{self.base+2*i}")
            a(f"buffer_store_dword v2, v1, s[60:63], 0 offen offset:{4*i}")
        a("s_getreg_b32 s3, hwreg(HW_REG_XCC_ID)")
        a("v_mov_b32 v2, s3")
        a(f"buffer_store_dword v2, v1, s[60:63], 0 offen offset:60")
        a("s_waitcnt vmcnt(0)")
        a.label(lab)

def rnd_pair(d, lo, hi, olo, ohi):
    return [f"v_cvt_pk_bf16_f32 v{d}, v{lo}, v{hi}", f"v_lshlrev_b32 v{olo}, 16, v{d}", f"v_and_b32 v{ohi}, 0xffff0000, v{d}"]

def interleave(a, mfmas, fillers, ngaps):
    tot = sum(c for c, _ in fillers)
    fi, acc = 0, 0.0
    for g, (pre, m, post) in enumerate(mfmas):
        for x in pre: a(x)
        a(m)
        for x in post: a(x)
        lim = tot * min(1.0, (g + 1) / ngaps) if ngaps else tot
        while fi < len(fillers) and acc + fillers[fi][0] * 0.5 <= lim:
            acc += fillers[fi][0]
            for x in fillers[fi][1]: a(x)
            fi += 1
    while fi < len(fillers):
        for x in fillers[fi][1]: a(x)
        fi += 1

def gen_main(a):
    S_C, S_W, S_WS, S_V, S_X, S_WQ, S_DBG = 4, 8, 12, 16, 20, 24, 28
    (sW, sH, sP, sG, sRB, sT, sT2, sCO, sWO, sM0C, sM0W, sOB, sROW, sXO, sQWO, sN1, sS, sMST, sTHR, sM0K, sM0V,
     sBASE, sCT1, sCT2, sWRAP) = range(32, 57)
    sHIST = [57, 58, 59, 60]
    sEV = 62
    PT = 64
    S_T = 76
    sMK = 4
    S_K = S_X
    sNB = 61
    SHARE = 'noshare' not in OPT
    vL16, vCD, vWD, vAC, vAW, vXD, vQW, vWOT, vKVT = 1, 2, 6, 10, 12, 16, 20, 22, 23
    WFR, CFR, ACC = [32, 48], 64, 128
    sp = Stamps(a, base=80)
    vm = VM()
    a("s_cmp_ge_u32 s2, 256")
    a("s_cbranch_scc1 M_END")
    sp.mark("start")
    a(f"s_load_dwordx2 s[44:45], s[0:1], {KA['c_kv']}")
    a(f"s_load_dwordx4 s[48:51], s[0:1], {KA['w_uk']}")
    a("v_lshrrev_b32 v1, 6, v0")
    a("v_mov_b32 v31, v0")
    a("v_and_b32 v0, 63, v0")
    a(f"v_readfirstlane_b32 s{sW}, v1")
    a(f"s_and_b32 s{sH}, s2, 7")
    a("s_lshr_b32 s3, s2, 6")
    a("s_lshl_b32 s3, s3, 3")
    a(f"s_add_u32 s{sH}, s{sH}, s3")
    a(f"s_bfe_u32 s{sP}, s2, 0x30003")
    a(f"s_lshr_b32 s{sG}, s{sW}, 2")
    a("v_lshrrev_b32 v24, 3, v0")
    a("v_and_b32 v25, 7, v0")
    a("v_lshrrev_b32 v26, 4, v0")
    a("v_xor_b32 v25, v25, v26")
    a("v_lshlrev_b32 v25, 4, v25")
    a("v_xor_b32 v27, 64, v25")
    a(f"v_lshl_add_u32 v{vCD}, v24, 10, v25")
    a(f"v_lshl_add_u32 v{vCD+1}, v24, 10, v27")
    a(f"v_add_u32 v{vCD+1}, {8192-1024}, v{vCD+1}")
    a(f"v_add_u32 v{vCD+2}, {2*(8192-1024)}, v{vCD}")
    a(f"v_add_u32 v{vCD+3}, {2*(8192-1024)}, v{vCD+1}")
    a("v_and_b32 v28, 15, v0")
    a("v_lshlrev_b32 v29, 1, v26")
    a("v_xor_b32 v28, v28, v29")
    a("v_lshlrev_b32 v28, 4, v28")
    a(f"v_lshl_add_u32 v{vWD}, v26, 13, v28")
    a(f"v_add_u32 v{vWD+1}, {4*8192-1024}, v{vWD}")
    a(f"v_xor_b32 v{vWD+2}, 128, v{vWD}")
    a(f"v_add_u32 v{vWD+2}, {2*(4*8192-1024)}, v{vWD+2}")
    a(f"v_add_u32 v{vWD+3}, {4*8192-1024}, v{vWD+2}")
    a(f"s_and_b32 s{sRB}, s{sW}, 3")
    a(f"s_lshl_b32 s{sCO}, s{sP}, 18")
    a(f"s_lshl_b32 s{sT}, s{sW}, 15")
    a(f"s_add_u32 s{sCO}, s{sCO}, s{sT}")
    a(f"s_lshl_b32 s{sWO}, s{sRB}, 17")
    a(f"s_lshl_b32 s{sT}, s{sH}, 8")
    a(f"s_add_u32 s{sWO}, s{sWO}, s{sT}")
    a(f"s_lshl_b32 s{sM0C}, s{sW}, 12")
    a(f"s_add_u32 s{sM0W}, s{sM0C}, 65536")
    a("s_waitcnt lgkmcnt(0)")
    srd(a, S_C, 44, 45, 2 * MB)
    a(f"s_cmp_eq_u32 s{sG}, 0")
    a(f"s_cselect_b32 s{S_W}, s48, s50")
    a(f"s_cselect_b32 s{S_W+1}, s49, s51")
    a(f"s_mov_b32 s{S_W+2}, {4*MB}")
    a(f"s_mov_b32 s{S_W+3}, 0x00020000")
    def kv_dma(st):
        buf = (st & 1) * 32768
        tg = ("kv", st)
        out = [[f"s_add_u32 m0, s{sM0C}, {buf}", f"s_add_u32 s{sT}, s{sCO}, {st*128}",
                (f"buffer_load_dwordx4 v{vCD}, {S4(S_C)}, s{sT} offen lds", tg)]]
        for i in range(1, 4): out.append([(f"buffer_load_dwordx4 v{vCD+i}, {S4(S_C)}, s{sT} offen offset:{i*1024} lds", tg)])
        out.append([f"s_add_u32 m0, s{sM0W}, {buf}", f"s_add_u32 s{sT}, s{sWO}, {st*64*8192}",
                    (f"buffer_load_dwordx4 v{vWD}, {S4(S_W)}, s{sT} offen lds", tg)])
        for i in range(1, 4): out.append([(f"buffer_load_dwordx4 v{vWD+i}, {S4(S_W)}, s{sT} offen offset:{i*1024} lds", tg)])
        return out
    def emit(items):
        for it in items:
            for x in it:
                if isinstance(x, tuple): a(x[0]); vm.add(x[1])
                else: a(x)
    emit(kv_dma(0))
    a(f"s_load_dwordx2 s[44:45], s[0:1], {KA['A_q']}")
    a(f"s_load_dwordx2 s[46:47], s[0:1], {KA['w_q']}")
    a(f"s_load_dwordx4 s[48:51], s[0:1], {KA['dbg']}")
    a(f"s_load_dwordx4 s[{PT}:{PT+3}], s[0:1], {KA['A_k']}")
    a(f"s_load_dwordx4 s[{PT+4}:{PT+7}], s[0:1], {KA['shift']}")
    a(f"s_load_dwordx4 s[{PT+8}:{PT+11}], s[0:1], {KA['w_o']}")
    a(f"v_lshlrev_b32 v{vL16}, 4, v0")
    a("v_mul_u32_u24 v28, 1280, v24")
    a(f"v_add_u32 v{vXD}, v28, v25")
    a(f"v_add_u32 v{vXD+1}, v28, v27")
    a(f"v_add_u32 v{vXD+1}, {8*1280-1024}, v{vXD+1}")
    a(f"v_add_u32 v{vXD+2}, {2*(8*1280-1024)}, v{vXD}")
    a(f"v_add_u32 v{vXD+3}, {2*(8*1280-1024)}, v{vXD+1}")
    a(f"s_and_b32 s3, s{sW}, 1")
    a("s_lshl_b32 s3, s3, 7")
    a(f"v_xor_b32 v{vQW}, s3, v{vWD}")
    a(f"v_add_u32 v{vQW+1}, {4*8192-1024}, v{vQW}")
    emit(kv_dma(1))
    vPF, vPFW, vSC = 116, 115, 117
    if 'nopf' not in OPT:
        a(f"v_lshlrev_b32 v{vPF}, 7, v0")
        a("v_lshrrev_b32 v24, 1, v0")
        a("v_and_b32 v25, 1, v0")
        a("v_lshlrev_b32 v25, 7, v25")
        a(f"v_lshl_add_u32 v{vPFW}, v24, 13, v25")
        a("s_lshl_b32 s3, s2, 13")
        a(f"s_lshl_b32 s{sT}, s{sW}, 10")
        a(f"s_add_u32 s3, s3, s{sT}")
        a("s_mov_b64 exec, 0xff")
        emit([[(f"buffer_load_dword v{vSC}, v{vPF}, {S4(S_C)}, s3 offen sc1", "pf")]])
        if 'nopf2' not in OPT:
            a(f"s_lshl_b32 s3, s{sP}, 2")
            a(f"s_add_u32 s3, s3, s{sRB}")
            a(f"s_mul_i32 s3, s3, {6*8192}")
            a(f"s_lshl_b32 s{sT}, s{sH}, 8")
            a(f"s_add_u32 s3, s3, s{sT}")
            a(f"s_add_u32 s3, s3, {128*8192}")
            a(f"s_add_u32 s{sNB}, s3, {192*8192}")
            a("s_mov_b32 exec_lo, 0xfff")
            pf2 = [["s_mov_b64 exec, 0xfff", (f"buffer_load_dword v{vSC}, v{vPFW}, {S4(S_W)}, s{sNB} offen sc1{NT2}", "pf"), "s_mov_b64 exec, -1"]]
        else:
            a(f"s_lshl_b32 s3, s{sP}, 19")
            a(f"s_add_u32 s3, s3, s{sWO}")
            a("s_mov_b32 exec_lo, -1")
        emit([[(f"buffer_load_dword v{vSC}, v{vPFW}, {S4(S_W)}, s3 offen sc1{NT2}", "pf")]])
        a("s_mov_b64 exec, -1")
    def frag_addrs(vR, rowoff_sgpr, vWa, nt_sgpr, wbase_sgpr):
        a("v_and_b32 v24, 15, v0")
        a("v_lshrrev_b32 v25, 4, v0")
        a("v_bfe_u32 v26, v0, 1, 3")
        a("v_xor_b32 v26, v26, v25")
        a("v_lshlrev_b32 v26, 4, v26")
        a("v_lshl_add_u32 v26, v24, 7, v26")
        a(f"v_add_u32 v{vR}, s{rowoff_sgpr}, v26")
        a(f"v_xor_b32 v{vR+1}, 64, v{vR}")
        a("v_bfe_u32 v24, v0, 2, 2")
        a("v_lshl_add_u32 v26, v25, 3, v24")
        a("v_lshlrev_b32 v26, 8, v26")
        a("v_and_b32 v27, 3, v0")
        a("v_lshl_add_u32 v26, v27, 3, v26")
        a(f"v_add_u32 v26, s{wbase_sgpr}, v26")
        a("v_and_b32 v25, 1, v25")
        a("v_lshl_add_u32 v24, v25, 2, v24")
        a(f"v_xor_b32 v24, s{nt_sgpr}, v24")
        for nt in range(4):
            a(f"v_xor_b32 v25, {nt}, v24")
            a(f"v_lshl_add_u32 v{vWa+nt}, v25, 5, v26")
    a(f"s_and_b32 s{sT}, s{sW}, 1")
    a(f"s_lshl_b32 s{sT}, s{sT}, 14")
    a(f"s_and_b32 s{sT2}, s{sW}, 2")
    a(f"s_lshl_b32 s{sT2}, s{sT2}, 1")
    a(f"s_lshl_b32 s3, s{sG}, 14")
    a("s_add_u32 s3, s3, 65536")
    frag_addrs(vAC, sT, vAW, sT2, 3)
    WOB = 131072
    a("v_lshrrev_b32 v24, 2, v0")
    a("v_mul_u32_u24 v24, 672, v24")
    a("v_and_b32 v25, 3, v0")
    a("v_lshl_add_u32 v24, v25, 3, v24")
    a(f"s_lshl_b32 s{sT}, s{sW}, 5")
    a(f"s_add_u32 s{sT}, s{sT}, {WOB}")
    a(f"v_add_u32 v{vWOT}, s{sT}, v24")
    KVS, TRB = 131072, 153600
    a("v_mul_u32_u24 v25, 1639, v31")
    a("v_lshrrev_b32 v25, 16, v25")
    a("v_mul_u32_u24 v26, 40, v25")
    a("v_sub_u32 v26, v31, v26")
    a("v_mul_u32_u24 v29, 1280, v25")
    a("v_lshl_add_u32 v29, v26, 2, v29")
    a(f"v_add_u32 v29, {KVS}, v29")
    a("v_and_b32 v27, 7, v26")
    a("v_xor_b32 v27, v27, v25")
    a("v_lshlrev_b32 v27, 4, v27")
    a(f"v_lshl_add_u32 v{vKVT}, v26, 8, v27")
    a(f"v_add_u32 v{vKVT}, {TRB}, v{vKVT}")
    a(f"s_and_b32 s{sT2}, s2, 7")
    a(f"s_mul_i32 s{sT}, s{sT2}, 40")
    a(f"v_add_lshl_u32 v26, v26, s{sT}, 4")
    a("v_mul_u32_u24 v25, 205, v0")
    a("v_lshrrev_b32 v25, 11, v25")
    a("v_mul_u32_u24 v27, 1120, v25")
    a("v_lshl_add_u32 v27, v0, 4, v27")
    a(f"s_lshr_b32 s{sT}, s2, 3")
    a(f"s_mul_i32 s{sT}, s{sT}, {64*1280}")
    a(f"s_mul_i32 s{sT2}, s{sT2}, 160")
    a(f"s_add_u32 s{sT}, s{sT}, s{sT2}")
    a(f"s_sub_u32 s{sT}, s{sT}, 3840")
    a(f"v_add_u32 v27, s{sT}, v27")
    a(f"v_mov_b32 v30, {OOB}")
    a("v_mul_u32_u24 v24, 20, v0")
    a("s_waitcnt lgkmcnt(0)")
    srd(a, S_WS, 50, 51, 64 * MB)
    srd(a, S_V, 50, 51, 16 * MB, WS_VF)
    srd(a, S_X, 44, 45, 2621440)
    srd(a, S_WQ, 46, 47, 5242880)
    srd(a, S_DBG, 48, 49, 256)
    a(f"s_sub_u32 s{sT}, 15, s{sP}")
    a(f"s_lshl_b32 s{sT2}, s{sRB}, 5")
    a(f"s_lshl_b32 s{sCT2}, s{sT}, 7")
    a(f"s_add_u32 s{sCT2}, s{sCT2}, s{sT2}")
    a(f"s_lshl_b32 s{sCT1}, s{sP}, 7")
    a(f"s_add_u32 s{sCT1}, s{sCT1}, s{sT2}")
    a(f"s_cmp_eq_u32 s{sG}, 0")
    a(f"s_cselect_b32 s{sROW}, s{sCT1}, s{sCT2}")
    a(f"s_mul_i32 s{sXO}, s{sROW}, 1280")
    a(f"s_lshl_b32 s{sQWO}, s{sW}, 16")
    a(f"s_lshl_b32 s{sT}, s{sH}, 8")
    a(f"s_add_u32 s{sQWO}, s{sQWO}, s{sT}")
    a(f"s_lshl_b32 s{sT}, s{sH}, 12")
    a(f"s_add_u32 s{sT}, s{sT}, {WS_CTX}")
    a(f"s_lshl_b32 s{sT2}, s{sRB}, 4")
    for c in (sCT1, sCT2):
        a(f"s_sub_u32 s{c}, s{c}, s{sT2}")
        a(f"s_mul_i32 s{c}, s{c}, {CS // 16}")
        a(f"s_add_u32 s{c}, s{c}, s{sT}")
    a(f"s_lshl_b32 s{sOB}, s{sH}, 6")
    a(f"s_lshl_b32 s{sT}, s{sP}, 3")
    a(f"s_add_u32 s{sOB}, s{sOB}, s{sT}")
    a(f"s_and_b32 s{sT}, s{sW}, 1")
    a(f"s_lshl_b32 s{sT}, s{sT}, 2")
    a(f"s_add_u32 s{sOB}, s{sOB}, s{sT}")
    a(f"s_lshl_b32 s{sOB}, s{sOB}, 13")
    a(f"s_bfe_u32 s{sT}, s{sW}, 0x10001")
    a(f"s_add_u32 s{sT2}, s{sG}, 11")
    a(f"s_lshl_b32 s{sT}, s{sT}, s{sT2}")
    a(f"s_add_u32 s{sOB}, s{sOB}, s{sT}")
    a(f"s_lshl_b32 s{sT}, s{sG}, 24")
    a(f"s_add_u32 s{sOB}, s{sOB}, s{sT}")
    a(f"s_lshl_b32 s{sN1}, s{sP}, 2")
    a(f"s_add_u32 s{sN1}, s{sN1}, 4")
    a(f"s_lshl_b32 s{sHIST[0]}, s{sH}, 19")
    a(f"s_lshl_b32 s{sT}, s{sRB}, 11")
    a(f"s_add_u32 s{sHIST[0]}, s{sHIST[0]}, s{sT}")
    a(f"s_lshl_b32 s{sM0K}, s{sW}, 11")
    a(f"s_add_u32 s{sM0V}, s{sM0K}, 65536")
    a(f"s_sub_u32 s{sT2}, s{sN1}, 4")
    a(f"s_sub_u32 s{sWRAP}, s{sN1}, 2")
    a(f"s_sub_u32 s{sWRAP}, s{sWRAP}, s{sG}")
    a(f"s_mov_b32 s{sBASE}, 8192")
    a(f"s_cmp_eq_u32 s{sG}, 0")
    a(f"s_cselect_b32 s{sMST}, s{sT2}, 99")
    a(f"s_cselect_b32 s{sN1}, s{sN1}, 100")
    a(f"s_add_u32 s{sHIST[1]}, s{sHIST[0]}, 8192")
    a(f"s_add_u32 s{sHIST[2]}, s{sHIST[0]}, 16384")
    a(f"s_mov_b64 s[{sEV}:{sEV+1}], {(127 if FUSE else 63) if 'noev' not in OPT else 64}")
    a(f"s_add_u32 s{sT}, s{sMST}, 1")
    a(f"s_lshl_b64 s[{sEV}:{sEV+1}], s[{sEV}:{sEV+1}], s{sT}")
    if SHARE:
        a(f"s_mul_i32 s{S_T}, s{sG}, 45")
        a(f"s_mov_b32 s{S_T+1}, 0")
        a(f"s_lshl_b64 s[{S_T}:{S_T+1}], s[{S_T}:{S_T+1}], s{sWRAP}")
        a(f"s_or_b64 s[{sEV}:{sEV+1}], s[{sEV}:{sEV+1}], s[{S_T}:{S_T+1}]")
        a(f"s_cmp_eq_u32 s{sG}, 0")
        a(f"s_cselect_b32 s{S_V+2}, s{S_V+2}, 0")
    a(f"s_bitset1_b64 s[{sEV}:{sEV+1}], s{sWRAP}")
    a(f"s_or_b32 s{sEV}, s{sEV}, 0x80000002")
    a(f"s_or_b32 s{sEV+1}, s{sEV+1}, 6")
    a(f"s_mov_b32 s{sTHR}, 0x40004000")
    a(f"s_mov_b32 s{S_T+3}, 0x00020000")
    if 'tlb' in OPT:
        a(f"s_lshl_b32 s{sT}, s{sW}, 2")
        a(f"s_lshr_b32 s3, 0xdba84210, s{sT}")
        a("s_and_b32 s3, s3, 15")
        a("s_lshl_b32 s3, s3, 3")
        a(f"s_load_dwordx2 s[{S_T}:{S_T+1}], s[0:1], s3")
        a(f"s_lshr_b32 s3, 0x5a8a5555, s{sT}")
        a("s_and_b32 s3, s3, 15")
        a(f"s_lshl_b32 s{S_T+2}, s3, 19")
        a("v_lshlrev_b32 v118, 20, v0")
        a("s_lshl_b32 s3, s2, 10")
        a(f"s_lshr_b32 s{sT}, s2, 3")
        a(f"s_lshl_b32 s{sT}, s{sT}, 21")
        a(f"s_lshl_b32 s{sT2}, s{sW}, 12")
        a(f"s_add_u32 s{sT}, s{sT}, s{sT2}")
        a("s_waitcnt lgkmcnt(0)")
        a("s_mov_b64 exec, 0x3f")
        emit([[(f"buffer_load_dword v{vSC}, v118, {S4(S_T)}, s3 offen sc1", "pf")]])
        a("s_mov_b64 exec, 3")
        emit([[(f"buffer_load_dword v{vSC}, v118, {S4(S_WS)}, s{sT} offen sc1", "pf")]])
        a("s_mov_b64 exec, -1")

    XB = [0, 32768, 131072]
    def q_dma_x(k):
        tg = ("q", k)
        out = [[f"s_add_u32 m0, s{sM0C}, {XB[(k+2)%3]}", f"s_add_u32 s{sT}, s{sXO}, {k*128}",
                (f"buffer_load_dwordx4 v{vXD}, {S4(S_X)}, s{sT} offen lds", tg)]]
        for i in range(1, 4): out.append([(f"buffer_load_dwordx4 v{vXD+i}, {S4(S_X)}, s{sT} offen offset:{i*1024} lds", tg)])
        return out
    def q_dma_w(k):
        tg = ("q", k)
        return [[f"s_add_u32 m0, s{sM0V}, {(k%3)*16384}", f"s_add_u32 s{sT}, s{sQWO}, {k*64*8192}",
                 (f"buffer_load_dwordx4 v{vQW}, {S4(S_WQ)}, s{sT} offen lds", tg)],
                [(f"buffer_load_dwordx4 v{vQW+1}, {S4(S_WQ)}, s{sT} offen offset:1024 lds", tg)]]
    GX, GXT, GWT, GW, KR, VR, SH = 80, 84, 85, 86, 90, 101, 110
    def tsrd(lo, size): return [f"s_mov_b32 s{S_T}, s{lo}", f"s_mov_b32 s{S_T+1}, s{lo+1}", f"s_mov_b32 s{S_T+2}, {size}"]
    def ld_wo():
        L = []
        for i in range(4):
            L.append(tsrd(PT + 8, 5242880) + [f"s_lshr_b32 s3, s2, 1", "s_lshl_b32 s3, s3, 5", f"s_lshl_b32 s{sT2}, s{sW}, 2",
                     f"s_add_u32 s3, s3, s{sT2}", "s_mul_i32 s3, s3, 1280", f"s_and_b32 s{sS}, s2, 1", f"s_mul_i32 s{sS}, s{sS}, 640",
                     f"s_add_u32 s3, s3, s{sS}", f"s_mul_i32 s{sT2}, s{sT2}, 672", "s_mov_b32 exec_hi, 0xff",
                     f"s_add_u32 m0, s{sT2}, {WOB+672*i}", f"s_add_u32 s{sS}, s3, {1280*i}",
                     (f"buffer_load_dwordx4 v{vL16}, {S4(S_T)}, s{sS} offen{NT1} lds", "wo"), "s_mov_b32 exec_hi, -1"])
        return L
    def ld_gate():
        return [["s_lshl_b32 s3, s2, 3", f"s_add_u32 s3, s3, s{sW}", "s_mul_i32 s3, s3, 1280",
                 (f"buffer_load_dwordx4 {vr(GX,4)}, v24, {S4(S_X)}, s3 offen", "gt"),
                 (f"buffer_load_dword v{GXT}, v24, {S4(S_X)}, s3 offen offset:16", "gt")],
                tsrd(PT + 10, 1280) + [(f"buffer_load_dwordx4 {vr(GW,4)}, v24, {S4(S_T)}, 0 offen", "gt"),
                 (f"buffer_load_dword v{GWT}, v24, {S4(S_T)}, 0 offen offset:16", "gt")]]
    def ld_kv(part):
        L = []
        for i in range(3):
            isv = i == 2 or (i == 1 and part == 1)
            rows0 = 6 * 8 * i - (72 - 3 if isv else 0)
            L.append(tsrd(PT + (2 if isv else 0), 2621440) +
                     [f"s_mul_i32 s3, s{sW}, {6*1280}", f"s_add_u32 s3, s3, {rows0*1280}", "v_add_u32 v28, s3, v27",
                      f"s_mul_i32 s3, s{sW}, 960", f"s_add_u32 m0, s3, {KVS + 8*960*i}", "s_mov_b32 exec_hi, 0xfffffff",
                      (f"buffer_load_dwordx4 v28, {S4(S_T)}, 0 offen{NT1} lds", "kvs"), "s_mov_b32 exec_hi, -1"])
        L.append(tsrd(PT + 4, 5120) + [(f"buffer_load_dwordx4 {vr(SH,4)}, v26, {S4(S_T)}, 0 offen", "kvs")])
        return L
    def rd_kv():
        return [[f"ds_read_b32 v{KR+j}, v29 offset:{160*j}"] for j in range(11)] + \
               [[f"ds_read_b32 v{VR+j}, v29 offset:{11520+160*j}"] for j in range(8)]
    def ld_pf():
        L = []
        for msk in (("0x3f", "0xfc0", "0xff000") if 'gap' in OPT else ("0xfffff",)):
            L.append([f"s_lshl_b32 s3, s{sP}, 3", f"s_add_u32 s3, s3, s{sW}", f"s_mul_i32 s3, s3, {10*8192}", f"s_lshl_b32 s{sT2}, s{sH}, 8",
                      f"s_add_u32 s3, s3, s{sT2}", f"s_mov_b64 exec, {msk}",
                      (f"buffer_load_dword v{vPFW}, v{vPFW}, {S4(S_WQ)}, s3 offen sc1{NT2}", "pfq"), "s_mov_b64 exec, -1"])
        L.append(tsrd(PT + 6, 2621440) + ["s_lshr_b32 s3, s2, 1", "s_mul_i32 s3, s3, 5", f"s_and_b32 s{sT2}, s2, 1", f"s_mul_i32 s{sT2}, s{sT2}, 3",
                  f"s_add_u32 s3, s3, s{sT2}", f"s_add_u32 s3, s3, s{sW}", "s_lshl_b32 s3, s3, 12", f"s_cmp_ge_u32 s{sW}, 3",
                  f"s_cselect_b32 s3, {OOB}, s3", "v_lshlrev_b32 v29, 7, v0", "s_mov_b32 exec_hi, 0",
                  (f"buffer_load_dword v29, v29, {S4(S_T)}, s3 offen sc1", "pfh"), "s_mov_b32 exec_hi, -1"])
        return L

    t0, t1, t2, t3, t4 = 24, 25, 26, 27, 28
    SCF = ' sc1' if FUSE else ''
    def job_gate():
        L = [[f"v_mov_b32 v{t0}, 0"]]
        for x, w in [(GX + i, GW + i) for i in range(4)] + [(GXT, GWT)]:
            L += [[s] for s in [f"v_lshlrev_b32 v{t1}, 16, v{x}", f"v_and_b32 v{t2}, 0xffff0000, v{x}",
                                f"v_lshlrev_b32 v{t3}, 16, v{w}", f"v_and_b32 v{t4}, 0xffff0000, v{w}",
                                f"v_mul_f32 v{t1}, v{t1}, v{t3}", f"v_mul_f32 v{t2}, v{t2}, v{t4}"] + rnd_pair(t3, t1, t2, t1, t2) +
                               [f"v_add_f32 v{t0}, v{t0}, v{t1}", f"v_add_f32 v{t0}, v{t0}, v{t2}"]]
        for m in ("row_shr:1", "row_shr:2", "row_shr:4", "row_shr:8"):
            L.append([f"v_add_f32_dpp v{t0}, v{t0}, v{t0} {m} row_mask:0xf bank_mask:0xf bound_ctrl:0"])
        L.append([f"v_add_f32_dpp v{t0}, v{t0}, v{t0} row_bcast:15 row_mask:0xa bank_mask:0xf"])
        L.append([f"v_add_f32_dpp v{t0}, v{t0}, v{t0} row_bcast:31 row_mask:0xc bank_mask:0xf"])
        L += [[s] for s in rnd_pair(t1, t0, t0, t0, t2)[:2] +
              [f"v_mul_f32 v{t0}, 0xbfb8aa3b, v{t0}", f"v_exp_f32 v{t0}, v{t0}", f"v_cmp_eq_u32 vcc, 63, v0",
               f"v_add_f32 v{t0}, 1.0, v{t0}", f"v_rcp_f32 v{t0}, v{t0}", f"v_cndmask_b32 v{t2}, v30, 0, vcc"] +
              rnd_pair(t1, t0, t0, t0, t3)[:2]]
        L.append(["s_lshl_b32 s3, s2, 3", f"s_add_u32 s3, s3, s{sW}", "s_lshl_b32 s3, s3, 2", f"s_add_u32 s3, s3, {WS_G}",
                  (f"buffer_store_dword v{t0}, v{t2}, {S4(S_WS)}, s3 offen{SCF}", "pr2")])
        return L
    def job_kvt():
        L = []
        W = 80
        for c in range(2):
            for q in range(2):
                L.append([f"v_lshlrev_b32 v{W+4*c+2*q}, 16, v{SH+2*c+q}"])
                L.append([f"v_and_b32 v{W+4*c+2*q+1}, 0xffff0000, v{SH+2*c+q}"])
        KL, KH = [110, 111, 112, 113], [88, 89, 109, 114]
        def unp(j): return [f"v_lshlrev_b32 v{KL[j%4]}, 16, v{KR+j}", f"v_and_b32 v{KH[j%4]}, 0xffff0000, v{KR+j}"]
        for j in range(3): L += [[s] for s in unp(j)]
        for s in range(8):
            ops = unp(s + 3)
            ops += [f"v_mul_f32 v{t0}, v{KL[s%4]}, v{W+3}", f"v_mul_f32 v{t1}, v{KH[s%4]}, v{W+7}"]
            for j in (2, 1, 0):
                ops += [f"v_fmac_f32 v{t0}, v{KL[(s+3-j)%4]}, v{W+j}", f"v_fmac_f32 v{t1}, v{KH[(s+3-j)%4]}, v{W+4+j}"]
            ops += [f"v_lshlrev_b32 v{t3}, 16, v{VR+s}", f"v_and_b32 v{t4}, 0xffff0000, v{VR+s}"]
            if s % 2 == 0:
                ops += [f"v_mul_f32 v118, v{t0}, v{t3}", f"v_mul_f32 v119, v{t1}, v{t4}"]
            else:
                ops += [f"v_mul_f32 v{t0}, v{t0}, v{t3}", f"v_mul_f32 v{t1}, v{t1}, v{t4}",
                        f"v_cvt_pk_bf16_f32 v{120+s//2}, v118, v{t0}", f"v_cvt_pk_bf16_f32 v{124+s//2}, v119, v{t1}"]
            L += [[x] for x in ops]
        L.append([f"s_cmp_lt_u32 s{sW}, 5", "s_cselect_b64 exec, -1, 0", f"ds_write_b128 v{vKVT}, v[120:123]",
                  f"ds_write_b128 v{vKVT}, v[124:127] offset:128", "s_mov_b64 exec, -1"])
        L += [[x] for x in [f"v_lshrrev_b32 v{t2}, 3, v0", f"v_and_b32 v{t3}, 7, v0", f"v_lshrrev_b32 v{t4}, 4, v0", f"v_xor_b32 v{t4}, v{t4}, v{t3}",
                            f"v_lshlrev_b32 v{t4}, 4, v{t4}", f"v_lshl_add_u32 v{t0}, v{t2}, 7, v{t4}", f"v_lshlrev_b32 v{t3}, 4, v{t3}",
                            f"v_mul_u32_u24 v{t1}, {RS}, v{t2}", f"v_add_u32 v{t1}, v{t1}, v{t3}"]]
        L.append([f"s_and_b32 s3, s{sW}, 1", "s_lshl_b32 s3, s3, 6", f"v_xor_b32 v{t0}, s3, v{t0}", f"s_lshl_b32 s3, s{sW}, 10",
                  f"s_add_u32 s3, s3, {TRB}", f"v_add_u32 v{t0}, s3, v{t0}"])
        return L
    def rd_post():
        L = []
        for i in range(3):
            L.append([f"ds_read_b64_tr_b16 v[{116+4*i}:{117+4*i}], v{vWOT} offset:{256*i}"])
            L.append([f"ds_read_b64_tr_b16 v[{118+4*i}:{119+4*i}], v{vWOT} offset:{256*i+16*672}"])
        return L + [[f"ds_read_b128 v[90:93], v{t0}"], [f"ds_read_b128 v[94:97], v{t0} offset:8192"]]
    def job_post():
        L = [["s_and_b32 s3, s2, 1", "s_mul_i32 s3, s3, 20", f"s_add_u32 s3, s3, s{sW}", f"s_mul_i32 s3, s3, {CS}",
              f"s_lshr_b32 s{sT2}, s2, 1", f"s_lshl_b32 s{sT2}, s{sT2}, 10", f"s_add_u32 s3, s3, s{sT2}",
              f"s_add_u32 s{sS}, s3, {WS_WOT}", (f"buffer_store_dwordx4 v[116:119], v{vL16}, {S4(S_WS)}, s{sS} offen{SCF}", "pr2")]]
        L.append([f"s_add_u32 s{sS}, s{sS}, {8*CS}", (f"buffer_store_dwordx4 v[120:123], v{vL16}, {S4(S_WS)}, s{sS} offen{SCF}", "pr2")])
        L.append([f"s_add_u32 s{sS}, s{sS}, {8*CS}", f"s_cmp_ge_u32 s{sW}, 4", f"s_cselect_b32 s{sS}, {OOB}, s{sS}",
                  (f"buffer_store_dwordx4 v[124:127], v{vL16}, {S4(S_WS)}, s{sS} offen{SCF}", "pr2")])
        L.append(["s_and_b32 s3, s2, 7", f"s_mul_i32 s3, s3, {80*RS}", f"s_lshr_b32 s{sT2}, s2, 3", f"s_lshl_b32 s{sT2}, s{sT2}, 7",
                  f"s_add_u32 s3, s3, s{sT2}", f"s_mul_i32 s{sT2}, s{sW}, {8*RS}", f"s_add_u32 s3, s3, s{sT2}", f"s_add_u32 s{sS}, s3, {WS_KVT}",
                  (f"buffer_store_dwordx4 v[90:93], v{t1}, {S4(S_WS)}, s{sS} offen{SCF}", "pr2")])
        L.append([f"s_add_u32 s{sS}, s{sS}, {64*RS}", f"s_cmp_ge_u32 s{sW}, 2", f"s_cselect_b32 s{sS}, {OOB}, s{sS}",
                  (f"buffer_store_dwordx4 v[94:97], v{t1}, {S4(S_WS)}, s{sS} offen{SCF}", "pr2")])
        return L

    def kdma(e, tg):
        return [[f"s_add_u32 m0, s{sM0K}, {(e & 3) * 16384}", "s_nop 0",
                 (f"buffer_load_dwordx4 v{vL16}, {S4(S_K)}, s{sHIST[e&3]} offen sc1 lds", tg)],
                [(f"buffer_load_dwordx4 v{vL16}, {S4(S_K)}, s{sHIST[e&3]} offen offset:1024 sc1 lds", tg)]]
    vPOLL, vZERO, vFL = 24, 25, 26
    vCL = 31
    def only(wave, body, extra=None):
        lab = a.uid("ONLY")
        a(f"s_cmp_lg_u32 s{sW}, {wave}")
        a(f"s_cbranch_scc1 {lab}")
        if extra:
            a(extra); a(f"s_cbranch_scc1 {lab}")
        for x in body: a(x)
        a.label(lab)
    def clear_line():
        body = [f"s_lshl_b32 s3, s{sH}, 12", f"s_add_u32 s3, s3, {WS_FL2 - WS_FLG}", "v_lshl_add_u32 v116, v0, 2, s3",
                f"s_lshl_b32 s3, s{sH}, 2", f"s_add_u32 s3, s3, {WS_FL3 - WS_FLG - 16 * 4096}", "v_lshl_add_u32 v118, v0, 12, s3",
                "v_cmp_le_u32 vcc, 16, v0", "v_and_b32 v119, 7, v0", "v_lshl_add_u32 v119, v119, 3, s2", "v_cndmask_b32 v116, v116, v118, vcc",
                "v_lshrrev_b32 v118, 5, v119", "v_and_b32 v119, 31, v119", "v_lshlrev_b32 v119, 2, v119", "v_lshl_add_u32 v118, v118, 12, v119",
                "v_cmp_le_u32 vcc, 32, v0", f"v_mov_b32 v{vCL}, 0", f"s_mov_b32 s3, {WS_FLG}", "v_cndmask_b32 v116, v116, v118, vcc",
                f"buffer_store_dword v{vCL}, v116, {S4(S_WS)}, s3 offen sc1"]
        only(3, body, f"s_cmp_lg_u32 s{sP}, 0")
    def clean_set():
        only(3, ["s_mov_b64 exec, 1", "v_mov_b32 v119, 1", f"s_lshl_b32 s3, s{sH}, 2",
                 f"buffer_store_dword v119, v{vCL}, {S4(S_DBG)}, s3 offen offset:128 sc1", "s_mov_b64 exec, -1"], f"s_cmp_lg_u32 s{sP}, 0")
    def clean_issue(site):
        a(f"s_bfe_u32 s{sT2}, s2, 0x10003")
        only(2, [f"v_and_b32 v{vCL}, 31, v0", f"v_lshlrev_b32 v{vCL}, 2, v{vCL}",
                 f"buffer_load_dword v{vCL}, v{vCL}, {S4(S_DBG)}, 0 offen offset:128 sc1"], f"s_cmp_lg_u32 s{sT2}, {site}")
    def clean_check():
        lab = a.uid("CLN")
        a(f"s_cmp_lg_u32 s{sW}, 2")
        a(f"s_cbranch_scc1 {lab}D")
        a(f"s_mov_b32 s{sT2}, 0")
        a(f"s_branch {lab}C")
        a.label(lab)
        a("s_sleep 32")
        a(f"buffer_load_dword v{vCL}, v{vFL}, {S4(S_DBG)}, 0 offen offset:128 sc1")
        a("s_waitcnt vmcnt(0)")
        a.label(lab + "C")
        a(f"v_cmp_eq_u32 vcc, 0, v{vCL}")
        a(f"s_add_u32 s{sT2}, s{sT2}, 1")
        a(f"s_cbranch_vccz {lab}D")
        a(f"s_cmp_lt_u32 s{sT2}, 100000")
        a(f"s_cbranch_scc1 {lab}")
        a.label(lab + "D")
    def publish(wave, which):
        only(wave, ["s_mov_b64 exec, 1", f"v_mov_b32 v{vPOLL}, 1", f"s_lshl_b32 s3, s{sH}, 10", f"s_add_u32 s3, s3, s{sP}",
                    "s_lshl_b32 s3, s3, 2", f"s_add_u32 s3, s3, {WS_FL2 + 32 * which}",
                    f"buffer_store_dword v{vPOLL}, v{vZERO}, {S4(S_WS)}, s3 offen sc1", "s_mov_b64 exec, -1"])
    def line_addr(ctx0): return [f"s_mov_b32 s3, {WS_FL3}"] if ctx0 else [f"s_lshl_b32 s3, s{sH}, 12", f"s_add_u32 s3, s3, {WS_FL2}"]
    def poll_issue(wave, ctx0=False):
        only(wave, line_addr(ctx0) + [
                    f"buffer_load_dword v{vPOLL}, v{vFL}, {S4(S_WS)}, s3 offen sc1"])
    def poll(wave, need, vmw, ctx0=False):
        if 'nopoll' in OPT: return
        lab = a.uid("POLL")
        a(f"s_cmp_lg_u32 s{sW}, {wave}")
        a(f"s_cbranch_scc1 {lab}D")
        for x in line_addr(ctx0): a(x)
        a(f"s_mov_b32 s{sT2}, 0")
        a(f"s_waitcnt vmcnt({vmw})")
        a(f"s_branch {lab}C")
        a.label(lab)
        a(f"s_sleep {OPT.get('sleep', 8)}")
        a(f"buffer_load_dword v{vPOLL}, v{vFL}, {S4(S_WS)}, s3 offen sc1")
        a("s_waitcnt vmcnt(0)")
        a.label(lab + "C")
        a(f"v_cmp_eq_u32 vcc, 0, v{vPOLL}")
        a(f"s_add_u32 s{sT2}, s{sT2}, 1")
        a(f"s_and_b32 s{S_T}, vcc_lo, {need}")
        a(f"s_cbranch_scc0 {lab}D")
        a(f"s_cmp_lt_u32 s{sT2}, 100000")
        a(f"s_cbranch_scc1 {lab}")
        a.label(lab + "D")

    emit(ld_gate())
    if 'noipf' not in OPT:
        only(6, ["s_getpc_b64 s[80:81]" if not STAMP else "s_getpc_b64 s[100:101]",
                 "s_lshr_b32 s3, s2, 3", "s_mul_i32 s3, s3, 3072", "v_lshl_add_u32 v118, v0, 7, s3",
                 "v_min_u32 v118, CODE_SPAN, v118",
                 f"v_mov_b32 v119, s{81 if not STAMP else 101}", f"v_add_co_u32 v118, vcc, s{80 if not STAMP else 100}, v118", "v_addc_co_u32 v119, vcc, 0, v119, vcc",
                 "s_mov_b64 exec, 0xffffff", "global_load_dword v120, v[118:119], off sc1", "s_mov_b64 exec, -1"])
        a.label("M_IPF")
    a(f"s_waitcnt vmcnt({vm.wait(('kv', 0))})")
    a("s_barrier")
    sp.mark("kv0")
    a(f"s_cmp_lg_u32 s{sG}, 0")
    a("s_cbranch_scc1 M_KVV")
    vm0 = list(vm.tags)
    spn = sp.n
    vAX, vAQ, vST = 2, 6, 10
    QA = 128
    PK = lambda z: (240 + 4 * z) if z < 4 else (80 + 4 * (z - 4))
    endwait = []
    for part in range(2):
        if part: a.label("M_KVV")
        vm.tags = list(vm0)
        sp.n = spn
        S = Stream(a, vm, dist=int(OPT.get('kd', 12)), per_gap=int(OPT.get('kpg', 2)), bar_delay=int(OPT.get('kbd', 3)))
        S.fill_rate = float(OPT.get('fr', 2.0))
        S.la = int(OPT.get('kla', 1)); S.ustep = int(OPT.get('kus', 1))
        rl = []
        tm = []
        for st in range(8):
            buf = (st & 1) * 32768
            for u in range(2):
                x = 2 * st + u
                for nt in range(4):
                    for hf in range(2):
                        rg = WFR[x & 1] + 4 * nt + 2 * hf
                        rl.append((32 * x + nt - 6, ("w", x, nt, hf),
                                   f"ds_read_b64_tr_b16 {vr(rg,2)}, v{vAW+nt} offset:{buf+u*8192+hf*1024}", rg, st))
                for kt in range(8):
                    rg = CFR + 4 * (kt % int(OPT.get('kring', 4)))
                    rl.append((32 * x + 4 * kt, ("c", x, kt), f"ds_read_b128 {vr(rg,4)}, v{vAC+u} offset:{buf+kt*2048}", rg, st))
                    for nt in range(4):
                        idx = kt * 4 + nt if part == 0 else ((kt >> 1) * 4 + nt) * 2 + (kt & 1)
                        acc = vr(ACC + 4 * idx, 4)
                        w, c = vr(WFR[x & 1] + 4 * nt, 4), vr(rg, 4)
                        cin = "0" if x == 0 else acc
                        S.op(f"{MFMA16} {acc}, {w}, {c}, {cin}" if part == 0 else f"{MFMA16} {acc}, {c}, {w}, {cin}",
                             [("w", x, nt, 0), ("w", x, nt, 1), ("c", x, kt)])
            sh = int(OPT.get('sh', 1))
            after = kv_dma(st + 2) if st < 6 else []
            q0l = sh or 'q0late' in OPT
            if st == 5 and not q0l: after = after + q_dma_x(0)
            if st == 6: after = (q_dma_x(0) if q0l else []) + q_dma_w(0) + q_dma_x(1) + q_dma_w(1)
            if st == 7: after = q_dma_x(2) + q_dma_w(2)
            pad = [[] for _ in range(int(OPT.get('stag', 14)) if part == 1 else 0)]
            tags = [("kv", st + 1)] if st < 7 else [("q", 0)]
            pre = None
            if st == 0 and 'nopf2' not in OPT: after = after + pf2
            def place(items):
                if 'gap' not in OPT: return items
                for i, it in enumerate(items): tm.append((64 * st + 62 + 5 * part + int(OPT['gap']) * i, it, 64 * st + 64 + 50))
                return []
            if st == sh - 1: after = after + place(ld_kv(part))
            if st == 1: tags += ["gt"]
            if st == 1 + sh:
                tags += ["kvs"]
                if part: pad = rd_kv()
                else: after = after + rd_kv()
            if st == 2: tags += ["pf"]
            if st == 2 + sh: after = after + place(ld_wo())
            if st == int(OPT.get('pfst', 2)): after = after + place(ld_pf()[:-1])
            if st == int(OPT.get('hst', 4)): after = after + ld_pf()[-1:]
            if st == 7: tags += ["pfq"]
            if st == 4 + sh:
                tags += ["wo"]
                pre = lambda: (chk.append(1), a("s_waitcnt lgkmcnt(0)"))
                if part: pad = rd_post() + pad[8:]
                else: after = after + rd_post()
            after = pad + after
            if part == 0:
                if st == 1: after = [clean_set] + after
                if st in (6, 7): after = after + [lambda st=st: clean_issue(st - 6)]
            after = [lambda st=st: sp.mark(f"k{st}")] + after
            S.barrier_after_stage(st, tags, after, pre)
        rl.sort(key=lambda r: (r[4], r[0]))
        for r in rl: S.read(r[1], r[2], r[3], r[4], r[0])
        chk = []
        def before_b4(): assert not chk, "kvT job too late"
        if sh == 0:
            for i, it in enumerate(ld_kv(part)): S.timed.append((int(OPT.get('kvp', 2)) + 3 * i, it, 48))
        if part == 0: S.timed.append((20, clear_line, 48))
        S.timed += tm
        S.timed.sort(key=lambda x: x[0])
        if 'trk' in OPT:
            nl = int(OPT['trk'])
            for i in range(2, 16):
                S.timed.append((32 * i + 12, [f"s_lshl_b32 s3, s2, 3", f"s_add_u32 s3, s3, s{sW}", f"s_mul_i32 s3, s3, {128*nl}",
                    f"s_add_u32 s3, s3, {64*MB + i*2048*128*nl}", f"s_mov_b32 s{S_WS+2}, {200*MB}", f"s_mov_b64 exec, {hex(sum(1 << (8*k) for k in range(nl)))}",
                    (f"buffer_load_dword v{vSC}, v{vL16}, {S4(S_WS)}, s3 offen sc1", "trk"), "s_mov_b64 exec, -1"], 600))
            S.timed.sort(key=lambda x: x[0])
        for it in job_gate(): S.filler(2 * 64 - 8, 1, it)
        for it in job_kvt(): S.filler((3 + sh) * 64 - 10 - 30 * sh, 1, it)
        S.filler(0, 0, before_b4)
        jp = job_post()
        if 'nowost' in OPT: jp = jp[3:]
        if 'nokvst' in OPT: jp = jp[:3]
        for i, it in enumerate(jp):
            S.filler((5 + sh) * 64 + 16 + int(OPT.get('postoff', 0)) + 7 * part + int(OPT.get('pstep', 30 - 10 * sh)) * i, 1, it)
        S.run([0])
        sp.mark("kv")
        a(f"s_lshr_b32 s{sT}, s{sW}, 1")
        a(f"s_lshl_b32 s{sT}, s{sT}, 13")
        a(f"s_and_b32 s{sT2}, s{sW}, 1")
        a(f"s_lshl_b32 s{sT2}, s{sT2}, 2")
        a("s_mov_b32 s3, 65536")
        frag_addrs(vAX, sT, vAQ, sT2, 3)
        a(f"v_add_u32 v{vAX+2}, 131072, v{vAX}")
        a(f"v_add_u32 v{vAX+3}, 131072, v{vAX+1}")
        S = Stream(a, vm, dist=int(OPT.get('qd', 10)), per_gap=2, bar_delay=int(OPT.get('qbd', 3)))
        S.fill_rate = 1.0
        S.la = int(OPT.get('qla', 1)); S.ustep = int(OPT.get('qus', 1))
        rl = []
        EARLYV = 'latev' not in OPT
        KPUB, VPUB = int(OPT.get('kpub', 4)), int(OPT.get('vpub', 8 if EARLYV else 9))
        for k in range(10):
            xb = XB[(k + 2) % 3]
            for u in range(2):
                x = 2 * k + u
                for nt in range(4):
                    for hf in range(2):
                        rg = WFR[x & 1] + 4 * nt + 2 * hf
                        rl.append((16 * x + nt - 5, ("w", x, nt, hf),
                                   f"ds_read_b64_tr_b16 {vr(rg,2)}, v{vAQ+nt} offset:{(k%3)*16384+u*8192+hf*1024}", rg, k))
                for qi in range(4):
                    rg = CFR + 4 * qi
                    av = vAX + u + (2 if xb == 131072 else 0)
                    rl.append((16 * x + 4 * qi, ("c", x, qi), f"ds_read_b128 {vr(rg,4)}, v{av} offset:{(xb%131072)+qi*2048}", rg, k))
                    for nt in range(4):
                        acc = vr(QA + 4 * (qi * 4 + nt), 4)
                        S.op(f"{MFMA16} {acc}, {vr(WFR[x&1]+4*nt,4)}, {vr(rg,4)}, {'0' if x == 0 else acc}",
                             [("w", x, nt, 0), ("w", x, nt, 1), ("c", x, qi)])
            tags, after, pre = [("q", k + 1)], [], None
            if k + 3 <= 9: after = q_dma_x(k + 3) + q_dma_w(k + 3)
            if k == KPUB - 1 and part == 0: pre = clean_check
            if k == KPUB: tags.append("pr2")
            if k == KPUB and part == 0: tags.append("st"); after = [lambda: publish(0, 0)] + after
            KP = int(OPT.get('kpoll', 7))
            if k == KP - 1 and part == 0: after = [lambda: (poll_issue(1), vm.add("mark"), vm.ghost.add("mark"))] + after
            if k == KP:
                if part == 0: pre = lambda: poll(1, 1, vm.wait("mark"))
                after = [[f"s_mov_b32 s{S_K}, s{S_WS}", f"s_mov_b32 s{S_K+1}, s{S_WS+1}", f"s_mov_b32 s{S_K+2}, s{S_V+2}"]] + kdma(0, "k0") + kdma(1, "k0")
            if k == 8: after = after + kdma(2, "k2")
            if k == 9: tags = []
            if k == VPUB and part == 1: tags.append("st"); after = [lambda: publish(4, 1)] + after
            if k == 9 and part == 1 and EARLYV: after = after + [lambda: poll_issue(5)]
            if part == 1: after = [[] for _ in range(int(OPT.get('qstag', 0)))] + after
            after = [lambda k=k: sp.mark(f"q{k}")] + after
            S.barrier_after_stage(k, tags, after, pre)
        rl.sort(key=lambda r: (r[4], r[0]))
        for r in rl: S.read(r[1], r[2], r[3], r[4], r[0])
        npre = 10
        for r in rl[:npre]: a(r[2])
        a(f"v_add_u32 v{vST}, {4096 >> part}, v{vL16}")
        a(f"v_mov_b32 v{vZERO}, 0")
        a(f"v_and_b32 v{vFL}, 31, v0")
        a(f"v_lshlrev_b32 v{vFL}, 2, v{vFL}")
        for z in list(range(4, 16)) + list(range(4)):
            for e in range(4):
                a(f"v_cvt_pk_bf16_f32 v{PK(z)+e}, v{ACC+8*z+2*e}, v{ACC+8*z+2*e+1}")
        SC = " " + OPT.get('stsc', 'sc1').replace('_', ' ')
        st0, stp = (2, int(OPT.get('stp', 5))) if part == 0 else (int(OPT.get('vst', 84)), int(OPT.get('stpv', 8)))
        for z in range(16 if 'nost' not in OPT else 1):
            j, c = z >> 2, z & 3
            S.filler(st0 + stp * z, 1, [f"s_add_u32 s3, s{sOB}, {j*8192}",
                     (f"buffer_store_dwordx4 {vr(PK(z),4)}, v{vST if c >> 1 else vL16}, {S4(S_WS)}, s3 offen offset:{(c&1)*1024}{SC}", "st")])
        S.run([0], preissued=npre)
        endwait.append(vm.wait("k0"))
        if part == 0: a("s_branch M_KVD")
    a.label("M_KVD")
    sp.mark("q")
    vKA, vVA, vD0, vQ2, vNINF, vTA, vX0, T = 2, 3, 4, 5, 8, 9, 10, 16
    FK, FV, P, SS, O, Q, NEGM, ONES, LS = 28, 60, [92, 100], [108, 124], 140, 204, 236, 244, 248
    BIAS = 12.0
    a(f"s_mov_b32 s{sT}, {f32hex(1.4426950408889634 * 128 ** -0.5)}")
    a(f"s_lshr_b32 s{sT2}, s{sW}, 1")
    a(f"s_lshl_b32 s{sT2}, s{sT2}, 14")
    a(f"s_and_b32 s3, s{sW}, 1")
    a("s_lshl_b32 s3, s3, 11")
    a(f"s_add_u32 s{sT2}, s{sT2}, s3")
    a(f"s_add_u32 s{sT2}, s{sT2}, 98304")
    a(f"v_add_u32 v6, s{sT2}, v{vL16}")
    a(f"s_lshl_b32 s{sT2}, s{sG}, 15")
    a(f"s_lshl_b32 s3, s{sRB}, 12")
    a(f"s_add_u32 s{sT2}, s{sT2}, s3")
    a(f"s_add_u32 s{sT2}, s{sT2}, 98304")
    a(f"v_add_u32 v{vQ2}, s{sT2}, v{vL16}")
    a(f"s_lshl_b32 s{sWO}, s{sG}, 13")
    if SHARE: a(f"v_mov_b32 v{vKA}, v{vL16}")
    else: a(f"v_add_u32 v{vKA}, s{sWO}, v{vL16}")
    a(f"v_add_u32 v{vVA}, 65536, v{vKA}")
    for f in range(8):
        for e in range(4):
            r = QA + 8 * f + 2 * e
            a(f"v_mul_f32 v{r}, s{sT}, v{r}")
            a(f"v_mul_f32 v{r+1}, s{sT}, v{r+1}")
            a(f"v_cvt_pk_bf16_f32 v{Q+4*f+e}, v{r}, v{r+1}")
        a(f"ds_write_b128 v6, {vr(Q+4*f,4)} offset:{(f>>1)*4096+(f&1)*1024}")
    a("v_and_b32 v7, 15, v0")
    a("v_lshrrev_b32 v8, 4, v0")
    a(f"s_lshl_b32 s{sT}, s{sRB}, 4")
    a(f"v_add_u32 v{vD0}, s{sT}, v7")
    a("v_lshlrev_b32 v8, 2, v8")
    a(f"v_sub_u32 v{vD0}, v{vD0}, v8")
    a(f"v_mov_b32 v{vNINF}, 0xff800000")
    for r in range(8): a(f"v_mov_b32 v{NEGM+r}, 0")
    for r in range(4): a(f"v_mov_b32 v{ONES+r}, 0x3f803f80")
    poll(5, 0x101, 0)
    a(f"s_waitcnt vmcnt({min(endwait)}) lgkmcnt(0)")
    a("s_barrier")
    sp.mark("qx")
    def kread(e, t): return f"ds_read_b128 {vr(FK+4*t,4)}, v{vKA} offset:{(e&3)*16384+t*1024}"
    def vread(e, i): return f"ds_read_b128 {vr(FV+4*i,4)}, v{vVA} offset:{(e&3)*16384+i*1024}"
    def qread(extra): return [f"ds_read_b128 {vr(Q+4*f,4)}, v{vQ2} offset:{extra+(f>>2)*16384+(f&3)*1024}" for f in range(8)]
    for x in qread(0): a(x)
    for i in range(8): a(kread(0, i))
    a(f"s_mov_b32 s{sS}, 0")
    a("s_waitcnt lgkmcnt(0)")

    handlers = []
    def xreduce(op, x, tmp):
        a(f"v_mov_b32 v{tmp}, v{x}")
        a(f"v_permlane16_swap_b32 v{x}, v{tmp}")
        a(f"{op} v{x}, v{x}, v{tmp}")
        a(f"v_mov_b32 v{tmp}, v{x}")
        a(f"v_permlane32_swap_b32 v{x}, v{tmp}")
        a(f"{op} v{x}, v{x}, v{tmp}")
    def rowmax(dst, tmp, src):
        a(f"v_max3_f32 v{dst}, v{src}, v{src+1}, v{src+2}")
        a(f"v_max3_f32 v{dst}, v{dst}, v{src+3}, v{src+4}")
        a(f"v_max3_f32 v{dst}, v{dst}, v{src+5}, v{src+6}")
        a(f"v_max_f32 v{dst}, v{dst}, v{src+7}")
        xreduce("v_max_f32", dst, tmp)
    def sm_ops(Sc, Pw, hi_only=False):
        f = []
        def post(q):
            f.append((1, [f"v_cvt_pk_bf16_f32 v{Pw+q//2}, v{T+q%8}, v{T+(q+1)%8}"]))
            k = q // 2
            if hi_only:
                if k == 7:
                    f.append((1, [f"v_or3_b32 v{vTA}, v{Pw+4}, v{Pw+5}, v{Pw+6}"]))
                    f.append((1, [f"v_bitop3_b32 v{vTA}, v{vTA}, v{Pw+7}, s{sTHR} bitop3:0xa8"]))
                return
            if k == 3: f.append((1, [f"v_or3_b32 v{vTA}, v{Pw}, v{Pw+1}, v{Pw+2}"]))
            if k == 5: f.append((1, [f"v_or3_b32 v{vTA}, v{vTA}, v{Pw+3}, v{Pw+4}"]))
            if k == 7:
                f.append((1, [f"v_or3_b32 v{vTA}, v{vTA}, v{Pw+5}, v{Pw+6}"]))
                f.append((1, [f"v_bitop3_b32 v{vTA}, v{vTA}, v{Pw+7}, s{sTHR} bitop3:0xa8"]))
        r0 = 8 if hi_only else 0
        for r in range(r0, 16):
            f.append((2, [f"v_exp_f32 v{T+r%8}, v{Sc+r}"]))
            if r % 2 == 1 and r >= r0 + 3: post(r - 3)
        post(14)
        return f
    def store_ctx(qis, sct, obase):
        n = 0
        for qi in qis:
            for u in range(4):
                d = T + (n % 2) * 4
                n += 1
                src = obase(qi) + 8 * u
                for e in range(4): a(f"v_cvt_pk_bf16_f32 v{d+e}, v{src+2*e}, v{src+2*e+1}")
                if u == 0 and qi == 1 and len(qis) == 2: a(f"s_add_u32 s{sct}, s{sct}, {4*CS}")
                a(f"buffer_store_dwordx4 {vr(d,4)}, v{vL16}, {S4(S_WS)}, s{sct} offen offset:{u*1024}{' sc1' if FUSE else ''}")

    sX = sROW
    def slot(j, name, qk=True, sm=True, pv=True, nxt=True, dma=True, last=False, prebar=None, fresh=False, fast=None, hi=""):
        par = j & 1
        Sc, Sn, Pw, Pr = SS[1 - par], SS[par], P[1 - par], P[par]
        if fast:
            a.label(name + "_GO")
            handlers.append(("entry", name))
            handlers.append(("ev", name, Sc))
        else:
            a.label(name)
            if sm or pv:
                a(f"s_bitcmp1_b64 s[{sEV}:{sEV+1}], s{sS}")
                a(f"s_cbranch_scc1 {name}_EV")
                a.label(name + "_GO")
                handlers.append(("ev", name, Sc))
        ms = []
        if qk:
            for t in range(8):
                kt, u = t >> 2, t & 3
                mm = []
                for qi in range(1 if "q" in hi else 0, 2):
                    d = vr(Sn + 8 * qi + 4 * kt, 4)
                    mm.append(f"{MFMA16} {d}, {vr(FK+4*t,4)}, {vr(Q+16*qi+4*u,4)}, {vr(NEGM+4*qi,4) if u == 0 else d}")
                ms.append(mm)
        if pv:
            for i in range(8):
                mm = []
                for qi in range(1 if "p" in hi else 0, 2):
                    o = vr(O + 32 * qi + 4 * i, 4)
                    mm.append(f"{MFMA16} {o}, {vr(FV+4*i,4)}, {vr(Pr+4*qi,4)}, {'0' if fresh else o}")
                if i == 3:
                    for qi in range(1 if "p" in hi else 0, 2):
                        mm.append(f"{MFMA16} {vr(LS+4*qi,4)}, {vr(ONES,4)}, {vr(Pr+4*qi,4)}, {'0' if fresh else vr(LS+4*qi,4)}")
                ms.append(mm)
        n = len(ms)
        pre = [[] for _ in range(n)]; post = [[] for _ in range(n)]
        if qk and pv:
            for i in range(8): post[i // 2].append(vread(j - 2, i))
            K0 = int(OPT.get('k0', 4))
            if nxt:
                for t in range(8): post[K0 + t].append(kread(j + 1, t))
            pre[8].append(f"s_waitcnt lgkmcnt({(8 - K0) if nxt else 0})")
        elif qk:
            if nxt:
                for t in range(8): post[t].append(kread(j + 1, t))
        else:
            for i in range(8): a(vread(j - 2, i))
            for i in range(0, 8, 2): pre[i].append(f"s_waitcnt lgkmcnt({6 - i})")
        if dma and not ('nodma' in OPT and fast):
            h0, h1 = sHIST[(j + 3) & 3], sHIST[(j + 2) & 3]
            dp = [int(x) for x in OPT.get('dp', '4,6,9,11').split(',')] if n == 16 else [1, 3, 5, 7]
            pre[dp[0]].insert(0, f"s_add_u32 m0, s{sM0V}, {(j & 3) * 16384}")
            post[dp[0]].append(f"buffer_load_dwordx4 v{vL16}, {S4(S_V)}, s{sHIST[j&3]} offen sc1 lds")
            post[dp[1]].append(f"buffer_load_dwordx4 v{vL16}, {S4(S_V)}, s{sHIST[j&3]} offen offset:1024 sc1 lds")
            pre[dp[2]] = [f"s_add_u32 m0, s{sM0K}, {((j + 3) & 3) * 16384}", f"s_add_u32 s{h0}, s{h1}, s{sBASE}"] + pre[dp[2]]
            post[dp[2]].append(f"buffer_load_dwordx4 v{vL16}, {S4(S_K)}, s{h0} offen sc1 lds")
            post[dp[3]].append(f"buffer_load_dwordx4 v{vL16}, {S4(S_K)}, s{h0} offen offset:1024 sc1 lds")
        if fast: post[12] += [f"s_add_u32 s{sS}, s{sS}, 1", f"s_bitcmp1_b64 s[{sEV}:{sEV+1}], s{sS}", f"s_cselect_b32 s{sX}, 1, 0"]
        groups = []
        for m in range(n):
            for k, x in enumerate(ms[m]):
                groups.append((pre[m] if k == 0 else [], x, post[m] if k == len(ms[m]) - 1 else []))
        fl = sm_ops(Sc, Pw, "s" in hi) if (sm and 'nosm' not in OPT) else []
        if fast: fl.append((1, [f"v_cmp_ne_u32 vcc, s{sX}, v{vTA}"]))
        elif sm: fl.append((1, [f"v_cmp_ne_u32 vcc, 0, v{vTA}"]))
        interleave(a, groups, fl, max(len(groups) - 3, 1))
        if fast:
            if fast == "AT_L2":
                a("s_cbranch_vccz AT_TOP")
                a(f"s_branch {name}_SP")
            else:
                a(f"s_cbranch_vccnz {name}_SP")
                a("s_waitcnt vmcnt(4) lgkmcnt(0)")
                if 'nobar' not in OPT: a("s_barrier")
            handlers.append(("special", name, fast))
            handlers.append(("slow", name, Sc, Sn, Pw))
            return
        if sm:
            a(f"s_cbranch_vccnz {name}_SLOW")
            a.label(name + "_RET")
            handlers.append(("slow", name, Sc, Sn, Pw))
        if not last:
            a(f"s_add_u32 s{sS}, s{sS}, 1")
            if prebar: prebar()
            a(f"s_waitcnt vmcnt({4 if dma else 0}) lgkmcnt(0)")
            a("s_barrier")

    slot(0, "AT_S0", sm=False, pv=False)
    sp.mark("s0")
    slot(1, "AT_S1", pv=False)
    sp.mark("s1")
    poll_issue(2)
    slot(2, "AT_S2", prebar=lambda: poll(2, 0xffff, 4), fresh=True)
    sp.mark("s2")
    a("s_branch AT_L3")
    a(".p2align 6")
    a.label("AT_TOP")
    a("s_waitcnt vmcnt(4) lgkmcnt(0)")
    if 'nobar' not in OPT: a("s_barrier")
    slot(2, "AT_L2", fast="AT_L3"); slot(3, "AT_L3", fast="AT_L0"); slot(0, "AT_L0", fast="AT_L1"); slot(1, "AT_L1", fast="AT_L2")
    a.label("AT_P33")
    sp.mark("s32")
    if FUSE: poll_issue(6, True)
    HI = 'nohi' not in OPT
    slot(1, "AT_S33", nxt=False, prebar=(lambda: poll(6, -1, 4, True)) if FUSE else None, hi="q" if HI else "")
    slot(2, "AT_S34", qk=False, nxt=False, dma=False, hi="s" if HI else "")
    if FUSE and 'lateconv' not in OPT:
        for x in tsrd(PT + 6, 2621440): a(x)
        gen_tail.conv_dma(a, {k: v for k, v in globals().items() if not k.startswith("__") and k != "gen_tail"}, sW, S_WS, S_T, sT, sT2, 3, sCO, vL16, 6, 7,
                          98304, "AT_S35", " sc1")
    slot(3, "AT_S35", qk=False, sm=False, nxt=False, dma=False, last=True, hi="p" if HI else "")
    sp.mark("s35")
    X0, X1, X2, X3, X4, X5 = range(vX0, vX0 + 6)
    MA0, MA1, MA2, MA3, MT = FK, FK + 1, FK + 2, FK + 3, FK + 4
    a(f"s_mul_i32 s{sT}, s{sW}, {8192+512}")
    a(f"s_xor_b32 s{sT2}, s{sW}, 4")
    a(f"s_mul_i32 s{sT2}, s{sT2}, {8192+512}")
    a(f"v_add_u32 v{MA0}, s{sT}, v{vL16}")
    a(f"v_add_u32 v{MA1}, s{sT2}, v{vL16}")
    a(f"v_lshlrev_b32 v{MA2}, 3, v0")
    a(f"v_add_u32 v{MA3}, s{sT2}, v{MA2}")
    a(f"v_add_u32 v{MA2}, s{sT}, v{MA2}")
    a(f"s_cmp_eq_u32 s{sG}, 0")
    a("s_cbranch_scc1 AT_MA")
    for gsel in (1, 0):
        if gsel == 0: a.label("AT_MA")
        own, snd = O + 32 * gsel, O + 32 * (1 - gsel)
        a(f"v_mov_b32 v{X4}, v{NEGM+4*(1-gsel)}")
        a(f"v_mov_b32 v{X5}, v{LS+4*(1-gsel)}")
        a(f"ds_write_b64 v{MA2}, v[{X4}:{X5}] offset:8192")
        for q in range(8): a(f"ds_write_b128 v{MA0}, {vr(snd+4*q,4)} offset:{1024*q}")
        if gsel: a(f"s_add_u32 s{sCT2}, s{sCT2}, {4*CS}")
        a("s_waitcnt lgkmcnt(0)")
        a("s_barrier")
        a(f"ds_read_b64 v[{X2}:{X3}], v{MA3} offset:8192")
        for q in range(8): a(f"ds_read_b128 {vr(snd+4*q,4)}, v{MA1} offset:{1024*q}")
        a("s_waitcnt lgkmcnt(8)")
        a(f"v_min_f32 v{vTA}, v{NEGM+4*gsel}, v{X2}")
        a(f"v_sub_f32 v{X0}, v{vTA}, v{NEGM+4*gsel}")
        a(f"v_sub_f32 v{X2}, v{vTA}, v{X2}")
        a(f"v_exp_f32 v{X0}, v{X0}")
        a(f"v_exp_f32 v{X2}, v{X2}")
        a(f"v_mul_f32 v{vTA}, v{LS+4*gsel}, v{X0}")
        a(f"v_fmac_f32 v{vTA}, v{X3}, v{X2}")
        a(f"v_rcp_f32 v{vTA}, v{vTA}")
        a(f"v_mul_f32 v{X0}, v{X0}, v{vTA}")
        a(f"v_mul_f32 v{X2}, v{X2}, v{vTA}")
        for u in range(4):
            for r in range(8 * u, 8 * u + 8): a(f"v_mul_f32 v{own+r}, v{own+r}, v{X0}")
            a(f"s_waitcnt lgkmcnt({6-2*u})")
            for r in range(8 * u, 8 * u + 8): a(f"v_fmac_f32 v{own+r}, v{snd+r}, v{X2}")
            for e in range(4): a(f"v_cvt_pk_bf16_f32 v{MT+4*u+e}, v{own+8*u+2*e}, v{own+8*u+2*e+1}")
            a(f"buffer_store_dwordx4 {vr(MT+4*u,4)}, v{vL16}, {S4(S_WS)}, s{sCT2} offen offset:{u*1024}{' sc1' if FUSE else ''}")
        if gsel: a("s_branch AT_MB")
    a.label("AT_MB")
    if FUSE:
        sp.mark("att")
        gen_tail.gen_tail(a, {k: v for k, v in globals().items() if not k.startswith("__") and k != "gen_tail"}, dict(sW=sW, sH=sH, sP=sP, sp=sp))
    elif STAMP:
        a("s_waitcnt vmcnt(0)")
        sp.mark("end")
        a("s_waitcnt lgkmcnt(0)")
        sp.flush(100, sW, 0, slot=0); sp.flush(100, sW, 4, slot=1)
    a.label("M_END")
    a("s_endpgm")
    for hd in handlers:
        if hd[0] == "entry":
            name = hd[1]
            a.label(name)
            a(f"s_bitcmp1_b64 s[{sEV}:{sEV+1}], s{sS}")
            a(f"s_cbranch_scc0 {name}_GO")
        elif hd[0] == "special":
            _, name, nx = hd
            a.label(name + "_SP")
            a(f"v_cmp_ne_u32 vcc, 0, v{vTA}")
            a(f"s_cbranch_vccnz {name}_SLOW")
            a.label(name + "_RET")
            a("s_waitcnt vmcnt(4) lgkmcnt(0)")
            if 'nobar' not in OPT: a("s_barrier")
            if nx == "AT_L1":
                a(f"s_cmp_eq_u32 s{sS}, 33")
                a("s_cbranch_scc1 AT_P33")
            a(f"s_branch {nx}")
        elif hd[0] == "ev":
            _, name, Sc = hd
            a.label(name + "_EV")
            a(f"s_cmp_eq_u32 s{sS}, s{sWRAP}")
            a(f"s_cselect_b32 s{sBASE}, 16384, s{sBASE}")
            if SHARE:
                a(f"s_cselect_b32 s{S_K+2}, {16*MB}, s{S_K+2}")
                a(f"s_sub_u32 s{sT}, s{sS}, s{sWRAP}")
                a(f"s_cmp_eq_u32 s{sT}, 3")
                a(f"s_cselect_b32 s{S_V+2}, {16*MB}, s{S_V+2}")
                a(f"s_cmp_eq_u32 s{sT}, 2")
                a(f"s_cselect_b32 s{sT2}, s{sWO}, 0")
                a(f"v_add_u32 v{vKA}, s{sT2}, v{vKA}")
                a(f"s_cmp_eq_u32 s{sT}, 5")
                a(f"s_cselect_b32 s{sT2}, s{sWO}, 0")
                a(f"v_add_u32 v{vVA}, s{sT2}, v{vVA}")
            a(f"s_cmp_eq_u32 s{sS}, 31")
            a(f"s_cselect_b32 s{S_K+2}, 0, s{S_K+2}")
            a(f"s_sub_u32 s{sT}, s{sS}, s{sN1}")
            a(f"s_cmp_lg_u32 s{sT}, 2")
            a(f"s_cbranch_scc1 {name}_E1")
            a(f"v_rcp_f32 v{vX0}, v{LS}")
            a(f"v_rcp_f32 v{vX0+1}, v{LS+4}")
            for r in range(8): a(f"v_mov_b32 v{LS+r}, 0")
            for r in range(64): a(f"v_mul_f32 v{O+r}, v{O+r}, v{vX0+(r>>5)}")
            store_ctx((0, 1), sCT1, lambda qi: O + 32 * qi)
            for r in range(64): a(f"v_mov_b32 v{O+r}, 0")
            a.label(name + "_E1")
            if FUSE:
                only(0, ["s_mov_b64 exec, 1", f"v_mov_b32 v{vX0}, 1", f"s_lshl_b32 s3, s{sP}, 10", f"s_add_u32 s3, s3, s{sH}", "s_lshl_b32 s3, s3, 2",
                         f"s_add_u32 s3, s3, {WS_FL3}", f"buffer_store_dword v{vX0}, v{vZERO}, {S4(S_WS)}, s3 offen sc1", "s_mov_b64 exec, -1"],
                     f"s_cmp_lg_u32 s{sT}, 3")
            a(f"s_cmp_lg_u32 s{sT}, 0")
            a(f"s_cbranch_scc1 {name}_E2")
            for x in qread(32768): a(x)
            for r in range(8): a(f"v_mov_b32 v{NEGM+r}, 0")
            a("s_waitcnt lgkmcnt(0)")
            a.label(name + "_E2")
            a(f"s_sub_u32 s{sT2}, s{sS}, s{sMST}")
            a(f"s_sub_u32 s{sT2}, s{sT2}, 1")
            a(f"s_cmp_lt_u32 s{sT2}, 4")
            a(f"s_cbranch_scc1 {name}_EM")
            a(f"s_cmp_lt_u32 s{sS}, 33")
            a(f"s_cbranch_scc1 {name}_E3")
            a(f"s_sub_u32 s{sT2}, s{sS}, 33")
            a(f"s_lshl_b32 s{sT2}, s{sT2}, 1")
            a(f"s_add_u32 s{sT2}, s{sT2}, s{sG}")
            a.label(name + "_EM")
            a(f"s_lshl_b32 s{sT2}, s{sT2}, 5")
            a(f"v_subrev_u32 v{vX0}, s{sT2}, v{vD0}")
            a(f"v_add_u32 v{vX0+1}, 64, v{vX0}")
            for qi in range(2):
                for kt in range(2):
                    for e in range(4):
                        a(f"v_cmp_le_i32 s[{sMK+2*e}:{sMK+2*e+1}], {16*kt+e}, v{vX0+qi}")
                    for e in range(4):
                        r = Sc + 8 * qi + 4 * kt + e
                        a(f"v_cndmask_b32 v{r}, v{vNINF}, v{r}, s[{sMK+2*e}:{sMK+2*e+1}]")
            a.label(name + "_E3")
            a(f"s_cmp_eq_u32 s{sT}, 1")
            a(f"s_cbranch_scc1 {name}_E4")
            a(f"s_cmp_lg_u32 s{sS}, 1")
            a(f"s_cbranch_scc1 {name}_GO")
            a.label(name + "_E4")
            for qi in range(2):
                rowmax(vX0 + qi, vX0 + 2 + qi, Sc + 8 * qi)
                a(f"v_add_f32 v{vX0+qi}, {f32hex(BIAS)}, v{vX0+qi}")
            for r in range(8): a(f"v_sub_f32 v{NEGM+r}, v{NEGM+r}, v{vX0+(r>>2)}")
            for r in range(16): a(f"v_sub_f32 v{Sc+r}, v{Sc+r}, v{vX0+(r>>3)}")
            a(f"s_branch {name}_GO")
        else:
            _, name, Sc, Sn, Pw = hd
            a.label(name + "_SLOW")
            for qi in range(2):
                rowmax(vX0 + qi, vX0 + 2 + qi, Sc + 8 * qi)
                a(f"v_add_f32 v{vX0+qi}, {f32hex(BIAS)}, v{vX0+qi}")
                a(f"v_max_f32 v{vX0+qi}, 0, v{vX0+qi}")
                a(f"v_exp_f32 v{vX0+2+qi}, -v{vX0+qi}")
            for r in range(8): a(f"v_sub_f32 v{NEGM+r}, v{NEGM+r}, v{vX0+(r>>2)}")
            for r in range(16): a(f"v_sub_f32 v{Sn+r}, v{Sn+r}, v{vX0+(r>>3)}")
            for r in range(16): a(f"v_sub_f32 v{Sc+r}, v{Sc+r}, v{vX0+(r>>3)}")
            for r in range(64): a(f"v_mul_f32 v{O+r}, v{O+r}, v{vX0+2+(r>>5)}")
            for r in range(8): a(f"v_mul_f32 v{LS+r}, v{LS+r}, v{vX0+2+(r>>2)}")
            for c, ops in sm_ops(Sc, Pw):
                for x in ops: a(x)
            a(f"s_branch {name}_RET")
    a.label("M_LAST")
    a("s_endpgm")
    return dict(name="gated_mix__ssm_conv_h3__compressed_kv_cla__prompt_kernel" if FUSE else "main_kernel", grid=256, block=512, lds=163840, vgpr=256)

import gen as G1
G1.STAMP = False
KERNELS = {"main": gen_main, "conv": G1.gen_conv, "oproj": G1.gen_oproj, "tail": lambda a: gen_tail.gen_tail(a, {k: v for k, v in globals().items() if not k.startswith("__") and k != "gen_tail"})}

def build(names, path, verbose=False):
    hdr = open("gated_mix__ssm_conv_h3__compressed_kv_cla__prompt.s.ref").read().split("\n")
    hdr = [l for l in hdr if l.startswith(";") and "@launch" not in l and "Override" not in l and "grid=ceil" not in l]
    codes, descs, launches = [], [], []
    for n in names:
        a = Asm()
        info = KERNELS[n](a)
        k = fix_hazards(a.lines, verbose)
        print(f"{n}: {len(a.lines)} lines, {k} nops inserted")
        c, d = kernel_text(info["name"], a.lines, info["vgpr"], extra="  .amdhsa_float_denorm_mode_32 3\n")
        codes.append(c); descs.append(d)
        kn = "" if "plain" in OPT else f"kernel={info['name']} "
        launches.append(f"; @launch {kn}grid=({info['grid']},1,1) block=({info['block']},1,1) lds={info['lds']}")
    txt = "\n".join(hdr + launches) + '\n.amdgcn_target "amdgcn-amd-amdhsa--gfx950"\n.text\n' + "\n".join(codes) + \
          '\n.section .rodata,"a"\n' + "\n".join(descs)
    if "CODE_SPAN" in txt: txt = txt.replace("CODE_SPAN", str(int(OPT.get("ipf", 77000))))
    open(path, "w").write(txt)

if __name__ == "__main__":
    names = sys.argv[2].split(",") if len(sys.argv) > 2 else list(KERNELS)
    build(names, sys.argv[1] if len(sys.argv) > 1 else "k2.s", verbose="-v" in sys.argv)
```
